```python
import torch

def _softmax(x, axis=-1):
    return torch.softmax(x, dim=axis)

def _gelu(x):
    return torch.nn.functional.gelu(x, approximate='tanh')

def _silu(x):
    return torch.nn.functional.silu(x)

def _sigmoid(x):
    return torch.sigmoid(x)

def _layernorm(x, axis=-1, eps=1e-05):
    m = x.mean(dim=axis, keepdim=True)
    v = x.var(dim=axis, keepdim=True, unbiased=False)
    return (x - m) / torch.sqrt(v + eps)

def _scatter_add(tgt, idx, src, axis=0):
    return tgt.clone().index_add_(axis, idx, src)

def _segment_sum(src, seg, n):
    out = torch.zeros((n,) + src.shape[1:], dtype=src.dtype)
    return out.index_add_(0, seg, src)

def _pad(x, pw):
    flat = tuple((v for pair in reversed(pw) for v in pair))
    return torch.nn.functional.pad(x, flat)
kernel_name = 'gated_mix__memory_aug_recurrent_mem_tr__ssm_conv_h3__prompt'

def setup_inputs():

    _w = lambda a: (lambda t: t.to(torch.bfloat16) if t.is_floating_point() else t)(torch.as_tensor(a))

    def _A_setup():
        B, S, Dm = (1, 2048, 640)
        H, Dh = (32, 192)
        M, seg = (8, 32)
        seg = min(seg, S)
        S = S // seg * seg
        return {'x': _w((lambda *s: torch.randn(*s, dtype=torch.bfloat16) * 0.05)(B, S, Dm)), 'mem0': _w((lambda *s: torch.randn(*s, dtype=torch.bfloat16) * 0.4)(B, M, Dm)), 'Wq': _w((lambda *s: torch.randn(*s, dtype=torch.bfloat16) * 6.4)(Dm, H, Dh) * Dm ** (-0.5)), 'Wk': _w((lambda *s: torch.randn(*s, dtype=torch.bfloat16) * 6.4)(Dm, H, Dh) * Dm ** (-0.5)), 'Wv': _w((lambda *s: torch.randn(*s, dtype=torch.bfloat16) * 0.4)(Dm, H, Dh) * Dm ** (-0.5)), 'Wo': _w((lambda *s: torch.randn(*s, dtype=torch.bfloat16) * 0.4)(H, Dh, Dm) * (H * Dh) ** (-0.5)), 'seg_len': seg}
    _A_in = _A_setup()

    def _B_setup():
        B, S, D = (1, 2048, 640)
        ks = 4
        return {'q': _w((lambda *s: torch.randn(*s, dtype=torch.bfloat16) * 0.05)(B, S, D)), 'k': _w((lambda *s: torch.randn(*s, dtype=torch.bfloat16) * 0.4)(B, S, D)), 'v': _w((lambda *s: torch.randn(*s, dtype=torch.bfloat16) * 0.4)(B, S, D)), 'shift_k': _w((lambda *s: torch.randn(*s, dtype=torch.bfloat16) * 0.4)(D, ks) * 0.5), 'ssm_k': _w((lambda *s: torch.randn(*s, dtype=torch.bfloat16) * 0.4)(D, S) * (1.0 / S ** 0.5)), 'ssm_D': _w((lambda *s: torch.randn(*s, dtype=torch.bfloat16) * 0.4)(D))}
    _B_in = _B_setup()
    return {'A_x': _A_in['x'], 'A_mem0': _A_in['mem0'], 'A_Wq': _A_in['Wq'], 'A_Wk': _A_in['Wk'], 'A_Wv': _A_in['Wv'], 'A_Wo': _A_in['Wo'], 'A_seg_len': _A_in['seg_len'], 'B_q': _B_in['q'], 'B_k': _B_in['k'], 'B_v': _B_in['v'], 'B_shift_k': _B_in['shift_k'], 'B_ssm_k': _B_in['ssm_k'], 'B_ssm_D': _B_in['ssm_D'], 'gate_w': _w((lambda *s: torch.randn(*s, dtype=torch.bfloat16) * 0.05)(640) * 16.0)}

def reference(A_x, A_mem0, A_Wq, A_Wk, A_Wv, A_Wo, A_seg_len, B_q, B_k, B_v, B_shift_k, B_ssm_k, B_ssm_D, gate_w):

    def _A_ref(x, mem0, Wq, Wk, Wv, Wo, seg_len):
        B, S, Dm = x.shape
        H, Dh = (Wq.shape[1], Wq.shape[2])
        M = mem0.shape[1]
        scale = Dh ** (-0.5)
        n_seg = S // seg_len
        L = M + seg_len
        idx = torch.arange(L)
        mask = (idx[:, None] < M) | (idx[:, None] >= idx[None, :])
        mem = mem0
        outs = []
        for s in range(n_seg):
            xs = x[:, s * seg_len:(s + 1) * seg_len, :].clone()
            h = torch.concatenate([mem, xs], axis=1)
            q = torch.einsum('btd,dhe->bhte', h, Wq)
            k = torch.einsum('btd,dhe->bhte', h, Wk)
            v = torch.einsum('btd,dhe->bhte', h, Wv)
            scores = torch.einsum('bhqe,bhke->bhqk', q, k) * scale
            scores = torch.where(mask[None, None], scores, -1000000000.0)
            p = _softmax(scores, axis=-1)
            o = torch.einsum('bhqk,bhke->bhqe', p, v)
            o = torch.einsum('bhte,hed->btd', o, Wo)
            mem = o[:, :M, :].clone()
            outs.append(o[:, M:, :])
        return torch.concatenate(outs, axis=1)

    def _B_ref(q, k, v, shift_k, ssm_k, ssm_D):
        B, S, D = q.shape
        ks = shift_k.shape[-1]
        k_pad = _pad(k, ((0, 0), (ks - 1, 0), (0, 0)))
        k_shift = torch.zeros_like(k)
        for t in range(ks):
            k_shift = k_shift + k_pad[:, t:t + S, :] * shift_k[:, ks - 1 - t][None, None, :]
        kv = k_shift * v
        L = 2 * S
        kv_pad = _pad(kv, ((0, 0), (0, S), (0, 0)))
        kf_pad = _pad(ssm_k, ((0, 0), (0, S)))
        kv_f = (lambda x, axes=(-2, -1): torch.fft.rfft2(x.float(), dim=axes))(kv_pad[:, None, :, :], axes=(1, 2))
        kf_f = (lambda x, axes=(-2, -1): torch.fft.rfft2(x.float(), dim=axes))(kf_pad[:, None, :], axes=(1, 2))
        kf_f = (lambda x, *d: x.permute(*d))(kf_f, 1, 2, 0)
        y_f = kv_f * kf_f[None, :, :, :]
        y = (lambda x, s, axes=(-2, -1): torch.fft.irfft2(x, s=s, dim=axes).to(torch.bfloat16))(y_f, (1, L), axes=(1, 2))[:, 0, :S, :]
        y = y + kv * ssm_D[None, None, :]
        return q * y
    x = A_x
    g = _sigmoid((x * gate_w).sum(-1, keepdims=True))
    a = _A_ref(x, A_mem0, A_Wq, A_Wk, A_Wv, A_Wo, A_seg_len)
    b = _B_ref(x, B_k, B_v, B_shift_k, B_ssm_k, B_ssm_D)
    return g * a + (1 - g) * b
```

```python
import re

class Asm:
    def __init__(self):
        self.lines = []
        self.uid = 0
    def __call__(self, s=""):
        for ln in s.split("\n"):
            ln = ln.strip()
            if ln:
                self.lines.append(ln)
    def label(self, name):
        self.lines.append(name + ":")
    def newlabel(self, base):
        self.uid += 1
        return f"L_{base}_{self.uid}"
    def c(self, text):
        self.lines.append("; " + text)
    def nop(self, states):
        while states > 0:
            n = min(states, 16)
            self.lines.append(f"s_nop {n-1}")
            states -= n
    def text(self):
        out = []
        for ln in self.lines:
            if ln.endswith(":") or ln.startswith(".") or ln.startswith(";"):
                out.append(ln)
            else:
                out.append("    " + ln)
        return "\n".join(out) + "\n"

def v(i, n=1):
    return f"v{i}" if n == 1 else f"v[{i}:{i+n-1}]"
def a(i, n=1):
    return f"a{i}" if n == 1 else f"a[{i}:{i+n-1}]"
def s(i, n=1):
    return f"s{i}" if n == 1 else f"s[{i}:{i+n-1}]"

_REG = re.compile(r"^(-|abs\()?([vas])(\d+|\[(\d+):(\d+)\])\)?$")
def regs_of(op):
    op = op.strip()
    if op in ("vcc",): return [("s", "vcc")]
    if op in ("exec",): return [("s", "exec")]
    if op == "m0": return [("s", "m0")]
    m = _REG.match(op)
    if not m: return []
    k = m.group(2)
    if m.group(4) is not None:
        return [(k, i) for i in range(int(m.group(4)), int(m.group(5)) + 1)]
    return [(k, int(m.group(3)))]

TRANS = ("v_exp_f32", "v_log_f32", "v_rcp_f32", "v_rsq_f32", "v_sqrt_f32", "v_sin_f32", "v_cos_f32")

def split_ops(rest):
    ops, depth, cur = [], 0, ""
    for ch in rest:
        if ch == "[": depth += 1
        if ch == "]": depth -= 1
        if ch == "," and depth == 0:
            ops.append(cur.strip()); cur = ""
        else:
            cur += ch
    if cur.strip(): ops.append(cur.strip())
    if ops:
        parts = ops[-1].split()
        ops[-1] = parts[0]
        mods = parts[1:]
    else:
        mods = []
    return ops, mods

class Ins:
    pass

def parse(ln):
    ln = ln.split(";")[0].strip()
    if not ln or ln.endswith(":") or ln.startswith("."): return None
    p = ln.split(None, 1)
    I = Ins(); I.text = ln; I.op = p[0]
    ops, mods = split_ops(p[1]) if len(p) > 1 else ([], [])
    I.mods = mods; I.ops = ops
    op = I.op
    I.w, I.r, I.srcc = [], [], []
    I.kind = "other"; I.states = 1
    R = lambda o: regs_of(o)
    if op == "s_nop":
        I.states = int(ops[0], 0) + 1; I.kind = "nop"
    elif op.startswith("v_mfma"):
        I.kind = "mfma"; I.w = R(ops[0]); I.ab = R(ops[1]) + R(ops[2]); I.srcc = R(ops[3]); I.r = I.ab + I.srcc
        I.passes = 8 if "32x32" in op else 4
    elif op.startswith("v_smfmac"):
        I.kind = "mfma"; I.w = R(ops[0]); I.ab = R(ops[1]) + R(ops[2]) + R(ops[3]); I.srcc = R(ops[0]); I.r = I.ab + I.srcc
        I.passes = 8 if "32x32" in op else 4
    elif op.startswith("v_permlane"):
        I.kind = "valu"; I.perml = True; I.w = R(ops[0]) + R(ops[1]); I.r = list(I.w)
    elif op.startswith("v_readfirstlane") or op.startswith("v_readlane"):
        I.kind = "valu"; I.rdl = True; I.w = R(ops[0]); I.r = sum((R(o) for o in ops[1:]), [])
    elif op.startswith("v_cmp"):
        I.kind = "valu"; I.w = R(ops[0]); I.r = sum((R(o) for o in ops[1:]), [])
    elif op.startswith("v_"):
        I.kind = "valu"; I.w = R(ops[0]); I.r = sum((R(o) for o in ops[1:]), [])
        if "_co_" in op and len(ops) > 1 and ops[1] in ("vcc",) or ("_co_" in op and ops[1].startswith("s[")):
            I.w += R(ops[1]); I.r = sum((R(o) for o in ops[2:]), [])
        if op.startswith("v_fmac") or op.startswith("v_dot2c") or op.startswith("v_writelane") or op.startswith("v_pk_fmac"):
            I.r += I.w
        if "dpp" in op or any(m.startswith(("row_", "quad_perm", "wave_")) for m in mods):
            I.dpp = True; I.dppsrc = R(ops[1]); I.r += I.w
        if op.startswith("v_cndmask") and len(ops) == 3: I.r += [("s", "vcc")]
        I.trans = op.replace("_e32", "").replace("_e64", "") in TRANS
    elif op.startswith(("buffer_", "global_", "flat_")):
        I.kind = "vmem"
        isload = "load" in op
        lds = "lds" in mods or "_lds_" in op
        if op.startswith("buffer_") and ops:
            if lds: I.r = sum((R(o) for o in ops), []) + [("s", "m0")]; I.lds = True
            elif isload: I.w = R(ops[0]); I.r = sum((R(o) for o in ops[1:]), [])
            else:
                I.r = sum((R(o) for o in ops), []); I.data = R(ops[0])
                if "atomic" in op and "sc0" in mods: I.w = R(ops[0])
        elif ops:
            if lds: I.r = sum((R(o) for o in ops), []) + [("s", "m0")]; I.lds = True
            elif isload or ("atomic" in op and "sc0" in mods): I.w = R(ops[0]); I.r = sum((R(o) for o in ops[1:]), [])
            else: I.r = sum((R(o) for o in ops), []); I.data = R(ops[1])
        I.wide = ("x4" in op or "x3" in op) and not isload
    elif op.startswith("ds_"):
        I.kind = "ds"
        if "read" in op or "permute" in op or "swizzle" in op: I.w = R(ops[0]); I.r = sum((R(o) for o in ops[1:]), [])
        else: I.r = sum((R(o) for o in ops), [])
    elif op.startswith("s_"):
        I.kind = "salu"
        if op.startswith(("s_cmp", "s_cbranch", "s_branch", "s_waitcnt", "s_barrier", "s_sleep", "s_endpgm", "s_setprio", "s_bitcmp")):
            I.r = sum((R(o) for o in ops), [])
        else:
            I.w = R(ops[0]) if ops else []; I.r = sum((R(o) for o in ops[1:]), [])
            if "saveexec" in op: I.w += [("s", "exec")]
    return I

def check_hazards(lines, verbose=True):
    ins = []
    for n, ln in enumerate(lines):
        I = parse(ln)
        if I is not None:
            I.n = n; ins.append(I)
    probs = []
    W = 24
    for i, C in enumerate(ins):
        dist = 0
        for j in range(i - 1, max(-1, i - W), -1):
            P = ins[j]
            if P.op in ("s_branch", "s_endpgm", "s_setpc_b64"): break
            need = 0; why = ""
            pw = set(P.w); cr = set(C.r); cw = set(C.w)
            vw = {x for x in pw if x[0] in "va"}
            sw = {x for x in pw if x[0] == "s"}
            if P.kind == "valu":
                if C.kind == "mfma" and vw & cr: need, why = 2, "VALU->MFMA operand"
                if getattr(C, "dpp", False) and vw & set(C.dppsrc): need, why = max(need, 2), "VALU->DPP"
                if getattr(C, "perml", False) and vw & cr: need, why = max(need, 2), "VALU->permlane"
                if getattr(C, "rdl", False) and vw & cr: need, why = max(need, 1), "VALU->readlane"
                if getattr(P, "trans", False) and C.kind == "valu" and not getattr(C, "trans", False) and vw & cr: need, why = max(need, 1), "trans->VALU"
                if getattr(P, "trans", False) and C.kind in ("mfma",) and vw & cr: need, why = max(need, 2), "trans->MFMA"
                if sw & cr:
                    if C.kind == "valu": need, why = max(need, 4 if getattr(C, "rdl", False) else 2), "VALU sgpr->VALU"
                    if C.kind == "vmem": need, why = max(need, 5), "VALU sgpr->VMEM"
            if P.kind == "mfma":
                n8 = {4: 8, 8: 12}[P.passes]
                if C.kind == "mfma":
                    if vw & set(C.ab): need, why = n8, "MFMA D->MFMA A/B"
                    elif vw & set(C.srcc):
                        if not (C.srcc == P.w and C.passes == P.passes): need, why = {4: 6, 8: 10}[P.passes], "MFMA D->overlapped C"
                    elif vw & cw: need, why = {4: 6, 8: 10}[P.passes], "MFMA D WAW (different C)"
                elif C.kind in ("valu", "vmem", "ds") and vw & (cr | cw): need, why = n8, "MFMA D->VALU/VMEM/DS"
                if C.kind == "valu" and set(P.srcc) & cw: need, why = max(need, {4: 3, 8: 7}[P.passes]), why or "MFMA C WAR"
            if P.kind == "vmem" and getattr(P, "wide", False) and hasattr(P, "data"):
                if set(P.data) & cw: need, why = max(need, 2 if C.kind == "valu" else 1), "wide store data WAR"
            if P.kind == "salu" and ("s", "m0") in pw and getattr(C, "lds", False): need, why = max(need, 1), "M0->LDS DMA"
            if need > dist:
                probs.append(f"line {C.n}: '{C.text}' needs {need} states after '{P.text}' ({why}), has {dist}")
            dist += P.states
            if dist >= 13: break
    if verbose:
        for p in probs: print("HAZARD", p)
    return probs
```

```python
import math
from asmlib import v, a, s

def gen_bg(A, G):
    P, WSR = G.P, G.WSR
    sG, sR, sW, sS, sX = G.sG, G.sR, G.sW, G.sS, G.sX
    sT0, sT1, sT2, sT3 = G.sT0, G.sT1, G.sT2, G.sT3
    OOB = G.OOB
    budget_check, srd, f2u = G.budget_check, G.srd, G.f2u
    sWV, sCU, sLds, sI, sCh, sMaskHi = 30, 31, 32, 33, 34, 35
    sK, sV, sF, sAux = 36, 40, 44, 48
    sPk, sPv, sPsk, sPf, sPd, sPg, sPo = 52, 54, 56, 58, 60, 62, 64
    sD = 66
    sU, sSeg, sJ, sB0, sB1 = 74, 75, 76, 77, 78
    XS = f"s[{sX}:{sX+3}]"
    vL16, vFlagO = 1, 2
    vT = 4
    UP, CP = 4608, 4160
    FOFF = 8 * UP
    def lo(d, x): A(f"v_lshlrev_b32 v{d}, 16, v{x}")
    def hi(d, x): A(f"v_and_b32 v{d}, s{sMaskHi}, v{x}")

    A.label("L_bg")
    A(f"s_sub_u32 s{sT0}, s{sR}, 28")
    A(f"s_lshl_b32 s{sT0}, s{sT0}, 3")
    A(f"s_add_u32 s{sT0}, s{sT0}, s{sG}")
    A(f"s_lshl_b32 s{sT0}, s{sT0}, 1")
    A(f"s_sub_u32 s{sT1}, s{sW}, 2")
    A(f"s_add_u32 s{sWV}, s{sT0}, s{sT1}")
    A(f"s_mul_i32 s{sLds}, s{sT1}, {FOFF + 8 * CP}")
    A(f"s_load_dwordx4 s[{sPk}:{sPk+3}], s[0:1], 64")
    A(f"s_load_dwordx4 s[{sPsk}:{sPsk+3}], s[0:1], 80")
    A(f"s_load_dwordx4 s[{sPd}:{sPd+3}], s[0:1], 96")
    A(f"s_load_dwordx2 s[{sPo}:{sPo+1}], s[0:1], 112")
    A(f"s_mov_b32 s{sMaskHi}, 0xffff0000")
    A(f"s_mov_b32 s{sS}, 0")
    A(f"v_lshlrev_b32 v{vL16}, 4, v0")
    A(f"v_cmp_eq_u32 vcc, 0, v0")
    A(f"v_mov_b32 v{vT}, {OOB}")
    A("s_nop 0")
    A(f"v_cndmask_b32 v{vFlagO}, v{vT}, v0, vcc")
    A("s_waitcnt lgkmcnt(0)")
    for dst, src, size in ((sK, sPk, 2048 * 1280), (sV, sPv, 2048 * 1280), (sAux, sPg, 1280)):
        A(f"s_mov_b64 s[{dst}:{dst+1}], s[{src}:{src+1}]")
        srd(A, dst, size)

    vGW, vXr, vAcc, vXo, vGo = 24, 64, 84, 85, 86
    A(f"v_and_b32 v{vT}, 15, v0")
    A(f"v_lshlrev_b32 v{vT}, 4, v{vT}")
    for i in range(5):
        A(f"buffer_load_dwordx4 {v(vXr+4*i,4)}, v{vT}, s[{sAux}:{sAux+3}], 0 offen offset:{256*i}")
    A(f"v_lshrrev_b32 v{vT+1}, 4, v0")
    A(f"v_mul_u32_u24 v{vXo}, 1280, v{vT+1}")
    A(f"v_add_u32 v{vXo}, v{vXo}, v{vT}")
    A(f"v_lshlrev_b32 v{vT+1}, 2, v{vT+1}")
    A(f"v_cmp_eq_u32 vcc, 0, v{vT}")
    A(f"v_mov_b32 v{vT+2}, {OOB}")
    A("s_nop 0")
    A(f"v_cndmask_b32 v{vGo}, v{vT+2}, v{vT+1}, vcc")
    A(f"s_mul_i32 s{sB0}, s{sWV}, 40960")
    A(f"s_lshl_b32 s{sB1}, s{sWV}, 7")
    A(f"s_add_u32 s{sB1}, s{sB1}, {G.GV}")
    A("s_waitcnt vmcnt(0)")
    for i in range(20):
        lo(vGW + 2 * i, vXr + i); hi(vGW + 2 * i + 1, vXr + i)
    A(f"s_mov_b32 s{sI}, 8")
    Lg = A.newlabel("gate")
    A.label(Lg)
    for i in range(5):
        A(f"buffer_load_dwordx4 {v(vXr+4*i,4)}, v{vXo}, {XS}, s{sB0} offen offset:{256*i}")
    A(f"v_mov_b32 v{vAcc}, 0")
    for i in range(20):
        if i % 4 == 0: A(f"s_waitcnt vmcnt({4 - i // 4})")
        lo(vT, vXr + i); hi(vT + 1, vXr + i)
        A(f"v_pk_mul_f32 {v(vT,2)}, {v(vT,2)}, {v(vGW+2*i,2)}")
        A(f"v_cvt_pk_bf16_f32 v{vT+2}, v{vT}, v{vT+1}")
        lo(vT, vT + 2); hi(vT + 1, vT + 2)
        A(f"v_add_f32 v{vAcc}, v{vAcc}, v{vT}")
        A(f"v_add_f32 v{vAcc}, v{vAcc}, v{vT+1}")
    for sh in (8, 4, 2, 1):
        A("s_nop 1")
        A(f"v_add_f32_dpp v{vAcc}, v{vAcc}, v{vAcc} row_ror:{sh} row_mask:0xf bank_mask:0xf")
    A(f"v_cvt_pk_bf16_f32 v{vAcc}, v{vAcc}, v{vAcc}")
    lo(vAcc, vAcc)
    A(f"v_mul_f32 v{vAcc}, {f2u(-math.log2(math.e)):#x}, v{vAcc}")
    A(f"v_exp_f32 v{vAcc}, v{vAcc}")
    A("s_nop 0")
    A(f"v_add_f32 v{vAcc}, 1.0, v{vAcc}")
    A(f"v_rcp_f32 v{vAcc}, v{vAcc}")
    A("s_nop 0")
    A(f"v_cvt_pk_bf16_f32 v{vAcc}, v{vAcc}, v{vAcc}")
    lo(vAcc, vAcc)
    A(f"buffer_store_dword v{vAcc}, v{vGo}, {WSR}, s{sB1} offen sc1")
    A(f"s_add_u32 s{sB0}, s{sB0}, 5120")
    A(f"s_add_u32 s{sB1}, s{sB1}, 16")
    A(f"s_sub_u32 s{sI}, s{sI}, 1")
    A(f"s_cmp_lg_u32 s{sI}, 0")
    A(f"s_cbranch_scc1 {Lg}")
    A(f"s_lshl_b32 s{sT0}, s{sWV}, 2")
    A(f"s_add_u32 s{sT0}, s{sT0}, {G.GFLAG}")
    A(f"v_mov_b32 v{vT}, 1")
    A("s_waitcnt vmcnt(0)")
    A(f"buffer_store_dword v{vT}, v{vFlagO}, {WSR}, s{sT0} offen sc1")

    vRow, vRun, vAo, vBo, vEo, vCo, vCw, vCo2 = 20, 21, 22, 23, 24, 25, 26, 27
    vSK = 28
    vKH = 60
    vKR, vVR = 92, 124
    vKV = 156
    vW = 220
    A(f"s_mov_b32 s{sCU}, s{sWV}")
    A(f"v_mul_u32_u24 v{vRow}, {32 * 1280}, v0")
    A(f"v_lshlrev_b32 v{vRun}, 6, v0")
    A(f"v_sub_u32 v{vRun}, {2040 * 2}, v{vRun}")
    A(f"v_add_u32 v{vRun}, s{sLds}, v{vRun}")
    A(f"v_and_b32 v{vT}, 15, v0")
    A(f"v_lshrrev_b32 v{vT+1}, 4, v0")
    A(f"v_add_u32 v{vT+2}, 1, v{vT}")
    A(f"v_and_b32 v{vT+3}, 7, v{vT+2}")
    A(f"v_mul_u32_u24 v{vT+3}, {CP}, v{vT+3}")
    A(f"v_lshrrev_b32 v{vT+2}, 3, v{vT+2}")
    A(f"v_add_u32 v{vT+2}, v{vT+2}, v{vT+1}")
    A(f"v_lshl_add_u32 v{vAo}, v{vT+2}, 4, v{vT+3}")
    A(f"s_add_u32 s{sT0}, s{sLds}, {FOFF}")
    A(f"v_add_u32 v{vAo}, s{sT0}, v{vAo}")
    A(f"v_add_u32 v{vCw}, s{sT0}, v{vL16}")
    A(f"v_lshlrev_b32 v{vT+2}, 5, v{vT}")
    A(f"v_lshlrev_b32 v{vT+3}, 4, v{vT+1}")
    A(f"v_sub_u32 v{vBo}, v{vT+3}, v{vT+2}")
    A(f"v_add_u32 v{vBo}, {(2032 - 1792) * 2}, v{vBo}")
    A(f"v_add_u32 v{vBo}, s{sLds}, v{vBo}")
    A(f"v_lshlrev_b32 v{vT+3}, 3, v{vT+1}")
    A(f"v_add_u32 v{vT+3}, v{vT+3}, v{vT+2}")
    A(f"v_sub_u32 v{vEo}, {(2044 - 1792) * 2}, v{vT+3}")
    A(f"v_add_u32 v{vEo}, s{sLds}, v{vEo}")
    A(f"v_subrev_u32 v{vCo}, 32, v{vL16}")
    A(f"v_subrev_u32 v{vCo2}, 16, v{vL16}")
    Lu = A.newlabel("unit")
    A.label(Lu)
    A(f"s_mov_b64 s[{sAux}:{sAux+1}], s[{sPsk}:{sPsk+1}]")
    srd(A, sAux, 5120)
    A(f"s_lshl_b32 s{sT0}, s{sCU}, 6")
    A(f"v_mov_b32 v{vT}, 0")
    for i in range(4):
        A(f"buffer_load_dwordx4 {v(vW+4*i,4)}, v{vT}, s[{sAux}:{sAux+3}], s{sT0} offen offset:{16*i}")
    A(f"s_mov_b64 s[{sF}:{sF+1}], s[{sPd}:{sPd+1}]")
    srd(A, sF, 1280)
    A(f"s_lshl_b32 s{sB0}, s{sCU}, 4")
    A(f"buffer_load_dwordx4 {v(vW+16,4)}, v{vT}, s[{sF}:{sF+3}], s{sB0} offen")
    A(f"v_subrev_u32 v{vT+1}, {3 * 1280}, v{vRow}")
    A(f"v_add_u32 v{vT+1}, s{sB0}, v{vT+1}")
    for i in range(3):
        A(f"buffer_load_dwordx4 {v(vW+20+4*i,4)}, v{vT+1}, s[{sK}:{sK+3}], 0 offen offset:{1280*i}")
    def rowload(i):
        A(f"s_add_u32 s{sT0}, s{sB1}, {1280 * i}")
        A(f"buffer_load_dwordx4 {v(vKR+4*i,4)}, v{vRow}, s[{sK}:{sK+3}], s{sT0} offen")
        A(f"buffer_load_dwordx4 {v(vVR+4*i,4)}, v{vRow}, s[{sV}:{sV+3}], s{sT0} offen")
    A(f"s_mov_b32 s{sB1}, s{sB0}")
    for i in range(8): rowload(i)
    for r in range(4): A(f"v_mov_b32 v{vT+4+r}, 0")
    A(f"v_min_u32 v{vT+2}, 31, v0")
    A(f"v_lshlrev_b32 v{vT+2}, 4, v{vT+2}")
    A(f"v_add_u32 v{vT+2}, s{sLds}, v{vT+2}")
    for c in range(8):
        A(f"ds_write_b128 v{vT+2}, {v(vT+4,4)} offset:{c * UP + 4096}")
    A("s_waitcnt vmcnt(16)")
    for c in range(8):
        for h in range(2):
            lo(vSK + 8 * (2 * h) + c, vW + 2 * c + h); hi(vSK + 8 * (2 * h + 1) + c, vW + 2 * c + h)
    for p in range(4):
        lo(vT + 4, vW + 16 + p); hi(vT + 5, vW + 16 + p)
        A("s_nop 0")
        A(f"v_readfirstlane_b32 s{sD+2*p}, v{vT+4}")
        A(f"v_readfirstlane_b32 s{sD+2*p+1}, v{vT+5}")
    for i in range(3):
        for p in range(4):
            lo(vKH + 8 * (i + 1) + 2 * p, vW + 20 + 4 * i + p); hi(vKH + 8 * (i + 1) + 2 * p + 1, vW + 20 + 4 * i + p)
    A(f"v_mov_b32 v{vT}, v{vRun}")
    A(f"s_mov_b32 s{sI}, 4")
    La = A.newlabel("kv")
    A.label(La)
    A(f"s_add_u32 s{sB1}, s{sB1}, {8 * 1280}")
    def rnd(pair):
        A(f"v_cvt_pk_bf16_f32 v{vT+2}, v{pair}, v{pair+1}")
        lo(pair, vT + 2); hi(pair + 1, vT + 2)
    for i in range(8):
        A("s_waitcnt vmcnt(14)")
        for p in range(4):
            lo(vKH + 8 * (i & 3) + 2 * p, vKR + 4 * i + p); hi(vKH + 8 * (i & 3) + 2 * p + 1, vKR + 4 * i + p)
            lo(vKV + 8 * i + 2 * p, vVR + 4 * i + p); hi(vKV + 8 * i + 2 * p + 1, vVR + 4 * i + p)
        rowload(i)
        for p in range(4):
            acc, trm = vT + 4, vT + 6
            for m in (3, 2, 1, 0):
                d = acc if m == 3 else trm
                A(f"v_pk_mul_f32 {v(d,2)}, {v(vKH+8*((i-m)&3)+2*p,2)}, {v(vSK+8*m+2*p,2)}")
                rnd(d)
                if m != 3:
                    A(f"v_pk_add_f32 {v(acc,2)}, {v(acc,2)}, {v(trm,2)}")
                    rnd(acc)
            A(f"v_pk_mul_f32 {v(vKV+8*i+2*p,2)}, {v(acc,2)}, {v(vKV+8*i+2*p,2)}")
    for c in range(8):
        for d in range(4):
            A(f"v_cvt_pk_bf16_f32 v{vW+4*(c&1)+d}, v{vKV+8*(7-2*d)+c}, v{vKV+8*(6-2*d)+c}")
        A(f"ds_write_b128 v{vT}, {v(vW+4*(c&1),4)} offset:{c * UP}")
    A(f"v_subrev_u32 v{vT}, 16, v{vT}")
    A(f"s_sub_u32 s{sI}, s{sI}, 1")
    A(f"s_cmp_lg_u32 s{sI}, 0")
    A(f"s_cbranch_scc1 {La}")
    A(f"s_mov_b64 s[{sF}:{sF+1}], s[{sPf}:{sPf+1}]")
    srd(A, sF, 4096)
    A(f"s_lshl_b32 s{sT0}, s{sCU}, 15")
    A(f"s_add_u32 s{sF}, s{sF}, s{sT0}")
    A(f"s_addc_u32 s{sF+1}, s{sF+1}, 0")
    A(f"s_mov_b32 s{sCh}, 0")
    vD, vAcc8, vAf, vBf = 28, 72, 104, 112
    vE, vD1, vE1 = 144, 152, 160
    vBa, vEa = 168, 169
    A("s_waitcnt vmcnt(0)")
    Lc = A.newlabel("chan")
    A.label(Lc)
    for m in range(5):
        for h in range(2):
            if m == 0: A(f"buffer_load_dwordx4 {v(vD+4*h,4)}, v{vCo if h == 0 else vCo2}, s[{sF}:{sF+3}], 0 offen")
            else: A(f"buffer_load_dwordx4 {v(vD+8*m+4*h,4)}, v{vL16}, s[{sF}:{sF+3}], 0 offen offset:{1024*m-32+16*h}")
    A(f"s_mul_i32 s{sT0}, s{sCh}, {UP}")
    A(f"v_add_u32 v{vBa}, s{sT0}, v{vBo}")
    A(f"v_add_u32 v{vEa}, s{sT0}, v{vEo}")
    for m in range(5):
        D = vD + 8 * m
        A(f"s_waitcnt vmcnt({8 - 2 * m})")
        if m == 4:
            A("s_mov_b64 exec, 15")
        for k in range(7): A(f"v_alignbit_b32 v{vE+k}, v{D+k+1}, v{D+k}, 16")
        for k in range(6): A(f"v_mov_b32 v{vD1+k}, v{D+k+1}")
        for k in range(6): A(f"v_mov_b32 v{vE1+k}, v{vE+k+1}")
        src = [D, vE, vD1, vE1, D + 2, vE + 2, vD1 + 2, vE1 + 2]
        for sg in range(8):
            A(f"ds_write_b128 v{vCw}, {v(src[sg],4)} offset:{sg * CP + 1024 * m}")
    A("s_mov_b64 exec, -1")
    A(f"s_add_u32 s{sF}, s{sF}, 4096")
    A(f"s_addc_u32 s{sF+1}, s{sF+1}, 0")
    A("s_waitcnt lgkmcnt(0)")
    work = [(dl, T) for dl in range(64) for T in range(dl // 8, 8)]
    NB = 8
    def rdB(n):
        dl, T = work[n]
        A(f"ds_read_b128 {v(vBf+4*(n%NB),4)}, v{vBa} offset:{(7-T)*512 + 64*dl}")
    def rdA(dl): A(f"ds_read_b128 {v(vAf+4*(dl&1),4)}, v{vAo} offset:{64*dl}")
    queue = []
    rdA(0); queue.append(("A", 0))
    LOOK = 6
    for n in range(LOOK): rdB(n); queue.append(("B", n))
    for n, (dl, T) in enumerate(work):
        if T == dl // 8 and dl + 1 < 64:
            rdA(dl + 1); queue.append(("A", dl + 1))
        if n + LOOK < len(work):
            rdB(n + LOOK); queue.append(("B", n + LOOK))
        need = max(queue.index(x) for x in (("A", dl), ("B", n)) if x in queue) if (("A", dl) in queue or ("B", n) in queue) else -1
        if need >= 0:
            A(f"s_waitcnt lgkmcnt({len(queue) - 1 - need})")
            queue = queue[need + 1:]
        cc = "0" if dl == 0 else v(vAcc8 + 4 * T, 4)
        A(f"v_mfma_f32_16x16x32_bf16 {v(vAcc8+4*T,4)}, {v(vAf+4*(dl&1),4)}, {v(vBf+4*(n%NB),4)}, {cc}")
    for T in range(8):
        A(f"ds_read_b64 {v(vBf+2*T,2)}, v{vEa} offset:{(7-T)*512}")
    A(f"s_mov_b32 s{sT1}, s{sD}")
    for c in range(1, 8):
        A(f"s_cmp_eq_u32 s{sCh}, {c}")
        A(f"s_cselect_b32 s{sT1}, s{sD+c}, s{sT1}")
    A("s_waitcnt lgkmcnt(0)")
    for T in range(8):
        acc = vAcc8 + 4 * T
        rnd(acc); rnd(acc + 2)
        hi(vT + 4, vBf + 2 * T + 1); lo(vT + 5, vBf + 2 * T + 1); hi(vT + 6, vBf + 2 * T); lo(vT + 7, vBf + 2 * T)
        for r in range(4): A(f"v_mul_f32 v{vT+4+r}, s{sT1}, v{vT+4+r}")
        rnd(vT + 4); rnd(vT + 6)
        A(f"v_pk_add_f32 {v(acc,2)}, {v(acc,2)}, {v(vT+4,2)}")
        A(f"v_pk_add_f32 {v(acc+2,2)}, {v(acc+2,2)}, {v(vT+6,2)}")
        A(f"v_cvt_pk_bf16_f32 v{vT+8}, v{acc+3}, v{acc+2}")
        A(f"v_cvt_pk_bf16_f32 v{vT+9}, v{acc+1}, v{acc}")
        A(f"ds_write_b64 v{vEa}, {v(vT+8,2)} offset:{(7-T)*512}")
    A(f"s_add_u32 s{sCh}, s{sCh}, 1")
    A(f"s_cmp_lg_u32 s{sCh}, 8")
    A(f"s_cbranch_scc1 {Lc}")
    vY = 28
    A(f"v_mov_b32 v{vT}, v{vRun}")
    A(f"s_mov_b32 s{sI}, 4")
    A(f"s_lshl_b32 s{sB1}, s{sCU}, 4")
    A("s_waitcnt lgkmcnt(0)")
    Ld = A.newlabel("bout")
    A.label(Ld)
    for i in range(8):
        A(f"s_add_u32 s{sT0}, s{sB1}, {1280 * i}")
        A(f"buffer_load_dwordx4 {v(vKR+4*i,4)}, v{vRow}, {XS}, s{sT0} offen")
    for c in range(8):
        A(f"ds_read_b128 {v(vY+4*c,4)}, v{vT} offset:{c * UP}")
    A("s_waitcnt lgkmcnt(0)")
    for i in range(8):
        A(f"s_waitcnt vmcnt({7})")
        d = (7 - i) >> 1
        ex = lo if (7 - i) % 2 == 0 else hi
        for p in range(4):
            lo(vT + 4, vKR + 4 * i + p); hi(vT + 5, vKR + 4 * i + p)
            ex(vT + 6, vY + 4 * (2 * p) + d); ex(vT + 7, vY + 4 * (2 * p + 1) + d)
            A(f"v_pk_mul_f32 {v(vT+4,2)}, {v(vT+4,2)}, {v(vT+6,2)}")
            A(f"v_cvt_pk_bf16_f32 v{vVR+4*i+p}, v{vT+4}, v{vT+5}")
        A(f"s_add_u32 s{sT0}, s{sB1}, {G.BY + 1280 * i}")
        A(f"buffer_store_dwordx4 {v(vVR+4*i,4)}, v{vRow}, {WSR}, s{sT0} offen sc1")
    A(f"v_subrev_u32 v{vT}, 16, v{vT}")
    A(f"s_add_u32 s{sB1}, s{sB1}, {8 * 1280}")
    A(f"s_sub_u32 s{sI}, s{sI}, 1")
    A(f"s_cmp_lg_u32 s{sI}, 0")
    A(f"s_cbranch_scc1 {Ld}")
    A(f"s_lshl_b32 s{sT0}, s{sCU}, 2")
    A(f"s_add_u32 s{sT0}, s{sT0}, {G.CVFLAG}")
    A(f"v_mov_b32 v{vT}, 1")
    A("s_waitcnt vmcnt(0)")
    A(f"buffer_store_dword v{vT}, v{vFlagO}, {WSR}, s{sT0} offen sc1")
    A(f"s_add_u32 s{sCU}, s{sCU}, 64")
    A(f"s_cmp_lt_u32 s{sCU}, 80")
    A(f"s_cbranch_scc1 {Lu}")

    vFo, vBo2, vGo2, vFl = 20, 21, 22, 23
    vPp, vB, vGt = 28, 160, 170
    A(f"s_mov_b64 s[{sAux}:{sAux+1}], s[{sPo}:{sPo+1}]")
    srd(A, sAux, 2048 * 1280)
    A(f"v_and_b32 v{vT}, 15, v0")
    A(f"v_lshrrev_b32 v{vT+1}, 4, v0")
    A(f"v_mul_u32_u24 v{vBo2}, 1280, v{vT}")
    A(f"v_lshl_add_u32 v{vBo2}, v{vT+1}, 3, v{vBo2}")
    A(f"v_lshlrev_b32 v{vGo2}, 2, v{vT}")
    A(f"v_lshlrev_b32 v{vFo}, 2, v0")
    Lw = A.newlabel("gw")
    A(f"s_mov_b32 s{sT0}, {G.GFLAG}")
    A.label(Lw)
    A(f"buffer_load_dword v{vFl}, v{vFo}, {WSR}, s{sT0} offen sc1")
    budget_check(A, 10)
    A("s_waitcnt vmcnt(0)")
    A(f"v_cmp_ne_u32 vcc, 1, v{vFl}")
    A(f"s_cbranch_vccnz {Lw}")
    A(f"s_mov_b32 s{sU}, s{sWV}")
    Lm = A.newlabel("mix")
    A.label(Lm)
    A(f"s_mul_i32 s{sSeg}, s{sU}, 3277")
    A(f"s_lshr_b32 s{sSeg}, s{sSeg}, 16")
    A(f"s_mul_i32 s{sT0}, s{sSeg}, 20")
    A(f"s_sub_u32 s{sJ}, s{sU}, s{sT0}")
    A(f"s_lshr_b32 s{sT0}, s{sJ}, 1")
    A(f"s_lshl_b32 s{sT1}, s{sT0}, 7")
    A(f"s_add_u32 s{sT1}, s{sT1}, {G.XPFLAG}")
    A(f"s_lshl_b32 s{sT2}, s{sT0}, 5")
    A(f"s_add_u32 s{sT2}, s{sT2}, {G.CVFLAG}")
    A(f"v_and_b32 v{vT}, 31, v0")
    A(f"v_lshlrev_b32 v{vT}, 2, v{vT}")
    A(f"v_and_b32 v{vT+1}, 7, v0")
    A(f"v_lshlrev_b32 v{vT+1}, 2, v{vT+1}")
    Lw = A.newlabel("mw")
    A.label(Lw)
    A(f"buffer_load_dword v{vFl}, v{vT}, {WSR}, s{sT1} offen sc1")
    A(f"buffer_load_dword v{vT+2}, v{vT+1}, {WSR}, s{sT2} offen sc1")
    budget_check(A, 11)
    A("s_waitcnt vmcnt(0)")
    A(f"v_cmp_ge_u32 vcc, s{sSeg}, v{vFl}")
    A(f"v_cmp_ne_u32 s[80:81], 1, v{vT+2}")
    A("s_or_b64 vcc, vcc, s[80:81]")
    Lgo = A.newlabel("mgo")
    A(f"s_cbranch_vccz {Lgo}")
    A(f"s_sleep {P.get('mix_sleep', 8)}")
    A(f"s_branch {Lw}")
    A.label(Lgo)
    A(f"s_mul_i32 s{sB0}, s{sSeg}, 655360")
    A(f"s_lshl_b32 s{sT0}, s{sJ}, 15")
    A(f"s_add_u32 s{sB0}, s{sB0}, s{sT0}")
    A(f"s_add_u32 s{sB0}, s{sB0}, {G.XPART}")
    A(f"s_and_b32 s{sT0}, s{sJ}, 1")
    A(f"s_lshl_b32 s{sT1}, s{sSeg}, 1")
    A(f"s_add_u32 s{sT0}, s{sT0}, s{sT1}")
    A(f"s_lshl_b32 s{sT2}, s{sT0}, 6")
    A(f"s_add_u32 s{sT2}, s{sT2}, {G.GV}")
    A(f"buffer_load_dword v{vGt}, v{vGo2}, {WSR}, s{sT2} offen sc1")
    A(f"s_mul_i32 s{sB1}, s{sT0}, 20480")
    A(f"s_lshr_b32 s{sT1}, s{sJ}, 1")
    A(f"s_lshl_b32 s{sT1}, s{sT1}, 7")
    A(f"s_add_u32 s{sB1}, s{sB1}, s{sT1}")
    A(f"s_add_u32 s{sT2}, s{sB1}, {G.BY}")
    for ct in range(4):
        A(f"buffer_load_dwordx2 {v(vB+2*ct,2)}, v{vBo2}, {WSR}, s{sT2} offen offset:{32*ct} sc1")
    for g in range(8):
        if g: A(f"s_add_u32 s{sB0}, s{sB0}, 4096")
        for ct in range(4):
            A(f"buffer_load_dwordx4 {v(vPp+16*g+4*ct,4)}, v{vL16}, {WSR}, s{sB0} offen offset:{1024*ct} sc1")
    A("s_waitcnt vmcnt(32)")
    A(f"v_sub_f32 v{vGt+1}, 1.0, v{vGt}")
    A(f"v_cvt_pk_bf16_f32 v{vGt+1}, v{vGt+1}, v{vGt+1}")
    lo(vGt + 1, vGt + 1)
    for g in range(1, 8):
        A(f"s_waitcnt vmcnt({28 - 4 * g})")
        for i in range(8):
            A(f"v_pk_add_f32 {v(vPp+2*i,2)}, {v(vPp+2*i,2)}, {v(vPp+16*g+2*i,2)}")
    for ct in range(4):
        for h in range(2):
            x = vPp + 4 * ct + 2 * h
            rnd(x)
            A(f"v_mul_f32 v{x}, v{vGt}, v{x}")
            A(f"v_mul_f32 v{x+1}, v{vGt}, v{x+1}")
            rnd(x)
            lo(vT + 4, vB + 2 * ct + h); hi(vT + 5, vB + 2 * ct + h)
            A(f"v_mul_f32 v{vT+4}, v{vGt+1}, v{vT+4}")
            A(f"v_mul_f32 v{vT+5}, v{vGt+1}, v{vT+5}")
            rnd(vT + 4)
            A(f"v_pk_add_f32 {v(x,2)}, {v(x,2)}, {v(vT+4,2)}")
            A(f"v_cvt_pk_bf16_f32 v{vB+2*ct+h}, v{x}, v{x+1}")
        A(f"buffer_store_dwordx2 {v(vB+2*ct,2)}, v{vBo2}, s[{sAux}:{sAux+3}], s{sB1} offen offset:{32*ct}")
    A(f"s_add_u32 s{sU}, s{sU}, 64")
    A(f"s_cmp_lt_u32 s{sU}, {20 * P['nseg']}")
    A(f"s_cbranch_scc1 {Lm}")
    A("s_endpgm")
```

```python
import sys, math, struct
from asmlib import Asm, v, a, s, check_hazards

NAME = "gated_mix__memory_aug_recurrent_mem_tr__ssm_conv_h3__prompt_kernel"

P = dict(
    s3_sleep=16,
    h1_nop=0,
    h2_sleep=8,
    prof=0,
    nseg=64,
    force_global=0,
)

MEMR   = 0x0
QKVR   = 0x50000
PART   = 0x170000
PART_SLOT = 81920
PXR    = 0x210000
POISON_END = 0x270000
FLAGS  = 0x270000
XFLAG  = FLAGS
XPFLAG = FLAGS + 0x1000
CVFLAG = FLAGS + 0x2000
GFLAG  = FLAGS + 0x2200
FLAGS_END = FLAGS + 0x3000
XR     = 0x280000
XR_HEAD = 36864 + 1024
XR_SLOT = 4 * XR_HEAD
XR_G   = 5 * XR_SLOT
XPART  = 0x900000
BY     = 0x3200000
GV     = 0x3500000
PROF   = 0x3600000
MEMDBG = 0x3700000
WS_SIZE = 0x10000000
OOB = 0x20000000

def f2u(x): return struct.unpack("<I", struct.pack("<f", x))[0]

sWS, sX, sRO, sDBG = 4, 8, 12, 16
sG, sR, sW, sBUD, sS, sXCC = 20, 21, 22, 23, 24, 25
sT0, sT1, sT2, sT3 = 26, 27, 28, 29

def srd(A, base, size):
    A(f"s_and_b32 s{base+1}, s{base+1}, 0xffff")
    A(f"s_mov_b32 s{base+2}, {size}")
    A(f"s_mov_b32 s{base+3}, 0x20000")

def budget_check(A, code):
    A(f"s_sub_u32 s{sBUD}, s{sBUD}, 1")
    A(f"s_movk_i32 s{sT3}, {code}")
    A(f"s_cbranch_scc1 L_fail")

def stamp(A, idx, vt=250):
    if P["prof"] not in (1, 2): return
    A(f"s_memrealtime s[90:91]")
    A(f"s_waitcnt lgkmcnt(0)")
    A(f"v_writelane_b32 v{vt}, s90, {idx}")
    if P["prof"] == 2:
        A(f"s_memtime s[90:91]")
        A(f"s_waitcnt lgkmcnt(0)")
        A(f"v_writelane_b32 v{vt}, s90, {idx+8}")

def fstamp(A, idx, vt):
    if P["prof"] != 3: return
    A(f"s_memtime s[{60+2*idx}:{61+2*idx}]")

def fstamp_collect(A, n, vt):
    if P["prof"] != 3: return
    A("s_waitcnt lgkmcnt(0)")
    for i in range(n):
        A(f"v_writelane_b32 v{vt}, s{60+2*i}, {i}")

def stamp_flush(A, vt=250, vtmp=251):
    if not P["prof"]: return
    A(f"s_lshl_b32 s90, s2, 2")
    A(f"s_add_u32 s90, s90, s{sW}")
    A(f"s_mul_i32 s90, s90, 80")
    A(f"s_add_u32 s90, s90, s{sS}")
    A(f"s_add_u32 s90, s90, 4")
    A(f"s_lshl_b32 s90, s90, 6")
    A(f"s_add_u32 s90, s90, {PROF}")
    A(f"v_lshlrev_b32 v{vtmp}, 2, v0")
    A(f"s_mov_b64 exec, 0xffff")
    A(f"buffer_store_dword v{vt}, v{vtmp}, s[{sWS}:{sWS+3}], s90 offen")
    A(f"s_mov_b64 exec, -1")

def gen_init(A):
    A(".p2align 8")
    A(".type init_kernel,@function")
    A.label("init_kernel")
    A("s_cmp_ge_u32 s2, 256")
    A("s_cbranch_scc1 L_init_end")
    A(f"s_load_dwordx2 s[{sWS}:{sWS+1}], s[0:1], 128")
    A(f"s_load_dwordx2 s[{sX}:{sX+1}], s[0:1], 8")
    A("v_mov_b32 v4, -1\nv_mov_b32 v5, -1\nv_mov_b32 v6, -1\nv_mov_b32 v7, -1")
    A("s_lshl_b32 s3, s2, 12")
    A("v_lshl_add_u32 v1, v0, 4, s3")
    A("s_waitcnt lgkmcnt(0)")
    srd(A, sWS, POISON_END)
    srd(A, sX, 10240)
    for i in range(3):
        A(f"s_mov_b32 s20, {QKVR + i * 0x100000}")
        A(f"buffer_store_dwordx4 v[4:7], v1, s[{sWS}:{sWS+3}], s20 offen")
    A("s_cmp_ge_u32 s2, 9")
    A("s_cbranch_scc1 L_init_end")
    A("s_cmp_eq_u32 s2, 8")
    A("s_cbranch_scc1 L_init_flags")
    A("v_lshlrev_b32 v1, 4, v0")
    A("s_mul_i32 s20, s2, 40960")
    A("s_add_u32 s21, s20, 40960")
    A(f"s_mov_b32 s{sWS+2}, s21")
    for i in range(8):
        A(f"s_add_u32 s22, s20, {10240 + i * 4096}")
        A(f"buffer_store_dwordx4 v[4:7], v1, s[{sWS}:{sWS+3}], s22 offen")
    A("s_add_u32 s21, s20, 10240")
    A(f"s_mov_b32 s{sWS+2}, s21")
    for i in range(3):
        A(f"v_add_u32 v2, {256 * i}, v0")
        A("v_lshrrev_b32 v3, 6, v2")
        A("v_and_b32 v8, 7, v2")
        A("v_bfe_u32 v9, v2, 3, 1")
        A("v_bfe_u32 v10, v2, 4, 2")
        A("v_mul_u32_u24 v8, 1280, v8")
        A("v_lshl_add_u32 v8, v3, 7, v8")
        A("v_lshl_add_u32 v8, v10, 5, v8")
        A("v_lshl_add_u32 v8, v9, 2, v8")
        A("v_cmp_gt_u32 vcc, 640, v2")
        A(f"v_mov_b32 v11, {OOB}")
        A("s_nop 1")
        A("v_cndmask_b32 v8, v11, v8, vcc")
        for q in range(4):
            A(f"buffer_load_dword v{12+q}, v8, s[{sX}:{sX+3}], 0 offen offset:{8*q}")
        A("v_lshlrev_b32 v2, 4, v2")
        A("s_waitcnt vmcnt(0)")
        for q in range(4):
            A(f"v_min_u32 v{12+q}, -2, v{12+q}")
        A(f"buffer_store_dwordx4 v[12:15], v2, s[{sWS}:{sWS+3}], s20 offen")
        A("s_nop 1")
    A("s_branch L_init_end")
    A.label("L_init_flags")
    A("v_lshlrev_b32 v1, 4, v0")
    A("v_mov_b32 v8, 0\nv_mov_b32 v9, 0\nv_mov_b32 v10, 0\nv_mov_b32 v11, 0")
    A(f"s_mov_b32 s{sWS+2}, {FLAGS_END}")
    for i in range(3):
        A(f"s_mov_b32 s20, {FLAGS + i * 4096}")
        A(f"buffer_store_dwordx4 v[8:11], v1, s[{sWS}:{sWS+3}], s20 offen")
    A.label("L_init_end")
    A("s_endpgm")

def gen_common_prologue(A):
    A("s_cmp_ge_u32 s2, 256")
    A("s_cbranch_scc1 L_end")
    A(f"s_load_dwordx2 s[{sWS}:{sWS+1}], s[0:1], 128")
    A(f"s_load_dwordx2 s[{sX}:{sX+1}], s[0:1], 0")
    A(f"s_load_dwordx2 s[{sDBG}:{sDBG+1}], s[0:1], 120")
    A("v_lshrrev_b32 v1, 6, v0")
    A(f"s_and_b32 s{sG}, s2, 7")
    A(f"v_readfirstlane_b32 s{sW}, v1")
    A("v_and_b32 v0, 63, v0")
    A(f"s_lshr_b32 s{sR}, s2, 3")
    A(f"s_getreg_b32 s{sXCC}, hwreg(HW_REG_XCC_ID)")
    A(f"s_mov_b32 s{sBUD}, 400000")
    A("s_waitcnt lgkmcnt(0)")
    srd(A, sWS, WS_SIZE)
    srd(A, sX, 2048 * 1280)
    srd(A, sDBG, 256)
    L = A.newlabel("nocensus")
    A(f"s_cmp_lg_u32 s{sW}, 0")
    A(f"s_cbranch_scc1 {L}")
    A(f"s_mul_i32 s{sT0}, s{sXCC}, 6")
    A(f"s_lshl_b64 s[{sT2}:{sT3}], 1, s{sT0}")
    A(f"s_cmp_lt_u32 s{sXCC}, 8")
    A(f"s_cselect_b64 s[{sT2}:{sT3}], s[{sT2}:{sT3}], 0")
    A(f"s_add_u32 s{sT3}, s{sT3}, 0x1000000")
    A(f"v_mov_b32 v2, s{sT2}")
    A(f"v_mov_b32 v3, s{sT3}")
    A(f"s_lshl_b32 s{sT0}, s{sG}, 3")
    A(f"v_mov_b32 v4, s{sT0}")
    A("s_mov_b64 exec, 1")
    A(f"buffer_atomic_add_x2 v[2:3], v4, s[{sDBG}:{sDBG+3}], 0 offen")
    A("s_mov_b64 exec, -1")
    A.label(L)

def gen_locality(A, lab_local, lab_global, vt):
    L = A.newlabel("loc")
    A(f"s_lshl_b32 s{sT0}, s{sG}, 3")
    A(f"v_mov_b32 v{vt}, s{sT0}")
    A.label(L)
    A(f"buffer_load_dwordx2 v[{vt+2}:{vt+3}], v{vt}, s[{sDBG}:{sDBG+3}], 0 offen sc1")
    budget_check(A, 1)
    A("s_waitcnt vmcnt(0)")
    A(f"v_readfirstlane_b32 s{sT0}, v{vt+2}")
    A(f"v_readfirstlane_b32 s{sT1}, v{vt+3}")
    A(f"s_lshr_b32 s{sT2}, s{sT1}, 24")
    A(f"s_cmp_lt_u32 s{sT2}, 32")
    A(f"s_cbranch_scc1 {L}")
    if P["force_global"]:
        A(f"s_branch {lab_global}")
    A(f"s_and_b32 s{sT1}, s{sT1}, 0xffffff")
    A(f"s_mul_i32 s{sT2}, s{sXCC}, 6")
    A(f"s_lshl_b64 s[{sT2}:{sT3}], 32, s{sT2}")
    A(f"s_cmp_eq_u64 s[{sT0}:{sT1}], s[{sT2}:{sT3}]")
    A(f"s_cbranch_scc0 {lab_global}")
    A(f"s_cmp_lt_u32 s{sXCC}, 8")
    A(f"s_cbranch_scc0 {lab_global}")
    A(f"s_branch {lab_local}")

WSR = f"s[{sWS}:{sWS+3}]"

def gen_s1(A):
    sU, sHH, sTY, sKS = 30, 31, 32, 33
    sPartRd, sMem0, sMem1, sMem2, sQkv, sMemP, sQkvP = 34, 35, 36, 37, 38, 39, 40
    sXr, sXrEnd, sXrBase, sXflag, sXsrc, sLdsW = 41, 42, 43, 44, 45, 46
    sPartBase, sMemBase, sQkvBase, sXbuf, sH2 = 47, 48, 49, 50, 51
    vL16, vMemSt, vQkvSt, vIdx, vXg, vXrd, vXsum, vPois, vFlagO = 1, 2, 3, 4, 5, 6, 7, 8, 9
    vSel = 128
    vH = 132
    vHld, vHw, vHr = 144, 145, 146
    MEML = 81920
    vT = 10
    vM = 20
    vPt = 60
    vA = 76
    vMx = 84
    vXA = 88
    vXB = 104
    vXO = 120
    A.label("L_s1")
    A(f"s_lshl_b32 s{sU}, s{sR}, 2")
    A(f"s_add_u32 s{sU}, s{sU}, s{sW}")
    A(f"s_mul_i32 s{sHH}, s{sU}, 3641")
    A(f"s_lshr_b32 s{sHH}, s{sHH}, 16")
    A(f"s_mul_i32 s{sT0}, s{sHH}, 18")
    A(f"s_sub_u32 s{sT0}, s{sU}, s{sT0}")
    A(f"s_mul_i32 s{sTY}, s{sT0}, 43")
    A(f"s_lshr_b32 s{sTY}, s{sTY}, 8")
    A(f"s_mul_i32 s{sT1}, s{sTY}, 6")
    A(f"s_sub_u32 s{sKS}, s{sT0}, s{sT1}")
    A("s_load_dwordx4 s[52:55], s[0:1], 16")
    A("s_load_dwordx2 s[56:57], s[0:1], 32")
    A(f"v_lshlrev_b32 v{vL16}, 4, v0")
    A(f"v_lshrrev_b32 v{vT}, 2, v0")
    A(f"v_mul_u32_u24 v{vT}, 12288, v{vT}")
    A(f"v_and_b32 v{vT+1}, 3, v0")
    A(f"v_lshl_add_u32 v{vT}, v{vT+1}, 4, v{vT}")
    A("s_waitcnt lgkmcnt(0)")
    A(f"s_cmp_eq_u32 s{sTY}, 1")
    A(f"s_cselect_b64 s[{sRO}:{sRO+1}], s[54:55], s[52:53]")
    A(f"s_cmp_eq_u32 s{sTY}, 2")
    A(f"s_cselect_b64 s[{sRO}:{sRO+1}], s[56:57], s[{sRO}:{sRO+1}]")
    srd(A, sRO, 640 * 12288)
    A(f"s_lshl_b32 s{sT0}, s{sG}, 2")
    A(f"s_add_u32 s{sT0}, s{sT0}, s{sHH}")
    A(f"s_mul_i32 s{sT0}, s{sT0}, 384")
    A(f"s_lshl_b32 s{sT1}, s{sKS}, 6")
    A(f"s_add_u32 s{sT0}, s{sT0}, s{sT1}")
    A(f"s_mul_i32 s{sLdsW}, s{sW}, 40960")
    A(f"s_mov_b32 m0, s{sLdsW}")
    A("s_nop 0")
    for i in range(40):
        A(f"buffer_load_dwordx4 v{vT}, s[{sRO}:{sRO+3}], s{sT0} offen lds")
        if i < 39:
            A(f"s_add_u32 m0, m0, 1024")
            A(f"s_add_u32 s{sT0}, s{sT0}, {16 * 12288}")
    A(f"s_lshl_b32 s{sT0}, s{sU}, 11")
    A(f"buffer_load_dwordx4 v[{vM}:{vM+3}], v{vL16}, s[{sX}:{sX+3}], s{sT0} offen")
    A(f"buffer_load_dwordx4 v[{vM+4}:{vM+7}], v{vL16}, s[{sX}:{sX+3}], s{sT0} offen offset:1024")
    A(f"v_and_b32 v{vT+1}, 15, v0")
    A(f"v_lshrrev_b32 v{vT+2}, 4, v0")
    A(f"v_cmp_gt_u32 vcc, 8, v{vT+1}")
    A(f"v_mov_b32 v{vT+3}, 0xeeee")
    A(f"v_mov_b32 v{vT+4}, 0x4444")
    A(f"v_cndmask_b32 v{vIdx}, v{vT+3}, v{vT+4}, vcc")
    A(f"v_mov_b32 v{vPois}, -1")
    A(f"v_lshrrev_b32 v{vXg}, 2, v0")
    A(f"v_mul_u32_u24 v{vXg}, 1280, v{vXg}")
    A(f"v_sub_u32 v{vT+3}, 0, v{vT+2}")
    A(f"v_xor_b32 v{vT+3}, v0, v{vT+3}")
    A(f"v_and_b32 v{vT+3}, 3, v{vT+3}")
    A(f"v_lshl_add_u32 v{vXg}, v{vT+3}, 4, v{vXg}")
    A(f"v_lshrrev_b32 v{vT+3}, 2, v{vT+1}")
    A(f"v_sub_u32 v{vT+3}, 0, v{vT+3}")
    A(f"v_xor_b32 v{vT+3}, v{vT+2}, v{vT+3}")
    A(f"v_and_b32 v{vT+3}, 3, v{vT+3}")
    A(f"v_lshl_add_u32 v{vT+3}, v{vT+1}, 2, v{vT+3}")
    A(f"v_lshlrev_b32 v{vXrd}, 4, v{vT+3}")
    A(f"v_lshlrev_b32 v{vXsum}, 5, v{vT+3}")
    A(f"v_add_u32 v{vXsum}, 40960, v{vXsum}")
    A(f"v_lshrrev_b32 v{vT+3}, 2, v{vT+1}")
    A(f"v_and_b32 v{vT+4}, 1, v{vT+1}")
    A(f"v_lshlrev_b32 v{vT+4}, 4, v{vT+4}")
    A(f"v_mov_b32 v{vT+5}, 0x3f80")
    A(f"v_lshlrev_b32 v{vT+4}, v{vT+4}, v{vT+5}")
    for r in range(4):
        A(f"v_cmp_eq_u32 vcc, {r}, v{vT+3}")
        A("s_nop 1")
        A(f"v_cndmask_b32 v{vSel+r}, 0, v{vT+4}, vcc")
    A(f"s_lshl_b32 s{sT0}, s{sW}, 10")
    A(f"v_add_u32 v{vHld}, s{sT0}, v{vL16}")
    A(f"v_add_u32 v{vHw}, {MEML}, v{vHld}")
    A(f"v_add_u32 v{vHr}, {MEML}, v{vL16}")
    A(f"s_cmp_ge_u32 s{sU}, 40")
    A(f"s_cselect_b32 s{sT0}, 40, 0")
    A(f"s_sub_u32 s{sT0}, s{sU}, s{sT0}")
    A(f"s_lshl_b32 s{sPartBase}, s{sT0}, 11")
    A(f"s_add_u32 s{sPartBase}, s{sPartBase}, {PART}")
    A(f"v_and_b32 v{vT+3}, 7, v0")
    A(f"v_bfe_u32 v{vT+4}, v0, 4, 1")
    A(f"v_lshl_add_u32 v{vT+3}, v{vT+4}, 3, v{vT+3}")
    A(f"v_lshlrev_b32 v{vT+3}, 4, v{vT+3}")
    A(f"v_bfe_u32 v{vT+4}, v0, 3, 1")
    A(f"v_lshl_add_u32 v{vT+3}, v{vT+4}, 3, v{vT+3}")
    A(f"v_lshrrev_b32 v{vT+4}, 5, v0")
    A(f"v_lshl_add_u32 v{vT+3}, v{vT+4}, 2, v{vT+3}")
    A(f"s_lshl_b32 s{sT0}, s{sT0}, 8")
    A(f"s_cmp_ge_u32 s{sU}, 40")
    A(f"s_cselect_b32 s{sT0}, {OOB}, s{sT0}")
    A(f"v_add_u32 v{vMemSt}, s{sT0}, v{vT+3}")
    A(f"v_bfe_u32 v{vT+3}, v0, 4, 1")
    A(f"v_lshrrev_b32 v{vT+4}, 5, v0")
    A(f"v_lshlrev_b32 v{vT+3}, 2, v{vT+3}")
    A(f"v_lshl_add_u32 v{vT+3}, v{vT+4}, 1, v{vT+3}")
    A(f"s_and_b32 s{sT0}, s{sKS}, 1")
    A(f"s_lshr_b32 s{sT1}, s{sKS}, 1")
    A(f"s_lshl_b32 s{sT1}, s{sT1}, 10")
    A(f"v_lshrrev_b32 v{vT+4}, 2, v{vT+1}")
    A(f"v_lshl_add_u32 v{vT+4}, v{vT+4}, 4, v{vT+3}")
    A(f"v_lshlrev_b32 v{vT+4}, 4, v{vT+4}")
    A(f"v_and_b32 v{vT+5}, 3, v{vT+1}")
    A(f"v_lshl_add_u32 v{vT+4}, v{vT+5}, 2, v{vT+4}")
    A(f"s_lshl_b32 s{sT2}, s{sT0}, 7")
    A(f"s_add_u32 s{sT2}, s{sT2}, s{sT1}")
    A(f"v_add_u32 v{vT+4}, s{sT2}, v{vT+4}")
    A(f"v_lshrrev_b32 v{vT+5}, 3, v{vT+1}")
    A(f"v_lshl_add_u32 v{vT+5}, v{vT+5}, 4, v{vT+3}")
    A(f"v_and_b32 v{vT+6}, 1, v{vT+1}")
    A(f"v_lshl_add_u32 v{vT+5}, v{vT+6}, 3, v{vT+5}")
    A(f"v_lshlrev_b32 v{vT+5}, 4, v{vT+5}")
    A(f"v_bfe_u32 v{vT+6}, v{vT+1}, 1, 2")
    A(f"v_lshl_add_u32 v{vT+5}, v{vT+6}, 2, v{vT+5}")
    A(f"s_lshl_b32 s{sT2}, s{sT0}, 9")
    A(f"s_add_u32 s{sT2}, s{sT2}, s{sT1}")
    A(f"v_add_u32 v{vT+5}, s{sT2}, v{vT+5}")
    A(f"s_cmp_eq_u32 s{sTY}, 2")
    A(f"s_cselect_b64 vcc, -1, 0")
    A(f"v_cndmask_b32 v{vQkvSt}, v{vT+4}, v{vT+5}, vcc")
    A(f"v_cmp_eq_u32 vcc, 0, v0")
    A(f"v_mov_b32 v{vT+4}, {OOB}")
    A("s_nop 0")
    A(f"v_cndmask_b32 v{vFlagO}, v{vT+4}, v0, vcc")
    A(f"s_cmp_lt_u32 s{sW}, 2")
    A(f"s_cselect_b32 s{sH2}, 8192, 0")
    A(f"s_mul_i32 s{sMemBase}, s{sG}, 40960")
    A(f"s_mul_i32 s{sT0}, s{sHH}, 3")
    A(f"s_add_u32 s{sT0}, s{sT0}, s{sTY}")
    A(f"s_mul_i32 s{sQkvBase}, s{sG}, 147456")
    A(f"s_mul_i32 s{sT1}, s{sT0}, 3072")
    A(f"s_add_u32 s{sQkvBase}, s{sQkvBase}, s{sT1}")
    A(f"s_add_u32 s{sQkvBase}, s{sQkvBase}, {QKVR}")
    A(f"s_mul_i32 s{sXrBase}, s{sG}, {XR_G}")
    A(f"s_lshl_b32 s{sT1}, s{sU}, 1")
    A(f"s_add_u32 s{sT1}, s{sT1}, s{sHH}")
    A(f"s_lshl_b32 s{sT1}, s{sT1}, 10")
    A(f"s_add_u32 s{sXrBase}, s{sXrBase}, s{sT1}")
    A(f"s_add_u32 s{sXrBase}, s{sXrBase}, {XR}")
    A(f"s_add_u32 s{sXrEnd}, s{sXrBase}, {XR_G}")
    A(f"s_mov_b32 s{sXr}, s{sXrBase}")
    A(f"s_lshl_b32 s{sXflag}, s{sG}, 9")
    A(f"s_lshl_b32 s{sT1}, s{sU}, 2")
    A(f"s_add_u32 s{sXflag}, s{sXflag}, s{sT1}")
    A(f"s_add_u32 s{sXflag}, s{sXflag}, {XFLAG}")
    A(f"v_bfe_u32 v{vT+3}, v0, 2, 2")
    A(f"v_lshl_add_u32 v{vT+3}, v{vT+2}, 3, v{vT+3}")
    A(f"v_lshlrev_b32 v{vT+3}, 6, v{vT+3}")
    A(f"v_and_b32 v{vT+4}, 3, v0")
    A(f"v_lshl_add_u32 v{vT+3}, v{vT+4}, 3, v{vT+3}")
    A(f"v_add_u32 v{vT+3}, s{sLdsW}, v{vT+3}")
    for kd in range(20):
        A(f"s_waitcnt vmcnt({min(63, 40 - 2 * (kd + 1) + 2)})")
        for t in range(2):
            for hf in range(2):
                A(f"ds_read_b64_tr_b16 a[{80*t+4*kd+2*hf}:{80*t+4*kd+2*hf+1}], v{vT+3} offset:{kd*2048+hf*256+t*32}")
    A("s_waitcnt vmcnt(0) lgkmcnt(0)")
    A("s_barrier")
    A(f"s_mul_i32 s{sXsrc}, s{sW}, 320")
    A(f"s_mul_i32 s{sLdsW}, s{sW}, 10240")
    A(f"s_mov_b32 s{sXbuf}, 0")
    def xdma():
        A(f"s_add_u32 m0, s{sLdsW}, s{sXbuf}")
        for i in range(5):
            for tt in range(2):
                A(f"s_add_u32 s{sT0}, s{sXsrc}, {tt * 20480 + i * 64}")
                A(f"buffer_load_dwordx4 v{vXg}, s[{sX}:{sX+3}], s{sT0} offen lds")
                if not (i == 4 and tt == 1):
                    A("s_add_u32 m0, m0, 1024")
        A(f"s_add_u32 s{sXsrc}, s{sXsrc}, 40960")
        A(f"s_sub_u32 s{sXbuf}, 40960, s{sXbuf}")
    xdma()
    A(f"s_mov_b32 s{sS}, -3")
    gen_locality(A, "L_s1_loc", "L_s1_glb", vT)

    for mode in ("loc", "glb"):
        sc = "" if mode == "loc" else " sc1"
        Lb, Ls3, Lh1, Lslow, Lcont, Lnox = [f"L_s1_{mode}_{x}" for x in ("bub", "s3", "h1", "slow", "cont", "nox")]
        A.label(f"L_s1_{mode}")
        A.label(Lb)
        A("s_barrier")
        stamp(A, 5)
        fstamp(A, 5, 250)
        A(f"s_cmp_ge_i32 s{sS}, {P['nseg'] - 3}")
        A(f"s_cbranch_scc1 {Lnox}")
        fstamp(A, 6, 250)
        if P["prof"] == 3: A("s_waitcnt lgkmcnt(0)")
        A(f"ds_read_b128 v[{vXB}:{vXB+3}], v{vXrd}")
        A(f"ds_read_b128 v[{vXB+4}:{vXB+7}], v{vXrd} offset:1024")
        A(f"s_add_u32 m0, s{sLdsW}, s{sXbuf}")
        for kd in range(20):
            cur = vXB + 8 * (kd & 1); nxt = vXB + 8 * ((kd + 1) & 1)
            if kd < 19:
                A(f"ds_read_b128 v[{nxt}:{nxt+3}], v{vXrd} offset:{(2*kd+2)*1024}")
                A(f"ds_read_b128 v[{nxt+4}:{nxt+7}], v{vXrd} offset:{(2*kd+3)*1024}")
                A("s_waitcnt lgkmcnt(2)")
            else:
                A("s_waitcnt lgkmcnt(0)")
            n = 0
            for tt in range(2):
                for t in range(2):
                    acc = vXA + 4 * (2 * tt + t)
                    c = "0" if kd == 0 else v(acc, 4)
                    A(f"v_mfma_f32_16x16x32_bf16 {v(acc,4)}, {a(80*t+4*kd,4)}, {v(cur+4*tt,4)}, {c}")
                    if kd < 10 and n == 0:
                        A(f"s_add_u32 s{sT0}, s{sXsrc}, {(kd & 1) * 20480 + (kd >> 1) * 64}")
                    if kd < 10 and n == 1:
                        A(f"buffer_load_dwordx4 v{vXg}, s[{sX}:{sX+3}], s{sT0} offen lds")
                    if kd < 10 and n == 2:
                        A("s_add_u32 m0, m0, 1024")
                    n += 1
        A(f"s_add_u32 s{sXsrc}, s{sXsrc}, 40960")
        A(f"s_sub_u32 s{sXbuf}, 40960, s{sXbuf}")
        fstamp(A, 7, 250)
        A(f"v_sub_u32 v{vXrd}, v{vXsum}, v{vXrd}")
        A(f"s_add_u32 s{sT1}, s{sS}, 4")
        A(f"v_mov_b32 v{vT}, s{sT1}")
        A.nop(4)
        for tt in range(2):
            for r in range(4):
                A(f"v_cvt_pk_bf16_f32 v{vXO+4*tt+r}, v{vXA+8*tt+r}, v{vXA+8*tt+4+r}")
            A(f"buffer_store_dwordx4 {v(vXO+4*tt,4)}, v{vL16}, {WSR}, s{sXr} offen offset:{1024*tt}{sc}")
        A(f"s_add_u32 s{sXr}, s{sXr}, {XR_SLOT}")
        A(f"s_cmp_eq_u32 s{sXr}, s{sXrEnd}")
        A(f"s_cselect_b32 s{sXr}, s{sXrBase}, s{sXr}")
        fstamp(A, 8, 250)
        A("s_waitcnt vmcnt(0)")
        fstamp(A, 9, 250)
        A(f"buffer_store_dword v{vT}, v{vFlagO}, {WSR}, s{sXflag} offen{sc}")
        A.label(Lnox)
        stamp(A, 6)
        fstamp_collect(A, 10, 250)
        stamp_flush(A)
        Lnp = A.newlabel("nopois")
        A(f"s_cmp_lt_i32 s{sS}, 1")
        A(f"s_cbranch_scc1 {Lnp}")
        A(f"buffer_store_dword v{vPois}, v{vMemSt}, {WSR}, s{sMemP} offen{sc}")
        A(f"buffer_store_dword v{vPois}, v{vQkvSt}, {WSR}, s{sQkvP} offen{sc}")
        A(f"buffer_store_dword v{vPois}, v{vQkvSt}, {WSR}, s{sQkvP} offen offset:16{sc}")
        A.label(Lnp)
        A(f"s_and_b32 s{sT0}, s{sS}, 3")
        A(f"s_mul_i32 s{sPartRd}, s{sT0}, {PART_SLOT}")
        A(f"s_add_u32 s{sPartRd}, s{sPartRd}, s{sPartBase}")
        A(f"s_mul_i32 s{sMemP}, s{sT0}, 10240")
        A(f"s_add_u32 s{sMemP}, s{sMemP}, s{sMemBase}")
        A(f"s_add_u32 s{sT0}, s{sS}, 3")
        A(f"s_and_b32 s{sT0}, s{sT0}, 3")
        A(f"s_mul_i32 s{sQkvP}, s{sT0}, 36864")
        A(f"s_add_u32 s{sQkvP}, s{sQkvP}, s{sQkvBase}")
        A(f"s_add_u32 s{sS}, s{sS}, 1")
        A(f"s_and_b32 s{sT0}, s{sS}, 3")
        A(f"s_mul_i32 s{sMem0}, s{sT0}, 10240")
        A(f"s_add_u32 s{sMem0}, s{sMem0}, s{sMemBase}")
        A(f"s_add_u32 s{sMem1}, s{sMem0}, 4096")
        A(f"s_add_u32 s{sMem2}, s{sMem0}, s{sH2}")
        A(f"s_mul_i32 s{sQkv}, s{sT0}, 36864")
        A(f"s_add_u32 s{sQkv}, s{sQkv}, s{sQkvBase}")
        A(f"s_cmp_lt_i32 s{sS}, 0")
        A(f"s_cbranch_scc1 {Lb}")
        A(f"s_cmp_eq_u32 s{sS}, {P['nseg']}")
        A("s_cbranch_scc1 L_end")
        A(f"s_cmp_eq_u32 s{sS}, 0")
        A(f"s_cbranch_scc1 {Lh1}")
        if P["s3_sleep"]: A(f"s_sleep {P['s3_sleep']}")
        A.label(Ls3)
        stamp(A, 0)
        fstamp(A, 0, 250)
        for i in range(2):
            A(f"buffer_load_dwordx4 {v(vPt+4*i,4)}, v{vL16}, {WSR}, s{sPartRd} offen offset:{1024*i} sc1")
        A("s_waitcnt vmcnt(1)")
        A(f"v_mfma_f32_16x16x32_bf16 {v(vT,4)}, {v(vSel,4)}, {v(vPt,4)}, 0")
        A("s_waitcnt vmcnt(0)")
        A(f"v_mfma_f32_16x16x32_bf16 {v(vT,4)}, {v(vSel,4)}, {v(vPt+4,4)}, {v(vT,4)}")
        A.nop(8)
        A(f"v_cmp_u_f32 vcc, v{vT}, v{vT+1}")
        A(f"v_cvt_pk_bf16_f32 v{vT+4}, v{vT}, v{vT+1}")
        A(f"s_cbranch_vccnz {Lslow}")
        A.label(Lcont)
        A(f"buffer_store_dword v{vT+4}, v{vMemSt}, {WSR}, s{sMem0} offen{sc}")
        stamp(A, 1)
        fstamp(A, 1, 250)
        if P.get("memdbg"):
            A(f"s_mul_i32 s{sT0}, s{sS}, 10240")
            A(f"s_add_u32 s{sT0}, s{sT0}, {MEMDBG}")
            A(f"buffer_store_dword v{vT+4}, v{vMemSt}, {WSR}, s{sT0} offen")
        if P["h1_nop"]: A.nop(P["h1_nop"])
        A.label(Lh1)
        Lretry = f"L_s1_{mode}_h1retry"
        for i in range(3):
            A(f"buffer_load_dwordx4 {v(vH+4*i,4)}, v{vHld}, {WSR}, s{(sMem0, sMem1, sMem2)[i]} offen sc1")
        fstamp(A, 2, 250)
        for r in range(8):
            A(f"v_mov_b32 v{vA+r}, 0")
        A("s_waitcnt vmcnt(2)")
        A(f"ds_write_b128 v{vHw}, {v(vH,4)}")
        A(f"v_max3_u32 v{vMx}, v{vH}, v{vH+1}, v{vH+2}")
        A("s_waitcnt vmcnt(1)")
        A(f"ds_write_b128 v{vHw}, {v(vH+4,4)} offset:4096")
        A(f"v_max3_u32 v{vMx}, v{vH+3}, v{vH+4}, v{vMx}")
        A(f"v_max3_u32 v{vMx}, v{vH+5}, v{vH+6}, v{vMx}")
        A("s_waitcnt vmcnt(0)")
        A(f"ds_write_b128 v{vHw}, {v(vH+8,4)} offset:8192")
        A(f"v_max3_u32 v{vMx}, v{vH+7}, v{vH+8}, v{vMx}")
        A(f"v_max3_u32 v{vMx}, v{vH+9}, v{vH+10}, v{vMx}")
        A(f"v_max_u32 v{vMx}, v{vH+11}, v{vMx}")
        A(f"v_cmp_eq_u32 vcc, -1, v{vMx}")
        A("s_waitcnt lgkmcnt(0)")
        A(f"s_cbranch_vccnz {Lretry}")
        A("s_barrier")
        fstamp(A, 3, 250)
        if P["prof"] == 3: A("s_waitcnt lgkmcnt(0)")
        for j in range(10):
            A(f"ds_read_b128 {v(vM+4*j,4)}, v{vHr} offset:{1024*j}")
        for j in range(10):
            A(f"s_waitcnt lgkmcnt({9-j})")
            A(f"v_smfmac_f32_16x16x64_bf16 {v(vA,4)}, {v(vM+4*j,4)}, {a(8*j,8)}, v{vIdx}")
            A(f"v_smfmac_f32_16x16x64_bf16 {v(vA+4,4)}, {v(vM+4*j,4)}, {a(80+8*j,8)}, v{vIdx}")
        A.nop(7)
        A(f"v_permlane32_swap_b32 v{vA}, v{vA+2}")
        A(f"v_permlane32_swap_b32 v{vA+1}, v{vA+3}")
        A(f"v_permlane32_swap_b32 v{vA+4}, v{vA+6}")
        A(f"v_permlane32_swap_b32 v{vA+5}, v{vA+7}")
        A(f"v_add_f32 v{vA}, v{vA}, v{vA+2}")
        A(f"v_add_f32 v{vA+4}, v{vA+4}, v{vA+6}")
        A(f"v_add_f32 v{vA+1}, v{vA+1}, v{vA+3}")
        A(f"v_add_f32 v{vA+5}, v{vA+5}, v{vA+7}")
        A(f"v_cvt_pk_bf16_f32 v{vT}, v{vA}, v{vA+4}")
        A(f"buffer_store_dword v{vT}, v{vQkvSt}, {WSR}, s{sQkv} offen{sc}")
        A(f"v_cvt_pk_bf16_f32 v{vT+1}, v{vA+1}, v{vA+5}")
        A(f"buffer_store_dword v{vT+1}, v{vQkvSt}, {WSR}, s{sQkv} offen offset:16{sc}")
        stamp(A, 4)
        fstamp(A, 4, 250)
        A(f"s_branch {Lb}")
        A.label(Lretry)
        stamp(A, 3)
        budget_check(A, 3)
        A(f"s_branch {Lh1}")
        A.label(Lslow)
        A(f"v_max3_u32 v{vMx}, v{vPt}, v{vPt+1}, v{vPt+2}")
        for i in range(3, 7, 2):
            A(f"v_max3_u32 v{vMx}, v{vPt+i}, v{vPt+i+1}, v{vMx}")
        A(f"v_max_u32 v{vMx}, v{vPt+7}, v{vMx}")
        A(f"v_cmp_eq_u32 vcc, -1, v{vMx}")
        A(f"v_min_u32 v{vT+4}, -2, v{vT+4}")
        A(f"s_cbranch_vccz {Lcont}")
        budget_check(A, 2)
        A(f"s_branch {Ls3}")

def gen_s2(A):
    sJ = 30
    sQkv, sQkvBase, sPartW, sPartP, sPartBase, sXk, sXv, sXrBase, sXrEnd = 31, 32, 33, 34, 35, 36, 37, 38, 39
    sPx, sPxBase, sXp, sXpF, sXfl, sMemRd, sMemBase, sC, sNeed = 40, 41, 42, 43, 44, 45, 46, 47, 48
    sQkv1, sQkv2 = 49, 50
    sXk1, sXk2, sXv1, sXv2 = 51, 52, 53, 54
    sLo = 56
    vL16, vKmO, vIdx, vRedW, vRedR, vPartO, vL8, vFlagO, vXflO, vProbe, vRed2R = 1, 2, 3, 4, 5, 6, 7, 8, 9, 10, 11
    vPois = 12
    vT = 16
    vQ, vKM, vVM = 32, 44, 56
    vFl, vMx = 68, 69
    vOne32, vOne16 = 70, 74
    vS, vSM, vW = 76, 92, 96
    vVA, vF, vDen, vPb, vVOM = 100, 116, 132, 136, 142
    vVOX, vXA, vPX = 152, 184, 216
    aKX, aVX = 96, 144
    vXOUT = 24
    RED, RED2 = 98304, 106496
    c = (192 ** -0.5) * math.log2(math.e)
    A.label("L_s2")
    A(f"s_sub_u32 s{sJ}, s{sR}, 18")
    A(f"s_load_dwordx2 s[{sRO}:{sRO+1}], s[0:1], 40")
    A(f"v_lshlrev_b32 v{vL16}, 4, v0")
    A(f"v_lshrrev_b32 v{vT}, 3, v0")
    A(f"v_mul_u32_u24 v{vT}, 1280, v{vT}")
    A(f"v_and_b32 v{vT+1}, 7, v0")
    A(f"v_lshl_add_u32 v{vT}, v{vT+1}, 4, v{vT}")
    A(f"s_lshl_b32 s{sT0}, s{sG}, 2")
    A(f"s_add_u32 s{sT0}, s{sT0}, s{sW}")
    A(f"s_mul_i32 s{sT0}, s{sT0}, {192 * 1280}")
    A(f"s_lshl_b32 s{sT1}, s{sJ}, 7")
    A(f"s_add_u32 s{sT0}, s{sT0}, s{sT1}")
    A(f"s_mul_i32 s{sT2}, s{sW}, 24576")
    A(f"s_mov_b32 m0, s{sT2}")
    A("s_waitcnt lgkmcnt(0)")
    srd(A, sRO, 6144 * 1280)
    for i in range(24):
        A(f"buffer_load_dwordx4 v{vT}, s[{sRO}:{sRO+3}], s{sT0} offen lds")
        if i < 23:
            A("s_add_u32 m0, m0, 1024")
            A(f"s_add_u32 s{sT0}, s{sT0}, {8 * 1280}")
    A(f"v_and_b32 v{vT+1}, 15, v0")
    A(f"v_lshrrev_b32 v{vT+2}, 4, v0")
    A(f"v_cmp_gt_u32 s[{sLo}:{sLo+1}], 8, v{vT+1}")
    A(f"v_mov_b32 v{vT+3}, 0xeeee")
    A(f"v_mov_b32 v{vT+4}, 0x4444")
    A(f"v_cndmask_b32 v{vIdx}, v{vT+3}, v{vT+4}, s[{sLo}:{sLo+1}]")
    for r in range(4): A(f"v_mov_b32 v{vPois+r}, -1")
    A(f"v_lshlrev_b32 v{vL8}, 3, v0")
    A(f"v_mov_b32 v{vT+3}, 0x3f803f80")
    for r in range(4): A(f"v_mov_b32 v{vOne32+r}, v{vT+3}")
    A(f"v_cmp_gt_u32 vcc, 32, v0")
    A("s_nop 1")
    for r in range(2): A(f"v_cndmask_b32 v{vOne16+r}, 0, v{vT+3}, vcc")
    A(f"s_lshl_b32 s{sT0}, s{sW}, 11")
    A(f"s_add_u32 s{sT0}, s{sT0}, {RED}")
    A(f"v_add_u32 v{vRedW}, s{sT0}, v{vL16}")
    A(f"v_and_b32 v{vT+3}, 7, v0")
    A(f"v_bfe_u32 v{vT+4}, v0, 3, 2")
    A(f"v_lshl_add_u32 v{vT+3}, v{vT+4}, 4, v{vT+3}")
    A(f"v_lshlrev_b32 v{vT+3}, 4, v{vT+3}")
    A(f"s_and_b32 s{sT0}, s{sW}, 1")
    A(f"s_lshl_b32 s{sT0}, s{sT0}, 10")
    A(f"s_lshr_b32 s{sT1}, s{sW}, 1")
    A(f"s_lshl_b32 s{sT1}, s{sT1}, 7")
    A(f"s_add_u32 s{sT0}, s{sT0}, s{sT1}")
    A(f"s_add_u32 s{sT0}, s{sT0}, {RED}")
    A(f"v_add_u32 v{vRedR}, s{sT0}, v{vT+3}")
    A(f"s_lshl_b32 s{sT0}, s{sW}, 11")
    A(f"s_add_u32 s{sT0}, s{sT0}, {RED2}")
    A(f"v_add_u32 v{vRed2R}, s{sT0}, v{vL16}")
    A(f"v_and_b32 v{vT+4}, 7, v0")
    A(f"v_bfe_u32 v{vT+5}, v0, 4, 1")
    A(f"v_lshl_add_u32 v{vT+4}, v{vT+5}, 3, v{vT+4}")
    A(f"v_lshlrev_b32 v{vT+4}, 4, v{vT+4}")
    A(f"v_and_b32 v{vT+5}, 8, v0")
    A(f"v_add_u32 v{vT+4}, v{vT+5}, v{vT+4}")
    A(f"v_cmp_gt_u32 vcc, 32, v0")
    A(f"v_mov_b32 v{vT+3}, {OOB}")
    A("s_nop 0")
    A(f"v_cndmask_b32 v{vPartO}, v{vT+3}, v{vT+4}, vcc")
    A(f"v_cmp_eq_u32 vcc, 0, v0")
    A("s_nop 1")
    A(f"v_cndmask_b32 v{vFlagO}, v{vT+3}, v0, vcc")
    A(f"v_min_u32 v{vXflO}, 11, v0")
    A(f"v_lshlrev_b32 v{vXflO}, 2, v{vXflO}")
    A(f"v_min_u32 v{vProbe}, 39, v0")
    A(f"v_lshlrev_b32 v{vProbe}, 8, v{vProbe}")
    A(f"s_mul_i32 s{sQkvBase}, s{sG}, 147456")
    A(f"s_mul_i32 s{sT0}, s{sW}, 9216")
    A(f"s_add_u32 s{sQkvBase}, s{sQkvBase}, s{sT0}")
    A(f"s_add_u32 s{sQkvBase}, s{sQkvBase}, {QKVR}")
    A(f"s_lshl_b32 s{sT0}, s{sJ}, 2")
    A(f"s_add_u32 s{sT0}, s{sT0}, s{sW}")
    A(f"s_lshl_b32 s{sPartBase}, s{sT0}, 11")
    A(f"s_lshl_b32 s{sT0}, s{sG}, 8")
    A(f"s_add_u32 s{sPartBase}, s{sPartBase}, s{sT0}")
    A(f"s_add_u32 s{sPartBase}, s{sPartBase}, {PART}")
    A(f"s_mul_i32 s{sXrBase}, s{sG}, {XR_G}")
    A(f"s_mul_i32 s{sT0}, s{sW}, {XR_HEAD}")
    A(f"s_add_u32 s{sXrBase}, s{sXrBase}, s{sT0}")
    A(f"s_add_u32 s{sXrBase}, s{sXrBase}, {XR}")
    A(f"s_add_u32 s{sXrEnd}, s{sXrBase}, {XR_G}")
    A(f"s_mul_i32 s{sPxBase}, s{sG}, 49152")
    A(f"s_mul_i32 s{sT0}, s{sW}, 3072")
    A(f"s_add_u32 s{sPxBase}, s{sPxBase}, s{sT0}")
    A(f"s_add_u32 s{sPxBase}, s{sPxBase}, {PXR}")
    A(f"s_lshl_b32 s{sXp}, s{sJ}, 16")
    A(f"s_lshl_b32 s{sT0}, s{sG}, 12")
    A(f"s_add_u32 s{sXp}, s{sXp}, s{sT0}")
    A(f"s_lshl_b32 s{sT0}, s{sW}, 10")
    A(f"s_add_u32 s{sXp}, s{sXp}, s{sT0}")
    A(f"s_add_u32 s{sXp}, s{sXp}, {XPART}")
    A(f"s_lshl_b32 s{sXpF}, s{sJ}, 7")
    A(f"s_lshl_b32 s{sT0}, s{sG}, 4")
    A(f"s_add_u32 s{sXpF}, s{sXpF}, s{sT0}")
    A(f"s_lshl_b32 s{sT0}, s{sW}, 2")
    A(f"s_add_u32 s{sXpF}, s{sXpF}, s{sT0}")
    A(f"s_add_u32 s{sXpF}, s{sXpF}, {XPFLAG}")
    A(f"s_lshl_b32 s{sXfl}, s{sG}, 9")
    A(f"s_mul_i32 s{sT0}, s{sW}, 72")
    A(f"s_add_u32 s{sXfl}, s{sXfl}, s{sT0}")
    A(f"s_add_u32 s{sXfl}, s{sXfl}, {XFLAG + 24}")
    A(f"s_mul_i32 s{sMemBase}, s{sG}, 40960")
    A(f"s_mov_b32 s{sC}, {f2u(c):#x}")
    A(f"v_bfe_u32 v{vT+3}, v0, 3, 1")
    A(f"v_bfe_u32 v{vT+4}, v0, 2, 1")
    A(f"v_lshl_add_u32 v{vT+3}, v{vT+4}, 4, v{vT+3}")
    A(f"v_lshl_add_u32 v{vT+3}, v{vT+2}, 2, v{vT+3}")
    A(f"v_lshlrev_b32 v{vT+3}, 7, v{vT+3}")
    A(f"v_and_b32 v{vT+4}, 3, v0")
    A(f"v_lshl_add_u32 v{vT+3}, v{vT+4}, 3, v{vT+3}")
    A(f"v_add_u32 v{vT+3}, s{sT2}, v{vT+3}")
    for ks in range(6):
        A(f"s_waitcnt vmcnt({24 - 4 * (ks + 1)})")
        for ct in range(4):
            for hf in range(2):
                A(f"ds_read_b64_tr_b16 a[{24*ct+4*ks+2*hf}:{24*ct+4*ks+2*hf+1}], v{vT+3} offset:{ks*4096+hf*256+ct*32}")
    A("s_waitcnt lgkmcnt(0)")
    def xflag_wait(have_loaded):
        L, Lok = A.newlabel("xfl"), A.newlabel("xflok")
        if have_loaded:
            A(f"v_cmp_gt_u32 vcc, s{sNeed}, v{vFl}")
            A(f"s_cbranch_vccz {Lok}")
        A.label(L)
        A(f"buffer_load_dword v{vFl}, v{vXflO}, {WSR}, s{sXfl} offen sc1")
        budget_check(A, 4)
        A("s_waitcnt vmcnt(0)")
        A(f"v_cmp_gt_u32 vcc, s{sNeed}, v{vFl}")
        A(f"s_cbranch_vccnz {L}")
        A.label(Lok)
    def xload(dst, t, ks, so):
        off = ks * 2048 + t * 1024
        A(f"buffer_load_dwordx4 {a(dst + 4 * (6 * t + ks), 4)}, v{vL16}, {WSR}, s{so[off // 4096]} offen offset:{off % 4096} sc1")
    A(f"s_mov_b32 s{sNeed}, 1")
    xflag_wait(False)
    A(f"s_add_u32 s{sXv}, s{sXrBase}, 24576")
    A(f"s_add_u32 s{sXv1}, s{sXv}, 4096")
    A(f"s_add_u32 s{sXv2}, s{sXv}, 8192")
    for ks in range(6):
        for t in range(2): xload(aVX, t, ks, (sXv, sXv1, sXv2))
    A(f"s_mov_b32 s{sXk}, s{sXrBase}")
    A(f"s_mov_b32 s{sS}, -1")
    A(f"v_mov_b32 v{vFl}, 0")
    A("s_waitcnt vmcnt(0)")

    Lbub, Latt, Lretry, Lnost, Lnox = "L_s2_bub", "L_s2_att", "L_s2_retry", "L_s2_nost", "L_s2_nox"
    for par in range(2):
        voxc = vVOX + 16 * par
        voxn = vVOX + 16 * (1 - par)
        sfx = f"_{par}"
        if par == 0:
            A(f"s_branch {Lbub}_1")
        A.label(f"L_s2_top{sfx}")
        Lpr, Lgo = A.newlabel("probe"), A.newlabel("go")
        A(f"buffer_load_dword v{vMx}, v{vProbe}, {WSR}, s{sMemRd} offen sc1")
        A("s_waitcnt vmcnt(0)")
        A(f"v_cmp_eq_u32 vcc, -1, v{vMx}")
        A(f"s_cbranch_vccz {Latt}{sfx}")
        A.label(Lpr)
        A(f"buffer_load_dword v{vMx}, v{vProbe}, {WSR}, s{sMemRd} offen sc1")
        budget_check(A, 5)
        A("s_waitcnt vmcnt(0)")
        A(f"v_cmp_eq_u32 vcc, -1, v{vMx}")
        A(f"s_cbranch_vccnz {Lpr}")
        if P["h2_sleep"]: A(f"s_sleep {P['h2_sleep']}")
        A.label(Latt + sfx)
        stamp(A, 0, 252)
        fstamp(A, 0, 252)
        for j in range(3):
            A(f"buffer_load_dwordx4 {v(vQ+4*j,4)}, v{vL16}, {WSR}, s{sQkv} offen offset:{1024*j} sc1")
            A(f"buffer_load_dwordx4 {v(vKM+4*j,4)}, v{vL16}, {WSR}, s{sQkv1} offen offset:{1024*j} sc1")
        for j in range(3):
            A(f"buffer_load_dwordx4 {v(vVM+4*j,4)}, v{vL16}, {WSR}, s{sQkv2} offen offset:{1024*j} sc1")
        A(f"buffer_load_dword v{vFl}, v{vXflO}, {WSR}, s{sXfl} offen sc1")
        for r in range(16): A(f"v_mov_b32 v{vVA+r}, 0")
        A(f"v_mov_b32 v{vMx}, 0")
        A(f"v_mov_b32 v{vW}, 0xff7fffff")
        A(f"v_mov_b32 v{vW+1}, 0xff7fffff")
        def chk(r0): return f"v_max3_u32 v{vMx}, v{r0}, v{r0+1}, v{vMx}"
        DPP = "row_ror:8 row_mask:0xf bank_mask:"
        for j in range(3):
            A(f"s_waitcnt vmcnt({9-2*j})")
            if j == 0: fstamp(A, 1, 252)
            k = 0
            for t in range(2):
                for pr in range(2):
                    acc = vS + 4 * (2 * t + pr)
                    cc = "0" if j == 0 else v(acc, 4)
                    A(f"v_mfma_f32_16x16x32_bf16 {v(acc,4)}, {a(aKX+4*(6*t+2*j+pr),4)}, {v(vQ+4*j,4)}, {cc}")
                    if k < 2: A(chk(vQ + 4 * j + 2 * k))
                    k += 1
            A(f"s_waitcnt vmcnt({8-2*j})")
            A(f"v_mfma_f32_16x16x32_bf16 {v(vSM,4)}, {v(vKM+4*j,4)}, {v(vQ+4*j,4)}, {'0' if j == 0 else v(vSM,4)}")
            A(chk(vKM + 4 * j)); A(chk(vKM + 4 * j + 2))
        fstamp(A, 2, 252)
        smf = [f"v_smfmac_f32_16x16x64_bf16 {v(vVA+4*ct,4)}, {v(vVM+4*j,4)}, {a(24*ct+8*j,8)}, v{vIdx}" for j in range(3) for ct in range(4)]
        chks = [chk(vVM + 2 * i) for i in range(6)]
        vals = [vS + r for r in range(4)] + [vW, vW + 1]
        vm, vt2 = vT, vT + 1
        A("s_nop 0")
        for r in range(4): A(f"v_add_f32_dpp v{vS+r}, v{vS+4+r}, v{vS+r} {DPP}0xf")
        for r in range(4): A(f"v_add_f32_dpp v{vS+r}, v{vS+8+r}, v{vS+12+r} {DPP}0xc")
        A(f"v_permlane32_swap_b32 v{vSM}, v{vSM+1}")
        A(f"v_permlane32_swap_b32 v{vSM+2}, v{vSM+3}")
        A(f"v_max3_f32 v{vm}, v{vals[0]}, v{vals[1]}, v{vals[2]}")
        A(f"v_add_f32_dpp v{vW}, v{vSM+1}, v{vSM} {DPP}0x3")
        A(f"v_add_f32_dpp v{vW+1}, v{vSM+3}, v{vSM+2} {DPP}0x3")
        A(f"v_max3_f32 v{vm}, v{vals[3]}, v{vals[4]}, v{vm}")
        A(f"v_max_f32 v{vm}, v{vals[5]}, v{vm}")
        A("s_waitcnt vmcnt(1)")
        fstamp(A, 3, 252)
        A(smf[0])
        A(f"v_max_f32_dpp v{vm}, v{vm}, v{vm} {DPP}0xf")
        A(f"v_mov_b32 v{vt2}, v{vm}")
        A(smf[1]); A(chks[0])
        A(f"v_permlane32_swap_b32 v{vm}, v{vt2}")
        A(f"v_max_f32 v{vm}, v{vm}, v{vt2}")
        A(f"v_mov_b32 v{vt2}, v{vm}")
        A(smf[2]); A(chks[1])
        A(f"v_permlane16_swap_b32 v{vm}, v{vt2}")
        A(f"v_max_f32 v{vm}, v{vm}, v{vt2}")
        A(f"v_mul_f32 v{vm}, s{sC}, v{vm}")
        fm = [f"v_fma_f32 v{x}, v{x}, s{sC}, -v{vm}" for x in vals]
        ex = [f"v_exp_f32 v{x}, v{x}" for x in vals]
        A(smf[3]); A(fm[0]); A(fm[1])
        A(smf[4]); A(fm[2]); A(fm[3])
        A(smf[5]); A(ex[0])
        A(smf[6]); A(ex[1])
        A(smf[7]); A(ex[2])
        A(smf[8]); A(ex[3])
        A(smf[9]); A(fm[4]); A(fm[5])
        A(f"v_cvt_pk_bf16_f32 v{vPb}, v{vals[0]}, v{vals[1]}")
        A(f"v_cvt_pk_bf16_f32 v{vPb+1}, v{vals[2]}, v{vals[3]}")
        A(smf[10]); A(ex[4])
        A(f"v_mov_b32_dpp v{vPb+2}, v{vPb} {DPP}0xf")
        A(f"v_mov_b32_dpp v{vPb+3}, v{vPb+1} {DPP}0xf")
        A(smf[11]); A(ex[5])
        A(chks[2]); A(chks[3])
        def fin32(ct): A(f"v_mfma_f32_16x16x32_bf16 {v(vF+4*ct,4)}, {v(voxc+4*ct,4)}, {v(vPb,4)}, 0")
        def fin16(ct): A(f"v_mfma_f32_16x16x16_bf16 {v(vF+4*ct,4)}, {v(vVOM+2*ct,2)}, {v(vPb+4,2)}, {v(vF+4*ct,4)}")
        def cvom(ct):
            A(f"v_cvt_pk_bf16_f32 v{vVOM+2*ct}, v{vVA+4*ct}, v{vVA+4*ct+2}")
            A(f"v_cvt_pk_bf16_f32 v{vVOM+2*ct+1}, v{vVA+4*ct+1}, v{vVA+4*ct+3}")
        A(f"v_mfma_f32_16x16x32_bf16 {v(vDen,4)}, {v(vOne32,4)}, {v(vPb,4)}, 0")
        A(f"v_cvt_pk_bf16_f32 v{vPb+4}, v{vals[4]}, v{vals[5]}")
        A(f"v_mov_b32 v{vPb+5}, v{vPb+4}")
        fin32(0); A(chks[4]); A(chks[5])
        fin32(1)
        A(f"v_permlane32_swap_b32 v{vPb+4}, v{vPb+5}")
        fin32(2)
        A(f"v_cmp_eq_u32 vcc, -1, v{vMx}")
        cvom(0)
        A(f"v_mfma_f32_16x16x16_bf16 {v(vDen,4)}, {v(vOne16,2)}, {v(vPb+4,2)}, {v(vDen,4)}")
        cvom(1)
        fin32(3); cvom(2)
        fin16(0); cvom(3)
        fin16(1)
        A(f"s_cbranch_vccnz {Lretry}{sfx}")
        fstamp(A, 4, 252)
        fin16(2)
        A(f"v_rcp_f32 v{vT+4}, v{vDen}")
        fin16(3)
        fstamp(A, 5, 252)
        A("s_nop 0")
        A(f"v_mov_b32_dpp v{vT+4}, v{vT+4} {DPP}0xc")
        A("s_nop 1")
        for pc in range(2):
            for r in range(4):
                A(f"v_mul_f32 v{vF+4*pc+r}, v{vF+4*pc+r}, v{vT+4}")
            for r in range(4):
                A(f"v_mul_f32_dpp v{vF+4*pc+r}, v{vF+4*(pc+2)+r}, v{vT+4} row_ror:8 row_mask:0xf bank_mask:0xc")
            A(f"ds_write_b128 v{vRedW}, {v(vF+4*pc,4)} offset:{1024*pc}")
        fstamp(A, 6, 252)
        A("s_waitcnt lgkmcnt(0)")
        A("s_barrier")
        fstamp(A, 7, 252)
        if P["prof"] == 3: A("s_waitcnt lgkmcnt(0)")
        for h in range(4):
            A(f"ds_read_b128 {v(vF+4*h,4)}, v{vRedR} offset:{2048*h}")
        A("s_waitcnt lgkmcnt(2)")
        A(f"v_pk_add_f32 {v(vF,2)}, {v(vF,2)}, {v(vF+4,2)}")
        A(f"v_pk_add_f32 {v(vF+2,2)}, {v(vF+2,2)}, {v(vF+6,2)}")
        A("s_waitcnt lgkmcnt(0)")
        A(f"v_pk_add_f32 {v(vF+8,2)}, {v(vF+8,2)}, {v(vF+12,2)}")
        A(f"v_pk_add_f32 {v(vF+10,2)}, {v(vF+10,2)}, {v(vF+14,2)}")
        A(f"v_pk_add_f32 {v(vF,2)}, {v(vF,2)}, {v(vF+8,2)}")
        A(f"v_pk_add_f32 {v(vF+2,2)}, {v(vF+2,2)}, {v(vF+10,2)}")
        A(f"v_cvt_pk_bf16_f32 v{vF}, v{vF}, v{vF+1}")
        A(f"v_cvt_pk_bf16_f32 v{vF+1}, v{vF+2}, v{vF+3}")
        A(f"buffer_store_dwordx2 {v(vF,2)}, v{vPartO}, {WSR}, s{sPartW} offen sc1")
        stamp(A, 1, 252)
        fstamp(A, 8, 252)
        A(f"s_cmp_lt_i32 s{sS}, 1")
        A(f"s_cbranch_scc1 {Lbub}{sfx}")
        A(f"buffer_store_dwordx2 {v(vPois,2)}, v{vPartO}, {WSR}, s{sPartP} offen sc1")
        A(f"s_add_u32 s{sT0}, s{sXp}, 32768")
        A(f"buffer_store_dwordx4 {v(vXOUT,4)}, v{vL16}, {WSR}, s{sXp} offen sc1")
        A(f"buffer_store_dwordx4 {v(vXOUT+4,4)}, v{vL16}, {WSR}, s{sT0} offen sc1")
        A(f"s_add_u32 s{sXp}, s{sXp}, 655360")
        A(f"s_sub_u32 s{sT0}, s{sS}, 1")
        A(f"v_mov_b32 v{vT}, s{sT0}")
        A(f"buffer_store_dword v{vT}, v{vFlagO}, {WSR}, s{sXpF} offen sc1")
        A.label(Lbub + sfx)
        A(f"s_add_u32 s{sNeed}, s{sS}, 3")
        A(f"s_min_u32 s{sNeed}, s{sNeed}, {P['nseg']}")
        xflag_wait(True)
        A(f"s_add_u32 s{sXv}, s{sXk}, {XR_SLOT}")
        A(f"s_cmp_eq_u32 s{sXv}, s{sXrEnd}")
        A(f"s_cselect_b32 s{sXv}, s{sXrBase}, s{sXv}")
        A(f"s_add_u32 s{sXk2}, s{sXk}, {12288 + 8192}")
        A(f"s_add_u32 s{sXk1}, s{sXk}, {12288 + 4096}")
        A(f"s_add_u32 s{sT2}, s{sXk}, 12288")
        A(f"s_mov_b32 s{sXk}, s{sXv}")
        A(f"s_add_u32 s{sXv2}, s{sXv}, {24576 + 8192}")
        A(f"s_add_u32 s{sXv1}, s{sXv}, {24576 + 4096}")
        A(f"s_add_u32 s{sXv}, s{sXv}, 24576")
        A(f"s_and_b32 s{sT0}, s{sS}, 3")
        A(f"s_mul_i32 s{sPx}, s{sT0}, 12288")
        A(f"s_add_u32 s{sPx}, s{sPx}, s{sPxBase}")
        fstamp(A, 9, 252)
        def pxl(i):
            qt = i >> 1
            if i & 1: A(f"buffer_load_dwordx2 {v(vPX+6*qt+4,2)}, v{vL8}, {WSR}, s{sPx} offen offset:{1536*qt+1024} sc1")
            else: A(f"buffer_load_dwordx4 {v(vPX+6*qt,4)}, v{vL16}, {WSR}, s{sPx} offen offset:{1536*qt} sc1")
        def pxload():
            for i in range(4): pxl(i)
        q = [("p", i) for i in range(4)] + [("k", t, ks) for ks in range(6) for t in range(2)] + [("v", t, ks) for ks in range(6) for t in range(2)]
        def nxt(n=1):
            for _ in range(n):
                if not q: return
                e = q.pop(0)
                if e[0] == "k": xload(aKX, e[1], e[2], (sT2, sXk1, sXk2))
                elif e[0] == "v": xload(aVX, e[1], e[2], (sXv, sXv1, sXv2))
                else: pxl(e[1])
        n = 0
        for ks in range(6):
            for t in range(2):
                for ct in range(4):
                    acc = vXA + 4 * (4 * t + ct)
                    cc = "0" if ks == 0 else v(acc, 4)
                    A(f"v_mfma_f32_16x16x32_bf16 {v(acc,4)}, {a(aVX+4*(6*t+ks),4)}, {a(24*ct+4*ks,4)}, {cc}")
                    if n % 4 == 0: nxt()
                    n += 1
        fstamp(A, 10, 252)
        A(f"s_add_u32 s{sT0}, s{sS}, 3")
        A(f"s_and_b32 s{sT0}, s{sT0}, 3")
        A(f"s_mul_i32 s{sPartP}, s{sT0}, {PART_SLOT}")
        A(f"s_add_u32 s{sPartP}, s{sPartP}, s{sPartBase}")
        A(f"s_add_u32 s{sT0}, s{sS}, 1")
        A(f"s_and_b32 s{sT0}, s{sT0}, 3")
        A(f"s_mul_i32 s{sPartW}, s{sT0}, {PART_SLOT}")
        A(f"s_add_u32 s{sPartW}, s{sPartW}, s{sPartBase}")
        A(f"s_mul_i32 s{sQkv}, s{sT0}, 36864")
        A(f"s_add_u32 s{sQkv}, s{sQkv}, s{sQkvBase}")
        A(f"s_add_u32 s{sQkv1}, s{sQkv}, 3072")
        A(f"s_add_u32 s{sQkv2}, s{sQkv}, 6144")
        A(f"s_mul_i32 s{sMemRd}, s{sT0}, 10240")
        A(f"s_add_u32 s{sMemRd}, s{sMemRd}, s{sMemBase}")
        nxt()
        for ct in range(4):
            for t in range(2):
                for h in range(2):
                    src = vXA + 4 * (4 * t + ct) + 2 * h
                    A(f"v_cvt_pk_bf16_f32 v{voxn+4*ct+2*t+h}, v{src}, v{src+1}")
        stamp(A, 2, 252)
        fstamp(A, 11, 252)
        Lx0 = A.newlabel("x0")
        A(f"s_cmp_lt_i32 s{sS}, 0")
        A(f"s_cbranch_scc1 {Lx0}")
        rest = list(q)
        Lpx, Lpxr = A.newlabel("px"), A.newlabel("pxr")
        A("s_waitcnt vmcnt(9)")
        A.label(Lpx)
        A(f"v_max3_u32 v{vMx}, v{vPX}, v{vPX+1}, v{vPX+2}")
        for i in range(3, 11, 2): A(f"v_max3_u32 v{vMx}, v{vPX+i}, v{vPX+i+1}, v{vMx}")
        A(f"v_max_u32 v{vMx}, v{vPX+11}, v{vMx}")
        A(f"v_cmp_eq_u32 vcc, -1, v{vMx}")
        A(f"s_cbranch_vccnz {Lpxr}")
        stamp(A, 3, 252)
        fstamp(A, 12, 252)
        if P["prof"] == 3: A("s_waitcnt lgkmcnt(0)")
        for ct in range(4):
            for qt in range(2):
                A(f"v_mfma_f32_16x16x32_bf16 {v(vXA+4*(2*ct+qt),4)}, {v(voxc+4*ct,4)}, {v(vPX+6*qt,4)}, 0")
            if ct & 1 == 0: nxt()
        A(f"s_lshl_b32 s{sT0}, s{sW}, 13")
        A(f"s_add_u32 s{sT0}, s{sT0}, {RED2}")
        A(f"v_add_u32 v{vT}, s{sT0}, v{vL16}")
        for ct in range(4):
            for qt in range(2):
                A(f"v_mfma_f32_16x16x16_bf16 {v(vXA+4*(2*ct+qt),4)}, {v(vVOM+2*ct,2)}, {v(vPX+6*qt+4,2)}, {v(vXA+4*(2*ct+qt),4)}")
            if ct & 1 == 0: nxt()
        A("s_nop 1")
        for i in range(8):
            if i == 7: A.nop(1)
            A(f"ds_write_b128 v{vT}, {v(vXA+4*i,4)} offset:{1024*i}")
            if i & 1: nxt()
        nxt(2)
        A("s_waitcnt lgkmcnt(0)")
        A("s_barrier")
        for qt in range(2):
            for h in range(4):
                A(f"ds_read_b128 {v(vXA+16*qt+4*h,4)}, v{vRed2R} offset:{8192*h+1024*qt}")
        nxt(2)
        for qt in range(2):
            b = vXA + 16 * qt
            A(f"s_waitcnt lgkmcnt({4 if qt == 0 else 0})")
            A(f"v_pk_add_f32 {v(b,2)}, {v(b,2)}, {v(b+4,2)}")
            A(f"v_pk_add_f32 {v(b+2,2)}, {v(b+2,2)}, {v(b+6,2)}")
            A(f"v_pk_add_f32 {v(b+8,2)}, {v(b+8,2)}, {v(b+12,2)}")
            A(f"v_pk_add_f32 {v(b+10,2)}, {v(b+10,2)}, {v(b+14,2)}")
            A(f"v_pk_add_f32 {v(vXOUT+4*qt,2)}, {v(b,2)}, {v(b+8,2)}")
            A(f"v_pk_add_f32 {v(vXOUT+4*qt+2,2)}, {v(b+2,2)}, {v(b+10,2)}")
            nxt()
        nxt(99)
        A(f"s_branch {Lnox}{sfx}")
        A.label(Lx0)
        q = rest
        nxt(99)
        A.label(Lnox + sfx)
        stamp(A, 4, 252)
        fstamp(A, 13, 252)
        fstamp_collect(A, 14, 252)
        stamp_flush(A, 252, 253)
        A(f"s_add_u32 s{sS}, s{sS}, 1")
        A(f"s_cmp_lg_u32 s{sS}, {P['nseg']}")
        A(f"s_cbranch_scc1 L_s2_top_{1-par}")
        A("s_branch L_s2_fin")
        A.label(Lretry + sfx)
        budget_check(A, 6)
        A(f"s_branch {Latt}{sfx}")
        A.label(Lpxr)
        budget_check(A, 7)
        pxload()
        A("s_waitcnt vmcnt(0)")
        A(f"s_branch {Lpx}")
    A.label("L_s2_fin")
    A(f"s_add_u32 s{sT0}, s{sXp}, 32768")
    A(f"buffer_store_dwordx4 {v(vXOUT,4)}, v{vL16}, {WSR}, s{sXp} offen sc1")
    A(f"buffer_store_dwordx4 {v(vXOUT+4,4)}, v{vL16}, {WSR}, s{sT0} offen sc1")
    A(f"v_mov_b32 v{vT}, {P['nseg']}")
    A("s_waitcnt vmcnt(0)")
    A(f"buffer_store_dword v{vT}, v{vFlagO}, {WSR}, s{sXpF} offen sc1")
    A("s_branch L_end")

def gen_xs(A):
    sHH = 30
    sQkv, sQkvBase, sXq, sXrBase, sXrEnd, sPx, sPxP, sPxBase, sXfl, sC, sNeed = 31, 32, 33, 34, 35, 36, 37, 38, 39, 40, 41
    sXa = 42
    sMask = 48
    sPf = 64
    vPf = 140
    vL16, vKmO, vL8, vXflO, vNeg = 1, 2, 3, 4, 5
    vPois = 8
    vT = 12
    vFl, vMx = 20, 21
    vQ, vKX, vKM = 24, 48, 96
    vS = 120
    vPb = 132
    c = (192 ** -0.5) * math.log2(math.e)
    A.label("L_xs")
    A(f"s_sub_u32 s{sHH}, s{sR}, 28")
    A(f"v_lshlrev_b32 v{vL16}, 4, v0")
    A(f"v_lshlrev_b32 v{vL8}, 3, v0")
    A(f"v_and_b32 v{vKmO}, 0x37, v0")
    A(f"v_lshlrev_b32 v{vKmO}, 4, v{vKmO}")
    A(f"v_min_u32 v{vXflO}, 11, v0")
    A(f"v_lshlrev_b32 v{vXflO}, 2, v{vXflO}")
    for r in range(4): A(f"v_mov_b32 v{vPois+r}, -1")
    A(f"v_mov_b32 v{vNeg}, {f2u(-1e9 * 192 ** 0.5):#x}")
    A(f"v_and_b32 v{vT}, 15, v0")
    A(f"s_lshl_b32 s{sT0}, s{sW}, 4")
    A(f"v_add_u32 v{vT}, s{sT0}, v{vT}")
    A(f"v_lshrrev_b32 v{vT+1}, 4, v0")
    A(f"v_lshlrev_b32 v{vT+1}, 2, v{vT+1}")
    for t in range(2):
        for r in range(4):
            A(f"v_add_u32 v{vT+2}, {16*t+r}, v{vT+1}")
            A(f"v_cmp_le_u32 s[{sMask+2*(4*t+r)}:{sMask+2*(4*t+r)+1}], v{vT+2}, v{vT}")
    A(f"s_mul_i32 s{sQkvBase}, s{sG}, 147456")
    A(f"s_mul_i32 s{sT0}, s{sHH}, 9216")
    A(f"s_add_u32 s{sQkvBase}, s{sQkvBase}, s{sT0}")
    A(f"s_add_u32 s{sQkvBase}, s{sQkvBase}, {QKVR + 3072}")
    A(f"s_mul_i32 s{sXrBase}, s{sG}, {XR_G}")
    A(f"s_mul_i32 s{sT0}, s{sHH}, {XR_HEAD}")
    A(f"s_add_u32 s{sXrBase}, s{sXrBase}, s{sT0}")
    A(f"s_add_u32 s{sXrBase}, s{sXrBase}, {XR}")
    A(f"s_add_u32 s{sXrEnd}, s{sXrBase}, {XR_G}")
    A(f"s_mov_b32 s{sXq}, s{sXrBase}")
    A(f"s_mul_i32 s{sPxBase}, s{sG}, 49152")
    A(f"s_mul_i32 s{sT0}, s{sHH}, 3072")
    A(f"s_add_u32 s{sPxBase}, s{sPxBase}, s{sT0}")
    A(f"s_mul_i32 s{sT0}, s{sW}, 1536")
    A(f"s_add_u32 s{sPxBase}, s{sPxBase}, s{sT0}")
    A(f"s_add_u32 s{sPxBase}, s{sPxBase}, {PXR}")
    A(f"s_lshl_b32 s{sXfl}, s{sG}, 9")
    A(f"s_mul_i32 s{sT0}, s{sHH}, 72")
    A(f"s_add_u32 s{sXfl}, s{sXfl}, s{sT0}")
    A(f"s_add_u32 s{sXfl}, s{sXfl}, {XFLAG}")
    A(f"s_mov_b32 s{sC}, {f2u(c):#x}")
    A(f"s_mov_b32 s{sS}, 0")
    A(f"s_lshl_b32 s{sPf}, s{sHH}, 1")
    A(f"s_add_u32 s{sPf}, s{sPf}, s{sW}")
    A(f"s_mul_i32 s{sPf}, s{sPf}, 5120")
    for sg in range(3, 6):
        A(f"s_add_u32 s{sT0}, s{sPf}, {sg * 40960}")
        for i in range(4):
            A(f"buffer_load_dwordx4 {v(vPf,4)}, v{vL16}, s[{sX}:{sX+3}], s{sT0} offen offset:{1024*i}")
        A(f"s_add_u32 s{sT0}, s{sT0}, 4096")
        A(f"buffer_load_dwordx4 {v(vPf,4)}, v{vL16}, s[{sX}:{sX+3}], s{sT0} offen")
    gen_locality(A, "L_xs_loc", "L_xs_glb", vT)
    for mode in ("loc", "glb"):
        sc = "" if mode == "loc" else " sc1"
        A.label(f"L_xs_{mode}")
        Lf, Lk = A.newlabel("xsf"), A.newlabel("xsk")
        A(f"s_add_u32 s{sNeed}, s{sS}, 1")
        A.label(Lf)
        A(f"buffer_load_dword v{vFl}, v{vXflO}, {WSR}, s{sXfl} offen sc1")
        budget_check(A, 8)
        A("s_waitcnt vmcnt(0)")
        A(f"v_cmp_gt_u32 vcc, s{sNeed}, v{vFl}")
        A(f"s_cbranch_vccnz {Lf}")
        A(f"s_lshl_b32 s{sT0}, s{sW}, 10")
        A(f"s_add_u32 s{sXa}, s{sXq}, s{sT0}")
        A(f"s_add_u32 s{sXa+1}, s{sXa}, 4096")
        A(f"s_add_u32 s{sXa+2}, s{sXa}, 8192")
        A(f"s_add_u32 s{sXa+3}, s{sXq}, 12288")
        A(f"s_add_u32 s{sXa+4}, s{sXq}, {12288+4096}")
        A(f"s_add_u32 s{sXa+5}, s{sXq}, {12288+8192}")
        for ks in range(6):
            A(f"buffer_load_dwordx4 {v(vQ+4*ks,4)}, v{vL16}, {WSR}, s{sXa+ks//2} offen offset:{2048*(ks&1)} sc1")
            for t in range(2):
                A(f"buffer_load_dwordx4 {v(vKX+4*(6*t+ks),4)}, v{vL16}, {WSR}, s{sXa+3+ks//2} offen offset:{2048*(ks&1)+1024*t} sc1")
        A(f"s_add_u32 s{sXq}, s{sXq}, {XR_SLOT}")
        A(f"s_cmp_eq_u32 s{sXq}, s{sXrEnd}")
        A(f"s_cselect_b32 s{sXq}, s{sXrBase}, s{sXq}")
        A(f"s_and_b32 s{sT0}, s{sS}, 3")
        A(f"s_mul_i32 s{sQkv}, s{sT0}, 36864")
        A(f"s_add_u32 s{sQkv}, s{sQkv}, s{sQkvBase}")
        A(f"s_mul_i32 s{sPx}, s{sT0}, 12288")
        A(f"s_add_u32 s{sPx}, s{sPx}, s{sPxBase}")
        A(f"s_add_u32 s{sT0}, s{sS}, 2")
        A(f"s_and_b32 s{sT0}, s{sT0}, 3")
        A(f"s_mul_i32 s{sPxP}, s{sT0}, 12288")
        A(f"s_add_u32 s{sPxP}, s{sPxP}, s{sPxBase}")
        for ks in range(6):
            A(f"s_waitcnt vmcnt({15 - 3 * ks})")
            for t in range(2):
                cc = "0" if ks == 0 else v(vS + 4 * t, 4)
                A(f"v_mfma_f32_16x16x32_bf16 {v(vS+4*t,4)}, {v(vKX+4*(6*t+ks),4)}, {v(vQ+4*ks,4)}, {cc}")
        A.label(Lk)
        for ks in range(6):
            A(f"buffer_load_dwordx4 {v(vKM+4*ks,4)}, v{vKmO}, {WSR}, s{sQkv} offen offset:{1024*(ks>>1)+128*(ks&1)} sc1")
        budget_check(A, 9)
        A("s_waitcnt vmcnt(0)")
        A(f"v_max3_u32 v{vMx}, v{vKM}, v{vKM+1}, v{vKM+2}")
        for i in range(3, 23, 2): A(f"v_max3_u32 v{vMx}, v{vKM+i}, v{vKM+i+1}, v{vMx}")
        A(f"v_max_u32 v{vMx}, v{vKM+23}, v{vMx}")
        A(f"v_cmp_eq_u32 vcc, -1, v{vMx}")
        A(f"s_cbranch_vccnz {Lk}")
        for ks in range(6):
            cc = "0" if ks == 0 else v(vS + 8, 4)
            A(f"v_mfma_f32_16x16x32_bf16 {v(vS+8,4)}, {v(vKM+4*ks,4)}, {v(vQ+4*ks,4)}, {cc}")
        A(f"buffer_store_dwordx4 {v(vPois,4)}, v{vL16}, {WSR}, s{sPxP} offen{sc}")
        A(f"buffer_store_dwordx2 {v(vPois,2)}, v{vL8}, {WSR}, s{sPxP} offen offset:1024{sc}")
        for i in range(8):
            A(f"v_cndmask_b32 v{vS+i}, v{vNeg}, v{vS+i}, s[{sMask+2*i}:{sMask+2*i+1}]")
        vm, vt2 = vT, vT + 1
        A(f"v_max3_f32 v{vm}, v{vS}, v{vS+1}, v{vS+2}")
        for i in range(3, 11, 2): A(f"v_max3_f32 v{vm}, v{vS+i}, v{vS+i+1}, v{vm}")
        A(f"v_max_f32 v{vm}, v{vS+11}, v{vm}")
        for sw in ("32", "16"):
            A(f"v_mov_b32 v{vt2}, v{vm}")
            A("s_nop 1")
            A(f"v_permlane{sw}_swap_b32 v{vm}, v{vt2}")
            A(f"v_max_f32 v{vm}, v{vm}, v{vt2}")
        A(f"v_mul_f32 v{vm}, s{sC}, v{vm}")
        for i in range(12): A(f"v_fma_f32 v{vS+i}, v{vS+i}, s{sC}, -v{vm}")
        for i in range(12): A(f"v_exp_f32 v{vS+i}, v{vS+i}")
        A(f"v_add_f32 v{vT+2}, v{vS+8}, v{vS+9}")
        A(f"v_add_f32 v{vT+3}, v{vS}, v{vS+1}")
        A(f"v_add_f32 v{vT+2}, v{vT+2}, v{vS+10}")
        A(f"v_add_f32 v{vT+2}, v{vT+2}, v{vS+11}")
        for i in range(2, 8): A(f"v_add_f32 v{vT+3}, v{vT+3}, v{vS+i}")
        A(f"v_fma_f32 v{vm}, v{vT+2}, 0.5, v{vT+3}")
        for sw in ("32", "16"):
            A(f"v_mov_b32 v{vt2}, v{vm}")
            A("s_nop 1")
            A(f"v_permlane{sw}_swap_b32 v{vm}, v{vt2}")
            A(f"v_add_f32 v{vm}, v{vm}, v{vt2}")
        A(f"v_rcp_f32 v{vm}, v{vm}")
        A("s_nop 0")
        for i in range(12): A(f"v_mul_f32 v{vS+i}, v{vS+i}, v{vm}")
        for i in range(4): A(f"v_cvt_pk_bf16_f32 v{vPb+i}, v{vS+2*i}, v{vS+2*i+1}")
        for i in range(2): A(f"v_cvt_pk_bf16_f32 v{vPb+4+i}, v{vS+8+i}, v{vS+10+i}")
        A(f"buffer_store_dwordx4 {v(vPb,4)}, v{vL16}, {WSR}, s{sPx} offen{sc}")
        A(f"buffer_store_dwordx2 {v(vPb+4,2)}, v{vL8}, {WSR}, s{sPx} offen offset:1024{sc}")
        A(f"s_add_u32 s{sT0}, s{sS}, 6")
        A(f"s_mul_i32 s{sT0}, s{sT0}, 40960")
        A(f"s_add_u32 s{sT0}, s{sT0}, s{sPf}")
        for i in range(4):
            A(f"buffer_load_dwordx4 {v(vPf,4)}, v{vL16}, s[{sX}:{sX+3}], s{sT0} offen offset:{1024*i}")
        A(f"s_add_u32 s{sT0}, s{sT0}, 4096")
        A(f"buffer_load_dwordx4 {v(vPf,4)}, v{vL16}, s[{sX}:{sX+3}], s{sT0} offen")
        A(f"s_add_u32 s{sS}, s{sS}, 1")
        A(f"s_cmp_lg_u32 s{sS}, {P['nseg']}")
        A(f"s_cbranch_scc1 L_xs_{mode}")
        A("s_branch L_end")

def gen_main(A):
    A(".p2align 8")
    A(f".type {NAME},@function")
    A.label(NAME)
    gen_common_prologue(A)
    A(f"s_cmp_lt_u32 s{sR}, 18")
    A("s_cbranch_scc1 L_s1")
    A(f"s_cmp_lt_u32 s{sR}, 28")
    A("s_cbranch_scc1 L_s2")
    A(f"s_cmp_lt_u32 s{sW}, 2")
    A("s_cbranch_scc1 L_xs")
    A("s_branch L_bg")
    A.label("L_fail")
    A(f"v_mov_b32 v1, s{sT3}")
    A(f"s_lshl_b32 s{sT3}, s{sT3}, 2")
    A(f"s_add_u32 s{sT3}, s{sT3}, 64")
    A(f"v_mov_b32 v2, s{sT3}")
    A(f"v_mov_b32 v1, s{sS}")
    A(f"v_add_u32 v1, 1000, v1")
    A(f"buffer_store_dword v1, v2, s[{sDBG}:{sDBG+3}], 0 offen")
    A.label("L_end")
    A("s_endpgm")
    gen_s1(A)
    gen_s2(A)
    gen_xs(A)
    try:
        import gen_bg
        gen_bg.gen_bg(A, sys.modules[__name__])
    except ImportError:
        A.label("L_bg")
        A("s_endpgm")

HEADER = open("gated_mix__memory_aug_recurrent_mem_tr__ssm_conv_h3__prompt.s.ref").read().split("; Override launch")[0]

def kd(name, vgpr, acc, sgpr=96):
    return f""".amdhsa_kernel {name}
  .amdhsa_next_free_vgpr {vgpr}
  .amdhsa_next_free_sgpr {sgpr}
  .amdhsa_accum_offset {acc}
  .amdhsa_group_segment_fixed_size 0
  .amdhsa_kernarg_size 136
  .amdhsa_user_sgpr_count 2
  .amdhsa_user_sgpr_kernarg_segment_ptr 1
  .amdhsa_system_sgpr_workgroup_id_x 1
  .amdhsa_float_denorm_mode_32 3
.end_amdhsa_kernel
"""

def generate(**kw):
    P.update(kw)
    A = Asm()
    A('.amdgcn_target "amdgcn-amd-amdhsa--gfx950"')
    A(".text")
    A(".globl init_kernel")
    A(f".globl {NAME}")
    gen_init(A)
    gen_main(A)
    probs = check_hazards(A.lines)
    txt = HEADER
    txt += "; @launch kernel=init_kernel grid=(256,1,1) block=(256,1,1) lds=0\n"
    txt += f"; @launch kernel={NAME} grid=(256,1,1) block=(256,1,1) lds=163840\n"
    txt += A.text()
    txt += '.section .rodata,"a"\n.p2align 6\n' + kd("init_kernel", 32, 32) + ".p2align 6\n" + kd(NAME, 512, 256)
    return txt, probs

if __name__ == "__main__":
    kw = {}
    out = "gated_mix__memory_aug_recurrent_mem_tr__ssm_conv_h3__prompt.s"
    for arg in sys.argv[1:]:
        if "=" in arg:
            k, val = arg.split("="); kw[k] = int(val)
        else:
            out = arg
    txt, probs = generate(**kw)
    open(out, "w").write(txt)
    print("wrote", out, len(txt), "bytes;", len(probs), "hazards")
```

```python
import math
from asmlib import v, a, s

def gen_bg(A, G):
    P, WSR = G.P, G.WSR
    sG, sR, sW, sS, sX = G.sG, G.sR, G.sW, G.sS, G.sX
    sT0, sT1, sT2, sT3 = G.sT0, G.sT1, G.sT2, G.sT3
    OOB = G.OOB
    budget_check, srd, f2u = G.budget_check, G.srd, G.f2u
    sWV, sCU, sLds, sI, sCh, sMaskHi = 30, 31, 32, 33, 34, 35
    sK, sV, sF, sAux = 36, 40, 44, 48
    sPk, sPv, sPsk, sPf, sPd, sPg, sPo = 52, 54, 56, 58, 60, 62, 64
    sD = 66
    sU, sSeg, sJ, sB0, sB1 = 74, 75, 76, 77, 78
    XS = f"s[{sX}:{sX+3}]"
    vL16, vFlagO = 1, 2
    vT = 4
    UP, CP = 4608, 4160
    FOFF = 2 * UP
    YOFF = FOFF + 8 * CP
    LDSW = YOFF + 4096
    def lo(d, x): A(f"v_lshlrev_b32 v{d}, 16, v{x}")
    def hi(d, x): A(f"v_and_b32 v{d}, s{sMaskHi}, v{x}")

    A.label("L_bg")
    if P.get("nobg"):
        A("s_endpgm")
    A(f"s_sub_u32 s{sT0}, s{sR}, 28")
    A(f"s_lshl_b32 s{sT0}, s{sT0}, 3")
    A(f"s_add_u32 s{sT0}, s{sT0}, s{sG}")
    A(f"s_lshl_b32 s{sT0}, s{sT0}, 1")
    A(f"s_sub_u32 s{sT1}, s{sW}, 2")
    A(f"s_add_u32 s{sWV}, s{sT0}, s{sT1}")
    A(f"s_mul_i32 s{sLds}, s{sT1}, {LDSW}")
    A(f"s_load_dwordx4 s[{sPk}:{sPk+3}], s[0:1], 64")
    A(f"s_load_dwordx4 s[{sPsk}:{sPsk+3}], s[0:1], 80")
    A(f"s_load_dwordx4 s[{sPd}:{sPd+3}], s[0:1], 96")
    A(f"s_load_dwordx2 s[{sPo}:{sPo+1}], s[0:1], 112")
    A(f"s_mov_b32 s{sMaskHi}, 0xffff0000")
    A(f"s_mov_b32 s{sS}, 0")
    A(f"v_lshlrev_b32 v{vL16}, 4, v0")
    A(f"v_cmp_eq_u32 vcc, 0, v0")
    A(f"v_mov_b32 v{vT}, {OOB}")
    A("s_nop 0")
    A(f"v_cndmask_b32 v{vFlagO}, v{vT}, v0, vcc")
    A("s_waitcnt lgkmcnt(0)")
    Lw0 = A.newlabel("bgw")
    A(f"s_lshl_b32 s{sT0}, s{sG}, 9")
    A(f"s_add_u32 s{sT0}, s{sT0}, {G.XFLAG}")
    A(f"v_lshlrev_b32 v{vT+1}, 2, v0")
    A.label(Lw0)
    A("s_sleep 16")
    A(f"buffer_load_dword v{vT}, v{vT+1}, {WSR}, s{sT0} offen sc1")
    budget_check(A, 12)
    A("s_waitcnt vmcnt(0)")
    A(f"v_cmp_eq_u32 vcc, 0, v{vT}")
    A(f"s_cbranch_vccnz {Lw0}")
    for dst, src, size in ((sK, sPk, 2048 * 1280), (sV, sPv, 2048 * 1280), (sAux, sPg, 1280)):
        A(f"s_mov_b64 s[{dst}:{dst+1}], s[{src}:{src+1}]")
        srd(A, dst, size)

    vGW, vXr, vAcc, vXo, vGo = 24, 64, 84, 85, 86
    A(f"v_and_b32 v{vT}, 15, v0")
    A(f"v_lshlrev_b32 v{vT}, 4, v{vT}")
    for i in range(5):
        A(f"buffer_load_dwordx4 {v(vXr+4*i,4)}, v{vT}, s[{sAux}:{sAux+3}], 0 offen offset:{256*i}")
    A(f"v_lshrrev_b32 v{vT+1}, 4, v0")
    A(f"v_mul_u32_u24 v{vXo}, 1280, v{vT+1}")
    A(f"v_add_u32 v{vXo}, v{vXo}, v{vT}")
    A(f"v_lshlrev_b32 v{vT+1}, 2, v{vT+1}")
    A(f"v_cmp_eq_u32 vcc, 0, v{vT}")
    A(f"v_mov_b32 v{vT+2}, {OOB}")
    A("s_nop 0")
    A(f"v_cndmask_b32 v{vGo}, v{vT+2}, v{vT+1}, vcc")
    A(f"s_mul_i32 s{sB0}, s{sWV}, 40960")
    A(f"s_lshl_b32 s{sB1}, s{sWV}, 7")
    A(f"s_add_u32 s{sB1}, s{sB1}, {G.GV}")
    A("s_waitcnt vmcnt(0)")
    for i in range(20):
        lo(vGW + 2 * i, vXr + i); hi(vGW + 2 * i + 1, vXr + i)
    A(f"s_mov_b32 s{sI}, 8")
    Lg = A.newlabel("gate")
    A.label(Lg)
    for i in range(5):
        A(f"buffer_load_dwordx4 {v(vXr+4*i,4)}, v{vXo}, {XS}, s{sB0} offen offset:{256*i}")
    A(f"v_mov_b32 v{vAcc}, 0")
    for i in range(20):
        if i % 4 == 0: A(f"s_waitcnt vmcnt({4 - i // 4})")
        lo(vT, vXr + i); hi(vT + 1, vXr + i)
        A(f"v_pk_mul_f32 {v(vT,2)}, {v(vT,2)}, {v(vGW+2*i,2)}")
        A(f"v_cvt_pk_bf16_f32 v{vT+2}, v{vT}, v{vT+1}")
        lo(vT, vT + 2); hi(vT + 1, vT + 2)
        A(f"v_add_f32 v{vAcc}, v{vAcc}, v{vT}")
        A(f"v_add_f32 v{vAcc}, v{vAcc}, v{vT+1}")
    for sh in (8, 4, 2, 1):
        A("s_nop 1")
        A(f"v_add_f32_dpp v{vAcc}, v{vAcc}, v{vAcc} row_ror:{sh} row_mask:0xf bank_mask:0xf")
    A(f"v_cvt_pk_bf16_f32 v{vAcc}, v{vAcc}, v{vAcc}")
    lo(vAcc, vAcc)
    A(f"v_mul_f32 v{vAcc}, {f2u(-math.log2(math.e)):#x}, v{vAcc}")
    A(f"v_exp_f32 v{vAcc}, v{vAcc}")
    A("s_nop 0")
    A(f"v_add_f32 v{vAcc}, 1.0, v{vAcc}")
    A(f"v_rcp_f32 v{vAcc}, v{vAcc}")
    A("s_nop 0")
    A(f"v_cvt_pk_bf16_f32 v{vAcc}, v{vAcc}, v{vAcc}")
    lo(vAcc, vAcc)
    A(f"buffer_store_dword v{vAcc}, v{vGo}, {WSR}, s{sB1} offen sc1")
    A(f"s_add_u32 s{sB0}, s{sB0}, 5120")
    A(f"s_add_u32 s{sB1}, s{sB1}, 16")
    A(f"s_sub_u32 s{sI}, s{sI}, 1")
    A(f"s_cmp_lg_u32 s{sI}, 0")
    A(f"s_cbranch_scc1 {Lg}")
    G.ostamp(A, 0, 1)
    def rnd(pair):
        A(f"v_cvt_pk_bf16_f32 v{vT+2}, v{pair}, v{pair+1}")
        lo(pair, vT + 2); hi(pair + 1, vT + 2)
    vL4, vSt, vLw, vLr = 20, 21, 22, 23
    vSK = 24
    vKH = 32
    vKR, vVR = 40, 76
    vKV = 108
    vO = 112
    vW = 144
    A(f"v_lshlrev_b32 v{vL4}, 2, v0")
    A(f"v_lshrrev_b32 v{vSt}, 2, v0")
    A(f"v_lshlrev_b32 v{vSt}, 12, v{vSt}")
    A(f"v_and_b32 v{vT}, 3, v0")
    A(f"v_lshl_add_u32 v{vSt}, v{vT}, 4, v{vSt}")
    A(f"v_lshlrev_b32 v{vLw}, 7, v0")
    A(f"v_add_u32 v{vLw}, s{sLds}, v{vLw}")
    A(f"v_add_u32 v{vLr}, s{sLds}, v{vL16}")
    A(f"s_mov_b64 s[{sAux}:{sAux+1}], s[{sPsk}:{sPsk+1}]")
    srd(A, sAux, 5120)
    A(f"s_mul_i32 s{sB0}, s{sWV}, 40960")
    A(f"s_lshl_b32 s{sB1}, s{sWV}, 6")
    A(f"s_sub_u32 s{sB1}, {G.KVT + 2016 * 2}, s{sB1}")
    A(f"s_mov_b32 s{sCh}, 0")
    A(f"s_sub_u32 s{sT0}, s{sB0}, {3 * 1280}")
    A(f"v_add_u32 v{vT+1}, s{sT0}, v{vL4}")
    def kload(i):
        if i < 3: A(f"buffer_load_dword v{vKR+i}, v{vT+1}, s[{sK}:{sK+3}], 0 offen offset:{1280*i}")
        else:
            A(f"s_add_u32 s{sT0}, s{sB0}, {1280 * (i - 3)}")
            A(f"buffer_load_dword v{vKR+i}, v{vL4}, s[{sK}:{sK+3}], s{sT0} offen")
            A(f"buffer_load_dword v{vVR+i-3}, v{vL4}, s[{sV}:{sV+3}], s{sT0} offen")
    A(f"s_mov_b32 s{sI}, 5")
    La = A.newlabel("kv")
    A.label(La)
    A(f"buffer_load_dwordx4 {v(vW,4)}, v{vL16}, s[{sAux}:{sAux+3}], s{sCh} offen")
    for i in range(19): kload(i)
    A("s_waitcnt vmcnt(32)")
    for c in range(2):
        for h in range(2):
            lo(vSK + 2 * (2 * h) + c, vW + 2 * c + h); hi(vSK + 2 * (2 * h + 1) + c, vW + 2 * c + h)
    for i in range(3):
        lo(vKH + 2 * (i + 1), vKR + i); hi(vKH + 2 * (i + 1) + 1, vKR + i)
    for i in range(32):
        if i < 16:
            kload(19 + i)
            A("s_waitcnt vmcnt(32)")
        else:
            A(f"s_waitcnt vmcnt({2 * (31 - i)})")
        kv = vKV + 2 * (i & 1)
        lo(vKH + 2 * (i & 3), vKR + 3 + i); hi(vKH + 2 * (i & 3) + 1, vKR + 3 + i)
        lo(kv, vVR + i); hi(kv + 1, vVR + i)
        acc, trm = vT + 4, vT + 6
        for m in (3, 2, 1, 0):
            d = acc if m == 3 else trm
            A(f"v_pk_mul_f32 {v(d,2)}, {v(vKH+2*((i-m)&3),2)}, {v(vSK+2*m,2)}")
            rnd(d)
            if m != 3:
                A(f"v_pk_add_f32 {v(acc,2)}, {v(acc,2)}, {v(trm,2)}")
                rnd(acc)
        A(f"v_pk_mul_f32 {v(kv,2)}, {v(acc,2)}, {v(kv,2)}")
        if i & 1:
            for c in range(2):
                A(f"v_cvt_pk_bf16_f32 v{vO+16*c+15-(i>>1)}, v{vKV+2+c}, v{vKV+c}")
    for c in range(2):
        for q in range(4):
            A(f"ds_write_b128 v{vLw}, {v(vO+16*c+4*q,4)} offset:{64*c+16*q}")
    A("s_waitcnt lgkmcnt(0)")
    for m in range(8):
        A(f"ds_read_b128 {v(vO+4*m,4)}, v{vLr} offset:{1024*m}")
    for m in range(8):
        A(f"s_waitcnt lgkmcnt({7-m})")
        A(f"buffer_store_dwordx4 {v(vO+4*m,4)}, v{vSt}, {WSR}, s{sB1} offen sc1")
        A(f"s_add_u32 s{sB1}, s{sB1}, 65536")
    A(f"s_add_u32 s{sB0}, s{sB0}, 256")
    A(f"v_add_u32 v{vT+1}, 256, v{vT+1}")
    A(f"s_add_u32 s{sCh}, s{sCh}, 1024")
    A(f"s_sub_u32 s{sI}, s{sI}, 1")
    A(f"s_cmp_lg_u32 s{sI}, 0")
    A(f"s_cbranch_scc1 {La}")
    A(f"s_lshl_b32 s{sT0}, s{sWV}, 2")
    A(f"s_add_u32 s{sT0}, s{sT0}, {G.GFLAG}")
    A(f"v_mov_b32 v{vT}, 1")
    A("s_waitcnt vmcnt(0)")
    A(f"buffer_store_dword v{vT}, v{vFlagO}, {WSR}, s{sT0} offen sc1")
    G.ostamp(A, 0, 5)
    vAo, vBo, vEo, vCo, vCw, vCo2, vYw, vYr = 20, 21, 22, 23, 24, 25, 26, 27
    vD, vAcc8, vAf, vBf = 28, 72, 104, 112
    vE, vD1, vE1 = 144, 152, 160
    vBa, vEa, vDv, vFo = 168, 169, 170, 3
    A(f"v_and_b32 v{vT}, 15, v0")
    A(f"v_lshrrev_b32 v{vT+1}, 4, v0")
    A(f"v_add_u32 v{vT+2}, 1, v{vT}")
    A(f"v_and_b32 v{vT+3}, 7, v{vT+2}")
    A(f"v_mul_u32_u24 v{vT+3}, {CP}, v{vT+3}")
    A(f"v_lshrrev_b32 v{vT+2}, 3, v{vT+2}")
    A(f"v_add_u32 v{vT+2}, v{vT+2}, v{vT+1}")
    A(f"v_lshl_add_u32 v{vAo}, v{vT+2}, 4, v{vT+3}")
    A(f"s_add_u32 s{sT0}, s{sLds}, {FOFF}")
    A(f"v_add_u32 v{vAo}, s{sT0}, v{vAo}")
    A(f"v_add_u32 v{vCw}, s{sT0}, v{vL16}")
    A(f"v_lshlrev_b32 v{vT+2}, 5, v{vT}")
    A(f"v_lshlrev_b32 v{vT+3}, 4, v{vT+1}")
    A(f"v_sub_u32 v{vBo}, v{vT+3}, v{vT+2}")
    A(f"v_add_u32 v{vBo}, {(2032 - 1792) * 2}, v{vBo}")
    A(f"v_add_u32 v{vBo}, s{sLds}, v{vBo}")
    A(f"v_lshlrev_b32 v{vT+3}, 3, v{vT+1}")
    A(f"v_add_u32 v{vT+3}, v{vT+3}, v{vT+2}")
    A(f"v_sub_u32 v{vEo}, {(2044 - 1792) * 2}, v{vT+3}")
    A(f"v_add_u32 v{vEo}, s{sLds}, v{vEo}")
    A(f"s_add_u32 s{sT0}, s{sLds}, {YOFF}")
    A(f"v_add_u32 v{vYw}, s{sT0}, v{vT+3}")
    A(f"v_add_u32 v{vYr}, s{sT0}, v{vL16}")
    A(f"v_subrev_u32 v{vCo}, 32, v{vL16}")
    A(f"v_subrev_u32 v{vCo2}, 16, v{vL16}")
    A(f"v_lshlrev_b32 v{vFo}, 2, v0")
    for r in range(4): A(f"v_mov_b32 v{vT+4+r}, 0")
    A(f"v_min_u32 v{vT+2}, 31, v0")
    A(f"v_lshlrev_b32 v{vT+2}, 4, v{vT+2}")
    A(f"v_add_u32 v{vT+2}, s{sLds}, v{vT+2}")
    for c in range(2):
        A(f"ds_write_b128 v{vT+2}, {v(vT+4,4)} offset:{c * UP + 4096}")
    A(f"s_mov_b64 s[{sF}:{sF+1}], s[{sPf}:{sPf+1}]")
    srd(A, sF, 4096)
    A(f"s_lshl_b32 s{sT0}, s{sWV}, 12")
    A(f"s_add_u32 s{sF}, s{sF}, s{sT0}")
    A(f"s_addc_u32 s{sF+1}, s{sF+1}, 0")
    A(f"s_mov_b64 s[{sAux}:{sAux+1}], s[{sPd}:{sPd+1}]")
    srd(A, sAux, 1280)
    A(f"s_lshl_b32 s{sCU}, s{sWV}, 1")
    A(f"s_lshl_b32 s{sB0}, s{sWV}, 12")
    A(f"s_add_u32 s{sB1}, s{sB0}, {G.YT}")
    A(f"s_add_u32 s{sB0}, s{sB0}, {G.KVT}")
    A(f"s_mov_b32 s{sCh}, 0")
    A(f"s_mov_b32 s{sJ}, 0")
    def fetch():
        for m in range(5):
            for h in range(2):
                if m == 0: A(f"buffer_load_dwordx4 {v(vD+4*h,4)}, v{vCo if h == 0 else vCo2}, s[{sF}:{sF+3}], 0 offen")
                else: A(f"buffer_load_dwordx4 {v(vD+8*m+4*h,4)}, v{vL16}, s[{sF}:{sF+3}], 0 offen offset:{1024*m-32+16*h}")
        A(f"v_mov_b32 v{vT}, 0")
        A(f"buffer_load_ushort v{vT+12}, v{vT}, s[{sAux}:{sAux+3}], s{sCU} offen")
        A(f"s_add_u32 m0, s{sLds}, s{sJ}")
        A(f"s_add_u32 s{sCU}, s{sCU}, 128")
        for m in range(4):
            A(f"buffer_load_dwordx4 v{vL16}, {WSR}, s{sB0} offen offset:{1024*m} sc1 lds")
        A(f"s_add_u32 s{sB0}, s{sB0}, {64 * 4096}")
        A(f"s_add_u32 s{sF}, s{sF}, {64 * 4096}")
        A(f"s_addc_u32 s{sF+1}, s{sF+1}, 0")
    Lw = A.newlabel("gw")
    A(f"s_mov_b32 s{sT0}, {G.GFLAG}")
    A.label(Lw)
    A("s_sleep 8")
    A(f"buffer_load_dword v{vT}, v{vFo}, {WSR}, s{sT0} offen sc1")
    budget_check(A, 10)
    A("s_waitcnt vmcnt(0)")
    A(f"v_cmp_ne_u32 vcc, 1, v{vT}")
    A(f"s_cbranch_vccnz {Lw}")
    fetch()
    Lc = A.newlabel("chan")
    A.label(Lc)
    A(f"v_add_u32 v{vBa}, s{sJ}, v{vBo}")
    A(f"v_add_u32 v{vEa}, s{sJ}, v{vEo}")
    A(f"s_sub_u32 s{sJ}, {UP}, s{sJ}")
    A("s_waitcnt vmcnt(0)")
    lo(vDv, vT + 12)
    for m in range(5):
        D = vD + 8 * m
        if m == 4:
            A("s_mov_b64 exec, 15")
        for k in range(7): A(f"v_alignbit_b32 v{vE+k}, v{D+k+1}, v{D+k}, 16")
        for k in range(6): A(f"v_mov_b32 v{vD1+k}, v{D+k+1}")
        for k in range(6): A(f"v_mov_b32 v{vE1+k}, v{vE+k+1}")
        src = [D, vE, vD1, vE1, D + 2, vE + 2, vD1 + 2, vE1 + 2]
        for sg in range(8):
            A(f"ds_write_b128 v{vCw}, {v(src[sg],4)} offset:{sg * CP + 1024 * m}")
    A("s_mov_b64 exec, -1")
    A("s_waitcnt lgkmcnt(0)")
    Lnf = A.newlabel("nofetch")
    A(f"s_cmp_eq_u32 s{sCh}, 9")
    A(f"s_cbranch_scc1 {Lnf}")
    fetch()
    A.label(Lnf)
    work = [(dl, T) for dl in range(64) for T in range(dl // 8, 8)]
    NB = 8
    def rdB(n):
        dl, T = work[n]
        A(f"ds_read_b128 {v(vBf+4*(n%NB),4)}, v{vBa} offset:{(7-T)*512 + 64*dl}")
    def rdA(dl): A(f"ds_read_b128 {v(vAf+4*(dl&1),4)}, v{vAo} offset:{64*dl}")
    queue = []
    rdA(0); queue.append(("A", 0))
    LOOK = 6
    for n in range(LOOK): rdB(n); queue.append(("B", n))
    for n, (dl, T) in enumerate(work):
        if T == dl // 8 and dl + 1 < 64:
            rdA(dl + 1); queue.append(("A", dl + 1))
        if n + LOOK < len(work):
            rdB(n + LOOK); queue.append(("B", n + LOOK))
        idx = [queue.index(x) for x in (("A", dl), ("B", n)) if x in queue]
        if idx:
            need = max(idx)
            A(f"s_waitcnt lgkmcnt({len(queue) - 1 - need})")
            queue = queue[need + 1:]
        cc = "0" if dl == 0 else v(vAcc8 + 4 * T, 4)
        A(f"v_mfma_f32_16x16x32_bf16 {v(vAcc8+4*T,4)}, {v(vAf+4*(dl&1),4)}, {v(vBf+4*(n%NB),4)}, {cc}")
    for T in range(8):
        A(f"ds_read_b64 {v(vBf+2*T,2)}, v{vEa} offset:{(7-T)*512}")
    A("s_waitcnt lgkmcnt(0)")
    for T in range(8):
        acc = vAcc8 + 4 * T
        rnd(acc); rnd(acc + 2)
        hi(vT + 4, vBf + 2 * T + 1); lo(vT + 5, vBf + 2 * T + 1); hi(vT + 6, vBf + 2 * T); lo(vT + 7, vBf + 2 * T)
        for r in range(4): A(f"v_mul_f32 v{vT+4+r}, v{vDv}, v{vT+4+r}")
        rnd(vT + 4); rnd(vT + 6)
        A(f"v_pk_add_f32 {v(acc,2)}, {v(acc,2)}, {v(vT+4,2)}")
        A(f"v_pk_add_f32 {v(acc+2,2)}, {v(acc+2,2)}, {v(vT+6,2)}")
        A(f"v_cvt_pk_bf16_f32 v{vT+8}, v{acc}, v{acc+1}")
        A(f"v_cvt_pk_bf16_f32 v{vT+9}, v{acc+2}, v{acc+3}")
        A(f"ds_write_b64 v{vYw}, {v(vT+8,2)} offset:{T*512}")
    A("s_waitcnt lgkmcnt(0)")
    for m in range(4):
        A(f"ds_read_b128 {v(vBf+4*m,4)}, v{vYr} offset:{1024*m}")
    for m in range(4):
        A(f"s_waitcnt lgkmcnt({3-m})")
        A(f"buffer_store_dwordx4 {v(vBf+4*m,4)}, v{vL16}, {WSR}, s{sB1} offen offset:{1024*m} sc1")
    A(f"s_add_u32 s{sB1}, s{sB1}, {64 * 4096}")
    A(f"s_add_u32 s{sCh}, s{sCh}, 1")
    A(f"s_lshl_b32 s{sT0}, s{sWV}, 2")
    A(f"s_add_u32 s{sT0}, s{sT0}, {G.CVFLAG}")
    A(f"v_mov_b32 v{vT}, s{sCh}")
    A("s_waitcnt vmcnt(0)")
    A(f"buffer_store_dword v{vT}, v{vFlagO}, {WSR}, s{sT0} offen sc1")
    A(f"s_cmp_lg_u32 s{sCh}, 10")
    A(f"s_cbranch_scc1 {Lc}")
    G.ostamp(A, 0, 2)

    vYs, vXs, vTr, vDl, vGo2, vFl, vF32, vLin = 20, 21, 22, 23, 24, 25, 26, 27
    vPp, vY, vXv, vGt = 28, 160, 168, 176
    A(f"s_mov_b64 s[{sAux}:{sAux+1}], s[{sPo}:{sPo+1}]")
    srd(A, sAux, 2048 * 1280)
    A(f"v_lshrrev_b32 v{vT}, 2, v0")
    A(f"v_lshlrev_b32 v{vT}, 12, v{vT}")
    A(f"v_and_b32 v{vT+1}, 3, v0")
    A(f"v_lshl_add_u32 v{vYs}, v{vT+1}, 4, v{vT}")
    A(f"v_lshrrev_b32 v{vT}, 3, v0")
    A(f"v_mul_u32_u24 v{vT}, 1280, v{vT}")
    A(f"v_and_b32 v{vT+2}, 7, v0")
    A(f"v_lshl_add_u32 v{vXs}, v{vT+2}, 4, v{vT}")
    A(f"v_lshrrev_b32 v{vT}, 2, v0")
    A(f"v_lshlrev_b32 v{vT}, 6, v{vT}")
    A(f"v_lshl_add_u32 v{vT}, v{vT+1}, 3, v{vT}")
    A(f"v_add_u32 v{vTr}, s{sLds}, v{vT}")
    A(f"v_and_b32 v{vT}, 15, v0")
    A(f"v_lshrrev_b32 v{vT+1}, 4, v0")
    A(f"v_lshlrev_b32 v{vGo2}, 2, v{vT}")
    A(f"v_lshlrev_b32 v{vT}, 7, v{vT}")
    A(f"v_lshl_add_u32 v{vT}, v{vT+1}, 3, v{vT}")
    A(f"s_add_u32 s{sT0}, s{sLds}, 4096")
    A(f"v_add_u32 v{vDl}, s{sT0}, v{vT}")
    A(f"v_add_u32 v{vLin}, s{sT0}, v{vL16}")
    A(f"v_and_b32 v{vF32}, 31, v0")
    A(f"v_lshlrev_b32 v{vF32}, 2, v{vF32}")
    A(f"s_mov_b32 s{sU}, s{sWV}")
    Lm = A.newlabel("mix")
    A.label(Lm)
    A(f"s_mul_i32 s{sSeg}, s{sU}, 3277")
    A(f"s_lshr_b32 s{sSeg}, s{sSeg}, 16")
    A(f"s_mul_i32 s{sT0}, s{sSeg}, 20")
    A(f"s_sub_u32 s{sJ}, s{sU}, s{sT0}")
    A(f"s_lshr_b32 s{sCh}, s{sJ}, 1")
    A(f"s_lshl_b32 s{sT1}, s{sCh}, 7")
    A(f"s_add_u32 s{sT1}, s{sT1}, {G.XPFLAG}")
    A(f"s_mov_b32 s{sT2}, {G.CVFLAG}")
    Lw, Lgo, Lshort = A.newlabel("mw"), A.newlabel("mgo"), A.newlabel("mshort")
    A.label(Lw)
    A(f"buffer_load_dword v{vFl}, v{vF32}, {WSR}, s{sT1} offen sc1")
    A(f"buffer_load_dword v{vT+2}, v{vFo}, {WSR}, s{sT2} offen sc1")
    budget_check(A, 11)
    A("s_waitcnt vmcnt(0)")
    A(f"v_cmp_ge_u32 vcc, s{sSeg}, v{vFl}")
    A(f"v_cmp_ge_u32 s[80:81], s{sCh}, v{vT+2}")
    A("s_or_b64 vcc, vcc, s[80:81]")
    A(f"s_cbranch_vccz {Lgo}")
    A(f"s_cmp_ge_u32 s{sSeg}, {P['nseg'] - 1}")
    A(f"s_cbranch_scc1 {Lw}")
    A(f"s_sleep {P.get('mix_sleep', 100)}")
    A(f"s_branch {Lw}")
    A.label(Lgo)
    A(f"s_lshl_b32 s{sT0}, s{sCh}, 18")
    A(f"s_lshl_b32 s{sT1}, s{sSeg}, 6")
    A(f"s_add_u32 s{sT0}, s{sT0}, s{sT1}")
    A(f"s_add_u32 s{sT0}, s{sT0}, {G.YT}")
    A(f"s_mov_b32 m0, s{sLds}")
    for m in range(4):
        if m: A(f"s_add_u32 s{sT0}, s{sT0}, 65536")
        else: A("s_nop 0")
        A(f"buffer_load_dwordx4 v{vYs}, {WSR}, s{sT0} offen sc1 lds")
        A("s_add_u32 m0, m0, 1024")
    A(f"s_and_b32 s{sT0}, s{sJ}, 1")
    A(f"s_lshl_b32 s{sI}, s{sT0}, 5")
    A(f"s_lshl_b32 s{sT1}, s{sSeg}, 1")
    A(f"s_add_u32 s{sT0}, s{sT0}, s{sT1}")
    A(f"s_mul_i32 s{sB1}, s{sT0}, 20480")
    A(f"s_lshl_b32 s{sT1}, s{sCh}, 7")
    A(f"s_add_u32 s{sB1}, s{sB1}, s{sT1}")
    A(f"buffer_load_dwordx4 v{vXs}, {XS}, s{sB1} offen lds")
    A("s_add_u32 m0, m0, 1024")
    A(f"s_add_u32 s{sT1}, s{sB1}, 10240")
    A(f"buffer_load_dwordx4 v{vXs}, {XS}, s{sT1} offen lds")
    A(f"s_lshl_b32 s{sT2}, s{sT0}, 6")
    A(f"s_add_u32 s{sT2}, s{sT2}, {G.GV}")
    A(f"buffer_load_dword v{vGt}, v{vGo2}, {WSR}, s{sT2} offen sc1")
    A(f"s_mul_i32 s{sB0}, s{sSeg}, 655360")
    A(f"s_lshl_b32 s{sT0}, s{sJ}, 15")
    A(f"s_add_u32 s{sB0}, s{sB0}, s{sT0}")
    A(f"s_add_u32 s{sB0}, s{sB0}, {G.XPART}")
    for g in range(8):
        if g: A(f"s_add_u32 s{sB0}, s{sB0}, 4096")
        for ct in range(4):
            A(f"buffer_load_dwordx4 {v(vPp+16*g+4*ct,4)}, v{vL16}, {WSR}, s{sB0} offen offset:{1024*ct} sc1")
    A(f"v_add_u32 v{vT}, s{sI}, v{vTr}")
    A("s_waitcnt vmcnt(32)")
    for ct in range(4):
        A(f"ds_read_b64_tr_b16 {v(vY+2*ct,2)}, v{vT} offset:{1024*ct}")
        A(f"ds_read_b64 {v(vXv+2*ct,2)}, v{vDl} offset:{32*ct}")
    A(f"v_sub_f32 v{vGt+1}, 1.0, v{vGt}")
    A(f"v_cvt_pk_bf16_f32 v{vGt+1}, v{vGt+1}, v{vGt+1}")
    lo(vGt + 1, vGt + 1)
    A("s_waitcnt lgkmcnt(0)")
    for i in range(8):
        lo(vT + 4, vY + i); hi(vT + 5, vY + i); lo(vT + 6, vXv + i); hi(vT + 7, vXv + i)
        A(f"v_pk_mul_f32 {v(vT+4,2)}, {v(vT+4,2)}, {v(vT+6,2)}")
        rnd(vT + 4)
        A(f"v_mul_f32 v{vT+4}, v{vGt+1}, v{vT+4}")
        A(f"v_mul_f32 v{vT+5}, v{vGt+1}, v{vT+5}")
        A(f"v_cvt_pk_bf16_f32 v{vY+i}, v{vT+4}, v{vT+5}")
    for g in range(1, 8):
        A(f"s_waitcnt vmcnt({28 - 4 * g})")
        for i in range(8):
            A(f"v_pk_add_f32 {v(vPp+2*i,2)}, {v(vPp+2*i,2)}, {v(vPp+16*g+2*i,2)}")
    for ct in range(4):
        for h in range(2):
            x = vPp + 4 * ct + 2 * h
            rnd(x)
            A(f"v_mul_f32 v{x}, v{vGt}, v{x}")
            A(f"v_mul_f32 v{x+1}, v{vGt}, v{x+1}")
            rnd(x)
            lo(vT + 4, vY + 2 * ct + h); hi(vT + 5, vY + 2 * ct + h)
            A(f"v_pk_add_f32 {v(x,2)}, {v(x,2)}, {v(vT+4,2)}")
            A(f"v_cvt_pk_bf16_f32 v{vXv+2*ct+h}, v{x}, v{x+1}")
        A(f"ds_write_b64 v{vDl}, {v(vXv+2*ct,2)} offset:{32*ct}")
    A("s_waitcnt lgkmcnt(0)")
    for m in range(2):
        A(f"ds_read_b128 {v(vY+4*m,4)}, v{vLin} offset:{1024*m}")
    A(f"s_add_u32 s{sT1}, s{sB1}, 10240")
    A("s_waitcnt lgkmcnt(1)")
    A(f"buffer_store_dwordx4 {v(vY,4)}, v{vXs}, s[{sAux}:{sAux+3}], s{sB1} offen")
    A("s_waitcnt lgkmcnt(0)")
    A(f"buffer_store_dwordx4 {v(vY+4,4)}, v{vXs}, s[{sAux}:{sAux+3}], s{sT1} offen")
    A(f"s_add_u32 s{sU}, s{sU}, 64")
    A(f"s_cmp_lt_u32 s{sU}, {20 * P['nseg']}")
    A(f"s_cbranch_scc1 {Lm}")
    if P["prof"]: A("s_waitcnt vmcnt(0)")
    G.ostamp(A, 0, 3)
    A("s_endpgm")
```

```python
import sys, math, struct
from asmlib import Asm, v, a, s, check_hazards

NAME = "gated_mix__memory_aug_recurrent_mem_tr__ssm_conv_h3__prompt_kernel"

P = dict(
    s3_miss=0, s3_nop=0, dp=3, near=1, ppos=11, dma0=10, nvc=8, mk_pos=2, h1_two=2,
    s3_sleep=16,
    h1_nop=50,
    h2_miss=12,
    h2_sleep=8,
    prof=0,
    nseg=64,
    force_global=0,
)

MEMR   = 0x0
QKVR   = 0x50000
PXR    = 0x170000
PART   = 0x200000
PART_SLOT = 163840
NEARP  = 0x2A0000
POISON_END = 0x2A4000
FLAGS  = 0x2B0000
XFLAG  = FLAGS
XPFLAG = FLAGS + 0x1000
CVFLAG = FLAGS + 0x2000
GFLAG  = FLAGS + 0x2200
S2MARK = FLAGS + 0x2400
S1MARK = FLAGS + 0x2800
FLAGS_END = FLAGS + 0x3000
XR     = 0x2C0000
XR_HEAD = 36864 + 1024
XR_SLOT = 4 * XR_HEAD
XR_G   = 5 * XR_SLOT
XPART  = 0x900000
KVT    = 0x3200000
YT     = 0x3800000
GV     = 0x3500000
PROF   = 0x4000000
MEMDBG = 0x4800000
WS_SIZE = 0x10000000
OOB = 0x20000000

XOF = ["sc1", "", "sc1 nt", "sc0 sc1", "nt"]
def f2u(x): return struct.unpack("<I", struct.pack("<f", x))[0]

sWS, sX, sRO, sDBG = 4, 8, 12, 16
sG, sR, sW, sBUD, sS, sXCC = 20, 21, 22, 23, 24, 25
sT0, sT1, sT2, sT3 = 26, 27, 28, 29

def srd(A, base, size):
    A(f"s_and_b32 s{base+1}, s{base+1}, 0xffff")
    A(f"s_mov_b32 s{base+2}, {size}")
    A(f"s_mov_b32 s{base+3}, 0x20000")

def budget_check(A, code):
    A(f"s_sub_u32 s{sBUD}, s{sBUD}, 1")
    A(f"s_movk_i32 s{sT3}, {code}")
    A(f"s_cbranch_scc1 L_fail")

def dense_poll(A, regs, issue, missing, code):
    L, Lok = A.newlabel("dp"), A.newlabel("dpok")
    n = len(regs)
    for i, r in enumerate(regs):
        issue(r)
        if i < n - 1: A("s_sleep 1")
    A.label(L)
    for r in regs:
        A(f"s_waitcnt vmcnt({n-1})")
        A(f"{missing(r)} {Lok}")
        issue(r)
    budget_check(A, code)
    A(f"s_branch {L}")
    A.label(Lok)

def stamp(A, idx, vt=250):
    if P["prof"] not in (1, 2) and not (P["prof"] == 4 and vt == 250 and idx == 6): return
    A(f"s_memrealtime s[90:91]")
    A(f"s_waitcnt lgkmcnt(0)")
    A(f"v_writelane_b32 v{vt}, s90, {idx}")
    if P["prof"] == 2:
        A(f"s_memtime s[90:91]")
        A(f"s_waitcnt lgkmcnt(0)")
        A(f"v_writelane_b32 v{vt}, s90, {idx+8}")

def ostamp(A, row, idx, vt=254):
    if not P["prof"]: return
    A("s_memrealtime s[90:91]")
    A("s_lshl_b32 s92, s2, 2")
    A(f"s_add_u32 s92, s92, s{sW}")
    A("s_mul_i32 s92, s92, 80")
    A(f"s_add_u32 s92, s92, {row}")
    A("s_lshl_b32 s92, s92, 6")
    A(f"s_add_u32 s92, s92, {PROF + 4 * idx}")
    A("s_waitcnt lgkmcnt(0)")
    A(f"v_mov_b32 v{vt}, s90")
    A(f"v_mov_b32 v{vt+1}, 0")
    A("s_mov_b64 exec, 1")
    A(f"buffer_store_dword v{vt}, v{vt+1}, s[{sWS}:{sWS+3}], s92 offen")
    A("s_mov_b64 exec, -1")

def fstamp(A, idx, vt):
    if P["prof"] not in (3, 5): return
    A(f"s_mem{'real' if P['prof'] == 5 else ''}time s[{60+2*idx}:{61+2*idx}]")

def fstamp_collect(A, n, vt):
    if P["prof"] not in (3, 5): return
    A("s_waitcnt lgkmcnt(0)")
    for i in range(n):
        A(f"v_writelane_b32 v{vt}, s{60+2*i}, {i}")

def stamp_flush(A, vt=250, vtmp=251):
    if not P["prof"] or (P["prof"] == 4 and vt != 250): return
    A(f"s_lshl_b32 s90, s2, 2")
    A(f"s_add_u32 s90, s90, s{sW}")
    A(f"s_mul_i32 s90, s90, 80")
    A(f"s_add_u32 s90, s90, s{sS}")
    A(f"s_add_u32 s90, s90, 4")
    A(f"s_lshl_b32 s90, s90, 6")
    A(f"s_add_u32 s90, s90, {PROF}")
    A(f"v_lshlrev_b32 v{vtmp}, 2, v0")
    A(f"s_mov_b64 exec, 0xffff")
    A(f"buffer_store_dword v{vt}, v{vtmp}, s[{sWS}:{sWS+3}], s90 offen")
    A(f"s_mov_b64 exec, -1")

def gen_init(A):
    A(".p2align 8")
    A(".type init_kernel,@function")
    A.label("init_kernel")
    A("s_cmp_ge_u32 s2, 256")
    A("s_cbranch_scc1 L_init_end")
    A(f"s_load_dwordx2 s[{sWS}:{sWS+1}], s[0:1], 128")
    A(f"s_load_dwordx2 s[{sX}:{sX+1}], s[0:1], 8")
    A("v_mov_b32 v4, -1\nv_mov_b32 v5, -1\nv_mov_b32 v6, -1\nv_mov_b32 v7, -1")
    A("s_lshl_b32 s3, s2, 12")
    A("v_lshl_add_u32 v1, v0, 4, s3")
    A("s_waitcnt lgkmcnt(0)")
    srd(A, sWS, POISON_END)
    srd(A, sX, 10240)
    for i in range(3):
        A(f"s_mov_b32 s20, {QKVR + i * 0x100000}")
        A(f"buffer_store_dwordx4 v[4:7], v1, s[{sWS}:{sWS+3}], s20 offen")
    A("s_cmp_ge_u32 s2, 9")
    A("s_cbranch_scc1 L_init_end")
    A("s_cmp_eq_u32 s2, 8")
    A("s_cbranch_scc1 L_init_flags")
    A("v_lshlrev_b32 v1, 4, v0")
    A("s_mul_i32 s20, s2, 40960")
    A("s_add_u32 s21, s20, 40960")
    A(f"s_mov_b32 s{sWS+2}, s21")
    for i in range(8):
        A(f"s_add_u32 s22, s20, {10240 + i * 4096}")
        A(f"buffer_store_dwordx4 v[4:7], v1, s[{sWS}:{sWS+3}], s22 offen")
    A("s_add_u32 s21, s20, 10240")
    A(f"s_mov_b32 s{sWS+2}, s21")
    for i in range(3):
        A(f"v_add_u32 v2, {256 * i}, v0")
        A("v_lshrrev_b32 v3, 6, v2")
        A("v_and_b32 v8, 7, v2")
        A("v_bfe_u32 v9, v2, 3, 1")
        A("v_bfe_u32 v10, v2, 4, 2")
        A("v_mul_u32_u24 v8, 1280, v8")
        A("v_lshl_add_u32 v8, v3, 7, v8")
        A("v_lshl_add_u32 v8, v10, 5, v8")
        A("v_lshl_add_u32 v8, v9, 2, v8")
        A("v_cmp_gt_u32 vcc, 640, v2")
        A(f"v_mov_b32 v11, {OOB}")
        A("s_nop 1")
        A("v_cndmask_b32 v8, v11, v8, vcc")
        for q in range(4):
            A(f"buffer_load_dword v{12+q}, v8, s[{sX}:{sX+3}], 0 offen offset:{8*q}")
        A("v_lshlrev_b32 v2, 4, v2")
        A("s_waitcnt vmcnt(0)")
        for q in range(4):
            A(f"v_min_u32 v{12+q}, -2, v{12+q}")
        A(f"buffer_store_dwordx4 v[12:15], v2, s[{sWS}:{sWS+3}], s20 offen")
        A("s_nop 1")
    A("s_branch L_init_end")
    A.label("L_init_flags")
    A("v_lshlrev_b32 v1, 4, v0")
    A("v_mov_b32 v8, 0\nv_mov_b32 v9, 0\nv_mov_b32 v10, 0\nv_mov_b32 v11, 0")
    A(f"s_mov_b32 s{sWS+2}, {FLAGS_END}")
    for i in range(3):
        A(f"s_mov_b32 s20, {FLAGS + i * 4096}")
        A(f"buffer_store_dwordx4 v[8:11], v1, s[{sWS}:{sWS+3}], s20 offen")
    A.label("L_init_end")
    A("s_endpgm")

def gen_common_prologue(A):
    A("s_cmp_ge_u32 s2, 256")
    A("s_cbranch_scc1 L_end")
    A(f"s_load_dwordx2 s[{sWS}:{sWS+1}], s[0:1], 128")
    A(f"s_load_dwordx2 s[{sX}:{sX+1}], s[0:1], 0")
    A(f"s_load_dwordx2 s[{sDBG}:{sDBG+1}], s[0:1], 120")
    A("v_lshrrev_b32 v1, 6, v0")
    A(f"s_and_b32 s{sG}, s2, 7")
    A(f"v_readfirstlane_b32 s{sW}, v1")
    A("v_and_b32 v0, 63, v0")
    A(f"s_lshr_b32 s{sR}, s2, 3")
    A(f"s_getreg_b32 s{sXCC}, hwreg(HW_REG_XCC_ID)")
    A(f"s_mov_b32 s{sBUD}, 400000")
    A("s_waitcnt lgkmcnt(0)")
    srd(A, sWS, WS_SIZE)
    srd(A, sX, 2048 * 1280)
    srd(A, sDBG, 256)
    ostamp(A, 0, 0)
    L = A.newlabel("nocensus")
    A(f"s_cmp_lg_u32 s{sW}, 0")
    A(f"s_cbranch_scc1 {L}")
    A(f"s_mul_i32 s{sT0}, s{sXCC}, 6")
    A(f"s_lshl_b64 s[{sT2}:{sT3}], 1, s{sT0}")
    A(f"s_cmp_lt_u32 s{sXCC}, 8")
    A(f"s_cselect_b64 s[{sT2}:{sT3}], s[{sT2}:{sT3}], 0")
    A(f"s_add_u32 s{sT3}, s{sT3}, 0x1000000")
    A(f"v_mov_b32 v2, s{sT2}")
    A(f"v_mov_b32 v3, s{sT3}")
    A(f"s_lshl_b32 s{sT0}, s{sG}, 3")
    A(f"v_mov_b32 v4, s{sT0}")
    A("s_mov_b64 exec, 1")
    A(f"buffer_atomic_add_x2 v[2:3], v4, s[{sDBG}:{sDBG+3}], 0 offen")
    A("s_mov_b64 exec, -1")
    A.label(L)

def gen_locality(A, lab_local, lab_global, vt):
    L = A.newlabel("loc")
    A(f"s_lshl_b32 s{sT0}, s{sG}, 3")
    A(f"v_mov_b32 v{vt}, s{sT0}")
    A.label(L)
    A(f"buffer_load_dwordx2 v[{vt+2}:{vt+3}], v{vt}, s[{sDBG}:{sDBG+3}], 0 offen sc1")
    budget_check(A, 1)
    A("s_waitcnt vmcnt(0)")
    A(f"v_readfirstlane_b32 s{sT0}, v{vt+2}")
    A(f"v_readfirstlane_b32 s{sT1}, v{vt+3}")
    A(f"s_lshr_b32 s{sT2}, s{sT1}, 24")
    A(f"s_cmp_lt_u32 s{sT2}, 32")
    A(f"s_cbranch_scc1 {L}")
    if P["force_global"]:
        A(f"s_branch {lab_global}")
    A(f"s_and_b32 s{sT1}, s{sT1}, 0xffffff")
    A(f"s_mul_i32 s{sT2}, s{sXCC}, 6")
    A(f"s_lshl_b64 s[{sT2}:{sT3}], 32, s{sT2}")
    A(f"s_cmp_eq_u64 s[{sT0}:{sT1}], s[{sT2}:{sT3}]")
    A(f"s_cbranch_scc0 {lab_global}")
    A(f"s_cmp_lt_u32 s{sXCC}, 8")
    A(f"s_cbranch_scc0 {lab_global}")
    A(f"s_branch {lab_local}")

WSR = f"s[{sWS}:{sWS+3}]"

def gen_s1(A):
    sU, sHH, sTY, sKS = 30, 31, 32, 33
    sPartRd, sMem0, sMem1, sMem2, sQkv, sMemP, sQkvP = 34, 35, 36, 37, 38, 39, 40
    sXr, sXrEnd, sXrBase, sXflag, sXsrc, sLdsW = 41, 42, 43, 44, 45, 46
    sPartBase, sMemBase, sQkvBase, sXbuf, sH2 = 47, 48, 49, 50, 51
    vL16, vMemSt, vQkvSt, vIdx, vXg, vXrd, vXsum, vPois, vFlagO = 1, 2, 3, 4, 5, 6, 7, 8, 9
    vSel = 128
    vH = 132
    vHld, vHw, vHr, vMkO = 144, 145, 146, 147
    vH2 = 148
    sMk, sMkW = 58, 59
    MEML = 81920
    vT = 10
    vM = 20
    vPt = 60
    vA = 76
    vMx = 84
    vXA = 88
    vXB = 104
    vXO = 120
    A.label("L_s1")
    A(f"s_lshl_b32 s{sU}, s{sR}, 2")
    A(f"s_add_u32 s{sU}, s{sU}, s{sW}")
    A(f"s_mul_i32 s{sHH}, s{sU}, 3641")
    A(f"s_lshr_b32 s{sHH}, s{sHH}, 16")
    A(f"s_mul_i32 s{sT0}, s{sHH}, 18")
    A(f"s_sub_u32 s{sT0}, s{sU}, s{sT0}")
    A(f"s_mul_i32 s{sTY}, s{sT0}, 43")
    A(f"s_lshr_b32 s{sTY}, s{sTY}, 8")
    A(f"s_mul_i32 s{sT1}, s{sTY}, 6")
    A(f"s_sub_u32 s{sKS}, s{sT0}, s{sT1}")
    A("s_load_dwordx4 s[52:55], s[0:1], 16")
    A("s_load_dwordx2 s[56:57], s[0:1], 32")
    A(f"v_lshlrev_b32 v{vL16}, 4, v0")
    A(f"v_lshrrev_b32 v{vT}, 2, v0")
    A(f"v_mul_u32_u24 v{vT}, 12288, v{vT}")
    A(f"v_and_b32 v{vT+1}, 3, v0")
    A(f"v_lshl_add_u32 v{vT}, v{vT+1}, 4, v{vT}")
    A("s_waitcnt lgkmcnt(0)")
    A(f"s_cmp_eq_u32 s{sTY}, 1")
    A(f"s_cselect_b64 s[{sRO}:{sRO+1}], s[54:55], s[52:53]")
    A(f"s_cmp_eq_u32 s{sTY}, 2")
    A(f"s_cselect_b64 s[{sRO}:{sRO+1}], s[56:57], s[{sRO}:{sRO+1}]")
    srd(A, sRO, 640 * 12288)
    A(f"s_lshl_b32 s{sT0}, s{sG}, 2")
    A(f"s_add_u32 s{sT0}, s{sT0}, s{sHH}")
    A(f"s_mul_i32 s{sT0}, s{sT0}, 384")
    A(f"s_lshl_b32 s{sT1}, s{sKS}, 6")
    A(f"s_add_u32 s{sT0}, s{sT0}, s{sT1}")
    A(f"s_mul_i32 s{sLdsW}, s{sW}, 40960")
    A(f"s_mov_b32 m0, s{sLdsW}")
    A("s_nop 0")
    for i in range(40):
        A(f"buffer_load_dwordx4 v{vT}, s[{sRO}:{sRO+3}], s{sT0} offen lds")
        if i < 39:
            A(f"s_add_u32 m0, m0, 1024")
            A(f"s_add_u32 s{sT0}, s{sT0}, {16 * 12288}")
    A(f"s_lshl_b32 s{sT0}, s{sU}, 11")
    A(f"buffer_load_dwordx4 v[{vM}:{vM+3}], v{vL16}, s[{sX}:{sX+3}], s{sT0} offen")
    A(f"buffer_load_dwordx4 v[{vM+4}:{vM+7}], v{vL16}, s[{sX}:{sX+3}], s{sT0} offen offset:1024")
    A(f"v_and_b32 v{vT+1}, 15, v0")
    A(f"v_lshrrev_b32 v{vT+2}, 4, v0")
    A(f"v_cmp_gt_u32 vcc, 8, v{vT+1}")
    A(f"v_mov_b32 v{vT+3}, 0xeeee")
    A(f"v_mov_b32 v{vT+4}, 0x4444")
    A(f"v_cndmask_b32 v{vIdx}, v{vT+3}, v{vT+4}, vcc")
    A(f"v_mov_b32 v{vPois}, -1")
    A(f"v_lshrrev_b32 v{vXg}, 2, v0")
    A(f"v_mul_u32_u24 v{vXg}, 1280, v{vXg}")
    A(f"v_sub_u32 v{vT+3}, 0, v{vT+2}")
    A(f"v_xor_b32 v{vT+3}, v0, v{vT+3}")
    A(f"v_and_b32 v{vT+3}, 3, v{vT+3}")
    A(f"v_lshl_add_u32 v{vXg}, v{vT+3}, 4, v{vXg}")
    A(f"v_lshrrev_b32 v{vT+3}, 2, v{vT+1}")
    A(f"v_sub_u32 v{vT+3}, 0, v{vT+3}")
    A(f"v_xor_b32 v{vT+3}, v{vT+2}, v{vT+3}")
    A(f"v_and_b32 v{vT+3}, 3, v{vT+3}")
    A(f"v_lshl_add_u32 v{vT+3}, v{vT+1}, 2, v{vT+3}")
    A(f"v_lshlrev_b32 v{vXrd}, 4, v{vT+3}")
    A(f"v_lshlrev_b32 v{vXsum}, 5, v{vT+3}")
    A(f"v_add_u32 v{vXsum}, 40960, v{vXsum}")
    A(f"v_lshrrev_b32 v{vT+3}, 2, v{vT+1}")
    A(f"v_and_b32 v{vT+4}, 1, v{vT+1}")
    A(f"v_lshlrev_b32 v{vT+4}, 4, v{vT+4}")
    A(f"v_mov_b32 v{vT+5}, 0x3f80")
    A(f"v_lshlrev_b32 v{vT+4}, v{vT+4}, v{vT+5}")
    for r in range(4):
        A(f"v_cmp_eq_u32 vcc, {r}, v{vT+3}")
        A("s_nop 1")
        A(f"v_cndmask_b32 v{vSel+r}, 0, v{vT+4}, vcc")
    A(f"s_lshl_b32 s{sT0}, s{sW}, 10")
    A(f"v_add_u32 v{vHld}, s{sT0}, v{vL16}")
    A(f"v_add_u32 v{vHw}, {MEML}, v{vHld}")
    A(f"v_add_u32 v{vHr}, {MEML}, v{vL16}")
    A(f"s_cmp_ge_u32 s{sU}, 40")
    A(f"s_cselect_b32 s{sT0}, 40, 0")
    A(f"s_sub_u32 s{sT0}, s{sU}, s{sT0}")
    A(f"s_lshr_b32 s{sPartBase}, s{sT0}, 2")
    A(f"s_lshl_b32 s{sPartBase}, s{sPartBase}, 14")
    A(f"s_and_b32 s{sT1}, s{sT0}, 3")
    A(f"s_lshl_b32 s{sT1}, s{sT1}, 11")
    A(f"s_add_u32 s{sPartBase}, s{sPartBase}, s{sT1}")
    A(f"s_add_u32 s{sPartBase}, s{sPartBase}, {PART}")
    A(f"v_and_b32 v{vT+3}, 7, v0")
    A(f"v_bfe_u32 v{vT+4}, v0, 4, 1")
    A(f"v_lshl_add_u32 v{vT+3}, v{vT+4}, 3, v{vT+3}")
    A(f"v_lshlrev_b32 v{vT+3}, 4, v{vT+3}")
    A(f"v_bfe_u32 v{vT+4}, v0, 3, 1")
    A(f"v_lshl_add_u32 v{vT+3}, v{vT+4}, 3, v{vT+3}")
    A(f"v_lshrrev_b32 v{vT+4}, 5, v0")
    A(f"v_lshl_add_u32 v{vT+3}, v{vT+4}, 2, v{vT+3}")
    A(f"s_lshl_b32 s{sT0}, s{sT0}, 8")
    A(f"s_cmp_ge_u32 s{sU}, 40")
    A(f"s_cselect_b32 s{sT0}, {OOB}, s{sT0}")
    A(f"v_add_u32 v{vMemSt}, s{sT0}, v{vT+3}")
    A(f"v_bfe_u32 v{vT+3}, v0, 4, 1")
    A(f"v_lshrrev_b32 v{vT+4}, 5, v0")
    A(f"v_lshlrev_b32 v{vT+3}, 2, v{vT+3}")
    A(f"v_lshl_add_u32 v{vT+3}, v{vT+4}, 1, v{vT+3}")
    A(f"s_and_b32 s{sT0}, s{sKS}, 1")
    A(f"s_lshr_b32 s{sT1}, s{sKS}, 1")
    A(f"s_lshl_b32 s{sT1}, s{sT1}, 10")
    A(f"v_lshrrev_b32 v{vT+4}, 2, v{vT+1}")
    A(f"v_lshl_add_u32 v{vT+4}, v{vT+4}, 4, v{vT+3}")
    A(f"v_lshlrev_b32 v{vT+4}, 4, v{vT+4}")
    A(f"v_and_b32 v{vT+5}, 3, v{vT+1}")
    A(f"v_lshl_add_u32 v{vT+4}, v{vT+5}, 2, v{vT+4}")
    A(f"s_lshl_b32 s{sT2}, s{sT0}, 7")
    A(f"s_add_u32 s{sT2}, s{sT2}, s{sT1}")
    A(f"v_add_u32 v{vT+4}, s{sT2}, v{vT+4}")
    A(f"v_lshrrev_b32 v{vT+5}, 3, v{vT+1}")
    A(f"v_lshl_add_u32 v{vT+5}, v{vT+5}, 4, v{vT+3}")
    A(f"v_and_b32 v{vT+6}, 1, v{vT+1}")
    A(f"v_lshl_add_u32 v{vT+5}, v{vT+6}, 3, v{vT+5}")
    A(f"v_lshlrev_b32 v{vT+5}, 4, v{vT+5}")
    A(f"v_bfe_u32 v{vT+6}, v{vT+1}, 1, 2")
    A(f"v_lshl_add_u32 v{vT+5}, v{vT+6}, 2, v{vT+5}")
    A(f"s_lshl_b32 s{sT2}, s{sT0}, 9")
    A(f"s_add_u32 s{sT2}, s{sT2}, s{sT1}")
    A(f"v_add_u32 v{vT+5}, s{sT2}, v{vT+5}")
    A(f"s_cmp_eq_u32 s{sTY}, 2")
    A(f"s_cselect_b64 vcc, -1, 0")
    A(f"v_cndmask_b32 v{vQkvSt}, v{vT+4}, v{vT+5}, vcc")
    A(f"v_cmp_eq_u32 vcc, 0, v0")
    A(f"v_mov_b32 v{vT+4}, {OOB}")
    A("s_nop 0")
    A(f"v_cndmask_b32 v{vFlagO}, v{vT+4}, v0, vcc")
    A(f"v_min_u32 v{vMkO}, 9, v0")
    A(f"v_lshlrev_b32 v{vMkO}, 2, v{vMkO}")
    A(f"s_lshl_b32 s{sMk}, s{sG}, 7")
    A(f"s_lshl_b32 s{sT0}, s{sR}, 2")
    A(f"s_add_u32 s{sMkW}, s{sMk}, s{sT0}")
    A(f"s_add_u32 s{sMkW}, s{sMkW}, {S1MARK}")
    A(f"s_cmp_eq_u32 s{sW}, 0")
    A(f"s_cselect_b32 s{sMkW}, s{sMkW}, {OOB}")
    A(f"s_add_u32 s{sMk}, s{sMk}, {S2MARK}")
    A(f"s_cmp_lt_u32 s{sW}, 2")
    A(f"s_cselect_b32 s{sH2}, 8192, 0")
    A(f"s_mul_i32 s{sMemBase}, s{sG}, 40960")
    A(f"s_mul_i32 s{sT0}, s{sHH}, 3")
    A(f"s_add_u32 s{sT0}, s{sT0}, s{sTY}")
    A(f"s_mul_i32 s{sQkvBase}, s{sG}, 147456")
    A(f"s_mul_i32 s{sT1}, s{sT0}, 3072")
    A(f"s_add_u32 s{sQkvBase}, s{sQkvBase}, s{sT1}")
    A(f"s_add_u32 s{sQkvBase}, s{sQkvBase}, {QKVR}")
    A(f"s_mul_i32 s{sXrBase}, s{sG}, {XR_G}")
    A(f"s_lshl_b32 s{sT1}, s{sU}, 1")
    A(f"s_add_u32 s{sT1}, s{sT1}, s{sHH}")
    A(f"s_lshl_b32 s{sT1}, s{sT1}, 10")
    A(f"s_add_u32 s{sXrBase}, s{sXrBase}, s{sT1}")
    A(f"s_add_u32 s{sXrBase}, s{sXrBase}, {XR}")
    A(f"s_add_u32 s{sXrEnd}, s{sXrBase}, {XR_G}")
    A(f"s_mov_b32 s{sXr}, s{sXrBase}")
    A(f"s_lshl_b32 s{sXflag}, s{sG}, 9")
    A(f"s_lshl_b32 s{sT1}, s{sU}, 2")
    A(f"s_add_u32 s{sXflag}, s{sXflag}, s{sT1}")
    A(f"s_add_u32 s{sXflag}, s{sXflag}, {XFLAG}")
    A(f"v_bfe_u32 v{vT+3}, v0, 2, 2")
    A(f"v_lshl_add_u32 v{vT+3}, v{vT+2}, 3, v{vT+3}")
    A(f"v_lshlrev_b32 v{vT+3}, 6, v{vT+3}")
    A(f"v_and_b32 v{vT+4}, 3, v0")
    A(f"v_lshl_add_u32 v{vT+3}, v{vT+4}, 3, v{vT+3}")
    A(f"v_add_u32 v{vT+3}, s{sLdsW}, v{vT+3}")
    for kd in range(20):
        A(f"s_waitcnt vmcnt({min(63, 40 - 2 * (kd + 1) + 2)})")
        for t in range(2):
            for hf in range(2):
                A(f"ds_read_b64_tr_b16 a[{80*t+4*kd+2*hf}:{80*t+4*kd+2*hf+1}], v{vT+3} offset:{kd*2048+hf*256+t*32}")
    A("s_waitcnt vmcnt(0) lgkmcnt(0)")
    ostamp(A, 0, 1)
    A("s_barrier")
    A(f"s_mul_i32 s{sXsrc}, s{sW}, 320")
    A(f"s_mul_i32 s{sLdsW}, s{sW}, 10240")
    A(f"s_mov_b32 s{sXbuf}, 0")
    def xdma():
        A(f"s_add_u32 m0, s{sLdsW}, s{sXbuf}")
        for i in range(5):
            for tt in range(2):
                A(f"s_add_u32 s{sT0}, s{sXsrc}, {tt * 20480 + i * 64}")
                A(f"buffer_load_dwordx4 v{vXg}, s[{sX}:{sX+3}], s{sT0} offen lds")
                if not (i == 4 and tt == 1):
                    A("s_add_u32 m0, m0, 1024")
        A(f"s_add_u32 s{sXsrc}, s{sXsrc}, 40960")
        A(f"s_sub_u32 s{sXbuf}, 40960, s{sXbuf}")
    xdma()
    A(f"s_mov_b32 s{sS}, -3")
    gen_locality(A, "L_s1_loc", "L_s1_glb", vT)

    for mode in ("loc", "glb"):
        sc = "" if mode == "loc" else " sc1"
        Lb, Ls3, Lh1, Lslow, Lcont, Lnox = [f"L_s1_{mode}_{x}" for x in ("bub", "s3", "h1", "slow", "cont", "nox")]
        A.label(f"L_s1_{mode}")
        if mode == "loc" and P["near"]:
            Ln = A.newlabel("near")
            A(f"s_lshl_b32 s{sT0}, s{sG}, 2")
            A(f"s_add_u32 s{sT0}, s{sT0}, 128")
            A(f"v_mov_b32 v{vT}, s{sT0}")
            A.label(Ln)
            A(f"buffer_load_dword v{vT+1}, v{vT}, s[{sDBG}:{sDBG+3}], 0 offen sc1")
            budget_check(A, 14)
            A("s_waitcnt vmcnt(0)")
            A(f"v_readfirstlane_b32 s{sT0}, v{vT+1}")
            A(f"s_cmp_eq_u32 s{sT0}, 0")
            A(f"s_cbranch_scc1 {Ln}")
            A(f"s_cmp_eq_u32 s{sT0}, {2 if P['near'] == 1 else 1}")
            A(f"s_cselect_b32 s{sT0}, 8192, 0")
            A(f"s_add_u32 s{sPartBase}, s{sPartBase}, s{sT0}")
        A.label(Lb)
        A(f"s_add_u32 s{sT0}, s{sS}, 1")
        A(f"v_mov_b32 v{vT+2}, s{sT0}")
        A(f"v_add_u32 v{vT+3}, 2, v{vT+2}")
        A("s_barrier")
        A(f"buffer_store_dword v{vT+2}, v{vFlagO}, {WSR}, s{sMkW} offen{sc}")
        stamp(A, 5)
        fstamp(A, 5, 250)
        def house():
            return [f"buffer_store_dword v{vT+3}, v{vFlagO}, {WSR}, s{sXflag} offen{sc}",
                f"s_cmp_lt_i32 s{sS}, 1",
                f"s_cselect_b32 s{sMemP}, {OOB}, s{sMemP}",
                f"s_cselect_b32 s{sQkvP}, {OOB}, s{sQkvP}",
                f"buffer_store_dword v{vPois}, v{vMemSt}, {WSR}, s{sMemP} offen{sc}",
                f"buffer_store_dword v{vPois}, v{vQkvSt}, {WSR}, s{sQkvP} offen{sc}",
                f"buffer_store_dword v{vPois}, v{vQkvSt}, {WSR}, s{sQkvP} offen offset:16{sc}",
                f"s_and_b32 s{sT1}, s{sS}, 3",
                f"s_mul_i32 s{sPartRd}, s{sT1}, {PART_SLOT}",
                f"s_add_u32 s{sPartRd}, s{sPartRd}, s{sPartBase}",
                f"s_mul_i32 s{sMemP}, s{sT1}, 10240",
                f"s_add_u32 s{sMemP}, s{sMemP}, s{sMemBase}",
                f"s_add_u32 s{sT1}, s{sS}, 3",
                f"s_and_b32 s{sT1}, s{sT1}, 3",
                f"s_mul_i32 s{sQkvP}, s{sT1}, 36864",
                f"s_add_u32 s{sQkvP}, s{sQkvP}, s{sQkvBase}",
                f"s_add_u32 s{sT1}, s{sS}, 1",
                f"s_and_b32 s{sT1}, s{sT1}, 3",
                f"s_mul_i32 s{sMem0}, s{sT1}, 10240",
                f"s_add_u32 s{sMem0}, s{sMem0}, s{sMemBase}",
                f"s_add_u32 s{sMem1}, s{sMem0}, 4096",
                f"s_add_u32 s{sMem2}, s{sMem0}, s{sH2}",
                f"s_mul_i32 s{sQkv}, s{sT1}, 36864",
                f"s_add_u32 s{sQkv}, s{sQkv}, s{sQkvBase}"]
        Lxd = A.newlabel("xdone")
        A(f"s_cmp_ge_i32 s{sS}, {P['nseg'] - 3}")
        A(f"s_cbranch_scc1 {Lnox}")
        fstamp(A, 6, 250)
        if P["prof"] in (3, 5): A("s_waitcnt lgkmcnt(0)")
        A(f"ds_read_b128 v[{vXB}:{vXB+3}], v{vXrd}")
        A(f"ds_read_b128 v[{vXB+4}:{vXB+7}], v{vXrd} offset:1024")
        A(f"s_add_u32 m0, s{sLdsW}, s{sXbuf}")
        hk = house()
        A(hk.pop(0))
        for kd in range(20):
            cur = vXB + 8 * (kd & 1); nxt = vXB + 8 * ((kd + 1) & 1)
            if kd < 19:
                A(f"ds_read_b128 v[{nxt}:{nxt+3}], v{vXrd} offset:{(2*kd+2)*1024}")
                A(f"ds_read_b128 v[{nxt+4}:{nxt+7}], v{vXrd} offset:{(2*kd+3)*1024}")
                A("s_waitcnt lgkmcnt(2)")
            else:
                A("s_waitcnt lgkmcnt(0)")
            n = 0
            for tt in range(2):
                for t in range(2):
                    acc = vXA + 4 * (2 * tt + t)
                    c = "0" if kd == 0 else v(acc, 4)
                    A(f"v_mfma_f32_16x16x32_bf16 {v(acc,4)}, {a(80*t+4*kd,4)}, {v(cur+4*tt,4)}, {c}")
                    D0 = P["dma0"]; dk = kd - D0
                    if 0 <= dk < 10:
                        if n == 0: A(f"s_add_u32 s{sT0}, s{sXsrc}, {(dk & 1) * 20480 + (dk >> 1) * 64}")
                        if n == 1: A(f"buffer_load_dwordx4 v{vXg}, s[{sX}:{sX+3}], s{sT0} offen lds")
                        if n == 2: A("s_add_u32 m0, m0, 1024")
                    elif n < 3 and hk: A(hk.pop(0))
                    n += 1
        assert not hk
        fstamp(A, 7, 250)
        A(f"s_add_u32 s{sXsrc}, s{sXsrc}, 40960")
        A(f"s_sub_u32 s{sXbuf}, 40960, s{sXbuf}")
        A(f"v_sub_u32 v{vXrd}, v{vXsum}, v{vXrd}")
        A(f"s_mov_b32 s{sT0}, s{sXr}")
        A(f"s_add_u32 s{sXr}, s{sXr}, {XR_SLOT}")
        A(f"s_cmp_eq_u32 s{sXr}, s{sXrEnd}")
        A(f"s_cselect_b32 s{sXr}, s{sXrBase}, s{sXr}")
        for tt in range(2):
            for r in range(4):
                A(f"v_cvt_pk_bf16_f32 v{vXO+4*tt+r}, v{vXA+8*tt+r}, v{vXA+8*tt+4+r}")
            A(f"buffer_store_dwordx4 {v(vXO+4*tt,4)}, v{vL16}, {WSR}, s{sT0} offen offset:{1024*tt}{sc}")
        fstamp(A, 8, 250)
        fstamp(A, 9, 250)
        A(f"s_branch {Lxd}")
        A.label(Lnox)
        for x in house(): A(x)
        A.label(Lxd)
        stamp(A, 6)
        fstamp_collect(A, 11, 250)
        stamp_flush(A)
        A(f"s_add_u32 s{sS}, s{sS}, 1")
        Lst = A.newlabel("steady")
        A(f"s_cmp_ge_i32 s{sS}, 0")
        A(f"s_cbranch_scc1 {Lst}")
        A("s_waitcnt vmcnt(0)")
        A(f"s_branch {Lb}")
        A.label(Lst)
        A(f"s_cmp_eq_u32 s{sS}, {P['nseg']}")
        A("s_cbranch_scc1 L_end")
        A(f"s_cmp_eq_u32 s{sS}, 0")
        A(f"s_cbranch_scc1 {Lh1}")
        if mode == "loc":
            def miss(r):
                A(f"v_cmp_gt_u32 vcc, s{sS}, v{r}")
                if P["s3_miss"] == 0: return "s_cbranch_vccz"
                A(f"s_and_b32 s{sT0}, vcc_lo, 0x3ff")
                A(f"s_bcnt1_i32_b32 s{sT0}, s{sT0}")
                A(f"s_cmp_gt_u32 s{sT0}, {P['s3_miss']}")
                return "s_cbranch_scc0"
            Lg = A.newlabel("gate")
            A(f"s_cmp_lg_u32 s{sW}, 0")
            A(f"s_cbranch_scc1 {Lg}")
            dense_poll(A, [vT + i for i in range(P["dp"])], lambda r: A(f"buffer_load_dword v{r}, v{vMkO}, {WSR}, s{sMk} offen sc1"), miss, 13)
            A.label(Lg)
            A("s_barrier")
        if P["s3_nop"]: A.nop(P["s3_nop"])
        fstamp(A, 10, 250)
        A.label(Ls3)
        stamp(A, 0)
        fstamp(A, 0, 250)
        for i in range(2):
            A(f"buffer_load_dwordx4 {v(vPt+4*i,4)}, v{vL16}, {WSR}, s{sPartRd} offen offset:{1024*i} sc1")
        A("s_waitcnt vmcnt(1)")
        A(f"v_mfma_f32_16x16x32_bf16 {v(vT,4)}, {v(vSel,4)}, {v(vPt,4)}, 0")
        A("s_waitcnt vmcnt(0)")
        A(f"v_mfma_f32_16x16x32_bf16 {v(vT,4)}, {v(vSel,4)}, {v(vPt+4,4)}, {v(vT,4)}")
        A.nop(8)
        A(f"v_cmp_u_f32 vcc, v{vT}, v{vT+1}")
        A(f"v_cvt_pk_bf16_f32 v{vT+4}, v{vT}, v{vT+1}")
        A(f"s_cbranch_vccnz {Lslow}")
        A.label(Lcont)
        A(f"buffer_store_dword v{vT+4}, v{vMemSt}, {WSR}, s{sMem0} offen{sc}")
        stamp(A, 1)
        fstamp(A, 1, 250)
        if P.get("memdbg"):
            A(f"s_mul_i32 s{sT0}, s{sS}, 10240")
            A(f"s_add_u32 s{sT0}, s{sT0}, {MEMDBG}")
            A(f"buffer_store_dword v{vT+4}, v{vMemSt}, {WSR}, s{sT0} offen")
        if P["h1_nop"]: A.nop(P["h1_nop"])
        A.label(Lh1)
        Lretry, Lhok = f"L_s1_{mode}_h1retry", f"L_s1_{mode}_h1ok"
        def h1ld(b):
            for i in range(3):
                A(f"buffer_load_dwordx4 {v(b+4*i,4)}, v{vHld}, {WSR}, s{(sMem0, sMem1, sMem2)[i]} offen sc1")
        def h1chk(b, later):
            A(f"s_waitcnt vmcnt({2+later})")
            A(f"ds_write_b128 v{vHw}, {v(b,4)}")
            A(f"v_max3_u32 v{vMx}, v{b}, v{b+1}, v{b+2}")
            A(f"s_waitcnt vmcnt({1+later})")
            A(f"ds_write_b128 v{vHw}, {v(b+4,4)} offset:4096")
            A(f"v_max3_u32 v{vMx}, v{b+3}, v{b+4}, v{vMx}")
            A(f"v_max3_u32 v{vMx}, v{b+5}, v{b+6}, v{vMx}")
            A(f"s_waitcnt vmcnt({later})")
            A(f"ds_write_b128 v{vHw}, {v(b+8,4)} offset:8192")
            A(f"v_max3_u32 v{vMx}, v{b+7}, v{b+8}, v{vMx}")
            A(f"v_max3_u32 v{vMx}, v{b+9}, v{b+10}, v{vMx}")
            A(f"v_max_u32 v{vMx}, v{b+11}, v{vMx}")
            A(f"v_cmp_eq_u32 vcc, -1, v{vMx}")
            A("s_waitcnt lgkmcnt(0)")
        h1ld(vH)
        fstamp(A, 2, 250)
        for r in range(8):
            A(f"v_mov_b32 v{vA+r}, 0")
        if P["h1_two"]:
            A(f"s_sleep {P['h1_two']}")
            h1ld(vH2)
            h1chk(vH, 3)
        else:
            h1chk(vH, 0)
        A(f"s_cbranch_vccnz {Lretry}")
        A.label(Lhok)
        A("s_barrier")
        fstamp(A, 3, 250)
        if P["prof"] in (3, 5): A("s_waitcnt lgkmcnt(0)")
        for j in range(10):
            A(f"ds_read_b128 {v(vM+4*j,4)}, v{vHr} offset:{1024*j}")
        for j in range(10):
            A(f"s_waitcnt lgkmcnt({9-j})")
            A(f"v_smfmac_f32_16x16x64_bf16 {v(vA,4)}, {v(vM+4*j,4)}, {a(8*j,8)}, v{vIdx}")
            A(f"v_smfmac_f32_16x16x64_bf16 {v(vA+4,4)}, {v(vM+4*j,4)}, {a(80+8*j,8)}, v{vIdx}")
        A.nop(7)
        A(f"v_permlane32_swap_b32 v{vA}, v{vA+2}")
        A(f"v_permlane32_swap_b32 v{vA+1}, v{vA+3}")
        A(f"v_permlane32_swap_b32 v{vA+4}, v{vA+6}")
        A(f"v_permlane32_swap_b32 v{vA+5}, v{vA+7}")
        A(f"v_add_f32 v{vA}, v{vA}, v{vA+2}")
        A(f"v_add_f32 v{vA+4}, v{vA+4}, v{vA+6}")
        A(f"v_add_f32 v{vA+1}, v{vA+1}, v{vA+3}")
        A(f"v_add_f32 v{vA+5}, v{vA+5}, v{vA+7}")
        A(f"v_cvt_pk_bf16_f32 v{vT}, v{vA}, v{vA+4}")
        A(f"buffer_store_dword v{vT}, v{vQkvSt}, {WSR}, s{sQkv} offen{sc}")
        A(f"v_cvt_pk_bf16_f32 v{vT+1}, v{vA+1}, v{vA+5}")
        A(f"buffer_store_dword v{vT+1}, v{vQkvSt}, {WSR}, s{sQkv} offen offset:16{sc}")
        stamp(A, 4)
        fstamp(A, 4, 250)
        A(f"s_branch {Lb}")
        A.label(Lretry)
        stamp(A, 3)
        budget_check(A, 3)
        if P["h1_two"]:
            h1ld(vH)
            h1chk(vH2, 3)
            A(f"s_cbranch_vccz {Lhok}")
            h1ld(vH2)
            h1chk(vH, 3)
            A(f"s_cbranch_vccz {Lhok}")
            A(f"s_branch {Lretry}")
        else:
            A(f"s_branch {Lh1}")
        A.label(Lslow)
        A(f"v_max3_u32 v{vMx}, v{vPt}, v{vPt+1}, v{vPt+2}")
        for i in range(3, 7, 2):
            A(f"v_max3_u32 v{vMx}, v{vPt+i}, v{vPt+i+1}, v{vMx}")
        A(f"v_max_u32 v{vMx}, v{vPt+7}, v{vMx}")
        A(f"v_cmp_eq_u32 vcc, -1, v{vMx}")
        A(f"v_min_u32 v{vT+4}, -2, v{vT+4}")
        A(f"s_cbranch_vccz {Lcont}")
        budget_check(A, 2)
        A(f"s_branch {Ls3}")

def gen_s2(A):
    sJ = 30
    sQkv, sQkvBase, sPartW, sPartP, sPartBase, sXk, sXv, sXrBase, sXrEnd = 31, 32, 33, 34, 35, 36, 37, 38, 39
    sPx, sPxBase, sXp, sXpF, sXfl, sMark, sMk1, sC, sNeed = 40, 41, 42, 43, 44, 45, 46, 47, 48
    sQkv1, sQkv2 = 49, 50
    sXk1, sXk2, sXv1, sXv2 = 51, 52, 53, 54
    sLo = 56
    sSt0, sSt1, sSt2, sSt3 = 58, 59, 88, 89
    vL16, vKmO, vIdx, vRedW, vRedR, vPartO, vL8, vFlagO, vXflO, vProbe, vRed2R = 1, 2, 3, 4, 5, 6, 7, 8, 9, 10, 11
    vPois = 12
    vT = 16
    vQ, vKM, vVM = 32, 44, 56
    vFl, vMx, vMark = 68, 69, 98
    vOne32, vOne16 = 70, 74
    vS, vSM, vW = 76, 92, 96
    vVA, vF, vDen, vPb = 100, 116, 132, 136
    vVOM2 = (142, 228)
    vRed2W = 99
    fin_parts = {}
    vVOX, vXA, vPX = 152, 184, 216
    aKX, aVX = 96, 144
    vXOUT = 24
    RED, RED2 = 98304, 106496
    c = (192 ** -0.5) * math.log2(math.e)
    A.label("L_s2")
    A(f"s_sub_u32 s{sJ}, s{sR}, 18")
    A(f"s_load_dwordx2 s[{sRO}:{sRO+1}], s[0:1], 40")
    A(f"v_lshlrev_b32 v{vL16}, 4, v0")
    A(f"v_lshrrev_b32 v{vT}, 3, v0")
    A(f"v_mul_u32_u24 v{vT}, 1280, v{vT}")
    A(f"v_and_b32 v{vT+1}, 7, v0")
    A(f"v_lshl_add_u32 v{vT}, v{vT+1}, 4, v{vT}")
    A(f"s_lshl_b32 s{sT0}, s{sG}, 2")
    A(f"s_add_u32 s{sT0}, s{sT0}, s{sW}")
    A(f"s_mul_i32 s{sT0}, s{sT0}, {192 * 1280}")
    A(f"s_lshl_b32 s{sT1}, s{sJ}, 7")
    A(f"s_add_u32 s{sT0}, s{sT0}, s{sT1}")
    A(f"s_mul_i32 s{sT2}, s{sW}, 24576")
    A(f"s_mov_b32 m0, s{sT2}")
    A("s_waitcnt lgkmcnt(0)")
    srd(A, sRO, 6144 * 1280)
    for i in range(24):
        A(f"buffer_load_dwordx4 v{vT}, s[{sRO}:{sRO+3}], s{sT0} offen lds")
        if i < 23:
            A("s_add_u32 m0, m0, 1024")
            A(f"s_add_u32 s{sT0}, s{sT0}, {8 * 1280}")
    A(f"v_and_b32 v{vT+1}, 15, v0")
    A(f"v_lshrrev_b32 v{vT+2}, 4, v0")
    A(f"v_cmp_gt_u32 s[{sLo}:{sLo+1}], 8, v{vT+1}")
    A(f"v_mov_b32 v{vT+3}, 0xeeee")
    A(f"v_mov_b32 v{vT+4}, 0x4444")
    A(f"v_cndmask_b32 v{vIdx}, v{vT+3}, v{vT+4}, s[{sLo}:{sLo+1}]")
    for r in range(4): A(f"v_mov_b32 v{vPois+r}, -1")
    A(f"v_lshlrev_b32 v{vL8}, 3, v0")
    A(f"v_mov_b32 v{vT+3}, 0x3f803f80")
    for r in range(4): A(f"v_mov_b32 v{vOne32+r}, v{vT+3}")
    A(f"v_cmp_gt_u32 vcc, 32, v0")
    A("s_nop 1")
    for r in range(2): A(f"v_cndmask_b32 v{vOne16+r}, 0, v{vT+3}, vcc")
    A(f"s_lshl_b32 s{sT0}, s{sW}, 11")
    A(f"s_add_u32 s{sT0}, s{sT0}, {RED}")
    A(f"v_lshrrev_b32 v{vT+3}, 1, v0")
    A(f"v_and_b32 v{vT+3}, 8, v{vT+3}")
    A(f"v_xor_b32 v{vT+3}, v0, v{vT+3}")
    A(f"v_lshl_add_u32 v{vRedW}, v{vT+3}, 4, s{sT0}")
    A(f"v_and_b32 v{vT+3}, 15, v0")
    A(f"v_bfe_u32 v{vT+4}, v0, 3, 2")
    A(f"v_lshl_add_u32 v{vT+3}, v{vT+4}, 4, v{vT+3}")
    A(f"s_lshr_b32 s{sT1}, s{sW}, 1")
    A(f"s_lshl_b32 s{sT1}, s{sT1}, 3")
    A(f"v_xor_b32 v{vT+3}, s{sT1}, v{vT+3}")
    A(f"s_and_b32 s{sT0}, s{sW}, 1")
    A(f"s_lshl_b32 s{sT0}, s{sT0}, 10")
    A(f"s_add_u32 s{sT0}, s{sT0}, {RED}")
    A(f"v_lshl_add_u32 v{vRedR}, v{vT+3}, 4, s{sT0}")
    A(f"s_lshl_b32 s{sT0}, s{sW}, 11")
    A(f"s_add_u32 s{sT0}, s{sT0}, {RED2}")
    A(f"v_add_u32 v{vRed2R}, s{sT0}, v{vL16}")
    A(f"s_lshl_b32 s{sT0}, s{sW}, 13")
    A(f"s_add_u32 s{sT0}, s{sT0}, {RED2}")
    A(f"v_add_u32 v{vRed2W}, s{sT0}, v{vL16}")
    A(f"v_and_b32 v{vT+4}, 7, v0")
    A(f"v_bfe_u32 v{vT+5}, v0, 4, 1")
    A(f"v_lshl_add_u32 v{vT+4}, v{vT+5}, 3, v{vT+4}")
    A(f"v_lshlrev_b32 v{vT+4}, 4, v{vT+4}")
    A(f"v_and_b32 v{vT+5}, 8, v0")
    A(f"v_add_u32 v{vT+4}, v{vT+5}, v{vT+4}")
    A(f"v_lshrrev_b32 v{vT+5}, 5, v0")
    A(f"v_lshl_add_u32 v{vPartO}, v{vT+5}, 13, v{vT+4}")
    A(f"v_mov_b32 v{vT+3}, {OOB}")
    A(f"v_cmp_eq_u32 vcc, 0, v0")
    A("s_nop 1")
    A(f"v_cndmask_b32 v{vFlagO}, v{vT+3}, v0, vcc")
    A(f"v_min_u32 v{vXflO}, 11, v0")
    A(f"v_lshlrev_b32 v{vXflO}, 2, v{vXflO}")
    A(f"v_min_u32 v{vProbe}, 17, v0")
    A(f"v_lshlrev_b32 v{vProbe}, 2, v{vProbe}")
    A(f"s_mul_i32 s{sQkvBase}, s{sG}, 147456")
    A(f"s_mul_i32 s{sT0}, s{sW}, 9216")
    A(f"s_add_u32 s{sQkvBase}, s{sQkvBase}, s{sT0}")
    A(f"s_add_u32 s{sQkvBase}, s{sQkvBase}, {QKVR}")
    A(f"s_lshl_b32 s{sPartBase}, s{sJ}, 14")
    A(f"s_lshl_b32 s{sT0}, s{sW}, 11")
    A(f"s_add_u32 s{sPartBase}, s{sPartBase}, s{sT0}")
    A(f"s_lshl_b32 s{sT0}, s{sG}, 8")
    A(f"s_add_u32 s{sPartBase}, s{sPartBase}, s{sT0}")
    A(f"s_add_u32 s{sPartBase}, s{sPartBase}, {PART}")
    A(f"s_mul_i32 s{sXrBase}, s{sG}, {XR_G}")
    A(f"s_mul_i32 s{sT0}, s{sW}, {XR_HEAD}")
    A(f"s_add_u32 s{sXrBase}, s{sXrBase}, s{sT0}")
    A(f"s_add_u32 s{sXrBase}, s{sXrBase}, {0x5000000 if P.get('x_fixkv') else XR}")
    A(f"s_add_u32 s{sXrEnd}, s{sXrBase}, {XR_G}")
    A(f"s_mul_i32 s{sPxBase}, s{sG}, 49152")
    A(f"s_mul_i32 s{sT0}, s{sW}, 3072")
    A(f"s_add_u32 s{sPxBase}, s{sPxBase}, s{sT0}")
    A(f"s_add_u32 s{sPxBase}, s{sPxBase}, {PXR}")
    A(f"s_lshl_b32 s{sXp}, s{sJ}, 16")
    A(f"s_lshl_b32 s{sT0}, s{sG}, 12")
    A(f"s_add_u32 s{sXp}, s{sXp}, s{sT0}")
    A(f"s_lshl_b32 s{sT0}, s{sW}, 10")
    A(f"s_add_u32 s{sXp}, s{sXp}, s{sT0}")
    A(f"s_add_u32 s{sXp}, s{sXp}, {XPART}")
    A(f"s_lshl_b32 s{sXpF}, s{sJ}, 7")
    A(f"s_lshl_b32 s{sT0}, s{sG}, 4")
    A(f"s_add_u32 s{sXpF}, s{sXpF}, s{sT0}")
    A(f"s_lshl_b32 s{sT0}, s{sW}, 2")
    A(f"s_add_u32 s{sXpF}, s{sXpF}, s{sT0}")
    A(f"s_add_u32 s{sXpF}, s{sXpF}, {XPFLAG}")
    A(f"s_lshl_b32 s{sXfl}, s{sG}, 9")
    A(f"s_mul_i32 s{sT0}, s{sW}, 72")
    A(f"s_add_u32 s{sXfl}, s{sXfl}, s{sT0}")
    A(f"s_add_u32 s{sXfl}, s{sXfl}, {XFLAG + 24}")
    A(f"s_lshl_b32 s{sMk1}, s{sG}, 7")
    A(f"s_lshl_b32 s{sT0}, s{sJ}, 2")
    A(f"s_add_u32 s{sMark}, s{sMk1}, s{sT0}")
    A(f"s_add_u32 s{sMark}, s{sMark}, {S2MARK}")
    A(f"s_cmp_eq_u32 s{sW}, 0")
    A(f"s_cselect_b32 s{sMark}, s{sMark}, {OOB}")
    A(f"s_add_u32 s{sMk1}, s{sMk1}, {S1MARK}")
    A(f"s_mov_b32 s{sC}, {f2u(c):#x}")
    A(f"v_bfe_u32 v{vT+3}, v0, 3, 1")
    A(f"v_bfe_u32 v{vT+4}, v0, 2, 1")
    A(f"v_lshl_add_u32 v{vT+3}, v{vT+4}, 4, v{vT+3}")
    A(f"v_lshl_add_u32 v{vT+3}, v{vT+2}, 2, v{vT+3}")
    A(f"v_lshlrev_b32 v{vT+3}, 7, v{vT+3}")
    A(f"v_and_b32 v{vT+4}, 3, v0")
    A(f"v_lshl_add_u32 v{vT+3}, v{vT+4}, 3, v{vT+3}")
    A(f"v_add_u32 v{vT+3}, s{sT2}, v{vT+3}")
    for ks in range(6):
        A(f"s_waitcnt vmcnt({24 - 4 * (ks + 1)})")
        for ct in range(4):
            for hf in range(2):
                A(f"ds_read_b64_tr_b16 a[{24*ct+4*ks+2*hf}:{24*ct+4*ks+2*hf+1}], v{vT+3} offset:{ks*4096+hf*256+ct*32}")
    A("s_waitcnt lgkmcnt(0)")
    ostamp(A, 0, 1)
    def xflag_wait(have_loaded):
        L, Lok = A.newlabel("xfl"), A.newlabel("xflok")
        if have_loaded:
            A(f"v_cmp_gt_u32 vcc, s{sNeed}, v{vFl}")
            A(f"s_cbranch_vccz {Lok}")
        A.label(L)
        A(f"buffer_load_dword v{vFl}, v{vXflO}, {WSR}, s{sXfl} offen sc1")
        budget_check(A, 4)
        A("s_waitcnt vmcnt(0)")
        A(f"v_cmp_gt_u32 vcc, s{sNeed}, v{vFl}")
        A(f"s_cbranch_vccnz {L}")
        A.label(Lok)
    def xload(dst, t, ks, so):
        off = ks * 2048 + t * 1024
        A(f"buffer_load_dwordx4 {a(dst + 4 * (6 * t + ks), 4)}, v{vL16}, {WSR}, s{so[off // 4096]} offen offset:{off % 4096} sc1")
    A(f"s_mov_b32 s{sNeed}, 1")
    xflag_wait(False)
    A(f"s_add_u32 s{sXv}, s{sXrBase}, 24576")
    A(f"s_add_u32 s{sXv1}, s{sXv}, 4096")
    A(f"s_add_u32 s{sXv2}, s{sXv}, 8192")
    for ks in range(6):
        for t in range(2): xload(aVX, t, ks, (sXv, sXv1, sXv2))
    A(f"s_mov_b32 s{sXk}, s{sXrBase}")
    A(f"s_mov_b32 s{sS}, -1")
    A(f"v_mov_b32 v{vFl}, 0")
    A("s_waitcnt vmcnt(0)")

    Lbub, Latt, Lretry, Lnost, Lnox = "L_s2_bub", "L_s2_att", "L_s2_retry", "L_s2_nost", "L_s2_nox"
    for par in range(2):
        voxc = vVOX + 16 * par
        voxn = vVOX + 16 * (1 - par)
        vomc, vomo = vVOM2[par], vVOM2[1 - par]
        vVOM = vomc
        sfx = f"_{par}"
        if par == 0:
            A(f"s_branch {Lbub}_1")
        A.label(f"L_s2_top{sfx}")
        def miss(r):
            A(f"v_cmp_ge_i32 vcc, s{sS}, v{r}")
            if P["h2_miss"] == 0: return "s_cbranch_vccz"
            A(f"s_and_b32 s{sT0}, vcc_lo, 0x3ffff")
            A(f"s_bcnt1_i32_b32 s{sT0}, s{sT0}")
            A(f"s_cmp_gt_u32 s{sT0}, {P['h2_miss']}")
            return "s_cbranch_scc0"
        Lg = A.newlabel("gate")
        A(f"s_cmp_lg_u32 s{sW}, 0")
        A(f"s_cbranch_scc1 {Lg}")
        dense_poll(A, [vT + i for i in range(P["dp"])], lambda r: A(f"buffer_load_dword v{r}, v{vProbe}, {WSR}, s{sMk1} offen sc1"), miss, 5)
        A.label(Lg)
        A("s_barrier")
        A.label(Latt + sfx)
        stamp(A, 0, 252)
        fstamp(A, 0, 252)
        fill = [f"v_mov_b32 v{vVA+r}, 0" for r in range(16)] + [f"s_add_u32 s{sT0}, s{sS}, 1", f"v_mov_b32 v{vMark}, s{sT0}",
                f"v_mov_b32 v{vMx}, 0", f"v_mov_b32 v{vW}, 0xff7fffff", f"v_mov_b32 v{vW+1}, 0xff7fffff"]
        lds_ = [f"buffer_load_dwordx4 {v(base+4*j,4)}, v{vL16}, {WSR}, s{so} offen offset:{1024*j} sc1"
                for base, so in ((vQ, sQkv), (vKM, sQkv1), (vVM, sQkv2)) for j in range(3)]
        lds_.append(f"buffer_load_dword v{vFl}, v{vXflO}, {WSR}, s{sXfl} offen sc1")
        NI = P.get("h2_first", 6)
        issued = 0
        for x in lds_[:NI]:
            A(x); issued += 1
            for _ in range(4):
                if fill: A(fill.pop(0))
        for x in fill: A(x)
        def more(n=1):
            nonlocal issued
            for _ in range(n):
                if issued < len(lds_):
                    A(lds_[issued]); issued += 1
        def need(i): A(f"s_waitcnt vmcnt({issued - 1 - i})")
        NVC = P["nvc"]
        vall = [(t, ks) for ks in range(6) for t in range(2)]
        vcrit = vall[12 - NVC:]
        vpos = {}
        def vmore():
            nonlocal issued
            if len(vpos) < NVC:
                e = vcrit[len(vpos)]
                xload(aVX, e[0], e[1], (sXv, sXv1, sXv2))
                vpos[e] = issued; issued += 1
        def chk(r0): return f"v_max3_u32 v{vMx}, v{r0}, v{r0+1}, v{vMx}"
        DPP = "row_ror:8 row_mask:0xf bank_mask:"
        for j in range(3):
            need(j)
            if j == 0: fstamp(A, 1, 252)
            k = 0
            for t in range(2):
                for pr in range(2):
                    acc = vS + 4 * (2 * t + pr)
                    cc = "0" if j == 0 else v(acc, 4)
                    A(f"v_mfma_f32_16x16x32_bf16 {v(acc,4)}, {a(aKX+4*(6*t+2*j+pr),4)}, {v(vQ+4*j,4)}, {cc}")
                    if k < 2: A(chk(vQ + 4 * j + 2 * k))
                    if k == 2: more()
                    k += 1
        more(99)
        smf = [f"v_smfmac_f32_16x16x64_bf16 {v(vVA+4*ct,4)}, {v(vVM+4*j,4)}, {a(24*ct+8*j,8)}, v{vIdx}" for j in range(3) for ct in range(4)]
        chks = [chk(vVM + 2 * i) for i in range(6)]
        vals = [vS + r for r in range(4)] + [vW, vW + 1]
        vm, vt2 = vT, vT + 1
        xa = [f"v_add_f32_dpp v{vS+r}, v{vS+4+r}, v{vS+r} {DPP}0xf" for r in range(4)] + [f"v_add_f32_dpp v{vS+r}, v{vS+8+r}, v{vS+12+r} {DPP}0xc" for r in range(4)]
        def smm(j):
            need(3 + j)
            A(f"v_mfma_f32_16x16x32_bf16 {v(vSM,4)}, {v(vKM+4*j,4)}, {v(vQ+4*j,4)}, {'0' if j == 0 else v(vSM,4)}")
            A(chk(vKM + 4 * j)); A(chk(vKM + 4 * j + 2))
        smm(0); smm(1)
        for x in xa[:4]: A(x)
        smm(2)
        fstamp(A, 2, 252)
        A(f"v_cmp_eq_u32 vcc, -1, v{vMx}")
        for x in xa[4:]: A(x)
        A(f"v_max3_f32 v{vm}, v{vals[0]}, v{vals[1]}, v{vals[2]}")
        A(f"v_permlane32_swap_b32 v{vSM}, v{vSM+1}")
        A(f"v_permlane32_swap_b32 v{vSM+2}, v{vSM+3}")
        need(6)
        fstamp(A, 3, 252)
        A(smf[0])
        A(f"v_add_f32_dpp v{vW}, v{vSM+1}, v{vSM} {DPP}0x3")
        A(f"v_add_f32_dpp v{vW+1}, v{vSM+3}, v{vSM+2} {DPP}0x3")
        A(smf[1])
        A(f"v_max3_f32 v{vm}, v{vals[3]}, v{vals[4]}, v{vm}")
        A(f"v_max_f32 v{vm}, v{vals[5]}, v{vm}")
        A(smf[2])
        A(f"s_cbranch_vccnz {Lretry}{sfx}")
        A(f"v_max_f32_dpp v{vm}, v{vm}, v{vm} {DPP}0xf")
        A(f"v_mov_b32 v{vt2}, v{vm}")
        A(smf[3]); A(chks[0])
        A(f"v_permlane32_swap_b32 v{vm}, v{vt2}")
        A(f"v_max_f32 v{vm}, v{vm}, v{vt2}")
        A(f"v_mov_b32 v{vt2}, v{vm}")
        need(7)
        A(smf[4])
        A(f"v_permlane16_swap_b32 v{vm}, v{vt2}")
        A(f"v_max_f32 v{vm}, v{vm}, v{vt2}")
        A(smf[5])
        A(f"v_mul_f32 v{vm}, s{sC}, v{vm}")
        fm = [f"v_fma_f32 v{x}, v{x}, s{sC}, -v{vm}" for x in vals]
        ex = [f"v_exp_f32 v{x}, v{x}" for x in vals]
        A(fm[0])
        A(smf[6]); A(fm[1]); A(fm[2])
        A(smf[7]); A(fm[3]); need(8)
        A(smf[8]); A(ex[0])
        A(smf[9]); A(ex[1])
        vmore()
        A(smf[10]); A(ex[2])
        A(smf[11]); A(ex[3])
        A(fm[4]); A(fm[5])
        vmore()
        A(f"v_cvt_pk_bf16_f32 v{vPb}, v{vals[0]}, v{vals[1]}")
        A(f"v_cvt_pk_bf16_f32 v{vPb+1}, v{vals[2]}, v{vals[3]}")
        A(ex[4])
        A(f"v_mov_b32_dpp v{vPb+2}, v{vPb} {DPP}0xf")
        A(f"v_mov_b32_dpp v{vPb+3}, v{vPb+1} {DPP}0xf")
        A(ex[5])
        A(chks[1])
        vmore()
        def fin32(ct): A(f"v_mfma_f32_16x16x32_bf16 {v(vF+4*ct,4)}, {v(voxc+4*ct,4)}, {v(vPb,4)}, 0")
        def fin16(ct): A(f"v_mfma_f32_16x16x16_bf16 {v(vF+4*ct,4)}, {v(vVOM+2*ct,2)}, {v(vPb+4,2)}, {v(vF+4*ct,4)}")
        def cvom(ct):
            A(f"v_cvt_pk_bf16_f32 v{vVOM+2*ct}, v{vVA+4*ct}, v{vVA+4*ct+2}")
            A(f"v_cvt_pk_bf16_f32 v{vVOM+2*ct+1}, v{vVA+4*ct+1}, v{vVA+4*ct+3}")
        fin32(0)
        A(f"v_cvt_pk_bf16_f32 v{vPb+4}, v{vals[4]}, v{vals[5]}")
        A(f"v_mov_b32 v{vPb+5}, v{vPb+4}")
        A(f"v_mfma_f32_16x16x32_bf16 {v(vDen,4)}, {v(vOne32,4)}, {v(vPb,4)}, 0")
        A(chks[2]); A(chks[3])
        fin32(1)
        A(f"v_permlane32_swap_b32 v{vPb+4}, v{vPb+5}")
        fin32(2); cvom(0)
        vmore()
        A(f"v_mfma_f32_16x16x16_bf16 {v(vDen,4)}, {v(vOne16,2)}, {v(vPb+4,2)}, {v(vDen,4)}")
        cvom(1)
        fin32(3); cvom(2)
        fin16(0); cvom(3)
        vmore()
        fin16(1); A(chks[4]); A(chks[5])
        fin16(2)
        A(f"v_cmp_eq_u32 vcc, -1, v{vMx}")
        A(f"v_rcp_f32 v{vT+4}, v{vDen}")
        fin16(3)
        fstamp(A, 4, 252)
        fstamp(A, 5, 252)
        if len(vpos) < NVC: vmore()
        else: A("s_nop 0")
        A(f"v_mov_b32_dpp v{vT+4}, v{vT+4} {DPP}0xc")
        A("s_nop 1")
        for pc in range(2):
            for r in range(4):
                A(f"v_mul_f32 v{vF+4*pc+r}, v{vF+4*pc+r}, v{vT+4}")
            for r in range(4):
                A(f"v_mul_f32_dpp v{vF+4*pc+r}, v{vF+4*(pc+2)+r}, v{vT+4} row_ror:8 row_mask:0xf bank_mask:0xc")
            if pc == 0: A(f"s_cbranch_vccnz {Lretry}{sfx}")
            A(f"ds_write_b128 v{vRedW}, {v(vF+4*pc,4)} offset:{1024*pc}")
            vmore()
        assert len(vpos) == NVC
        mark = f"buffer_store_dword v{vMark}, v{vFlagO}, {WSR}, s{sMark} offen"
        if P["mk_pos"] == 0: A(mark)
        fstamp(A, 6, 252)
        A("s_waitcnt lgkmcnt(0)")
        A("s_barrier")
        fstamp(A, 7, 252)
        if P["prof"] in (3, 5): A("s_waitcnt lgkmcnt(0)")
        for h in range(4):
            A(f"ds_read_b128 {v(vF+4*h,4)}, v{vRedR} offset:{2048*h}")
        if P["mk_pos"] == 1: A(mark)
        A("s_waitcnt lgkmcnt(2)")
        A(f"v_pk_add_f32 {v(vF,2)}, {v(vF,2)}, {v(vF+4,2)}")
        A(f"v_pk_add_f32 {v(vF+2,2)}, {v(vF+2,2)}, {v(vF+6,2)}")
        A("s_waitcnt lgkmcnt(0)")
        A(f"v_pk_add_f32 {v(vF+8,2)}, {v(vF+8,2)}, {v(vF+12,2)}")
        A(f"v_pk_add_f32 {v(vF+10,2)}, {v(vF+10,2)}, {v(vF+14,2)}")
        A(f"v_pk_add_f32 {v(vF,2)}, {v(vF,2)}, {v(vF+8,2)}")
        A(f"v_pk_add_f32 {v(vF+2,2)}, {v(vF+2,2)}, {v(vF+10,2)}")
        A(f"v_cvt_pk_bf16_f32 v{vF}, v{vF}, v{vF+1}")
        A(f"v_cvt_pk_bf16_f32 v{vF+1}, v{vF+2}, v{vF+3}")
        A(f"buffer_store_dwordx2 {v(vF,2)}, v{vPartO}, {WSR}, s{sPartW} offen sc1")
        if P["mk_pos"] == 2: A(mark)
        issued += 2
        stamp(A, 1, 252)
        fstamp(A, 8, 252)
        A.label(Lbub + sfx)
        A(f"s_add_u32 s{sNeed}, s{sS}, 3")
        A(f"s_min_u32 s{sNeed}, s{sNeed}, {P['nseg']}")
        A(f"v_cmp_gt_u32 vcc, s{sNeed}, v{vFl}")
        Lfw, Lfb = A.newlabel("fw"), A.newlabel("fb")
        sal = [f"s_add_u32 s{sT2}, s{sXk}, 12288",
               f"s_add_u32 s{sXk1}, s{sXk}, {12288 + 4096}",
               f"s_add_u32 s{sXk2}, s{sXk}, {12288 + 8192}",
               f"s_add_u32 s{sXv}, s{sXk}, {XR_SLOT}",
               f"s_cmp_eq_u32 s{sXv}, s{sXrEnd}",
               f"s_cselect_b32 s{sXv}, s{sXrBase}, s{sXv}",
               f"s_cmp_lt_i32 s{sS}, 2",
               f"s_cselect_b32 s{sSt0}, {OOB}, s{sPartP}",
               f"s_cselect_b32 s{sSt1}, {OOB}, s{sXp}",
               f"s_cselect_b32 s{sSt3}, {OOB}, s{sXpF}",
               f"s_cselect_b32 s{sT0}, 0, {0 if P.get('x_ring') else 655360}",
               f"s_add_u32 s{sXp}, s{sXp}, s{sT0}",
               f"s_add_u32 s{sSt2}, s{sSt1}, 32768",
               f"s_sub_u32 s{sT0}, s{sS}, 2",
               f"v_mov_b32 v{vT}, s{sT0}",
               f"s_mov_b32 s{sXk}, s{sXv}",
               f"s_add_u32 s{sXv2}, s{sXv}, {24576 + 8192}",
               f"s_add_u32 s{sXv1}, s{sXv}, {24576 + 4096}",
               f"s_add_u32 s{sXv}, s{sXv}, 24576",
               f"s_and_b32 s{sT0}, s{sS}, 3",
               f"s_mul_i32 s{sPx}, s{sT0}, 12288",
               f"s_add_u32 s{sPx}, s{sPx}, s{sPxBase}",
               f"s_add_u32 s{sT0}, s{sS}, 3",
               f"s_and_b32 s{sT0}, s{sT0}, 3",
               f"s_mul_i32 s{sPartP}, s{sT0}, {PART_SLOT}",
               f"s_add_u32 s{sPartP}, s{sPartP}, s{sPartBase}",
               f"s_add_u32 s{sT0}, s{sS}, 1",
               f"s_and_b32 s{sT0}, s{sT0}, 3",
               f"s_mul_i32 s{sPartW}, s{sT0}, {PART_SLOT}",
               f"s_add_u32 s{sPartW}, s{sPartW}, s{sPartBase}",
               f"s_mul_i32 s{sQkv}, s{sT0}, 36864",
               f"s_add_u32 s{sQkv}, s{sQkv}, s{sQkvBase}",
               f"s_add_u32 s{sQkv1}, s{sQkv}, 3072",
               f"s_add_u32 s{sQkv2}, s{sQkv}, 6144"]
        fstamp(A, 9, 252)
        def pxload():
            for i in range(3):
                A(f"buffer_load_dwordx4 {v(vPX+4*i,4)}, v{vL16}, {WSR}, s{sPx} offen offset:{1024*i} sc1")
        kq = [("k", t, ks) for ks in range(6) for t in range(2)]
        PP = P["ppos"]
        q = kq[:1] + [("s", i) for i in range(4)] + kq[1:PP] + [("p", i) for i in range(3)] + kq[PP:] + [("v", t, ks) for (t, ks) in vall[:12 - NVC]]
        def nxt(n=1):
            nonlocal issued
            for _ in range(n):
                if not q: return
                e = q.pop(0)
                if e == ("p", 2): vpos["p"] = issued
                issued += 1
                if e[0] == "p":
                    A(f"buffer_load_dwordx4 {v(vPX+4*e[1],4)}, v{vL16}, {WSR}, s{sPx} offen offset:{1024*e[1]} sc1"); continue
                if P.get("x_nokv") and e[0] in "kv" : A(f"buffer_load_dword v{vT+7}, v{vFlagO}, {WSR}, 0 offen"); continue
                if P.get("x_noxout") and e[0] == "s" and e[1] in (1, 2): A(f"buffer_load_dword v{vT+7}, v{vFlagO}, {WSR}, 0 offen"); continue
                if e[0] == "k": xload(aKX, e[1], e[2], (sT2, sXk1, sXk2))
                elif e[0] == "v": xload(aVX, e[1], e[2], (sXv, sXv1, sXv2))
                elif e[1] == 0: A(f"buffer_store_dwordx2 {v(vPois,2)}, v{vPartO}, {WSR}, s{sSt0} offen sc1")
                elif e[1] == 1: A(f"buffer_store_dwordx4 {v(vXOUT,4)}, v{vL16}, {WSR}, s{sSt1} offen {XOF[P.get('x_fl', 0)]}")
                elif e[1] == 2: A(f"buffer_store_dwordx4 {v(vXOUT+4,4)}, v{vL16}, {WSR}, s{sSt2} offen {XOF[P.get('x_fl', 0)]}")
                else: A(f"buffer_store_dword v{vT}, v{vFlagO}, {WSR}, s{sSt3} offen sc1")
        xo = lambda i: (vS + 4 * i) if i < 4 else (vF + 4 * (i - 4))
        xr = lambda qt, h: vQ + 16 * qt + 4 * h
        def xrow_mfma(vox, vom):
            return ([f"v_mfma_f32_16x16x32_bf16 {v(xo(2*ct+qt),4)}, {v(vox+4*ct,4)}, {v(vPX+4*qt,4)}, 0" for ct in range(4) for qt in range(2)] +
                    [f"v_mfma_f32_16x16x16_bf16 {v(xo(2*ct+qt),4)}, {v(vom+2*ct,2)}, {v(vPX+8+2*qt,2)}, {v(xo(2*ct+qt),4)}" for ct in range(4) for qt in range(2)])
        xw = [f"ds_write_b128 v{vRed2W}, {v(xo(i),4)} offset:{1024*i}" for i in range(8)]
        xrd = [f"ds_read_b128 {v(xr(qt,h),4)}, v{vRed2R} offset:{8192*h+1024*qt}" for qt in range(2) for h in range(4)]
        def xadd(qt):
            b = xr(qt, 0)
            return ([f"v_add_f32 v{b+r}, v{b+r}, v{b+4+r}" for r in range(4)] + [f"v_add_f32 v{b+8+r}, v{b+8+r}, v{b+12+r}" for r in range(4)] +
                    [f"v_add_f32 v{vXOUT+4*qt+r}, v{b+r}, v{b+8+r}" for r in range(4)])
        mf = [(x, None) for x in xrow_mfma(voxn, vomo)]
        for ks in range(6):
            for t in range(2):
                for ct in range(4):
                    acc = vXA + 4 * (4 * t + ct)
                    cc = "0" if ks == 0 else v(acc, 4)
                    mf.append((f"v_mfma_f32_16x16x32_bf16 {v(acc,4)}, {a(aVX+4*(6*t+ks),4)}, {a(24*ct+4*ks,4)}, {cc}", (t, ks) if ct == 0 else None))
        side = {}
        for i in range(8): side[17 + 2 * i] = [xw[i]]
        side[36] = ["s_waitcnt lgkmcnt(0)", "s_barrier"]
        for i in range(8): side.setdefault(37 + i, []).append(xrd[i])
        ad = xadd(0) + xadd(1)
        side[48] = ["s_waitcnt lgkmcnt(0)"]
        slots = [n for n in range(49, 64)]
        adq = list(ad)
        for n in slots:
            for _ in range(1 if n % 4 == 3 else 2):
                if adq: side.setdefault(n, []).append(adq.pop(0))
        assert not adq
        for n, (x, vf) in enumerate(mf):
            if vf in vpos: need(vpos[vf])
            A(x)
            if n == 3:
                A(f"s_cbranch_vccnz {Lfw}")
                A.label(Lfb)
            if n % 4 == 3:
                if not (q and q[0][0] == "v" and n < 16 + 8 * (q[0][2] + 1)): nxt()
            k = len(side.get(n, []))
            for y in side.get(n, []): A(y)
            if n % 4 != 3:
                for _ in range(2 - k):
                    if sal: A(sal.pop(0))
        assert not sal
        fstamp(A, 10, 252)
        nxt(2)
        A.nop(4)
        for ct in range(4):
            for t in range(2):
                for h in range(2):
                    src = vXA + 4 * (4 * t + ct) + 2 * h
                    A(f"v_cvt_pk_bf16_f32 v{voxn+4*ct+2*t+h}, v{src}, v{src+1}")
            nxt()
        nxt(99)
        stamp(A, 2, 252)
        fstamp(A, 11, 252)
        A(f"s_cmp_lt_i32 s{sS}, 0")
        A(f"s_cbranch_scc1 {Lnox}{sfx}")
        Lpx, Lpxr = A.newlabel("px"), A.newlabel("pxr")
        need(vpos["p"])
        A.label(Lpx)
        A(f"v_max3_u32 v{vMx}, v{vPX}, v{vPX+1}, v{vPX+2}")
        for i in range(3, 11, 2): A(f"v_max3_u32 v{vMx}, v{vPX+i}, v{vPX+i+1}, v{vMx}")
        A(f"v_max_u32 v{vMx}, v{vPX+11}, v{vMx}")
        A(f"v_cmp_eq_u32 vcc, -1, v{vMx}")
        A(f"s_cbranch_vccnz {Lpxr}")
        stamp(A, 3, 252)
        fstamp(A, 12, 252)
        fin_parts[par] = (xrow_mfma(voxc, vomc), xw, xrd, ad)
        A.label(Lnox + sfx)
        stamp(A, 4, 252)
        if not P.get("x_split"): fstamp(A, 13, 252)
        fstamp_collect(A, 14, 252)
        stamp_flush(A, 252, 253)
        A(f"s_add_u32 s{sS}, s{sS}, 1")
        A(f"s_cmp_lg_u32 s{sS}, {P['nseg']}")
        A(f"s_cbranch_scc1 L_s2_top_{1-par}")
        A("s_branch L_s2_fin")
        A.label(Lretry + sfx)
        budget_check(A, 6)
        A(f"s_branch {Latt}{sfx}")
        A.label(Lfw)
        xflag_wait(False)
        A(f"s_branch {Lfb}")
        A.label(Lpxr)
        budget_check(A, 7)
        pxload()
        A("s_waitcnt vmcnt(0)")
        A(f"s_branch {Lpx}")
    A.label("L_s2_fin")
    xm, xw, xrd, ad = fin_parts[(P["nseg"] - 1) & 1]
    def xout():
        A(f"s_add_u32 s{sT0}, s{sXp}, 32768")
        A(f"buffer_store_dwordx4 {v(vXOUT,4)}, v{vL16}, {WSR}, s{sXp} offen sc1")
        A(f"buffer_store_dwordx4 {v(vXOUT+4,4)}, v{vL16}, {WSR}, s{sT0} offen sc1")
        A(f"s_add_u32 s{sXp}, s{sXp}, 655360")
    xout()
    for x in xm: A(x)
    A("s_barrier")
    for x in xw: A(x)
    A("s_waitcnt lgkmcnt(0)")
    A("s_barrier")
    for x in xrd: A(x)
    A("s_waitcnt lgkmcnt(0)")
    for x in ad: A(x)
    xout()
    A(f"v_mov_b32 v{vT}, {P['nseg']}")
    A("s_waitcnt vmcnt(0)")
    A(f"buffer_store_dword v{vT}, v{vFlagO}, {WSR}, s{sXpF} offen sc1")
    ostamp(A, 0, 2)
    A("s_branch L_end")

def gen_xs(A):
    sHH = 30
    sQkv, sQkvBase, sXq, sXrBase, sXrEnd, sPx, sPxP, sPxBase, sXfl, sC, sNeed = 31, 32, 33, 34, 35, 36, 37, 38, 39, 40, 41
    sXa = 42
    sMask = 48
    sPf, sMk1 = 64, 65
    vPf = 140
    vL16, vKmO, vL8, vXflO, vNeg, vProbe = 1, 2, 3, 4, 5, 6
    vPois = 8
    vT = 12
    vFl, vMx = 20, 21
    vQ, vKX, vKM = 24, 48, 96
    vS = 120
    vPb = 132
    c = (192 ** -0.5) * math.log2(math.e)
    A.label("L_xs")
    A("s_setprio 3")
    if P["near"]:
        Lnm = A.newlabel("nomeas")
        A(f"s_cmp_lg_u32 s{sR}, 28")
        A(f"s_cbranch_scc1 {Lnm}")
        A(f"s_cmp_lg_u32 s{sW}, 0")
        A(f"s_cbranch_scc1 {Lnm}")
        A(f"s_lshl_b32 s{sT0}, s{sG}, 10")
        A(f"s_add_u32 s{sT0}, s{sT0}, {NEARP}")
        A(f"v_mov_b32 v1, s{sT0}")
        A("s_mov_b32 s70, -1")
        A("s_mov_b32 s71, -1")
        for i in range(10):
            A("s_memtime s[66:67]")
            A("s_waitcnt lgkmcnt(0)")
            A(f"s_mov_b32 s{sT1}, {(i & 1) * 8192 + (i >> 1) * 128}")
            A(f"buffer_load_dword v2, v1, {WSR}, s{sT1} offen sc1")
            A("s_waitcnt vmcnt(0)")
            A("s_memtime s[68:69]")
            A("s_waitcnt lgkmcnt(0)")
            A("s_sub_u32 s68, s68, s66")
            if i >= 2: A(f"s_min_u32 s{70 + (i & 1)}, s{70 + (i & 1)}, s68")
        A("s_cmp_lt_u32 s71, s70")
        A(f"s_cselect_b32 s{sT1}, 2, 1")
        A(f"v_mov_b32 v2, s{sT1}")
        A(f"s_lshl_b32 s{sT0}, s{sG}, 2")
        A(f"s_add_u32 s{sT0}, s{sT0}, 128")
        A(f"v_mov_b32 v1, s{sT0}")
        A(f"buffer_store_dword v2, v1, s[{sDBG}:{sDBG+3}], 0 offen sc1")
        A.label(Lnm)
    A(f"s_sub_u32 s{sHH}, s{sR}, 28")
    A(f"v_lshlrev_b32 v{vL16}, 4, v0")
    A(f"v_lshlrev_b32 v{vL8}, 3, v0")
    A(f"v_and_b32 v{vKmO}, 0x37, v0")
    A(f"v_lshlrev_b32 v{vKmO}, 4, v{vKmO}")
    A(f"v_min_u32 v{vXflO}, 11, v0")
    A(f"v_lshlrev_b32 v{vXflO}, 2, v{vXflO}")
    A(f"v_min_u32 v{vProbe}, 17, v0")
    A(f"v_lshlrev_b32 v{vProbe}, 2, v{vProbe}")
    A(f"s_lshl_b32 s{sMk1}, s{sG}, 7")
    A(f"s_add_u32 s{sMk1}, s{sMk1}, {S1MARK}")
    for r in range(4): A(f"v_mov_b32 v{vPois+r}, -1")
    A(f"v_mov_b32 v{vNeg}, {f2u(-1e9 * 192 ** 0.5):#x}")
    A(f"v_and_b32 v{vT}, 15, v0")
    A(f"s_lshl_b32 s{sT0}, s{sW}, 4")
    A(f"v_add_u32 v{vT}, s{sT0}, v{vT}")
    A(f"v_lshrrev_b32 v{vT+1}, 4, v0")
    A(f"v_lshlrev_b32 v{vT+1}, 2, v{vT+1}")
    for t in range(2):
        for r in range(4):
            A(f"v_add_u32 v{vT+2}, {16*t+r}, v{vT+1}")
            A(f"v_cmp_le_u32 s[{sMask+2*(4*t+r)}:{sMask+2*(4*t+r)+1}], v{vT+2}, v{vT}")
    A(f"s_mul_i32 s{sQkvBase}, s{sG}, 147456")
    A(f"s_mul_i32 s{sT0}, s{sHH}, 9216")
    A(f"s_add_u32 s{sQkvBase}, s{sQkvBase}, s{sT0}")
    A(f"s_add_u32 s{sQkvBase}, s{sQkvBase}, {QKVR + 3072}")
    A(f"s_mul_i32 s{sXrBase}, s{sG}, {XR_G}")
    A(f"s_mul_i32 s{sT0}, s{sHH}, {XR_HEAD}")
    A(f"s_add_u32 s{sXrBase}, s{sXrBase}, s{sT0}")
    A(f"s_add_u32 s{sXrBase}, s{sXrBase}, {XR}")
    A(f"s_add_u32 s{sXrEnd}, s{sXrBase}, {XR_G}")
    A(f"s_mov_b32 s{sXq}, s{sXrBase}")
    A(f"s_mul_i32 s{sPxBase}, s{sG}, 49152")
    A(f"s_mul_i32 s{sT0}, s{sHH}, 3072")
    A(f"s_add_u32 s{sPxBase}, s{sPxBase}, s{sT0}")
    A(f"s_lshl_b32 s{sT0}, s{sW}, 10")
    A(f"s_add_u32 s{sPxBase}, s{sPxBase}, s{sT0}")
    A(f"s_mul_i32 s{sT0}, s{sW}, 1016")
    A(f"s_sub_u32 s{sT0}, 2048, s{sT0}")
    A(f"v_add_u32 v{vL8}, s{sT0}, v{vL16}")
    A(f"s_add_u32 s{sPxBase}, s{sPxBase}, {PXR}")
    A(f"s_lshl_b32 s{sXfl}, s{sG}, 9")
    A(f"s_mul_i32 s{sT0}, s{sHH}, 72")
    A(f"s_add_u32 s{sXfl}, s{sXfl}, s{sT0}")
    A(f"s_add_u32 s{sXfl}, s{sXfl}, {XFLAG}")
    A(f"s_mov_b32 s{sC}, {f2u(c):#x}")
    A(f"s_mov_b32 s{sS}, 0")
    A(f"s_lshl_b32 s{sPf}, s{sHH}, 1")
    A(f"s_add_u32 s{sPf}, s{sPf}, s{sW}")
    A(f"s_mul_i32 s{sPf}, s{sPf}, 5120")
    for sg in range(3, 6):
        A(f"s_add_u32 s{sT0}, s{sPf}, {sg * 40960}")
        for i in range(4):
            A(f"buffer_load_dwordx4 {v(vPf,4)}, v{vL16}, s[{sX}:{sX+3}], s{sT0} offen offset:{1024*i}")
        A(f"s_add_u32 s{sT0}, s{sT0}, 4096")
        A(f"buffer_load_dwordx4 {v(vPf,4)}, v{vL16}, s[{sX}:{sX+3}], s{sT0} offen")
    gen_locality(A, "L_xs_loc", "L_xs_glb", vT)
    for mode in ("loc", "glb"):
        sc = "" if mode == "loc" else " sc1"
        A.label(f"L_xs_{mode}")
        Lf, Lk = A.newlabel("xsf"), A.newlabel("xsk")
        fstamp(A, 5, 250)
        A(f"s_add_u32 s{sNeed}, s{sS}, 1")
        A.label(Lf)
        A(f"buffer_load_dword v{vFl}, v{vXflO}, {WSR}, s{sXfl} offen sc1")
        budget_check(A, 8)
        A("s_waitcnt vmcnt(0)")
        A(f"v_cmp_gt_u32 vcc, s{sNeed}, v{vFl}")
        A(f"s_cbranch_vccnz {Lf}")
        fstamp(A, 6, 250)
        A(f"s_lshl_b32 s{sT0}, s{sW}, 10")
        A(f"s_add_u32 s{sXa}, s{sXq}, s{sT0}")
        A(f"s_add_u32 s{sXa+1}, s{sXa}, 4096")
        A(f"s_add_u32 s{sXa+2}, s{sXa}, 8192")
        A(f"s_add_u32 s{sXa+3}, s{sXq}, 12288")
        A(f"s_add_u32 s{sXa+4}, s{sXq}, {12288+4096}")
        A(f"s_add_u32 s{sXa+5}, s{sXq}, {12288+8192}")
        for ks in range(6):
            A(f"buffer_load_dwordx4 {v(vQ+4*ks,4)}, v{vL16}, {WSR}, s{sXa+ks//2} offen offset:{2048*(ks&1)} sc1")
            for t in range(2):
                A(f"buffer_load_dwordx4 {v(vKX+4*(6*t+ks),4)}, v{vL16}, {WSR}, s{sXa+3+ks//2} offen offset:{2048*(ks&1)+1024*t} sc1")
        A(f"s_add_u32 s{sXq}, s{sXq}, {XR_SLOT}")
        A(f"s_cmp_eq_u32 s{sXq}, s{sXrEnd}")
        A(f"s_cselect_b32 s{sXq}, s{sXrBase}, s{sXq}")
        A(f"s_and_b32 s{sT0}, s{sS}, 3")
        A(f"s_mul_i32 s{sQkv}, s{sT0}, 36864")
        A(f"s_add_u32 s{sQkv}, s{sQkv}, s{sQkvBase}")
        A(f"s_mul_i32 s{sPx}, s{sT0}, 12288")
        A(f"s_add_u32 s{sPx}, s{sPx}, s{sPxBase}")
        A(f"s_add_u32 s{sT0}, s{sS}, 2")
        A(f"s_and_b32 s{sT0}, s{sT0}, 3")
        A(f"s_mul_i32 s{sPxP}, s{sT0}, 12288")
        A(f"s_add_u32 s{sPxP}, s{sPxP}, s{sPxBase}")
        for ks in range(6):
            A(f"s_waitcnt vmcnt({15 - 3 * ks})")
            for t in range(2):
                cc = "0" if ks == 0 else v(vS + 4 * t, 4)
                A(f"v_mfma_f32_16x16x32_bf16 {v(vS+4*t,4)}, {v(vKX+4*(6*t+ks),4)}, {v(vQ+4*ks,4)}, {cc}")
        fstamp(A, 7, 250)
        A.label(Lk)
        A(f"buffer_load_dword v{vMx}, v{vProbe}, {WSR}, s{sMk1} offen sc1")
        budget_check(A, 9)
        A("s_waitcnt vmcnt(0)")
        A(f"v_cmp_ge_i32 vcc, s{sS}, v{vMx}")
        A(f"s_cbranch_vccnz {Lk}")
        for ks in range(6):
            A(f"buffer_load_dwordx4 {v(vKM+4*ks,4)}, v{vKmO}, {WSR}, s{sQkv} offen offset:{1024*(ks>>1)+128*(ks&1)} sc1")
        A("s_waitcnt vmcnt(0)")
        A(f"v_max3_u32 v{vMx}, v{vKM}, v{vKM+1}, v{vKM+2}")
        for i in range(3, 23, 2): A(f"v_max3_u32 v{vMx}, v{vKM+i}, v{vKM+i+1}, v{vMx}")
        A(f"v_max_u32 v{vMx}, v{vKM+23}, v{vMx}")
        A(f"v_cmp_eq_u32 vcc, -1, v{vMx}")
        A(f"s_cbranch_vccnz {Lk}")
        fstamp(A, 8, 250)
        for ks in range(6):
            cc = "0" if ks == 0 else v(vS + 8, 4)
            A(f"v_mfma_f32_16x16x32_bf16 {v(vS+8,4)}, {v(vKM+4*ks,4)}, {v(vQ+4*ks,4)}, {cc}")
        A(f"buffer_store_dwordx4 {v(vPois,4)}, v{vL16}, {WSR}, s{sPxP} offen{sc}")
        A(f"buffer_store_dwordx2 {v(vPois,2)}, v{vL8}, {WSR}, s{sPxP} offen{sc}")
        for i in range(8):
            A(f"v_cndmask_b32 v{vS+i}, v{vNeg}, v{vS+i}, s[{sMask+2*i}:{sMask+2*i+1}]")
        vm, vt2 = vT, vT + 1
        A(f"v_max3_f32 v{vm}, v{vS}, v{vS+1}, v{vS+2}")
        for i in range(3, 11, 2): A(f"v_max3_f32 v{vm}, v{vS+i}, v{vS+i+1}, v{vm}")
        A(f"v_max_f32 v{vm}, v{vS+11}, v{vm}")
        for sw in ("32", "16"):
            A(f"v_mov_b32 v{vt2}, v{vm}")
            A("s_nop 1")
            A(f"v_permlane{sw}_swap_b32 v{vm}, v{vt2}")
            A(f"v_max_f32 v{vm}, v{vm}, v{vt2}")
        A(f"v_mul_f32 v{vm}, s{sC}, v{vm}")
        for i in range(12): A(f"v_fma_f32 v{vS+i}, v{vS+i}, s{sC}, -v{vm}")
        for i in range(12): A(f"v_exp_f32 v{vS+i}, v{vS+i}")
        A(f"v_add_f32 v{vT+2}, v{vS+8}, v{vS+9}")
        A(f"v_add_f32 v{vT+3}, v{vS}, v{vS+1}")
        A(f"v_add_f32 v{vT+2}, v{vT+2}, v{vS+10}")
        A(f"v_add_f32 v{vT+2}, v{vT+2}, v{vS+11}")
        for i in range(2, 8): A(f"v_add_f32 v{vT+3}, v{vT+3}, v{vS+i}")
        A(f"v_fma_f32 v{vm}, v{vT+2}, 0.5, v{vT+3}")
        for sw in ("32", "16"):
            A(f"v_mov_b32 v{vt2}, v{vm}")
            A("s_nop 1")
            A(f"v_permlane{sw}_swap_b32 v{vm}, v{vt2}")
            A(f"v_add_f32 v{vm}, v{vm}, v{vt2}")
        A(f"v_rcp_f32 v{vm}, v{vm}")
        A("s_nop 0")
        for i in range(12): A(f"v_mul_f32 v{vS+i}, v{vS+i}, v{vm}")
        for i in range(4): A(f"v_cvt_pk_bf16_f32 v{vPb+i}, v{vS+2*i}, v{vS+2*i+1}")
        for i in range(2): A(f"v_cvt_pk_bf16_f32 v{vPb+4+i}, v{vS+8+i}, v{vS+10+i}")
        A(f"buffer_store_dwordx4 {v(vPb,4)}, v{vL16}, {WSR}, s{sPx} offen{sc}")
        A(f"buffer_store_dwordx2 {v(vPb+4,2)}, v{vL8}, {WSR}, s{sPx} offen{sc}")
        fstamp(A, 9, 250)
        if P["prof"] in (3, 5):
            A("s_waitcnt lgkmcnt(0)")
            for i in range(5, 10): A(f"v_writelane_b32 v250, s{60+2*i}, {i}")
            stamp_flush(A)
        A(f"s_add_u32 s{sT0}, s{sS}, 6")
        A(f"s_mul_i32 s{sT0}, s{sT0}, 40960")
        A(f"s_add_u32 s{sT0}, s{sT0}, s{sPf}")
        for i in range(4):
            A(f"buffer_load_dwordx4 {v(vPf,4)}, v{vL16}, s[{sX}:{sX+3}], s{sT0} offen offset:{1024*i}")
        A(f"s_add_u32 s{sT0}, s{sT0}, 4096")
        A(f"buffer_load_dwordx4 {v(vPf,4)}, v{vL16}, s[{sX}:{sX+3}], s{sT0} offen")
        A(f"s_add_u32 s{sS}, s{sS}, 1")
        A(f"s_cmp_lg_u32 s{sS}, {P['nseg']}")
        A(f"s_cbranch_scc1 L_xs_{mode}")
        A("s_branch L_end")

def gen_main(A):
    A(".p2align 8")
    A(f".type {NAME},@function")
    A.label(NAME)
    gen_common_prologue(A)
    A(f"s_cmp_lt_u32 s{sR}, 18")
    A("s_cbranch_scc1 L_s1")
    A(f"s_cmp_lt_u32 s{sR}, 28")
    A("s_cbranch_scc1 L_s2")
    A(f"s_cmp_lt_u32 s{sW}, 2")
    A("s_cbranch_scc1 L_xs")
    A("s_branch L_bg")
    A.label("L_fail")
    A(f"v_mov_b32 v1, s{sT3}")
    A(f"s_lshl_b32 s{sT3}, s{sT3}, 2")
    A(f"s_add_u32 s{sT3}, s{sT3}, 64")
    A(f"v_mov_b32 v2, s{sT3}")
    A(f"v_mov_b32 v1, s{sS}")
    A(f"v_add_u32 v1, 1000, v1")
    A(f"buffer_store_dword v1, v2, s[{sDBG}:{sDBG+3}], 0 offen")
    A.label("L_end")
    A("s_endpgm")
    gen_s1(A)
    gen_s2(A)
    gen_xs(A)
    try:
        import gen_bg
        gen_bg.gen_bg(A, sys.modules[__name__])
    except ImportError:
        A.label("L_bg")
        A("s_endpgm")

HEADER = open("gated_mix__memory_aug_recurrent_mem_tr__ssm_conv_h3__prompt.s.ref").read().split("; Override launch")[0]

def kd(name, vgpr, acc, sgpr=96):
    return f""".amdhsa_kernel {name}
  .amdhsa_next_free_vgpr {vgpr}
  .amdhsa_next_free_sgpr {sgpr}
  .amdhsa_accum_offset {acc}
  .amdhsa_group_segment_fixed_size 0
  .amdhsa_kernarg_size 136
  .amdhsa_user_sgpr_count 2
  .amdhsa_user_sgpr_kernarg_segment_ptr 1
  .amdhsa_system_sgpr_workgroup_id_x 1
  .amdhsa_float_denorm_mode_32 3
.end_amdhsa_kernel
"""

def generate(**kw):
    P.update(kw)
    A = Asm()
    A('.amdgcn_target "amdgcn-amd-amdhsa--gfx950"')
    A(".text")
    A(".globl init_kernel")
    A(f".globl {NAME}")
    gen_init(A)
    gen_main(A)
    probs = check_hazards(A.lines)
    txt = HEADER
    txt += "; @launch kernel=init_kernel grid=(256,1,1) block=(256,1,1) lds=0\n"
    txt += f"; @launch kernel={NAME} grid=(256,1,1) block=(256,1,1) lds=163840\n"
    txt += A.text()
    txt += '.section .rodata,"a"\n.p2align 6\n' + kd("init_kernel", 32, 32) + ".p2align 6\n" + kd(NAME, 512, 256)
    return txt, probs

if __name__ == "__main__":
    kw = {}
    out = "gated_mix__memory_aug_recurrent_mem_tr__ssm_conv_h3__prompt.s"
    for arg in sys.argv[1:]:
        if "=" in arg:
            k, val = arg.split("="); kw[k] = int(val)
        else:
            out = arg
    txt, probs = generate(**kw)
    open(out, "w").write(txt)
    print("wrote", out, len(txt), "bytes;", len(probs), "hazards")
```

```python
import math
from asmlib import v, a, s

def gen_bg(A, G):
    P, WSR = G.P, G.WSR
    sG, sR, sW, sS, sX = G.sG, G.sR, G.sW, G.sS, G.sX
    sT0, sT1, sT2, sT3 = G.sT0, G.sT1, G.sT2, G.sT3
    OOB = G.OOB
    budget_check, srd, f2u = G.budget_check, G.srd, G.f2u
    sWV, sCU, sLds, sI, sCh, sMaskHi = 30, 31, 32, 33, 34, 35
    sK, sV, sF, sAux = 36, 40, 44, 48
    sPk, sPv, sPsk, sPf, sPd, sPg, sPo = 52, 54, 56, 58, 60, 62, 64
    sD = 66
    sU, sSeg, sJ, sB0, sB1 = 74, 75, 76, 77, 78
    XS = f"s[{sX}:{sX+3}]"
    vL16, vFlagO = 1, 2
    vT = 4
    UP, CP = 4608, 4160
    FOFF = UP
    YOFF = FOFF
    LDSW = FOFF + 8 * CP
    def lo(d, x): A(f"v_lshlrev_b32 v{d}, 16, v{x}")
    def hi(d, x): A(f"v_and_b32 v{d}, s{sMaskHi}, v{x}")

    A.label("L_bg")
    A(f"s_sub_u32 s{sT0}, s{sR}, 30")
    A(f"s_lshl_b32 s{sT0}, s{sT0}, 3")
    A(f"s_add_u32 s{sT0}, s{sT0}, s{sG}")
    A(f"s_lshl_b32 s{sT0}, s{sT0}, 2")
    A(f"s_add_u32 s{sWV}, s{sT0}, s{sW}")
    A(f"s_mul_i32 s{sLds}, s{sW}, {LDSW}")
    A(f"s_load_dwordx4 s[{sPk}:{sPk+3}], s[0:1], 64")
    A(f"s_load_dwordx4 s[{sPsk}:{sPsk+3}], s[0:1], 80")
    A(f"s_load_dwordx4 s[{sPd}:{sPd+3}], s[0:1], 96")
    A(f"s_load_dwordx2 s[{sPo}:{sPo+1}], s[0:1], 112")
    A(f"s_mov_b32 s{sMaskHi}, 0xffff0000")
    A(f"s_mov_b32 s{sS}, 0")
    A(f"v_lshlrev_b32 v{vL16}, 4, v0")
    A(f"v_cmp_eq_u32 vcc, 0, v0")
    A(f"v_mov_b32 v{vT}, {OOB}")
    A("s_nop 0")
    A(f"v_cndmask_b32 v{vFlagO}, v{vT}, v0, vcc")
    A("s_waitcnt lgkmcnt(0)")
    G.gen_locality(A, None, None, vT)
    Lw0 = A.newlabel("bgw")
    A(f"s_lshl_b32 s{sT0}, s{sG}, 9")
    A(f"s_add_u32 s{sT0}, s{sT0}, {G.XFLAG}")
    A(f"v_lshlrev_b32 v{vT+1}, 2, v0")
    A.label(Lw0)
    A("s_sleep 16")
    A(f"buffer_load_dword v{vT}, v{vT+1}, {WSR}, s{sT0} offen sc1")
    budget_check(A, 12)
    A("s_waitcnt vmcnt(0)")
    A(f"v_cmp_eq_u32 vcc, 0, v{vT}")
    A(f"s_cbranch_vccnz {Lw0}")
    if P["near"]:
        Lnm = A.newlabel("nomeas")
        A(f"s_cmp_lg_u32 s{sR}, 30")
        A(f"s_cbranch_scc1 {Lnm}")
        A(f"s_cmp_lg_u32 s{sW}, 0")
        A(f"s_cbranch_scc1 {Lnm}")
        A(f"s_lshl_b32 s{sT0}, s{sG}, 10")
        A(f"s_add_u32 s{sT0}, s{sT0}, {G.NEARP}")
        A(f"v_mov_b32 v5, s{sT0}")
        A("s_mov_b32 s86, -1")
        A("s_mov_b32 s87, -1")
        for i in range(10):
            A("s_memtime s[82:83]")
            A("s_waitcnt lgkmcnt(0)")
            A(f"s_mov_b32 s{sT1}, {(i & 1) * 8192 + (i >> 1) * 128}")
            A(f"buffer_load_dword v6, v5, {WSR}, s{sT1} offen sc1")
            A("s_waitcnt vmcnt(0)")
            A("s_memtime s[84:85]")
            A("s_waitcnt lgkmcnt(0)")
            A("s_sub_u32 s84, s84, s82")
            if i >= 2: A(f"s_min_u32 s{86 + (i & 1)}, s{86 + (i & 1)}, s84")
        A("s_cmp_lt_u32 s87, s86")
        A(f"s_cselect_b32 s{sT1}, 2, 1")
        A(f"v_mov_b32 v6, s{sT1}")
        A(f"s_lshl_b32 s{sT0}, s{sG}, 2")
        A(f"s_add_u32 s{sT0}, s{sT0}, {G.DBG_NEAR}")
        A(f"v_mov_b32 v5, s{sT0}")
        A(f"buffer_store_dword v6, v5, s[{G.sDBG}:{G.sDBG+3}], 0 offen sc1")
        A.label(Lnm)
    for dst, src, size in ((sK, sPk, 2048 * 1280), (sV, sPv, 2048 * 1280), (sAux, sPg, 1280)):
        A(f"s_mov_b64 s[{dst}:{dst+1}], s[{src}:{src+1}]")
        srd(A, dst, size)

    if P.get("nobg"):
        A("s_endpgm")
    vGW, vXr, vAcc, vXo, vGo = 24, 64, 84, 85, 86
    A(f"v_and_b32 v{vT}, 15, v0")
    A(f"v_lshlrev_b32 v{vT}, 4, v{vT}")
    for i in range(5):
        A(f"buffer_load_dwordx4 {v(vXr+4*i,4)}, v{vT}, s[{sAux}:{sAux+3}], 0 offen offset:{256*i}")
    A(f"v_lshrrev_b32 v{vT+1}, 4, v0")
    A(f"v_mul_u32_u24 v{vXo}, 1280, v{vT+1}")
    A(f"v_add_u32 v{vXo}, v{vXo}, v{vT}")
    A(f"v_lshlrev_b32 v{vT+1}, 2, v{vT+1}")
    A(f"v_cmp_eq_u32 vcc, 0, v{vT}")
    A(f"v_mov_b32 v{vT+2}, {OOB}")
    A("s_nop 0")
    A(f"v_cndmask_b32 v{vGo}, v{vT+2}, v{vT+1}, vcc")
    A(f"s_mul_i32 s{sB0}, s{sWV}, 40960")
    A(f"s_lshl_b32 s{sB1}, s{sWV}, 7")
    A(f"s_add_u32 s{sB1}, s{sB1}, {G.GV}")
    A("s_waitcnt vmcnt(0)")
    for i in range(20):
        lo(vGW + 2 * i, vXr + i); hi(vGW + 2 * i + 1, vXr + i)
    A(f"s_mov_b32 s{sI}, 8")
    Lg = A.newlabel("gate")
    A.label(Lg)
    for i in range(5):
        A(f"buffer_load_dwordx4 {v(vXr+4*i,4)}, v{vXo}, {XS}, s{sB0} offen offset:{256*i}")
    A(f"v_mov_b32 v{vAcc}, 0")
    for i in range(20):
        if i % 4 == 0: A(f"s_waitcnt vmcnt({4 - i // 4})")
        lo(vT, vXr + i); hi(vT + 1, vXr + i)
        A(f"v_pk_mul_f32 {v(vT,2)}, {v(vT,2)}, {v(vGW+2*i,2)}")
        A(f"v_cvt_pk_bf16_f32 v{vT+2}, v{vT}, v{vT+1}")
        lo(vT, vT + 2); hi(vT + 1, vT + 2)
        A(f"v_add_f32 v{vAcc}, v{vAcc}, v{vT}")
        A(f"v_add_f32 v{vAcc}, v{vAcc}, v{vT+1}")
    for sh in (8, 4, 2, 1):
        A("s_nop 1")
        A(f"v_add_f32_dpp v{vAcc}, v{vAcc}, v{vAcc} row_ror:{sh} row_mask:0xf bank_mask:0xf")
    A(f"v_cvt_pk_bf16_f32 v{vAcc}, v{vAcc}, v{vAcc}")
    lo(vAcc, vAcc)
    A(f"v_mul_f32 v{vAcc}, {f2u(-math.log2(math.e)):#x}, v{vAcc}")
    A(f"v_exp_f32 v{vAcc}, v{vAcc}")
    A("s_nop 0")
    A(f"v_add_f32 v{vAcc}, 1.0, v{vAcc}")
    A(f"v_rcp_f32 v{vAcc}, v{vAcc}")
    A("s_nop 0")
    A(f"v_cvt_pk_bf16_f32 v{vAcc}, v{vAcc}, v{vAcc}")
    lo(vAcc, vAcc)
    A(f"buffer_store_dword v{vAcc}, v{vGo}, {WSR}, s{sB1} offen sc1")
    A(f"s_add_u32 s{sB0}, s{sB0}, 5120")
    A(f"s_add_u32 s{sB1}, s{sB1}, 16")
    A(f"s_sub_u32 s{sI}, s{sI}, 1")
    A(f"s_cmp_lg_u32 s{sI}, 0")
    A(f"s_cbranch_scc1 {Lg}")
    G.ostamp(A, 0, 1)
    def rnd(pair):
        A(f"v_cvt_pk_bf16_f32 v{vT+2}, v{pair}, v{pair+1}")
        lo(pair, vT + 2); hi(pair + 1, vT + 2)
    vL4, vSt, vLw, vLr = 20, 21, 22, 23
    vSK = 24
    vKH = 32
    vKR, vVR = 40, 76
    vKV = 108
    vO = 112
    vW = 144
    A(f"v_lshlrev_b32 v{vL4}, 2, v0")
    A(f"v_lshrrev_b32 v{vSt}, 2, v0")
    A(f"v_lshlrev_b32 v{vSt}, 12, v{vSt}")
    A(f"v_and_b32 v{vT}, 3, v0")
    A(f"v_lshl_add_u32 v{vSt}, v{vT}, 4, v{vSt}")
    A(f"v_lshlrev_b32 v{vLw}, 7, v0")
    A(f"v_add_u32 v{vLw}, s{sLds}, v{vLw}")
    A(f"v_add_u32 v{vLr}, s{sLds}, v{vL16}")
    A(f"s_mov_b64 s[{sAux}:{sAux+1}], s[{sPsk}:{sPsk+1}]")
    srd(A, sAux, 5120)
    A(f"s_mul_i32 s{sB0}, s{sWV}, 40960")
    A(f"s_lshl_b32 s{sB1}, s{sWV}, 6")
    A(f"s_sub_u32 s{sB1}, {G.KVT + 2016 * 2}, s{sB1}")
    A(f"s_mov_b32 s{sCh}, 0")
    A(f"s_sub_u32 s{sT0}, s{sB0}, {3 * 1280}")
    A(f"v_add_u32 v{vT+1}, s{sT0}, v{vL4}")
    def kload(i):
        if i < 3: A(f"buffer_load_dword v{vKR+i}, v{vT+1}, s[{sK}:{sK+3}], 0 offen offset:{1280*i}")
        else:
            A(f"s_add_u32 s{sT0}, s{sB0}, {1280 * (i - 3)}")
            A(f"buffer_load_dword v{vKR+i}, v{vL4}, s[{sK}:{sK+3}], s{sT0} offen")
            A(f"buffer_load_dword v{vVR+i-3}, v{vL4}, s[{sV}:{sV+3}], s{sT0} offen")
    A(f"s_mov_b32 s{sI}, 5")
    La = A.newlabel("kv")
    A.label(La)
    A(f"buffer_load_dwordx4 {v(vW,4)}, v{vL16}, s[{sAux}:{sAux+3}], s{sCh} offen")
    for i in range(19): kload(i)
    A("s_waitcnt vmcnt(32)")
    for c in range(2):
        for h in range(2):
            lo(vSK + 2 * (2 * h) + c, vW + 2 * c + h); hi(vSK + 2 * (2 * h + 1) + c, vW + 2 * c + h)
    for i in range(3):
        lo(vKH + 2 * (i + 1), vKR + i); hi(vKH + 2 * (i + 1) + 1, vKR + i)
    for i in range(32):
        if i < 16:
            kload(19 + i)
            A("s_waitcnt vmcnt(32)")
        else:
            A(f"s_waitcnt vmcnt({2 * (31 - i)})")
        kv = vKV + 2 * (i & 1)
        lo(vKH + 2 * (i & 3), vKR + 3 + i); hi(vKH + 2 * (i & 3) + 1, vKR + 3 + i)
        lo(kv, vVR + i); hi(kv + 1, vVR + i)
        acc, trm = vT + 4, vT + 6
        for m in (3, 2, 1, 0):
            d = acc if m == 3 else trm
            A(f"v_pk_mul_f32 {v(d,2)}, {v(vKH+2*((i-m)&3),2)}, {v(vSK+2*m,2)}")
            rnd(d)
            if m != 3:
                A(f"v_pk_add_f32 {v(acc,2)}, {v(acc,2)}, {v(trm,2)}")
                rnd(acc)
        A(f"v_pk_mul_f32 {v(kv,2)}, {v(acc,2)}, {v(kv,2)}")
        if i & 1:
            for c in range(2):
                A(f"v_cvt_pk_bf16_f32 v{vO+16*c+15-(i>>1)}, v{vKV+2+c}, v{vKV+c}")
    for c in range(2):
        for q in range(4):
            A(f"ds_write_b128 v{vLw}, {v(vO+16*c+4*q,4)} offset:{64*c+16*q}")
    A("s_waitcnt lgkmcnt(0)")
    for m in range(8):
        A(f"ds_read_b128 {v(vO+4*m,4)}, v{vLr} offset:{1024*m}")
    for m in range(8):
        A(f"s_waitcnt lgkmcnt({7-m})")
        A(f"buffer_store_dwordx4 {v(vO+4*m,4)}, v{vSt}, {WSR}, s{sB1} offen sc1")
        A(f"s_add_u32 s{sB1}, s{sB1}, 65536")
    A(f"s_add_u32 s{sB0}, s{sB0}, 256")
    A(f"v_add_u32 v{vT+1}, 256, v{vT+1}")
    A(f"s_add_u32 s{sCh}, s{sCh}, 1024")
    A(f"s_sub_u32 s{sI}, s{sI}, 1")
    A(f"s_cmp_lg_u32 s{sI}, 0")
    A(f"s_cbranch_scc1 {La}")
    A(f"s_lshl_b32 s{sT0}, s{sWV}, 2")
    A(f"s_add_u32 s{sT0}, s{sT0}, {G.GFLAG}")
    A(f"v_mov_b32 v{vT}, 1")
    A("s_waitcnt vmcnt(0)")
    A(f"buffer_store_dword v{vT}, v{vFlagO}, {WSR}, s{sT0} offen sc1")
    G.ostamp(A, 0, 5)
    vAo, vBo, vEo, vCo, vCw, vCo2, vYw, vYr = 20, 21, 22, 23, 24, 25, 26, 27
    vD, vAcc8, vAf, vBf = 28, 72, 104, 112
    vE, vD1, vE1 = 144, 152, 160
    vUw, vDv, vFo, vU = 168, 170, 3, 172
    A(f"v_and_b32 v{vT}, 15, v0")
    A(f"v_lshrrev_b32 v{vT+1}, 4, v0")
    A(f"v_add_u32 v{vT+2}, 1, v{vT}")
    A(f"v_and_b32 v{vT+3}, 7, v{vT+2}")
    A(f"v_mul_u32_u24 v{vT+3}, {CP}, v{vT+3}")
    A(f"v_lshrrev_b32 v{vT+2}, 3, v{vT+2}")
    A(f"v_add_u32 v{vT+2}, v{vT+2}, v{vT+1}")
    A(f"v_lshl_add_u32 v{vAo}, v{vT+2}, 4, v{vT+3}")
    A(f"s_add_u32 s{sT0}, s{sLds}, {FOFF}")
    A(f"v_add_u32 v{vAo}, s{sT0}, v{vAo}")
    A(f"v_add_u32 v{vCw}, s{sT0}, v{vL16}")
    A(f"v_lshlrev_b32 v{vT+2}, 5, v{vT}")
    A(f"v_lshlrev_b32 v{vT+3}, 4, v{vT+1}")
    A(f"v_sub_u32 v{vBo}, v{vT+3}, v{vT+2}")
    A(f"v_add_u32 v{vBo}, {(2032 - 1792) * 2}, v{vBo}")
    A(f"v_add_u32 v{vBo}, s{sLds}, v{vBo}")
    A(f"v_lshlrev_b32 v{vT+3}, 3, v{vT+1}")
    A(f"v_add_u32 v{vT+3}, v{vT+3}, v{vT+2}")
    A(f"v_sub_u32 v{vEo}, {(2044 - 1792) * 2}, v{vT+3}")
    A(f"v_add_u32 v{vEo}, s{sLds}, v{vEo}")
    A(f"s_add_u32 s{sT0}, s{sLds}, {YOFF}")
    A(f"v_add_u32 v{vYw}, s{sT0}, v{vT+3}")
    A(f"v_add_u32 v{vYr}, s{sT0}, v{vL16}")
    A(f"v_subrev_u32 v{vCo}, 32, v{vL16}")
    A(f"v_subrev_u32 v{vCo2}, 16, v{vL16}")
    A(f"v_lshlrev_b32 v{vFo}, 2, v0")
    for r in range(4): A(f"v_mov_b32 v{vT+4+r}, 0")
    A(f"v_min_u32 v{vT+2}, 31, v0")
    A(f"v_lshlrev_b32 v{vT+2}, 4, v{vT+2}")
    A(f"v_add_u32 v{vT+2}, s{sLds}, v{vT+2}")
    A(f"ds_write_b128 v{vT+2}, {v(vT+4,4)} offset:4096")
    A(f"v_add_u32 v{vUw}, s{sLds}, v{vL16}")
    A(f"s_mov_b64 s[{sF}:{sF+1}], s[{sPf}:{sPf+1}]")
    srd(A, sF, 4096)
    A(f"s_lshl_b32 s{sT0}, s{sWV}, 12")
    A(f"s_add_u32 s{sF}, s{sF}, s{sT0}")
    A(f"s_addc_u32 s{sF+1}, s{sF+1}, 0")
    A(f"s_mov_b64 s[{sAux}:{sAux+1}], s[{sPd}:{sPd+1}]")
    srd(A, sAux, 1280)
    A(f"s_lshl_b32 s{sCU}, s{sWV}, 1")
    A(f"s_lshl_b32 s{sB0}, s{sWV}, 12")
    A(f"s_add_u32 s{sB1}, s{sB0}, {G.YT}")
    A(f"s_add_u32 s{sB0}, s{sB0}, {G.KVT}")
    A(f"s_mov_b32 s{sCh}, 0")
    def fetch():
        for m in range(5):
            for h in range(2):
                if m == 0: A(f"buffer_load_dwordx4 {v(vD+4*h,4)}, v{vCo if h == 0 else vCo2}, s[{sF}:{sF+3}], 0 offen")
                else: A(f"buffer_load_dwordx4 {v(vD+8*m+4*h,4)}, v{vL16}, s[{sF}:{sF+3}], 0 offen offset:{1024*m-32+16*h}")
        A(f"v_mov_b32 v{vT}, 0")
        A(f"buffer_load_ushort v{vT+12}, v{vT}, s[{sAux}:{sAux+3}], s{sCU} offen")
        A(f"s_add_u32 s{sCU}, s{sCU}, 128")
        for m in range(4):
            A(f"buffer_load_dwordx4 {v(vU+4*m,4)}, v{vL16}, {WSR}, s{sB0} offen offset:{1024*m} sc1")
        A(f"s_add_u32 s{sB0}, s{sB0}, {64 * 4096}")
        A(f"s_add_u32 s{sF}, s{sF}, {64 * 4096}")
        A(f"s_addc_u32 s{sF+1}, s{sF+1}, 0")
    Lw = A.newlabel("gw")
    A(f"s_mov_b32 s{sT0}, {G.GFLAG}")
    A.label(Lw)
    A("s_sleep 8")
    A(f"buffer_load_dword v{vT}, v{vFo}, {WSR}, s{sT0} offen sc1")
    budget_check(A, 10)
    A("s_waitcnt vmcnt(0)")
    A(f"v_cmp_ne_u32 vcc, 1, v{vT}")
    A(f"s_cbranch_vccnz {Lw}")
    fetch()
    Lc = A.newlabel("chan")
    A.label(Lc)
    A("s_waitcnt vmcnt(0)")
    lo(vDv, vT + 12)
    for m in range(4):
        A(f"ds_write_b128 v{vUw}, {v(vU+4*m,4)} offset:{1024*m}")
    for m in range(5):
        D = vD + 8 * m
        if m == 4:
            A("s_mov_b64 exec, 15")
        for k in range(7): A(f"v_alignbit_b32 v{vE+k}, v{D+k+1}, v{D+k}, 16")
        for k in range(6): A(f"v_mov_b32 v{vD1+k}, v{D+k+1}")
        for k in range(6): A(f"v_mov_b32 v{vE1+k}, v{vE+k+1}")
        src = [D, vE, vD1, vE1, D + 2, vE + 2, vD1 + 2, vE1 + 2]
        for sg in range(8):
            A(f"ds_write_b128 v{vCw}, {v(src[sg],4)} offset:{sg * CP + 1024 * m}")
    A("s_mov_b64 exec, -1")
    A("s_waitcnt lgkmcnt(0)")
    Lnf = A.newlabel("nofetch")
    A(f"s_cmp_eq_u32 s{sCh}, 9")
    A(f"s_cbranch_scc1 {Lnf}")
    fetch()
    A.label(Lnf)
    work = [(dl, T) for dl in range(64) for T in range(dl // 8, 8)]
    NB = 8
    def rdB(n):
        dl, T = work[n]
        A(f"ds_read_b128 {v(vBf+4*(n%NB),4)}, v{vBo} offset:{(7-T)*512 + 64*dl}")
    def rdA(dl): A(f"ds_read_b128 {v(vAf+4*(dl&1),4)}, v{vAo} offset:{64*dl}")
    queue = []
    rdA(0); queue.append(("A", 0))
    LOOK = 6
    for n in range(LOOK): rdB(n); queue.append(("B", n))
    for n, (dl, T) in enumerate(work):
        if T == dl // 8 and dl + 1 < 64:
            rdA(dl + 1); queue.append(("A", dl + 1))
        if n + LOOK < len(work):
            rdB(n + LOOK); queue.append(("B", n + LOOK))
        idx = [queue.index(x) for x in (("A", dl), ("B", n)) if x in queue]
        if idx:
            need = max(idx)
            A(f"s_waitcnt lgkmcnt({len(queue) - 1 - need})")
            queue = queue[need + 1:]
        cc = "0" if dl == 0 else v(vAcc8 + 4 * T, 4)
        A(f"v_mfma_f32_16x16x32_bf16 {v(vAcc8+4*T,4)}, {v(vAf+4*(dl&1),4)}, {v(vBf+4*(n%NB),4)}, {cc}")
    for T in range(8):
        A(f"ds_read_b64 {v(vBf+2*T,2)}, v{vEo} offset:{(7-T)*512}")
    A("s_waitcnt lgkmcnt(0)")
    for T in range(8):
        acc = vAcc8 + 4 * T
        rnd(acc); rnd(acc + 2)
        hi(vT + 4, vBf + 2 * T + 1); lo(vT + 5, vBf + 2 * T + 1); hi(vT + 6, vBf + 2 * T); lo(vT + 7, vBf + 2 * T)
        for r in range(4): A(f"v_mul_f32 v{vT+4+r}, v{vDv}, v{vT+4+r}")
        rnd(vT + 4); rnd(vT + 6)
        A(f"v_pk_add_f32 {v(acc,2)}, {v(acc,2)}, {v(vT+4,2)}")
        A(f"v_pk_add_f32 {v(acc+2,2)}, {v(acc+2,2)}, {v(vT+6,2)}")
        A(f"v_cvt_pk_bf16_f32 v{vT+8}, v{acc}, v{acc+1}")
        A(f"v_cvt_pk_bf16_f32 v{vT+9}, v{acc+2}, v{acc+3}")
        A(f"ds_write_b64 v{vYw}, {v(vT+8,2)} offset:{T*512}")
    A("s_waitcnt lgkmcnt(0)")
    for m in range(4):
        A(f"ds_read_b128 {v(vBf+4*m,4)}, v{vYr} offset:{1024*m}")
    for m in range(4):
        A(f"s_waitcnt lgkmcnt({3-m})")
        A(f"buffer_store_dwordx4 {v(vBf+4*m,4)}, v{vL16}, {WSR}, s{sB1} offen offset:{1024*m} sc1")
    A(f"s_add_u32 s{sB1}, s{sB1}, {64 * 4096}")
    A(f"s_add_u32 s{sCh}, s{sCh}, 1")
    A(f"s_lshl_b32 s{sT0}, s{sWV}, 2")
    A(f"s_add_u32 s{sT0}, s{sT0}, {G.CVFLAG}")
    A(f"v_mov_b32 v{vT}, s{sCh}")
    A("s_waitcnt vmcnt(0)")
    A(f"buffer_store_dword v{vT}, v{vFlagO}, {WSR}, s{sT0} offen sc1")
    A(f"s_cmp_lg_u32 s{sCh}, 10")
    A(f"s_cbranch_scc1 {Lc}")
    G.ostamp(A, 0, 2)

    vYs, vXs, vTr, vDl, vGo2, vFl, vF32, vLin = 20, 21, 22, 23, 24, 25, 26, 27
    vPp, vY, vXv, vGt = 28, 160, 168, 176
    A(f"s_mov_b64 s[{sAux}:{sAux+1}], s[{sPo}:{sPo+1}]")
    srd(A, sAux, 2048 * 1280)
    A(f"v_lshrrev_b32 v{vT}, 2, v0")
    A(f"v_lshlrev_b32 v{vT}, 12, v{vT}")
    A(f"v_and_b32 v{vT+1}, 3, v0")
    A(f"v_lshl_add_u32 v{vYs}, v{vT+1}, 4, v{vT}")
    A(f"v_lshrrev_b32 v{vT}, 3, v0")
    A(f"v_mul_u32_u24 v{vT}, 1280, v{vT}")
    A(f"v_and_b32 v{vT+2}, 7, v0")
    A(f"v_lshl_add_u32 v{vXs}, v{vT+2}, 4, v{vT}")
    A(f"v_lshrrev_b32 v{vT}, 2, v0")
    A(f"v_lshlrev_b32 v{vT}, 6, v{vT}")
    A(f"v_lshl_add_u32 v{vT}, v{vT+1}, 3, v{vT}")
    A(f"v_add_u32 v{vTr}, s{sLds}, v{vT}")
    A(f"v_and_b32 v{vT}, 15, v0")
    A(f"v_lshrrev_b32 v{vT+1}, 4, v0")
    A(f"v_lshlrev_b32 v{vGo2}, 2, v{vT}")
    A(f"v_lshlrev_b32 v{vT}, 7, v{vT}")
    A(f"v_lshl_add_u32 v{vT}, v{vT+1}, 3, v{vT}")
    A(f"s_add_u32 s{sT0}, s{sLds}, 4096")
    A(f"v_add_u32 v{vDl}, s{sT0}, v{vT}")
    A(f"v_add_u32 v{vLin}, s{sT0}, v{vL16}")
    A(f"v_and_b32 v{vF32}, 31, v0")
    A(f"v_lshlrev_b32 v{vF32}, 2, v{vF32}")
    A(f"s_mov_b32 s{sU}, s{sWV}")
    Lm = A.newlabel("mix")
    A.label(Lm)
    A(f"s_mul_i32 s{sSeg}, s{sU}, 3277")
    A(f"s_lshr_b32 s{sSeg}, s{sSeg}, 16")
    A(f"s_mul_i32 s{sT0}, s{sSeg}, 20")
    A(f"s_sub_u32 s{sJ}, s{sU}, s{sT0}")
    A(f"s_lshr_b32 s{sCh}, s{sJ}, 1")
    A(f"s_lshl_b32 s{sT1}, s{sCh}, 7")
    A(f"s_add_u32 s{sT1}, s{sT1}, {G.XPFLAG}")
    A(f"s_mov_b32 s{sT2}, {G.CVFLAG}")
    Lw, Lgo, Lshort = A.newlabel("mw"), A.newlabel("mgo"), A.newlabel("mshort")
    A.label(Lw)
    A(f"buffer_load_dword v{vFl}, v{vF32}, {WSR}, s{sT1} offen sc1")
    A(f"buffer_load_dword v{vT+2}, v{vFo}, {WSR}, s{sT2} offen sc1")
    budget_check(A, 11)
    A("s_waitcnt vmcnt(0)")
    A(f"v_cmp_ge_u32 vcc, s{sSeg}, v{vFl}")
    A(f"v_cmp_ge_u32 s[80:81], s{sCh}, v{vT+2}")
    A("s_or_b64 vcc, vcc, s[80:81]")
    A(f"s_cbranch_vccz {Lgo}")
    A("s_sleep 2")
    A(f"s_cmp_ge_u32 s{sSeg}, {P['nseg'] - 4}")
    A(f"s_cbranch_scc1 {Lw}")
    A(f"s_sleep {P.get('mix_sleep', 64)}")
    A(f"s_branch {Lw}")
    A.label(Lgo)
    if P.get("mix_gate", 1):
        Lq, Lq2 = A.newlabel("mq"), A.newlabel("mq2")
        A(f"s_lshl_b32 s{sT1}, s{sG}, 7")
        A(f"s_add_u32 s{sT1}, s{sT1}, {G.S1MARK}")
        A(f"buffer_load_dword v{vT+2}, v{vFlagO}, {WSR}, s{sT1} offen sc1")
        A("s_waitcnt vmcnt(0)")
        A(f"v_readfirstlane_b32 s{sT2}, v{vT+2}")
        A.label(Lq)
        A(f"s_cmp_ge_u32 s{sT2}, {P['nseg'] - 1}")
        A(f"s_cbranch_scc1 {Lq2}")
        A(f"s_sleep {P.get('mq_sleep', 3)}")
        A(f"buffer_load_dword v{vT+2}, v{vFlagO}, {WSR}, s{sT1} offen sc1")
        budget_check(A, 15)
        A("s_waitcnt vmcnt(0)")
        A(f"v_readfirstlane_b32 s{sT0}, v{vT+2}")
        A(f"s_cmp_eq_u32 s{sT0}, s{sT2}")
        A(f"s_cbranch_scc1 {Lq}")
        A.label(Lq2)
    A(f"s_lshl_b32 s{sT0}, s{sCh}, 18")
    A(f"s_lshl_b32 s{sT1}, s{sSeg}, 6")
    A(f"s_add_u32 s{sT0}, s{sT0}, s{sT1}")
    A(f"s_add_u32 s{sT0}, s{sT0}, {G.YT}")
    A(f"s_mov_b32 m0, s{sLds}")
    for m in range(4):
        if m: A(f"s_add_u32 s{sT0}, s{sT0}, 65536")
        else: A("s_nop 0")
        A(f"buffer_load_dwordx4 v{vYs}, {WSR}, s{sT0} offen sc1 lds")
        A("s_add_u32 m0, m0, 1024")
    A(f"s_and_b32 s{sT0}, s{sJ}, 1")
    A(f"s_lshl_b32 s{sI}, s{sT0}, 5")
    A(f"s_lshl_b32 s{sT1}, s{sSeg}, 1")
    A(f"s_add_u32 s{sT0}, s{sT0}, s{sT1}")
    A(f"s_mul_i32 s{sB1}, s{sT0}, 20480")
    A(f"s_lshl_b32 s{sT1}, s{sCh}, 7")
    A(f"s_add_u32 s{sB1}, s{sB1}, s{sT1}")
    A(f"buffer_load_dwordx4 v{vXs}, {XS}, s{sB1} offen lds")
    A("s_add_u32 m0, m0, 1024")
    A(f"s_add_u32 s{sT1}, s{sB1}, 10240")
    A(f"buffer_load_dwordx4 v{vXs}, {XS}, s{sT1} offen lds")
    A(f"s_lshl_b32 s{sT2}, s{sT0}, 6")
    A(f"s_add_u32 s{sT2}, s{sT2}, {G.GV}")
    A(f"buffer_load_dword v{vGt}, v{vGo2}, {WSR}, s{sT2} offen sc1")
    A(f"s_mul_i32 s{sB0}, s{sSeg}, 655360")
    A(f"s_lshl_b32 s{sT0}, s{sJ}, 15")
    A(f"s_add_u32 s{sB0}, s{sB0}, s{sT0}")
    A(f"s_add_u32 s{sB0}, s{sB0}, {G.XPART}")
    for g in range(8):
        if g: A(f"s_add_u32 s{sB0}, s{sB0}, 4096")
        for ct in range(4):
            A(f"buffer_load_dwordx4 {v(vPp+16*g+4*ct,4)}, v{vL16}, {WSR}, s{sB0} offen offset:{1024*ct} sc1")
    A(f"v_add_u32 v{vT}, s{sI}, v{vTr}")
    A("s_waitcnt vmcnt(32)")
    for ct in range(4):
        A(f"ds_read_b64_tr_b16 {v(vY+2*ct,2)}, v{vT} offset:{1024*ct}")
        A(f"ds_read_b64 {v(vXv+2*ct,2)}, v{vDl} offset:{32*ct}")
    A(f"v_sub_f32 v{vGt+1}, 1.0, v{vGt}")
    A(f"v_cvt_pk_bf16_f32 v{vGt+1}, v{vGt+1}, v{vGt+1}")
    lo(vGt + 1, vGt + 1)
    A("s_waitcnt lgkmcnt(0)")
    for i in range(8):
        lo(vT + 4, vY + i); hi(vT + 5, vY + i); lo(vT + 6, vXv + i); hi(vT + 7, vXv + i)
        A(f"v_pk_mul_f32 {v(vT+4,2)}, {v(vT+4,2)}, {v(vT+6,2)}")
        rnd(vT + 4)
        A(f"v_mul_f32 v{vT+4}, v{vGt+1}, v{vT+4}")
        A(f"v_mul_f32 v{vT+5}, v{vGt+1}, v{vT+5}")
        A(f"v_cvt_pk_bf16_f32 v{vY+i}, v{vT+4}, v{vT+5}")
    for g in range(1, 8):
        A(f"s_waitcnt vmcnt({28 - 4 * g})")
        for i in range(8):
            A(f"v_pk_add_f32 {v(vPp+2*i,2)}, {v(vPp+2*i,2)}, {v(vPp+16*g+2*i,2)}")
    for ct in range(4):
        for h in range(2):
            x = vPp + 4 * ct + 2 * h
            rnd(x)
            A(f"v_mul_f32 v{x}, v{vGt}, v{x}")
            A(f"v_mul_f32 v{x+1}, v{vGt}, v{x+1}")
            rnd(x)
            lo(vT + 4, vY + 2 * ct + h); hi(vT + 5, vY + 2 * ct + h)
            A(f"v_pk_add_f32 {v(x,2)}, {v(x,2)}, {v(vT+4,2)}")
            A(f"v_cvt_pk_bf16_f32 v{vXv+2*ct+h}, v{x}, v{x+1}")
        A(f"ds_write_b64 v{vDl}, {v(vXv+2*ct,2)} offset:{32*ct}")
    A("s_waitcnt lgkmcnt(0)")
    for m in range(2):
        A(f"ds_read_b128 {v(vY+4*m,4)}, v{vLin} offset:{1024*m}")
    A(f"s_add_u32 s{sT1}, s{sB1}, 10240")
    A("s_waitcnt lgkmcnt(1)")
    A(f"buffer_store_dwordx4 {v(vY,4)}, v{vXs}, s[{sAux}:{sAux+3}], s{sB1} offen")
    A("s_waitcnt lgkmcnt(0)")
    A(f"buffer_store_dwordx4 {v(vY+4,4)}, v{vXs}, s[{sAux}:{sAux+3}], s{sT1} offen")
    A(f"s_add_u32 s{sU}, s{sU}, 64")
    A(f"s_cmp_lt_u32 s{sU}, {20 * P['nseg']}")
    A(f"s_cbranch_scc1 {Lm}")
    if P["prof"]: A("s_waitcnt vmcnt(0)")
    G.ostamp(A, 0, 3)
    A("s_endpgm")
```

```python
import sys, math, struct
from asmlib import Asm, v, a, s, check_hazards

NAME = "gated_mix__memory_aug_recurrent_mem_tr__ssm_conv_h3__prompt_kernel"

P = dict(
    s3_miss=0, s3_nop=0, dp=3, near=1, xpf=0, touch=2, wnt=1, ppos=11, dma0=10, nvc=8, mk_pos=2, h1_two=2,
    s3_sleep=16,
    h1_nop=50,
    h2_miss=12,
    h2_sleep=8,
    prof=0,
    nseg=64,
    force_global=0,
)

MEMR   = 0x0
QKVR   = 0x50000
PXR    = 0x170000
PART   = 0x200000
PART_SLOT = 163840
NEARP  = 0x2A0000
POISON_END = 0x2A4000
FLAGS  = 0x2B0000
XFLAG  = FLAGS
XPFLAG = FLAGS + 0x1000
CVFLAG = FLAGS + 0x2000
GFLAG  = FLAGS + 0x2200
S2MARK = FLAGS + 0x2400
S1MARK = FLAGS + 0x2800
FLAGS_END = FLAGS + 0x3000
XR     = 0x2C0000
XR_HEAD = 36864 + 1024
XR_SLOT = 4 * XR_HEAD
XR_G   = 4 * XR_SLOT
XPART  = 0x900000
KVT    = 0x3200000
YT     = 0x3800000
GV     = 0x3500000
PROF   = 0x4000000
MEMDBG = 0x4800000
WS_SIZE = 0x10000000
OOB = 0x20000000
DBG_NEAR, DBG_INIT = 128, 192

XOF = ["sc1", "", "sc1 nt", "sc0 sc1", "nt"]
def f2u(x): return struct.unpack("<I", struct.pack("<f", x))[0]

sWS, sX, sRO, sDBG = 4, 8, 12, 16
sG, sR, sW, sBUD, sS, sXCC = 20, 21, 22, 23, 24, 25
sT0, sT1, sT2, sT3 = 26, 27, 28, 29

WSR = f"s[{sWS}:{sWS+3}]"

def srd(A, base, size):
    A(f"s_and_b32 s{base+1}, s{base+1}, 0xffff")
    A(f"s_mov_b32 s{base+2}, {size}")
    A(f"s_mov_b32 s{base+3}, 0x20000")

def budget_check(A, code):
    A(f"s_sub_u32 s{sBUD}, s{sBUD}, 1")
    A(f"s_movk_i32 s{sT3}, {code}")
    A(f"s_cbranch_scc1 L_fail")

def dense_poll(A, regs, issue, missing, code):
    L, Lok = A.newlabel("dp"), A.newlabel("dpok")
    n = len(regs)
    for i, r in enumerate(regs):
        issue(r)
        if i < n - 1: A("s_sleep 1")
    A.label(L)
    for r in regs:
        A(f"s_waitcnt vmcnt({n-1})")
        A(f"{missing(r)} {Lok}")
        issue(r)
    budget_check(A, code)
    A(f"s_branch {L}")
    A.label(Lok)

def stamp(A, idx, vt=250):
    if P["prof"] not in (1, 2) and not (P["prof"] == 4 and vt == 250 and idx == 6): return
    A(f"s_memrealtime s[90:91]")
    A(f"s_waitcnt lgkmcnt(0)")
    A(f"v_writelane_b32 v{vt}, s90, {idx}")
    if P["prof"] == 2:
        A(f"s_memtime s[90:91]")
        A(f"s_waitcnt lgkmcnt(0)")
        A(f"v_writelane_b32 v{vt}, s90, {idx+8}")

def ostamp(A, row, idx, vt=254):
    if not P["prof"]: return
    A("s_memrealtime s[90:91]")
    A("s_lshl_b32 s92, s2, 2")
    A(f"s_add_u32 s92, s92, s{sW}")
    A("s_mul_i32 s92, s92, 80")
    A(f"s_add_u32 s92, s92, {row}")
    A("s_lshl_b32 s92, s92, 6")
    A(f"s_add_u32 s92, s92, {PROF + 4 * idx}")
    A("s_waitcnt lgkmcnt(0)")
    A(f"v_mov_b32 v{vt}, s90")
    A(f"v_mov_b32 v{vt+1}, 0")
    A("s_mov_b64 exec, 1")
    A(f"buffer_store_dword v{vt}, v{vt+1}, s[{sWS}:{sWS+3}], s92 offen")
    A("s_mov_b64 exec, -1")

def fstamp(A, idx, vt):
    if P["prof"] not in (3, 5): return
    A(f"s_mem{'real' if P['prof'] == 5 else ''}time s[{60+2*idx}:{61+2*idx}]")

def fstamp_collect(A, n, vt):
    if P["prof"] not in (3, 5): return
    A("s_waitcnt lgkmcnt(0)")
    for i in range(n):
        A(f"v_writelane_b32 v{vt}, s{60+2*i}, {i}")

def stamp_flush(A, vt=250, vtmp=251):
    if not P["prof"] or (P["prof"] == 4 and vt != 250): return
    A(f"s_lshl_b32 s90, s2, 2")
    A(f"s_add_u32 s90, s90, s{sW}")
    A(f"s_mul_i32 s90, s90, 80")
    A(f"s_add_u32 s90, s90, s{sS}")
    A(f"s_add_u32 s90, s90, 4")
    A(f"s_lshl_b32 s90, s90, 6")
    A(f"s_add_u32 s90, s90, {PROF}")
    A(f"v_lshlrev_b32 v{vtmp}, 2, v0")
    A(f"s_mov_b64 exec, 0xffff")
    A(f"buffer_store_dword v{vt}, v{vtmp}, s[{sWS}:{sWS+3}], s90 offen")
    A(f"s_mov_b64 exec, -1")

def gen_init(A):
    A.label("L_init")
    A("v_mov_b32 v4, -1\nv_mov_b32 v5, -1\nv_mov_b32 v6, -1\nv_mov_b32 v7, -1")
    A(f"s_load_dwordx2 s[{sRO}:{sRO+1}], s[0:1], 8")
    A(f"s_lshl_b32 s{sT0}, s{sW}, 6")
    A(f"v_add_u32 v9, s{sT0}, v0")
    A("v_lshlrev_b32 v1, 4, v9")
    A(f"s_sub_u32 s{sT0}, s2, 224")
    A(f"s_lshl_b32 s{sT0}, s{sT0}, 12")
    for base, size in ((QKVR, PXR + 8 * 49152 - QKVR), (PART, 4 * PART_SLOT)):
        A(f"s_add_u32 s{sT1}, s{sT0}, {base}")
        for i in range(size // 131072):
            A(f"buffer_store_dwordx4 v[4:7], v1, {WSR}, s{sT1} offen sc1")
            A(f"s_add_u32 s{sT1}, s{sT1}, 131072")
        assert size % 131072 == 0
    Lm, Lf, Ld = A.newlabel("im"), A.newlabel("if"), A.newlabel("id")
    A(f"s_cmp_eq_u32 s{sR}, 31")
    A(f"s_cbranch_scc1 {Lm}")
    A(f"s_cmp_eq_u32 s{sR}, 30")
    A(f"s_cbranch_scc1 {Lf}")
    A(f"s_mul_i32 s{sT1}, s{sG}, 40960")
    A(f"s_sub_u32 s{sT0}, s{sR}, 28")
    A(f"s_mul_i32 s{sT0}, s{sT0}, 15360")
    A(f"s_add_u32 s{sT1}, s{sT1}, s{sT0}")
    A(f"s_add_u32 s{sT1}, s{sT1}, 10240")
    for i in range(4):
        if i == 3:
            A("v_cmp_gt_u32 vcc, 192, v9")
            A(f"v_mov_b32 v2, {OOB}")
            A("s_nop 0")
            A("v_cndmask_b32 v1, v2, v1, vcc")
        A(f"buffer_store_dwordx4 v[4:7], v1, {WSR}, s{sT1} offen sc1")
        A(f"s_add_u32 s{sT1}, s{sT1}, 4096")
    A(f"s_branch {Ld}")
    A.label(Lf)
    A("v_mov_b32 v4, 0\nv_mov_b32 v5, 0\nv_mov_b32 v6, 0\nv_mov_b32 v7, 0")
    A("v_cmp_gt_u32 vcc, 96, v9")
    A(f"v_mov_b32 v2, {OOB}")
    A(f"s_mul_i32 s{sT1}, s{sG}, 1536")
    A("v_cndmask_b32 v1, v2, v1, vcc")
    A(f"s_add_u32 s{sT1}, s{sT1}, {FLAGS}")
    A(f"buffer_store_dwordx4 v[4:7], v1, {WSR}, s{sT1} offen sc1")
    A(f"s_branch {Ld}")
    A.label(Lm)
    A("s_waitcnt lgkmcnt(0)")
    srd(A, sRO, 10240)
    A(f"s_mul_i32 s{sT1}, s{sG}, 40960")
    for i in range(3):
        A(f"v_add_u32 v2, {256 * i}, v9")
        A("v_lshrrev_b32 v3, 6, v2")
        A("v_and_b32 v8, 7, v2")
        A("v_bfe_u32 v16, v2, 3, 1")
        A("v_bfe_u32 v10, v2, 4, 2")
        A("v_mul_u32_u24 v8, 1280, v8")
        A("v_lshl_add_u32 v8, v3, 7, v8")
        A("v_lshl_add_u32 v8, v10, 5, v8")
        A("v_lshl_add_u32 v8, v16, 2, v8")
        A("v_cmp_gt_u32 vcc, 640, v2")
        A(f"v_mov_b32 v11, {OOB}")
        A("v_lshlrev_b32 v2, 4, v2")
        A("v_cndmask_b32 v8, v11, v8, vcc")
        A("v_cndmask_b32 v2, v11, v2, vcc")
        for q in range(4):
            A(f"buffer_load_dword v{12+q}, v8, s[{sRO}:{sRO+3}], 0 offen offset:{8*q}")
        A("s_waitcnt vmcnt(0)")
        for q in range(4):
            A(f"v_min_u32 v{12+q}, -2, v{12+q}")
        A(f"buffer_store_dwordx4 v[12:15], v2, {WSR}, s{sT1} offen sc1")
        A("s_nop 1")
    A.label(Ld)
    A("s_waitcnt vmcnt(0) lgkmcnt(0)")
    A("s_barrier")
    Ln = A.newlabel("in")
    A(f"s_cmp_lg_u32 s{sW}, 0")
    A(f"s_cbranch_scc1 {Ln}")
    A("v_mov_b32 v2, 1")
    A(f"v_mov_b32 v3, {DBG_INIT}")
    A("s_mov_b64 exec, 1")
    A(f"buffer_atomic_add v2, v3, s[{sDBG}:{sDBG+3}], 0 offen")
    A("s_mov_b64 exec, -1")
    A.label(Ln)
    A(f"s_cmp_lt_u32 s{sR}, 30")
    A("s_cbranch_scc1 L_xs")
    A("s_branch L_bg")

def gen_common_prologue(A):
    A("s_cmp_ge_u32 s2, 256")
    A("s_cbranch_scc1 L_end")
    A(f"s_load_dwordx2 s[{sWS}:{sWS+1}], s[0:1], 128")
    A(f"s_load_dwordx2 s[{sX}:{sX+1}], s[0:1], 0")
    A(f"s_load_dwordx2 s[{sDBG}:{sDBG+1}], s[0:1], 120")
    A("v_lshrrev_b32 v1, 6, v0")
    A(f"s_and_b32 s{sG}, s2, 7")
    A(f"v_readfirstlane_b32 s{sW}, v1")
    A("v_and_b32 v0, 63, v0")
    A(f"s_lshr_b32 s{sR}, s2, 3")
    A(f"s_getreg_b32 s{sXCC}, hwreg(HW_REG_XCC_ID)")
    A(f"s_mov_b32 s{sBUD}, 400000")
    A("s_waitcnt lgkmcnt(0)")
    srd(A, sWS, WS_SIZE)
    srd(A, sX, 2048 * 1280)
    srd(A, sDBG, 256)
    ostamp(A, 0, 0)
    L = A.newlabel("nocensus")
    A(f"s_cmp_lg_u32 s{sW}, 0")
    A(f"s_cbranch_scc1 {L}")
    A(f"s_mul_i32 s{sT0}, s{sXCC}, 6")
    A(f"s_lshl_b64 s[{sT2}:{sT3}], 1, s{sT0}")
    A(f"s_cmp_lt_u32 s{sXCC}, 8")
    A(f"s_cselect_b64 s[{sT2}:{sT3}], s[{sT2}:{sT3}], 0")
    A(f"s_add_u32 s{sT3}, s{sT3}, 0x1000000")
    A(f"v_mov_b32 v2, s{sT2}")
    A(f"v_mov_b32 v3, s{sT3}")
    A(f"s_lshl_b32 s{sT0}, s{sG}, 3")
    A(f"v_mov_b32 v4, s{sT0}")
    A("s_mov_b64 exec, 1")
    A(f"buffer_atomic_add_x2 v[2:3], v4, s[{sDBG}:{sDBG+3}], 0 offen")
    A("s_mov_b64 exec, -1")
    A.label(L)

def gen_locality(A, lab_local, lab_global, vt):
    L = A.newlabel("loc")
    A(f"v_lshlrev_b32 v{vt}, 2, v0")
    A(f"s_lshl_b32 s93, s{sG}, 1")
    A(f"s_add_u32 s94, s93, 1")
    A.label(L)
    A(f"buffer_load_dword v{vt+1}, v{vt}, s[{sDBG}:{sDBG+3}], 0 offen sc1")
    budget_check(A, 1)
    A("s_waitcnt vmcnt(0)")
    A(f"v_readlane_b32 s{sT0}, v{vt+1}, s93")
    A(f"v_readlane_b32 s{sT1}, v{vt+1}, s94")
    A(f"v_readlane_b32 s{sT3}, v{vt+1}, {DBG_INIT // 4}")
    A(f"s_lshr_b32 s{sT2}, s{sT1}, 24")
    A(f"s_min_u32 s{sT2}, s{sT2}, s{sT3}")
    A(f"s_cmp_lt_u32 s{sT2}, 32")
    A(f"s_cbranch_scc1 {L}")
    if lab_local is None: return
    if P["force_global"]:
        A(f"s_branch {lab_global}")
    A(f"s_and_b32 s{sT1}, s{sT1}, 0xffffff")
    A(f"s_mul_i32 s{sT2}, s{sXCC}, 6")
    A(f"s_lshl_b64 s[{sT2}:{sT3}], 32, s{sT2}")
    A(f"s_cmp_eq_u64 s[{sT0}:{sT1}], s[{sT2}:{sT3}]")
    A(f"s_cbranch_scc0 {lab_global}")
    A(f"s_cmp_lt_u32 s{sXCC}, 8")
    A(f"s_cbranch_scc0 {lab_global}")
    A(f"s_branch {lab_local}")


def gen_s1(A):
    sU, sHH, sTY, sKS = 30, 31, 32, 33
    sPartRd, sMem0, sMem1, sMem2, sQkv, sMemP, sQkvP = 34, 35, 36, 37, 38, 39, 40
    sXr, sXrEnd, sXrBase, sXflag, sXsrc, sLdsW = 41, 42, 43, 44, 45, 46
    sPartBase, sMemBase, sQkvBase, sXbuf, sH2 = 47, 48, 49, 50, 51
    vL16, vMemSt, vQkvSt, vIdx, vXg, vXrd, vXsum, vPois, vFlagO = 1, 2, 3, 4, 5, 6, 7, 8, 9
    vSel = 128
    vH = 132
    vHld, vHw, vHr, vMkO = 144, 145, 146, 147
    vH2 = 148
    vNearO = 160
    sMk, sMkW = 58, 59
    MEML = 81920
    vT = 10
    vM = 20
    vPt = 60
    vA = 76
    vMx = 84
    vXA = 88
    vXB = 104
    vXO = 120
    A.label("L_s1")
    A(f"s_lshl_b32 s{sU}, s{sR}, 2")
    A(f"s_add_u32 s{sU}, s{sU}, s{sW}")
    A(f"s_mul_i32 s{sHH}, s{sU}, 3641")
    A(f"s_lshr_b32 s{sHH}, s{sHH}, 16")
    A(f"s_mul_i32 s{sT0}, s{sHH}, 18")
    A(f"s_sub_u32 s{sT0}, s{sU}, s{sT0}")
    A(f"s_mul_i32 s{sTY}, s{sT0}, 43")
    A(f"s_lshr_b32 s{sTY}, s{sTY}, 8")
    A(f"s_mul_i32 s{sT1}, s{sTY}, 6")
    A(f"s_sub_u32 s{sKS}, s{sT0}, s{sT1}")
    A("s_load_dwordx4 s[52:55], s[0:1], 16")
    A("s_load_dwordx2 s[56:57], s[0:1], 32")
    A(f"v_lshlrev_b32 v{vL16}, 4, v0")
    A(f"s_and_b32 s{sT2}, s{sW}, 1")
    A(f"s_lshl_b32 s{sT3}, s{sT2}, 2")
    A(f"v_lshrrev_b32 v{vT}, 3, v0")
    A(f"v_and_b32 v{vT+1}, 2, v{vT}")
    A(f"v_or_b32 v{vT+1}, s{sT3}, v{vT+1}")
    A(f"v_xor_b32 v{vT+1}, v0, v{vT+1}")
    A(f"v_and_b32 v{vT+1}, 7, v{vT+1}")
    A(f"v_mul_u32_u24 v{vT}, 12288, v{vT}")
    A(f"v_lshl_add_u32 v{vT}, v{vT+1}, 4, v{vT}")
    A("s_waitcnt lgkmcnt(0)")
    A(f"s_cmp_eq_u32 s{sTY}, 1")
    A(f"s_cselect_b64 s[{sRO}:{sRO+1}], s[54:55], s[52:53]")
    A(f"s_cmp_eq_u32 s{sTY}, 2")
    A(f"s_cselect_b64 s[{sRO}:{sRO+1}], s[56:57], s[{sRO}:{sRO+1}]")
    srd(A, sRO, 640 * 12288)
    A(f"s_lshl_b32 s{sT0}, s{sG}, 2")
    A(f"s_add_u32 s{sT0}, s{sT0}, s{sHH}")
    A(f"s_mul_i32 s{sT0}, s{sT0}, 384")
    A(f"s_lshr_b32 s{sT1}, s{sKS}, 1")
    A(f"s_lshl_b32 s{sT1}, s{sT1}, 7")
    A(f"s_add_u32 s{sT0}, s{sT0}, s{sT1}")
    A(f"s_mul_i32 s{sT1}, s{sT2}, {8 * 12288}")
    A(f"s_add_u32 s{sT0}, s{sT0}, s{sT1}")
    A(f"s_lshr_b32 s{sLdsW}, s{sW}, 1")
    A(f"s_mul_i32 s{sLdsW}, s{sLdsW}, 40960")
    A(f"s_lshl_b32 s{sT1}, s{sT2}, 10")
    A(f"s_add_u32 m0, s{sLdsW}, s{sT1}")
    A("s_nop 0")
    for i in range(40):
        A(f"buffer_load_dwordx4 v{vT}, s[{sRO}:{sRO+3}], s{sT0} offen{' nt' if P['wnt'] else ''} lds")
        if i < 39:
            A(f"s_add_u32 m0, m0, {2048 + (40960 if i == 19 else 0)}")
            A(f"s_add_u32 s{sT0}, s{sT0}, {16 * 12288}")
    A(f"s_lshl_b32 s{sT0}, s{sU}, 10")
    A(f"s_add_u32 s{sT0}, s{sT0}, 8192")
    A(f"buffer_load_dwordx4 v[{vM}:{vM+3}], v{vL16}, s[{sX}:{sX+3}], s{sT0} offen")
    A(f"v_and_b32 v{vT+1}, 15, v0")
    A(f"v_lshrrev_b32 v{vT+2}, 4, v0")
    A(f"v_cmp_gt_u32 vcc, 8, v{vT+1}")
    A(f"v_mov_b32 v{vT+3}, 0xeeee")
    A(f"v_mov_b32 v{vT+4}, 0x4444")
    A(f"v_cndmask_b32 v{vIdx}, v{vT+3}, v{vT+4}, vcc")
    A(f"v_mov_b32 v{vPois}, -1")
    A(f"v_lshrrev_b32 v{vXg}, 2, v0")
    A(f"v_mul_u32_u24 v{vXg}, 1280, v{vXg}")
    A(f"v_sub_u32 v{vT+3}, 0, v{vT+2}")
    A(f"v_xor_b32 v{vT+3}, v0, v{vT+3}")
    A(f"v_and_b32 v{vT+3}, 3, v{vT+3}")
    A(f"v_lshl_add_u32 v{vXg}, v{vT+3}, 4, v{vXg}")
    A(f"v_lshrrev_b32 v{vT+3}, 2, v{vT+1}")
    A(f"v_sub_u32 v{vT+3}, 0, v{vT+3}")
    A(f"v_xor_b32 v{vT+3}, v{vT+2}, v{vT+3}")
    A(f"v_and_b32 v{vT+3}, 3, v{vT+3}")
    A(f"v_lshl_add_u32 v{vT+3}, v{vT+1}, 2, v{vT+3}")
    A(f"v_lshlrev_b32 v{vXrd}, 4, v{vT+3}")
    A(f"v_lshlrev_b32 v{vXsum}, 5, v{vT+3}")
    A(f"v_add_u32 v{vXsum}, 40960, v{vXsum}")
    A(f"v_lshrrev_b32 v{vT+3}, 2, v{vT+1}")
    A(f"v_and_b32 v{vT+4}, 1, v{vT+1}")
    A(f"v_lshlrev_b32 v{vT+4}, 4, v{vT+4}")
    A(f"v_mov_b32 v{vT+5}, 0x3f80")
    A(f"v_lshlrev_b32 v{vT+4}, v{vT+4}, v{vT+5}")
    for r in range(4):
        A(f"v_cmp_eq_u32 vcc, {r}, v{vT+3}")
        A("s_nop 1")
        A(f"v_cndmask_b32 v{vSel+r}, 0, v{vT+4}, vcc")
    A(f"s_lshl_b32 s{sT0}, s{sW}, 10")
    A(f"v_add_u32 v{vHld}, s{sT0}, v{vL16}")
    A(f"v_add_u32 v{vHw}, {MEML}, v{vHld}")
    A(f"v_add_u32 v{vHr}, {MEML}, v{vL16}")
    A(f"s_cmp_ge_u32 s{sU}, 40")
    A(f"s_cselect_b32 s{sT0}, 40, 0")
    A(f"s_sub_u32 s{sT0}, s{sU}, s{sT0}")
    A(f"s_lshr_b32 s{sPartBase}, s{sT0}, 2")
    A(f"s_lshl_b32 s{sPartBase}, s{sPartBase}, 14")
    A(f"s_and_b32 s{sT1}, s{sT0}, 3")
    A(f"s_lshl_b32 s{sT1}, s{sT1}, 11")
    A(f"s_add_u32 s{sPartBase}, s{sPartBase}, s{sT1}")
    A(f"s_add_u32 s{sPartBase}, s{sPartBase}, {PART}")
    A(f"v_and_b32 v{vT+3}, 7, v0")
    A(f"v_bfe_u32 v{vT+4}, v0, 4, 1")
    A(f"v_lshl_add_u32 v{vT+3}, v{vT+4}, 3, v{vT+3}")
    A(f"v_lshlrev_b32 v{vT+3}, 4, v{vT+3}")
    A(f"v_bfe_u32 v{vT+4}, v0, 3, 1")
    A(f"v_lshl_add_u32 v{vT+3}, v{vT+4}, 3, v{vT+3}")
    A(f"v_lshrrev_b32 v{vT+4}, 5, v0")
    A(f"v_lshl_add_u32 v{vT+3}, v{vT+4}, 2, v{vT+3}")
    A(f"s_lshl_b32 s{sT0}, s{sT0}, 8")
    A(f"s_cmp_ge_u32 s{sU}, 40")
    A(f"s_cselect_b32 s{sT0}, {OOB}, s{sT0}")
    A(f"v_add_u32 v{vMemSt}, s{sT0}, v{vT+3}")
    A(f"v_bfe_u32 v{vT+3}, v0, 4, 1")
    A(f"v_lshrrev_b32 v{vT+4}, 5, v0")
    A(f"v_lshlrev_b32 v{vT+3}, 2, v{vT+3}")
    A(f"v_lshl_add_u32 v{vT+3}, v{vT+4}, 1, v{vT+3}")
    A(f"s_and_b32 s{sT0}, s{sKS}, 1")
    A(f"s_lshr_b32 s{sT1}, s{sKS}, 1")
    A(f"s_lshl_b32 s{sT1}, s{sT1}, 10")
    A(f"v_lshrrev_b32 v{vT+4}, 2, v{vT+1}")
    A(f"v_lshl_add_u32 v{vT+4}, v{vT+4}, 4, v{vT+3}")
    A(f"v_lshlrev_b32 v{vT+4}, 4, v{vT+4}")
    A(f"v_and_b32 v{vT+5}, 3, v{vT+1}")
    A(f"v_lshl_add_u32 v{vT+4}, v{vT+5}, 2, v{vT+4}")
    A(f"s_lshl_b32 s{sT2}, s{sT0}, 7")
    A(f"s_add_u32 s{sT2}, s{sT2}, s{sT1}")
    A(f"v_add_u32 v{vT+4}, s{sT2}, v{vT+4}")
    A(f"v_lshrrev_b32 v{vT+5}, 3, v{vT+1}")
    A(f"v_lshl_add_u32 v{vT+5}, v{vT+5}, 4, v{vT+3}")
    A(f"v_and_b32 v{vT+6}, 1, v{vT+1}")
    A(f"v_lshl_add_u32 v{vT+5}, v{vT+6}, 3, v{vT+5}")
    A(f"v_lshlrev_b32 v{vT+5}, 4, v{vT+5}")
    A(f"v_bfe_u32 v{vT+6}, v{vT+1}, 1, 2")
    A(f"v_lshl_add_u32 v{vT+5}, v{vT+6}, 2, v{vT+5}")
    A(f"s_lshl_b32 s{sT2}, s{sT0}, 9")
    A(f"s_add_u32 s{sT2}, s{sT2}, s{sT1}")
    A(f"v_add_u32 v{vT+5}, s{sT2}, v{vT+5}")
    A(f"s_cmp_eq_u32 s{sTY}, 2")
    A(f"s_cselect_b64 vcc, -1, 0")
    A(f"v_cndmask_b32 v{vQkvSt}, v{vT+4}, v{vT+5}, vcc")
    A(f"v_cmp_eq_u32 vcc, 0, v0")
    A(f"v_mov_b32 v{vT+4}, {OOB}")
    A("s_nop 0")
    A(f"v_cndmask_b32 v{vFlagO}, v{vT+4}, v0, vcc")
    A(f"s_lshl_b32 s{sT0}, s{sG}, 2")
    A(f"s_add_u32 s{sT0}, s{sT0}, {DBG_NEAR}")
    A(f"v_mov_b32 v{vNearO}, s{sT0}")
    A(f"v_min_u32 v{vMkO}, 9, v0")
    A(f"v_lshlrev_b32 v{vMkO}, 2, v{vMkO}")
    A(f"s_lshl_b32 s{sMk}, s{sG}, 7")
    A(f"s_lshl_b32 s{sT0}, s{sR}, 2")
    A(f"s_add_u32 s{sMkW}, s{sMk}, s{sT0}")
    A(f"s_add_u32 s{sMkW}, s{sMkW}, {S1MARK}")
    A(f"s_cmp_eq_u32 s{sW}, 0")
    A(f"s_cselect_b32 s{sMkW}, s{sMkW}, {OOB}")
    A(f"s_add_u32 s{sMk}, s{sMk}, {S2MARK}")
    A(f"s_cmp_lt_u32 s{sW}, 2")
    A(f"s_cselect_b32 s{sH2}, 8192, 0")
    A(f"s_mul_i32 s{sMemBase}, s{sG}, 40960")
    A(f"s_mul_i32 s{sT0}, s{sHH}, 3")
    A(f"s_add_u32 s{sT0}, s{sT0}, s{sTY}")
    A(f"s_mul_i32 s{sQkvBase}, s{sG}, 147456")
    A(f"s_mul_i32 s{sT1}, s{sT0}, 3072")
    A(f"s_add_u32 s{sQkvBase}, s{sQkvBase}, s{sT1}")
    A(f"s_add_u32 s{sQkvBase}, s{sQkvBase}, {QKVR}")
    A(f"s_mul_i32 s{sXrBase}, s{sG}, {XR_G}")
    A(f"s_lshl_b32 s{sT1}, s{sU}, 1")
    A(f"s_add_u32 s{sT1}, s{sT1}, s{sHH}")
    A(f"s_lshl_b32 s{sT1}, s{sT1}, 10")
    A(f"s_add_u32 s{sXrBase}, s{sXrBase}, s{sT1}")
    A(f"s_add_u32 s{sXrBase}, s{sXrBase}, {XR}")
    A(f"s_add_u32 s{sXrEnd}, s{sXrBase}, {XR_G}")
    A(f"s_mov_b32 s{sXr}, s{sXrBase}")
    A(f"s_lshl_b32 s{sXflag}, s{sG}, 9")
    A(f"s_lshl_b32 s{sT1}, s{sU}, 2")
    A(f"s_add_u32 s{sXflag}, s{sXflag}, s{sT1}")
    A(f"s_add_u32 s{sXflag}, s{sXflag}, {XFLAG}")
    A(f"v_bfe_u32 v{vT+3}, v0, 2, 2")
    A(f"v_lshl_add_u32 v{vT+4}, v{vT+2}, 3, v{vT+3}")
    A(f"v_lshlrev_b32 v{vT+4}, 7, v{vT+4}")
    A(f"v_and_b32 v{vT+5}, 1, v0")
    A(f"v_lshl_add_u32 v{vT+4}, v{vT+5}, 3, v{vT+4}")
    A(f"v_add_u32 v{vT+4}, s{sLdsW}, v{vT+4}")
    A(f"v_and_b32 v{vT+3}, 2, v{vT+3}")
    A(f"v_and_b32 v{vT+5}, 1, v{vT+2}")
    A(f"v_lshl_add_u32 v{vT+3}, v{vT+5}, 2, v{vT+3}")
    A(f"v_bfe_u32 v{vT+5}, v0, 1, 1")
    A(f"s_and_b32 s{sT0}, s{sW}, 1")
    A(f"s_lshl_b32 s{sT0}, s{sT0}, 2")
    A(f"v_or_b32 v{vT+5}, s{sT0}, v{vT+5}")
    A(f"v_xor_b32 v{vT+5}, v{vT+5}, v{vT+3}")
    A(f"v_xor_b32 v{vT+6}, 2, v{vT+5}")
    A(f"v_lshl_add_u32 v{vT+5}, v{vT+5}, 4, v{vT+4}")
    A(f"v_lshl_add_u32 v{vT+6}, v{vT+6}, 4, v{vT+4}")
    def trhalf(h):
        for kd in range(10 * h, 10 * h + 10):
            for t in range(2):
                for hf in range(2):
                    A(f"ds_read_b64_tr_b16 a[{80*t+4*kd+2*hf}:{80*t+4*kd+2*hf+1}], v{vT+5+t} offset:{(kd%10)*4096+hf*512}")
    A("s_waitcnt vmcnt(21)")
    A("s_barrier")
    trhalf(0)
    A(f"v_add_u32 v{vT+5}, 81920, v{vT+5}")
    A(f"v_add_u32 v{vT+6}, 81920, v{vT+6}")
    A("s_waitcnt lgkmcnt(0)")
    A("s_barrier")
    A(f"s_mul_i32 s{sXsrc}, s{sW}, 320")
    A(f"s_mul_i32 s{sLdsW}, s{sW}, 10240")
    A(f"s_mov_b32 s{sXbuf}, 0")
    def xdma():
        A(f"s_add_u32 m0, s{sLdsW}, s{sXbuf}")
        for i in range(5):
            for tt in range(2):
                A(f"s_add_u32 s{sT0}, s{sXsrc}, {tt * 20480 + i * 64}")
                A(f"buffer_load_dwordx4 v{vXg}, s[{sX}:{sX+3}], s{sT0} offen lds")
                if not (i == 4 and tt == 1):
                    A("s_add_u32 m0, m0, 1024")
        A(f"s_add_u32 s{sXsrc}, s{sXsrc}, 40960")
        A(f"s_sub_u32 s{sXbuf}, 40960, s{sXbuf}")
    xdma()
    A("s_waitcnt vmcnt(10)")
    A("s_barrier")
    trhalf(1)
    ostamp(A, 0, 1)
    A(f"s_mov_b32 s{sS}, -2")
    gen_locality(A, "L_s1_loc", "L_s1_glb", vT)

    for mode in ("loc", "glb"):
        sc = "" if mode == "loc" else " sc1"
        Lb, Ls3, Lh1, Lslow, Lcont, Lnox = [f"L_s1_{mode}_{x}" for x in ("bub", "s3", "h1", "slow", "cont", "nox")]
        A.label(f"L_s1_{mode}")
        A("s_waitcnt lgkmcnt(0)")
        A.label(Lb)
        A(f"s_add_u32 s{sT0}, s{sS}, 1")
        A(f"v_mov_b32 v{vT+2}, s{sT0}")
        A(f"v_add_u32 v{vT+3}, 2, v{vT+2}")
        A("s_barrier")
        A(f"buffer_store_dword v{vT+2}, v{vFlagO}, {WSR}, s{sMkW} offen{sc}")
        stamp(A, 5)
        fstamp(A, 5, 250)
        def house():
            return [f"buffer_load_dword v{vT+4}, v{vNearO}, s[{sDBG}:{sDBG+3}], 0 offen sc1",
                f"s_cmp_lt_i32 s{sS}, 1",
                f"s_cselect_b32 s{sMemP}, {OOB}, s{sMemP}",
                f"s_cselect_b32 s{sQkvP}, {OOB}, s{sQkvP}",
                f"buffer_store_dword v{vPois}, v{vMemSt}, {WSR}, s{sMemP} offen{sc}",
                f"buffer_store_dword v{vPois}, v{vQkvSt}, {WSR}, s{sQkvP} offen{sc}",
                f"buffer_store_dword v{vPois}, v{vQkvSt}, {WSR}, s{sQkvP} offen offset:16{sc}",
                f"s_and_b32 s{sT1}, s{sS}, 3",
                f"s_mul_i32 s{sPartRd}, s{sT1}, {PART_SLOT}",
                f"s_add_u32 s{sPartRd}, s{sPartRd}, s{sPartBase}",
                f"s_mul_i32 s{sMemP}, s{sT1}, 10240",
                f"s_add_u32 s{sMemP}, s{sMemP}, s{sMemBase}",
                f"s_add_u32 s{sT1}, s{sS}, 3",
                f"s_and_b32 s{sT1}, s{sT1}, 3",
                f"s_mul_i32 s{sQkvP}, s{sT1}, 36864",
                f"s_add_u32 s{sQkvP}, s{sQkvP}, s{sQkvBase}",
                f"s_add_u32 s{sT1}, s{sS}, 1",
                f"s_and_b32 s{sT1}, s{sT1}, 3",
                f"s_mul_i32 s{sMem0}, s{sT1}, 10240",
                f"s_add_u32 s{sMem0}, s{sMem0}, s{sMemBase}",
                f"s_add_u32 s{sMem1}, s{sMem0}, 4096",
                f"s_add_u32 s{sMem2}, s{sMem0}, s{sH2}",
                f"s_mul_i32 s{sQkv}, s{sT1}, 36864",
                f"s_add_u32 s{sQkv}, s{sQkv}, s{sQkvBase}"]
        Lxd = A.newlabel("xdone")
        A(f"s_cmp_ge_i32 s{sS}, {P['nseg'] - 2}")
        A(f"s_cbranch_scc1 {Lnox}")
        fstamp(A, 6, 250)
        if P["prof"] in (3, 5): A("s_waitcnt lgkmcnt(0)")
        A(f"ds_read_b128 v[{vXB}:{vXB+3}], v{vXrd}")
        A(f"ds_read_b128 v[{vXB+4}:{vXB+7}], v{vXrd} offset:1024")
        A(f"s_add_u32 m0, s{sLdsW}, s{sXbuf}")
        hk = house()
        A(hk.pop(0))
        for kd in range(20):
            cur = vXB + 8 * (kd & 1); nxt = vXB + 8 * ((kd + 1) & 1)
            if kd < 19:
                A(f"ds_read_b128 v[{nxt}:{nxt+3}], v{vXrd} offset:{(2*kd+2)*1024}")
                A(f"ds_read_b128 v[{nxt+4}:{nxt+7}], v{vXrd} offset:{(2*kd+3)*1024}")
                A("s_waitcnt lgkmcnt(2)")
            else:
                A("s_waitcnt lgkmcnt(0)")
            n = 0
            for tt in range(2):
                for t in range(2):
                    acc = vXA + 4 * (2 * tt + t)
                    c = "0" if kd == 0 else v(acc, 4)
                    A(f"v_mfma_f32_16x16x32_bf16 {v(acc,4)}, {a(80*t+4*kd,4)}, {v(cur+4*tt,4)}, {c}")
                    D0 = P["dma0"]; dk = kd - D0
                    if 0 <= dk < 10:
                        if n == 0: A(f"s_add_u32 s{sT0}, s{sXsrc}, {(dk & 1) * 20480 + (dk >> 1) * 64}")
                        if n == 1: A(f"buffer_load_dwordx4 v{vXg}, s[{sX}:{sX+3}], s{sT0} offen lds")
                        if n == 2: A("s_add_u32 m0, m0, 1024")
                    elif n < 3 and hk: A(hk.pop(0))
                    n += 1
        assert not hk
        fstamp(A, 7, 250)
        A(f"s_add_u32 s{sXsrc}, s{sXsrc}, 40960")
        A(f"s_sub_u32 s{sXbuf}, 40960, s{sXbuf}")
        A(f"v_sub_u32 v{vXrd}, v{vXsum}, v{vXrd}")
        A(f"s_mov_b32 s{sT0}, s{sXr}")
        A(f"s_add_u32 s{sXr}, s{sXr}, {XR_SLOT}")
        A(f"s_cmp_eq_u32 s{sXr}, s{sXrEnd}")
        A(f"s_cselect_b32 s{sXr}, s{sXrBase}, s{sXr}")
        for tt in range(2):
            for r in range(4):
                A(f"v_cvt_pk_bf16_f32 v{vXO+4*tt+r}, v{vXA+8*tt+r}, v{vXA+8*tt+4+r}")
            A(f"buffer_store_dwordx4 {v(vXO+4*tt,4)}, v{vL16}, {WSR}, s{sT0} offen offset:{1024*tt}{sc}")
        fstamp(A, 8, 250)
        fstamp(A, 9, 250)
        A(f"s_branch {Lxd}")
        A.label(Lnox)
        for x in house(): A(x)
        A.label(Lxd)
        stamp(A, 6)
        fstamp_collect(A, 11, 250)
        stamp_flush(A)
        A(f"s_add_u32 s{sS}, s{sS}, 1")
        A("s_waitcnt vmcnt(0)")
        A(f"buffer_store_dword v{vT+3}, v{vFlagO}, {WSR}, s{sXflag} offen{sc}")
        A(f"v_readfirstlane_b32 s{sT0}, v{vT+4}")
        A(f"s_cmp_eq_u32 s{sT0}, {2 if mode == 'loc' and P['near'] else 99}")
        A(f"s_cselect_b32 s{sT0}, 8192, 0")
        A(f"s_add_u32 s{sPartRd}, s{sPartRd}, s{sT0}")
        A(f"s_cmp_lt_i32 s{sS}, 0")
        A(f"s_cbranch_scc1 {Lb}")
        A(f"s_cmp_eq_u32 s{sS}, {P['nseg']}")
        A("s_cbranch_scc1 L_end")
        A(f"s_cmp_eq_u32 s{sS}, 0")
        A(f"s_cbranch_scc1 {Lh1}")
        if mode == "loc":
            def miss(r):
                A(f"v_cmp_gt_u32 vcc, s{sS}, v{r}")
                if P["s3_miss"] == 0: return "s_cbranch_vccz"
                A(f"s_and_b32 s{sT0}, vcc_lo, 0x3ff")
                A(f"s_bcnt1_i32_b32 s{sT0}, s{sT0}")
                A(f"s_cmp_gt_u32 s{sT0}, {P['s3_miss']}")
                return "s_cbranch_scc0"
            Lg = A.newlabel("gate")
            A(f"s_cmp_lg_u32 s{sW}, 0")
            A(f"s_cbranch_scc1 {Lg}")
            dense_poll(A, [vT + i for i in range(P["dp"])], lambda r: A(f"buffer_load_dword v{r}, v{vMkO}, {WSR}, s{sMk} offen sc1"), miss, 13)
            A.label(Lg)
            A("s_barrier")
        if P["s3_nop"]: A.nop(P["s3_nop"])
        fstamp(A, 10, 250)
        A.label(Ls3)
        stamp(A, 0)
        fstamp(A, 0, 250)
        for i in range(2):
            A(f"buffer_load_dwordx4 {v(vPt+4*i,4)}, v{vL16}, {WSR}, s{sPartRd} offen offset:{1024*i} sc1")
        A("s_waitcnt vmcnt(1)")
        A(f"v_mfma_f32_16x16x32_bf16 {v(vT,4)}, {v(vSel,4)}, {v(vPt,4)}, 0")
        A("s_waitcnt vmcnt(0)")
        A(f"v_mfma_f32_16x16x32_bf16 {v(vT,4)}, {v(vSel,4)}, {v(vPt+4,4)}, {v(vT,4)}")
        A.nop(8)
        A(f"v_cmp_u_f32 vcc, v{vT}, v{vT+1}")
        A(f"v_cvt_pk_bf16_f32 v{vT+4}, v{vT}, v{vT+1}")
        A(f"s_cbranch_vccnz {Lslow}")
        A.label(Lcont)
        A(f"buffer_store_dword v{vT+4}, v{vMemSt}, {WSR}, s{sMem0} offen{sc}")
        stamp(A, 1)
        fstamp(A, 1, 250)
        if P.get("memdbg"):
            A(f"s_mul_i32 s{sT0}, s{sS}, 10240")
            A(f"s_add_u32 s{sT0}, s{sT0}, {MEMDBG}")
            A(f"buffer_store_dword v{vT+4}, v{vMemSt}, {WSR}, s{sT0} offen")
        if P["h1_nop"]: A.nop(P["h1_nop"])
        A.label(Lh1)
        Lretry, Lhok = f"L_s1_{mode}_h1retry", f"L_s1_{mode}_h1ok"
        def h1ld(b):
            for i in range(3):
                A(f"buffer_load_dwordx4 {v(b+4*i,4)}, v{vHld}, {WSR}, s{(sMem0, sMem1, sMem2)[i]} offen sc1")
        def h1chk(b, later):
            A(f"s_waitcnt vmcnt({2+later})")
            A(f"ds_write_b128 v{vHw}, {v(b,4)}")
            A(f"v_max3_u32 v{vMx}, v{b}, v{b+1}, v{b+2}")
            A(f"s_waitcnt vmcnt({1+later})")
            A(f"ds_write_b128 v{vHw}, {v(b+4,4)} offset:4096")
            A(f"v_max3_u32 v{vMx}, v{b+3}, v{b+4}, v{vMx}")
            A(f"v_max3_u32 v{vMx}, v{b+5}, v{b+6}, v{vMx}")
            A(f"s_waitcnt vmcnt({later})")
            A(f"ds_write_b128 v{vHw}, {v(b+8,4)} offset:8192")
            A(f"v_max3_u32 v{vMx}, v{b+7}, v{b+8}, v{vMx}")
            A(f"v_max3_u32 v{vMx}, v{b+9}, v{b+10}, v{vMx}")
            A(f"v_max_u32 v{vMx}, v{b+11}, v{vMx}")
            A(f"v_cmp_eq_u32 vcc, -1, v{vMx}")
            A("s_waitcnt lgkmcnt(0)")
        h1ld(vH)
        fstamp(A, 2, 250)
        for r in range(8):
            A(f"v_mov_b32 v{vA+r}, 0")
        if P["h1_two"]:
            A(f"s_sleep {P['h1_two']}")
            h1ld(vH2)
            h1chk(vH, 3)
        else:
            h1chk(vH, 0)
        A(f"s_cbranch_vccnz {Lretry}")
        A.label(Lhok)
        A("s_barrier")
        fstamp(A, 3, 250)
        if P["prof"] in (3, 5): A("s_waitcnt lgkmcnt(0)")
        for j in range(10):
            A(f"ds_read_b128 {v(vM+4*j,4)}, v{vHr} offset:{1024*j}")
        for j in range(10):
            A(f"s_waitcnt lgkmcnt({9-j})")
            A(f"v_smfmac_f32_16x16x64_bf16 {v(vA,4)}, {v(vM+4*j,4)}, {a(8*j,8)}, v{vIdx}")
            A(f"v_smfmac_f32_16x16x64_bf16 {v(vA+4,4)}, {v(vM+4*j,4)}, {a(80+8*j,8)}, v{vIdx}")
        A.nop(7)
        A(f"v_permlane32_swap_b32 v{vA}, v{vA+2}")
        A(f"v_permlane32_swap_b32 v{vA+1}, v{vA+3}")
        A(f"v_permlane32_swap_b32 v{vA+4}, v{vA+6}")
        A(f"v_permlane32_swap_b32 v{vA+5}, v{vA+7}")
        A(f"v_add_f32 v{vA}, v{vA}, v{vA+2}")
        A(f"v_add_f32 v{vA+4}, v{vA+4}, v{vA+6}")
        A(f"v_add_f32 v{vA+1}, v{vA+1}, v{vA+3}")
        A(f"v_add_f32 v{vA+5}, v{vA+5}, v{vA+7}")
        A(f"v_cvt_pk_bf16_f32 v{vT}, v{vA}, v{vA+4}")
        A(f"buffer_store_dword v{vT}, v{vQkvSt}, {WSR}, s{sQkv} offen{sc}")
        A(f"v_cvt_pk_bf16_f32 v{vT+1}, v{vA+1}, v{vA+5}")
        A(f"buffer_store_dword v{vT+1}, v{vQkvSt}, {WSR}, s{sQkv} offen offset:16{sc}")
        stamp(A, 4)
        fstamp(A, 4, 250)
        A(f"s_branch {Lb}")
        A.label(Lretry)
        stamp(A, 3)
        budget_check(A, 3)
        if P["h1_two"]:
            h1ld(vH)
            h1chk(vH2, 3)
            A(f"s_cbranch_vccz {Lhok}")
            h1ld(vH2)
            h1chk(vH, 3)
            A(f"s_cbranch_vccz {Lhok}")
            A(f"s_branch {Lretry}")
        else:
            A(f"s_branch {Lh1}")
        A.label(Lslow)
        A(f"v_max3_u32 v{vMx}, v{vPt}, v{vPt+1}, v{vPt+2}")
        for i in range(3, 7, 2):
            A(f"v_max3_u32 v{vMx}, v{vPt+i}, v{vPt+i+1}, v{vMx}")
        A(f"v_max_u32 v{vMx}, v{vPt+7}, v{vMx}")
        A(f"v_cmp_eq_u32 vcc, -1, v{vMx}")
        A(f"v_min_u32 v{vT+4}, -2, v{vT+4}")
        A(f"s_cbranch_vccz {Lcont}")
        budget_check(A, 2)
        A(f"s_branch {Ls3}")

def gen_s2(A):
    sJ = 30
    sQkv, sQkvBase, sPartW, sPartP, sPartBase, sXk, sXv, sXrBase, sXrEnd = 31, 32, 33, 34, 35, 36, 37, 38, 39
    sPx, sPxBase, sXp, sXpF, sXfl, sMark, sMk1, sC, sNeed = 40, 41, 42, 43, 44, 45, 46, 47, 48
    sQkv1, sQkv2 = 49, 50
    sXk1, sXk2, sXv1, sXv2 = 51, 52, 53, 54
    sLo = 56
    sSt0, sSt1, sSt2, sSt3 = 58, 59, 88, 89
    vL16, vKmO, vIdx, vRedW, vRedR, vPartO, vL8, vFlagO, vXflO, vProbe, vRed2R = 1, 2, 3, 4, 5, 6, 7, 8, 9, 10, 11
    vPois = 12
    vT = 16
    vQ, vKM, vVM = 32, 44, 56
    vFl, vMx, vMark = 68, 69, 98
    vOne32, vOne16 = 70, 74
    vS, vSM, vW = 76, 92, 96
    vVA, vF, vDen, vPb = 100, 116, 132, 136
    vVOM2 = (142, 228)
    vRed2W = 99
    fin_parts = {}
    vVOX, vXA, vPX = 152, 184, 216
    aKX, aVX = 96, 144
    vXOUT = 24
    RED, RED2 = 98304, 106496
    c = (192 ** -0.5) * math.log2(math.e)
    A.label("L_s2")
    A(f"s_sub_u32 s{sJ}, s{sR}, 18")
    A(f"s_load_dwordx2 s[{sRO}:{sRO+1}], s[0:1], 40")
    A(f"v_lshlrev_b32 v{vL16}, 4, v0")
    A(f"v_lshrrev_b32 v{vT}, 3, v0")
    A(f"v_mul_u32_u24 v{vT}, 1280, v{vT}")
    A(f"v_and_b32 v{vT+1}, 7, v0")
    A(f"v_lshl_add_u32 v{vT}, v{vT+1}, 4, v{vT}")
    A(f"s_lshl_b32 s{sT0}, s{sG}, 2")
    A(f"s_add_u32 s{sT0}, s{sT0}, s{sW}")
    A(f"s_mul_i32 s{sT0}, s{sT0}, {192 * 1280}")
    A(f"s_lshl_b32 s{sT1}, s{sJ}, 7")
    A(f"s_add_u32 s{sT0}, s{sT0}, s{sT1}")
    A(f"s_mul_i32 s{sT2}, s{sW}, 24576")
    A(f"s_mov_b32 m0, s{sT2}")
    A("s_waitcnt lgkmcnt(0)")
    srd(A, sRO, 6144 * 1280)
    for i in range(24):
        A(f"buffer_load_dwordx4 v{vT}, s[{sRO}:{sRO+3}], s{sT0} offen{' nt' if P['wnt'] else ''} lds")
        if i < 23:
            A("s_add_u32 m0, m0, 1024")
            A(f"s_add_u32 s{sT0}, s{sT0}, {8 * 1280}")
    A(f"v_and_b32 v{vT+1}, 15, v0")
    A(f"v_lshrrev_b32 v{vT+2}, 4, v0")
    A(f"v_cmp_gt_u32 s[{sLo}:{sLo+1}], 8, v{vT+1}")
    A(f"v_mov_b32 v{vT+3}, 0xeeee")
    A(f"v_mov_b32 v{vT+4}, 0x4444")
    A(f"v_cndmask_b32 v{vIdx}, v{vT+3}, v{vT+4}, s[{sLo}:{sLo+1}]")
    for r in range(4): A(f"v_mov_b32 v{vPois+r}, -1")
    A(f"v_lshlrev_b32 v{vL8}, 3, v0")
    A(f"v_mov_b32 v{vT+3}, 0x3f803f80")
    for r in range(4): A(f"v_mov_b32 v{vOne32+r}, v{vT+3}")
    A(f"v_cmp_gt_u32 vcc, 32, v0")
    A("s_nop 1")
    for r in range(2): A(f"v_cndmask_b32 v{vOne16+r}, 0, v{vT+3}, vcc")
    A(f"s_lshl_b32 s{sT0}, s{sW}, 11")
    A(f"s_add_u32 s{sT0}, s{sT0}, {RED}")
    A(f"v_lshrrev_b32 v{vT+3}, 1, v0")
    A(f"v_and_b32 v{vT+3}, 8, v{vT+3}")
    A(f"v_xor_b32 v{vT+3}, v0, v{vT+3}")
    A(f"v_lshl_add_u32 v{vRedW}, v{vT+3}, 4, s{sT0}")
    A(f"v_and_b32 v{vT+3}, 15, v0")
    A(f"v_bfe_u32 v{vT+4}, v0, 3, 2")
    A(f"v_lshl_add_u32 v{vT+3}, v{vT+4}, 4, v{vT+3}")
    A(f"s_lshr_b32 s{sT1}, s{sW}, 1")
    A(f"s_lshl_b32 s{sT1}, s{sT1}, 3")
    A(f"v_xor_b32 v{vT+3}, s{sT1}, v{vT+3}")
    A(f"s_and_b32 s{sT0}, s{sW}, 1")
    A(f"s_lshl_b32 s{sT0}, s{sT0}, 10")
    A(f"s_add_u32 s{sT0}, s{sT0}, {RED}")
    A(f"v_lshl_add_u32 v{vRedR}, v{vT+3}, 4, s{sT0}")
    A(f"s_lshl_b32 s{sT0}, s{sW}, 11")
    A(f"s_add_u32 s{sT0}, s{sT0}, {RED2}")
    A(f"v_add_u32 v{vRed2R}, s{sT0}, v{vL16}")
    A(f"s_lshl_b32 s{sT0}, s{sW}, 13")
    A(f"s_add_u32 s{sT0}, s{sT0}, {RED2}")
    A(f"v_add_u32 v{vRed2W}, s{sT0}, v{vL16}")
    A(f"v_and_b32 v{vT+4}, 7, v0")
    A(f"v_bfe_u32 v{vT+5}, v0, 4, 1")
    A(f"v_lshl_add_u32 v{vT+4}, v{vT+5}, 3, v{vT+4}")
    A(f"v_lshlrev_b32 v{vT+4}, 4, v{vT+4}")
    A(f"v_and_b32 v{vT+5}, 8, v0")
    A(f"v_add_u32 v{vT+4}, v{vT+5}, v{vT+4}")
    A(f"v_lshrrev_b32 v{vT+5}, 5, v0")
    A(f"v_lshl_add_u32 v{vPartO}, v{vT+5}, 13, v{vT+4}")
    A(f"v_mov_b32 v{vT+3}, {OOB}")
    A(f"v_cmp_eq_u32 vcc, 0, v0")
    A("s_nop 1")
    A(f"v_cndmask_b32 v{vFlagO}, v{vT+3}, v0, vcc")
    A(f"v_min_u32 v{vXflO}, 11, v0")
    A(f"v_lshlrev_b32 v{vXflO}, 2, v{vXflO}")
    A(f"v_min_u32 v{vProbe}, 17, v0")
    A(f"v_lshlrev_b32 v{vProbe}, 2, v{vProbe}")
    A(f"s_mul_i32 s{sQkvBase}, s{sG}, 147456")
    A(f"s_mul_i32 s{sT0}, s{sW}, 9216")
    A(f"s_add_u32 s{sQkvBase}, s{sQkvBase}, s{sT0}")
    A(f"s_add_u32 s{sQkvBase}, s{sQkvBase}, {QKVR}")
    A(f"s_lshl_b32 s{sPartBase}, s{sJ}, 14")
    A(f"s_lshl_b32 s{sT0}, s{sW}, 11")
    A(f"s_add_u32 s{sPartBase}, s{sPartBase}, s{sT0}")
    A(f"s_lshl_b32 s{sT0}, s{sG}, 8")
    A(f"s_add_u32 s{sPartBase}, s{sPartBase}, s{sT0}")
    A(f"s_add_u32 s{sPartBase}, s{sPartBase}, {PART}")
    A(f"s_mul_i32 s{sXrBase}, s{sG}, {XR_G}")
    A(f"s_mul_i32 s{sT0}, s{sW}, {XR_HEAD}")
    A(f"s_add_u32 s{sXrBase}, s{sXrBase}, s{sT0}")
    A(f"s_add_u32 s{sXrBase}, s{sXrBase}, {0x5000000 if P.get('x_fixkv') else XR}")
    A(f"s_add_u32 s{sXrEnd}, s{sXrBase}, {XR_G}")
    A(f"s_mul_i32 s{sPxBase}, s{sG}, 49152")
    A(f"s_mul_i32 s{sT0}, s{sW}, 3072")
    A(f"s_add_u32 s{sPxBase}, s{sPxBase}, s{sT0}")
    A(f"s_add_u32 s{sPxBase}, s{sPxBase}, {PXR}")
    A(f"s_lshl_b32 s{sXp}, s{sJ}, 16")
    A(f"s_lshl_b32 s{sT0}, s{sG}, 12")
    A(f"s_add_u32 s{sXp}, s{sXp}, s{sT0}")
    A(f"s_lshl_b32 s{sT0}, s{sW}, 10")
    A(f"s_add_u32 s{sXp}, s{sXp}, s{sT0}")
    A(f"s_add_u32 s{sXp}, s{sXp}, {XPART}")
    A(f"s_lshl_b32 s{sXpF}, s{sJ}, 7")
    A(f"s_lshl_b32 s{sT0}, s{sG}, 4")
    A(f"s_add_u32 s{sXpF}, s{sXpF}, s{sT0}")
    A(f"s_lshl_b32 s{sT0}, s{sW}, 2")
    A(f"s_add_u32 s{sXpF}, s{sXpF}, s{sT0}")
    A(f"s_add_u32 s{sXpF}, s{sXpF}, {XPFLAG}")
    A(f"s_lshl_b32 s{sXfl}, s{sG}, 9")
    A(f"s_mul_i32 s{sT0}, s{sW}, 72")
    A(f"s_add_u32 s{sXfl}, s{sXfl}, s{sT0}")
    A(f"s_add_u32 s{sXfl}, s{sXfl}, {XFLAG + 24}")
    A(f"s_lshl_b32 s{sMk1}, s{sG}, 7")
    A(f"s_lshl_b32 s{sT0}, s{sJ}, 2")
    A(f"s_add_u32 s{sMark}, s{sMk1}, s{sT0}")
    A(f"s_add_u32 s{sMark}, s{sMark}, {S2MARK}")
    A(f"s_cmp_eq_u32 s{sW}, 0")
    A(f"s_cselect_b32 s{sMark}, s{sMark}, {OOB}")
    A(f"s_add_u32 s{sMk1}, s{sMk1}, {S1MARK}")
    A(f"s_mov_b32 s{sC}, {f2u(c):#x}")
    A(f"v_bfe_u32 v{vT+3}, v0, 3, 1")
    A(f"v_bfe_u32 v{vT+4}, v0, 2, 1")
    A(f"v_lshl_add_u32 v{vT+3}, v{vT+4}, 4, v{vT+3}")
    A(f"v_lshl_add_u32 v{vT+3}, v{vT+2}, 2, v{vT+3}")
    A(f"v_lshlrev_b32 v{vT+3}, 7, v{vT+3}")
    A(f"v_and_b32 v{vT+4}, 3, v0")
    A(f"v_lshl_add_u32 v{vT+3}, v{vT+4}, 3, v{vT+3}")
    A(f"v_add_u32 v{vT+3}, s{sT2}, v{vT+3}")
    for ks in range(6):
        A(f"s_waitcnt vmcnt({24 - 4 * (ks + 1)})")
        for ct in range(4):
            for hf in range(2):
                A(f"ds_read_b64_tr_b16 a[{24*ct+4*ks+2*hf}:{24*ct+4*ks+2*hf+1}], v{vT+3} offset:{ks*4096+hf*256+ct*32}")
    A("s_waitcnt lgkmcnt(0)")
    ostamp(A, 0, 1)
    def xflag_wait(have_loaded):
        L, Lok = A.newlabel("xfl"), A.newlabel("xflok")
        if have_loaded:
            A(f"v_cmp_gt_u32 vcc, s{sNeed}, v{vFl}")
            A(f"s_cbranch_vccz {Lok}")
        A.label(L)
        A(f"buffer_load_dword v{vFl}, v{vXflO}, {WSR}, s{sXfl} offen sc1")
        budget_check(A, 4)
        A("s_waitcnt vmcnt(0)")
        A(f"v_cmp_gt_u32 vcc, s{sNeed}, v{vFl}")
        A(f"s_cbranch_vccnz {L}")
        A.label(Lok)
    def xload(dst, t, ks, so):
        off = ks * 2048 + t * 1024
        A(f"buffer_load_dwordx4 {a(dst + 4 * (6 * t + ks), 4)}, v{vL16}, {WSR}, s{so[off // 4096]} offen offset:{off % 4096} sc1")
    gen_locality(A, None, None, vT)
    if P["touch"]:
        A(f"s_lshl_b32 s{sT1}, s{sJ}, 2")
        A(f"s_add_u32 s{sT1}, s{sT1}, s{sW}")
        for base, per_g, n in ((XR, XR_G, 15),) * (P['touch'] > 1) + ((QKVR, 147456, 4), (PXR, 49152, 2), (MEMR, 40960, 1)):
            A(f"s_mul_i32 s{sT0}, s{sG}, {per_g}")
            A(f"s_mul_i32 s{sT2}, s{sT1}, {n * 1024}")
            A(f"s_min_u32 s{sT2}, s{sT2}, {per_g - n * 1024}")
            A(f"s_add_u32 s{sT0}, s{sT0}, s{sT2}")
            A(f"s_add_u32 s{sT0}, s{sT0}, {base}")
            for i in range(n):
                if i and i % 4 == 0: A(f"s_add_u32 s{sT0}, s{sT0}, 4096")
                A(f"buffer_load_dwordx4 {v(vQ,4)}, v{vL16}, {WSR}, s{sT0} offen offset:{1024*(i%4)} sc1")
    A(f"s_mov_b32 s{sNeed}, 1")
    xflag_wait(False)
    A(f"s_add_u32 s{sXv}, s{sXrBase}, 24576")
    A(f"s_add_u32 s{sXv1}, s{sXv}, 4096")
    A(f"s_add_u32 s{sXv2}, s{sXv}, 8192")
    for ks in range(6):
        for t in range(2): xload(aVX, t, ks, (sXv, sXv1, sXv2))
    A(f"s_mov_b32 s{sXk}, s{sXrBase}")
    A(f"s_mov_b32 s{sS}, -1")
    A(f"v_mov_b32 v{vFl}, 0")
    A("s_waitcnt vmcnt(0)")

    Lbub, Latt, Lretry, Lnost, Lnox = "L_s2_bub", "L_s2_att", "L_s2_retry", "L_s2_nost", "L_s2_nox"
    for par in range(2):
        voxc = vVOX + 16 * par
        voxn = vVOX + 16 * (1 - par)
        vomc, vomo = vVOM2[par], vVOM2[1 - par]
        vVOM = vomc
        sfx = f"_{par}"
        if par == 0:
            A(f"s_branch {Lbub}_1")
        A.label(f"L_s2_top{sfx}")
        def miss(r):
            A(f"v_cmp_ge_i32 vcc, s{sS}, v{r}")
            if P["h2_miss"] == 0: return "s_cbranch_vccz"
            A(f"s_and_b32 s{sT0}, vcc_lo, 0x3ffff")
            A(f"s_bcnt1_i32_b32 s{sT0}, s{sT0}")
            A(f"s_cmp_gt_u32 s{sT0}, {P['h2_miss']}")
            return "s_cbranch_scc0"
        Lg = A.newlabel("gate")
        A(f"s_cmp_lg_u32 s{sW}, 0")
        A(f"s_cbranch_scc1 {Lg}")
        dense_poll(A, [vT + i for i in range(P["dp"])], lambda r: A(f"buffer_load_dword v{r}, v{vProbe}, {WSR}, s{sMk1} offen sc1"), miss, 5)
        A.label(Lg)
        A("s_barrier")
        A.label(Latt + sfx)
        stamp(A, 0, 252)
        fstamp(A, 0, 252)
        fill = [f"v_mov_b32 v{vVA+r}, 0" for r in range(16)] + [f"s_add_u32 s{sT0}, s{sS}, 1", f"v_mov_b32 v{vMark}, s{sT0}",
                f"v_mov_b32 v{vMx}, 0", f"v_mov_b32 v{vW}, 0xff7fffff", f"v_mov_b32 v{vW+1}, 0xff7fffff"]
        lds_ = [f"buffer_load_dwordx4 {v(base+4*j,4)}, v{vL16}, {WSR}, s{so} offen offset:{1024*j} sc1"
                for base, so in ((vQ, sQkv), (vKM, sQkv1), (vVM, sQkv2)) for j in range(3)]
        NI = P.get("h2_first", 6)
        issued = 0
        for x in lds_[:NI]:
            A(x); issued += 1
            for _ in range(4):
                if fill: A(fill.pop(0))
        for x in fill: A(x)
        def more(n=1):
            nonlocal issued
            for _ in range(n):
                if issued < len(lds_):
                    A(lds_[issued]); issued += 1
        def need(i): A(f"s_waitcnt vmcnt({issued - 1 - i})")
        NVC = P["nvc"]
        vall = [(t, ks) for ks in range(6) for t in range(2)]
        vcrit = vall[12 - NVC:]
        vpos = {}
        def vmore():
            nonlocal issued
            if len(vpos) < NVC:
                e = vcrit[len(vpos)]
                xload(aVX, e[0], e[1], (sXv, sXv1, sXv2))
                vpos[e] = issued; issued += 1
        def chk(r0): return f"v_max3_u32 v{vMx}, v{r0}, v{r0+1}, v{vMx}"
        DPP = "row_ror:8 row_mask:0xf bank_mask:"
        for j in range(3):
            need(j)
            if j == 0: fstamp(A, 1, 252)
            k = 0
            for t in range(2):
                for pr in range(2):
                    acc = vS + 4 * (2 * t + pr)
                    cc = "0" if j == 0 else v(acc, 4)
                    A(f"v_mfma_f32_16x16x32_bf16 {v(acc,4)}, {a(aKX+4*(6*t+2*j+pr),4)}, {v(vQ+4*j,4)}, {cc}")
                    if k < 2: A(chk(vQ + 4 * j + 2 * k))
                    if k == 2: more()
                    k += 1
        more(99)
        smf = [f"v_smfmac_f32_16x16x64_bf16 {v(vVA+4*ct,4)}, {v(vVM+4*j,4)}, {a(24*ct+8*j,8)}, v{vIdx}" for j in range(3) for ct in range(4)]
        chks = [chk(vVM + 2 * i) for i in range(6)]
        vals = [vS + r for r in range(4)] + [vW, vW + 1]
        vm, vt2 = vT, vT + 1
        xa = [f"v_add_f32_dpp v{vS+r}, v{vS+4+r}, v{vS+r} {DPP}0xf" for r in range(4)] + [f"v_add_f32_dpp v{vS+r}, v{vS+8+r}, v{vS+12+r} {DPP}0xc" for r in range(4)]
        def smm(j):
            need(3 + j)
            A(f"v_mfma_f32_16x16x32_bf16 {v(vSM,4)}, {v(vKM+4*j,4)}, {v(vQ+4*j,4)}, {'0' if j == 0 else v(vSM,4)}")
            A(chk(vKM + 4 * j)); A(chk(vKM + 4 * j + 2))
        smm(0); smm(1)
        for x in xa[:4]: A(x)
        smm(2)
        fstamp(A, 2, 252)
        A(f"v_cmp_eq_u32 vcc, -1, v{vMx}")
        for x in xa[4:]: A(x)
        A(f"v_max3_f32 v{vm}, v{vals[0]}, v{vals[1]}, v{vals[2]}")
        A(f"v_permlane32_swap_b32 v{vSM}, v{vSM+1}")
        A(f"v_permlane32_swap_b32 v{vSM+2}, v{vSM+3}")
        need(6)
        fstamp(A, 3, 252)
        A(smf[0])
        A(f"v_add_f32_dpp v{vW}, v{vSM+1}, v{vSM} {DPP}0x3")
        A(f"v_add_f32_dpp v{vW+1}, v{vSM+3}, v{vSM+2} {DPP}0x3")
        A(smf[1])
        A(f"v_max3_f32 v{vm}, v{vals[3]}, v{vals[4]}, v{vm}")
        A(f"v_max_f32 v{vm}, v{vals[5]}, v{vm}")
        A(smf[2])
        A(f"s_cbranch_vccnz {Lretry}{sfx}")
        A(f"v_max_f32_dpp v{vm}, v{vm}, v{vm} {DPP}0xf")
        A(f"v_mov_b32 v{vt2}, v{vm}")
        A(smf[3]); A(chks[0])
        A(f"v_permlane32_swap_b32 v{vm}, v{vt2}")
        A(f"v_max_f32 v{vm}, v{vm}, v{vt2}")
        A(f"v_mov_b32 v{vt2}, v{vm}")
        need(7)
        A(smf[4])
        A(f"v_permlane16_swap_b32 v{vm}, v{vt2}")
        A(f"v_max_f32 v{vm}, v{vm}, v{vt2}")
        A(smf[5])
        A(f"v_mul_f32 v{vm}, s{sC}, v{vm}")
        fm = [f"v_fma_f32 v{x}, v{x}, s{sC}, -v{vm}" for x in vals]
        ex = [f"v_exp_f32 v{x}, v{x}" for x in vals]
        A(fm[0])
        A(smf[6]); A(fm[1]); A(fm[2])
        A(smf[7]); A(fm[3]); need(8)
        A(smf[8]); A(ex[0])
        A(smf[9]); A(ex[1])
        vmore()
        A(smf[10]); A(ex[2])
        A(smf[11]); A(ex[3])
        A(fm[4]); A(fm[5])
        vmore()
        A(f"v_cvt_pk_bf16_f32 v{vPb}, v{vals[0]}, v{vals[1]}")
        A(f"v_cvt_pk_bf16_f32 v{vPb+1}, v{vals[2]}, v{vals[3]}")
        A(ex[4])
        A(f"v_mov_b32_dpp v{vPb+2}, v{vPb} {DPP}0xf")
        A(f"v_mov_b32_dpp v{vPb+3}, v{vPb+1} {DPP}0xf")
        A(ex[5])
        A(chks[1])
        vmore()
        def fin32(ct): A(f"v_mfma_f32_16x16x32_bf16 {v(vF+4*ct,4)}, {v(voxc+4*ct,4)}, {v(vPb,4)}, 0")
        def fin16(ct): A(f"v_mfma_f32_16x16x16_bf16 {v(vF+4*ct,4)}, {v(vVOM+2*ct,2)}, {v(vPb+4,2)}, {v(vF+4*ct,4)}")
        def cvom(ct):
            A(f"v_cvt_pk_bf16_f32 v{vVOM+2*ct}, v{vVA+4*ct}, v{vVA+4*ct+2}")
            A(f"v_cvt_pk_bf16_f32 v{vVOM+2*ct+1}, v{vVA+4*ct+1}, v{vVA+4*ct+3}")
        fin32(0)
        A(f"v_cvt_pk_bf16_f32 v{vPb+4}, v{vals[4]}, v{vals[5]}")
        A(f"v_mov_b32 v{vPb+5}, v{vPb+4}")
        A(f"v_mfma_f32_16x16x32_bf16 {v(vDen,4)}, {v(vOne32,4)}, {v(vPb,4)}, 0")
        A(chks[2]); A(chks[3])
        fin32(1)
        A(f"v_permlane32_swap_b32 v{vPb+4}, v{vPb+5}")
        fin32(2); cvom(0)
        vmore()
        A(f"v_mfma_f32_16x16x16_bf16 {v(vDen,4)}, {v(vOne16,2)}, {v(vPb+4,2)}, {v(vDen,4)}")
        cvom(1)
        fin32(3); cvom(2)
        fin16(0); cvom(3)
        vmore()
        fin16(1); A(chks[4]); A(chks[5])
        fin16(2)
        A(f"v_cmp_eq_u32 vcc, -1, v{vMx}")
        A(f"v_rcp_f32 v{vT+4}, v{vDen}")
        fin16(3)
        fstamp(A, 4, 252)
        fstamp(A, 5, 252)
        if len(vpos) < NVC: vmore()
        else: A("s_nop 0")
        A(f"v_mov_b32_dpp v{vT+4}, v{vT+4} {DPP}0xc")
        A("s_nop 1")
        for pc in range(2):
            for r in range(4):
                A(f"v_mul_f32 v{vF+4*pc+r}, v{vF+4*pc+r}, v{vT+4}")
            for r in range(4):
                A(f"v_mul_f32_dpp v{vF+4*pc+r}, v{vF+4*(pc+2)+r}, v{vT+4} row_ror:8 row_mask:0xf bank_mask:0xc")
            if pc == 0: A(f"s_cbranch_vccnz {Lretry}{sfx}")
            A(f"ds_write_b128 v{vRedW}, {v(vF+4*pc,4)} offset:{1024*pc}")
            vmore()
        assert len(vpos) == NVC
        mark = f"buffer_store_dword v{vMark}, v{vFlagO}, {WSR}, s{sMark} offen"
        if P["mk_pos"] == 0: A(mark)
        fstamp(A, 6, 252)
        A("s_waitcnt lgkmcnt(0)")
        A("s_barrier")
        fstamp(A, 7, 252)
        if P["prof"] in (3, 5): A("s_waitcnt lgkmcnt(0)")
        for h in range(4):
            A(f"ds_read_b128 {v(vF+4*h,4)}, v{vRedR} offset:{2048*h}")
        if P["mk_pos"] == 1: A(mark)
        A("s_waitcnt lgkmcnt(2)")
        A(f"v_pk_add_f32 {v(vF,2)}, {v(vF,2)}, {v(vF+4,2)}")
        A(f"v_pk_add_f32 {v(vF+2,2)}, {v(vF+2,2)}, {v(vF+6,2)}")
        A("s_waitcnt lgkmcnt(0)")
        A(f"v_pk_add_f32 {v(vF+8,2)}, {v(vF+8,2)}, {v(vF+12,2)}")
        A(f"v_pk_add_f32 {v(vF+10,2)}, {v(vF+10,2)}, {v(vF+14,2)}")
        A(f"v_pk_add_f32 {v(vF,2)}, {v(vF,2)}, {v(vF+8,2)}")
        A(f"v_pk_add_f32 {v(vF+2,2)}, {v(vF+2,2)}, {v(vF+10,2)}")
        A(f"v_cvt_pk_bf16_f32 v{vF}, v{vF}, v{vF+1}")
        A(f"v_cvt_pk_bf16_f32 v{vF+1}, v{vF+2}, v{vF+3}")
        A(f"buffer_store_dwordx2 {v(vF,2)}, v{vPartO}, {WSR}, s{sPartW} offen sc1")
        if P["mk_pos"] == 2: A(mark)
        issued += 2
        stamp(A, 1, 252)
        fstamp(A, 8, 252)
        A.label(Lbub + sfx)
        A(f"s_add_u32 s{sNeed}, s{sS}, 3")
        A(f"s_min_u32 s{sNeed}, s{sNeed}, {P['nseg']}")
        Lfw, Lfb = A.newlabel("fw"), A.newlabel("fb")
        sal = [f"s_add_u32 s{sT2}, s{sXk}, 12288",
               f"s_add_u32 s{sXk1}, s{sXk}, {12288 + 4096}",
               f"s_add_u32 s{sXk2}, s{sXk}, {12288 + 8192}",
               f"s_add_u32 s{sXv}, s{sXk}, {XR_SLOT}",
               f"s_cmp_eq_u32 s{sXv}, s{sXrEnd}",
               f"s_cselect_b32 s{sXv}, s{sXrBase}, s{sXv}",
               f"s_cmp_lt_i32 s{sS}, 2",
               f"s_cselect_b32 s{sSt0}, {OOB}, s{sPartP}",
               f"s_cselect_b32 s{sSt1}, {OOB}, s{sXp}",
               f"s_cselect_b32 s{sSt3}, {OOB}, s{sXpF}",
               f"s_cselect_b32 s{sT0}, 0, {0 if P.get('x_ring') else 655360}",
               f"s_add_u32 s{sXp}, s{sXp}, s{sT0}",
               f"s_add_u32 s{sSt2}, s{sSt1}, 32768",
               f"s_sub_u32 s{sT0}, s{sS}, 2",
               f"v_mov_b32 v{vT}, s{sT0}",
               f"s_mov_b32 s{sXk}, s{sXv}",
               f"s_add_u32 s{sXv2}, s{sXv}, {24576 + 8192}",
               f"s_add_u32 s{sXv1}, s{sXv}, {24576 + 4096}",
               f"s_add_u32 s{sXv}, s{sXv}, 24576",
               f"s_and_b32 s{sT0}, s{sS}, 3",
               f"s_mul_i32 s{sPx}, s{sT0}, 12288",
               f"s_add_u32 s{sPx}, s{sPx}, s{sPxBase}",
               f"s_add_u32 s{sT0}, s{sS}, 3",
               f"s_and_b32 s{sT0}, s{sT0}, 3",
               f"s_mul_i32 s{sPartP}, s{sT0}, {PART_SLOT}",
               f"s_add_u32 s{sPartP}, s{sPartP}, s{sPartBase}",
               f"s_add_u32 s{sT0}, s{sS}, 1",
               f"s_and_b32 s{sT0}, s{sT0}, 3",
               f"s_mul_i32 s{sPartW}, s{sT0}, {PART_SLOT}",
               f"s_add_u32 s{sPartW}, s{sPartW}, s{sPartBase}",
               f"s_mul_i32 s{sQkv}, s{sT0}, 36864",
               f"s_add_u32 s{sQkv}, s{sQkv}, s{sQkvBase}",
               f"s_add_u32 s{sQkv1}, s{sQkv}, 3072",
               f"s_add_u32 s{sQkv2}, s{sQkv}, 6144"]
        fstamp(A, 9, 252)
        def pxload():
            for i in range(3):
                A(f"buffer_load_dwordx4 {v(vPX+4*i,4)}, v{vL16}, {WSR}, s{sPx} offen offset:{1024*i} sc1")
        kq = [("k", t, ks) for ks in range(6) for t in range(2)]
        PP = P["ppos"]
        q = kq[:1] + [("s", i) for i in range(4)] + kq[1:PP] + [("p", i) for i in range(4)] + kq[PP:]
        def nxt(n=1):
            nonlocal issued
            for _ in range(n):
                if not q: return
                e = q.pop(0)
                if e == ("p", 3): vpos["p"] = issued
                issued += 1
                if e == ("p", 3):
                    A(f"buffer_load_dword v{vFl}, v{vXflO}, {WSR}, s{sXfl} offen sc1"); continue
                if e[0] == "p":
                    A(f"buffer_load_dwordx4 {v(vPX+4*e[1],4)}, v{vL16}, {WSR}, s{sPx} offen offset:{1024*e[1]} sc1"); continue
                if P.get("x_nokv") and e[0] in "kv" : A(f"buffer_load_dword v{vT+7}, v{vFlagO}, {WSR}, 0 offen"); continue
                if P.get("x_noxout") and e[0] == "s" and e[1] in (1, 2): A(f"buffer_load_dword v{vT+7}, v{vFlagO}, {WSR}, 0 offen"); continue
                if e[0] == "k": xload(aKX, e[1], e[2], (sT2, sXk1, sXk2))
                elif e[0] == "v": xload(aVX, e[1], e[2], (sXv, sXv1, sXv2))
                elif e[1] == 0: A(f"buffer_store_dwordx2 {v(vPois,2)}, v{vPartO}, {WSR}, s{sSt0} offen sc1")
                elif e[1] == 1: A(f"buffer_store_dwordx4 {v(vXOUT,4)}, v{vL16}, {WSR}, s{sSt1} offen {XOF[P.get('x_fl', 0)]}")
                elif e[1] == 2: A(f"buffer_store_dwordx4 {v(vXOUT+4,4)}, v{vL16}, {WSR}, s{sSt2} offen {XOF[P.get('x_fl', 0)]}")
                else: A(f"buffer_store_dword v{vT}, v{vFlagO}, {WSR}, s{sSt3} offen sc1")
        xo = lambda i: (vS + 4 * i) if i < 4 else (vF + 4 * (i - 4))
        xr = lambda qt, h: vQ + 16 * qt + 4 * h
        def xrow_mfma(vox, vom):
            return ([f"v_mfma_f32_16x16x32_bf16 {v(xo(2*ct+qt),4)}, {v(vox+4*ct,4)}, {v(vPX+4*qt,4)}, 0" for ct in range(4) for qt in range(2)] +
                    [f"v_mfma_f32_16x16x16_bf16 {v(xo(2*ct+qt),4)}, {v(vom+2*ct,2)}, {v(vPX+8+2*qt,2)}, {v(xo(2*ct+qt),4)}" for ct in range(4) for qt in range(2)])
        xw = [f"ds_write_b128 v{vRed2W}, {v(xo(i),4)} offset:{1024*i}" for i in range(8)]
        xrd = [f"ds_read_b128 {v(xr(qt,h),4)}, v{vRed2R} offset:{8192*h+1024*qt}" for qt in range(2) for h in range(4)]
        def xadd(qt):
            b = xr(qt, 0)
            return ([f"v_add_f32 v{b+r}, v{b+r}, v{b+4+r}" for r in range(4)] + [f"v_add_f32 v{b+8+r}, v{b+8+r}, v{b+12+r}" for r in range(4)] +
                    [f"v_add_f32 v{vXOUT+4*qt+r}, v{b+r}, v{b+8+r}" for r in range(4)])
        mf = [(x, None) for x in xrow_mfma(voxn, vomo)]
        for ks in range(6):
            for t in range(2):
                for ct in range(4):
                    acc = vXA + 4 * (4 * t + ct)
                    cc = "0" if ks == 0 else v(acc, 4)
                    mf.append((f"v_mfma_f32_16x16x32_bf16 {v(acc,4)}, {a(aVX+4*(6*t+ks),4)}, {a(24*ct+4*ks,4)}, {cc}", (t, ks) if ct == 0 else None))
        side = {}
        for i in range(8): side[17 + 2 * i] = [xw[i]]
        side[36] = ["s_waitcnt lgkmcnt(0)", "s_barrier"]
        for i in range(8): side.setdefault(37 + i, []).append(xrd[i])
        ad = xadd(0) + xadd(1)
        side[48] = ["s_waitcnt lgkmcnt(0)"]
        slots = [n for n in range(49, 64)]
        adq = list(ad)
        for n in slots:
            for _ in range(1 if n % 4 == 3 else 2):
                if adq: side.setdefault(n, []).append(adq.pop(0))
        assert not adq
        for n, (x, vf) in enumerate(mf):
            if vf in vpos: need(vpos[vf])
            A(x)
            if n % 4 == 3:
                if not (q and q[0][0] == "v" and n < 16 + 8 * (q[0][2] + 1)): nxt()
            k = len(side.get(n, []))
            for y in side.get(n, []): A(y)
            if n % 4 != 3:
                for _ in range(2 - k):
                    if sal: A(sal.pop(0))
        assert not sal
        fstamp(A, 10, 252)
        nxt(2)
        A.nop(4)
        for ct in range(4):
            for t in range(2):
                for h in range(2):
                    src = vXA + 4 * (4 * t + ct) + 2 * h
                    A(f"v_cvt_pk_bf16_f32 v{voxn+4*ct+2*t+h}, v{src}, v{src+1}")
            nxt()
        nxt(99)
        stamp(A, 2, 252)
        fstamp(A, 11, 252)
        need(vpos["p"])
        A(f"v_cmp_gt_u32 vcc, s{sNeed}, v{vFl}")
        A(f"s_cbranch_vccnz {Lfw}")
        A.label(Lfb)
        for (t, ks) in vall[:12 - NVC]: xload(aVX, t, ks, (sXv, sXv1, sXv2))
        A(f"s_cmp_lt_i32 s{sS}, 0")
        A(f"s_cbranch_scc1 {Lnox}{sfx}")
        Lpx, Lpxr = A.newlabel("px"), A.newlabel("pxr")
        A.label(Lpx)
        A(f"v_max3_u32 v{vMx}, v{vPX}, v{vPX+1}, v{vPX+2}")
        for i in range(3, 11, 2): A(f"v_max3_u32 v{vMx}, v{vPX+i}, v{vPX+i+1}, v{vMx}")
        A(f"v_max_u32 v{vMx}, v{vPX+11}, v{vMx}")
        A(f"v_cmp_eq_u32 vcc, -1, v{vMx}")
        A(f"s_cbranch_vccnz {Lpxr}")
        stamp(A, 3, 252)
        fstamp(A, 12, 252)
        fin_parts[par] = (xrow_mfma(voxc, vomc), xw, xrd, ad)
        A.label(Lnox + sfx)
        stamp(A, 4, 252)
        if not P.get("x_split"): fstamp(A, 13, 252)
        fstamp_collect(A, 14, 252)
        stamp_flush(A, 252, 253)
        A(f"s_add_u32 s{sS}, s{sS}, 1")
        A(f"s_cmp_lg_u32 s{sS}, {P['nseg']}")
        A(f"s_cbranch_scc1 L_s2_top_{1-par}")
        A("s_branch L_s2_fin")
        A.label(Lretry + sfx)
        budget_check(A, 6)
        A(f"s_branch {Latt}{sfx}")
        A.label(Lfw)
        xflag_wait(False)
        A(f"s_branch {Lfb}")
        A.label(Lpxr)
        budget_check(A, 7)
        pxload()
        A("s_waitcnt vmcnt(0)")
        A(f"s_branch {Lpx}")
    A.label("L_s2_fin")
    xm, xw, xrd, ad = fin_parts[(P["nseg"] - 1) & 1]
    def xout():
        A(f"s_add_u32 s{sT0}, s{sXp}, 32768")
        A(f"buffer_store_dwordx4 {v(vXOUT,4)}, v{vL16}, {WSR}, s{sXp} offen sc1")
        A(f"buffer_store_dwordx4 {v(vXOUT+4,4)}, v{vL16}, {WSR}, s{sT0} offen sc1")
        A(f"s_add_u32 s{sXp}, s{sXp}, 655360")
    xout()
    for x in xm: A(x)
    A("s_barrier")
    for x in xw: A(x)
    A("s_waitcnt lgkmcnt(0)")
    A("s_barrier")
    for x in xrd: A(x)
    A("s_waitcnt lgkmcnt(0)")
    for x in ad: A(x)
    xout()
    A(f"v_mov_b32 v{vT}, {P['nseg']}")
    A("s_waitcnt vmcnt(0)")
    A(f"buffer_store_dword v{vT}, v{vFlagO}, {WSR}, s{sXpF} offen sc1")
    ostamp(A, 0, 2)
    A("s_branch L_end")

def gen_xs(A):
    sHH = 30
    sQkv, sQkvBase, sXq, sXrBase, sXrEnd, sPx, sPxP, sPxBase, sXfl, sC, sNeed = 31, 32, 33, 34, 35, 36, 37, 38, 39, 40, 41
    sXa = 42
    sMask = 48
    sPf, sMk1, sQT = 64, 65, 66
    vPf = 140
    vL16, vKmO, vL8, vXflO, vNeg, vProbe = 1, 2, 3, 4, 5, 6
    vPois = 8
    vT = 12
    vFl, vMx = 20, 21
    vQ, vKX, vKM = 24, 48, 96
    vS = 120
    vPb = 132
    c = (192 ** -0.5) * math.log2(math.e)
    A.label("L_xs")
    A("s_setprio 3")
    A(f"s_sub_u32 s{sHH}, s{sR}, 28")
    A(f"s_lshl_b32 s{sHH}, s{sHH}, 1")
    A(f"s_lshr_b32 s{sT0}, s{sW}, 1")
    A(f"s_add_u32 s{sHH}, s{sHH}, s{sT0}")
    A(f"s_and_b32 s{sQT}, s{sW}, 1")
    A(f"v_lshlrev_b32 v{vL16}, 4, v0")
    A(f"v_lshlrev_b32 v{vL8}, 3, v0")
    A(f"v_and_b32 v{vKmO}, 0x37, v0")
    A(f"v_lshlrev_b32 v{vKmO}, 4, v{vKmO}")
    A(f"v_min_u32 v{vXflO}, 11, v0")
    A(f"v_lshlrev_b32 v{vXflO}, 2, v{vXflO}")
    A(f"v_min_u32 v{vProbe}, 17, v0")
    A(f"v_lshlrev_b32 v{vProbe}, 2, v{vProbe}")
    A(f"s_lshl_b32 s{sMk1}, s{sG}, 7")
    A(f"s_add_u32 s{sMk1}, s{sMk1}, {S1MARK}")
    for r in range(4): A(f"v_mov_b32 v{vPois+r}, -1")
    A(f"v_mov_b32 v{vNeg}, {f2u(-1e9 * 192 ** 0.5):#x}")
    A(f"v_and_b32 v{vT}, 15, v0")
    A(f"s_lshl_b32 s{sT0}, s{sQT}, 4")
    A(f"v_add_u32 v{vT}, s{sT0}, v{vT}")
    A(f"v_lshrrev_b32 v{vT+1}, 4, v0")
    A(f"v_lshlrev_b32 v{vT+1}, 2, v{vT+1}")
    for t in range(2):
        for r in range(4):
            A(f"v_add_u32 v{vT+2}, {16*t+r}, v{vT+1}")
            A(f"v_cmp_le_u32 s[{sMask+2*(4*t+r)}:{sMask+2*(4*t+r)+1}], v{vT+2}, v{vT}")
    A(f"s_mul_i32 s{sQkvBase}, s{sG}, 147456")
    A(f"s_mul_i32 s{sT0}, s{sHH}, 9216")
    A(f"s_add_u32 s{sQkvBase}, s{sQkvBase}, s{sT0}")
    A(f"s_add_u32 s{sQkvBase}, s{sQkvBase}, {QKVR + 3072}")
    A(f"s_mul_i32 s{sXrBase}, s{sG}, {XR_G}")
    A(f"s_mul_i32 s{sT0}, s{sHH}, {XR_HEAD}")
    A(f"s_add_u32 s{sXrBase}, s{sXrBase}, s{sT0}")
    A(f"s_add_u32 s{sXrBase}, s{sXrBase}, {XR}")
    A(f"s_add_u32 s{sXrEnd}, s{sXrBase}, {XR_G}")
    A(f"s_mov_b32 s{sXq}, s{sXrBase}")
    A(f"s_mul_i32 s{sPxBase}, s{sG}, 49152")
    A(f"s_mul_i32 s{sT0}, s{sHH}, 3072")
    A(f"s_add_u32 s{sPxBase}, s{sPxBase}, s{sT0}")
    A(f"s_lshl_b32 s{sT0}, s{sQT}, 10")
    A(f"s_add_u32 s{sPxBase}, s{sPxBase}, s{sT0}")
    A(f"s_mul_i32 s{sT0}, s{sQT}, 1016")
    A(f"s_sub_u32 s{sT0}, 2048, s{sT0}")
    A(f"v_add_u32 v{vL8}, s{sT0}, v{vL16}")
    A(f"s_add_u32 s{sPxBase}, s{sPxBase}, {PXR}")
    A(f"s_lshl_b32 s{sXfl}, s{sG}, 9")
    A(f"s_mul_i32 s{sT0}, s{sHH}, 72")
    A(f"s_add_u32 s{sXfl}, s{sXfl}, s{sT0}")
    A(f"s_add_u32 s{sXfl}, s{sXfl}, {XFLAG}")
    A(f"s_mov_b32 s{sC}, {f2u(c):#x}")
    A(f"s_mov_b32 s{sS}, 0")
    A(f"s_lshl_b32 s{sPf}, s{sHH}, 1")
    A(f"s_add_u32 s{sPf}, s{sPf}, s{sQT}")
    A(f"s_lshl_b32 s{sPf}, s{sPf}, 3")
    A(f"s_add_u32 s{sPf}, s{sPf}, s{sG}")
    A(f"s_mul_i32 s{sPf}, s{sPf}, 40960")
    for i in range(10):
        for k in range(4):
            A(f"buffer_load_dwordx4 {v(vPf,4)}, v{vL16}, s[{sX}:{sX+3}], s{sPf} offen offset:{1024*k}")
        A(f"s_add_u32 s{sPf}, s{sPf}, 4096")
    A(f"s_lshl_b32 s{sPf}, s{sHH}, 1")
    A(f"s_add_u32 s{sPf}, s{sPf}, s{sQT}")
    A(f"s_mul_i32 s{sPf}, s{sPf}, 5120")
    gen_locality(A, "L_xs_loc", "L_xs_glb", vT)
    for mode in ("loc", "glb"):
        sc = "" if mode == "loc" else " sc1"
        A.label(f"L_xs_{mode}")
        Lf, Lk = A.newlabel("xsf"), A.newlabel("xsk")
        fstamp(A, 5, 250)
        A(f"s_add_u32 s{sNeed}, s{sS}, 1")
        A.label(Lf)
        A(f"buffer_load_dword v{vFl}, v{vXflO}, {WSR}, s{sXfl} offen sc1")
        budget_check(A, 8)
        A("s_waitcnt vmcnt(0)")
        A(f"v_cmp_gt_u32 vcc, s{sNeed}, v{vFl}")
        A(f"s_cbranch_vccnz {Lf}")
        fstamp(A, 6, 250)
        A(f"s_lshl_b32 s{sT0}, s{sQT}, 10")
        A(f"s_add_u32 s{sXa}, s{sXq}, s{sT0}")
        A(f"s_add_u32 s{sXa+1}, s{sXa}, 4096")
        A(f"s_add_u32 s{sXa+2}, s{sXa}, 8192")
        A(f"s_add_u32 s{sXa+3}, s{sXq}, 12288")
        A(f"s_add_u32 s{sXa+4}, s{sXq}, {12288+4096}")
        A(f"s_add_u32 s{sXa+5}, s{sXq}, {12288+8192}")
        for ks in range(6):
            A(f"buffer_load_dwordx4 {v(vQ+4*ks,4)}, v{vL16}, {WSR}, s{sXa+ks//2} offen offset:{2048*(ks&1)} sc1")
            for t in range(2):
                A(f"buffer_load_dwordx4 {v(vKX+4*(6*t+ks),4)}, v{vL16}, {WSR}, s{sXa+3+ks//2} offen offset:{2048*(ks&1)+1024*t} sc1")
        A(f"s_add_u32 s{sXq}, s{sXq}, {XR_SLOT}")
        A(f"s_cmp_eq_u32 s{sXq}, s{sXrEnd}")
        A(f"s_cselect_b32 s{sXq}, s{sXrBase}, s{sXq}")
        A(f"s_and_b32 s{sT0}, s{sS}, 3")
        A(f"s_mul_i32 s{sQkv}, s{sT0}, 36864")
        A(f"s_add_u32 s{sQkv}, s{sQkv}, s{sQkvBase}")
        A(f"s_mul_i32 s{sPx}, s{sT0}, 12288")
        A(f"s_add_u32 s{sPx}, s{sPx}, s{sPxBase}")
        A(f"s_add_u32 s{sT0}, s{sS}, 2")
        A(f"s_and_b32 s{sT0}, s{sT0}, 3")
        A(f"s_mul_i32 s{sPxP}, s{sT0}, 12288")
        A(f"s_add_u32 s{sPxP}, s{sPxP}, s{sPxBase}")
        for ks in range(6):
            A(f"s_waitcnt vmcnt({15 - 3 * ks})")
            for t in range(2):
                cc = "0" if ks == 0 else v(vS + 4 * t, 4)
                A(f"v_mfma_f32_16x16x32_bf16 {v(vS+4*t,4)}, {v(vKX+4*(6*t+ks),4)}, {v(vQ+4*ks,4)}, {cc}")
        fstamp(A, 7, 250)
        A.label(Lk)
        A(f"buffer_load_dword v{vMx}, v{vProbe}, {WSR}, s{sMk1} offen sc1")
        budget_check(A, 9)
        A("s_waitcnt vmcnt(0)")
        A(f"v_cmp_ge_i32 vcc, s{sS}, v{vMx}")
        A(f"s_cbranch_vccnz {Lk}")
        for ks in range(6):
            A(f"buffer_load_dwordx4 {v(vKM+4*ks,4)}, v{vKmO}, {WSR}, s{sQkv} offen offset:{1024*(ks>>1)+128*(ks&1)} sc1")
        A("s_waitcnt vmcnt(0)")
        A(f"v_max3_u32 v{vMx}, v{vKM}, v{vKM+1}, v{vKM+2}")
        for i in range(3, 23, 2): A(f"v_max3_u32 v{vMx}, v{vKM+i}, v{vKM+i+1}, v{vMx}")
        A(f"v_max_u32 v{vMx}, v{vKM+23}, v{vMx}")
        A(f"v_cmp_eq_u32 vcc, -1, v{vMx}")
        A(f"s_cbranch_vccnz {Lk}")
        fstamp(A, 8, 250)
        for ks in range(6):
            cc = "0" if ks == 0 else v(vS + 8, 4)
            A(f"v_mfma_f32_16x16x32_bf16 {v(vS+8,4)}, {v(vKM+4*ks,4)}, {v(vQ+4*ks,4)}, {cc}")
        A(f"buffer_store_dwordx4 {v(vPois,4)}, v{vL16}, {WSR}, s{sPxP} offen{sc}")
        A(f"buffer_store_dwordx2 {v(vPois,2)}, v{vL8}, {WSR}, s{sPxP} offen{sc}")
        for i in range(8):
            A(f"v_cndmask_b32 v{vS+i}, v{vNeg}, v{vS+i}, s[{sMask+2*i}:{sMask+2*i+1}]")
        vm, vt2 = vT, vT + 1
        A(f"v_max3_f32 v{vm}, v{vS}, v{vS+1}, v{vS+2}")
        for i in range(3, 11, 2): A(f"v_max3_f32 v{vm}, v{vS+i}, v{vS+i+1}, v{vm}")
        A(f"v_max_f32 v{vm}, v{vS+11}, v{vm}")
        for sw in ("32", "16"):
            A(f"v_mov_b32 v{vt2}, v{vm}")
            A("s_nop 1")
            A(f"v_permlane{sw}_swap_b32 v{vm}, v{vt2}")
            A(f"v_max_f32 v{vm}, v{vm}, v{vt2}")
        A(f"v_mul_f32 v{vm}, s{sC}, v{vm}")
        for i in range(12): A(f"v_fma_f32 v{vS+i}, v{vS+i}, s{sC}, -v{vm}")
        for i in range(12): A(f"v_exp_f32 v{vS+i}, v{vS+i}")
        A(f"v_add_f32 v{vT+2}, v{vS+8}, v{vS+9}")
        A(f"v_add_f32 v{vT+3}, v{vS}, v{vS+1}")
        A(f"v_add_f32 v{vT+2}, v{vT+2}, v{vS+10}")
        A(f"v_add_f32 v{vT+2}, v{vT+2}, v{vS+11}")
        for i in range(2, 8): A(f"v_add_f32 v{vT+3}, v{vT+3}, v{vS+i}")
        A(f"v_fma_f32 v{vm}, v{vT+2}, 0.5, v{vT+3}")
        for sw in ("32", "16"):
            A(f"v_mov_b32 v{vt2}, v{vm}")
            A("s_nop 1")
            A(f"v_permlane{sw}_swap_b32 v{vm}, v{vt2}")
            A(f"v_add_f32 v{vm}, v{vm}, v{vt2}")
        A(f"v_rcp_f32 v{vm}, v{vm}")
        A("s_nop 0")
        for i in range(12): A(f"v_mul_f32 v{vS+i}, v{vS+i}, v{vm}")
        for i in range(4): A(f"v_cvt_pk_bf16_f32 v{vPb+i}, v{vS+2*i}, v{vS+2*i+1}")
        for i in range(2): A(f"v_cvt_pk_bf16_f32 v{vPb+4+i}, v{vS+8+i}, v{vS+10+i}")
        A(f"buffer_store_dwordx4 {v(vPb,4)}, v{vL16}, {WSR}, s{sPx} offen{sc}")
        A(f"buffer_store_dwordx2 {v(vPb+4,2)}, v{vL8}, {WSR}, s{sPx} offen{sc}")
        fstamp(A, 9, 250)
        if P["prof"] in (3, 5):
            A("s_waitcnt lgkmcnt(0)")
            for i in range(5, 10): A(f"v_writelane_b32 v250, s{60+2*i}, {i}")
            stamp_flush(A)
        if P["xpf"]:
            A(f"s_add_u32 s{sT0}, s{sS}, {P['xpf']}")
            A(f"s_mul_i32 s{sT0}, s{sT0}, 40960")
            A(f"s_add_u32 s{sT0}, s{sT0}, s{sPf}")
            for i in range(4):
                A(f"buffer_load_dwordx4 {v(vPf,4)}, v{vL16}, s[{sX}:{sX+3}], s{sT0} offen offset:{1024*i}")
            A(f"s_add_u32 s{sT0}, s{sT0}, 4096")
            A(f"buffer_load_dwordx4 {v(vPf,4)}, v{vL16}, s[{sX}:{sX+3}], s{sT0} offen")
        A(f"s_add_u32 s{sS}, s{sS}, 1")
        A(f"s_cmp_lg_u32 s{sS}, {P['nseg']}")
        A(f"s_cbranch_scc1 L_xs_{mode}")
        A("s_branch L_end")

def gen_main(A):
    A(".p2align 8")
    A(f".type {NAME},@function")
    A.label(NAME)
    gen_common_prologue(A)
    A(f"s_cmp_lt_u32 s{sR}, 18")
    A("s_cbranch_scc1 L_s1")
    A(f"s_cmp_lt_u32 s{sR}, 28")
    A("s_cbranch_scc1 L_s2")
    A("s_branch L_init")
    A.label("L_fail")
    A(f"v_mov_b32 v1, s{sT3}")
    A(f"s_lshl_b32 s{sT3}, s{sT3}, 2")
    A(f"s_add_u32 s{sT3}, s{sT3}, 64")
    A(f"v_mov_b32 v2, s{sT3}")
    A(f"v_mov_b32 v1, s{sS}")
    A(f"v_add_u32 v1, 1000, v1")
    A(f"buffer_store_dword v1, v2, s[{sDBG}:{sDBG+3}], 0 offen")
    A.label("L_end")
    A("s_endpgm")
    gen_init(A)
    gen_s1(A)
    gen_s2(A)
    gen_xs(A)
    try:
        import gen_bg
        gen_bg.gen_bg(A, sys.modules[__name__])
    except ImportError:
        A.label("L_bg")
        A("s_endpgm")

HEADER = open("gated_mix__memory_aug_recurrent_mem_tr__ssm_conv_h3__prompt.s.ref").read().split("; Override launch")[0]

def kd(name, vgpr, acc, sgpr=96):
    return f""".amdhsa_kernel {name}
  .amdhsa_next_free_vgpr {vgpr}
  .amdhsa_next_free_sgpr {sgpr}
  .amdhsa_accum_offset {acc}
  .amdhsa_group_segment_fixed_size 0
  .amdhsa_kernarg_size 136
  .amdhsa_user_sgpr_count 2
  .amdhsa_user_sgpr_kernarg_segment_ptr 1
  .amdhsa_system_sgpr_workgroup_id_x 1
  .amdhsa_float_denorm_mode_32 3
.end_amdhsa_kernel
"""

def generate(**kw):
    P.update(kw)
    A = Asm()
    A('.amdgcn_target "amdgcn-amd-amdhsa--gfx950"')
    A(".text")
    A(f".globl {NAME}")
    gen_main(A)
    probs = check_hazards(A.lines)
    txt = HEADER
    txt += "; @launch grid=(256,1,1) block=(256,1,1) lds=163840\n"
    txt += A.text()
    txt += '.section .rodata,"a"\n.p2align 6\n' + kd(NAME, 512, 256)
    return txt, probs

if __name__ == "__main__":
    kw = {}
    out = "gated_mix__memory_aug_recurrent_mem_tr__ssm_conv_h3__prompt.s"
    for arg in sys.argv[1:]:
        if "=" in arg:
            k, val = arg.split("="); kw[k] = int(val)
        else:
            out = arg
    txt, probs = generate(**kw)
    open(out, "w").write(txt)
    print("wrote", out, len(txt), "bytes;", len(probs), "hazards")
```

```python
import math
from asmlib import v, a, s

def gen_bg(A, G):
    P, WSR = G.P, G.WSR
    sG, sR, sW, sS, sX = G.sG, G.sR, G.sW, G.sS, G.sX
    sT0, sT1, sT2, sT3 = G.sT0, G.sT1, G.sT2, G.sT3
    OOB = G.OOB
    budget_check, srd, f2u = G.budget_check, G.srd, G.f2u
    sWV, sCU, sLds, sI, sCh, sMaskHi = 30, 31, 32, 33, 34, 35
    sK, sV, sF, sAux = 36, 40, 44, 48
    sPk, sPv, sPsk, sPf, sPd, sPg, sPo = 52, 54, 56, 58, 60, 62, 64
    sD = 66
    sU, sSeg, sJ, sB0, sB1, sUe = 74, 75, 76, 77, 78, 79
    XS = f"s[{sX}:{sX+3}]"
    vL16, vFlagO = 1, 2
    vT = 4
    UP, CP = 4608, 4160
    FOFF = UP
    YOFF = FOFF
    LDSW = FOFF + 8 * CP
    def lo(d, x): A(f"v_lshlrev_b32 v{d}, 16, v{x}")
    def hi(d, x): A(f"v_and_b32 v{d}, s{sMaskHi}, v{x}")

    A.label("L_bg")
    A(f"s_sub_u32 s{sT0}, s{sR}, 30")
    A(f"s_lshl_b32 s{sT0}, s{sT0}, 3")
    A(f"s_add_u32 s{sT0}, s{sT0}, s{sG}")
    A(f"s_lshl_b32 s{sT0}, s{sT0}, 2")
    A(f"s_add_u32 s{sWV}, s{sT0}, s{sW}")
    A(f"s_mul_i32 s{sLds}, s{sW}, {LDSW}")
    A(f"s_load_dwordx4 s[{sPk}:{sPk+3}], s[0:1], 64")
    A(f"s_load_dwordx4 s[{sPsk}:{sPsk+3}], s[0:1], 80")
    A(f"s_load_dwordx4 s[{sPd}:{sPd+3}], s[0:1], 96")
    A(f"s_load_dwordx2 s[{sPo}:{sPo+1}], s[0:1], 112")
    A(f"s_mov_b32 s{sMaskHi}, 0xffff0000")
    A(f"s_mov_b32 s{sS}, 0")
    A(f"v_lshlrev_b32 v{vL16}, 4, v0")
    A(f"v_cmp_eq_u32 vcc, 0, v0")
    A(f"v_mov_b32 v{vT}, {OOB}")
    A("s_nop 0")
    A(f"v_cndmask_b32 v{vFlagO}, v{vT}, v0, vcc")
    A("s_waitcnt lgkmcnt(0)")
    G.gen_locality(A, None, None, vT)
    Lw0 = A.newlabel("bgw")
    A(f"s_lshl_b32 s{sT0}, s{sG}, 9")
    A(f"s_add_u32 s{sT0}, s{sT0}, {G.XFLAG}")
    A(f"v_lshlrev_b32 v{vT+1}, 2, v0")
    A.label(Lw0)
    A("s_sleep 16")
    A(f"buffer_load_dword v{vT}, v{vT+1}, {WSR}, s{sT0} offen sc1")
    budget_check(A, 12)
    A("s_waitcnt vmcnt(0)")
    A(f"v_cmp_eq_u32 vcc, 0, v{vT}")
    A(f"s_cbranch_vccnz {Lw0}")
    Lt, Ltd = A.newlabel("touch"), A.newlabel("touched")
    A(f"s_cmp_eq_u32 s{sR}, 31")
    A(f"s_cbranch_scc1 {Lt}")
    if P["near"]:
        Lnm = A.newlabel("nomeas")
        A(f"s_cmp_lg_u32 s{sW}, 0")
        A(f"s_cbranch_scc1 {Lnm}")
        A(f"s_lshl_b32 s{sT0}, s{sG}, 10")
        A(f"s_add_u32 s{sT0}, s{sT0}, {G.NEARP}")
        A(f"v_mov_b32 v5, s{sT0}")
        A("s_mov_b32 s86, -1")
        A("s_mov_b32 s87, -1")
        for i in range(16):
            A("s_memtime s[82:83]")
            A("s_waitcnt lgkmcnt(0)")
            A(f"s_mov_b32 s{sT1}, {(i & 1) * 8192 + (i >> 1) * 128}")
            A(f"buffer_load_dword v6, v5, {WSR}, s{sT1} offen sc1")
            A("s_waitcnt vmcnt(0)")
            A("s_memtime s[84:85]")
            A("s_waitcnt lgkmcnt(0)")
            A("s_sub_u32 s84, s84, s82")
            if i >= 2: A(f"s_min_u32 s{86 + (i & 1)}, s{86 + (i & 1)}, s84")
        A("s_cmp_lt_u32 s87, s86")
        A(f"s_cselect_b32 s{sT1}, 2, 1")
        A(f"v_mov_b32 v6, s{sT1}")
        A(f"s_lshl_b32 s{sT0}, s{sG}, 2")
        A(f"s_add_u32 s{sT0}, s{sT0}, {G.DBG_NEAR}")
        A(f"v_mov_b32 v5, s{sT0}")
        A(f"buffer_store_dword v6, v5, s[{G.sDBG}:{G.sDBG+3}], 0 offen sc1")
        A.label(Lnm)
        A("s_barrier")
    A(f"s_branch {Ltd}")
    A.label(Lt)
    if P["touch"] == 3:
        A(f"s_lshl_b32 s{sT0}, s{sW}, 10")
        A(f"s_mul_i32 s{sT1}, s{sG}, {G.XR_G}")
        A(f"s_add_u32 s{sT0}, s{sT0}, s{sT1}")
        A(f"s_add_u32 s{sT0}, s{sT0}, {G.XR + G.XR_SLOT}")
        A(f"s_mov_b32 s{sI}, {3 * G.XR_SLOT // 4096}")
        Ll = A.newlabel("tl")
        A.label(Ll)
        A(f"buffer_load_dwordx4 {v(vT+4,4)}, v{vL16}, {WSR}, s{sT0} offen sc1")
        A(f"s_add_u32 s{sT0}, s{sT0}, 4096")
        A(f"s_sub_u32 s{sI}, s{sI}, 1")
        A(f"s_cmp_lg_u32 s{sI}, 0")
        A(f"s_cbranch_scc1 {Ll}")
        A("s_waitcnt vmcnt(0)")
    A.label(Ltd)
    for dst, src, size in ((sK, sPk, 2048 * 1280), (sV, sPv, 2048 * 1280), (sAux, sPg, 1280)):
        A(f"s_mov_b64 s[{dst}:{dst+1}], s[{src}:{src+1}]")
        srd(A, dst, size)

    if P.get("nobg"):
        A("s_endpgm")
    vGW, vXr, vAcc, vXo, vGo = 24, 64, 84, 85, 86
    A(f"v_and_b32 v{vT}, 15, v0")
    A(f"v_lshlrev_b32 v{vT}, 4, v{vT}")
    for i in range(5):
        A(f"buffer_load_dwordx4 {v(vXr+4*i,4)}, v{vT}, s[{sAux}:{sAux+3}], 0 offen offset:{256*i}")
    A(f"v_lshrrev_b32 v{vT+1}, 4, v0")
    A(f"v_mul_u32_u24 v{vXo}, 1280, v{vT+1}")
    A(f"v_add_u32 v{vXo}, v{vXo}, v{vT}")
    A(f"v_lshlrev_b32 v{vT+1}, 2, v{vT+1}")
    A(f"v_cmp_eq_u32 vcc, 0, v{vT}")
    A(f"v_mov_b32 v{vT+2}, {OOB}")
    A("s_nop 0")
    A(f"v_cndmask_b32 v{vGo}, v{vT+2}, v{vT+1}, vcc")
    A(f"s_mul_i32 s{sB0}, s{sWV}, 40960")
    A(f"s_lshl_b32 s{sB1}, s{sWV}, 7")
    A(f"s_add_u32 s{sB1}, s{sB1}, {G.GV}")
    A("s_waitcnt vmcnt(0)")
    for i in range(20):
        lo(vGW + 2 * i, vXr + i); hi(vGW + 2 * i + 1, vXr + i)
    A(f"s_mov_b32 s{sI}, 8")
    Lg = A.newlabel("gate")
    A.label(Lg)
    for i in range(5):
        A(f"buffer_load_dwordx4 {v(vXr+4*i,4)}, v{vXo}, {XS}, s{sB0} offen offset:{256*i}")
    A(f"v_mov_b32 v{vAcc}, 0")
    for i in range(20):
        if i % 4 == 0: A(f"s_waitcnt vmcnt({4 - i // 4})")
        lo(vT, vXr + i); hi(vT + 1, vXr + i)
        A(f"v_pk_mul_f32 {v(vT,2)}, {v(vT,2)}, {v(vGW+2*i,2)}")
        A(f"v_cvt_pk_bf16_f32 v{vT+2}, v{vT}, v{vT+1}")
        lo(vT, vT + 2); hi(vT + 1, vT + 2)
        A(f"v_add_f32 v{vAcc}, v{vAcc}, v{vT}")
        A(f"v_add_f32 v{vAcc}, v{vAcc}, v{vT+1}")
    for sh in (8, 4, 2, 1):
        A("s_nop 1")
        A(f"v_add_f32_dpp v{vAcc}, v{vAcc}, v{vAcc} row_ror:{sh} row_mask:0xf bank_mask:0xf")
    A(f"v_cvt_pk_bf16_f32 v{vAcc}, v{vAcc}, v{vAcc}")
    lo(vAcc, vAcc)
    A(f"v_mul_f32 v{vAcc}, {f2u(-math.log2(math.e)):#x}, v{vAcc}")
    A(f"v_exp_f32 v{vAcc}, v{vAcc}")
    A("s_nop 0")
    A(f"v_add_f32 v{vAcc}, 1.0, v{vAcc}")
    A(f"v_rcp_f32 v{vAcc}, v{vAcc}")
    A("s_nop 0")
    A(f"v_cvt_pk_bf16_f32 v{vAcc}, v{vAcc}, v{vAcc}")
    lo(vAcc, vAcc)
    A(f"buffer_store_dword v{vAcc}, v{vGo}, {WSR}, s{sB1} offen sc1")
    A(f"s_add_u32 s{sB0}, s{sB0}, 5120")
    A(f"s_add_u32 s{sB1}, s{sB1}, 16")
    A(f"s_sub_u32 s{sI}, s{sI}, 1")
    A(f"s_cmp_lg_u32 s{sI}, 0")
    A(f"s_cbranch_scc1 {Lg}")
    G.ostamp(A, 0, 1)
    def rnd(pair):
        A(f"v_cvt_pk_bf16_f32 v{vT+2}, v{pair}, v{pair+1}")
        lo(pair, vT + 2); hi(pair + 1, vT + 2)
    vL4, vSt, vLw, vLr = 20, 21, 22, 23
    vSK = 24
    vKH = 32
    vKR, vVR = 40, 76
    vKV = 108
    vO = 112
    vW = 144
    A(f"v_lshlrev_b32 v{vL4}, 2, v0")
    A(f"v_lshrrev_b32 v{vSt}, 2, v0")
    A(f"v_lshlrev_b32 v{vSt}, 12, v{vSt}")
    A(f"v_and_b32 v{vT}, 3, v0")
    A(f"v_lshl_add_u32 v{vSt}, v{vT}, 4, v{vSt}")
    A(f"v_lshlrev_b32 v{vLw}, 7, v0")
    A(f"v_add_u32 v{vLw}, s{sLds}, v{vLw}")
    A(f"v_add_u32 v{vLr}, s{sLds}, v{vL16}")
    A(f"s_mov_b64 s[{sAux}:{sAux+1}], s[{sPsk}:{sPsk+1}]")
    srd(A, sAux, 5120)
    A(f"s_mul_i32 s{sB0}, s{sWV}, 40960")
    A(f"s_lshl_b32 s{sB1}, s{sWV}, 6")
    A(f"s_sub_u32 s{sB1}, {G.KVT + 2016 * 2}, s{sB1}")
    A(f"s_mov_b32 s{sCh}, 0")
    A(f"s_sub_u32 s{sT0}, s{sB0}, {3 * 1280}")
    A(f"v_add_u32 v{vT+1}, s{sT0}, v{vL4}")
    def kload(i):
        if i < 3: A(f"buffer_load_dword v{vKR+i}, v{vT+1}, s[{sK}:{sK+3}], 0 offen offset:{1280*i}")
        else:
            A(f"s_add_u32 s{sT0}, s{sB0}, {1280 * (i - 3)}")
            A(f"buffer_load_dword v{vKR+i}, v{vL4}, s[{sK}:{sK+3}], s{sT0} offen")
            A(f"buffer_load_dword v{vVR+i-3}, v{vL4}, s[{sV}:{sV+3}], s{sT0} offen")
    A(f"s_mov_b32 s{sI}, 5")
    La = A.newlabel("kv")
    A.label(La)
    A(f"buffer_load_dwordx4 {v(vW,4)}, v{vL16}, s[{sAux}:{sAux+3}], s{sCh} offen")
    for i in range(19): kload(i)
    A("s_waitcnt vmcnt(32)")
    for c in range(2):
        for h in range(2):
            lo(vSK + 2 * (2 * h) + c, vW + 2 * c + h); hi(vSK + 2 * (2 * h + 1) + c, vW + 2 * c + h)
    for i in range(3):
        lo(vKH + 2 * (i + 1), vKR + i); hi(vKH + 2 * (i + 1) + 1, vKR + i)
    for i in range(32):
        if i < 16:
            kload(19 + i)
            A("s_waitcnt vmcnt(32)")
        else:
            A(f"s_waitcnt vmcnt({2 * (31 - i)})")
        kv = vKV + 2 * (i & 1)
        lo(vKH + 2 * (i & 3), vKR + 3 + i); hi(vKH + 2 * (i & 3) + 1, vKR + 3 + i)
        lo(kv, vVR + i); hi(kv + 1, vVR + i)
        acc, trm = vT + 4, vT + 6
        for m in (3, 2, 1, 0):
            d = acc if m == 3 else trm
            A(f"v_pk_mul_f32 {v(d,2)}, {v(vKH+2*((i-m)&3),2)}, {v(vSK+2*m,2)}")
            rnd(d)
            if m != 3:
                A(f"v_pk_add_f32 {v(acc,2)}, {v(acc,2)}, {v(trm,2)}")
                rnd(acc)
        A(f"v_pk_mul_f32 {v(kv,2)}, {v(acc,2)}, {v(kv,2)}")
        if i & 1:
            for c in range(2):
                A(f"v_cvt_pk_bf16_f32 v{vO+16*c+15-(i>>1)}, v{vKV+2+c}, v{vKV+c}")
    for c in range(2):
        for q in range(4):
            A(f"ds_write_b128 v{vLw}, {v(vO+16*c+4*q,4)} offset:{64*c+16*q}")
    A("s_waitcnt lgkmcnt(0)")
    for m in range(8):
        A(f"ds_read_b128 {v(vO+4*m,4)}, v{vLr} offset:{1024*m}")
    for m in range(8):
        A(f"s_waitcnt lgkmcnt({7-m})")
        A(f"buffer_store_dwordx4 {v(vO+4*m,4)}, v{vSt}, {WSR}, s{sB1} offen sc1")
        A(f"s_add_u32 s{sB1}, s{sB1}, 65536")
    A(f"s_add_u32 s{sB0}, s{sB0}, 256")
    A(f"v_add_u32 v{vT+1}, 256, v{vT+1}")
    A(f"s_add_u32 s{sCh}, s{sCh}, 1024")
    A(f"s_sub_u32 s{sI}, s{sI}, 1")
    A(f"s_cmp_lg_u32 s{sI}, 0")
    A(f"s_cbranch_scc1 {La}")
    A(f"s_lshl_b32 s{sT0}, s{sWV}, 2")
    A(f"s_add_u32 s{sT0}, s{sT0}, {G.GFLAG}")
    A(f"v_mov_b32 v{vT}, 1")
    A("s_waitcnt vmcnt(0)")
    A(f"buffer_store_dword v{vT}, v{vFlagO}, {WSR}, s{sT0} offen sc1")
    G.ostamp(A, 0, 5)
    vAo, vBo, vEo, vCo, vCw, vCo2, vYw, vYr = 20, 21, 22, 23, 24, 25, 26, 27
    vD, vAcc8, vBf = 28, 72, 120
    vE, vD1, vE1 = 144, 152, 160
    vUw, vDv, vFo, vU = 68, 69, 3, 104
    vFr = 120
    A(f"v_and_b32 v{vT}, 15, v0")
    A(f"v_lshrrev_b32 v{vT+1}, 4, v0")
    A(f"v_add_u32 v{vT+2}, 1, v{vT}")
    A(f"v_and_b32 v{vT+3}, 7, v{vT+2}")
    A(f"v_mul_u32_u24 v{vT+3}, {CP}, v{vT+3}")
    A(f"v_lshrrev_b32 v{vT+2}, 3, v{vT+2}")
    A(f"v_add_u32 v{vT+2}, v{vT+2}, v{vT+1}")
    A(f"v_lshl_add_u32 v{vAo}, v{vT+2}, 4, v{vT+3}")
    A(f"s_add_u32 s{sT0}, s{sLds}, {FOFF}")
    A(f"v_add_u32 v{vAo}, s{sT0}, v{vAo}")
    A(f"v_add_u32 v{vCw}, s{sT0}, v{vL16}")
    A(f"v_lshlrev_b32 v{vT+2}, 5, v{vT}")
    A(f"v_lshlrev_b32 v{vT+3}, 4, v{vT+1}")
    A(f"v_sub_u32 v{vBo}, v{vT+3}, v{vT+2}")
    A(f"v_add_u32 v{vBo}, {(2032 - 1792) * 2}, v{vBo}")
    A(f"v_add_u32 v{vBo}, s{sLds}, v{vBo}")
    A(f"v_lshlrev_b32 v{vT+3}, 3, v{vT+1}")
    A(f"v_add_u32 v{vT+3}, v{vT+3}, v{vT+2}")
    A(f"v_sub_u32 v{vEo}, {(2044 - 1792) * 2}, v{vT+3}")
    A(f"v_add_u32 v{vEo}, s{sLds}, v{vEo}")
    A(f"s_add_u32 s{sT0}, s{sLds}, {YOFF}")
    A(f"v_add_u32 v{vYw}, s{sT0}, v{vT+3}")
    A(f"v_add_u32 v{vYr}, s{sT0}, v{vL16}")
    A(f"v_subrev_u32 v{vCo}, 32, v{vL16}")
    A(f"v_subrev_u32 v{vCo2}, 16, v{vL16}")
    A(f"v_lshlrev_b32 v{vFo}, 2, v0")
    for r in range(4): A(f"v_mov_b32 v{vT+4+r}, 0")
    A(f"v_min_u32 v{vT+2}, 31, v0")
    A(f"v_lshlrev_b32 v{vT+2}, 4, v{vT+2}")
    A(f"v_add_u32 v{vT+2}, s{sLds}, v{vT+2}")
    A(f"ds_write_b128 v{vT+2}, {v(vT+4,4)} offset:4096")
    A(f"v_add_u32 v{vUw}, s{sLds}, v{vL16}")
    A(f"s_mov_b64 s[{sF}:{sF+1}], s[{sPf}:{sPf+1}]")
    srd(A, sF, 4096)
    A(f"s_lshl_b32 s{sT0}, s{sWV}, 12")
    A(f"s_add_u32 s{sF}, s{sF}, s{sT0}")
    A(f"s_addc_u32 s{sF+1}, s{sF+1}, 0")
    A(f"s_mov_b64 s[{sAux}:{sAux+1}], s[{sPd}:{sPd+1}]")
    srd(A, sAux, 1280)
    A(f"s_lshl_b32 s{sCU}, s{sWV}, 1")
    A(f"s_lshl_b32 s{sB0}, s{sWV}, 12")
    A(f"s_add_u32 s{sB1}, s{sB0}, {G.YT}")
    A(f"s_add_u32 s{sB0}, s{sB0}, {G.KVT}")
    A(f"s_mov_b32 s{sCh}, 0")
    def fetch():
        for m in range(5):
            for h in range(2):
                if m == 0: A(f"buffer_load_dwordx4 {v(vD+4*h,4)}, v{vCo if h == 0 else vCo2}, s[{sF}:{sF+3}], 0 offen")
                else: A(f"buffer_load_dwordx4 {v(vD+8*m+4*h,4)}, v{vL16}, s[{sF}:{sF+3}], 0 offen offset:{1024*m-32+16*h}")
        A(f"v_mov_b32 v{vT}, 0")
        A(f"buffer_load_ushort v{vT+12}, v{vT}, s[{sAux}:{sAux+3}], s{sCU} offen")
        A(f"s_add_u32 s{sCU}, s{sCU}, 128")
        for m in range(4):
            A(f"buffer_load_dwordx4 {v(vU+4*m,4)}, v{vL16}, {WSR}, s{sB0} offen offset:{1024*m} sc1")
        A(f"s_add_u32 s{sB0}, s{sB0}, {64 * 4096}")
        A(f"s_add_u32 s{sF}, s{sF}, {64 * 4096}")
        A(f"s_addc_u32 s{sF+1}, s{sF+1}, 0")
    Lw = A.newlabel("gw")
    A(f"s_mov_b32 s{sT0}, {G.GFLAG}")
    A.label(Lw)
    A("s_sleep 8")
    A(f"buffer_load_dword v{vT}, v{vFo}, {WSR}, s{sT0} offen sc1")
    budget_check(A, 10)
    A("s_waitcnt vmcnt(0)")
    A(f"v_cmp_ne_u32 vcc, 1, v{vT}")
    A(f"s_cbranch_vccnz {Lw}")
    fetch()
    Lc = A.newlabel("chan")
    A.label(Lc)
    A("s_waitcnt vmcnt(0)")
    lo(vDv, vT + 12)
    for m in range(4):
        A(f"ds_write_b128 v{vUw}, {v(vU+4*m,4)} offset:{1024*m}")
    for m in range(5):
        D = vD + 8 * m
        if m == 4:
            A("s_mov_b64 exec, 15")
        for k in range(7): A(f"v_alignbit_b32 v{vE+k}, v{D+k+1}, v{D+k}, 16")
        for k in range(6): A(f"v_mov_b32 v{vD1+k}, v{D+k+1}")
        for k in range(6): A(f"v_mov_b32 v{vE1+k}, v{vE+k+1}")
        src = [D, vE, vD1, vE1, D + 2, vE + 2, vD1 + 2, vE1 + 2]
        for sg in range(8):
            A(f"ds_write_b128 v{vCw}, {v(src[sg],4)} offset:{sg * CP + 1024 * m}")
    A("s_mov_b64 exec, -1")
    A("s_waitcnt lgkmcnt(0)")
    Lnf = A.newlabel("nofetch")
    A(f"s_cmp_eq_u32 s{sCh}, 9")
    A(f"s_cbranch_scc1 {Lnf}")
    fetch()
    A.label(Lnf)
    def rdset(r):
        b = vFr + 64 * (r & 1)
        L = []
        for k in range(8):
            L.append(f"ds_read_b128 {v(b+32+4*k,4)}, v{vBo} offset:{(7-k)*512 + 64*r}")
            L.append(f"ds_read_b128 {v(b+4*k,4)}, v{vAo} offset:{64*(r+8*k)}")
        return L
    for x in rdset(0)[:14]: A(x)
    A("s_waitcnt lgkmcnt(6)")
    for x in rdset(0)[14:]: A(x)
    for r in range(8):
        b = vFr + 64 * (r & 1)
        nx = rdset(r + 1) if r < 7 else []
        A("s_waitcnt lgkmcnt(0)")
        n = 0
        for k in range(8):
            for T in range(k, 8):
                cc = "0" if (r == 0 and k == 0) else v(vAcc8 + 4 * T, 4)
                A(f"v_mfma_f32_16x16x32_bf16 {v(vAcc8+4*T,4)}, {v(b+4*k,4)}, {v(b+32+4*(T-k),4)}, {cc}")
                if n % 2 == 0 and nx: A(nx.pop(0))
                n += 1
    for T in range(8):
        A(f"ds_read_b64 {v(vBf+2*T,2)}, v{vEo} offset:{(7-T)*512}")
    A("s_waitcnt lgkmcnt(0)")
    for T in range(8):
        acc = vAcc8 + 4 * T
        rnd(acc); rnd(acc + 2)
        hi(vT + 4, vBf + 2 * T + 1); lo(vT + 5, vBf + 2 * T + 1); hi(vT + 6, vBf + 2 * T); lo(vT + 7, vBf + 2 * T)
        for r in range(4): A(f"v_mul_f32 v{vT+4+r}, v{vDv}, v{vT+4+r}")
        rnd(vT + 4); rnd(vT + 6)
        A(f"v_pk_add_f32 {v(acc,2)}, {v(acc,2)}, {v(vT+4,2)}")
        A(f"v_pk_add_f32 {v(acc+2,2)}, {v(acc+2,2)}, {v(vT+6,2)}")
        A(f"v_cvt_pk_bf16_f32 v{vT+8}, v{acc}, v{acc+1}")
        A(f"v_cvt_pk_bf16_f32 v{vT+9}, v{acc+2}, v{acc+3}")
        A(f"ds_write_b64 v{vYw}, {v(vT+8,2)} offset:{T*512}")
    A("s_waitcnt lgkmcnt(0)")
    for m in range(4):
        A(f"ds_read_b128 {v(vBf+4*m,4)}, v{vYr} offset:{1024*m}")
    for m in range(4):
        A(f"s_waitcnt lgkmcnt({3-m})")
        A(f"buffer_store_dwordx4 {v(vBf+4*m,4)}, v{vL16}, {WSR}, s{sB1} offen offset:{1024*m} sc1")
    A(f"s_add_u32 s{sB1}, s{sB1}, {64 * 4096}")
    A(f"s_add_u32 s{sCh}, s{sCh}, 1")
    A(f"s_lshl_b32 s{sT0}, s{sWV}, 2")
    A(f"s_add_u32 s{sT0}, s{sT0}, {G.CVFLAG}")
    A(f"v_mov_b32 v{vT}, s{sCh}")
    A("s_waitcnt vmcnt(0)")
    A(f"buffer_store_dword v{vT}, v{vFlagO}, {WSR}, s{sT0} offen sc1")
    A(f"s_cmp_lg_u32 s{sCh}, 10")
    A(f"s_cbranch_scc1 {Lc}")
    G.ostamp(A, 0, 2)

    A(f"s_mov_b32 s{sU}, s{sWV}")
    A(f"s_mov_b32 s{sUe}, {20 * (P['nseg'] - 4)}")
    A.label("L_mixent")
    vYs, vXs, vTr, vDl, vGo2, vFl, vF32, vLin = 20, 21, 22, 23, 24, 25, 26, 27
    vPp, vAc, vY, vXv, vGt, vSel = 28, 92, 108, 116, 124, 128
    A(f"s_load_dwordx2 s[{sAux}:{sAux+1}], s[0:1], 112")
    A(f"s_mov_b32 s{sMaskHi}, 0xffff0000")
    A(f"v_lshlrev_b32 v{vL16}, 4, v0")
    A(f"v_lshlrev_b32 v{vFo}, 2, v0")
    A(f"v_mov_b32 v{vFlagO}, 0")
    A(f"v_lshrrev_b32 v{vT}, 2, v0")
    A(f"v_and_b32 v{vT+1}, 3, v0")
    A(f"v_lshlrev_b32 v{vT+2}, 12, v{vT}")
    A(f"v_lshl_add_u32 v{vYs}, v{vT+1}, 4, v{vT+2}")
    A(f"v_mul_u32_u24 v{vT+2}, 1280, v{vT}")
    A(f"v_lshl_add_u32 v{vXs}, v{vT+1}, 4, v{vT+2}")
    A(f"v_lshlrev_b32 v{vT}, 6, v{vT}")
    A(f"v_lshl_add_u32 v{vT}, v{vT+1}, 3, v{vT}")
    A(f"v_add_u32 v{vTr}, s{sLds}, v{vT}")
    A(f"v_and_b32 v{vT}, 15, v0")
    A(f"v_lshrrev_b32 v{vT+1}, 4, v0")
    A(f"v_lshlrev_b32 v{vGo2}, 2, v{vT}")
    A(f"v_lshlrev_b32 v{vT+2}, 6, v{vT}")
    A(f"v_lshl_add_u32 v{vT+2}, v{vT+1}, 3, v{vT+2}")
    A(f"s_add_u32 s{sT0}, s{sLds}, 2048")
    A(f"v_add_u32 v{vDl}, s{sT0}, v{vT+2}")
    A(f"v_add_u32 v{vLin}, s{sT0}, v{vL16}")
    A(f"v_and_b32 v{vF32}, 31, v0")
    A(f"v_lshlrev_b32 v{vF32}, 2, v{vF32}")
    A(f"v_and_b32 v{vT+2}, 1, v0")
    A(f"v_lshlrev_b32 v{vT+2}, 4, v{vT+2}")
    A(f"v_mov_b32 v{vT+3}, 0x3f80")
    A(f"v_lshlrev_b32 v{vT+2}, v{vT+2}, v{vT+3}")
    A(f"v_lshrrev_b32 v{vT+3}, 2, v{vT}")
    A(f"v_cmp_eq_u32 vcc, v{vT+3}, v{vT+1}")
    A(f"v_bfe_u32 v{vT+3}, v0, 1, 1")
    A("s_nop 0")
    A(f"v_cndmask_b32 v{vT+2}, 0, v{vT+2}, vcc")
    A(f"v_cmp_eq_u32 vcc, 0, v{vT+3}")
    for r in (2, 3, 4, 5): A(f"v_mov_b32 v{vSel+r}, 0")
    A(f"v_cndmask_b32 v{vSel}, 0, v{vT+2}, vcc")
    A(f"v_cndmask_b32 v{vSel+1}, v{vT+2}, 0, vcc")
    A(f"v_mov_b32 v{vSel+6}, v{vSel}")
    A(f"v_mov_b32 v{vSel+7}, v{vSel+1}")
    A("s_waitcnt lgkmcnt(0)")
    srd(A, sAux, 2048 * 1280)
    Lm = A.newlabel("mix")
    A.label(Lm)
    A(f"s_mul_i32 s{sSeg}, s{sU}, 3277")
    A(f"s_lshr_b32 s{sSeg}, s{sSeg}, 16")
    A(f"s_mul_i32 s{sT0}, s{sSeg}, 20")
    A(f"s_sub_u32 s{sJ}, s{sU}, s{sT0}")
    A(f"s_lshr_b32 s{sCh}, s{sJ}, 1")
    Lw = A.newlabel("mc")
    A(f"s_mov_b32 s{sT2}, {G.CVFLAG}")
    A.label(Lw)
    A(f"buffer_load_dword v{vT+2}, v{vFo}, {WSR}, s{sT2} offen sc1")
    budget_check(A, 10)
    A("s_waitcnt vmcnt(0)")
    A(f"v_cmp_ge_u32 vcc, s{sCh}, v{vT+2}")
    A(f"s_cbranch_vccnz {Lw}")
    A(f"s_lshl_b32 s{sT0}, s{sJ}, 17")
    A(f"s_lshl_b32 s{sT1}, s{sSeg}, 6")
    A(f"s_add_u32 s{sT0}, s{sT0}, s{sT1}")
    A(f"s_mov_b32 m0, s{sLds}")
    A(f"s_add_u32 s{sT0}, s{sT0}, {G.YT}")
    A(f"buffer_load_dwordx4 v{vYs}, {WSR}, s{sT0} offen sc1 lds")
    A("s_add_u32 m0, m0, 1024")
    A(f"s_add_u32 s{sT0}, s{sT0}, 65536")
    A(f"buffer_load_dwordx4 v{vYs}, {WSR}, s{sT0} offen sc1 lds")
    A("s_add_u32 m0, m0, 1024")
    A(f"s_mul_i32 s{sB1}, s{sSeg}, 40960")
    A(f"s_lshl_b32 s{sT1}, s{sJ}, 6")
    A(f"s_add_u32 s{sB1}, s{sB1}, s{sT1}")
    A(f"buffer_load_dwordx4 v{vXs}, {XS}, s{sB1} offen lds")
    A("s_add_u32 m0, m0, 1024")
    A(f"s_add_u32 s{sT1}, s{sB1}, 20480")
    A(f"buffer_load_dwordx4 v{vXs}, {XS}, s{sT1} offen lds")
    A(f"s_lshl_b32 s{sT2}, s{sSeg}, 7")
    A(f"s_add_u32 s{sT2}, s{sT2}, {G.GV}")
    A(f"buffer_load_dword v{vGt}, v{vGo2}, {WSR}, s{sT2} offen sc1")
    A(f"buffer_load_dword v{vGt+1}, v{vGo2}, {WSR}, s{sT2} offen offset:64 sc1")
    A(f"s_mul_i32 s{sB0}, s{sSeg}, {G.XP_SEG}")
    A(f"s_lshl_b32 s{sT0}, s{sCh}, 15")
    A(f"s_add_u32 s{sB0}, s{sB0}, s{sT0}")
    A(f"s_and_b32 s{sT0}, s{sJ}, 1")
    A(f"s_lshl_b32 s{sT0}, s{sT0}, 11")
    A(f"s_add_u32 s{sB0}, s{sB0}, s{sT0}")
    A(f"s_add_u32 s{sB0}, s{sB0}, {G.XPART}")
    A("s_waitcnt vmcnt(0)")
    for tt in range(2):
        for c in range(2):
            A(f"ds_read_b64_tr_b16 {v(vY+4*tt+2*c,2)}, v{vTr} offset:{1024*c+32*tt}")
            A(f"ds_read_b64 {v(vXv+4*tt+2*c,2)}, v{vDl} offset:{1024*tt+32*c}")
    for tt in range(2):
        A(f"v_sub_f32 v{vGt+2+tt}, 1.0, v{vGt+tt}")
    rnd(vGt + 2)
    A("s_waitcnt lgkmcnt(0)")
    for i in range(8):
        lo(vT + 4, vY + i); hi(vT + 5, vY + i); lo(vT + 6, vXv + i); hi(vT + 7, vXv + i)
        A(f"v_pk_mul_f32 {v(vT+4,2)}, {v(vT+4,2)}, {v(vT+6,2)}")
        rnd(vT + 4)
        A(f"v_mul_f32 v{vT+4}, v{vGt+2+i//4}, v{vT+4}")
        A(f"v_mul_f32 v{vT+5}, v{vGt+2+i//4}, v{vT+5}")
        A(f"v_cvt_pk_bf16_f32 v{vY+i}, v{vT+4}, v{vT+5}")
    A(f"s_lshl_b32 s{sT1}, s{sCh}, 7")
    A(f"s_add_u32 s{sT1}, s{sT1}, {G.XPFLAG}")
    A(f"s_lshl_b32 s{sT0}, s{sG}, 7")
    A(f"s_add_u32 s{sT0}, s{sT0}, {G.S1MARK}")
    A(f"s_add_u32 s{sI}, s{sSeg}, 4")
    A(f"s_cmp_ge_u32 s{sSeg}, {P['nseg'] - 4}")
    A(f"s_cselect_b32 s{sT1}, s{sT1}, s{sT0}")
    A(f"s_cselect_b32 s{sI}, s{sSeg}, s{sI}")
    A(f"s_cselect_b32 s{sT0}, -1, 0")
    A(f"v_and_b32 v{vT+3}, s{sT0}, v{vF32}")
    Lw, Lgo, Lq, Lq2 = A.newlabel("mw"), A.newlabel("mgo"), A.newlabel("mq"), A.newlabel("mq2")
    A.label(Lw)
    A(f"buffer_load_dword v{vFl}, v{vT+3}, {WSR}, s{sT1} offen sc1")
    budget_check(A, 11)
    A("s_waitcnt vmcnt(0)")
    A(f"v_cmp_ge_i32 vcc, s{sI}, v{vFl}")
    A(f"s_cbranch_vccz {Lgo}")
    A(f"s_cmp_ge_u32 s{sSeg}, {P['nseg'] - 4}")
    A(f"s_cbranch_scc1 {Lw}")
    A(f"s_sleep {P.get('mix_sleep', 16)}")
    A(f"s_branch {Lw}")
    A.label(Lgo)
    A(f"s_cmp_ge_u32 s{sSeg}, {P['nseg'] - 4}")
    A(f"s_cbranch_scc1 {Lq2}")
    if P.get("mix_gate", 1):
        A(f"v_readfirstlane_b32 s{sT2}, v{vFl}")
        A.label(Lq)
        A(f"s_cmp_ge_u32 s{sT2}, {P['nseg'] - 1}")
        A(f"s_cbranch_scc1 {Lq2}")
        A(f"s_sleep {P.get('mq_sleep', 3)}")
        A(f"buffer_load_dword v{vT+2}, v{vFlagO}, {WSR}, s{sT1} offen sc1")
        budget_check(A, 15)
        A("s_waitcnt vmcnt(0)")
        A(f"v_readfirstlane_b32 s{sT0}, v{vT+2}")
        A(f"s_cmp_eq_u32 s{sT0}, s{sT2}")
        A(f"s_cbranch_scc1 {Lq}")
        if P.get("mq_dly"): A(f"s_sleep {P['mq_dly']}")
    A.label(Lq2)
    for g in range(8):
        if g: A(f"s_add_u32 s{sB0}, s{sB0}, 4096")
        for c in range(2):
            A(f"buffer_load_dwordx4 {v(vPp+8*g+4*c,4)}, v{vL16}, {WSR}, s{sB0} offen offset:{1024*c} sc1")
    for g in range(8):
        for c in range(2):
            A(f"s_waitcnt vmcnt({15 - 2 * g - c})")
            for tt in range(2):
                acc = vAc + 8 * tt + 4 * c
                A(f"v_mfma_f32_16x16x32_bf16 {v(acc,4)}, {v(vSel+4*tt,4)}, {v(vPp+8*g+4*c,4)}, {'0' if g == 0 else v(acc,4)}")
    A.nop(6)
    for tt in range(2):
        for c in range(2):
            for h in range(2):
                x = vAc + 8 * tt + 4 * c + 2 * h
                i = 4 * tt + 2 * c + h
                rnd(x)
                A(f"v_mul_f32 v{x}, v{vGt+tt}, v{x}")
                A(f"v_mul_f32 v{x+1}, v{vGt+tt}, v{x+1}")
                rnd(x)
                lo(vT + 4, vY + i); hi(vT + 5, vY + i)
                A(f"v_pk_add_f32 {v(x,2)}, {v(x,2)}, {v(vT+4,2)}")
                A(f"v_cvt_pk_bf16_f32 v{vXv+i}, v{x}, v{x+1}")
            A(f"ds_write_b64 v{vDl}, {v(vXv+4*tt+2*c,2)} offset:{1024*tt+32*c}")
    A("s_waitcnt lgkmcnt(0)")
    for m in range(2):
        A(f"ds_read_b128 {v(vY+4*m,4)}, v{vLin} offset:{1024*m}")
    A(f"s_add_u32 s{sT1}, s{sB1}, 20480")
    A("s_waitcnt lgkmcnt(1)")
    A(f"buffer_store_dwordx4 {v(vY,4)}, v{vXs}, s[{sAux}:{sAux+3}], s{sB1} offen")
    A("s_waitcnt lgkmcnt(0)")
    A(f"buffer_store_dwordx4 {v(vY+4,4)}, v{vXs}, s[{sAux}:{sAux+3}], s{sT1} offen")
    A(f"s_add_u32 s{sU}, s{sU}, 64")
    A(f"s_cmp_lt_u32 s{sU}, s{sUe}")
    A(f"s_cbranch_scc1 {Lm}")
    if P["prof"]: A("s_waitcnt vmcnt(0)")
    G.ostamp(A, 0, 3)
    A("s_endpgm")
```

```python
import sys, math, struct
from asmlib import Asm, v, a, s, check_hazards

NAME = "gated_mix__memory_aug_recurrent_mem_tr__ssm_conv_h3__prompt_kernel"

P = dict(
    s3_miss=0, s3_nop=40, dp=3, near=1, ldev=3, xpf=5, touch=3, cpf=1, wnt=1, ppos=12, dma0=10, nvc=2, mk_pos=1, h1_two=2,
    s3_sleep=16,
    h1_nop=50,
    h2_miss=12,
    h2_sleep=8,
    prof=0,
    nseg=64,
    force_global=0,
)

MEMR   = 0x0
QKVR   = 0x50000
PXR    = 0x170000
PART   = 0x200000
PART_SLOT = 163840
NEARP  = 0x2A0000
POISON_END = 0x2A4000
FLAGS  = 0x2B0000
XFLAG  = FLAGS
XPFLAG = FLAGS + 0x1000
CVFLAG = FLAGS + 0x2000
GFLAG  = FLAGS + 0x2200
S2MARK = FLAGS + 0x2400
S1MARK = FLAGS + 0x2800
FLAGS_END = FLAGS + 0x3000
XR     = 0x2C0000
XR_HEAD = 36864 + 1024
XR_SLOT = 4 * XR_HEAD
XR_G   = 4 * XR_SLOT
XPART  = 0x900000
XP_SEG = 327680
KVT    = 0x3200000
YT     = 0x3800000
GV     = 0x3500000
PROF   = 0x4000000
MEMDBG = 0x4800000
WS_SIZE = 0x10000000
OOB = 0x20000000
DBG_NEAR, DBG_INIT = 128, 192

XOF = ["sc1", "", "sc1 nt", "sc0 sc1", "nt"]
def f2u(x): return struct.unpack("<I", struct.pack("<f", x))[0]

sWS, sX, sRO, sDBG = 4, 8, 12, 16
sG, sR, sW, sBUD, sS, sXCC = 20, 21, 22, 23, 24, 25
sT0, sT1, sT2, sT3 = 26, 27, 28, 29

WSR = f"s[{sWS}:{sWS+3}]"

def srd(A, base, size):
    A(f"s_and_b32 s{base+1}, s{base+1}, 0xffff")
    A(f"s_mov_b32 s{base+2}, {size}")
    A(f"s_mov_b32 s{base+3}, 0x20000")

def budget_check(A, code):
    A(f"s_sub_u32 s{sBUD}, s{sBUD}, 1")
    A(f"s_movk_i32 s{sT3}, {code}")
    A(f"s_cbranch_scc1 L_fail")

def dense_poll(A, regs, issue, missing, code):
    L, Lok = A.newlabel("dp"), A.newlabel("dpok")
    n = len(regs)
    for i, r in enumerate(regs):
        issue(r)
        if i < n - 1: A("s_sleep 1")
    A.label(L)
    for r in regs:
        A(f"s_waitcnt vmcnt({n-1})")
        A(f"{missing(r)} {Lok}")
        issue(r)
    budget_check(A, code)
    A(f"s_branch {L}")
    A.label(Lok)

def stamp(A, idx, vt=250):
    if P["prof"] not in (1, 2) and not (P["prof"] == 4 and vt == 250 and idx == 6): return
    A(f"s_memrealtime s[90:91]")
    A(f"s_waitcnt lgkmcnt(0)")
    A(f"v_writelane_b32 v{vt}, s90, {idx}")
    if P["prof"] == 2:
        A(f"s_memtime s[90:91]")
        A(f"s_waitcnt lgkmcnt(0)")
        A(f"v_writelane_b32 v{vt}, s90, {idx+8}")

def ostamp(A, row, idx, vt=254):
    if not P["prof"]: return
    A("s_memrealtime s[90:91]")
    A("s_lshl_b32 s92, s2, 2")
    A(f"s_add_u32 s92, s92, s{sW}")
    A("s_mul_i32 s92, s92, 80")
    A(f"s_add_u32 s92, s92, {row}")
    A("s_lshl_b32 s92, s92, 6")
    A(f"s_add_u32 s92, s92, {PROF + 4 * idx}")
    A("s_waitcnt lgkmcnt(0)")
    A(f"v_mov_b32 v{vt}, s90")
    A(f"v_mov_b32 v{vt+1}, 0")
    A("s_mov_b64 exec, 1")
    A(f"buffer_store_dword v{vt}, v{vt+1}, s[{sWS}:{sWS+3}], s92 offen")
    A("s_mov_b64 exec, -1")

def fstamp(A, idx, vt):
    if P["prof"] not in (3, 5): return
    A(f"s_mem{'real' if P['prof'] == 5 else ''}time s[{60+2*idx}:{61+2*idx}]")

def fstamp_collect(A, n, vt):
    if P["prof"] not in (3, 5): return
    A("s_waitcnt lgkmcnt(0)")
    for i in range(n):
        A(f"v_writelane_b32 v{vt}, s{60+2*i}, {i}")

def stamp_flush(A, vt=250, vtmp=251):
    if not P["prof"] or (P["prof"] == 4 and vt != 250): return
    A(f"s_lshl_b32 s90, s2, 2")
    A(f"s_add_u32 s90, s90, s{sW}")
    A(f"s_mul_i32 s90, s90, 80")
    A(f"s_add_u32 s90, s90, s{sS}")
    A(f"s_add_u32 s90, s90, 4")
    A(f"s_lshl_b32 s90, s90, 6")
    A(f"s_add_u32 s90, s90, {PROF}")
    A(f"v_lshlrev_b32 v{vtmp}, 2, v0")
    A(f"s_mov_b64 exec, 0xffff")
    A(f"buffer_store_dword v{vt}, v{vtmp}, s[{sWS}:{sWS+3}], s90 offen")
    A(f"s_mov_b64 exec, -1")

def gen_init(A):
    A.label("L_init")
    if P["cpf"]:
        A("s_getpc_b64 s[30:31]")
        A.label("L_pc")
        A(f"s_sub_u32 s{sT0}, s{sR}, 28")
        A(f"s_lshl_b32 s{sT0}, s{sT0}, 2")
        A(f"s_add_u32 s{sT0}, s{sT0}, s{sW}")
        A(f"s_mul_i32 s{sT0}, s{sT0}, 3072")
        A(f"v_lshlrev_b32 v1, 4, v0")
        A(f"v_add_u32 v1, s{sT0}, v1")
        A(f"v_min_u32 v1, L_code_end-L_pc-2048-16, v1")
        for i in range(3):
            A(f"global_load_dwordx4 v[20:23], v1, s[30:31] offset:{1024*i}")
    A("v_mov_b32 v4, -1\nv_mov_b32 v5, -1\nv_mov_b32 v6, -1\nv_mov_b32 v7, -1")
    A(f"s_load_dwordx2 s[{sRO}:{sRO+1}], s[0:1], 8")
    A(f"s_lshl_b32 s{sT0}, s{sW}, 6")
    A(f"v_add_u32 v9, s{sT0}, v0")
    A("v_lshlrev_b32 v1, 4, v9")
    A(f"s_sub_u32 s{sT0}, s2, 224")
    A(f"s_lshl_b32 s{sT0}, s{sT0}, 12")
    for base, size in ((QKVR, PXR + 8 * 49152 - QKVR), (PART, 4 * PART_SLOT)):
        A(f"s_add_u32 s{sT1}, s{sT0}, {base}")
        for i in range(size // 131072):
            A(f"buffer_store_dwordx4 v[4:7], v1, {WSR}, s{sT1} offen sc1")
            A(f"s_add_u32 s{sT1}, s{sT1}, 131072")
        assert size % 131072 == 0
    Lm, Lf, Ld = A.newlabel("im"), A.newlabel("if"), A.newlabel("id")
    A(f"s_cmp_eq_u32 s{sR}, 31")
    A(f"s_cbranch_scc1 {Lm}")
    A(f"s_cmp_eq_u32 s{sR}, 30")
    A(f"s_cbranch_scc1 {Lf}")
    A(f"s_mul_i32 s{sT1}, s{sG}, 40960")
    A(f"s_sub_u32 s{sT0}, s{sR}, 28")
    A(f"s_mul_i32 s{sT0}, s{sT0}, 15360")
    A(f"s_add_u32 s{sT1}, s{sT1}, s{sT0}")
    A(f"s_add_u32 s{sT1}, s{sT1}, 10240")
    for i in range(4):
        if i == 3:
            A("v_cmp_gt_u32 vcc, 192, v9")
            A(f"v_mov_b32 v2, {OOB}")
            A("s_nop 0")
            A("v_cndmask_b32 v1, v2, v1, vcc")
        A(f"buffer_store_dwordx4 v[4:7], v1, {WSR}, s{sT1} offen sc1")
        A(f"s_add_u32 s{sT1}, s{sT1}, 4096")
    A(f"s_branch {Ld}")
    A.label(Lf)
    A("v_mov_b32 v4, 0\nv_mov_b32 v5, 0\nv_mov_b32 v6, 0\nv_mov_b32 v7, 0")
    A("v_cmp_gt_u32 vcc, 96, v9")
    A(f"v_mov_b32 v2, {OOB}")
    A(f"s_mul_i32 s{sT1}, s{sG}, 1536")
    A("v_cndmask_b32 v1, v2, v1, vcc")
    A(f"s_add_u32 s{sT1}, s{sT1}, {FLAGS}")
    A(f"buffer_store_dwordx4 v[4:7], v1, {WSR}, s{sT1} offen sc1")
    A(f"s_branch {Ld}")
    A.label(Lm)
    A("s_waitcnt lgkmcnt(0)")
    srd(A, sRO, 10240)
    A(f"s_mul_i32 s{sT1}, s{sG}, 40960")
    for i in range(3):
        A(f"v_add_u32 v2, {256 * i}, v9")
        A("v_lshrrev_b32 v3, 6, v2")
        A("v_and_b32 v8, 7, v2")
        A("v_bfe_u32 v16, v2, 3, 1")
        A("v_bfe_u32 v10, v2, 4, 2")
        A("v_mul_u32_u24 v8, 1280, v8")
        A("v_lshl_add_u32 v8, v3, 7, v8")
        A("v_lshl_add_u32 v8, v10, 5, v8")
        A("v_lshl_add_u32 v8, v16, 2, v8")
        A("v_cmp_gt_u32 vcc, 640, v2")
        A(f"v_mov_b32 v11, {OOB}")
        A("v_lshlrev_b32 v2, 4, v2")
        A("v_cndmask_b32 v8, v11, v8, vcc")
        A("v_cndmask_b32 v2, v11, v2, vcc")
        for q in range(4):
            A(f"buffer_load_dword v{12+q}, v8, s[{sRO}:{sRO+3}], 0 offen offset:{8*q}")
        A("s_waitcnt vmcnt(0)")
        for q in range(4):
            A(f"v_min_u32 v{12+q}, -2, v{12+q}")
        A(f"buffer_store_dwordx4 v[12:15], v2, {WSR}, s{sT1} offen sc1")
        A("s_nop 1")
    A.label(Ld)
    A("s_waitcnt vmcnt(0) lgkmcnt(0)")
    A("s_barrier")
    Ln = A.newlabel("in")
    A(f"s_cmp_lg_u32 s{sW}, 0")
    A(f"s_cbranch_scc1 {Ln}")
    A("v_mov_b32 v2, 1")
    A(f"v_mov_b32 v3, {DBG_INIT}")
    A("s_mov_b64 exec, 1")
    A(f"buffer_atomic_add v2, v3, s[{sDBG}:{sDBG+3}], 0 offen")
    A("s_mov_b64 exec, -1")
    A.label(Ln)
    A(f"s_cmp_lt_u32 s{sR}, 30")
    A("s_cbranch_scc1 L_xs")
    A("s_branch L_bg")

def gen_common_prologue(A):
    A("s_cmp_ge_u32 s2, 256")
    A("s_cbranch_scc1 L_end")
    A(f"s_load_dwordx2 s[{sWS}:{sWS+1}], s[0:1], 128")
    A(f"s_load_dwordx2 s[{sX}:{sX+1}], s[0:1], 0")
    A(f"s_load_dwordx2 s[{sDBG}:{sDBG+1}], s[0:1], 120")
    A("v_lshrrev_b32 v1, 6, v0")
    A(f"s_and_b32 s{sG}, s2, 7")
    A(f"v_readfirstlane_b32 s{sW}, v1")
    A("v_and_b32 v0, 63, v0")
    A(f"s_lshr_b32 s{sR}, s2, 3")
    A(f"s_getreg_b32 s{sXCC}, hwreg(HW_REG_XCC_ID)")
    A(f"s_mov_b32 s{sBUD}, 400000")
    A("s_waitcnt lgkmcnt(0)")
    srd(A, sWS, WS_SIZE)
    srd(A, sX, 2048 * 1280)
    srd(A, sDBG, 256)
    ostamp(A, 0, 0)
    L = A.newlabel("nocensus")
    A(f"s_cmp_lg_u32 s{sW}, 0")
    A(f"s_cbranch_scc1 {L}")
    A(f"s_mul_i32 s{sT0}, s{sXCC}, 6")
    A(f"s_lshl_b64 s[{sT2}:{sT3}], 1, s{sT0}")
    A(f"s_cmp_lt_u32 s{sXCC}, 8")
    A(f"s_cselect_b64 s[{sT2}:{sT3}], s[{sT2}:{sT3}], 0")
    A(f"s_add_u32 s{sT3}, s{sT3}, 0x1000000")
    A(f"v_mov_b32 v2, s{sT2}")
    A(f"v_mov_b32 v3, s{sT3}")
    A(f"s_lshl_b32 s{sT0}, s{sG}, 3")
    A(f"v_mov_b32 v4, s{sT0}")
    A("s_mov_b64 exec, 1")
    A(f"buffer_atomic_add_x2 v[2:3], v4, s[{sDBG}:{sDBG+3}], 0 offen")
    A("s_mov_b64 exec, -1")
    A.label(L)

def gen_locality(A, lab_local, lab_global, vt):
    L = A.newlabel("loc")
    A(f"v_lshlrev_b32 v{vt}, 2, v0")
    A(f"s_lshl_b32 s93, s{sG}, 1")
    A(f"s_add_u32 s94, s93, 1")
    A.label(L)
    A(f"buffer_load_dword v{vt+1}, v{vt}, s[{sDBG}:{sDBG+3}], 0 offen sc1")
    budget_check(A, 1)
    A("s_waitcnt vmcnt(0)")
    A(f"v_readlane_b32 s{sT0}, v{vt+1}, s93")
    A(f"v_readlane_b32 s{sT1}, v{vt+1}, s94")
    A(f"v_readlane_b32 s{sT3}, v{vt+1}, {DBG_INIT // 4}")
    A(f"s_lshr_b32 s{sT2}, s{sT1}, 24")
    A(f"s_min_u32 s{sT2}, s{sT2}, s{sT3}")
    A(f"s_cmp_lt_u32 s{sT2}, 32")
    A(f"s_cbranch_scc1 {L}")
    if lab_local is None: return
    if P["force_global"]:
        A(f"s_branch {lab_global}")
    A(f"s_and_b32 s{sT1}, s{sT1}, 0xffffff")
    A(f"s_mul_i32 s{sT2}, s{sXCC}, 6")
    A(f"s_lshl_b64 s[{sT2}:{sT3}], 32, s{sT2}")
    A(f"s_cmp_eq_u64 s[{sT0}:{sT1}], s[{sT2}:{sT3}]")
    A(f"s_cbranch_scc0 {lab_global}")
    A(f"s_cmp_lt_u32 s{sXCC}, 8")
    A(f"s_cbranch_scc0 {lab_global}")
    A(f"s_branch {lab_local}")


def gen_s1(A):
    sU, sHH, sTY, sKS = 30, 31, 32, 33
    sPartRd, sMem0, sMem1, sMem2, sQkv, sMemP, sQkvP = 34, 35, 36, 37, 38, 39, 40
    sXr, sXrEnd, sXrBase, sXflag, sXsrc, sLdsW = 41, 42, 43, 44, 45, 46
    sPartBase, sMemBase, sQkvBase, sXbuf, sH2 = 47, 48, 49, 50, 51
    vL16, vMemSt, vQkvSt, vIdx, vXg, vXrd, vXsum, vPois, vFlagO = 1, 2, 3, 4, 5, 6, 7, 8, 9
    vSel = 128
    vH = 132
    vHld, vHw, vHr, vMkO = 144, 145, 146, 147
    vH2 = 148
    vNearO = 160
    vXB3 = 164
    sPartP, vPois2, vPartSt = 52, 162, 161
    sMk, sMkW = 58, 59
    MEML = 81920
    vT = 10
    vM = 20
    vPt = 60
    vA = 76
    vMx = 84
    vXA = 88
    vXB = 104
    vXO = 120
    A.label("L_s1")
    A(f"s_lshl_b32 s{sU}, s{sR}, 2")
    A(f"s_add_u32 s{sU}, s{sU}, s{sW}")
    A(f"s_mul_i32 s{sHH}, s{sU}, 3641")
    A(f"s_lshr_b32 s{sHH}, s{sHH}, 16")
    A(f"s_mul_i32 s{sT0}, s{sHH}, 18")
    A(f"s_sub_u32 s{sT0}, s{sU}, s{sT0}")
    A(f"s_mul_i32 s{sTY}, s{sT0}, 43")
    A(f"s_lshr_b32 s{sTY}, s{sTY}, 8")
    A(f"s_mul_i32 s{sT1}, s{sTY}, 6")
    A(f"s_sub_u32 s{sKS}, s{sT0}, s{sT1}")
    A("s_load_dwordx4 s[52:55], s[0:1], 16")
    A("s_load_dwordx2 s[56:57], s[0:1], 32")
    A(f"v_lshlrev_b32 v{vL16}, 4, v0")
    A(f"s_and_b32 s{sT2}, s{sW}, 1")
    A(f"s_lshl_b32 s{sT3}, s{sT2}, 2")
    A(f"v_lshrrev_b32 v{vT}, 3, v0")
    A(f"v_and_b32 v{vT+1}, 2, v{vT}")
    A(f"v_or_b32 v{vT+1}, s{sT3}, v{vT+1}")
    A(f"v_xor_b32 v{vT+1}, v0, v{vT+1}")
    A(f"v_and_b32 v{vT+1}, 7, v{vT+1}")
    A(f"v_mul_u32_u24 v{vT}, 12288, v{vT}")
    A(f"v_lshl_add_u32 v{vT}, v{vT+1}, 4, v{vT}")
    A("s_waitcnt lgkmcnt(0)")
    A(f"s_cmp_eq_u32 s{sTY}, 1")
    A(f"s_cselect_b64 s[{sRO}:{sRO+1}], s[54:55], s[52:53]")
    A(f"s_cmp_eq_u32 s{sTY}, 2")
    A(f"s_cselect_b64 s[{sRO}:{sRO+1}], s[56:57], s[{sRO}:{sRO+1}]")
    srd(A, sRO, 640 * 12288)
    A(f"s_lshl_b32 s{sT0}, s{sG}, 2")
    A(f"s_add_u32 s{sT0}, s{sT0}, s{sHH}")
    A(f"s_mul_i32 s{sT0}, s{sT0}, 384")
    A(f"s_lshr_b32 s{sT1}, s{sKS}, 1")
    A(f"s_lshl_b32 s{sT1}, s{sT1}, 7")
    A(f"s_add_u32 s{sT0}, s{sT0}, s{sT1}")
    A(f"s_mul_i32 s{sT1}, s{sT2}, {8 * 12288}")
    A(f"s_add_u32 s{sT0}, s{sT0}, s{sT1}")
    A(f"s_lshr_b32 s{sLdsW}, s{sW}, 1")
    A(f"s_mul_i32 s{sLdsW}, s{sLdsW}, 40960")
    A(f"s_lshl_b32 s{sT1}, s{sT2}, 10")
    A(f"s_add_u32 m0, s{sLdsW}, s{sT1}")
    A("s_nop 0")
    for i in range(40):
        A(f"buffer_load_dwordx4 v{vT}, s[{sRO}:{sRO+3}], s{sT0} offen{' nt' if P['wnt'] else ''} lds")
        if i < 39:
            A(f"s_add_u32 m0, m0, {2048 + (40960 if i == 19 else 0)}")
            A(f"s_add_u32 s{sT0}, s{sT0}, {16 * 12288}")
    A(f"s_lshl_b32 s{sT0}, s{sU}, 10")
    A(f"s_add_u32 s{sT0}, s{sT0}, 8192")
    A(f"buffer_load_dwordx4 v[{vM}:{vM+3}], v{vL16}, s[{sX}:{sX+3}], s{sT0} offen")
    A(f"v_and_b32 v{vT+1}, 15, v0")
    A(f"v_lshrrev_b32 v{vT+2}, 4, v0")
    A(f"v_cmp_gt_u32 vcc, 8, v{vT+1}")
    A(f"v_mov_b32 v{vT+3}, 0xeeee")
    A(f"v_mov_b32 v{vT+4}, 0x4444")
    A(f"v_cndmask_b32 v{vIdx}, v{vT+3}, v{vT+4}, vcc")
    A(f"v_mov_b32 v{vPois}, -1")
    A(f"v_lshrrev_b32 v{vXg}, 2, v0")
    A(f"v_mul_u32_u24 v{vXg}, 1280, v{vXg}")
    A(f"v_sub_u32 v{vT+3}, 0, v{vT+2}")
    A(f"v_xor_b32 v{vT+3}, v0, v{vT+3}")
    A(f"v_and_b32 v{vT+3}, 3, v{vT+3}")
    A(f"v_lshl_add_u32 v{vXg}, v{vT+3}, 4, v{vXg}")
    A(f"v_lshrrev_b32 v{vT+3}, 2, v{vT+1}")
    A(f"v_sub_u32 v{vT+3}, 0, v{vT+3}")
    A(f"v_xor_b32 v{vT+3}, v{vT+2}, v{vT+3}")
    A(f"v_and_b32 v{vT+3}, 3, v{vT+3}")
    A(f"v_lshl_add_u32 v{vT+3}, v{vT+1}, 2, v{vT+3}")
    A(f"v_lshlrev_b32 v{vXrd}, 4, v{vT+3}")
    A(f"v_lshlrev_b32 v{vXsum}, 5, v{vT+3}")
    A(f"v_add_u32 v{vXsum}, 40960, v{vXsum}")
    A(f"v_lshrrev_b32 v{vT+3}, 2, v{vT+1}")
    A(f"v_and_b32 v{vT+4}, 1, v{vT+1}")
    A(f"v_lshlrev_b32 v{vT+4}, 4, v{vT+4}")
    A(f"v_mov_b32 v{vT+5}, 0x3f80")
    A(f"v_lshlrev_b32 v{vT+4}, v{vT+4}, v{vT+5}")
    for r in range(4):
        A(f"v_cmp_eq_u32 vcc, {r}, v{vT+3}")
        A("s_nop 1")
        A(f"v_cndmask_b32 v{vSel+r}, 0, v{vT+4}, vcc")
    A(f"s_lshl_b32 s{sT0}, s{sW}, 10")
    A(f"v_add_u32 v{vHld}, s{sT0}, v{vL16}")
    A(f"v_add_u32 v{vHw}, {MEML}, v{vHld}")
    A(f"v_add_u32 v{vHr}, {MEML}, v{vL16}")
    A(f"s_cmp_ge_u32 s{sU}, 40")
    A(f"s_cselect_b32 s{sT0}, 40, 0")
    A(f"s_sub_u32 s{sT0}, s{sU}, s{sT0}")
    A(f"s_lshr_b32 s{sPartBase}, s{sT0}, 2")
    A(f"s_lshl_b32 s{sPartBase}, s{sPartBase}, 14")
    A(f"s_and_b32 s{sT1}, s{sT0}, 3")
    A(f"s_lshl_b32 s{sT1}, s{sT1}, 11")
    A(f"s_add_u32 s{sPartBase}, s{sPartBase}, s{sT1}")
    A(f"s_add_u32 s{sPartBase}, s{sPartBase}, {PART}")
    A(f"v_and_b32 v{vT+3}, 7, v0")
    A(f"v_bfe_u32 v{vT+4}, v0, 4, 1")
    A(f"v_lshl_add_u32 v{vT+3}, v{vT+4}, 3, v{vT+3}")
    A(f"v_lshlrev_b32 v{vT+3}, 4, v{vT+3}")
    A(f"v_bfe_u32 v{vT+4}, v0, 3, 1")
    A(f"v_lshl_add_u32 v{vT+3}, v{vT+4}, 3, v{vT+3}")
    A(f"v_lshrrev_b32 v{vT+4}, 5, v0")
    A(f"v_lshl_add_u32 v{vT+3}, v{vT+4}, 2, v{vT+3}")
    A(f"s_lshl_b32 s{sT0}, s{sT0}, 8")
    A(f"s_cmp_ge_u32 s{sU}, 40")
    A(f"s_cselect_b32 s{sT0}, {OOB}, s{sT0}")
    A(f"v_add_u32 v{vMemSt}, s{sT0}, v{vT+3}")
    A(f"v_and_b32 v{vT+3}, 31, v0")
    A(f"v_lshlrev_b32 v{vT+3}, 3, v{vT+3}")
    A(f"v_lshrrev_b32 v{vT+4}, 5, v0")
    A(f"v_lshl_add_u32 v{vT+3}, v{vT+4}, 13, v{vT+3}")
    A(f"s_lshl_b32 s{sT0}, s{sG}, 8")
    A(f"s_cmp_ge_u32 s{sU}, 40")
    A(f"s_cselect_b32 s{sT0}, {OOB}, s{sT0}")
    A(f"v_add_u32 v{vPartSt}, s{sT0}, v{vT+3}")
    A(f"v_mov_b32 v{vPois2}, -1")
    A(f"v_mov_b32 v{vPois2+1}, -1")
    A(f"v_bfe_u32 v{vT+3}, v0, 4, 1")
    A(f"v_lshrrev_b32 v{vT+4}, 5, v0")
    A(f"v_lshlrev_b32 v{vT+3}, 2, v{vT+3}")
    A(f"v_lshl_add_u32 v{vT+3}, v{vT+4}, 1, v{vT+3}")
    A(f"s_and_b32 s{sT0}, s{sKS}, 1")
    A(f"s_lshr_b32 s{sT1}, s{sKS}, 1")
    A(f"s_lshl_b32 s{sT1}, s{sT1}, 10")
    A(f"v_lshrrev_b32 v{vT+4}, 2, v{vT+1}")
    A(f"v_lshl_add_u32 v{vT+4}, v{vT+4}, 4, v{vT+3}")
    A(f"v_lshlrev_b32 v{vT+4}, 4, v{vT+4}")
    A(f"v_and_b32 v{vT+5}, 3, v{vT+1}")
    A(f"v_lshl_add_u32 v{vT+4}, v{vT+5}, 2, v{vT+4}")
    A(f"s_lshl_b32 s{sT2}, s{sT0}, 7")
    A(f"s_add_u32 s{sT2}, s{sT2}, s{sT1}")
    A(f"v_add_u32 v{vT+4}, s{sT2}, v{vT+4}")
    A(f"v_lshrrev_b32 v{vT+5}, 3, v{vT+1}")
    A(f"v_lshl_add_u32 v{vT+5}, v{vT+5}, 4, v{vT+3}")
    A(f"v_and_b32 v{vT+6}, 1, v{vT+1}")
    A(f"v_lshl_add_u32 v{vT+5}, v{vT+6}, 3, v{vT+5}")
    A(f"v_lshlrev_b32 v{vT+5}, 4, v{vT+5}")
    A(f"v_bfe_u32 v{vT+6}, v{vT+1}, 1, 2")
    A(f"v_lshl_add_u32 v{vT+5}, v{vT+6}, 2, v{vT+5}")
    A(f"s_lshl_b32 s{sT2}, s{sT0}, 9")
    A(f"s_add_u32 s{sT2}, s{sT2}, s{sT1}")
    A(f"v_add_u32 v{vT+5}, s{sT2}, v{vT+5}")
    A(f"s_cmp_eq_u32 s{sTY}, 2")
    A(f"s_cselect_b64 vcc, -1, 0")
    A(f"v_cndmask_b32 v{vQkvSt}, v{vT+4}, v{vT+5}, vcc")
    A(f"v_cmp_eq_u32 vcc, 0, v0")
    A(f"v_mov_b32 v{vT+4}, {OOB}")
    A("s_nop 0")
    A(f"v_cndmask_b32 v{vFlagO}, v{vT+4}, v0, vcc")
    A(f"s_lshl_b32 s{sT0}, s{sG}, 2")
    A(f"s_add_u32 s{sT0}, s{sT0}, {DBG_NEAR}")
    A(f"v_mov_b32 v{vNearO}, s{sT0}")
    A(f"v_min_u32 v{vMkO}, 9, v0")
    A(f"v_lshlrev_b32 v{vMkO}, 2, v{vMkO}")
    A(f"s_lshl_b32 s{sMk}, s{sG}, 7")
    A(f"s_lshl_b32 s{sT0}, s{sR}, 2")
    A(f"s_add_u32 s{sMkW}, s{sMk}, s{sT0}")
    A(f"s_add_u32 s{sMkW}, s{sMkW}, {S1MARK}")
    A(f"s_cmp_eq_u32 s{sW}, 0")
    A(f"s_cselect_b32 s{sMkW}, s{sMkW}, {OOB}")
    A(f"s_add_u32 s{sMk}, s{sMk}, {S2MARK}")
    A(f"s_cmp_lt_u32 s{sW}, 2")
    A(f"s_cselect_b32 s{sH2}, 8192, 0")
    A(f"s_mul_i32 s{sMemBase}, s{sG}, 40960")
    A(f"s_mul_i32 s{sT0}, s{sHH}, 3")
    A(f"s_add_u32 s{sT0}, s{sT0}, s{sTY}")
    A(f"s_mul_i32 s{sQkvBase}, s{sG}, 147456")
    A(f"s_mul_i32 s{sT1}, s{sT0}, 3072")
    A(f"s_add_u32 s{sQkvBase}, s{sQkvBase}, s{sT1}")
    A(f"s_add_u32 s{sQkvBase}, s{sQkvBase}, {QKVR}")
    A(f"s_mul_i32 s{sXrBase}, s{sG}, {XR_G}")
    A(f"s_lshl_b32 s{sT1}, s{sU}, 1")
    A(f"s_add_u32 s{sT1}, s{sT1}, s{sHH}")
    A(f"s_lshl_b32 s{sT1}, s{sT1}, 10")
    A(f"s_add_u32 s{sXrBase}, s{sXrBase}, s{sT1}")
    A(f"s_add_u32 s{sXrBase}, s{sXrBase}, {XR}")
    A(f"s_add_u32 s{sXrEnd}, s{sXrBase}, {XR_G}")
    A(f"s_mov_b32 s{sXr}, s{sXrBase}")
    A(f"s_lshl_b32 s{sXflag}, s{sG}, 9")
    A(f"s_lshl_b32 s{sT1}, s{sU}, 2")
    A(f"s_add_u32 s{sXflag}, s{sXflag}, s{sT1}")
    A(f"s_add_u32 s{sXflag}, s{sXflag}, {XFLAG}")
    A(f"v_bfe_u32 v{vT+3}, v0, 2, 2")
    A(f"v_lshl_add_u32 v{vT+4}, v{vT+2}, 3, v{vT+3}")
    A(f"v_lshlrev_b32 v{vT+4}, 7, v{vT+4}")
    A(f"v_and_b32 v{vT+5}, 1, v0")
    A(f"v_lshl_add_u32 v{vT+4}, v{vT+5}, 3, v{vT+4}")
    A(f"v_add_u32 v{vT+4}, s{sLdsW}, v{vT+4}")
    A(f"v_and_b32 v{vT+3}, 2, v{vT+3}")
    A(f"v_and_b32 v{vT+5}, 1, v{vT+2}")
    A(f"v_lshl_add_u32 v{vT+3}, v{vT+5}, 2, v{vT+3}")
    A(f"v_bfe_u32 v{vT+5}, v0, 1, 1")
    A(f"s_and_b32 s{sT0}, s{sW}, 1")
    A(f"s_lshl_b32 s{sT0}, s{sT0}, 2")
    A(f"v_or_b32 v{vT+5}, s{sT0}, v{vT+5}")
    A(f"v_xor_b32 v{vT+5}, v{vT+5}, v{vT+3}")
    A(f"v_xor_b32 v{vT+6}, 2, v{vT+5}")
    A(f"v_lshl_add_u32 v{vT+5}, v{vT+5}, 4, v{vT+4}")
    A(f"v_lshl_add_u32 v{vT+6}, v{vT+6}, 4, v{vT+4}")
    def trhalf(h):
        for kd in range(10 * h, 10 * h + 10):
            for t in range(2):
                for hf in range(2):
                    A(f"ds_read_b64_tr_b16 a[{80*t+4*kd+2*hf}:{80*t+4*kd+2*hf+1}], v{vT+5+t} offset:{(kd%10)*4096+hf*512}")
    A("s_waitcnt vmcnt(21)")
    A("s_barrier")
    trhalf(0)
    A(f"v_add_u32 v{vT+5}, 81920, v{vT+5}")
    A(f"v_add_u32 v{vT+6}, 81920, v{vT+6}")
    A("s_waitcnt lgkmcnt(0)")
    A("s_barrier")
    A(f"s_mul_i32 s{sXsrc}, s{sW}, 320")
    A(f"s_mul_i32 s{sLdsW}, s{sW}, 10240")
    A(f"s_mov_b32 s{sXbuf}, 0")
    def xdma():
        A(f"s_add_u32 m0, s{sLdsW}, s{sXbuf}")
        for i in range(5):
            for tt in range(2):
                A(f"s_add_u32 s{sT0}, s{sXsrc}, {tt * 20480 + i * 64}")
                A(f"buffer_load_dwordx4 v{vXg}, s[{sX}:{sX+3}], s{sT0} offen lds")
                if not (i == 4 and tt == 1):
                    A("s_add_u32 m0, m0, 1024")
        A(f"s_add_u32 s{sXsrc}, s{sXsrc}, 40960")
        A(f"s_sub_u32 s{sXbuf}, 40960, s{sXbuf}")
    xdma()
    A("s_waitcnt vmcnt(10)")
    A("s_barrier")
    trhalf(1)
    ostamp(A, 0, 1)
    A(f"s_mov_b32 s{sS}, -2")
    gen_locality(A, "L_s1_loc", "L_s1_glb", vT)

    for mode in ("loc", "glb"):
        sc = "" if mode == "loc" else " sc1"
        Lb, Ls3, Lh1, Lslow, Lcont, Lnox = [f"L_s1_{mode}_{x}" for x in ("bub", "s3", "h1", "slow", "cont", "nox")]
        A.label(f"L_s1_{mode}")
        A("s_waitcnt lgkmcnt(0)")
        A.label(Lb)
        A(f"s_add_u32 s{sT0}, s{sS}, 1")
        A(f"v_mov_b32 v{vT+2}, s{sT0}")
        A(f"v_add_u32 v{vT+3}, 2, v{vT+2}")
        A("s_barrier")
        A(f"buffer_store_dword v{vT+2}, v{vFlagO}, {WSR}, s{sMkW} offen{sc}")
        stamp(A, 5)
        fstamp(A, 5, 250)
        def house():
            return [f"s_cmp_lt_i32 s{sS}, 1",
                f"s_cselect_b32 s{sMemP}, {OOB}, s{sMemP}",
                f"s_cselect_b32 s{sQkvP}, {OOB}, s{sQkvP}",
                f"s_cselect_b32 s{sPartP}, {OOB}, s{sPartP}",
                f"buffer_store_dword v{vPois}, v{vMemSt}, {WSR}, s{sMemP} offen{sc}",
                f"buffer_store_dword v{vPois}, v{vQkvSt}, {WSR}, s{sQkvP} offen{sc}",
                f"buffer_store_dword v{vPois}, v{vQkvSt}, {WSR}, s{sQkvP} offen offset:16{sc}",
                f"buffer_store_dwordx2 {v(vPois2,2)}, v{vPartSt}, {WSR}, s{sPartP} offen sc1",
                f"buffer_load_dword v{vT+4}, v{vNearO}, s[{sDBG}:{sDBG+3}], 0 offen sc1",
                f"s_and_b32 s{sT1}, s{sS}, 3",
                f"s_mul_i32 s{sPartRd}, s{sT1}, {PART_SLOT}",
                f"s_add_u32 s{sPartRd}, s{sPartRd}, s{sPartBase}",
                f"s_mul_i32 s{sMemP}, s{sT1}, 10240",
                f"s_add_u32 s{sMemP}, s{sMemP}, s{sMemBase}",
                f"s_add_u32 s{sT1}, s{sS}, 3",
                f"s_and_b32 s{sT1}, s{sT1}, 3",
                f"s_mul_i32 s{sPartP}, s{sT1}, {PART_SLOT}",
                f"s_add_u32 s{sPartP}, s{sPartP}, s{sPartBase}",
                f"s_mul_i32 s{sQkvP}, s{sT1}, 36864",
                f"s_add_u32 s{sQkvP}, s{sQkvP}, s{sQkvBase}",
                f"s_add_u32 s{sT1}, s{sS}, 1",
                f"s_and_b32 s{sT1}, s{sT1}, 3",
                f"s_mul_i32 s{sMem0}, s{sT1}, 10240",
                f"s_add_u32 s{sMem0}, s{sMem0}, s{sMemBase}",
                f"s_add_u32 s{sMem1}, s{sMem0}, 4096",
                f"s_add_u32 s{sMem2}, s{sMem0}, s{sH2}",
                f"s_mul_i32 s{sQkv}, s{sT1}, 36864",
                f"s_add_u32 s{sQkv}, s{sQkv}, s{sQkvBase}"]
        Lxd = A.newlabel("xdone")
        A(f"s_cmp_ge_i32 s{sS}, {P['nseg'] - 2}")
        A(f"s_cbranch_scc1 {Lnox}")
        fstamp(A, 6, 250)
        if P["prof"] in (3, 5): A("s_waitcnt lgkmcnt(0)")
        def xrd(kd, tt):
            b = vXB3 + 8 * (kd % 3) + 4 * tt
            A(f"ds_read_b128 v[{b}:{b+3}], v{vXrd} offset:{(2*kd+tt)*1024}")
        xrd(0, 0); xrd(0, 1); xrd(1, 0); xrd(1, 1)
        A(f"s_add_u32 m0, s{sLdsW}, s{sXbuf}")
        hk = house()
        A(hk.pop(0))
        A("s_waitcnt lgkmcnt(2)")
        for kd in range(20):
            cur = vXB3 + 8 * (kd % 3)
            n = 0
            for tt in range(2):
                for t in range(2):
                    acc = vXA + 4 * (2 * tt + t)
                    c = "0" if kd == 0 else v(acc, 4)
                    A(f"v_mfma_f32_16x16x32_bf16 {v(acc,4)}, {a(80*t+4*kd,4)}, {v(cur+4*tt,4)}, {c}")
                    if n < 2 and kd < 18: xrd(kd + 2, n)
                    D0 = P["dma0"]; dk = kd - D0
                    if 0 <= dk < 10:
                        if n == 0: A(f"s_add_u32 s{sT0}, s{sXsrc}, {(dk & 1) * 20480 + (dk >> 1) * 64}")
                        if n == 2: A(f"buffer_load_dwordx4 v{vXg}, s[{sX}:{sX+3}], s{sT0} offen lds")
                        if n == 3: A("s_add_u32 m0, m0, 1024")
                    elif n < 3 and hk:
                        A(hk.pop(0))
                        if n == 2 and hk: A(hk.pop(0))
                    if n == 3 and kd < 19: A(f"s_waitcnt lgkmcnt({2 if kd < 18 else 0})")
                    n += 1
        assert not hk
        fstamp(A, 7, 250)
        A(f"s_add_u32 s{sXsrc}, s{sXsrc}, 40960")
        A(f"s_sub_u32 s{sXbuf}, 40960, s{sXbuf}")
        A(f"v_sub_u32 v{vXrd}, v{vXsum}, v{vXrd}")
        A(f"s_mov_b32 s{sT0}, s{sXr}")
        A(f"s_add_u32 s{sXr}, s{sXr}, {XR_SLOT}")
        A(f"s_cmp_eq_u32 s{sXr}, s{sXrEnd}")
        A(f"s_cselect_b32 s{sXr}, s{sXrBase}, s{sXr}")
        for tt in range(2):
            for r in range(4):
                A(f"v_cvt_pk_bf16_f32 v{vXO+4*tt+r}, v{vXA+8*tt+r}, v{vXA+8*tt+4+r}")
            A(f"buffer_store_dwordx4 {v(vXO+4*tt,4)}, v{vL16}, {WSR}, s{sT0} offen offset:{1024*tt}{sc}")
        fstamp(A, 8, 250)
        fstamp(A, 9, 250)
        A(f"s_branch {Lxd}")
        A.label(Lnox)
        for x in house(): A(x)
        A.label(Lxd)
        stamp(A, 6)
        fstamp_collect(A, 11, 250)
        stamp_flush(A)
        A(f"s_add_u32 s{sS}, s{sS}, 1")
        A("s_waitcnt vmcnt(0)")
        A(f"buffer_store_dword v{vT+3}, v{vFlagO}, {WSR}, s{sXflag} offen{sc}")
        A(f"v_readfirstlane_b32 s{sT0}, v{vT+4}")
        A(f"s_cmp_eq_u32 s{sT0}, {2 if mode == 'loc' and P['near'] else 99}")
        A(f"s_cselect_b32 s{sT0}, 8192, 0")
        A(f"s_add_u32 s{sPartRd}, s{sPartRd}, s{sT0}")
        A(f"s_cmp_lt_i32 s{sS}, 0")
        A(f"s_cbranch_scc1 {Lb}")
        A(f"s_cmp_eq_u32 s{sS}, {P['nseg']}")
        A("s_cbranch_scc1 L_s1_done")
        A(f"s_cmp_eq_u32 s{sS}, 0")
        A(f"s_cbranch_scc1 {Lh1}")
        if mode == "loc":
            def miss(r):
                A(f"v_cmp_gt_u32 vcc, s{sS}, v{r}")
                if P["s3_miss"] == 0: return "s_cbranch_vccz"
                A(f"s_and_b32 s{sT0}, vcc_lo, 0x3ff")
                A(f"s_bcnt1_i32_b32 s{sT0}, s{sT0}")
                A(f"s_cmp_gt_u32 s{sT0}, {P['s3_miss']}")
                return "s_cbranch_scc0"
            Lg = A.newlabel("gate")
            A(f"s_cmp_lg_u32 s{sW}, 0")
            A(f"s_cbranch_scc1 {Lg}")
            dense_poll(A, [vT + i for i in range(P["dp"])], lambda r: A(f"buffer_load_dword v{r}, v{vMkO}, {WSR}, s{sMk} offen sc1"), miss, 13)
            A.label(Lg)
            A("s_barrier")
        if P["s3_nop"]: A.nop(P["s3_nop"])
        fstamp(A, 10, 250)
        A.label(Ls3)
        stamp(A, 0)
        fstamp(A, 0, 250)
        for i in range(2):
            A(f"buffer_load_dwordx4 {v(vPt+4*i,4)}, v{vL16}, {WSR}, s{sPartRd} offen offset:{1024*i} sc1")
        A("s_waitcnt vmcnt(1)")
        A(f"v_mfma_f32_16x16x32_bf16 {v(vT,4)}, {v(vSel,4)}, {v(vPt,4)}, 0")
        A("s_waitcnt vmcnt(0)")
        A(f"v_mfma_f32_16x16x32_bf16 {v(vT,4)}, {v(vSel,4)}, {v(vPt+4,4)}, {v(vT,4)}")
        A.nop(8)
        A(f"v_cmp_u_f32 vcc, v{vT}, v{vT+1}")
        A(f"v_cvt_pk_bf16_f32 v{vT+4}, v{vT}, v{vT+1}")
        A(f"s_cbranch_vccnz {Lslow}")
        A.label(Lcont)
        A(f"buffer_store_dword v{vT+4}, v{vMemSt}, {WSR}, s{sMem0} offen{sc}")
        stamp(A, 1)
        fstamp(A, 1, 250)
        if P.get("memdbg"):
            A(f"s_mul_i32 s{sT0}, s{sS}, 10240")
            A(f"s_add_u32 s{sT0}, s{sT0}, {MEMDBG}")
            A(f"buffer_store_dword v{vT+4}, v{vMemSt}, {WSR}, s{sT0} offen")
        if P["h1_nop"]: A.nop(P["h1_nop"])
        A.label(Lh1)
        Lretry, Lhok = f"L_s1_{mode}_h1retry", f"L_s1_{mode}_h1ok"
        def h1ld(b):
            for i in range(3):
                A(f"buffer_load_dwordx4 {v(b+4*i,4)}, v{vHld}, {WSR}, s{(sMem0, sMem1, sMem2)[i]} offen sc1")
        def h1chk(b, later):
            A(f"s_waitcnt vmcnt({2+later})")
            A(f"ds_write_b128 v{vHw}, {v(b,4)}")
            A(f"v_max3_u32 v{vMx}, v{b}, v{b+1}, v{b+2}")
            A(f"s_waitcnt vmcnt({1+later})")
            A(f"ds_write_b128 v{vHw}, {v(b+4,4)} offset:4096")
            A(f"v_max3_u32 v{vMx}, v{b+3}, v{b+4}, v{vMx}")
            A(f"v_max3_u32 v{vMx}, v{b+5}, v{b+6}, v{vMx}")
            A(f"s_waitcnt vmcnt({later})")
            A(f"ds_write_b128 v{vHw}, {v(b+8,4)} offset:8192")
            A(f"v_max3_u32 v{vMx}, v{b+7}, v{b+8}, v{vMx}")
            A(f"v_max3_u32 v{vMx}, v{b+9}, v{b+10}, v{vMx}")
            A(f"v_max_u32 v{vMx}, v{b+11}, v{vMx}")
            A(f"v_cmp_eq_u32 vcc, -1, v{vMx}")
            A("s_waitcnt lgkmcnt(0)")
        h1ld(vH)
        fstamp(A, 2, 250)
        for r in range(8):
            A(f"v_mov_b32 v{vA+r}, 0")
        if P["h1_two"]:
            A(f"s_sleep {P['h1_two']}")
            h1ld(vH2)
            h1chk(vH, 3)
        else:
            h1chk(vH, 0)
        A(f"s_cbranch_vccnz {Lretry}")
        A.label(Lhok)
        A("s_barrier")
        fstamp(A, 3, 250)
        if P["prof"] in (3, 5): A("s_waitcnt lgkmcnt(0)")
        for j in range(10):
            A(f"ds_read_b128 {v(vM+4*j,4)}, v{vHr} offset:{1024*j}")
        for j in range(10):
            A(f"s_waitcnt lgkmcnt({9-j})")
            A(f"v_smfmac_f32_16x16x64_bf16 {v(vA,4)}, {v(vM+4*j,4)}, {a(8*j,8)}, v{vIdx}")
            A(f"v_smfmac_f32_16x16x64_bf16 {v(vA+4,4)}, {v(vM+4*j,4)}, {a(80+8*j,8)}, v{vIdx}")
        A.nop(7)
        A(f"v_permlane32_swap_b32 v{vA}, v{vA+2}")
        A(f"v_permlane32_swap_b32 v{vA+1}, v{vA+3}")
        A(f"v_permlane32_swap_b32 v{vA+4}, v{vA+6}")
        A(f"v_permlane32_swap_b32 v{vA+5}, v{vA+7}")
        A(f"v_add_f32 v{vA}, v{vA}, v{vA+2}")
        A(f"v_add_f32 v{vA+4}, v{vA+4}, v{vA+6}")
        A(f"v_add_f32 v{vA+1}, v{vA+1}, v{vA+3}")
        A(f"v_add_f32 v{vA+5}, v{vA+5}, v{vA+7}")
        A(f"v_cvt_pk_bf16_f32 v{vT}, v{vA}, v{vA+4}")
        A(f"buffer_store_dword v{vT}, v{vQkvSt}, {WSR}, s{sQkv} offen{sc}")
        A(f"v_cvt_pk_bf16_f32 v{vT+1}, v{vA+1}, v{vA+5}")
        A(f"buffer_store_dword v{vT+1}, v{vQkvSt}, {WSR}, s{sQkv} offen offset:16{sc}")
        stamp(A, 4)
        fstamp(A, 4, 250)
        A(f"s_branch {Lb}")
        A.label(Lretry)
        stamp(A, 3)
        budget_check(A, 3)
        if P["h1_two"]:
            h1ld(vH)
            h1chk(vH2, 3)
            A(f"s_cbranch_vccz {Lhok}")
            h1ld(vH2)
            h1chk(vH, 3)
            A(f"s_cbranch_vccz {Lhok}")
            A(f"s_branch {Lretry}")
        else:
            A(f"s_branch {Lh1}")
        A.label(Lslow)
        A(f"v_max3_u32 v{vMx}, v{vPt}, v{vPt+1}, v{vPt+2}")
        for i in range(3, 7, 2):
            A(f"v_max3_u32 v{vMx}, v{vPt+i}, v{vPt+i+1}, v{vMx}")
        A(f"v_max_u32 v{vMx}, v{vPt+7}, v{vMx}")
        A(f"v_cmp_eq_u32 vcc, -1, v{vMx}")
        A(f"v_min_u32 v{vT+4}, -2, v{vT+4}")
        A(f"s_cbranch_vccz {Lcont}")
        budget_check(A, 2)
        A(f"s_branch {Ls3}")

    A.label("L_s1_done")
    A(f"s_cmp_lg_u32 s{sW}, 0")
    A("s_cbranch_scc1 L_end")
    A("s_cmp_ge_u32 s2, 80")
    A("s_cbranch_scc1 L_end")
    A(f"s_add_u32 s74, s2, {20 * (P['nseg'] - 4)}")
    A("s_mov_b32 s79, 0")
    A("s_mov_b32 s32, 0")
    A("s_branch L_mixent")

def gen_s2(A):
    sJ = 30
    sQkv, sQkvBase, sPartW, sPartP, sPartBase, sXk, sXv, sXrBase, sXrEnd = 31, 32, 33, 34, 35, 36, 37, 38, 39
    sPx, sPxBase, sXp, sXpF, sXfl, sMark, sMk1, sC, sNeed = 40, 41, 42, 43, 44, 45, 46, 47, 48
    sQkv1, sQkv2 = 49, 50
    sXk1, sXk2, sXv1, sXv2 = 51, 52, 53, 54
    sLo = 56
    sSt0, sSt1, sSt2, sSt3 = 58, 59, 88, 89
    vL16, vKmO, vIdx, vRedW, vRedR, vPartO, vL8, vFlagO, vXflO, vProbe, vRed2R = 1, 2, 3, 4, 5, 6, 7, 8, 9, 10, 11
    vPois = 12
    vT = 16
    vQ, vKM, vVM = 32, 44, 56
    vFl, vMx, vMark = 68, 69, 98
    vOne32, vOne16 = 70, 74
    vS, vSM, vW = 76, 92, 96
    vVA, vF, vDen, vPb = 100, 116, 132, 136
    vVOM2 = (142, 228)
    vRed2W, vXfv = 99, 150
    fin_parts = {}
    vVOX, vXA, vPX = 152, 184, 216
    aKX, aVX = 96, 144
    vXOUT = 24
    RED, RED2 = 98304, 106496
    c = (192 ** -0.5) * math.log2(math.e)
    A.label("L_s2")
    A(f"s_sub_u32 s{sJ}, s{sR}, 18")
    A(f"s_load_dwordx2 s[{sRO}:{sRO+1}], s[0:1], 40")
    A(f"v_lshlrev_b32 v{vL16}, 4, v0")
    A(f"v_lshrrev_b32 v{vT}, 3, v0")
    A(f"v_mul_u32_u24 v{vT}, 1280, v{vT}")
    A(f"v_and_b32 v{vT+1}, 7, v0")
    A(f"v_lshl_add_u32 v{vT}, v{vT+1}, 4, v{vT}")
    A(f"s_lshl_b32 s{sT0}, s{sG}, 2")
    A(f"s_add_u32 s{sT0}, s{sT0}, s{sW}")
    A(f"s_mul_i32 s{sT0}, s{sT0}, {192 * 1280}")
    A(f"s_lshl_b32 s{sT1}, s{sJ}, 7")
    A(f"s_add_u32 s{sT0}, s{sT0}, s{sT1}")
    A(f"s_mul_i32 s{sT2}, s{sW}, 24576")
    A(f"s_mov_b32 m0, s{sT2}")
    A("s_waitcnt lgkmcnt(0)")
    srd(A, sRO, 6144 * 1280)
    for i in range(24):
        A(f"buffer_load_dwordx4 v{vT}, s[{sRO}:{sRO+3}], s{sT0} offen{' nt' if P['wnt'] else ''} lds")
        if i < 23:
            A("s_add_u32 m0, m0, 1024")
            A(f"s_add_u32 s{sT0}, s{sT0}, {8 * 1280}")
    A(f"v_and_b32 v{vT+1}, 15, v0")
    A(f"v_lshrrev_b32 v{vT+2}, 4, v0")
    A(f"v_cmp_gt_u32 s[{sLo}:{sLo+1}], 8, v{vT+1}")
    A(f"v_mov_b32 v{vT+3}, 0xeeee")
    A(f"v_mov_b32 v{vT+4}, 0x4444")
    A(f"v_cndmask_b32 v{vIdx}, v{vT+3}, v{vT+4}, s[{sLo}:{sLo+1}]")
    for r in range(4): A(f"v_mov_b32 v{vPois+r}, -1")
    A(f"v_lshlrev_b32 v{vL8}, 3, v0")
    A(f"v_mov_b32 v{vT+3}, 0x3f803f80")
    for r in range(4): A(f"v_mov_b32 v{vOne32+r}, v{vT+3}")
    A(f"v_cmp_gt_u32 vcc, 32, v0")
    A("s_nop 1")
    for r in range(2): A(f"v_cndmask_b32 v{vOne16+r}, 0, v{vT+3}, vcc")
    A(f"s_lshl_b32 s{sT0}, s{sW}, 11")
    A(f"s_add_u32 s{sT0}, s{sT0}, {RED}")
    A(f"v_lshrrev_b32 v{vT+3}, 1, v0")
    A(f"v_and_b32 v{vT+3}, 8, v{vT+3}")
    A(f"v_xor_b32 v{vT+3}, v0, v{vT+3}")
    A(f"v_lshl_add_u32 v{vRedW}, v{vT+3}, 4, s{sT0}")
    A(f"v_and_b32 v{vT+3}, 15, v0")
    A(f"v_bfe_u32 v{vT+4}, v0, 3, 2")
    A(f"v_lshl_add_u32 v{vT+3}, v{vT+4}, 4, v{vT+3}")
    A(f"s_lshr_b32 s{sT1}, s{sW}, 1")
    A(f"s_lshl_b32 s{sT1}, s{sT1}, 3")
    A(f"v_xor_b32 v{vT+3}, s{sT1}, v{vT+3}")
    A(f"s_and_b32 s{sT0}, s{sW}, 1")
    A(f"s_lshl_b32 s{sT0}, s{sT0}, 10")
    A(f"s_add_u32 s{sT0}, s{sT0}, {RED}")
    A(f"v_lshl_add_u32 v{vRedR}, v{vT+3}, 4, s{sT0}")
    A(f"s_lshl_b32 s{sT0}, s{sW}, 11")
    A(f"s_add_u32 s{sT0}, s{sT0}, {RED2}")
    A(f"v_add_u32 v{vRed2R}, s{sT0}, v{vL16}")
    A(f"s_lshl_b32 s{sT0}, s{sW}, 13")
    A(f"s_add_u32 s{sT0}, s{sT0}, {RED2}")
    A(f"v_add_u32 v{vRed2W}, s{sT0}, v{vL16}")
    A(f"v_and_b32 v{vT+4}, 7, v0")
    A(f"v_bfe_u32 v{vT+5}, v0, 4, 1")
    A(f"v_lshl_add_u32 v{vT+4}, v{vT+5}, 3, v{vT+4}")
    A(f"v_lshlrev_b32 v{vT+4}, 4, v{vT+4}")
    A(f"v_and_b32 v{vT+5}, 8, v0")
    A(f"v_add_u32 v{vT+4}, v{vT+5}, v{vT+4}")
    A(f"v_lshrrev_b32 v{vT+5}, 5, v0")
    A(f"v_lshl_add_u32 v{vPartO}, v{vT+5}, 13, v{vT+4}")
    A(f"v_mov_b32 v{vT+3}, {OOB}")
    A(f"v_cmp_eq_u32 vcc, 0, v0")
    A("s_nop 1")
    A(f"v_cndmask_b32 v{vFlagO}, v{vT+3}, v0, vcc")
    A(f"v_min_u32 v{vXflO}, 11, v0")
    A(f"v_lshlrev_b32 v{vXflO}, 2, v{vXflO}")
    A(f"v_min_u32 v{vProbe}, 17, v0")
    A(f"v_lshlrev_b32 v{vProbe}, 2, v{vProbe}")
    A(f"s_mul_i32 s{sQkvBase}, s{sG}, 147456")
    A(f"s_mul_i32 s{sT0}, s{sW}, 9216")
    A(f"s_add_u32 s{sQkvBase}, s{sQkvBase}, s{sT0}")
    A(f"s_add_u32 s{sQkvBase}, s{sQkvBase}, {QKVR}")
    A(f"s_lshl_b32 s{sPartBase}, s{sJ}, 14")
    A(f"s_lshl_b32 s{sT0}, s{sW}, 11")
    A(f"s_add_u32 s{sPartBase}, s{sPartBase}, s{sT0}")
    A(f"s_lshl_b32 s{sT0}, s{sG}, 8")
    A(f"s_add_u32 s{sPartBase}, s{sPartBase}, s{sT0}")
    A(f"s_add_u32 s{sPartBase}, s{sPartBase}, {PART}")
    A(f"s_mul_i32 s{sXrBase}, s{sG}, {XR_G}")
    A(f"s_mul_i32 s{sT0}, s{sW}, {XR_HEAD}")
    A(f"s_add_u32 s{sXrBase}, s{sXrBase}, s{sT0}")
    A(f"s_add_u32 s{sXrBase}, s{sXrBase}, {0x5000000 if P.get('x_fixkv') else XR}")
    A(f"s_add_u32 s{sXrEnd}, s{sXrBase}, {XR_G}")
    A(f"s_mul_i32 s{sPxBase}, s{sG}, 49152")
    A(f"s_mul_i32 s{sT0}, s{sW}, 3072")
    A(f"s_add_u32 s{sPxBase}, s{sPxBase}, s{sT0}")
    A(f"s_add_u32 s{sPxBase}, s{sPxBase}, {PXR}")
    A(f"s_lshl_b32 s{sXp}, s{sJ}, 15")
    A(f"s_lshl_b32 s{sT0}, s{sG}, 12")
    A(f"s_add_u32 s{sXp}, s{sXp}, s{sT0}")
    A(f"s_lshl_b32 s{sT0}, s{sW}, 10")
    A(f"s_add_u32 s{sXp}, s{sXp}, s{sT0}")
    A(f"s_add_u32 s{sXp}, s{sXp}, {XPART}")
    A(f"s_lshl_b32 s{sXpF}, s{sJ}, 7")
    A(f"s_lshl_b32 s{sT0}, s{sG}, 4")
    A(f"s_add_u32 s{sXpF}, s{sXpF}, s{sT0}")
    A(f"s_lshl_b32 s{sT0}, s{sW}, 2")
    A(f"s_add_u32 s{sXpF}, s{sXpF}, s{sT0}")
    A(f"s_add_u32 s{sXpF}, s{sXpF}, {XPFLAG}")
    A(f"s_lshl_b32 s{sXfl}, s{sG}, 9")
    A(f"s_mul_i32 s{sT0}, s{sW}, 72")
    A(f"s_add_u32 s{sXfl}, s{sXfl}, s{sT0}")
    A(f"s_add_u32 s{sXfl}, s{sXfl}, {XFLAG + 24}")
    A(f"s_lshl_b32 s{sMk1}, s{sG}, 7")
    A(f"s_lshl_b32 s{sT0}, s{sJ}, 2")
    A(f"s_add_u32 s{sMark}, s{sMk1}, s{sT0}")
    A(f"s_add_u32 s{sMark}, s{sMark}, {S2MARK}")
    A(f"s_cmp_eq_u32 s{sW}, 0")
    A(f"s_cselect_b32 s{sMark}, s{sMark}, {OOB}")
    A(f"s_add_u32 s{sMk1}, s{sMk1}, {S1MARK}")
    A(f"s_mov_b32 s{sC}, {f2u(c):#x}")
    A(f"v_bfe_u32 v{vT+3}, v0, 3, 1")
    A(f"v_bfe_u32 v{vT+4}, v0, 2, 1")
    A(f"v_lshl_add_u32 v{vT+3}, v{vT+4}, 4, v{vT+3}")
    A(f"v_lshl_add_u32 v{vT+3}, v{vT+2}, 2, v{vT+3}")
    A(f"v_lshlrev_b32 v{vT+3}, 7, v{vT+3}")
    A(f"v_and_b32 v{vT+4}, 3, v0")
    A(f"v_lshl_add_u32 v{vT+3}, v{vT+4}, 3, v{vT+3}")
    A(f"v_add_u32 v{vT+3}, s{sT2}, v{vT+3}")
    for ks in range(6):
        A(f"s_waitcnt vmcnt({24 - 4 * (ks + 1)})")
        for ct in range(4):
            for hf in range(2):
                A(f"ds_read_b64_tr_b16 a[{24*ct+4*ks+2*hf}:{24*ct+4*ks+2*hf+1}], v{vT+3} offset:{ks*4096+hf*256+ct*32}")
    A("s_waitcnt lgkmcnt(0)")
    ostamp(A, 0, 1)
    def xflag_wait(have_loaded):
        L, Lok = A.newlabel("xfl"), A.newlabel("xflok")
        if have_loaded:
            A(f"v_cmp_gt_u32 vcc, s{sNeed}, v{vFl}")
            A(f"s_cbranch_vccz {Lok}")
        A.label(L)
        A(f"buffer_load_dword v{vFl}, v{vXflO}, {WSR}, s{sXfl} offen sc1")
        budget_check(A, 4)
        A("s_waitcnt vmcnt(0)")
        A(f"v_cmp_gt_u32 vcc, s{sNeed}, v{vFl}")
        A(f"s_cbranch_vccnz {L}")
        A.label(Lok)
    def xload(dst, t, ks, so):
        off = ks * 2048 + t * 1024
        A(f"buffer_load_dwordx4 {a(dst + 4 * (6 * t + ks), 4)}, v{vL16}, {WSR}, s{so[off // 4096]} offen offset:{off % 4096} sc1")
    gen_locality(A, None, None, vT)
    if P["touch"]:
        A(f"s_lshl_b32 s{sT1}, s{sJ}, 2")
        A(f"s_add_u32 s{sT1}, s{sT1}, s{sW}")
        for base, per_g, n in ((XR, XR_G, 15),) * (P['touch'] == 2) + ((QKVR, 147456, 4), (PXR, 49152, 2), (MEMR, 40960, 1)):
            A(f"s_mul_i32 s{sT0}, s{sG}, {per_g}")
            A(f"s_mul_i32 s{sT2}, s{sT1}, {n * 1024}")
            A(f"s_min_u32 s{sT2}, s{sT2}, {per_g - n * 1024}")
            A(f"s_add_u32 s{sT0}, s{sT0}, s{sT2}")
            A(f"s_add_u32 s{sT0}, s{sT0}, {base}")
            for i in range(n):
                if i and i % 4 == 0: A(f"s_add_u32 s{sT0}, s{sT0}, 4096")
                A(f"buffer_load_dwordx4 {v(vQ,4)}, v{vL16}, {WSR}, s{sT0} offen offset:{1024*(i%4)} sc1")
    A(f"s_mov_b32 s{sNeed}, 1")
    xflag_wait(False)
    A(f"s_add_u32 s{sXv}, s{sXrBase}, 24576")
    A(f"s_add_u32 s{sXv1}, s{sXv}, 4096")
    A(f"s_add_u32 s{sXv2}, s{sXv}, 8192")
    for ks in range(6):
        for t in range(2): xload(aVX, t, ks, (sXv, sXv1, sXv2))
    A(f"s_mov_b32 s{sXk}, s{sXrBase}")
    A(f"s_mov_b32 s{sS}, -1")
    for r in (sSt1,): A(f"s_mov_b32 s{r}, {OOB}")
    A(f"v_mov_b32 v{vXfv}, 0")
    A("s_waitcnt vmcnt(0)")

    Lbub, Latt, Lretry, Lnost, Lnox = "L_s2_bub", "L_s2_att", "L_s2_retry", "L_s2_nost", "L_s2_nox"
    for par in range(2):
        voxc = vVOX + 16 * par
        voxn = vVOX + 16 * (1 - par)
        vomc, vomo = vVOM2[par], vVOM2[1 - par]
        vVOM = vomc
        sfx = f"_{par}"
        if par == 0:
            A(f"s_branch {Lbub}_1")
        A.label(f"L_s2_top{sfx}")
        def miss(r):
            A(f"v_cmp_ge_i32 vcc, s{sS}, v{r}")
            if P["h2_miss"] == 0: return "s_cbranch_vccz"
            A(f"s_and_b32 s{sT0}, vcc_lo, 0x3ffff")
            A(f"s_bcnt1_i32_b32 s{sT0}, s{sT0}")
            A(f"s_cmp_gt_u32 s{sT0}, {P['h2_miss']}")
            return "s_cbranch_scc0"
        Lg = A.newlabel("gate")
        A(f"s_cmp_lg_u32 s{sW}, 0")
        A(f"s_cbranch_scc1 {Lg}")
        dense_poll(A, [vT + i for i in range(P["dp"])], lambda r: A(f"buffer_load_dword v{r}, v{vProbe}, {WSR}, s{sMk1} offen sc1"), miss, 5)
        A.label(Lg)
        A("s_barrier")
        A.label(Latt + sfx)
        stamp(A, 0, 252)
        fstamp(A, 0, 252)
        fill = [f"v_mov_b32 v{vVA+r}, 0" for r in range(16)] + [f"s_add_u32 s{sT0}, s{sS}, 1", f"v_mov_b32 v{vMark}, s{sT0}",
                f"v_mov_b32 v{vMx}, 0", f"v_mov_b32 v{vW}, 0xff7fffff", f"v_mov_b32 v{vW+1}, 0xff7fffff"]
        lds_ = [f"buffer_load_dwordx4 {v(base+4*j,4)}, v{vL16}, {WSR}, s{so} offen offset:{1024*j} sc1"
                for base, so in ((vQ, sQkv), (vKM, sQkv1), (vVM, sQkv2)) for j in range(3)]
        NI = P.get("h2_first", 6)
        issued = 0
        for x in lds_[:NI]:
            A(x); issued += 1
            for _ in range(4):
                if fill: A(fill.pop(0))
        for x in fill: A(x)
        def more(n=1):
            nonlocal issued
            for _ in range(n):
                if issued < len(lds_):
                    A(lds_[issued]); issued += 1
        def need(i): A(f"s_waitcnt vmcnt({issued - 1 - i})")
        NVC = P["nvc"]
        vall = [(t, ks) for ks in range(6) for t in range(2)]
        vcrit = vall[:NVC]
        vpos = {}
        xoq = [f"buffer_store_dwordx4 {v(vXOUT,4)}, v{vL16}, {WSR}, s{sSt1} offen sc1"]
        def vmore():
            nonlocal issued
            if xoq:
                A(xoq.pop(0)); issued += 1
            elif len(vpos) < NVC:
                e = vcrit[len(vpos)]
                xload(aVX, e[0], e[1], (sXv, sXv1, sXv2))
                vpos[e] = issued; issued += 1
        def chk(r0): return f"v_max3_u32 v{vMx}, v{r0}, v{r0+1}, v{vMx}"
        DPP = "row_ror:8 row_mask:0xf bank_mask:"
        for j in range(3):
            need(j)
            if j == 0: fstamp(A, 1, 252)
            k = 0
            for t in range(2):
                for pr in range(2):
                    acc = vS + 4 * (2 * t + pr)
                    cc = "0" if j == 0 else v(acc, 4)
                    A(f"v_mfma_f32_16x16x32_bf16 {v(acc,4)}, {a(aKX+4*(6*t+2*j+pr),4)}, {v(vQ+4*j,4)}, {cc}")
                    if k < 2: A(chk(vQ + 4 * j + 2 * k))
                    if k == 2: more()
                    k += 1
        more(99)
        smf = [f"v_smfmac_f32_16x16x64_bf16 {v(vVA+4*ct,4)}, {v(vVM+4*j,4)}, {a(24*ct+8*j,8)}, v{vIdx}" for j in range(3) for ct in range(4)]
        chks = [chk(vVM + 2 * i) for i in range(6)]
        vals = [vS + r for r in range(4)] + [vW, vW + 1]
        vm, vt2 = vT, vT + 1
        xa = [f"v_add_f32_dpp v{vS+r}, v{vS+4+r}, v{vS+r} {DPP}0xf" for r in range(4)] + [f"v_add_f32_dpp v{vS+r}, v{vS+8+r}, v{vS+12+r} {DPP}0xc" for r in range(4)]
        def smm(j):
            need(3 + j)
            A(f"v_mfma_f32_16x16x32_bf16 {v(vSM,4)}, {v(vKM+4*j,4)}, {v(vQ+4*j,4)}, {'0' if j == 0 else v(vSM,4)}")
            A(chk(vKM + 4 * j)); A(chk(vKM + 4 * j + 2))
        smm(0); smm(1)
        for x in xa[:4]: A(x)
        smm(2)
        fstamp(A, 2, 252)
        A(f"v_cmp_eq_u32 vcc, -1, v{vMx}")
        for x in xa[4:]: A(x)
        A(f"v_max3_f32 v{vm}, v{vals[0]}, v{vals[1]}, v{vals[2]}")
        A(f"v_permlane32_swap_b32 v{vSM}, v{vSM+1}")
        A(f"v_permlane32_swap_b32 v{vSM+2}, v{vSM+3}")
        need(6)
        fstamp(A, 3, 252)
        A(smf[0])
        A(f"v_add_f32_dpp v{vW}, v{vSM+1}, v{vSM} {DPP}0x3")
        A(f"v_add_f32_dpp v{vW+1}, v{vSM+3}, v{vSM+2} {DPP}0x3")
        A(smf[1])
        A(f"v_max3_f32 v{vm}, v{vals[3]}, v{vals[4]}, v{vm}")
        A(f"v_max_f32 v{vm}, v{vals[5]}, v{vm}")
        A(smf[2])
        A(f"s_cbranch_vccnz {Lretry}{sfx}")
        A(f"v_max_f32_dpp v{vm}, v{vm}, v{vm} {DPP}0xf")
        A(f"v_mov_b32 v{vt2}, v{vm}")
        A(smf[3]); A(chks[0])
        A(f"v_permlane32_swap_b32 v{vm}, v{vt2}")
        A(f"v_max_f32 v{vm}, v{vm}, v{vt2}")
        A(f"v_mov_b32 v{vt2}, v{vm}")
        need(7)
        A(smf[4])
        A(f"v_permlane16_swap_b32 v{vm}, v{vt2}")
        A(f"v_max_f32 v{vm}, v{vm}, v{vt2}")
        A(smf[5])
        A(f"v_mul_f32 v{vm}, s{sC}, v{vm}")
        fm = [f"v_fma_f32 v{x}, v{x}, s{sC}, -v{vm}" for x in vals]
        ex = [f"v_exp_f32 v{x}, v{x}" for x in vals]
        A(fm[0])
        A(smf[6]); A(fm[1]); A(fm[2])
        A(smf[7]); A(fm[3]); need(8)
        A(smf[8]); A(ex[0])
        vmore()
        A(smf[9]); A(ex[1])
        vmore()
        A(smf[10]); A(ex[2])
        A(smf[11]); A(ex[3])
        vmore()
        A(fm[4]); A(fm[5])
        vmore()
        A(f"v_cvt_pk_bf16_f32 v{vPb}, v{vals[0]}, v{vals[1]}")
        A(f"v_cvt_pk_bf16_f32 v{vPb+1}, v{vals[2]}, v{vals[3]}")
        A(ex[4])
        A(f"v_mov_b32_dpp v{vPb+2}, v{vPb} {DPP}0xf")
        A(f"v_mov_b32_dpp v{vPb+3}, v{vPb+1} {DPP}0xf")
        A(ex[5])
        A(chks[1])
        vmore()
        def fin32(ct): A(f"v_mfma_f32_16x16x32_bf16 {v(vF+4*ct,4)}, {v(voxc+4*ct,4)}, {v(vPb,4)}, 0")
        def fin16(ct): A(f"v_mfma_f32_16x16x16_bf16 {v(vF+4*ct,4)}, {v(vVOM+2*ct,2)}, {v(vPb+4,2)}, {v(vF+4*ct,4)}")
        def cvom(ct):
            A(f"v_cvt_pk_bf16_f32 v{vVOM+2*ct}, v{vVA+4*ct}, v{vVA+4*ct+2}")
            A(f"v_cvt_pk_bf16_f32 v{vVOM+2*ct+1}, v{vVA+4*ct+1}, v{vVA+4*ct+3}")
        fin32(0)
        A(f"v_cvt_pk_bf16_f32 v{vPb+4}, v{vals[4]}, v{vals[5]}")
        A(f"v_mov_b32 v{vPb+5}, v{vPb+4}")
        A(f"v_mfma_f32_16x16x32_bf16 {v(vDen,4)}, {v(vOne32,4)}, {v(vPb,4)}, 0")
        A(chks[2]); A(chks[3])
        fin32(1)
        A(f"v_permlane32_swap_b32 v{vPb+4}, v{vPb+5}")
        fin32(2); cvom(0)
        vmore()
        A(f"v_mfma_f32_16x16x16_bf16 {v(vDen,4)}, {v(vOne16,2)}, {v(vPb+4,2)}, {v(vDen,4)}")
        cvom(1)
        fin32(3); cvom(2)
        fin16(0); cvom(3)
        vmore()
        fin16(1); A(chks[4]); A(chks[5])
        fin16(2)
        A(f"v_cmp_eq_u32 vcc, -1, v{vMx}")
        A(f"v_rcp_f32 v{vT+4}, v{vDen}")
        fin16(3)
        fstamp(A, 4, 252)
        fstamp(A, 5, 252)
        if len(vpos) < NVC: vmore()
        else: A("s_nop 0")
        A(f"v_mov_b32_dpp v{vT+4}, v{vT+4} {DPP}0xc")
        A("s_nop 1")
        for pc in range(2):
            for r in range(4):
                A(f"v_mul_f32 v{vF+4*pc+r}, v{vF+4*pc+r}, v{vT+4}")
            for r in range(4):
                A(f"v_mul_f32_dpp v{vF+4*pc+r}, v{vF+4*(pc+2)+r}, v{vT+4} row_ror:8 row_mask:0xf bank_mask:0xc")
            if pc == 0: A(f"s_cbranch_vccnz {Lretry}{sfx}")
            A(f"ds_write_b128 v{vRedW}, {v(vF+4*pc,4)} offset:{1024*pc}")
            vmore()
        assert len(vpos) == NVC
        mark = f"buffer_store_dword v{vMark}, v{vFlagO}, {WSR}, s{sMark} offen"
        if P["mk_pos"] == 0: A(mark)
        fstamp(A, 6, 252)
        A("s_waitcnt lgkmcnt(0)")
        A("s_barrier")
        fstamp(A, 7, 252)
        if P["prof"] in (3, 5): A("s_waitcnt lgkmcnt(0)")
        for h in range(4):
            A(f"ds_read_b128 {v(vF+4*h,4)}, v{vRedR} offset:{2048*h}")
        if P["mk_pos"] == 1: A(mark)
        A("s_waitcnt lgkmcnt(2)")
        A(f"v_pk_add_f32 {v(vF,2)}, {v(vF,2)}, {v(vF+4,2)}")
        A(f"v_pk_add_f32 {v(vF+2,2)}, {v(vF+2,2)}, {v(vF+6,2)}")
        A("s_waitcnt lgkmcnt(0)")
        A(f"v_pk_add_f32 {v(vF+8,2)}, {v(vF+8,2)}, {v(vF+12,2)}")
        A(f"v_pk_add_f32 {v(vF+10,2)}, {v(vF+10,2)}, {v(vF+14,2)}")
        A(f"v_pk_add_f32 {v(vF,2)}, {v(vF,2)}, {v(vF+8,2)}")
        A(f"v_pk_add_f32 {v(vF+2,2)}, {v(vF+2,2)}, {v(vF+10,2)}")
        A(f"v_cvt_pk_bf16_f32 v{vF}, v{vF}, v{vF+1}")
        A(f"v_cvt_pk_bf16_f32 v{vF+1}, v{vF+2}, v{vF+3}")
        A(f"buffer_store_dwordx2 {v(vF,2)}, v{vPartO}, {WSR}, s{sPartW} offen sc1")
        if P["mk_pos"] == 2: A(mark)
        issued += 2
        stamp(A, 1, 252)
        fstamp(A, 8, 252)
        A.label(Lbub + sfx)
        A(f"s_add_u32 s{sNeed}, s{sS}, 3")
        A(f"s_min_u32 s{sNeed}, s{sNeed}, {P['nseg']}")
        Lfw, Lfb = A.newlabel("fw"), A.newlabel("fb")
        sal = [f"s_add_u32 s{sT2}, s{sXk}, 12288",
               f"s_add_u32 s{sXk1}, s{sXk}, {12288 + 4096}",
               f"s_add_u32 s{sXk2}, s{sXk}, {12288 + 8192}",
               f"s_add_u32 s{sXk}, s{sXk}, {XR_SLOT}",
               f"s_cmp_eq_u32 s{sXk}, s{sXrEnd}",
               f"s_cselect_b32 s{sXk}, s{sXrBase}, s{sXk}",
               f"s_and_b32 s{sT0}, s{sS}, 3",
               f"s_mul_i32 s{sPx}, s{sT0}, 12288",
               f"s_add_u32 s{sPx}, s{sPx}, s{sPxBase}",
               f"s_add_u32 s{sT0}, s{sS}, 1",
               f"s_and_b32 s{sT0}, s{sT0}, 3",
               f"s_mul_i32 s{sPartW}, s{sT0}, {PART_SLOT}",
               f"s_add_u32 s{sPartW}, s{sPartW}, s{sPartBase}",
               f"s_mul_i32 s{sQkv}, s{sT0}, 36864",
               f"s_add_u32 s{sQkv}, s{sQkv}, s{sQkvBase}",
               f"s_add_u32 s{sQkv1}, s{sQkv}, 3072",
               f"s_add_u32 s{sQkv2}, s{sQkv}, 6144",
               f"s_cmp_lt_i32 s{sS}, 1",
               f"s_cselect_b32 s{sSt1}, {OOB}, s{sXp}",
               f"s_cselect_b32 s{sT0}, 0, {XP_SEG}",
               f"s_add_u32 s{sXp}, s{sXp}, s{sT0}"]
        fstamp(A, 9, 252)
        def pxload():
            for i in range(3):
                A(f"buffer_load_dwordx4 {v(vPX+4*i,4)}, v{vL16}, {WSR}, s{sPx} offen offset:{1024*i} sc1")
        kq = [("k", t, ks) for ks in range(6) for t in range(2)]
        PP = P["ppos"]
        q = [("v",) + e for e in vall[NVC:]] + kq[:PP] + [("p", i) for i in range(4)] + kq[PP:]
        def nxt(n=1):
            nonlocal issued
            for _ in range(n):
                if not q: return
                e = q.pop(0)
                if e == ("p", 3): vpos["p"] = issued
                if e[0] == "v": vpos[e[1:]] = issued
                issued += 1
                if e == ("p", 3):
                    A(f"buffer_load_dword v{vFl}, v{vXflO}, {WSR}, s{sXfl} offen sc1"); continue
                if e[0] == "p":
                    A(f"buffer_load_dwordx4 {v(vPX+4*e[1],4)}, v{vL16}, {WSR}, s{sPx} offen offset:{1024*e[1]} sc1"); continue
                if P.get("x_nokv") and e[0] in "kv" : A(f"buffer_load_dword v{vT+7}, v{vFlagO}, {WSR}, 0 offen"); continue
                if P.get("x_noxout") and e[0] == "s" and e[1] in (1, 2): A(f"buffer_load_dword v{vT+7}, v{vFlagO}, {WSR}, 0 offen"); continue
                if e[0] == "k": xload(aKX, e[1], e[2], (sT2, sXk1, sXk2))
                elif e[0] == "v": xload(aVX, e[1], e[2], (sXv, sXv1, sXv2))
                elif e[1] == 0: A(f"buffer_store_dwordx2 {v(vPois,2)}, v{vPartO}, {WSR}, s{sSt0} offen sc1")
                elif e[1] == 1: A(f"buffer_store_dwordx4 {v(vXOUT,4)}, v{vL16}, {WSR}, s{sSt1} offen {XOF[P.get('x_fl', 0)]}")
                elif e[1] == 2: A(f"buffer_store_dwordx4 {v(vXOUT+4,4)}, v{vL16}, {WSR}, s{sSt2} offen {XOF[P.get('x_fl', 0)]}")
                else: A(f"buffer_store_dword v{vXfv}, v{vFlagO}, {WSR}, s{sSt3} offen sc1")
        xo = lambda i: (vS + 4 * i) if i < 4 else (vF + 4 * (i - 4))
        xr = lambda qt, h: vQ + 16 * qt + 4 * h
        def xrow_mfma(vox, vom):
            return ([f"v_mfma_f32_16x16x32_bf16 {v(xo(2*ct+qt),4)}, {v(vox+4*ct,4)}, {v(vPX+4*qt,4)}, 0" for ct in range(4) for qt in range(2)] +
                    [f"v_mfma_f32_16x16x16_bf16 {v(xo(2*ct+qt),4)}, {v(vom+2*ct,2)}, {v(vPX+8+2*qt,2)}, {v(xo(2*ct+qt),4)}" for ct in range(4) for qt in range(2)])
        xw = [f"ds_write_b128 v{vRed2W}, {v(xo(i),4)} offset:{1024*i}" for i in range(8)]
        xrd = [f"ds_read_b128 {v(xr(qt,h),4)}, v{vRed2R} offset:{8192*h+1024*qt}" for qt in range(2) for h in range(4)]
        def xadd(qt):
            b = xr(qt, 0)
            return ([f"v_add_f32 v{b+r}, v{b+r}, v{b+4+r}" for r in range(4)] + [f"v_add_f32 v{b+8+r}, v{b+8+r}, v{b+12+r}" for r in range(4)] +
                    [f"v_add_f32 v{b+r}, v{b+r}, v{b+8+r}" for r in range(4)] +
                    [f"v_cvt_pk_bf16_f32 v{vXOUT+2*qt+h}, v{b+2*h}, v{b+2*h+1}" for h in range(2)])
        mf = [(x, None) for x in xrow_mfma(voxn, vomo)]
        for ks in range(6):
            for t in range(2):
                for ct in range(4):
                    acc = vXA + 4 * (4 * t + ct)
                    cc = "0" if ks == 0 else v(acc, 4)
                    mf.append((f"v_mfma_f32_16x16x32_bf16 {v(acc,4)}, {a(aVX+4*(6*t+ks),4)}, {a(24*ct+4*ks,4)}, {cc}", (t, ks) if ct == 0 else None))
        ad = xadd(0) + xadd(1)
        sideq = [(17 + 2 * i, xw[i]) for i in range(8)] + [(34, "s_waitcnt lgkmcnt(0)"), (34, "s_barrier")]
        sideq += [(35, x) for x in xrd] + [(44, "s_waitcnt lgkmcnt(0)")] + [(44, x) for x in ad]
        for n, (x, vf) in enumerate(mf):
            A(x)
            room = 2
            nvf = mf[n + 1][1] if n + 1 < len(mf) else None
            if nvf in vpos: room -= 1
            if n % P["ldev"] == 0: nxt(); room -= 1
            while room and sideq and sideq[0][0] <= n:
                A(sideq.pop(0)[1]); room -= 1
            while room and sal:
                A(sal.pop(0)); room -= 1
            if nvf in vpos: need(vpos[nvf])
        for _, x in sideq: A(x)
        assert not sal
        fstamp(A, 10, 252)
        nxt(2)
        A(f"s_add_u32 s{sXv2}, s{sXk}, {24576 + 8192}")
        A(f"s_add_u32 s{sXv1}, s{sXk}, {24576 + 4096}")
        A(f"s_add_u32 s{sXv}, s{sXk}, 24576")
        A.nop(1)
        for ct in range(4):
            for t in range(2):
                for h in range(2):
                    src = vXA + 4 * (4 * t + ct) + 2 * h
                    A(f"v_cvt_pk_bf16_f32 v{voxn+4*ct+2*t+h}, v{src}, v{src+1}")
            nxt()
        nxt(99)
        stamp(A, 2, 252)
        fstamp(A, 11, 252)
        need(vpos["p"])
        A(f"v_cmp_gt_u32 vcc, s{sNeed}, v{vFl}")
        A(f"s_cbranch_vccnz {Lfw}")
        A.label(Lfb)
        A(f"s_cmp_lt_i32 s{sS}, 0")
        A(f"s_cbranch_scc1 {Lnox}{sfx}")
        Lpx, Lpxr = A.newlabel("px"), A.newlabel("pxr")
        A.label(Lpx)
        A(f"v_max3_u32 v{vMx}, v{vPX}, v{vPX+1}, v{vPX+2}")
        for i in range(3, 11, 2): A(f"v_max3_u32 v{vMx}, v{vPX+i}, v{vPX+i+1}, v{vMx}")
        A(f"v_max_u32 v{vMx}, v{vPX+11}, v{vMx}")
        A(f"v_cmp_eq_u32 vcc, -1, v{vMx}")
        A(f"s_cbranch_vccnz {Lpxr}")
        stamp(A, 3, 252)
        fstamp(A, 12, 252)
        fin_parts[par] = (xrow_mfma(voxc, vomc), xrow_mfma(voxn, vomo), xw, xrd, ad, smf, pxload, vomo)
        A.label(Lnox + sfx)
        stamp(A, 4, 252)
        if not P.get("x_split"): fstamp(A, 13, 252)
        fstamp_collect(A, 14, 252)
        stamp_flush(A, 252, 253)
        A(f"s_add_u32 s{sS}, s{sS}, 1")
        A(f"s_cmp_lg_u32 s{sS}, {P['nseg'] - 1}")
        A(f"s_cbranch_scc1 L_s2_top_{1-par}")
        A("s_branch L_s2_fin")
        A.label(Lretry + sfx)
        budget_check(A, 6)
        A(f"s_branch {Latt}{sfx}")
        A.label(Lfw)
        xflag_wait(False)
        A(f"s_branch {Lfb}")
        A.label(Lpxr)
        budget_check(A, 7)
        pxload()
        A("s_waitcnt vmcnt(0)")
        A(f"s_branch {Lpx}")
    A.label("L_s2_fin")
    xmA, xmB, xw, xrd, ad, smf, pxload, vomL = fin_parts[(P["nseg"] - 2) & 1]
    def xout():
        A(f"buffer_store_dwordx4 {v(vXOUT,4)}, v{vL16}, {WSR}, s{sSt1} offen sc1")
        A(f"s_add_u32 s{sSt1}, s{sSt1}, {XP_SEG}")
    def flag(val):
        A(f"v_mov_b32 v{vXfv}, {val}")
        A(f"buffer_store_dword v{vXfv}, v{vFlagO}, {WSR}, s{sXpF} offen sc1")
    def xrows(xm):
        for x in xm: A(x)
        A("s_barrier")
        for x in xw: A(x)
        A("s_waitcnt lgkmcnt(0)")
        A("s_barrier")
        for x in xrd: A(x)
        A("s_waitcnt lgkmcnt(0)")
        for x in ad: A(x)
        xout()
    xout()
    flag(P["nseg"] - 3)
    xrows(xmA)
    A(f"s_and_b32 s{sT0}, s{sS}, 3")
    A(f"s_mul_i32 s{sPx}, s{sT0}, 12288")
    A(f"s_add_u32 s{sPx}, s{sPx}, s{sPxBase}")
    def spin(load, base, code):
        L = A.newlabel("sp")
        A.label(L)
        load()
        budget_check(A, code)
        A("s_waitcnt vmcnt(0)")
        A(f"v_max3_u32 v{vMx}, v{base}, v{base+1}, v{base+2}")
        for i in range(3, 11, 2): A(f"v_max3_u32 v{vMx}, v{base+i}, v{base+i+1}, v{vMx}")
        A(f"v_max_u32 v{vMx}, v{base+11}, v{vMx}")
        A(f"v_cmp_eq_u32 vcc, -1, v{vMx}")
        A(f"s_cbranch_vccnz {L}")
    def vmload():
        for j in range(3):
            A(f"buffer_load_dwordx4 {v(vVM+4*j,4)}, v{vL16}, {WSR}, s{sQkv2} offen offset:{1024*j} sc1")
    for r in range(16): A(f"v_mov_b32 v{vVA+r}, 0")
    spin(vmload, vVM, 6)
    flag(P["nseg"] - 1)
    for x in smf: A(x)
    A.nop(8)
    for ct in range(4):
        A(f"v_cvt_pk_bf16_f32 v{vomL+2*ct}, v{vVA+4*ct}, v{vVA+4*ct+2}")
        A(f"v_cvt_pk_bf16_f32 v{vomL+2*ct+1}, v{vVA+4*ct+1}, v{vVA+4*ct+3}")
    spin(pxload, vPX, 7)
    xrows(xmB)
    A("s_waitcnt vmcnt(0)")
    flag(P["nseg"])
    ostamp(A, 0, 2)
    A("s_branch L_end")

def gen_xs(A):
    sHH = 30
    sQkv, sQkvBase, sXq, sXrBase, sXrEnd, sPx, sPxP, sPxBase, sXfl, sC, sNeed = 31, 32, 33, 34, 35, 36, 37, 38, 39, 40, 41
    sXa = 42
    sMask = 48
    sPf, sMk1, sQT = 64, 65, 66
    vPf = 140
    vL16, vKmO, vL8, vXflO, vNeg, vProbe = 1, 2, 3, 4, 5, 6
    vPois = 8
    vT = 12
    vFl, vMx = 20, 21
    vQ, vKX, vKM = 24, 48, 96
    vS = 120
    vPb = 132
    c = (192 ** -0.5) * math.log2(math.e)
    A.label("L_xs")
    A("s_setprio 3")
    A(f"s_sub_u32 s{sHH}, s{sR}, 28")
    A(f"s_lshl_b32 s{sHH}, s{sHH}, 1")
    A(f"s_lshr_b32 s{sT0}, s{sW}, 1")
    A(f"s_add_u32 s{sHH}, s{sHH}, s{sT0}")
    A(f"s_and_b32 s{sQT}, s{sW}, 1")
    A(f"v_lshlrev_b32 v{vL16}, 4, v0")
    A(f"v_lshlrev_b32 v{vL8}, 3, v0")
    A(f"v_and_b32 v{vKmO}, 0x37, v0")
    A(f"v_lshlrev_b32 v{vKmO}, 4, v{vKmO}")
    A(f"v_min_u32 v{vXflO}, 11, v0")
    A(f"v_lshlrev_b32 v{vXflO}, 2, v{vXflO}")
    A(f"v_min_u32 v{vProbe}, 17, v0")
    A(f"v_lshlrev_b32 v{vProbe}, 2, v{vProbe}")
    A(f"s_lshl_b32 s{sMk1}, s{sG}, 7")
    A(f"s_add_u32 s{sMk1}, s{sMk1}, {S1MARK}")
    for r in range(4): A(f"v_mov_b32 v{vPois+r}, -1")
    A(f"v_mov_b32 v{vNeg}, {f2u(-1e9 * 192 ** 0.5):#x}")
    A(f"v_and_b32 v{vT}, 15, v0")
    A(f"s_lshl_b32 s{sT0}, s{sQT}, 4")
    A(f"v_add_u32 v{vT}, s{sT0}, v{vT}")
    A(f"v_lshrrev_b32 v{vT+1}, 4, v0")
    A(f"v_lshlrev_b32 v{vT+1}, 2, v{vT+1}")
    for t in range(2):
        for r in range(4):
            A(f"v_add_u32 v{vT+2}, {16*t+r}, v{vT+1}")
            A(f"v_cmp_le_u32 s[{sMask+2*(4*t+r)}:{sMask+2*(4*t+r)+1}], v{vT+2}, v{vT}")
    A(f"s_mul_i32 s{sQkvBase}, s{sG}, 147456")
    A(f"s_mul_i32 s{sT0}, s{sHH}, 9216")
    A(f"s_add_u32 s{sQkvBase}, s{sQkvBase}, s{sT0}")
    A(f"s_add_u32 s{sQkvBase}, s{sQkvBase}, {QKVR + 3072}")
    A(f"s_mul_i32 s{sXrBase}, s{sG}, {XR_G}")
    A(f"s_mul_i32 s{sT0}, s{sHH}, {XR_HEAD}")
    A(f"s_add_u32 s{sXrBase}, s{sXrBase}, s{sT0}")
    A(f"s_add_u32 s{sXrBase}, s{sXrBase}, {XR}")
    A(f"s_add_u32 s{sXrEnd}, s{sXrBase}, {XR_G}")
    A(f"s_mov_b32 s{sXq}, s{sXrBase}")
    A(f"s_mul_i32 s{sPxBase}, s{sG}, 49152")
    A(f"s_mul_i32 s{sT0}, s{sHH}, 3072")
    A(f"s_add_u32 s{sPxBase}, s{sPxBase}, s{sT0}")
    A(f"s_lshl_b32 s{sT0}, s{sQT}, 10")
    A(f"s_add_u32 s{sPxBase}, s{sPxBase}, s{sT0}")
    A(f"s_mul_i32 s{sT0}, s{sQT}, 1016")
    A(f"s_sub_u32 s{sT0}, 2048, s{sT0}")
    A(f"v_add_u32 v{vL8}, s{sT0}, v{vL16}")
    A(f"s_add_u32 s{sPxBase}, s{sPxBase}, {PXR}")
    A(f"s_lshl_b32 s{sXfl}, s{sG}, 9")
    A(f"s_mul_i32 s{sT0}, s{sHH}, 72")
    A(f"s_add_u32 s{sXfl}, s{sXfl}, s{sT0}")
    A(f"s_add_u32 s{sXfl}, s{sXfl}, {XFLAG}")
    A(f"s_mov_b32 s{sC}, {f2u(c):#x}")
    A(f"s_mov_b32 s{sS}, 0")
    A(f"s_lshl_b32 s{sPf}, s{sHH}, 1")
    A(f"s_add_u32 s{sPf}, s{sPf}, s{sQT}")
    A(f"s_lshl_b32 s{sPf}, s{sPf}, 3")
    A(f"s_add_u32 s{sPf}, s{sPf}, s{sG}")
    A(f"s_lshl_b32 s{sPf}, s{sPf}, 12")
    A(f"s_add_u32 s{sPf}, s{sPf}, 81920")
    for k in range(4):
        A(f"buffer_load_dwordx4 {v(vPf,4)}, v{vL16}, s[{sX}:{sX+3}], s{sPf} offen offset:{1024*k}")
    A(f"s_lshl_b32 s{sPf}, s{sHH}, 1")
    A(f"s_add_u32 s{sPf}, s{sPf}, s{sQT}")
    A(f"s_mul_i32 s{sPf}, s{sPf}, 5120")
    gen_locality(A, "L_xs_loc", "L_xs_glb", vT)
    for mode in ("loc", "glb"):
        sc = "" if mode == "loc" else " sc1"
        A.label(f"L_xs_{mode}")
        Lf, Lk = A.newlabel("xsf"), A.newlabel("xsk")
        fstamp(A, 5, 250)
        A(f"s_add_u32 s{sNeed}, s{sS}, 1")
        A.label(Lf)
        A(f"buffer_load_dword v{vFl}, v{vXflO}, {WSR}, s{sXfl} offen sc1")
        budget_check(A, 8)
        A("s_waitcnt vmcnt(0)")
        A(f"v_cmp_gt_u32 vcc, s{sNeed}, v{vFl}")
        A(f"s_cbranch_vccnz {Lf}")
        fstamp(A, 6, 250)
        A(f"s_lshl_b32 s{sT0}, s{sQT}, 10")
        A(f"s_add_u32 s{sXa}, s{sXq}, s{sT0}")
        A(f"s_add_u32 s{sXa+1}, s{sXa}, 4096")
        A(f"s_add_u32 s{sXa+2}, s{sXa}, 8192")
        A(f"s_add_u32 s{sXa+3}, s{sXq}, 12288")
        A(f"s_add_u32 s{sXa+4}, s{sXq}, {12288+4096}")
        A(f"s_add_u32 s{sXa+5}, s{sXq}, {12288+8192}")
        for ks in range(6):
            A(f"buffer_load_dwordx4 {v(vQ+4*ks,4)}, v{vL16}, {WSR}, s{sXa+ks//2} offen offset:{2048*(ks&1)} sc1")
            for t in range(2):
                A(f"buffer_load_dwordx4 {v(vKX+4*(6*t+ks),4)}, v{vL16}, {WSR}, s{sXa+3+ks//2} offen offset:{2048*(ks&1)+1024*t} sc1")
        A(f"s_add_u32 s{sXq}, s{sXq}, {XR_SLOT}")
        A(f"s_cmp_eq_u32 s{sXq}, s{sXrEnd}")
        A(f"s_cselect_b32 s{sXq}, s{sXrBase}, s{sXq}")
        A(f"s_and_b32 s{sT0}, s{sS}, 3")
        A(f"s_mul_i32 s{sQkv}, s{sT0}, 36864")
        A(f"s_add_u32 s{sQkv}, s{sQkv}, s{sQkvBase}")
        A(f"s_mul_i32 s{sPx}, s{sT0}, 12288")
        A(f"s_add_u32 s{sPx}, s{sPx}, s{sPxBase}")
        A(f"s_add_u32 s{sT0}, s{sS}, 2")
        A(f"s_and_b32 s{sT0}, s{sT0}, 3")
        A(f"s_mul_i32 s{sPxP}, s{sT0}, 12288")
        A(f"s_add_u32 s{sPxP}, s{sPxP}, s{sPxBase}")
        for ks in range(6):
            A(f"s_waitcnt vmcnt({15 - 3 * ks})")
            for t in range(2):
                cc = "0" if ks == 0 else v(vS + 4 * t, 4)
                A(f"v_mfma_f32_16x16x32_bf16 {v(vS+4*t,4)}, {v(vKX+4*(6*t+ks),4)}, {v(vQ+4*ks,4)}, {cc}")
        fstamp(A, 7, 250)
        A.label(Lk)
        A(f"buffer_load_dword v{vMx}, v{vProbe}, {WSR}, s{sMk1} offen sc1")
        budget_check(A, 9)
        A("s_waitcnt vmcnt(0)")
        A(f"v_cmp_ge_i32 vcc, s{sS}, v{vMx}")
        A(f"s_cbranch_vccnz {Lk}")
        for ks in range(6):
            A(f"buffer_load_dwordx4 {v(vKM+4*ks,4)}, v{vKmO}, {WSR}, s{sQkv} offen offset:{1024*(ks>>1)+128*(ks&1)} sc1")
        A("s_waitcnt vmcnt(0)")
        A(f"v_max3_u32 v{vMx}, v{vKM}, v{vKM+1}, v{vKM+2}")
        for i in range(3, 23, 2): A(f"v_max3_u32 v{vMx}, v{vKM+i}, v{vKM+i+1}, v{vMx}")
        A(f"v_max_u32 v{vMx}, v{vKM+23}, v{vMx}")
        A(f"v_cmp_eq_u32 vcc, -1, v{vMx}")
        A(f"s_cbranch_vccnz {Lk}")
        fstamp(A, 8, 250)
        for ks in range(6):
            cc = "0" if ks == 0 else v(vS + 8, 4)
            A(f"v_mfma_f32_16x16x32_bf16 {v(vS+8,4)}, {v(vKM+4*ks,4)}, {v(vQ+4*ks,4)}, {cc}")
        A(f"buffer_store_dwordx4 {v(vPois,4)}, v{vL16}, {WSR}, s{sPxP} offen{sc}")
        A(f"buffer_store_dwordx2 {v(vPois,2)}, v{vL8}, {WSR}, s{sPxP} offen{sc}")
        for i in range(8):
            A(f"v_cndmask_b32 v{vS+i}, v{vNeg}, v{vS+i}, s[{sMask+2*i}:{sMask+2*i+1}]")
        vm, vt2 = vT, vT + 1
        A(f"v_max3_f32 v{vm}, v{vS}, v{vS+1}, v{vS+2}")
        for i in range(3, 11, 2): A(f"v_max3_f32 v{vm}, v{vS+i}, v{vS+i+1}, v{vm}")
        A(f"v_max_f32 v{vm}, v{vS+11}, v{vm}")
        for sw in ("32", "16"):
            A(f"v_mov_b32 v{vt2}, v{vm}")
            A("s_nop 1")
            A(f"v_permlane{sw}_swap_b32 v{vm}, v{vt2}")
            A(f"v_max_f32 v{vm}, v{vm}, v{vt2}")
        A(f"v_mul_f32 v{vm}, s{sC}, v{vm}")
        for i in range(12): A(f"v_fma_f32 v{vS+i}, v{vS+i}, s{sC}, -v{vm}")
        for i in range(12): A(f"v_exp_f32 v{vS+i}, v{vS+i}")
        A(f"v_add_f32 v{vT+2}, v{vS+8}, v{vS+9}")
        A(f"v_add_f32 v{vT+3}, v{vS}, v{vS+1}")
        A(f"v_add_f32 v{vT+2}, v{vT+2}, v{vS+10}")
        A(f"v_add_f32 v{vT+2}, v{vT+2}, v{vS+11}")
        for i in range(2, 8): A(f"v_add_f32 v{vT+3}, v{vT+3}, v{vS+i}")
        A(f"v_fma_f32 v{vm}, v{vT+2}, 0.5, v{vT+3}")
        for sw in ("32", "16"):
            A(f"v_mov_b32 v{vt2}, v{vm}")
            A("s_nop 1")
            A(f"v_permlane{sw}_swap_b32 v{vm}, v{vt2}")
            A(f"v_add_f32 v{vm}, v{vm}, v{vt2}")
        A(f"v_rcp_f32 v{vm}, v{vm}")
        A("s_nop 0")
        for i in range(12): A(f"v_mul_f32 v{vS+i}, v{vS+i}, v{vm}")
        for i in range(4): A(f"v_cvt_pk_bf16_f32 v{vPb+i}, v{vS+2*i}, v{vS+2*i+1}")
        for i in range(2): A(f"v_cvt_pk_bf16_f32 v{vPb+4+i}, v{vS+8+i}, v{vS+10+i}")
        A(f"buffer_store_dwordx4 {v(vPb,4)}, v{vL16}, {WSR}, s{sPx} offen{sc}")
        A(f"buffer_store_dwordx2 {v(vPb+4,2)}, v{vL8}, {WSR}, s{sPx} offen{sc}")
        fstamp(A, 9, 250)
        if P["prof"] in (3, 5):
            A("s_waitcnt lgkmcnt(0)")
            for i in range(5, 10): A(f"v_writelane_b32 v250, s{60+2*i}, {i}")
            stamp_flush(A)
        if P["xpf"]:
            A(f"s_add_u32 s{sT0}, s{sS}, {P['xpf']}")
            A(f"s_mul_i32 s{sT0}, s{sT0}, 40960")
            A(f"s_add_u32 s{sT0}, s{sT0}, s{sPf}")
            for i in range(4):
                A(f"buffer_load_dwordx4 {v(vPf,4)}, v{vL16}, s[{sX}:{sX+3}], s{sT0} offen offset:{1024*i}")
            A(f"s_add_u32 s{sT0}, s{sT0}, 4096")
            A(f"buffer_load_dwordx4 {v(vPf,4)}, v{vL16}, s[{sX}:{sX+3}], s{sT0} offen")
        A(f"s_add_u32 s{sS}, s{sS}, 1")
        A(f"s_cmp_lg_u32 s{sS}, {P['nseg']}")
        A(f"s_cbranch_scc1 L_xs_{mode}")
        A("s_branch L_end")

def gen_main(A):
    A(".p2align 8")
    A(f".type {NAME},@function")
    A.label(NAME)
    gen_common_prologue(A)
    A(f"s_cmp_lt_u32 s{sR}, 18")
    A("s_cbranch_scc1 L_s1")
    A(f"s_cmp_lt_u32 s{sR}, 28")
    A("s_cbranch_scc1 L_s2")
    A("s_branch L_init")
    A.label("L_fail")
    A(f"v_mov_b32 v1, s{sT3}")
    A(f"s_lshl_b32 s{sT3}, s{sT3}, 2")
    A(f"s_add_u32 s{sT3}, s{sT3}, 64")
    A(f"v_mov_b32 v2, s{sT3}")
    A(f"v_mov_b32 v1, s{sS}")
    A(f"v_add_u32 v1, 1000, v1")
    A(f"buffer_store_dword v1, v2, s[{sDBG}:{sDBG+3}], 0 offen")
    A.label("L_end")
    A("s_endpgm")
    gen_init(A)
    gen_s1(A)
    gen_s2(A)
    gen_xs(A)
    try:
        import gen_bg
        gen_bg.gen_bg(A, sys.modules[__name__])
        A.label("L_code_end")
    except ImportError:
        A.label("L_bg")
        A("s_endpgm")

HEADER = open("gated_mix__memory_aug_recurrent_mem_tr__ssm_conv_h3__prompt.s.ref").read().split("; Override launch")[0]

def kd(name, vgpr, acc, sgpr=96):
    return f""".amdhsa_kernel {name}
  .amdhsa_next_free_vgpr {vgpr}
  .amdhsa_next_free_sgpr {sgpr}
  .amdhsa_accum_offset {acc}
  .amdhsa_group_segment_fixed_size 0
  .amdhsa_kernarg_size 136
  .amdhsa_user_sgpr_count 2
  .amdhsa_user_sgpr_kernarg_segment_ptr 1
  .amdhsa_system_sgpr_workgroup_id_x 1
  .amdhsa_float_denorm_mode_32 3
.end_amdhsa_kernel
"""

def generate(**kw):
    P.update(kw)
    A = Asm()
    A('.amdgcn_target "amdgcn-amd-amdhsa--gfx950"')
    A(".text")
    A(f".globl {NAME}")
    gen_main(A)
    probs = check_hazards(A.lines)
    txt = HEADER
    txt += "; @launch grid=(256,1,1) block=(256,1,1) lds=163840\n"
    txt += A.text()
    txt += '.section .rodata,"a"\n.p2align 6\n' + kd(NAME, 512, 256)
    return txt, probs

if __name__ == "__main__":
    kw = {}
    out = "gated_mix__memory_aug_recurrent_mem_tr__ssm_conv_h3__prompt.s"
    for arg in sys.argv[1:]:
        if "=" in arg:
            k, val = arg.split("="); kw[k] = int(val)
        else:
            out = arg
    txt, probs = generate(**kw)
    open(out, "w").write(txt)
    print("wrote", out, len(txt), "bytes;", len(probs), "hazards")
```

```python
import sys, math, struct
from asmlib import Asm, v, a, s, check_hazards

NAME = "gated_mix__memory_aug_recurrent_mem_tr__ssm_conv_h3__prompt_kernel"

P = dict(
    s3_miss=0, s3_slp=2, h1_slp=3, dp=3, near=1, s2_dly=0, xo_pos=0, ldev=3, xpf=5, touch=3, cpf=0, wnt=1, ppos=12, dma0=10, dma_e=0, mk1=0, nvc=4, mk_pos=1, h1_two=2,
    s3_sleep=16,
    h1_nop=50,
    h2_miss=12,
    h2_sleep=8,
    prof=0,
    nseg=64,
    force_global=0,
)

MEMR   = 0x0
QKVR   = 0x50000
PXR    = 0x170000
PART   = 0x200000
PART_SLOT = 163840
NEARP  = 0x2A0000
POISON_END = 0x2A4000
FLAGS  = 0x2B0000
XFLAG  = FLAGS
XPFLAG = FLAGS + 0x1000
CVFLAG = FLAGS + 0x2000
GFLAG  = FLAGS + 0x2200
S2MARK = FLAGS + 0x2400
S1MARK = FLAGS + 0x2800
FLAGS_END = FLAGS + 0x3000
XR     = 0x2C0000
XR_HEAD = 36864 + 1024
XR_SLOT = 4 * XR_HEAD
XR_G   = 4 * XR_SLOT
XPART  = 0x900000
XP_SEG = 327680
KVT    = 0x3200000
YT     = 0x3800000
GV     = 0x3500000
PROF   = 0x4000000
MEMDBG = 0x4800000
WS_SIZE = 0x10000000
OOB = 0x20000000
DBG_CEN, DBG_NEAR, DBG_FAIL, DBG_INIT = 64, 128, 160, 224

XOF = ["sc1", "", "sc1 nt", "sc0 sc1", "nt"]
def f2u(x): return struct.unpack("<I", struct.pack("<f", x))[0]

sWS, sX, sRO, sDBG = 4, 8, 12, 16
sG, sR, sW, sBUD, sS, sXCC = 20, 21, 22, 23, 24, 25
sT0, sT1, sT2, sT3 = 26, 27, 28, 29

WSR = f"s[{sWS}:{sWS+3}]"

def srd(A, base, size):
    A(f"s_and_b32 s{base+1}, s{base+1}, 0xffff")
    A(f"s_mov_b32 s{base+2}, {size}")
    A(f"s_mov_b32 s{base+3}, 0x20000")

def budget_check(A, code):
    A(f"s_sub_u32 s{sBUD}, s{sBUD}, 1")
    A(f"s_movk_i32 s{sT3}, {code}")
    A(f"s_cbranch_scc1 L_fail")

def dense_poll(A, regs, issue, missing, code):
    L, Lok = A.newlabel("dp"), A.newlabel("dpok")
    n = len(regs)
    for i, r in enumerate(regs):
        issue(r)
        if i < n - 1: A("s_sleep 1")
    A.label(L)
    for r in regs:
        A(f"s_waitcnt vmcnt({n-1})")
        A(f"{missing(r)} {Lok}")
        issue(r)
    budget_check(A, code)
    A(f"s_branch {L}")
    A.label(Lok)

def stamp(A, idx, vt=250):
    if P["prof"] not in (1, 2) and not (P["prof"] == 4 and vt == 250 and idx == 6): return
    A(f"s_memrealtime s[90:91]")
    A(f"s_waitcnt lgkmcnt(0)")
    A(f"v_writelane_b32 v{vt}, s90, {idx}")
    if P["prof"] == 2:
        A(f"s_memtime s[90:91]")
        A(f"s_waitcnt lgkmcnt(0)")
        A(f"v_writelane_b32 v{vt}, s90, {idx+8}")

def dstamp(A, idx, inv=False, vt=254):
    if not P.get("diag"): return
    A("s_memrealtime s[90:91]")
    A("s_waitcnt lgkmcnt(0)")
    if inv: A("s_not_b32 s90, s90")
    A(f"v_mov_b32 v{vt}, s90")
    A(f"v_mov_b32 v{vt+1}, {4 * idx}")
    A("s_mov_b64 exec, 1")
    A(f"buffer_atomic_umax v{vt}, v{vt+1}, s[{sDBG}:{sDBG+3}], 0 offen")
    A("s_mov_b64 exec, -1")

def ostamp(A, row, idx, vt=254):
    if P.get("diag"):
        if idx == 0: dstamp(A, 0, True)
        dstamp(A, 1 + idx)
    if not P["prof"]: return
    A("s_memrealtime s[90:91]")
    A("s_lshl_b32 s92, s2, 2")
    A(f"s_add_u32 s92, s92, s{sW}")
    A("s_mul_i32 s92, s92, 80")
    A(f"s_add_u32 s92, s92, {row}")
    A("s_lshl_b32 s92, s92, 6")
    A(f"s_add_u32 s92, s92, {PROF + 4 * idx}")
    A("s_waitcnt lgkmcnt(0)")
    A(f"v_mov_b32 v{vt}, s90")
    A(f"v_mov_b32 v{vt+1}, 0")
    A("s_mov_b64 exec, 1")
    A(f"buffer_store_dword v{vt}, v{vt+1}, s[{sWS}:{sWS+3}], s92 offen")
    A("s_mov_b64 exec, -1")

def fstamp(A, idx, vt):
    if P["prof"] not in (3, 5): return
    A(f"s_mem{'real' if P['prof'] == 5 else ''}time s[{60+2*idx}:{61+2*idx}]")

def fstamp_collect(A, n, vt):
    if P["prof"] not in (3, 5): return
    A("s_waitcnt lgkmcnt(0)")
    for i in range(n):
        A(f"v_writelane_b32 v{vt}, s{60+2*i}, {i}")

def stamp_flush(A, vt=250, vtmp=251):
    if not P["prof"] or (P["prof"] == 4 and vt != 250): return
    A(f"s_lshl_b32 s90, s2, 2")
    A(f"s_add_u32 s90, s90, s{sW}")
    A(f"s_mul_i32 s90, s90, 80")
    A(f"s_add_u32 s90, s90, s{sS}")
    A(f"s_add_u32 s90, s90, 4")
    A(f"s_lshl_b32 s90, s90, 6")
    A(f"s_add_u32 s90, s90, {PROF}")
    A(f"v_lshlrev_b32 v{vtmp}, 2, v0")
    A(f"s_mov_b64 exec, 0xffff")
    A(f"buffer_store_dword v{vt}, v{vtmp}, s[{sWS}:{sWS+3}], s90 offen")
    A(f"s_mov_b64 exec, -1")

def gen_init(A):
    A.label("L_init")
    if P["cpf"]:
        A("s_getpc_b64 s[30:31]")
        A.label("L_pc")
        A(f"s_sub_u32 s{sT0}, s{sR}, 28")
        A(f"s_lshl_b32 s{sT0}, s{sT0}, 2")
        A(f"s_add_u32 s{sT0}, s{sT0}, s{sW}")
        A(f"s_mul_i32 s{sT0}, s{sT0}, 3072")
        A(f"v_lshlrev_b32 v1, 4, v0")
        A(f"v_add_u32 v1, s{sT0}, v1")
        A(f"v_min_u32 v1, L_code_end-L_pc-2048-16, v1")
        for i in range(3):
            A(f"global_load_dwordx4 v[20:23], v1, s[30:31] offset:{1024*i}")
    A("v_mov_b32 v4, -1\nv_mov_b32 v5, -1\nv_mov_b32 v6, -1\nv_mov_b32 v7, -1")
    A(f"s_load_dwordx2 s[{sRO}:{sRO+1}], s[0:1], 8")
    A(f"s_lshl_b32 s{sT0}, s{sW}, 6")
    A(f"v_add_u32 v9, s{sT0}, v0")
    A("v_lshlrev_b32 v1, 4, v9")
    A(f"s_sub_u32 s{sT0}, s2, 224")
    A(f"s_lshl_b32 s{sT0}, s{sT0}, 12")
    for base, size in ((QKVR, PXR + 8 * 49152 - QKVR), (PART, 4 * PART_SLOT)):
        A(f"s_add_u32 s{sT1}, s{sT0}, {base}")
        for i in range(size // 131072):
            A(f"buffer_store_dwordx4 v[4:7], v1, {WSR}, s{sT1} offen sc1")
            A(f"s_add_u32 s{sT1}, s{sT1}, 131072")
        assert size % 131072 == 0
    Lm, Lf, Ld = A.newlabel("im"), A.newlabel("if"), A.newlabel("id")
    A(f"s_cmp_eq_u32 s{sR}, 31")
    A(f"s_cbranch_scc1 {Lm}")
    A(f"s_cmp_eq_u32 s{sR}, 30")
    A(f"s_cbranch_scc1 {Lf}")
    A(f"s_mul_i32 s{sT1}, s{sG}, 40960")
    A(f"s_sub_u32 s{sT0}, s{sR}, 28")
    A(f"s_mul_i32 s{sT0}, s{sT0}, 15360")
    A(f"s_add_u32 s{sT1}, s{sT1}, s{sT0}")
    A(f"s_add_u32 s{sT1}, s{sT1}, 10240")
    for i in range(4):
        if i == 3:
            A("v_cmp_gt_u32 vcc, 192, v9")
            A(f"v_mov_b32 v2, {OOB}")
            A("s_nop 0")
            A("v_cndmask_b32 v1, v2, v1, vcc")
        A(f"buffer_store_dwordx4 v[4:7], v1, {WSR}, s{sT1} offen sc1")
        A(f"s_add_u32 s{sT1}, s{sT1}, 4096")
    A(f"s_branch {Ld}")
    A.label(Lf)
    A("v_mov_b32 v4, 0\nv_mov_b32 v5, 0\nv_mov_b32 v6, 0\nv_mov_b32 v7, 0")
    A("v_cmp_gt_u32 vcc, 96, v9")
    A(f"v_mov_b32 v2, {OOB}")
    A(f"s_mul_i32 s{sT1}, s{sG}, 1536")
    A("v_cndmask_b32 v1, v2, v1, vcc")
    A(f"s_add_u32 s{sT1}, s{sT1}, {FLAGS}")
    A(f"buffer_store_dwordx4 v[4:7], v1, {WSR}, s{sT1} offen sc1")
    A(f"s_branch {Ld}")
    A.label(Lm)
    A("s_waitcnt lgkmcnt(0)")
    srd(A, sRO, 10240)
    A(f"s_mul_i32 s{sT1}, s{sG}, 40960")
    for i in range(3):
        A(f"v_add_u32 v2, {256 * i}, v9")
        A("v_lshrrev_b32 v3, 6, v2")
        A("v_and_b32 v8, 7, v2")
        A("v_bfe_u32 v16, v2, 3, 1")
        A("v_bfe_u32 v10, v2, 4, 2")
        A("v_mul_u32_u24 v8, 1280, v8")
        A("v_lshl_add_u32 v8, v3, 7, v8")
        A("v_lshl_add_u32 v8, v10, 5, v8")
        A("v_lshl_add_u32 v8, v16, 2, v8")
        A("v_cmp_gt_u32 vcc, 640, v2")
        A(f"v_mov_b32 v11, {OOB}")
        A("v_lshlrev_b32 v2, 4, v2")
        A("v_cndmask_b32 v8, v11, v8, vcc")
        A("v_cndmask_b32 v2, v11, v2, vcc")
        for q in range(4):
            A(f"buffer_load_dword v{12+q}, v8, s[{sRO}:{sRO+3}], 0 offen offset:{8*q}")
        A("s_waitcnt vmcnt(0)")
        for q in range(4):
            A(f"v_min_u32 v{12+q}, -2, v{12+q}")
        A(f"buffer_store_dwordx4 v[12:15], v2, {WSR}, s{sT1} offen sc1")
        A("s_nop 1")
    A.label(Ld)
    A("s_waitcnt vmcnt(0) lgkmcnt(0)")
    A("s_barrier")
    Ln = A.newlabel("in")
    A(f"s_cmp_lg_u32 s{sW}, 0")
    A(f"s_cbranch_scc1 {Ln}")
    A("v_mov_b32 v2, 1")
    A(f"v_mov_b32 v3, {DBG_INIT}")
    A("s_mov_b64 exec, 1")
    A(f"buffer_atomic_add v2, v3, s[{sDBG}:{sDBG+3}], 0 offen")
    A("s_mov_b64 exec, -1")
    A.label(Ln)
    A(f"s_cmp_lt_u32 s{sR}, 30")
    A("s_cbranch_scc1 L_xs")
    A("s_branch L_bg")

def gen_common_prologue(A):
    A("s_cmp_ge_u32 s2, 256")
    A("s_cbranch_scc1 L_end")
    A(f"s_load_dwordx2 s[{sWS}:{sWS+1}], s[0:1], 128")
    A(f"s_load_dwordx2 s[{sX}:{sX+1}], s[0:1], 0")
    A(f"s_load_dwordx2 s[{sDBG}:{sDBG+1}], s[0:1], 120")
    A("v_lshrrev_b32 v1, 6, v0")
    A(f"s_and_b32 s{sG}, s2, 7")
    A(f"v_readfirstlane_b32 s{sW}, v1")
    A("v_and_b32 v0, 63, v0")
    A(f"s_lshr_b32 s{sR}, s2, 3")
    A(f"s_getreg_b32 s{sXCC}, hwreg(HW_REG_XCC_ID)")
    A(f"s_mov_b32 s{sBUD}, 400000")
    A("s_waitcnt lgkmcnt(0)")
    srd(A, sWS, WS_SIZE)
    srd(A, sX, 2048 * 1280)
    srd(A, sDBG, 256)
    ostamp(A, 0, 0)
    L = A.newlabel("nocensus")
    A(f"s_cmp_lg_u32 s{sW}, 0")
    A(f"s_cbranch_scc1 {L}")
    A(f"s_mul_i32 s{sT0}, s{sXCC}, 6")
    A(f"s_lshl_b64 s[{sT2}:{sT3}], 1, s{sT0}")
    A(f"s_cmp_lt_u32 s{sXCC}, 8")
    A(f"s_cselect_b64 s[{sT2}:{sT3}], s[{sT2}:{sT3}], 0")
    A(f"s_add_u32 s{sT3}, s{sT3}, 0x1000000")
    A(f"v_mov_b32 v2, s{sT2}")
    A(f"v_mov_b32 v3, s{sT3}")
    A(f"s_lshl_b32 s{sT0}, s{sG}, 3")
    A(f"v_mov_b32 v4, s{sT0}")
    A("s_mov_b64 exec, 1")
    A(f"buffer_atomic_add_x2 v[2:3], v4, s[{sDBG}:{sDBG+3}], 0 offen offset:{DBG_CEN}")
    A("s_mov_b64 exec, -1")
    A.label(L)

def gen_locality(A, lab_local, lab_global, vt):
    L = A.newlabel("loc")
    A(f"v_lshlrev_b32 v{vt}, 2, v0")
    A(f"s_lshl_b32 s93, s{sG}, 1")
    A(f"s_add_u32 s93, s93, {DBG_CEN // 4}")
    A(f"s_add_u32 s94, s93, 1")
    A.label(L)
    A(f"buffer_load_dword v{vt+1}, v{vt}, s[{sDBG}:{sDBG+3}], 0 offen sc1")
    budget_check(A, 1)
    A("s_waitcnt vmcnt(0)")
    A(f"v_readlane_b32 s{sT0}, v{vt+1}, s93")
    A(f"v_readlane_b32 s{sT1}, v{vt+1}, s94")
    A(f"v_readlane_b32 s{sT3}, v{vt+1}, {DBG_INIT // 4}")
    A(f"s_lshr_b32 s{sT2}, s{sT1}, 24")
    A(f"s_min_u32 s{sT2}, s{sT2}, s{sT3}")
    A(f"s_cmp_lt_u32 s{sT2}, 32")
    A(f"s_cbranch_scc1 {L}")
    if lab_local is None: return
    if P["force_global"]:
        A(f"s_branch {lab_global}")
    A(f"s_and_b32 s{sT1}, s{sT1}, 0xffffff")
    A(f"s_mul_i32 s{sT2}, s{sXCC}, 6")
    A(f"s_lshl_b64 s[{sT2}:{sT3}], 32, s{sT2}")
    A(f"s_cmp_eq_u64 s[{sT0}:{sT1}], s[{sT2}:{sT3}]")
    A(f"s_cbranch_scc0 {lab_global}")
    A(f"s_cmp_lt_u32 s{sXCC}, 8")
    A(f"s_cbranch_scc0 {lab_global}")
    A(f"s_branch {lab_local}")


def gen_s1(A):
    sU, sHH, sTY, sKS = 30, 31, 32, 33
    sPartRd, sMem0, sMem1, sMem2, sQkv, sMemP, sQkvP = 34, 35, 36, 37, 38, 39, 40
    sXr, sXrEnd, sXrBase, sXflag, sXsrc, sLdsW = 41, 42, 43, 44, 45, 46
    sPartBase, sMemBase, sQkvBase, sXbuf, sH2 = 47, 48, 49, 50, 51
    vL16, vMemSt, vQkvSt, vIdx, vXg, vXrd, vXsum, vPois, vFlagO = 1, 2, 3, 4, 5, 6, 7, 8, 9
    vSel = 128
    vH = 132
    vHld, vHw, vHr, vMkO = 144, 145, 146, 147
    vH2 = 148
    vNearO = 160
    vXB3 = 164
    sPartP, vPois2, vPartSt = 52, 162, 161
    vMemPo, vQkvPo = 188, 189
    sMk, sMkW = 58, 59
    MEML = 81920
    vT = 10
    vM = 20
    vPt = 60
    vA = 76
    vMx = 84
    vXA = 88
    vXB = 104
    vXO = 120
    A.label("L_s1")
    A(f"s_lshl_b32 s{sU}, s{sR}, 2")
    A(f"s_add_u32 s{sU}, s{sU}, s{sW}")
    A(f"s_mul_i32 s{sHH}, s{sU}, 3641")
    A(f"s_lshr_b32 s{sHH}, s{sHH}, 16")
    A(f"s_mul_i32 s{sT0}, s{sHH}, 18")
    A(f"s_sub_u32 s{sT0}, s{sU}, s{sT0}")
    A(f"s_mul_i32 s{sTY}, s{sT0}, 43")
    A(f"s_lshr_b32 s{sTY}, s{sTY}, 8")
    A(f"s_mul_i32 s{sT1}, s{sTY}, 6")
    A(f"s_sub_u32 s{sKS}, s{sT0}, s{sT1}")
    A("s_load_dwordx4 s[52:55], s[0:1], 16")
    A("s_load_dwordx2 s[56:57], s[0:1], 32")
    A(f"v_lshlrev_b32 v{vL16}, 4, v0")
    A(f"s_and_b32 s{sT2}, s{sW}, 1")
    A(f"s_lshl_b32 s{sT3}, s{sT2}, 2")
    A(f"v_lshrrev_b32 v{vT}, 3, v0")
    A(f"v_and_b32 v{vT+1}, 2, v{vT}")
    A(f"v_or_b32 v{vT+1}, s{sT3}, v{vT+1}")
    A(f"v_xor_b32 v{vT+1}, v0, v{vT+1}")
    A(f"v_and_b32 v{vT+1}, 7, v{vT+1}")
    A(f"v_mul_u32_u24 v{vT}, 12288, v{vT}")
    A(f"v_lshl_add_u32 v{vT}, v{vT+1}, 4, v{vT}")
    A("s_waitcnt lgkmcnt(0)")
    A(f"s_cmp_eq_u32 s{sTY}, 1")
    A(f"s_cselect_b64 s[{sRO}:{sRO+1}], s[54:55], s[52:53]")
    A(f"s_cmp_eq_u32 s{sTY}, 2")
    A(f"s_cselect_b64 s[{sRO}:{sRO+1}], s[56:57], s[{sRO}:{sRO+1}]")
    srd(A, sRO, 640 * 12288)
    A(f"s_lshl_b32 s{sT0}, s{sG}, 2")
    A(f"s_add_u32 s{sT0}, s{sT0}, s{sHH}")
    A(f"s_mul_i32 s{sT0}, s{sT0}, 384")
    A(f"s_lshr_b32 s{sT1}, s{sKS}, 1")
    A(f"s_lshl_b32 s{sT1}, s{sT1}, 7")
    A(f"s_add_u32 s{sT0}, s{sT0}, s{sT1}")
    A(f"s_mul_i32 s{sT1}, s{sT2}, {8 * 12288}")
    A(f"s_add_u32 s{sT0}, s{sT0}, s{sT1}")
    A(f"s_lshr_b32 s{sLdsW}, s{sW}, 1")
    A(f"s_mul_i32 s{sLdsW}, s{sLdsW}, 40960")
    A(f"s_lshl_b32 s{sT1}, s{sT2}, 10")
    A(f"s_add_u32 m0, s{sLdsW}, s{sT1}")
    A("s_nop 0")
    for i in range(40):
        A(f"buffer_load_dwordx4 v{vT}, s[{sRO}:{sRO+3}], s{sT0} offen{' nt' if P['wnt'] else ''} lds")
        if i < 39:
            A(f"s_add_u32 m0, m0, {2048 + (40960 if i == 19 else 0)}")
            A(f"s_add_u32 s{sT0}, s{sT0}, {16 * 12288}")
    A(f"s_lshl_b32 s{sT0}, s{sU}, 10")
    A(f"s_add_u32 s{sT0}, s{sT0}, 8192")
    A(f"buffer_load_dwordx4 v[{vM}:{vM+3}], v{vL16}, s[{sX}:{sX+3}], s{sT0} offen")
    A(f"v_and_b32 v{vT+1}, 15, v0")
    A(f"v_lshrrev_b32 v{vT+2}, 4, v0")
    A(f"v_cmp_gt_u32 vcc, 8, v{vT+1}")
    A(f"v_mov_b32 v{vT+3}, 0xeeee")
    A(f"v_mov_b32 v{vT+4}, 0x4444")
    A(f"v_cndmask_b32 v{vIdx}, v{vT+3}, v{vT+4}, vcc")
    A(f"v_mov_b32 v{vPois}, -1")
    A(f"v_lshrrev_b32 v{vXg}, 2, v0")
    A(f"v_mul_u32_u24 v{vXg}, 1280, v{vXg}")
    A(f"v_sub_u32 v{vT+3}, 0, v{vT+2}")
    A(f"v_xor_b32 v{vT+3}, v0, v{vT+3}")
    A(f"v_and_b32 v{vT+3}, 3, v{vT+3}")
    A(f"v_lshl_add_u32 v{vXg}, v{vT+3}, 4, v{vXg}")
    A(f"v_lshrrev_b32 v{vT+3}, 2, v{vT+1}")
    A(f"v_sub_u32 v{vT+3}, 0, v{vT+3}")
    A(f"v_xor_b32 v{vT+3}, v{vT+2}, v{vT+3}")
    A(f"v_and_b32 v{vT+3}, 3, v{vT+3}")
    A(f"v_lshl_add_u32 v{vT+3}, v{vT+1}, 2, v{vT+3}")
    A(f"v_lshlrev_b32 v{vXrd}, 4, v{vT+3}")
    A(f"v_lshlrev_b32 v{vXsum}, 5, v{vT+3}")
    A(f"v_add_u32 v{vXsum}, 40960, v{vXsum}")
    A(f"v_lshrrev_b32 v{vT+3}, 2, v{vT+1}")
    A(f"v_and_b32 v{vT+4}, 1, v{vT+1}")
    A(f"v_lshlrev_b32 v{vT+4}, 4, v{vT+4}")
    A(f"v_mov_b32 v{vT+5}, 0x3f80")
    A(f"v_lshlrev_b32 v{vT+4}, v{vT+4}, v{vT+5}")
    for r in range(4):
        A(f"v_cmp_eq_u32 vcc, {r}, v{vT+3}")
        A("s_nop 1")
        A(f"v_cndmask_b32 v{vSel+r}, 0, v{vT+4}, vcc")
    A(f"s_lshl_b32 s{sT0}, s{sW}, 10")
    A(f"v_add_u32 v{vHld}, s{sT0}, v{vL16}")
    A(f"v_add_u32 v{vHw}, {MEML}, v{vHld}")
    A(f"v_add_u32 v{vHr}, {MEML}, v{vL16}")
    A(f"s_cmp_ge_u32 s{sU}, 40")
    A(f"s_cselect_b32 s{sT0}, 40, 0")
    A(f"s_sub_u32 s{sT0}, s{sU}, s{sT0}")
    A(f"s_lshr_b32 s{sPartBase}, s{sT0}, 2")
    A(f"s_lshl_b32 s{sPartBase}, s{sPartBase}, 14")
    A(f"s_and_b32 s{sT1}, s{sT0}, 3")
    A(f"s_lshl_b32 s{sT1}, s{sT1}, 11")
    A(f"s_add_u32 s{sPartBase}, s{sPartBase}, s{sT1}")
    A(f"s_add_u32 s{sPartBase}, s{sPartBase}, {PART}")
    A(f"v_and_b32 v{vT+3}, 7, v0")
    A(f"v_bfe_u32 v{vT+4}, v0, 4, 1")
    A(f"v_lshl_add_u32 v{vT+3}, v{vT+4}, 3, v{vT+3}")
    A(f"v_lshlrev_b32 v{vT+3}, 4, v{vT+3}")
    A(f"v_bfe_u32 v{vT+4}, v0, 3, 1")
    A(f"v_lshl_add_u32 v{vT+3}, v{vT+4}, 3, v{vT+3}")
    A(f"v_lshrrev_b32 v{vT+4}, 5, v0")
    A(f"v_lshl_add_u32 v{vT+3}, v{vT+4}, 2, v{vT+3}")
    A(f"s_lshl_b32 s{sT0}, s{sT0}, 8")
    A(f"s_cmp_ge_u32 s{sU}, 40")
    A(f"s_cselect_b32 s{sT0}, {OOB}, s{sT0}")
    A(f"v_add_u32 v{vMemSt}, s{sT0}, v{vT+3}")
    A(f"v_lshl_add_u32 v{vMemPo}, v0, 2, s{sT0}")
    A(f"v_and_b32 v{vT+3}, 31, v0")
    A(f"v_lshlrev_b32 v{vT+3}, 3, v{vT+3}")
    A(f"v_lshrrev_b32 v{vT+4}, 5, v0")
    A(f"v_lshl_add_u32 v{vT+3}, v{vT+4}, 13, v{vT+3}")
    A(f"s_lshl_b32 s{sT0}, s{sG}, 8")
    A(f"s_cmp_ge_u32 s{sU}, 40")
    A(f"s_cselect_b32 s{sT0}, {OOB}, s{sT0}")
    A(f"v_add_u32 v{vPartSt}, s{sT0}, v{vT+3}")
    A(f"v_mov_b32 v{vPois2}, -1")
    A(f"v_mov_b32 v{vPois2+1}, -1")
    A(f"v_bfe_u32 v{vT+3}, v0, 4, 1")
    A(f"v_lshrrev_b32 v{vT+4}, 5, v0")
    A(f"v_lshlrev_b32 v{vT+3}, 2, v{vT+3}")
    A(f"v_lshl_add_u32 v{vT+3}, v{vT+4}, 1, v{vT+3}")
    A(f"s_and_b32 s{sT0}, s{sKS}, 1")
    A(f"s_lshr_b32 s{sT1}, s{sKS}, 1")
    A(f"s_lshl_b32 s{sT1}, s{sT1}, 10")
    A(f"v_lshrrev_b32 v{vT+4}, 2, v{vT+1}")
    A(f"v_lshl_add_u32 v{vT+4}, v{vT+4}, 4, v{vT+3}")
    A(f"v_lshlrev_b32 v{vT+4}, 4, v{vT+4}")
    A(f"v_and_b32 v{vT+5}, 3, v{vT+1}")
    A(f"v_lshl_add_u32 v{vT+4}, v{vT+5}, 2, v{vT+4}")
    A(f"s_lshl_b32 s{sT2}, s{sT0}, 7")
    A(f"s_add_u32 s{sT2}, s{sT2}, s{sT1}")
    A(f"v_add_u32 v{vT+4}, s{sT2}, v{vT+4}")
    A(f"v_lshrrev_b32 v{vT+5}, 3, v{vT+1}")
    A(f"v_lshl_add_u32 v{vT+5}, v{vT+5}, 4, v{vT+3}")
    A(f"v_and_b32 v{vT+6}, 1, v{vT+1}")
    A(f"v_lshl_add_u32 v{vT+5}, v{vT+6}, 3, v{vT+5}")
    A(f"v_lshlrev_b32 v{vT+5}, 4, v{vT+5}")
    A(f"v_bfe_u32 v{vT+6}, v{vT+1}, 1, 2")
    A(f"v_lshl_add_u32 v{vT+5}, v{vT+6}, 2, v{vT+5}")
    A(f"s_lshl_b32 s{sT2}, s{sT0}, 9")
    A(f"s_add_u32 s{sT2}, s{sT2}, s{sT1}")
    A(f"v_add_u32 v{vT+5}, s{sT2}, v{vT+5}")
    A(f"v_lshl_add_u32 v{vT+6}, v0, 3, s{sT2}")
    A(f"v_and_b32 v{vT+7}, 15, v0")
    A(f"v_lshlrev_b32 v{vT+7}, 3, v{vT+7}")
    A(f"v_lshl_add_u32 v{vT+7}, v{vT+2}, 8, v{vT+7}")
    A(f"s_lshl_b32 s{sT2}, s{sT0}, 7")
    A(f"s_add_u32 s{sT2}, s{sT2}, s{sT1}")
    A(f"v_add_u32 v{vT+7}, s{sT2}, v{vT+7}")
    A(f"s_cmp_eq_u32 s{sTY}, 2")
    A(f"s_cselect_b64 vcc, -1, 0")
    A(f"v_cndmask_b32 v{vQkvSt}, v{vT+4}, v{vT+5}, vcc")
    A(f"v_cndmask_b32 v{vQkvPo}, v{vT+7}, v{vT+6}, vcc")
    A(f"v_cmp_eq_u32 vcc, 0, v0")
    A(f"v_mov_b32 v{vT+4}, {OOB}")
    A("s_nop 0")
    A(f"v_cndmask_b32 v{vFlagO}, v{vT+4}, v0, vcc")
    A(f"s_lshl_b32 s{sT0}, s{sG}, 2")
    A(f"s_add_u32 s{sT0}, s{sT0}, {DBG_NEAR}")
    A(f"v_mov_b32 v{vNearO}, s{sT0}")
    A(f"v_min_u32 v{vMkO}, 9, v0")
    A(f"v_lshlrev_b32 v{vMkO}, 2, v{vMkO}")
    A(f"s_lshl_b32 s{sMk}, s{sG}, 7")
    A(f"s_lshl_b32 s{sT0}, s{sR}, 2")
    A(f"s_add_u32 s{sMkW}, s{sMk}, s{sT0}")
    A(f"s_add_u32 s{sMkW}, s{sMkW}, {S1MARK}")
    A(f"s_cmp_eq_u32 s{sW}, 0")
    A(f"s_cselect_b32 s{sMkW}, s{sMkW}, {OOB}")
    A(f"s_add_u32 s{sMk}, s{sMk}, {S2MARK}")
    A(f"s_cmp_lt_u32 s{sW}, 2")
    A(f"s_cselect_b32 s{sH2}, 8192, 0")
    A(f"s_mul_i32 s{sMemBase}, s{sG}, 40960")
    A(f"s_mul_i32 s{sT0}, s{sHH}, 3")
    A(f"s_add_u32 s{sT0}, s{sT0}, s{sTY}")
    A(f"s_mul_i32 s{sQkvBase}, s{sG}, 147456")
    A(f"s_mul_i32 s{sT1}, s{sT0}, 3072")
    A(f"s_add_u32 s{sQkvBase}, s{sQkvBase}, s{sT1}")
    A(f"s_add_u32 s{sQkvBase}, s{sQkvBase}, {QKVR}")
    A(f"s_mul_i32 s{sXrBase}, s{sG}, {XR_G}")
    A(f"s_lshl_b32 s{sT1}, s{sU}, 1")
    A(f"s_add_u32 s{sT1}, s{sT1}, s{sHH}")
    A(f"s_lshl_b32 s{sT1}, s{sT1}, 10")
    A(f"s_add_u32 s{sXrBase}, s{sXrBase}, s{sT1}")
    A(f"s_add_u32 s{sXrBase}, s{sXrBase}, {XR}")
    A(f"s_add_u32 s{sXrEnd}, s{sXrBase}, {XR_G}")
    A(f"s_mov_b32 s{sXr}, s{sXrBase}")
    A(f"s_lshl_b32 s{sXflag}, s{sG}, 9")
    A(f"s_lshl_b32 s{sT1}, s{sU}, 2")
    A(f"s_add_u32 s{sXflag}, s{sXflag}, s{sT1}")
    A(f"s_add_u32 s{sXflag}, s{sXflag}, {XFLAG}")
    A(f"v_bfe_u32 v{vT+3}, v0, 2, 2")
    A(f"v_lshl_add_u32 v{vT+4}, v{vT+2}, 3, v{vT+3}")
    A(f"v_lshlrev_b32 v{vT+4}, 7, v{vT+4}")
    A(f"v_and_b32 v{vT+5}, 1, v0")
    A(f"v_lshl_add_u32 v{vT+4}, v{vT+5}, 3, v{vT+4}")
    A(f"v_add_u32 v{vT+4}, s{sLdsW}, v{vT+4}")
    A(f"v_and_b32 v{vT+3}, 2, v{vT+3}")
    A(f"v_and_b32 v{vT+5}, 1, v{vT+2}")
    A(f"v_lshl_add_u32 v{vT+3}, v{vT+5}, 2, v{vT+3}")
    A(f"v_bfe_u32 v{vT+5}, v0, 1, 1")
    A(f"s_and_b32 s{sT0}, s{sW}, 1")
    A(f"s_lshl_b32 s{sT0}, s{sT0}, 2")
    A(f"v_or_b32 v{vT+5}, s{sT0}, v{vT+5}")
    A(f"v_xor_b32 v{vT+5}, v{vT+5}, v{vT+3}")
    A(f"v_xor_b32 v{vT+6}, 2, v{vT+5}")
    A(f"v_lshl_add_u32 v{vT+5}, v{vT+5}, 4, v{vT+4}")
    A(f"v_lshl_add_u32 v{vT+6}, v{vT+6}, 4, v{vT+4}")
    def trhalf(h):
        for kd in range(10 * h, 10 * h + 10):
            for t in range(2):
                for hf in range(2):
                    A(f"ds_read_b64_tr_b16 a[{80*t+4*kd+2*hf}:{80*t+4*kd+2*hf+1}], v{vT+5+t} offset:{(kd%10)*4096+hf*512}")
    A("s_waitcnt vmcnt(21)")
    A("s_barrier")
    trhalf(0)
    A(f"v_add_u32 v{vT+5}, 81920, v{vT+5}")
    A(f"v_add_u32 v{vT+6}, 81920, v{vT+6}")
    A("s_waitcnt lgkmcnt(0)")
    A("s_barrier")
    A(f"s_mul_i32 s{sXsrc}, s{sW}, 320")
    A(f"s_mul_i32 s{sLdsW}, s{sW}, 10240")
    A(f"s_mov_b32 s{sXbuf}, 0")
    def xdma():
        A(f"s_add_u32 m0, s{sLdsW}, s{sXbuf}")
        for i in range(5):
            for tt in range(2):
                A(f"s_add_u32 s{sT0}, s{sXsrc}, {tt * 20480 + i * 64}")
                A(f"buffer_load_dwordx4 v{vXg}, s[{sX}:{sX+3}], s{sT0} offen lds")
                if not (i == 4 and tt == 1):
                    A("s_add_u32 m0, m0, 1024")
        A(f"s_add_u32 s{sXsrc}, s{sXsrc}, 40960")
        A(f"s_sub_u32 s{sXbuf}, 40960, s{sXbuf}")
    xdma()
    A("s_waitcnt vmcnt(10)")
    A("s_barrier")
    trhalf(1)
    ostamp(A, 0, 1)
    A(f"s_mov_b32 s{sS}, -2")
    gen_locality(A, "L_s1_loc", "L_s1_glb", vT)

    for mode in ("loc", "glb"):
        sc = "" if mode == "loc" else " sc1"
        Lb, Ls3, Lh1, Lslow, Lcont, Lnox = [f"L_s1_{mode}_{x}" for x in ("bub", "s3", "h1", "slow", "cont", "nox")]
        def xrd(kd, tt):
            b = vXB3 + 8 * (kd % 3) + 4 * tt
            A(f"ds_read_b128 v[{b}:{b+3}], v{vXrd} offset:{(2*kd+tt)*1024}")
        def marks():
            A(f"s_add_u32 s{sT0}, s{sS}, 1")
            A(f"v_mov_b32 v{vT+2}, s{sT0}")
            A(f"v_add_u32 v{vT+3}, 2, v{vT+2}")
        def mark1():
            A(f"buffer_store_dword v{vT+2}, v{vFlagO}, {WSR}, s{sMkW} offen{sc}")
        Lpro = f"L_s1_{mode}_pro"
        A.label(f"L_s1_{mode}")
        A("s_waitcnt lgkmcnt(0)")
        A.label(Lpro)
        A("s_barrier")
        marks()
        xrd(0, 0); xrd(0, 1); xrd(1, 0); xrd(1, 1)
        A.label(Lb)
        if P["mk1"] == 0: mark1()
        stamp(A, 5)
        fstamp(A, 5, 250)
        def house():
            return [f"s_cmp_lt_i32 s{sS}, 1",
                f"s_cselect_b32 s{sMemP}, {OOB}, s{sMemP}",
                f"s_cselect_b32 s{sQkvP}, {OOB}, s{sQkvP}",
                f"s_cselect_b32 s{sPartP}, {OOB}, s{sPartP}",
                f"buffer_store_dword v{vPois}, v{vMemPo}, {WSR}, s{sMemP} offen{sc}",
                f"buffer_store_dwordx2 {v(vPois2,2)}, v{vQkvPo}, {WSR}, s{sQkvP} offen{sc}",
                f"buffer_store_dwordx2 {v(vPois2,2)}, v{vPartSt}, {WSR}, s{sPartP} offen sc1",
                f"buffer_load_dword v{vT+4}, v{vNearO}, s[{sDBG}:{sDBG+3}], 0 offen sc1",
                f"s_and_b32 s{sT1}, s{sS}, 3",
                f"s_mul_i32 s{sPartRd}, s{sT1}, {PART_SLOT}",
                f"s_add_u32 s{sPartRd}, s{sPartRd}, s{sPartBase}",
                f"s_mul_i32 s{sMemP}, s{sT1}, 10240",
                f"s_add_u32 s{sMemP}, s{sMemP}, s{sMemBase}",
                f"s_add_u32 s{sT1}, s{sS}, 3",
                f"s_and_b32 s{sT1}, s{sT1}, 3",
                f"s_mul_i32 s{sPartP}, s{sT1}, {PART_SLOT}",
                f"s_add_u32 s{sPartP}, s{sPartP}, s{sPartBase}",
                f"s_mul_i32 s{sQkvP}, s{sT1}, 36864",
                f"s_add_u32 s{sQkvP}, s{sQkvP}, s{sQkvBase}",
                f"s_add_u32 s{sT1}, s{sS}, 1",
                f"s_and_b32 s{sT1}, s{sT1}, 3",
                f"s_mul_i32 s{sMem0}, s{sT1}, 10240",
                f"s_add_u32 s{sMem0}, s{sMem0}, s{sMemBase}",
                f"s_add_u32 s{sMem1}, s{sMem0}, 4096",
                f"s_add_u32 s{sMem2}, s{sMem0}, s{sH2}",
                f"s_mul_i32 s{sQkv}, s{sT1}, 36864",
                f"s_add_u32 s{sQkv}, s{sQkv}, s{sQkvBase}"]
        Lxd = A.newlabel("xdone")
        A(f"s_cmp_ge_i32 s{sS}, {P['nseg'] - 2 if not P.get('x_nox') else 3}")
        A(f"s_cbranch_scc1 {Lnox}")
        fstamp(A, 6, 250)
        if P["prof"] in (3, 5): A("s_waitcnt lgkmcnt(0)")
        A(f"s_add_u32 m0, s{sLdsW}, s{sXbuf}")
        hk = house()
        for _ in range(4): A(hk.pop(0))
        A("s_waitcnt lgkmcnt(2)")
        early = P["dma_e"]
        dmak = list(range(early)) + list(range(P["dma0"], P["dma0"] + 10 - early))
        nd = 0
        for kd in range(20):
            cur = vXB3 + 8 * (kd % 3)
            n = 0
            for tt in range(2):
                for t in range(2):
                    acc = vXA + 4 * (2 * tt + t)
                    c = "0" if kd == 0 else v(acc, 4)
                    A(f"v_mfma_f32_16x16x32_bf16 {v(acc,4)}, {a(80*t+4*kd,4)}, {v(cur+4*tt,4)}, {c}" if not P.get("x_nomf") else "s_nop 1")
                    if n < 2 and kd < 18: xrd(kd + 2, n)
                    if kd in dmak:
                        if n == 0: A(f"s_add_u32 s{sT0}, s{sXsrc}, {(nd & 1) * 20480 + (nd >> 1) * 64}")
                        if n == 1 and hk: A(hk.pop(0))
                        if n == 2: A(f"buffer_load_dwordx4 v{vXg}, s[{sX}:{sX+3}], s{sT0} offen lds")
                        if n == 3: A("s_add_u32 m0, m0, 1024"); nd += 1
                    elif n < 3 and hk:
                        A(hk.pop(0))
                        if n == 2 and hk: A(hk.pop(0))
                    if n == 3 and kd < 19: A(f"s_waitcnt lgkmcnt({2 if kd < 18 else 0})")
                    n += 1
        assert nd == 10
        assert not hk
        fstamp(A, 7, 250)
        A(f"s_add_u32 s{sXsrc}, s{sXsrc}, 40960")
        A(f"s_sub_u32 s{sXbuf}, 40960, s{sXbuf}")
        A(f"v_sub_u32 v{vXrd}, v{vXsum}, v{vXrd}")
        A(f"s_mov_b32 s{sT0}, s{sXr}")
        A(f"s_add_u32 s{sXr}, s{sXr}, {XR_SLOT}")
        A(f"s_cmp_eq_u32 s{sXr}, s{sXrEnd}")
        A(f"s_cselect_b32 s{sXr}, s{sXrBase}, s{sXr}")
        for tt in range(2):
            for r in range(4):
                A(f"v_cvt_pk_bf16_f32 v{vXO+4*tt+r}, v{vXA+8*tt+r}, v{vXA+8*tt+4+r}")
            A(f"buffer_store_dwordx4 {v(vXO+4*tt,4)}, v{vL16}, {WSR}, s{sT0} offen offset:{1024*tt}{sc}")
        fstamp(A, 8, 250)
        fstamp(A, 9, 250)
        A(f"s_branch {Lxd}")
        A.label(Lnox)
        for x in house(): A(x)
        A.label(Lxd)
        stamp(A, 6)
        fstamp_collect(A, 11, 250)
        stamp_flush(A)
        A(f"s_add_u32 s{sS}, s{sS}, 1")
        if mode == "loc": A(f"buffer_load_dword v{vT}, v{vMkO}, {WSR}, s{sMk} offen sc1")
        A("s_waitcnt vmcnt(0)")
        A(f"buffer_store_dword v{vT+3}, v{vFlagO}, {WSR}, s{sXflag} offen{sc}")
        if mode == "loc": A(f"v_cmp_gt_u32 vcc, s{sS}, v{vT}")
        A(f"v_readfirstlane_b32 s{sT0}, v{vT+4}")
        A(f"s_cmp_eq_u32 s{sT0}, {2 if mode == 'loc' and P['near'] else 99}")
        A(f"s_cselect_b32 s{sT0}, 8192, 0")
        A(f"s_add_u32 s{sPartRd}, s{sPartRd}, s{sT0}")
        A(f"s_cmp_lt_i32 s{sS}, 0")
        A(f"s_cbranch_scc1 {Lpro}")
        A(f"s_cmp_eq_u32 s{sS}, {P['nseg']}")
        A("s_cbranch_scc1 L_s1_done")
        A(f"s_cmp_eq_u32 s{sS}, 0")
        A(f"s_cbranch_scc1 {Lh1}")
        if P.get("diag"):
            for st, ix in ((2, 9), (12, 10), (32, 11)):
                Ld = A.newlabel("dg")
                A(f"s_cmp_lg_u32 s{sS}, {st}")
                A(f"s_cbranch_scc1 {Ld}")
                A("s_mov_b64 s[84:85], vcc")
                dstamp(A, ix)
                A("s_mov_b64 vcc, s[84:85]")
                A.label(Ld)
        if mode != "loc": A("s_barrier")
        if mode == "loc":
            def miss(r):
                A(f"v_cmp_gt_u32 vcc, s{sS}, v{r}")
                if P["s3_miss"] == 0: return "s_cbranch_vccz"
                A(f"s_and_b32 s{sT0}, vcc_lo, 0x3ff")
                A(f"s_bcnt1_i32_b32 s{sT0}, s{sT0}")
                A(f"s_cmp_gt_u32 s{sT0}, {P['s3_miss']}")
                return "s_cbranch_scc0"
            Lg = A.newlabel("gate")
            A(f"s_cbranch_vccz {Lg}")
            A(f"s_cmp_lg_u32 s{sW}, 0")
            A(f"s_cbranch_scc1 {Lg}")
            dense_poll(A, [vT + i for i in range(P["dp"])], lambda r: A(f"buffer_load_dword v{r}, v{vMkO}, {WSR}, s{sMk} offen sc1"), miss, 13)
            A.label(Lg)
            A("s_barrier")
        if P["s3_slp"] and mode == "loc": A(f"s_sleep {P['s3_slp']}")
        fstamp(A, 10, 250)
        A.label(Ls3)
        stamp(A, 0)
        fstamp(A, 0, 250)
        for i in range(2):
            A(f"buffer_load_dwordx4 {v(vPt+4*i,4)}, v{vL16}, {WSR}, s{sPartRd} offen offset:{1024*i} sc1")
        A("s_waitcnt vmcnt(1)")
        A(f"v_mfma_f32_16x16x32_bf16 {v(vT,4)}, {v(vSel,4)}, {v(vPt,4)}, 0")
        A("s_waitcnt vmcnt(0)")
        A(f"v_mfma_f32_16x16x32_bf16 {v(vT,4)}, {v(vSel,4)}, {v(vPt+4,4)}, {v(vT,4)}")
        A.nop(8)
        A(f"v_cmp_u_f32 vcc, v{vT}, v{vT+1}")
        A(f"v_cvt_pk_bf16_f32 v{vT+4}, v{vT}, v{vT+1}")
        A(f"s_cbranch_vccnz {Lslow}")
        A.label(Lcont)
        A(f"buffer_store_dword v{vT+4}, v{vMemSt}, {WSR}, s{sMem0} offen{sc}")
        stamp(A, 1)
        fstamp(A, 1, 250)
        if P.get("x_ack") == 2: A("s_waitcnt vmcnt(0)")
        if P.get("memdbg"):
            A(f"s_mul_i32 s{sT0}, s{sS}, 10240")
            A(f"s_add_u32 s{sT0}, s{sT0}, {MEMDBG}")
            A(f"buffer_store_dword v{vT+4}, v{vMemSt}, {WSR}, s{sT0} offen")
        if P["h1_slp"]: A(f"s_sleep {P['h1_slp']}")
        A.label(Lh1)
        Lretry, Lhok = f"L_s1_{mode}_h1retry", f"L_s1_{mode}_h1ok"
        def h1ld(b):
            for i in range(3):
                A(f"buffer_load_dwordx4 {v(b+4*i,4)}, v{vHld}, {WSR}, s{(sMem0, sMem1, sMem2)[i]} offen sc1")
        def h1chk(b, later):
            A(f"s_waitcnt vmcnt({2+later})")
            A(f"ds_write_b128 v{vHw}, {v(b,4)}")
            A(f"v_max3_u32 v{vMx}, v{b}, v{b+1}, v{b+2}")
            A(f"s_waitcnt vmcnt({1+later})")
            A(f"ds_write_b128 v{vHw}, {v(b+4,4)} offset:4096")
            A(f"v_max3_u32 v{vMx}, v{b+3}, v{b+4}, v{vMx}")
            A(f"v_max3_u32 v{vMx}, v{b+5}, v{b+6}, v{vMx}")
            A(f"s_waitcnt vmcnt({later})")
            A(f"ds_write_b128 v{vHw}, {v(b+8,4)} offset:8192")
            A(f"v_max3_u32 v{vMx}, v{b+7}, v{b+8}, v{vMx}")
            A(f"v_max3_u32 v{vMx}, v{b+9}, v{b+10}, v{vMx}")
            A(f"v_max_u32 v{vMx}, v{b+11}, v{vMx}")
            A(f"v_cmp_eq_u32 vcc, -1, v{vMx}")
            A("s_waitcnt lgkmcnt(0)")
        h1ld(vH)
        fstamp(A, 2, 250)
        for r in range(8):
            A(f"v_mov_b32 v{vA+r}, 0")
        if P["h1_two"]:
            A(f"s_sleep {P['h1_two']}")
            h1ld(vH2)
            h1chk(vH, 3)
        else:
            h1chk(vH, 0)
        A(f"s_cbranch_vccnz {Lretry}")
        A.label(Lhok)
        A("s_barrier")
        fstamp(A, 3, 250)
        if P["prof"] in (3, 5): A("s_waitcnt lgkmcnt(0)")
        for j in range(10):
            A(f"ds_read_b128 {v(vM+4*j,4)}, v{vHr} offset:{1024*j}")
        if P["mk1"]: marks()
        for j in range(10):
            A(f"s_waitcnt lgkmcnt({9-j})")
            A(f"v_smfmac_f32_16x16x64_bf16 {v(vA,4)}, {v(vM+4*j,4)}, {a(8*j,8)}, v{vIdx}")
            if P["mk1"] and j == P["mk1"] - 1: mark1()
            A(f"v_smfmac_f32_16x16x64_bf16 {v(vA+4,4)}, {v(vM+4*j,4)}, {a(80+8*j,8)}, v{vIdx}")
        xrd(0, 0); xrd(0, 1); xrd(1, 0); xrd(1, 1)
        if P["mk1"]: A.nop(3)
        else: marks()
        A(f"v_permlane32_swap_b32 v{vA}, v{vA+2}")
        A(f"v_permlane32_swap_b32 v{vA+1}, v{vA+3}")
        A(f"v_permlane32_swap_b32 v{vA+4}, v{vA+6}")
        A(f"v_permlane32_swap_b32 v{vA+5}, v{vA+7}")
        A(f"v_add_f32 v{vA}, v{vA}, v{vA+2}")
        A(f"v_add_f32 v{vA+4}, v{vA+4}, v{vA+6}")
        A(f"v_add_f32 v{vA+1}, v{vA+1}, v{vA+3}")
        A(f"v_add_f32 v{vA+5}, v{vA+5}, v{vA+7}")
        A(f"v_cvt_pk_bf16_f32 v{vT}, v{vA}, v{vA+4}")
        A(f"buffer_store_dword v{vT}, v{vQkvSt}, {WSR}, s{sQkv} offen{sc}")
        A(f"v_cvt_pk_bf16_f32 v{vT+1}, v{vA+1}, v{vA+5}")
        A(f"buffer_store_dword v{vT+1}, v{vQkvSt}, {WSR}, s{sQkv} offen offset:16{sc}")
        stamp(A, 4)
        fstamp(A, 4, 250)
        if P.get("x_ack"): A("s_waitcnt vmcnt(0)")
        A(f"s_branch {Lb}")
        A.label(Lretry)
        stamp(A, 3)
        budget_check(A, 3)
        if P["h1_two"]:
            h1ld(vH)
            h1chk(vH2, 3)
            A(f"s_cbranch_vccz {Lhok}")
            h1ld(vH2)
            h1chk(vH, 3)
            A(f"s_cbranch_vccz {Lhok}")
            A(f"s_branch {Lretry}")
        else:
            A(f"s_branch {Lh1}")
        A.label(Lslow)
        A(f"v_max3_u32 v{vMx}, v{vPt}, v{vPt+1}, v{vPt+2}")
        for i in range(3, 7, 2):
            A(f"v_max3_u32 v{vMx}, v{vPt+i}, v{vPt+i+1}, v{vMx}")
        A(f"v_max_u32 v{vMx}, v{vPt+7}, v{vMx}")
        A(f"v_cmp_eq_u32 vcc, -1, v{vMx}")
        A(f"v_min_u32 v{vT+4}, -2, v{vT+4}")
        A(f"s_cbranch_vccz {Lcont}")
        budget_check(A, 2)
        A(f"s_branch {Ls3}")

    A.label("L_s1_done")
    dstamp(A, 8)
    A(f"s_cmp_lg_u32 s{sW}, 0")
    A("s_cbranch_scc1 L_end")
    A("s_cmp_ge_u32 s2, 80")
    A("s_cbranch_scc1 L_end")
    A(f"s_add_u32 s74, s2, {20 * (P['nseg'] - 4)}")
    A("s_mov_b32 s79, 0")
    A("s_mov_b32 s32, 0")
    A("s_branch L_mixent")

def gen_s2(A):
    sJ = 30
    sQkv, sQkvBase, sPartW, sPartP, sPartBase, sXk, sXv, sXrBase, sXrEnd = 31, 32, 33, 34, 35, 36, 37, 38, 39
    sPx, sPxBase, sXp, sXpF, sXfl, sMark, sMk1, sC, sNeed = 40, 41, 42, 43, 44, 45, 46, 47, 48
    sQkv1, sQkv2 = 49, 50
    sXk1, sXk2, sXv1, sXv2 = 51, 52, 53, 54
    sLo = 56
    sSt0, sSt1, sSt2, sSt3 = 58, 59, 88, 89
    vL16, vKmO, vIdx, vRedW, vRedR, vPartO, vL8, vFlagO, vXflO, vProbe, vRed2R = 1, 2, 3, 4, 5, 6, 7, 8, 9, 10, 11
    vPois = 12
    vT = 16
    vQ, vKM, vVM = 32, 44, 56
    vFl, vMx, vMark = 68, 69, 98
    vOne32, vOne16 = 70, 74
    vS, vSM, vW = 76, 92, 96
    vVA, vF, vDen, vPb = 100, 116, 132, 136
    vVOM2 = (142, 228)
    vRed2W, vXfv = 99, 150
    fin_parts = {}
    vVOX, vXA, vPX = 152, 184, 216
    aKX, aVX = 96, 144
    vXOUT = 24
    RED, RED2 = 98304, 106496
    c = (192 ** -0.5) * math.log2(math.e)
    A.label("L_s2")
    A(f"s_sub_u32 s{sJ}, s{sR}, 18")
    A(f"s_load_dwordx2 s[{sRO}:{sRO+1}], s[0:1], 40")
    A(f"v_lshlrev_b32 v{vL16}, 4, v0")
    A(f"v_lshrrev_b32 v{vT}, 3, v0")
    A(f"v_mul_u32_u24 v{vT}, 1280, v{vT}")
    A(f"v_and_b32 v{vT+1}, 7, v0")
    A(f"v_lshl_add_u32 v{vT}, v{vT+1}, 4, v{vT}")
    A(f"s_lshl_b32 s{sT0}, s{sG}, 2")
    A(f"s_add_u32 s{sT0}, s{sT0}, s{sW}")
    A(f"s_mul_i32 s{sT0}, s{sT0}, {192 * 1280}")
    A(f"s_lshl_b32 s{sT1}, s{sJ}, 7")
    A(f"s_add_u32 s{sT0}, s{sT0}, s{sT1}")
    A(f"s_mul_i32 s{sT2}, s{sW}, 24576")
    A(f"s_mov_b32 m0, s{sT2}")
    A("s_waitcnt lgkmcnt(0)")
    srd(A, sRO, 6144 * 1280)
    for _ in range(P["s2_dly"]): A("s_sleep 32")
    for i in range(24):
        A(f"buffer_load_dwordx4 v{vT}, s[{sRO}:{sRO+3}], s{sT0} offen{' nt' if P['wnt'] else ''} lds")
        if i < 23:
            A("s_add_u32 m0, m0, 1024")
            A(f"s_add_u32 s{sT0}, s{sT0}, {8 * 1280}")
    A(f"v_and_b32 v{vT+1}, 15, v0")
    A(f"v_lshrrev_b32 v{vT+2}, 4, v0")
    A(f"v_cmp_gt_u32 s[{sLo}:{sLo+1}], 8, v{vT+1}")
    A(f"v_mov_b32 v{vT+3}, 0xeeee")
    A(f"v_mov_b32 v{vT+4}, 0x4444")
    A(f"v_cndmask_b32 v{vIdx}, v{vT+3}, v{vT+4}, s[{sLo}:{sLo+1}]")
    for r in range(4): A(f"v_mov_b32 v{vPois+r}, -1")
    A(f"v_lshlrev_b32 v{vL8}, 3, v0")
    A(f"v_mov_b32 v{vT+3}, 0x3f803f80")
    for r in range(4): A(f"v_mov_b32 v{vOne32+r}, v{vT+3}")
    A(f"v_cmp_gt_u32 vcc, 32, v0")
    A("s_nop 1")
    for r in range(2): A(f"v_cndmask_b32 v{vOne16+r}, 0, v{vT+3}, vcc")
    A(f"s_lshl_b32 s{sT0}, s{sW}, 11")
    A(f"s_add_u32 s{sT0}, s{sT0}, {RED}")
    A(f"v_lshrrev_b32 v{vT+3}, 1, v0")
    A(f"v_and_b32 v{vT+3}, 8, v{vT+3}")
    A(f"v_xor_b32 v{vT+3}, v0, v{vT+3}")
    A(f"v_lshl_add_u32 v{vRedW}, v{vT+3}, 4, s{sT0}")
    A(f"v_and_b32 v{vT+3}, 15, v0")
    A(f"v_bfe_u32 v{vT+4}, v0, 3, 2")
    A(f"v_lshl_add_u32 v{vT+3}, v{vT+4}, 4, v{vT+3}")
    A(f"s_lshr_b32 s{sT1}, s{sW}, 1")
    A(f"s_lshl_b32 s{sT1}, s{sT1}, 3")
    A(f"v_xor_b32 v{vT+3}, s{sT1}, v{vT+3}")
    A(f"s_and_b32 s{sT0}, s{sW}, 1")
    A(f"s_lshl_b32 s{sT0}, s{sT0}, 10")
    A(f"s_add_u32 s{sT0}, s{sT0}, {RED}")
    A(f"v_lshl_add_u32 v{vRedR}, v{vT+3}, 4, s{sT0}")
    A(f"s_lshl_b32 s{sT0}, s{sW}, 11")
    A(f"s_add_u32 s{sT0}, s{sT0}, {RED2}")
    A(f"v_add_u32 v{vRed2R}, s{sT0}, v{vL16}")
    A(f"s_lshl_b32 s{sT0}, s{sW}, 13")
    A(f"s_add_u32 s{sT0}, s{sT0}, {RED2}")
    A(f"v_add_u32 v{vRed2W}, s{sT0}, v{vL16}")
    A(f"v_and_b32 v{vT+4}, 7, v0")
    A(f"v_bfe_u32 v{vT+5}, v0, 4, 1")
    A(f"v_lshl_add_u32 v{vT+4}, v{vT+5}, 3, v{vT+4}")
    A(f"v_lshlrev_b32 v{vT+4}, 4, v{vT+4}")
    A(f"v_and_b32 v{vT+5}, 8, v0")
    A(f"v_add_u32 v{vT+4}, v{vT+5}, v{vT+4}")
    A(f"v_lshrrev_b32 v{vT+5}, 5, v0")
    A(f"v_lshl_add_u32 v{vPartO}, v{vT+5}, 13, v{vT+4}")
    A(f"v_mov_b32 v{vT+3}, {OOB}")
    A(f"v_cmp_eq_u32 vcc, 0, v0")
    A("s_nop 1")
    A(f"v_cndmask_b32 v{vFlagO}, v{vT+3}, v0, vcc")
    A(f"v_min_u32 v{vXflO}, 11, v0")
    A(f"v_lshlrev_b32 v{vXflO}, 2, v{vXflO}")
    A(f"v_min_u32 v{vProbe}, 17, v0")
    A(f"v_lshlrev_b32 v{vProbe}, 2, v{vProbe}")
    A(f"s_mul_i32 s{sQkvBase}, s{sG}, 147456")
    A(f"s_mul_i32 s{sT0}, s{sW}, 9216")
    A(f"s_add_u32 s{sQkvBase}, s{sQkvBase}, s{sT0}")
    A(f"s_add_u32 s{sQkvBase}, s{sQkvBase}, {QKVR}")
    A(f"s_lshl_b32 s{sPartBase}, s{sJ}, 14")
    A(f"s_lshl_b32 s{sT0}, s{sW}, 11")
    A(f"s_add_u32 s{sPartBase}, s{sPartBase}, s{sT0}")
    A(f"s_lshl_b32 s{sT0}, s{sG}, 8")
    A(f"s_add_u32 s{sPartBase}, s{sPartBase}, s{sT0}")
    A(f"s_add_u32 s{sPartBase}, s{sPartBase}, {PART}")
    A(f"s_mul_i32 s{sXrBase}, s{sG}, {XR_G}")
    A(f"s_mul_i32 s{sT0}, s{sW}, {XR_HEAD}")
    A(f"s_add_u32 s{sXrBase}, s{sXrBase}, s{sT0}")
    A(f"s_add_u32 s{sXrBase}, s{sXrBase}, {0x5000000 if P.get('x_fixkv') else XR}")
    A(f"s_add_u32 s{sXrEnd}, s{sXrBase}, {XR_G}")
    A(f"s_mul_i32 s{sPxBase}, s{sG}, 49152")
    A(f"s_mul_i32 s{sT0}, s{sW}, 3072")
    A(f"s_add_u32 s{sPxBase}, s{sPxBase}, s{sT0}")
    A(f"s_add_u32 s{sPxBase}, s{sPxBase}, {PXR}")
    A(f"s_lshl_b32 s{sXp}, s{sJ}, 15")
    A(f"s_lshl_b32 s{sT0}, s{sG}, 12")
    A(f"s_add_u32 s{sXp}, s{sXp}, s{sT0}")
    A(f"s_lshl_b32 s{sT0}, s{sW}, 10")
    A(f"s_add_u32 s{sXp}, s{sXp}, s{sT0}")
    A(f"s_add_u32 s{sXp}, s{sXp}, {XPART}")
    A(f"s_lshl_b32 s{sXpF}, s{sJ}, 7")
    A(f"s_lshl_b32 s{sT0}, s{sG}, 4")
    A(f"s_add_u32 s{sXpF}, s{sXpF}, s{sT0}")
    A(f"s_lshl_b32 s{sT0}, s{sW}, 2")
    A(f"s_add_u32 s{sXpF}, s{sXpF}, s{sT0}")
    A(f"s_add_u32 s{sXpF}, s{sXpF}, {XPFLAG}")
    A(f"s_lshl_b32 s{sXfl}, s{sG}, 9")
    A(f"s_mul_i32 s{sT0}, s{sW}, 72")
    A(f"s_add_u32 s{sXfl}, s{sXfl}, s{sT0}")
    A(f"s_add_u32 s{sXfl}, s{sXfl}, {XFLAG + 24}")
    A(f"s_lshl_b32 s{sMk1}, s{sG}, 7")
    A(f"s_lshl_b32 s{sT0}, s{sJ}, 2")
    A(f"s_add_u32 s{sMark}, s{sMk1}, s{sT0}")
    A(f"s_add_u32 s{sMark}, s{sMark}, {S2MARK}")
    A(f"s_cmp_eq_u32 s{sW}, 0")
    A(f"s_cselect_b32 s{sMark}, s{sMark}, {OOB}")
    A(f"s_add_u32 s{sMk1}, s{sMk1}, {S1MARK}")
    A(f"s_mov_b32 s{sC}, {f2u(c):#x}")
    A(f"v_bfe_u32 v{vT+3}, v0, 3, 1")
    A(f"v_bfe_u32 v{vT+4}, v0, 2, 1")
    A(f"v_lshl_add_u32 v{vT+3}, v{vT+4}, 4, v{vT+3}")
    A(f"v_lshl_add_u32 v{vT+3}, v{vT+2}, 2, v{vT+3}")
    A(f"v_lshlrev_b32 v{vT+3}, 7, v{vT+3}")
    A(f"v_and_b32 v{vT+4}, 3, v0")
    A(f"v_lshl_add_u32 v{vT+3}, v{vT+4}, 3, v{vT+3}")
    A(f"v_add_u32 v{vT+3}, s{sT2}, v{vT+3}")
    for ks in range(6):
        A(f"s_waitcnt vmcnt({24 - 4 * (ks + 1)})")
        for ct in range(4):
            for hf in range(2):
                A(f"ds_read_b64_tr_b16 a[{24*ct+4*ks+2*hf}:{24*ct+4*ks+2*hf+1}], v{vT+3} offset:{ks*4096+hf*256+ct*32}")
    A("s_waitcnt lgkmcnt(0)")
    ostamp(A, 0, 1)
    def xflag_wait(have_loaded):
        L, Lok = A.newlabel("xfl"), A.newlabel("xflok")
        if have_loaded:
            A(f"v_cmp_gt_u32 vcc, s{sNeed}, v{vFl}")
            A(f"s_cbranch_vccz {Lok}")
        A.label(L)
        A(f"buffer_load_dword v{vFl}, v{vXflO}, {WSR}, s{sXfl} offen sc1")
        budget_check(A, 4)
        A("s_waitcnt vmcnt(0)")
        A(f"v_cmp_gt_u32 vcc, s{sNeed}, v{vFl}")
        A(f"s_cbranch_vccnz {L}")
        A.label(Lok)
    def xload(dst, t, ks, so):
        off = ks * 2048 + t * 1024
        A(f"buffer_load_dwordx4 {a(dst + 4 * (6 * t + ks), 4)}, v{vL16}, {WSR}, s{so[off // 4096]} offen offset:{off % 4096} sc1")
    gen_locality(A, None, None, vT)
    if P["touch"]:
        A(f"s_lshl_b32 s{sT1}, s{sJ}, 2")
        A(f"s_add_u32 s{sT1}, s{sT1}, s{sW}")
        for base, per_g, n in ((XR, XR_G, 15),) * (P['touch'] == 2) + ((QKVR, 147456, 4), (PXR, 49152, 2), (MEMR, 40960, 1)):
            A(f"s_mul_i32 s{sT0}, s{sG}, {per_g}")
            A(f"s_mul_i32 s{sT2}, s{sT1}, {n * 1024}")
            A(f"s_min_u32 s{sT2}, s{sT2}, {per_g - n * 1024}")
            A(f"s_add_u32 s{sT0}, s{sT0}, s{sT2}")
            A(f"s_add_u32 s{sT0}, s{sT0}, {base}")
            for i in range(n):
                if i and i % 4 == 0: A(f"s_add_u32 s{sT0}, s{sT0}, 4096")
                A(f"buffer_load_dwordx4 {v(vQ,4)}, v{vL16}, {WSR}, s{sT0} offen offset:{1024*(i%4)} sc1")
    A(f"s_mov_b32 s{sNeed}, 1")
    xflag_wait(False)
    A(f"s_add_u32 s{sXv}, s{sXrBase}, 24576")
    A(f"s_add_u32 s{sXv1}, s{sXv}, 4096")
    A(f"s_add_u32 s{sXv2}, s{sXv}, 8192")
    for ks in range(6):
        for t in range(2): xload(aVX, t, ks, (sXv, sXv1, sXv2))
    A(f"s_mov_b32 s{sXk}, s{sXrBase}")
    A(f"s_mov_b32 s{sS}, -1")
    for r in (sSt1,): A(f"s_mov_b32 s{r}, {OOB}")
    A(f"v_mov_b32 v{vXfv}, 0")
    A("s_waitcnt vmcnt(0)")

    Lbub, Latt, Lretry, Lnost, Lnox = "L_s2_bub", "L_s2_att", "L_s2_retry", "L_s2_nost", "L_s2_nox"
    for par in range(2):
        voxc = vVOX + 16 * par
        voxn = vVOX + 16 * (1 - par)
        vomc, vomo = vVOM2[par], vVOM2[1 - par]
        vVOM = vomc
        sfx = f"_{par}"
        if par == 0:
            A(f"s_branch {Lbub}_1")
        A.label(f"L_s2_top{sfx}")
        def miss(r):
            A(f"v_cmp_ge_i32 vcc, s{sS}, v{r}")
            if P["h2_miss"] == 0: return "s_cbranch_vccz"
            A(f"s_and_b32 s{sT0}, vcc_lo, 0x3ffff")
            A(f"s_bcnt1_i32_b32 s{sT0}, s{sT0}")
            A(f"s_cmp_gt_u32 s{sT0}, {P['h2_miss']}")
            return "s_cbranch_scc0"
        Lg = A.newlabel("gate")
        A(f"s_cmp_lg_u32 s{sW}, 0")
        A(f"s_cbranch_scc1 {Lg}")
        dense_poll(A, [vT + i for i in range(P["dp"])], lambda r: A(f"buffer_load_dword v{r}, v{vProbe}, {WSR}, s{sMk1} offen sc1"), miss, 5)
        A.label(Lg)
        A("s_barrier")
        A.label(Latt + sfx)
        stamp(A, 0, 252)
        fstamp(A, 0, 252)
        fill = [f"v_mov_b32 v{vVA+r}, 0" for r in range(16)] + [f"s_add_u32 s{sT0}, s{sS}, 1", f"v_mov_b32 v{vMark}, s{sT0}",
                f"v_mov_b32 v{vMx}, 0", f"v_mov_b32 v{vW}, 0xff7fffff", f"v_mov_b32 v{vW+1}, 0xff7fffff"]
        lds_ = [f"buffer_load_dwordx4 {v(base+4*j,4)}, v{vL16}, {WSR}, s{so} offen offset:{1024*j} sc1"
                for base, so in ((vQ, sQkv), (vKM, sQkv1), (vVM, sQkv2)) for j in range(3)]
        NI = P.get("h2_first", 6)
        issued = 0
        for x in lds_[:NI]:
            A(x); issued += 1
            for _ in range(4):
                if fill: A(fill.pop(0))
        for x in fill: A(x)
        def more(n=1):
            nonlocal issued
            for _ in range(n):
                if issued < len(lds_):
                    A(lds_[issued]); issued += 1
        def need(i): A(f"s_waitcnt vmcnt({issued - 1 - i})")
        def vslot():
            nonlocal issued
            if len(vpos) < NVC and NVC > 3:
                e = vcrit[len(vpos)]
                xload(aVX, e[0], e[1], (sXv, sXv1, sXv2))
                vpos[e] = issued; issued += 1
            else: A("s_nop 0")
        NVC = P["nvc"]
        vall = [(t, ks) for ks in range(6) for t in range(2)]
        vcrit = vall[:NVC]
        vpos = {}
        xoq = [f"buffer_store_dwordx4 {v(vXOUT,4)}, v{vL16}, {WSR}, s{sSt1} offen sc1"]
        xo_after = [xoq.pop(0)] if P["xo_pos"] == 1 else []
        def vmore():
            nonlocal issued
            if xoq:
                A(xoq.pop(0)); issued += 1
            elif len(vpos) < NVC:
                e = vcrit[len(vpos)]
                xload(aVX, e[0], e[1], (sXv, sXv1, sXv2))
                vpos[e] = issued; issued += 1
        def chk(r0): return f"v_max3_u32 v{vMx}, v{r0}, v{r0+1}, v{vMx}"
        DPP = "row_ror:8 row_mask:0xf bank_mask:"
        for j in range(3):
            need(j)
            if j == 0: fstamp(A, 1, 252)
            k = 0
            for t in range(2):
                for pr in range(2):
                    acc = vS + 4 * (2 * t + pr)
                    cc = "0" if j == 0 else v(acc, 4)
                    A(f"v_mfma_f32_16x16x32_bf16 {v(acc,4)}, {a(aKX+4*(6*t+2*j+pr),4)}, {v(vQ+4*j,4)}, {cc}")
                    if k < 2: A(chk(vQ + 4 * j + 2 * k))
                    if k == 2: more()
                    k += 1
        more(99)
        smf = [f"v_smfmac_f32_16x16x64_bf16 {v(vVA+4*ct,4)}, {v(vVM+4*j,4)}, {a(24*ct+8*j,8)}, v{vIdx}" for j in range(3) for ct in range(4)]
        chks = [chk(vVM + 2 * i) for i in range(6)]
        vals = [vS + r for r in range(4)] + [vW, vW + 1]
        vm, vt2 = vT, vT + 1
        xa = [f"v_add_f32_dpp v{vS+r}, v{vS+4+r}, v{vS+r} {DPP}0xf" for r in range(4)] + [f"v_add_f32_dpp v{vS+r}, v{vS+8+r}, v{vS+12+r} {DPP}0xc" for r in range(4)]
        def smm(j):
            need(3 + j)
            A(f"v_mfma_f32_16x16x32_bf16 {v(vSM,4)}, {v(vKM+4*j,4)}, {v(vQ+4*j,4)}, {'0' if j == 0 else v(vSM,4)}")
            A(chk(vKM + 4 * j)); A(chk(vKM + 4 * j + 2))
        smm(0); smm(1)
        for x in xa[:4]: A(x)
        smm(2)
        fstamp(A, 2, 252)
        A(f"v_cmp_eq_u32 vcc, -1, v{vMx}")
        for x in xa[4:]: A(x)
        A(f"v_max3_f32 v{vm}, v{vals[0]}, v{vals[1]}, v{vals[2]}")
        A(f"v_permlane32_swap_b32 v{vSM}, v{vSM+1}")
        A(f"v_permlane32_swap_b32 v{vSM+2}, v{vSM+3}")
        need(6)
        fstamp(A, 3, 252)
        A(smf[0])
        A(f"v_add_f32_dpp v{vW}, v{vSM+1}, v{vSM} {DPP}0x3")
        A(f"v_add_f32_dpp v{vW+1}, v{vSM+3}, v{vSM+2} {DPP}0x3")
        A(smf[1])
        A(f"v_max3_f32 v{vm}, v{vals[3]}, v{vals[4]}, v{vm}")
        A(f"v_max_f32 v{vm}, v{vals[5]}, v{vm}")
        A(smf[2])
        A(f"s_cbranch_vccnz {Lretry}{sfx}")
        A(f"v_max_f32_dpp v{vm}, v{vm}, v{vm} {DPP}0xf")
        A(f"v_mov_b32 v{vt2}, v{vm}")
        A(smf[3]); vslot()
        A(f"v_permlane32_swap_b32 v{vm}, v{vt2}")
        A(f"v_max_f32 v{vm}, v{vm}, v{vt2}")
        A(f"v_mov_b32 v{vt2}, v{vm}")
        need(7)
        A(smf[4])
        A(f"v_permlane16_swap_b32 v{vm}, v{vt2}")
        A(f"v_max_f32 v{vm}, v{vm}, v{vt2}")
        A(smf[5])
        A(f"v_mul_f32 v{vm}, s{sC}, v{vm}")
        fm = [f"v_fma_f32 v{x}, v{x}, s{sC}, -v{vm}" for x in vals]
        ex = [f"v_exp_f32 v{x}, v{x}" for x in vals]
        A(fm[0])
        A(smf[6]); A(fm[1]); A(fm[2])
        A(smf[7]); A(fm[3]); need(8)
        A(smf[8]); A(ex[0])
        A(smf[9]); A(ex[1])
        A(smf[10]); A(ex[2])
        A(smf[11]); A(ex[3])
        A(f"v_cvt_pk_bf16_f32 v{vPb}, v{vals[0]}, v{vals[1]}")
        A(f"v_cvt_pk_bf16_f32 v{vPb+1}, v{vals[2]}, v{vals[3]}")
        A(fm[4])
        A(f"v_mov_b32_dpp v{vPb+2}, v{vPb} {DPP}0xf")
        A(f"v_mov_b32_dpp v{vPb+3}, v{vPb+1} {DPP}0xf")
        A(fm[5]); A(ex[4])
        def fin32(ct): A(f"v_mfma_f32_16x16x32_bf16 {v(vF+4*ct,4)}, {v(voxc+4*ct,4)}, {v(vPb,4)}, 0")
        def fin16(ct): A(f"v_mfma_f32_16x16x16_bf16 {v(vF+4*ct,4)}, {v(vVOM+2*ct,2)}, {v(vPb+4,2)}, {v(vF+4*ct,4)}")
        def cvom(ct):
            A(f"v_cvt_pk_bf16_f32 v{vVOM+2*ct}, v{vVA+4*ct}, v{vVA+4*ct+2}")
            A(f"v_cvt_pk_bf16_f32 v{vVOM+2*ct+1}, v{vVA+4*ct+1}, v{vVA+4*ct+3}")
        def slot():
            if xoq or len(vpos) < NVC: vmore()
            else: A("s_nop 0")
        fin32(0); A(ex[5])
        A(f"v_mfma_f32_16x16x32_bf16 {v(vDen,4)}, {v(vOne32,4)}, {v(vPb,4)}, 0")
        cvom(0)
        fin32(2)
        A(f"v_cvt_pk_bf16_f32 v{vPb+4}, v{vals[4]}, v{vals[5]}")
        A(f"v_mov_b32 v{vPb+5}, v{vPb+4}")
        fin32(1); cvom(2)
        fin32(3)
        A(f"v_permlane32_swap_b32 v{vPb+4}, v{vPb+5}")
        cvom(1)
        A(f"v_mfma_f32_16x16x16_bf16 {v(vDen,4)}, {v(vOne16,2)}, {v(vPb+4,2)}, {v(vDen,4)}")
        cvom(3)
        fin16(0); slot()
        fin16(2); slot(); slot()
        fin16(1)
        A(f"v_rcp_f32 v{vT+4}, v{vDen}")
        slot()
        fin16(3)
        fstamp(A, 4, 252)
        fstamp(A, 5, 252)
        A(f"v_mov_b32_dpp v{vT+4}, v{vT+4} {DPP}0xc")
        A(f"v_cmp_u_f32 vcc, v{vF}, v{vF}")
        Lvs, Lvb = A.newlabel("vslow"), A.newlabel("vback")
        for pc in range(2):
            for r in range(4):
                A(f"v_mul_f32 v{vF+4*pc+r}, v{vF+4*pc+r}, v{vT+4}")
            for r in range(4):
                A(f"v_mul_f32_dpp v{vF+4*pc+r}, v{vF+4*(pc+2)+r}, v{vT+4} row_ror:8 row_mask:0xf bank_mask:0xc")
            if pc == 0:
                A(f"s_cbranch_vccnz {Lvs}")
                A.label(Lvb)
            A(f"ds_write_b128 v{vRedW}, {v(vF+4*pc,4)} offset:{1024*pc}")
        xo_late = list(xoq)
        assert len(vpos) == NVC
        mark = f"buffer_store_dword v{vMark}, v{vFlagO}, {WSR}, s{sMark} offen"
        if P["mk_pos"] == 0: A(mark)
        fstamp(A, 6, 252)
        A("s_waitcnt lgkmcnt(0)")
        A("s_barrier")
        fstamp(A, 7, 252)
        if P["prof"] in (3, 5): A("s_waitcnt lgkmcnt(0)")
        for h in range(4):
            A(f"ds_read_b128 {v(vF+4*h,4)}, v{vRedR} offset:{2048*h}")
        if P["mk_pos"] == 1: A(mark)
        A("s_waitcnt lgkmcnt(2)")
        A(f"v_pk_add_f32 {v(vF,2)}, {v(vF,2)}, {v(vF+4,2)}")
        A(f"v_pk_add_f32 {v(vF+2,2)}, {v(vF+2,2)}, {v(vF+6,2)}")
        A("s_waitcnt lgkmcnt(0)")
        A(f"v_pk_add_f32 {v(vF+8,2)}, {v(vF+8,2)}, {v(vF+12,2)}")
        A(f"v_pk_add_f32 {v(vF+10,2)}, {v(vF+10,2)}, {v(vF+14,2)}")
        A(f"v_pk_add_f32 {v(vF,2)}, {v(vF,2)}, {v(vF+8,2)}")
        A(f"v_pk_add_f32 {v(vF+2,2)}, {v(vF+2,2)}, {v(vF+10,2)}")
        A(f"v_cvt_pk_bf16_f32 v{vF}, v{vF}, v{vF+1}")
        A(f"v_cvt_pk_bf16_f32 v{vF+1}, v{vF+2}, v{vF+3}")
        A(f"buffer_store_dwordx2 {v(vF,2)}, v{vPartO}, {WSR}, s{sPartW} offen sc1")
        if P["mk_pos"] == 2: A(mark)
        issued += 2
        for x in xo_after: A(x); issued += 1
        stamp(A, 1, 252)
        fstamp(A, 8, 252)
        A.label(Lbub + sfx)
        sal = [f"s_add_u32 s{sT2}, s{sXk}, 12288",
               f"s_add_u32 s{sXk1}, s{sXk}, {12288 + 4096}",
               f"s_add_u32 s{sXk2}, s{sXk}, {12288 + 8192}",
               f"s_add_u32 s{sXk}, s{sXk}, {XR_SLOT}",
               f"s_cmp_eq_u32 s{sXk}, s{sXrEnd}",
               f"s_cselect_b32 s{sXk}, s{sXrBase}, s{sXk}",
               f"s_and_b32 s{sT0}, s{sS}, 3",
               f"s_mul_i32 s{sPx}, s{sT0}, 12288",
               f"s_add_u32 s{sPx}, s{sPx}, s{sPxBase}",
               f"s_add_u32 s{sT0}, s{sS}, 1",
               f"s_and_b32 s{sT0}, s{sT0}, 3",
               f"s_mul_i32 s{sPartW}, s{sT0}, {PART_SLOT}",
               f"s_add_u32 s{sPartW}, s{sPartW}, s{sPartBase}",
               f"s_mul_i32 s{sQkv}, s{sT0}, 36864",
               f"s_add_u32 s{sQkv}, s{sQkv}, s{sQkvBase}",
               f"s_add_u32 s{sQkv1}, s{sQkv}, 3072",
               f"s_add_u32 s{sQkv2}, s{sQkv}, 6144",
               f"s_cmp_lt_i32 s{sS}, 1",
               f"s_cselect_b32 s{sSt1}, {OOB}, s{sXp}",
               f"s_cselect_b32 s{sT0}, 0, {XP_SEG}",
               f"s_add_u32 s{sXp}, s{sXp}, s{sT0}"]
        fstamp(A, 9, 252)
        def pxload():
            for i in range(3):
                A(f"buffer_load_dwordx4 {v(vPX+4*i,4)}, v{vL16}, {WSR}, s{sPx} offen offset:{1024*i} sc1")
        kq = [("k", t, ks) for ks in range(6) for t in range(2)]
        PP = P["ppos"]
        q = [("v",) + e for e in vall[NVC:]] + kq[:PP] + [("p", i) for i in range(3)] + kq[PP:]
        def nxt(n=1):
            nonlocal issued
            for _ in range(n):
                if not q: return
                e = q.pop(0)
                if e == ("p", 2): vpos["p"] = issued
                if e[0] == "v": vpos[e[1:]] = issued
                issued += 1
                if e[0] == "p":
                    A(f"buffer_load_dwordx4 {v(vPX+4*e[1],4)}, v{vL16}, {WSR}, s{sPx} offen offset:{1024*e[1]} sc1"); continue
                if P.get("x_nokv") and e[0] in "kv" : A(f"buffer_load_dword v{vT+7}, v{vFlagO}, {WSR}, 0 offen"); continue
                if P.get("x_noxout") and e[0] == "s" and e[1] in (1, 2): A(f"buffer_load_dword v{vT+7}, v{vFlagO}, {WSR}, 0 offen"); continue
                if e[0] == "k": xload(aKX, e[1], e[2], (sT2, sXk1, sXk2))
                elif e[0] == "v": xload(aVX, e[1], e[2], (sXv, sXv1, sXv2))
                elif e[1] == 0: A(f"buffer_store_dwordx2 {v(vPois,2)}, v{vPartO}, {WSR}, s{sSt0} offen sc1")
                elif e[1] == 1: A(f"buffer_store_dwordx4 {v(vXOUT,4)}, v{vL16}, {WSR}, s{sSt1} offen {XOF[P.get('x_fl', 0)]}")
                elif e[1] == 2: A(f"buffer_store_dwordx4 {v(vXOUT+4,4)}, v{vL16}, {WSR}, s{sSt2} offen {XOF[P.get('x_fl', 0)]}")
                else: A(f"buffer_store_dword v{vXfv}, v{vFlagO}, {WSR}, s{sSt3} offen sc1")
        xo = lambda i: (vS + 4 * i) if i < 4 else (vF + 4 * (i - 4))
        xr = lambda qt, h: vQ + 16 * qt + 4 * h
        def xrow_mfma(vox, vom):
            return ([f"v_mfma_f32_16x16x32_bf16 {v(xo(2*ct+qt),4)}, {v(vox+4*ct,4)}, {v(vPX+4*qt,4)}, 0" for ct in range(4) for qt in range(2)] +
                    [f"v_mfma_f32_16x16x16_bf16 {v(xo(2*ct+qt),4)}, {v(vom+2*ct,2)}, {v(vPX+8+2*qt,2)}, {v(xo(2*ct+qt),4)}" for ct in range(4) for qt in range(2)])
        xw = [f"ds_write_b128 v{vRed2W}, {v(xo(i),4)} offset:{1024*i}" for i in range(8)]
        xrd = [f"ds_read_b128 {v(xr(qt,h),4)}, v{vRed2R} offset:{8192*h+1024*qt}" for qt in range(2) for h in range(4)]
        def xadd(qt):
            b = xr(qt, 0)
            return ([f"v_add_f32 v{b+r}, v{b+r}, v{b+4+r}" for r in range(4)] + [f"v_add_f32 v{b+8+r}, v{b+8+r}, v{b+12+r}" for r in range(4)] +
                    [f"v_add_f32 v{b+r}, v{b+r}, v{b+8+r}" for r in range(4)] +
                    [f"v_cvt_pk_bf16_f32 v{vXOUT+2*qt+h}, v{b+2*h}, v{b+2*h+1}" for h in range(2)])
        mf = [(x, None) for x in xrow_mfma(voxn, vomo)]
        for ks in range(6):
            for t in range(2):
                for ct in range(4):
                    acc = vXA + 4 * (4 * t + ct)
                    cc = "0" if ks == 0 else v(acc, 4)
                    mf.append((f"v_mfma_f32_16x16x32_bf16 {v(acc,4)}, {a(aVX+4*(6*t+ks),4)}, {a(24*ct+4*ks,4)}, {cc}", (t, ks) if ct == 0 else None))
        ad = xadd(0) + xadd(1)
        sideq = [(17 + 2 * i, xw[i]) for i in range(8)] + [(34, "s_waitcnt lgkmcnt(0)"), (34, "s_barrier")]
        sideq += [(35, x) for x in xrd] + [(44, "s_waitcnt lgkmcnt(0)")] + [(44, x) for x in ad]
        for n, (x, vf) in enumerate(mf):
            A(x)
            room = 2
            nvf = mf[n + 1][1] if n + 1 < len(mf) else None
            if nvf in vpos: room -= 1
            if n % P["ldev"] == 0: nxt(); room -= 1
            while room and sideq and sideq[0][0] <= n:
                A(sideq.pop(0)[1]); room -= 1
            while room and sal:
                A(sal.pop(0)); room -= 1
            if nvf in vpos: need(vpos[nvf])
        for _, x in sideq: A(x)
        assert not sal
        fstamp(A, 10, 252)
        nxt(2)
        A(f"s_add_u32 s{sXv2}, s{sXk}, {24576 + 8192}")
        A(f"s_add_u32 s{sXv1}, s{sXk}, {24576 + 4096}")
        A(f"s_add_u32 s{sXv}, s{sXk}, 24576")
        A.nop(1)
        for ct in range(4):
            for t in range(2):
                for h in range(2):
                    src = vXA + 4 * (4 * t + ct) + 2 * h
                    A(f"v_cvt_pk_bf16_f32 v{voxn+4*ct+2*t+h}, v{src}, v{src+1}")
            nxt()
        nxt(99)
        stamp(A, 2, 252)
        fstamp(A, 11, 252)
        need(vpos["p"])
        A(f"s_cmp_lt_i32 s{sS}, 0")
        A(f"s_cbranch_scc1 {Lnox}{sfx}")
        Lpx, Lpxr = A.newlabel("px"), A.newlabel("pxr")
        A.label(Lpx)
        A(f"v_max3_u32 v{vMx}, v{vPX}, v{vPX+1}, v{vPX+2}")
        for i in range(3, 11, 2): A(f"v_max3_u32 v{vMx}, v{vPX+i}, v{vPX+i+1}, v{vMx}")
        A(f"v_max_u32 v{vMx}, v{vPX+11}, v{vMx}")
        A(f"v_cmp_eq_u32 vcc, -1, v{vMx}")
        A(f"s_cbranch_vccnz {Lpxr}")
        stamp(A, 3, 252)
        fstamp(A, 12, 252)
        fin_parts[par] = (xrow_mfma(voxc, vomc), xrow_mfma(voxn, vomo), xw, xrd, ad, smf, pxload, vomo)
        A.label(Lnox + sfx)
        stamp(A, 4, 252)
        if not P.get("x_split"): fstamp(A, 13, 252)
        fstamp_collect(A, 14, 252)
        stamp_flush(A, 252, 253)
        A(f"s_add_u32 s{sS}, s{sS}, 1")
        A(f"s_cmp_lg_u32 s{sS}, {P['nseg'] - 1}")
        A(f"s_cbranch_scc1 L_s2_top_{1-par}")
        A("s_branch L_s2_fin")
        A.label(Lvs)
        A(f"v_mov_b32 v{vMx}, 0")
        for x in chks: A(x)
        A(f"v_cmp_eq_u32 vcc, -1, v{vMx}")
        A(f"s_cbranch_vccz {Lvb}")
        A.label(Lretry + sfx)
        budget_check(A, 6)
        A(f"s_branch {Latt}{sfx}")
        A.label(Lpxr)
        budget_check(A, 7)
        pxload()
        A("s_waitcnt vmcnt(0)")
        A(f"s_branch {Lpx}")
    A.label("L_s2_fin")
    xmA, xmB, xw, xrd, ad, smf, pxload, vomL = fin_parts[(P["nseg"] - 2) & 1]
    def xout():
        A(f"buffer_store_dwordx4 {v(vXOUT,4)}, v{vL16}, {WSR}, s{sSt1} offen sc1")
        A(f"s_add_u32 s{sSt1}, s{sSt1}, {XP_SEG}")
    def flag(val):
        A(f"v_mov_b32 v{vXfv}, {val}")
        A(f"buffer_store_dword v{vXfv}, v{vFlagO}, {WSR}, s{sXpF} offen sc1")
    def xrows(xm):
        for x in xm: A(x)
        A("s_barrier")
        for x in xw: A(x)
        A("s_waitcnt lgkmcnt(0)")
        A("s_barrier")
        for x in xrd: A(x)
        A("s_waitcnt lgkmcnt(0)")
        for x in ad: A(x)
        xout()
    xout()
    flag(P["nseg"] - 3)
    xrows(xmA)
    A(f"s_and_b32 s{sT0}, s{sS}, 3")
    A(f"s_mul_i32 s{sPx}, s{sT0}, 12288")
    A(f"s_add_u32 s{sPx}, s{sPx}, s{sPxBase}")
    def spin(load, base, code):
        L = A.newlabel("sp")
        A.label(L)
        load()
        budget_check(A, code)
        A("s_waitcnt vmcnt(0)")
        A(f"v_max3_u32 v{vMx}, v{base}, v{base+1}, v{base+2}")
        for i in range(3, 11, 2): A(f"v_max3_u32 v{vMx}, v{base+i}, v{base+i+1}, v{vMx}")
        A(f"v_max_u32 v{vMx}, v{base+11}, v{vMx}")
        A(f"v_cmp_eq_u32 vcc, -1, v{vMx}")
        A(f"s_cbranch_vccnz {L}")
    def vmload():
        for j in range(3):
            A(f"buffer_load_dwordx4 {v(vVM+4*j,4)}, v{vL16}, {WSR}, s{sQkv2} offen offset:{1024*j} sc1")
    for r in range(16): A(f"v_mov_b32 v{vVA+r}, 0")
    spin(vmload, vVM, 6)
    flag(P["nseg"] - 1)
    for x in smf: A(x)
    A.nop(8)
    for ct in range(4):
        A(f"v_cvt_pk_bf16_f32 v{vomL+2*ct}, v{vVA+4*ct}, v{vVA+4*ct+2}")
        A(f"v_cvt_pk_bf16_f32 v{vomL+2*ct+1}, v{vVA+4*ct+1}, v{vVA+4*ct+3}")
    spin(pxload, vPX, 7)
    xrows(xmB)
    A("s_waitcnt vmcnt(0)")
    flag(P["nseg"])
    ostamp(A, 0, 2)
    A("s_branch L_end")

def gen_xs(A):
    sHH = 30
    sQkv, sQkvBase, sXq, sXrBase, sXrEnd, sPx, sPxP, sPxBase, sXfl, sC, sNeed = 31, 32, 33, 34, 35, 36, 37, 38, 39, 40, 41
    sXa = 42
    sMask = 48
    sPf, sMk1, sQT = 64, 65, 66
    vPf = 140
    vL16, vKmO, vL8, vXflO, vNeg, vProbe = 1, 2, 3, 4, 5, 6
    vPois = 8
    vT = 12
    vFl, vMx = 20, 21
    vQ, vKX, vKM = 24, 48, 96
    vS = 120
    vPb = 132
    c = (192 ** -0.5) * math.log2(math.e)
    A.label("L_xs")
    A("s_setprio 3")
    A(f"s_sub_u32 s{sHH}, s{sR}, 28")
    A(f"s_lshl_b32 s{sHH}, s{sHH}, 1")
    A(f"s_lshr_b32 s{sT0}, s{sW}, 1")
    A(f"s_add_u32 s{sHH}, s{sHH}, s{sT0}")
    A(f"s_and_b32 s{sQT}, s{sW}, 1")
    A(f"v_lshlrev_b32 v{vL16}, 4, v0")
    A(f"v_lshlrev_b32 v{vL8}, 3, v0")
    A(f"v_and_b32 v{vKmO}, 0x37, v0")
    A(f"v_lshlrev_b32 v{vKmO}, 4, v{vKmO}")
    A(f"v_min_u32 v{vXflO}, 11, v0")
    A(f"v_lshlrev_b32 v{vXflO}, 2, v{vXflO}")
    A(f"v_min_u32 v{vProbe}, 17, v0")
    A(f"v_lshlrev_b32 v{vProbe}, 2, v{vProbe}")
    A(f"s_lshl_b32 s{sMk1}, s{sG}, 7")
    A(f"s_add_u32 s{sMk1}, s{sMk1}, {S1MARK}")
    for r in range(4): A(f"v_mov_b32 v{vPois+r}, -1")
    A(f"v_mov_b32 v{vNeg}, {f2u(-1e9 * 192 ** 0.5):#x}")
    A(f"v_and_b32 v{vT}, 15, v0")
    A(f"s_lshl_b32 s{sT0}, s{sQT}, 4")
    A(f"v_add_u32 v{vT}, s{sT0}, v{vT}")
    A(f"v_lshrrev_b32 v{vT+1}, 4, v0")
    A(f"v_lshlrev_b32 v{vT+1}, 2, v{vT+1}")
    for t in range(2):
        for r in range(4):
            A(f"v_add_u32 v{vT+2}, {16*t+r}, v{vT+1}")
            A(f"v_cmp_le_u32 s[{sMask+2*(4*t+r)}:{sMask+2*(4*t+r)+1}], v{vT+2}, v{vT}")
    A(f"s_mul_i32 s{sQkvBase}, s{sG}, 147456")
    A(f"s_mul_i32 s{sT0}, s{sHH}, 9216")
    A(f"s_add_u32 s{sQkvBase}, s{sQkvBase}, s{sT0}")
    A(f"s_add_u32 s{sQkvBase}, s{sQkvBase}, {QKVR + 3072}")
    A(f"s_mul_i32 s{sXrBase}, s{sG}, {XR_G}")
    A(f"s_mul_i32 s{sT0}, s{sHH}, {XR_HEAD}")
    A(f"s_add_u32 s{sXrBase}, s{sXrBase}, s{sT0}")
    A(f"s_add_u32 s{sXrBase}, s{sXrBase}, {XR}")
    A(f"s_add_u32 s{sXrEnd}, s{sXrBase}, {XR_G}")
    A(f"s_mov_b32 s{sXq}, s{sXrBase}")
    A(f"s_mul_i32 s{sPxBase}, s{sG}, 49152")
    A(f"s_mul_i32 s{sT0}, s{sHH}, 3072")
    A(f"s_add_u32 s{sPxBase}, s{sPxBase}, s{sT0}")
    A(f"s_lshl_b32 s{sT0}, s{sQT}, 10")
    A(f"s_add_u32 s{sPxBase}, s{sPxBase}, s{sT0}")
    A(f"s_mul_i32 s{sT0}, s{sQT}, 1016")
    A(f"s_sub_u32 s{sT0}, 2048, s{sT0}")
    A(f"v_add_u32 v{vL8}, s{sT0}, v{vL16}")
    A(f"s_add_u32 s{sPxBase}, s{sPxBase}, {PXR}")
    A(f"s_lshl_b32 s{sXfl}, s{sG}, 9")
    A(f"s_mul_i32 s{sT0}, s{sHH}, 72")
    A(f"s_add_u32 s{sXfl}, s{sXfl}, s{sT0}")
    A(f"s_add_u32 s{sXfl}, s{sXfl}, {XFLAG}")
    A(f"s_mov_b32 s{sC}, {f2u(c):#x}")
    A(f"s_mov_b32 s{sS}, 0")
    A(f"s_lshl_b32 s{sPf}, s{sHH}, 1")
    A(f"s_add_u32 s{sPf}, s{sPf}, s{sQT}")
    A(f"s_lshl_b32 s{sPf}, s{sPf}, 3")
    A(f"s_add_u32 s{sPf}, s{sPf}, s{sG}")
    A(f"s_lshl_b32 s{sPf}, s{sPf}, 12")
    A(f"s_add_u32 s{sPf}, s{sPf}, 81920")
    for k in range(4):
        A(f"buffer_load_dwordx4 {v(vPf,4)}, v{vL16}, s[{sX}:{sX+3}], s{sPf} offen offset:{1024*k}")
    A(f"s_lshl_b32 s{sPf}, s{sHH}, 1")
    A(f"s_add_u32 s{sPf}, s{sPf}, s{sQT}")
    A(f"s_mul_i32 s{sPf}, s{sPf}, 5120")
    gen_locality(A, "L_xs_loc", "L_xs_glb", vT)
    for mode in ("loc", "glb"):
        sc = "" if mode == "loc" else " sc1"
        A.label(f"L_xs_{mode}")
        Lf, Lk = A.newlabel("xsf"), A.newlabel("xsk")
        fstamp(A, 5, 250)
        A(f"s_add_u32 s{sNeed}, s{sS}, 1")
        A.label(Lf)
        A(f"buffer_load_dword v{vFl}, v{vXflO}, {WSR}, s{sXfl} offen sc1")
        budget_check(A, 8)
        A("s_waitcnt vmcnt(0)")
        A(f"v_cmp_gt_u32 vcc, s{sNeed}, v{vFl}")
        A(f"s_cbranch_vccnz {Lf}")
        fstamp(A, 6, 250)
        A(f"s_lshl_b32 s{sT0}, s{sQT}, 10")
        A(f"s_add_u32 s{sXa}, s{sXq}, s{sT0}")
        A(f"s_add_u32 s{sXa+1}, s{sXa}, 4096")
        A(f"s_add_u32 s{sXa+2}, s{sXa}, 8192")
        A(f"s_add_u32 s{sXa+3}, s{sXq}, 12288")
        A(f"s_add_u32 s{sXa+4}, s{sXq}, {12288+4096}")
        A(f"s_add_u32 s{sXa+5}, s{sXq}, {12288+8192}")
        for ks in range(6):
            A(f"buffer_load_dwordx4 {v(vQ+4*ks,4)}, v{vL16}, {WSR}, s{sXa+ks//2} offen offset:{2048*(ks&1)} sc1")
            for t in range(2):
                A(f"buffer_load_dwordx4 {v(vKX+4*(6*t+ks),4)}, v{vL16}, {WSR}, s{sXa+3+ks//2} offen offset:{2048*(ks&1)+1024*t} sc1")
        A(f"s_add_u32 s{sXq}, s{sXq}, {XR_SLOT}")
        A(f"s_cmp_eq_u32 s{sXq}, s{sXrEnd}")
        A(f"s_cselect_b32 s{sXq}, s{sXrBase}, s{sXq}")
        A(f"s_and_b32 s{sT0}, s{sS}, 3")
        A(f"s_mul_i32 s{sQkv}, s{sT0}, 36864")
        A(f"s_add_u32 s{sQkv}, s{sQkv}, s{sQkvBase}")
        A(f"s_mul_i32 s{sPx}, s{sT0}, 12288")
        A(f"s_add_u32 s{sPx}, s{sPx}, s{sPxBase}")
        A(f"s_add_u32 s{sT0}, s{sS}, 2")
        A(f"s_and_b32 s{sT0}, s{sT0}, 3")
        A(f"s_mul_i32 s{sPxP}, s{sT0}, 12288")
        A(f"s_add_u32 s{sPxP}, s{sPxP}, s{sPxBase}")
        for ks in range(6):
            A(f"s_waitcnt vmcnt({15 - 3 * ks})")
            for t in range(2):
                cc = "0" if ks == 0 else v(vS + 4 * t, 4)
                A(f"v_mfma_f32_16x16x32_bf16 {v(vS+4*t,4)}, {v(vKX+4*(6*t+ks),4)}, {v(vQ+4*ks,4)}, {cc}")
        fstamp(A, 7, 250)
        A.label(Lk)
        A(f"buffer_load_dword v{vMx}, v{vProbe}, {WSR}, s{sMk1} offen sc1")
        budget_check(A, 9)
        A("s_waitcnt vmcnt(0)")
        A(f"v_cmp_ge_i32 vcc, s{sS}, v{vMx}")
        A(f"s_cbranch_vccnz {Lk}")
        for ks in range(6):
            A(f"buffer_load_dwordx4 {v(vKM+4*ks,4)}, v{vKmO}, {WSR}, s{sQkv} offen offset:{1024*(ks>>1)+128*(ks&1)} sc1")
        A("s_waitcnt vmcnt(0)")
        A(f"v_max3_u32 v{vMx}, v{vKM}, v{vKM+1}, v{vKM+2}")
        for i in range(3, 23, 2): A(f"v_max3_u32 v{vMx}, v{vKM+i}, v{vKM+i+1}, v{vMx}")
        A(f"v_max_u32 v{vMx}, v{vKM+23}, v{vMx}")
        A(f"v_cmp_eq_u32 vcc, -1, v{vMx}")
        A(f"s_cbranch_vccnz {Lk}")
        fstamp(A, 8, 250)
        for ks in range(6):
            cc = "0" if ks == 0 else v(vS + 8, 4)
            A(f"v_mfma_f32_16x16x32_bf16 {v(vS+8,4)}, {v(vKM+4*ks,4)}, {v(vQ+4*ks,4)}, {cc}")
        A(f"buffer_store_dwordx4 {v(vPois,4)}, v{vL16}, {WSR}, s{sPxP} offen{sc}")
        A(f"buffer_store_dwordx2 {v(vPois,2)}, v{vL8}, {WSR}, s{sPxP} offen{sc}")
        for i in range(8):
            A(f"v_cndmask_b32 v{vS+i}, v{vNeg}, v{vS+i}, s[{sMask+2*i}:{sMask+2*i+1}]")
        vm, vt2 = vT, vT + 1
        A(f"v_max3_f32 v{vm}, v{vS}, v{vS+1}, v{vS+2}")
        for i in range(3, 11, 2): A(f"v_max3_f32 v{vm}, v{vS+i}, v{vS+i+1}, v{vm}")
        A(f"v_max_f32 v{vm}, v{vS+11}, v{vm}")
        for sw in ("32", "16"):
            A(f"v_mov_b32 v{vt2}, v{vm}")
            A("s_nop 1")
            A(f"v_permlane{sw}_swap_b32 v{vm}, v{vt2}")
            A(f"v_max_f32 v{vm}, v{vm}, v{vt2}")
        A(f"v_mul_f32 v{vm}, s{sC}, v{vm}")
        for i in range(12): A(f"v_fma_f32 v{vS+i}, v{vS+i}, s{sC}, -v{vm}")
        for i in range(12): A(f"v_exp_f32 v{vS+i}, v{vS+i}")
        A(f"v_add_f32 v{vT+2}, v{vS+8}, v{vS+9}")
        A(f"v_add_f32 v{vT+3}, v{vS}, v{vS+1}")
        A(f"v_add_f32 v{vT+2}, v{vT+2}, v{vS+10}")
        A(f"v_add_f32 v{vT+2}, v{vT+2}, v{vS+11}")
        for i in range(2, 8): A(f"v_add_f32 v{vT+3}, v{vT+3}, v{vS+i}")
        A(f"v_fma_f32 v{vm}, v{vT+2}, 0.5, v{vT+3}")
        for sw in ("32", "16"):
            A(f"v_mov_b32 v{vt2}, v{vm}")
            A("s_nop 1")
            A(f"v_permlane{sw}_swap_b32 v{vm}, v{vt2}")
            A(f"v_add_f32 v{vm}, v{vm}, v{vt2}")
        A(f"v_rcp_f32 v{vm}, v{vm}")
        A("s_nop 0")
        for i in range(12): A(f"v_mul_f32 v{vS+i}, v{vS+i}, v{vm}")
        for i in range(4): A(f"v_cvt_pk_bf16_f32 v{vPb+i}, v{vS+2*i}, v{vS+2*i+1}")
        for i in range(2): A(f"v_cvt_pk_bf16_f32 v{vPb+4+i}, v{vS+8+i}, v{vS+10+i}")
        A(f"buffer_store_dwordx4 {v(vPb,4)}, v{vL16}, {WSR}, s{sPx} offen{sc}")
        A(f"buffer_store_dwordx2 {v(vPb+4,2)}, v{vL8}, {WSR}, s{sPx} offen{sc}")
        fstamp(A, 9, 250)
        if P["prof"] in (3, 5):
            A("s_waitcnt lgkmcnt(0)")
            for i in range(5, 10): A(f"v_writelane_b32 v250, s{60+2*i}, {i}")
            stamp_flush(A)
        if P["xpf"]:
            A(f"s_add_u32 s{sT0}, s{sS}, {P['xpf']}")
            A(f"s_mul_i32 s{sT0}, s{sT0}, 40960")
            A(f"s_add_u32 s{sT0}, s{sT0}, s{sPf}")
            for i in range(4):
                A(f"buffer_load_dwordx4 {v(vPf,4)}, v{vL16}, s[{sX}:{sX+3}], s{sT0} offen offset:{1024*i}")
            A(f"s_add_u32 s{sT0}, s{sT0}, 4096")
            A(f"buffer_load_dwordx4 {v(vPf,4)}, v{vL16}, s[{sX}:{sX+3}], s{sT0} offen")
        A(f"s_add_u32 s{sS}, s{sS}, 1")
        A(f"s_cmp_lg_u32 s{sS}, {P['nseg']}")
        A(f"s_cbranch_scc1 L_xs_{mode}")
        A("s_branch L_end")

def gen_main(A):
    A(".p2align 8")
    A(f".type {NAME},@function")
    A.label(NAME)
    gen_common_prologue(A)
    A(f"s_cmp_lt_u32 s{sR}, 18")
    A("s_cbranch_scc1 L_s1")
    A(f"s_cmp_lt_u32 s{sR}, 28")
    A("s_cbranch_scc1 L_s2")
    A("s_branch L_init")
    A.label("L_fail")
    A(f"v_mov_b32 v1, s{sT3}")
    A(f"s_lshl_b32 s{sT3}, s{sT3}, 2")
    A(f"s_add_u32 s{sT3}, s{sT3}, {DBG_FAIL}")
    A(f"v_mov_b32 v2, s{sT3}")
    A(f"v_mov_b32 v1, s{sS}")
    A(f"v_add_u32 v1, 1000, v1")
    A(f"buffer_store_dword v1, v2, s[{sDBG}:{sDBG+3}], 0 offen")
    A.label("L_end")
    A("s_endpgm")
    gen_init(A)
    gen_s1(A)
    gen_s2(A)
    gen_xs(A)
    try:
        import gen_bg
        gen_bg.gen_bg(A, sys.modules[__name__])
        A.label("L_code_end")
    except ImportError:
        A.label("L_bg")
        A("s_endpgm")

HEADER = open("gated_mix__memory_aug_recurrent_mem_tr__ssm_conv_h3__prompt.s.ref").read().split("; Override launch")[0]

def kd(name, vgpr, acc, sgpr=96):
    return f""".amdhsa_kernel {name}
  .amdhsa_next_free_vgpr {vgpr}
  .amdhsa_next_free_sgpr {sgpr}
  .amdhsa_accum_offset {acc}
  .amdhsa_group_segment_fixed_size 0
  .amdhsa_kernarg_size 136
  .amdhsa_user_sgpr_count 2
  .amdhsa_user_sgpr_kernarg_segment_ptr 1
  .amdhsa_system_sgpr_workgroup_id_x 1
  .amdhsa_float_denorm_mode_32 3
.end_amdhsa_kernel
"""

def generate(**kw):
    P.update(kw)
    A = Asm()
    A('.amdgcn_target "amdgcn-amd-amdhsa--gfx950"')
    A(".text")
    A(f".globl {NAME}")
    gen_main(A)
    probs = check_hazards(A.lines)
    txt = HEADER
    txt += "; @launch grid=(256,1,1) block=(256,1,1) lds=163840\n"
    txt += A.text()
    txt += '.section .rodata,"a"\n.p2align 6\n' + kd(NAME, 512, 256)
    return txt, probs

if __name__ == "__main__":
    kw = {}
    out = "gated_mix__memory_aug_recurrent_mem_tr__ssm_conv_h3__prompt.s"
    for arg in sys.argv[1:]:
        if "=" in arg:
            k, val = arg.split("="); kw[k] = int(val)
        else:
            out = arg
    txt, probs = generate(**kw)
    open(out, "w").write(txt)
    print("wrote", out, len(txt), "bytes;", len(probs), "hazards")
```

```python
import math
from asmlib import v, a, s

def gen_bg(A, G):
    P, WSR = G.P, G.WSR
    sG, sR, sW, sS, sX = G.sG, G.sR, G.sW, G.sS, G.sX
    sT0, sT1, sT2, sT3 = G.sT0, G.sT1, G.sT2, G.sT3
    OOB = G.OOB
    budget_check, srd, f2u = G.budget_check, G.srd, G.f2u
    sWV, sCU, sLds, sI, sCh, sMaskHi = 30, 31, 32, 33, 34, 35
    sK, sV, sF, sAux = 36, 40, 44, 48
    sPk, sPv, sPsk, sPf, sPd, sPg, sPo = 52, 54, 56, 58, 60, 62, 64
    sD = 66
    sU, sSeg, sJ, sB0, sB1, sUe = 74, 75, 76, 77, 78, 79
    XS = f"s[{sX}:{sX+3}]"
    vL16, vFlagO = 1, 2
    vT = 4
    UP, CP = 4608, 4160
    FOFF = UP
    YOFF = FOFF
    LDSW = FOFF + 8 * CP
    def lo(d, x): A(f"v_lshlrev_b32 v{d}, 16, v{x}")
    def hi(d, x): A(f"v_and_b32 v{d}, s{sMaskHi}, v{x}")

    A.label("L_bg")
    A(f"s_sub_u32 s{sT0}, s{sR}, 30")
    A(f"s_lshl_b32 s{sT0}, s{sT0}, 3")
    A(f"s_add_u32 s{sT0}, s{sT0}, s{sG}")
    A(f"s_lshl_b32 s{sT0}, s{sT0}, 2")
    A(f"s_add_u32 s{sWV}, s{sT0}, s{sW}")
    A(f"s_mul_i32 s{sLds}, s{sW}, {LDSW}")
    A(f"s_load_dwordx4 s[{sPk}:{sPk+3}], s[0:1], 64")
    A(f"s_load_dwordx4 s[{sPsk}:{sPsk+3}], s[0:1], 80")
    A(f"s_load_dwordx4 s[{sPd}:{sPd+3}], s[0:1], 96")
    A(f"s_load_dwordx2 s[{sPo}:{sPo+1}], s[0:1], 112")
    A(f"s_mov_b32 s{sMaskHi}, 0xffff0000")
    A(f"s_mov_b32 s{sS}, 0")
    A(f"v_lshlrev_b32 v{vL16}, 4, v0")
    A(f"v_cmp_eq_u32 vcc, 0, v0")
    A(f"v_mov_b32 v{vT}, {OOB}")
    A("s_nop 0")
    A(f"v_cndmask_b32 v{vFlagO}, v{vT}, v0, vcc")
    A("s_waitcnt lgkmcnt(0)")
    G.gen_locality(A, None, None, vT)
    Lw0 = A.newlabel("bgw")
    A(f"s_lshl_b32 s{sT0}, s{sG}, 9")
    A(f"s_add_u32 s{sT0}, s{sT0}, {G.XFLAG}")
    A(f"v_lshlrev_b32 v{vT+1}, 2, v0")
    A.label(Lw0)
    A("s_sleep 16")
    A(f"buffer_load_dword v{vT}, v{vT+1}, {WSR}, s{sT0} offen sc1")
    budget_check(A, 12)
    A("s_waitcnt vmcnt(0)")
    A(f"v_cmp_eq_u32 vcc, 0, v{vT}")
    A(f"s_cbranch_vccnz {Lw0}")
    Lt, Ltd = A.newlabel("touch"), A.newlabel("touched")
    A(f"s_cmp_eq_u32 s{sR}, 31")
    A(f"s_cbranch_scc1 {Lt}")
    if P["near"]:
        Lnm = A.newlabel("nomeas")
        A(f"s_cmp_lg_u32 s{sW}, 0")
        A(f"s_cbranch_scc1 {Lnm}")
        A(f"s_lshl_b32 s{sT0}, s{sG}, 10")
        A(f"s_add_u32 s{sT0}, s{sT0}, {G.NEARP}")
        A(f"v_mov_b32 v5, s{sT0}")
        A("s_mov_b32 s86, -1")
        A("s_mov_b32 s87, -1")
        for i in range(P.get('nmeas', 14)):
            A("s_memtime s[82:83]")
            A("s_waitcnt lgkmcnt(0)")
            A(f"s_mov_b32 s{sT1}, {(i & 1) * 8192 + (i >> 1) * 128}")
            A(f"buffer_load_dword v6, v5, {WSR}, s{sT1} offen sc1")
            A("s_waitcnt vmcnt(0)")
            A("s_memtime s[84:85]")
            A("s_waitcnt lgkmcnt(0)")
            A("s_sub_u32 s84, s84, s82")
            if i >= 2: A(f"s_min_u32 s{86 + (i & 1)}, s{86 + (i & 1)}, s84")
        A("s_cmp_lt_u32 s87, s86")
        A(f"s_cselect_b32 s{sT1}, 2, 1")
        A(f"v_mov_b32 v6, s{sT1}")
        A(f"s_lshl_b32 s{sT0}, s{sG}, 2")
        A(f"s_add_u32 s{sT0}, s{sT0}, {G.DBG_NEAR}")
        A(f"v_mov_b32 v5, s{sT0}")
        A(f"buffer_store_dword v6, v5, s[{G.sDBG}:{G.sDBG+3}], 0 offen sc1")
        A.label(Lnm)
        A("s_barrier")
    A(f"s_branch {Ltd}")
    A.label(Lt)
    if P["touch"] == 3:
        A(f"s_lshl_b32 s{sT0}, s{sW}, 10")
        A(f"s_mul_i32 s{sT1}, s{sG}, {G.XR_G}")
        A(f"s_add_u32 s{sT0}, s{sT0}, s{sT1}")
        A(f"s_add_u32 s{sT0}, s{sT0}, {G.XR + G.XR_SLOT}")
        A(f"s_mov_b32 s{sI}, {3 * G.XR_SLOT // 4096}")
        Ll = A.newlabel("tl")
        A.label(Ll)
        A(f"buffer_load_dwordx4 {v(vT+4,4)}, v{vL16}, {WSR}, s{sT0} offen sc1")
        A(f"s_add_u32 s{sT0}, s{sT0}, 4096")
        A(f"s_sub_u32 s{sI}, s{sI}, 1")
        A(f"s_cmp_lg_u32 s{sI}, 0")
        A(f"s_cbranch_scc1 {Ll}")
        A("s_waitcnt vmcnt(0)")
    A.label(Ltd)
    for dst, src, size in ((sK, sPk, 2048 * 1280), (sV, sPv, 2048 * 1280), (sAux, sPg, 1280)):
        A(f"s_mov_b64 s[{dst}:{dst+1}], s[{src}:{src+1}]")
        srd(A, dst, size)

    if P.get("nobg"):
        A("s_endpgm")
    vGW, vXr, vAcc, vXo, vGo = 24, 64, 84, 85, 86
    A(f"v_and_b32 v{vT}, 15, v0")
    A(f"v_lshlrev_b32 v{vT}, 4, v{vT}")
    for i in range(5):
        A(f"buffer_load_dwordx4 {v(vXr+4*i,4)}, v{vT}, s[{sAux}:{sAux+3}], 0 offen offset:{256*i}")
    A(f"v_lshrrev_b32 v{vT+1}, 4, v0")
    A(f"v_mul_u32_u24 v{vXo}, 1280, v{vT+1}")
    A(f"v_add_u32 v{vXo}, v{vXo}, v{vT}")
    A(f"v_lshlrev_b32 v{vT+1}, 2, v{vT+1}")
    A(f"v_cmp_eq_u32 vcc, 0, v{vT}")
    A(f"v_mov_b32 v{vT+2}, {OOB}")
    A("s_nop 0")
    A(f"v_cndmask_b32 v{vGo}, v{vT+2}, v{vT+1}, vcc")
    A(f"s_mul_i32 s{sB0}, s{sWV}, 40960")
    A(f"s_lshl_b32 s{sB1}, s{sWV}, 7")
    A(f"s_add_u32 s{sB1}, s{sB1}, {G.GV}")
    A("s_waitcnt vmcnt(0)")
    for i in range(20):
        lo(vGW + 2 * i, vXr + i); hi(vGW + 2 * i + 1, vXr + i)
    A(f"s_mov_b32 s{sI}, 8")
    Lg = A.newlabel("gate")
    A.label(Lg)
    for i in range(5):
        A(f"buffer_load_dwordx4 {v(vXr+4*i,4)}, v{vXo}, {XS}, s{sB0} offen offset:{256*i}")
    A(f"v_mov_b32 v{vAcc}, 0")
    for i in range(20):
        if i % 4 == 0: A(f"s_waitcnt vmcnt({4 - i // 4})")
        lo(vT, vXr + i); hi(vT + 1, vXr + i)
        A(f"v_pk_mul_f32 {v(vT,2)}, {v(vT,2)}, {v(vGW+2*i,2)}")
        A(f"v_cvt_pk_bf16_f32 v{vT+2}, v{vT}, v{vT+1}")
        lo(vT, vT + 2); hi(vT + 1, vT + 2)
        A(f"v_add_f32 v{vAcc}, v{vAcc}, v{vT}")
        A(f"v_add_f32 v{vAcc}, v{vAcc}, v{vT+1}")
    for sh in (8, 4, 2, 1):
        A("s_nop 1")
        A(f"v_add_f32_dpp v{vAcc}, v{vAcc}, v{vAcc} row_ror:{sh} row_mask:0xf bank_mask:0xf")
    A(f"v_cvt_pk_bf16_f32 v{vAcc}, v{vAcc}, v{vAcc}")
    lo(vAcc, vAcc)
    A(f"v_mul_f32 v{vAcc}, {f2u(-math.log2(math.e)):#x}, v{vAcc}")
    A(f"v_exp_f32 v{vAcc}, v{vAcc}")
    A("s_nop 0")
    A(f"v_add_f32 v{vAcc}, 1.0, v{vAcc}")
    A(f"v_rcp_f32 v{vAcc}, v{vAcc}")
    A("s_nop 0")
    A(f"v_cvt_pk_bf16_f32 v{vAcc}, v{vAcc}, v{vAcc}")
    lo(vAcc, vAcc)
    A(f"buffer_store_dword v{vAcc}, v{vGo}, {WSR}, s{sB1} offen sc1")
    A(f"s_add_u32 s{sB0}, s{sB0}, 5120")
    A(f"s_add_u32 s{sB1}, s{sB1}, 16")
    A(f"s_sub_u32 s{sI}, s{sI}, 1")
    A(f"s_cmp_lg_u32 s{sI}, 0")
    A(f"s_cbranch_scc1 {Lg}")
    G.ostamp(A, 0, 1)
    def rnd(pair):
        A(f"v_cvt_pk_bf16_f32 v{vT+2}, v{pair}, v{pair+1}")
        lo(pair, vT + 2); hi(pair + 1, vT + 2)
    vL4, vSt, vLw, vLr = 20, 21, 22, 23
    vSK = 24
    vKH = 32
    vKR, vVR = 40, 76
    vKV = 108
    vO = 112
    vW = 144
    A(f"v_lshlrev_b32 v{vL4}, 2, v0")
    A(f"v_lshrrev_b32 v{vSt}, 2, v0")
    A(f"v_lshlrev_b32 v{vSt}, 12, v{vSt}")
    A(f"v_and_b32 v{vT}, 3, v0")
    A(f"v_lshl_add_u32 v{vSt}, v{vT}, 4, v{vSt}")
    A(f"v_lshlrev_b32 v{vLw}, 7, v0")
    A(f"v_add_u32 v{vLw}, s{sLds}, v{vLw}")
    A(f"v_add_u32 v{vLr}, s{sLds}, v{vL16}")
    A(f"s_mov_b64 s[{sAux}:{sAux+1}], s[{sPsk}:{sPsk+1}]")
    srd(A, sAux, 5120)
    A(f"s_mul_i32 s{sB0}, s{sWV}, 40960")
    A(f"s_lshl_b32 s{sB1}, s{sWV}, 6")
    A(f"s_sub_u32 s{sB1}, {G.KVT + 2016 * 2}, s{sB1}")
    A(f"s_mov_b32 s{sCh}, 0")
    A(f"s_sub_u32 s{sT0}, s{sB0}, {3 * 1280}")
    A(f"v_add_u32 v{vT+1}, s{sT0}, v{vL4}")
    def kload(i):
        if i < 3: A(f"buffer_load_dword v{vKR+i}, v{vT+1}, s[{sK}:{sK+3}], 0 offen offset:{1280*i}")
        else:
            A(f"s_add_u32 s{sT0}, s{sB0}, {1280 * (i - 3)}")
            A(f"buffer_load_dword v{vKR+i}, v{vL4}, s[{sK}:{sK+3}], s{sT0} offen")
            A(f"buffer_load_dword v{vVR+i-3}, v{vL4}, s[{sV}:{sV+3}], s{sT0} offen")
    A(f"s_mov_b32 s{sI}, 5")
    La = A.newlabel("kv")
    A.label(La)
    A(f"buffer_load_dwordx4 {v(vW,4)}, v{vL16}, s[{sAux}:{sAux+3}], s{sCh} offen")
    for i in range(19): kload(i)
    A("s_waitcnt vmcnt(32)")
    for c in range(2):
        for h in range(2):
            lo(vSK + 2 * (2 * h) + c, vW + 2 * c + h); hi(vSK + 2 * (2 * h + 1) + c, vW + 2 * c + h)
    for i in range(3):
        lo(vKH + 2 * (i + 1), vKR + i); hi(vKH + 2 * (i + 1) + 1, vKR + i)
    for i in range(32):
        if i < 16:
            kload(19 + i)
            A("s_waitcnt vmcnt(32)")
        else:
            A(f"s_waitcnt vmcnt({2 * (31 - i)})")
        kv = vKV + 2 * (i & 1)
        lo(vKH + 2 * (i & 3), vKR + 3 + i); hi(vKH + 2 * (i & 3) + 1, vKR + 3 + i)
        lo(kv, vVR + i); hi(kv + 1, vVR + i)
        acc, trm = vT + 4, vT + 6
        for m in (3, 2, 1, 0):
            d = acc if m == 3 else trm
            A(f"v_pk_mul_f32 {v(d,2)}, {v(vKH+2*((i-m)&3),2)}, {v(vSK+2*m,2)}")
            rnd(d)
            if m != 3:
                A(f"v_pk_add_f32 {v(acc,2)}, {v(acc,2)}, {v(trm,2)}")
                rnd(acc)
        A(f"v_pk_mul_f32 {v(kv,2)}, {v(acc,2)}, {v(kv,2)}")
        if i & 1:
            for c in range(2):
                A(f"v_cvt_pk_bf16_f32 v{vO+16*c+15-(i>>1)}, v{vKV+2+c}, v{vKV+c}")
    for c in range(2):
        for q in range(4):
            A(f"ds_write_b128 v{vLw}, {v(vO+16*c+4*q,4)} offset:{64*c+16*q}")
    A("s_waitcnt lgkmcnt(0)")
    for m in range(8):
        A(f"ds_read_b128 {v(vO+4*m,4)}, v{vLr} offset:{1024*m}")
    for m in range(8):
        A(f"s_waitcnt lgkmcnt({7-m})")
        A(f"buffer_store_dwordx4 {v(vO+4*m,4)}, v{vSt}, {WSR}, s{sB1} offen sc1")
        A(f"s_add_u32 s{sB1}, s{sB1}, 65536")
    A(f"s_add_u32 s{sB0}, s{sB0}, 256")
    A(f"v_add_u32 v{vT+1}, 256, v{vT+1}")
    A(f"s_add_u32 s{sCh}, s{sCh}, 1024")
    A(f"s_sub_u32 s{sI}, s{sI}, 1")
    A(f"s_cmp_lg_u32 s{sI}, 0")
    A(f"s_cbranch_scc1 {La}")
    A(f"s_lshl_b32 s{sT0}, s{sWV}, 2")
    A(f"s_add_u32 s{sT0}, s{sT0}, {G.GFLAG}")
    A(f"v_mov_b32 v{vT}, 1")
    A("s_waitcnt vmcnt(0)")
    A(f"buffer_store_dword v{vT}, v{vFlagO}, {WSR}, s{sT0} offen sc1")
    G.ostamp(A, 0, 5)
    vAo, vBo, vEo, vCo, vCw, vCo2, vYw, vYr = 20, 21, 22, 23, 24, 25, 26, 27
    vD, vAcc8, vBf = 28, 72, 120
    vE, vD1, vE1 = 144, 152, 160
    vUw, vDv, vFo, vU = 68, 69, 3, 104
    vFr = 120
    A(f"v_and_b32 v{vT}, 15, v0")
    A(f"v_lshrrev_b32 v{vT+1}, 4, v0")
    A(f"v_add_u32 v{vT+2}, 1, v{vT}")
    A(f"v_and_b32 v{vT+3}, 7, v{vT+2}")
    A(f"v_mul_u32_u24 v{vT+3}, {CP}, v{vT+3}")
    A(f"v_lshrrev_b32 v{vT+2}, 3, v{vT+2}")
    A(f"v_add_u32 v{vT+2}, v{vT+2}, v{vT+1}")
    A(f"v_lshl_add_u32 v{vAo}, v{vT+2}, 4, v{vT+3}")
    A(f"s_add_u32 s{sT0}, s{sLds}, {FOFF}")
    A(f"v_add_u32 v{vAo}, s{sT0}, v{vAo}")
    A(f"v_add_u32 v{vCw}, s{sT0}, v{vL16}")
    A(f"v_lshlrev_b32 v{vT+2}, 5, v{vT}")
    A(f"v_lshlrev_b32 v{vT+3}, 4, v{vT+1}")
    A(f"v_sub_u32 v{vBo}, v{vT+3}, v{vT+2}")
    A(f"v_add_u32 v{vBo}, {(2032 - 1792) * 2}, v{vBo}")
    A(f"v_add_u32 v{vBo}, s{sLds}, v{vBo}")
    A(f"v_lshlrev_b32 v{vT+3}, 3, v{vT+1}")
    A(f"v_add_u32 v{vT+3}, v{vT+3}, v{vT+2}")
    A(f"v_sub_u32 v{vEo}, {(2044 - 1792) * 2}, v{vT+3}")
    A(f"v_add_u32 v{vEo}, s{sLds}, v{vEo}")
    A(f"s_add_u32 s{sT0}, s{sLds}, {YOFF}")
    A(f"v_add_u32 v{vYw}, s{sT0}, v{vT+3}")
    A(f"v_add_u32 v{vYr}, s{sT0}, v{vL16}")
    A(f"v_subrev_u32 v{vCo}, 32, v{vL16}")
    A(f"v_subrev_u32 v{vCo2}, 16, v{vL16}")
    A(f"v_lshlrev_b32 v{vFo}, 2, v0")
    for r in range(4): A(f"v_mov_b32 v{vT+4+r}, 0")
    A(f"v_min_u32 v{vT+2}, 31, v0")
    A(f"v_lshlrev_b32 v{vT+2}, 4, v{vT+2}")
    A(f"v_add_u32 v{vT+2}, s{sLds}, v{vT+2}")
    A(f"ds_write_b128 v{vT+2}, {v(vT+4,4)} offset:4096")
    A(f"v_add_u32 v{vUw}, s{sLds}, v{vL16}")
    A(f"s_mov_b64 s[{sF}:{sF+1}], s[{sPf}:{sPf+1}]")
    srd(A, sF, 4096)
    A(f"s_lshl_b32 s{sT0}, s{sWV}, 12")
    A(f"s_add_u32 s{sF}, s{sF}, s{sT0}")
    A(f"s_addc_u32 s{sF+1}, s{sF+1}, 0")
    A(f"s_mov_b64 s[{sAux}:{sAux+1}], s[{sPd}:{sPd+1}]")
    srd(A, sAux, 1280)
    A(f"s_lshl_b32 s{sCU}, s{sWV}, 1")
    A(f"s_lshl_b32 s{sB0}, s{sWV}, 12")
    A(f"s_add_u32 s{sB1}, s{sB0}, {G.YT}")
    A(f"s_add_u32 s{sB0}, s{sB0}, {G.KVT}")
    A(f"s_mov_b32 s{sCh}, 0")
    def fetch():
        for m in range(5):
            for h in range(2):
                if m == 0: A(f"buffer_load_dwordx4 {v(vD+4*h,4)}, v{vCo if h == 0 else vCo2}, s[{sF}:{sF+3}], 0 offen")
                else: A(f"buffer_load_dwordx4 {v(vD+8*m+4*h,4)}, v{vL16}, s[{sF}:{sF+3}], 0 offen offset:{1024*m-32+16*h}")
        A(f"v_mov_b32 v{vT}, 0")
        A(f"buffer_load_ushort v{vT+12}, v{vT}, s[{sAux}:{sAux+3}], s{sCU} offen")
        A(f"s_add_u32 s{sCU}, s{sCU}, 128")
        for m in range(4):
            A(f"buffer_load_dwordx4 {v(vU+4*m,4)}, v{vL16}, {WSR}, s{sB0} offen offset:{1024*m} sc1")
        A(f"s_add_u32 s{sB0}, s{sB0}, {64 * 4096}")
        A(f"s_add_u32 s{sF}, s{sF}, {64 * 4096}")
        A(f"s_addc_u32 s{sF+1}, s{sF+1}, 0")
    Lw = A.newlabel("gw")
    A(f"s_mov_b32 s{sT0}, {G.GFLAG}")
    A.label(Lw)
    A("s_sleep 8")
    A(f"buffer_load_dword v{vT}, v{vFo}, {WSR}, s{sT0} offen sc1")
    budget_check(A, 10)
    A("s_waitcnt vmcnt(0)")
    A(f"v_cmp_ne_u32 vcc, 1, v{vT}")
    A(f"s_cbranch_vccnz {Lw}")
    fetch()
    Lc = A.newlabel("chan")
    A.label(Lc)
    A("s_waitcnt vmcnt(0)")
    lo(vDv, vT + 12)
    for m in range(4):
        A(f"ds_write_b128 v{vUw}, {v(vU+4*m,4)} offset:{1024*m}")
    for m in range(5):
        D = vD + 8 * m
        if m == 4:
            A("s_mov_b64 exec, 15")
        for k in range(7): A(f"v_alignbit_b32 v{vE+k}, v{D+k+1}, v{D+k}, 16")
        for k in range(6): A(f"v_mov_b32 v{vD1+k}, v{D+k+1}")
        for k in range(6): A(f"v_mov_b32 v{vE1+k}, v{vE+k+1}")
        src = [D, vE, vD1, vE1, D + 2, vE + 2, vD1 + 2, vE1 + 2]
        for sg in range(8):
            A(f"ds_write_b128 v{vCw}, {v(src[sg],4)} offset:{sg * CP + 1024 * m}")
    A("s_mov_b64 exec, -1")
    A("s_waitcnt lgkmcnt(0)")
    Lnf = A.newlabel("nofetch")
    A(f"s_cmp_eq_u32 s{sCh}, 9")
    A(f"s_cbranch_scc1 {Lnf}")
    fetch()
    A.label(Lnf)
    def rdset(r):
        b = vFr + 64 * (r & 1)
        L = []
        for k in range(8):
            L.append(f"ds_read_b128 {v(b+32+4*k,4)}, v{vBo} offset:{(7-k)*512 + 64*r}")
            L.append(f"ds_read_b128 {v(b+4*k,4)}, v{vAo} offset:{64*(r+8*k)}")
        return L
    for x in rdset(0)[:14]: A(x)
    A("s_waitcnt lgkmcnt(6)")
    for x in rdset(0)[14:]: A(x)
    for r in range(8):
        b = vFr + 64 * (r & 1)
        nx = rdset(r + 1) if r < 7 else []
        A("s_waitcnt lgkmcnt(0)")
        n = 0
        for k in range(8):
            for T in range(k, 8):
                cc = "0" if (r == 0 and k == 0) else v(vAcc8 + 4 * T, 4)
                A(f"v_mfma_f32_16x16x32_bf16 {v(vAcc8+4*T,4)}, {v(b+4*k,4)}, {v(b+32+4*(T-k),4)}, {cc}")
                if n % 2 == 0 and nx: A(nx.pop(0))
                n += 1
    for T in range(8):
        A(f"ds_read_b64 {v(vBf+2*T,2)}, v{vEo} offset:{(7-T)*512}")
    A("s_waitcnt lgkmcnt(0)")
    for T in range(8):
        acc = vAcc8 + 4 * T
        rnd(acc); rnd(acc + 2)
        hi(vT + 4, vBf + 2 * T + 1); lo(vT + 5, vBf + 2 * T + 1); hi(vT + 6, vBf + 2 * T); lo(vT + 7, vBf + 2 * T)
        for r in range(4): A(f"v_mul_f32 v{vT+4+r}, v{vDv}, v{vT+4+r}")
        rnd(vT + 4); rnd(vT + 6)
        A(f"v_pk_add_f32 {v(acc,2)}, {v(acc,2)}, {v(vT+4,2)}")
        A(f"v_pk_add_f32 {v(acc+2,2)}, {v(acc+2,2)}, {v(vT+6,2)}")
        A(f"v_cvt_pk_bf16_f32 v{vT+8}, v{acc}, v{acc+1}")
        A(f"v_cvt_pk_bf16_f32 v{vT+9}, v{acc+2}, v{acc+3}")
        A(f"ds_write_b64 v{vYw}, {v(vT+8,2)} offset:{T*512}")
    A("s_waitcnt lgkmcnt(0)")
    for m in range(4):
        A(f"ds_read_b128 {v(vBf+4*m,4)}, v{vYr} offset:{1024*m}")
    for m in range(4):
        A(f"s_waitcnt lgkmcnt({3-m})")
        A(f"buffer_store_dwordx4 {v(vBf+4*m,4)}, v{vL16}, {WSR}, s{sB1} offen offset:{1024*m} sc1")
    A(f"s_add_u32 s{sB1}, s{sB1}, {64 * 4096}")
    A(f"s_add_u32 s{sCh}, s{sCh}, 1")
    A(f"s_lshl_b32 s{sT0}, s{sWV}, 2")
    A(f"s_add_u32 s{sT0}, s{sT0}, {G.CVFLAG}")
    A(f"v_mov_b32 v{vT}, s{sCh}")
    A("s_waitcnt vmcnt(0)")
    A(f"buffer_store_dword v{vT}, v{vFlagO}, {WSR}, s{sT0} offen sc1")
    A(f"s_cmp_lg_u32 s{sCh}, 10")
    A(f"s_cbranch_scc1 {Lc}")
    G.ostamp(A, 0, 2)

    A(f"s_mov_b32 s{sU}, s{sWV}")
    A(f"s_mov_b32 s{sUe}, {20 * (P['nseg'] - 4)}")
    A.label("L_mixent")
    vYs, vXs, vTr, vDl, vGo2, vFl, vF32, vLin = 20, 21, 22, 23, 24, 25, 26, 27
    vPp, vAc, vY, vXv, vGt, vSel = 28, 92, 108, 116, 124, 128
    A(f"s_load_dwordx2 s[{sAux}:{sAux+1}], s[0:1], 112")
    A(f"s_mov_b32 s{sMaskHi}, 0xffff0000")
    A(f"v_lshlrev_b32 v{vL16}, 4, v0")
    A(f"v_lshlrev_b32 v{vFo}, 2, v0")
    A(f"v_mov_b32 v{vFlagO}, 0")
    A(f"v_lshrrev_b32 v{vT}, 2, v0")
    A(f"v_and_b32 v{vT+1}, 3, v0")
    A(f"v_lshlrev_b32 v{vT+2}, 12, v{vT}")
    A(f"v_lshl_add_u32 v{vYs}, v{vT+1}, 4, v{vT+2}")
    A(f"v_mul_u32_u24 v{vT+2}, 1280, v{vT}")
    A(f"v_lshl_add_u32 v{vXs}, v{vT+1}, 4, v{vT+2}")
    A(f"v_lshlrev_b32 v{vT}, 6, v{vT}")
    A(f"v_lshl_add_u32 v{vT}, v{vT+1}, 3, v{vT}")
    A(f"v_add_u32 v{vTr}, s{sLds}, v{vT}")
    A(f"v_and_b32 v{vT}, 15, v0")
    A(f"v_lshrrev_b32 v{vT+1}, 4, v0")
    A(f"v_lshlrev_b32 v{vGo2}, 2, v{vT}")
    A(f"v_lshlrev_b32 v{vT+2}, 6, v{vT}")
    A(f"v_lshl_add_u32 v{vT+2}, v{vT+1}, 3, v{vT+2}")
    A(f"s_add_u32 s{sT0}, s{sLds}, 2048")
    A(f"v_add_u32 v{vDl}, s{sT0}, v{vT+2}")
    A(f"v_add_u32 v{vLin}, s{sT0}, v{vL16}")
    A(f"v_and_b32 v{vF32}, 31, v0")
    A(f"v_lshlrev_b32 v{vF32}, 2, v{vF32}")
    A(f"v_and_b32 v{vT+2}, 1, v0")
    A(f"v_lshlrev_b32 v{vT+2}, 4, v{vT+2}")
    A(f"v_mov_b32 v{vT+3}, 0x3f80")
    A(f"v_lshlrev_b32 v{vT+2}, v{vT+2}, v{vT+3}")
    A(f"v_lshrrev_b32 v{vT+3}, 2, v{vT}")
    A(f"v_cmp_eq_u32 vcc, v{vT+3}, v{vT+1}")
    A(f"v_bfe_u32 v{vT+3}, v0, 1, 1")
    A("s_nop 0")
    A(f"v_cndmask_b32 v{vT+2}, 0, v{vT+2}, vcc")
    A(f"v_cmp_eq_u32 vcc, 0, v{vT+3}")
    for r in (2, 3, 4, 5): A(f"v_mov_b32 v{vSel+r}, 0")
    A(f"v_cndmask_b32 v{vSel}, 0, v{vT+2}, vcc")
    A(f"v_cndmask_b32 v{vSel+1}, v{vT+2}, 0, vcc")
    A(f"v_mov_b32 v{vSel+6}, v{vSel}")
    A(f"v_mov_b32 v{vSel+7}, v{vSel+1}")
    A("s_waitcnt lgkmcnt(0)")
    srd(A, sAux, 2048 * 1280)
    Lm = A.newlabel("mix")
    A.label(Lm)
    A(f"s_mul_i32 s{sSeg}, s{sU}, 3277")
    A(f"s_lshr_b32 s{sSeg}, s{sSeg}, 16")
    A(f"s_mul_i32 s{sT0}, s{sSeg}, 20")
    A(f"s_sub_u32 s{sJ}, s{sU}, s{sT0}")
    A(f"s_lshr_b32 s{sCh}, s{sJ}, 1")
    Lw = A.newlabel("mc")
    A(f"s_mov_b32 s{sT2}, {G.CVFLAG}")
    A.label(Lw)
    A(f"buffer_load_dword v{vT+2}, v{vFo}, {WSR}, s{sT2} offen sc1")
    budget_check(A, 10)
    A("s_waitcnt vmcnt(0)")
    A(f"v_cmp_ge_u32 vcc, s{sCh}, v{vT+2}")
    A(f"s_cbranch_vccnz {Lw}")
    A(f"s_lshl_b32 s{sT0}, s{sJ}, 17")
    A(f"s_lshl_b32 s{sT1}, s{sSeg}, 6")
    A(f"s_add_u32 s{sT0}, s{sT0}, s{sT1}")
    A(f"s_mov_b32 m0, s{sLds}")
    A(f"s_add_u32 s{sT0}, s{sT0}, {G.YT}")
    A(f"buffer_load_dwordx4 v{vYs}, {WSR}, s{sT0} offen sc1 lds")
    A("s_add_u32 m0, m0, 1024")
    A(f"s_add_u32 s{sT0}, s{sT0}, 65536")
    A(f"buffer_load_dwordx4 v{vYs}, {WSR}, s{sT0} offen sc1 lds")
    A("s_add_u32 m0, m0, 1024")
    A(f"s_mul_i32 s{sB1}, s{sSeg}, 40960")
    A(f"s_lshl_b32 s{sT1}, s{sJ}, 6")
    A(f"s_add_u32 s{sB1}, s{sB1}, s{sT1}")
    A(f"buffer_load_dwordx4 v{vXs}, {XS}, s{sB1} offen lds")
    A("s_add_u32 m0, m0, 1024")
    A(f"s_add_u32 s{sT1}, s{sB1}, 20480")
    A(f"buffer_load_dwordx4 v{vXs}, {XS}, s{sT1} offen lds")
    A(f"s_lshl_b32 s{sT2}, s{sSeg}, 7")
    A(f"s_add_u32 s{sT2}, s{sT2}, {G.GV}")
    A(f"buffer_load_dword v{vGt}, v{vGo2}, {WSR}, s{sT2} offen sc1")
    A(f"buffer_load_dword v{vGt+1}, v{vGo2}, {WSR}, s{sT2} offen offset:64 sc1")
    A(f"s_mul_i32 s{sB0}, s{sSeg}, {G.XP_SEG}")
    A(f"s_lshl_b32 s{sT0}, s{sCh}, 15")
    A(f"s_add_u32 s{sB0}, s{sB0}, s{sT0}")
    A(f"s_and_b32 s{sT0}, s{sJ}, 1")
    A(f"s_lshl_b32 s{sT0}, s{sT0}, 11")
    A(f"s_add_u32 s{sB0}, s{sB0}, s{sT0}")
    A(f"s_add_u32 s{sB0}, s{sB0}, {G.XPART}")
    A("s_waitcnt vmcnt(0)")
    for tt in range(2):
        for c in range(2):
            A(f"ds_read_b64_tr_b16 {v(vY+4*tt+2*c,2)}, v{vTr} offset:{1024*c+32*tt}")
            A(f"ds_read_b64 {v(vXv+4*tt+2*c,2)}, v{vDl} offset:{1024*tt+32*c}")
    for tt in range(2):
        A(f"v_sub_f32 v{vGt+2+tt}, 1.0, v{vGt+tt}")
    rnd(vGt + 2)
    A("s_waitcnt lgkmcnt(0)")
    for i in range(8):
        lo(vT + 4, vY + i); hi(vT + 5, vY + i); lo(vT + 6, vXv + i); hi(vT + 7, vXv + i)
        A(f"v_pk_mul_f32 {v(vT+4,2)}, {v(vT+4,2)}, {v(vT+6,2)}")
        rnd(vT + 4)
        A(f"v_mul_f32 v{vT+4}, v{vGt+2+i//4}, v{vT+4}")
        A(f"v_mul_f32 v{vT+5}, v{vGt+2+i//4}, v{vT+5}")
        A(f"v_cvt_pk_bf16_f32 v{vY+i}, v{vT+4}, v{vT+5}")
    A(f"s_lshl_b32 s{sT1}, s{sCh}, 7")
    A(f"s_add_u32 s{sT1}, s{sT1}, {G.XPFLAG}")
    A(f"s_lshl_b32 s{sT0}, s{sG}, 7")
    A(f"s_add_u32 s{sT0}, s{sT0}, {G.S1MARK}")
    A(f"s_add_u32 s{sI}, s{sSeg}, 4")
    A(f"s_cmp_ge_u32 s{sSeg}, {P['nseg'] - 4}")
    A(f"s_cselect_b32 s{sT1}, s{sT1}, s{sT0}")
    A(f"s_cselect_b32 s{sI}, s{sSeg}, s{sI}")
    A(f"s_cselect_b32 s{sT0}, -1, 0")
    A(f"v_and_b32 v{vT+3}, s{sT0}, v{vF32}")
    Lw, Lgo, Lq, Lq2 = A.newlabel("mw"), A.newlabel("mgo"), A.newlabel("mq"), A.newlabel("mq2")
    A.label(Lw)
    A(f"buffer_load_dword v{vFl}, v{vT+3}, {WSR}, s{sT1} offen sc1")
    budget_check(A, 11)
    A("s_waitcnt vmcnt(0)")
    A(f"v_cmp_ge_i32 vcc, s{sI}, v{vFl}")
    A(f"s_cbranch_vccz {Lgo}")
    A(f"s_cmp_ge_u32 s{sSeg}, {P['nseg'] - 4}")
    A(f"s_cbranch_scc1 {Lw}")
    A(f"s_sleep {P.get('mix_sleep', 16)}")
    A(f"s_branch {Lw}")
    A.label(Lgo)
    A(f"s_cmp_ge_u32 s{sSeg}, {P['nseg'] - 4}")
    A(f"s_cbranch_scc1 {Lq2}")
    if P.get("mix_gate", 1):
        A(f"v_readfirstlane_b32 s{sT2}, v{vFl}")
        A(f"s_add_u32 s{sT0}, s{sSeg}, {P.get('mq_lag', 12)}")
        A(f"s_cmp_ge_u32 s{sT2}, s{sT0}")
        A(f"s_cbranch_scc1 {Lq2}")
        A.label(Lq)
        A(f"s_cmp_ge_u32 s{sT2}, {P['nseg'] - 1}")
        A(f"s_cbranch_scc1 {Lq2}")
        A(f"s_sleep {P.get('mq_sleep', 3)}")
        A(f"buffer_load_dword v{vT+2}, v{vFlagO}, {WSR}, s{sT1} offen sc1")
        budget_check(A, 15)
        A("s_waitcnt vmcnt(0)")
        A(f"v_readfirstlane_b32 s{sT0}, v{vT+2}")
        A(f"s_cmp_eq_u32 s{sT0}, s{sT2}")
        A(f"s_cbranch_scc1 {Lq}")
        if P.get("mq_dly"): A(f"s_sleep {P['mq_dly']}")
    A.label(Lq2)
    for g in range(8):
        if g: A(f"s_add_u32 s{sB0}, s{sB0}, 4096")
        for c in range(2):
            A(f"buffer_load_dwordx4 {v(vPp+8*g+4*c,4)}, v{vL16}, {WSR}, s{sB0} offen offset:{1024*c} sc1")
    for g in range(8):
        for c in range(2):
            A(f"s_waitcnt vmcnt({15 - 2 * g - c})")
            for tt in range(2):
                acc = vAc + 8 * tt + 4 * c
                A(f"v_mfma_f32_16x16x32_bf16 {v(acc,4)}, {v(vSel+4*tt,4)}, {v(vPp+8*g+4*c,4)}, {'0' if g == 0 else v(acc,4)}")
    A.nop(6)
    for tt in range(2):
        for c in range(2):
            for h in range(2):
                x = vAc + 8 * tt + 4 * c + 2 * h
                i = 4 * tt + 2 * c + h
                rnd(x)
                A(f"v_mul_f32 v{x}, v{vGt+tt}, v{x}")
                A(f"v_mul_f32 v{x+1}, v{vGt+tt}, v{x+1}")
                rnd(x)
                lo(vT + 4, vY + i); hi(vT + 5, vY + i)
                A(f"v_pk_add_f32 {v(x,2)}, {v(x,2)}, {v(vT+4,2)}")
                A(f"v_cvt_pk_bf16_f32 v{vXv+i}, v{x}, v{x+1}")
            A(f"ds_write_b64 v{vDl}, {v(vXv+4*tt+2*c,2)} offset:{1024*tt+32*c}")
    A("s_waitcnt lgkmcnt(0)")
    for m in range(2):
        A(f"ds_read_b128 {v(vY+4*m,4)}, v{vLin} offset:{1024*m}")
    A(f"s_add_u32 s{sT1}, s{sB1}, 20480")
    A("s_waitcnt lgkmcnt(1)")
    A(f"buffer_store_dwordx4 {v(vY,4)}, v{vXs}, s[{sAux}:{sAux+3}], s{sB1} offen")
    A("s_waitcnt lgkmcnt(0)")
    A(f"buffer_store_dwordx4 {v(vY+4,4)}, v{vXs}, s[{sAux}:{sAux+3}], s{sT1} offen")
    A(f"s_add_u32 s{sU}, s{sU}, 64")
    A(f"s_cmp_lt_u32 s{sU}, s{sUe}")
    A(f"s_cbranch_scc1 {Lm}")
    if P["prof"]: A("s_waitcnt vmcnt(0)")
    G.ostamp(A, 0, 3)
    A("s_endpgm")
```

```python
import sys, math, struct
from asmlib import Asm, v, a, s, check_hazards

NAME = "gated_mix__memory_aug_recurrent_mem_tr__ssm_conv_h3__prompt_kernel"

P = dict(
    s3_miss=0, s3_slp=3, h1_slp=3, dp=3, near=1, gh=0, gh_j=0, h3oob=1, wpf=0, wpf_nt=0, al1=-1, al2=-1, s3_two=0, s2_dly=0, xo_pos=0, ldev=3, xpf=5, touch=3, cpf=0, wnt=1, ppos=12, dma0=10, dma_e=0, mk1=0, nvc=4, mk_pos=1, h1_two=2,
    s3_sleep=16,
    h1_nop=50,
    h2_miss=14,
    h2_sleep=8,
    prof=0,
    nseg=64,
    force_global=0,
)

MEMR   = 0x0
QKVR   = 0x50000
PXR    = 0x170000
PART   = 0x200000
PART_SLOT = 163840
NEARP  = 0x2A0000
GHINT  = NEARP + 0x380
POISON_END = 0x2A4000
FLAGS  = 0x2B0000
XFLAG  = FLAGS
XPFLAG = FLAGS + 0x1000
CVFLAG = FLAGS + 0x2000
GFLAG  = FLAGS + 0x2200
S2MARK = FLAGS + 0x2400
S1MARK = FLAGS + 0x2800
FLAGS_END = FLAGS + 0x3000
XR     = 0x2C0000
XR_HEAD = 36864 + 1024
XR_SLOT = 4 * XR_HEAD
XR_G   = 4 * XR_SLOT
XPART  = 0x900000
XP_SEG = 327680
KVT    = 0x3200000
YT     = 0x3800000
GV     = 0x3500000
PROF   = 0x4000000
MEMDBG = 0x4800000
WS_SIZE = 0x10000000
OOB = 0x20000000
DBG_CEN, DBG_NEAR, DBG_FAIL, DBG_INIT = 64, 128, 160, 224

XOF = ["sc1", "", "sc1 nt", "sc0 sc1", "nt"]
def f2u(x): return struct.unpack("<I", struct.pack("<f", x))[0]

sWS, sX, sRO, sDBG = 4, 8, 12, 16
sG, sR, sW, sBUD, sS, sXCC = 20, 21, 22, 23, 24, 25
sT0, sT1, sT2, sT3 = 26, 27, 28, 29

WSR = f"s[{sWS}:{sWS+3}]"

def srd(A, base, size):
    A(f"s_and_b32 s{base+1}, s{base+1}, 0xffff")
    A(f"s_mov_b32 s{base+2}, {size}")
    A(f"s_mov_b32 s{base+3}, 0x20000")

def budget_check(A, code):
    A(f"s_sub_u32 s{sBUD}, s{sBUD}, 1")
    A(f"s_movk_i32 s{sT3}, {code}")
    A(f"s_cbranch_scc1 L_fail")

def dense_poll(A, regs, issue, missing, code):
    L, Lok = A.newlabel("dp"), A.newlabel("dpok")
    n = len(regs)
    for i, r in enumerate(regs):
        issue(r)
        if i < n - 1: A("s_sleep 1")
    A.label(L)
    for r in regs:
        A(f"s_waitcnt vmcnt({n-1})")
        A(f"{missing(r)} {Lok}")
        issue(r)
    budget_check(A, code)
    A(f"s_branch {L}")
    A.label(Lok)

def align(A, pad):
    if pad < 0: return
    A(".p2align 6")
    for _ in range(pad // 4): A("s_nop 0")

def stamp(A, idx, vt=250):
    if P["prof"] not in (1, 2) and not (P["prof"] == 4 and vt == 250 and idx == 6): return
    A(f"s_memrealtime s[90:91]")
    A(f"s_waitcnt lgkmcnt(0)")
    A(f"v_writelane_b32 v{vt}, s90, {idx}")
    if P["prof"] == 2:
        A(f"s_memtime s[90:91]")
        A(f"s_waitcnt lgkmcnt(0)")
        A(f"v_writelane_b32 v{vt}, s90, {idx+8}")

def dstamp(A, idx, inv=False, vt=254):
    if not P.get("diag"): return
    L = A.newlabel("ds")
    A(f"s_or_b32 s92, s2, s{sW}")
    A(f"s_cbranch_scc1 {L}")
    A("s_memrealtime s[90:91]")
    A("s_memtime s[86:87]")
    A("s_waitcnt lgkmcnt(0)")
    A(f"v_mov_b32 v{vt}, s90")
    A(f"v_mov_b32 v{vt+1}, s86")
    A(f"v_mov_b32 v{vt-1}, {8 * idx}")
    A("s_mov_b64 exec, 1")
    A(f"buffer_store_dwordx2 v[{vt}:{vt+1}], v{vt-1}, s[{sDBG}:{sDBG+3}], 0 offen")
    A("s_mov_b64 exec, -1")
    A.label(L)

def ostamp(A, row, idx, vt=254):
    if P.get("diag") and idx in (0, 1, 3): dstamp(A, {0: 0, 1: 1, 3: 7}[idx])
    if not P["prof"]: return
    A("s_memrealtime s[90:91]")
    A("s_lshl_b32 s92, s2, 2")
    A(f"s_add_u32 s92, s92, s{sW}")
    A("s_mul_i32 s92, s92, 80")
    A(f"s_add_u32 s92, s92, {row}")
    A("s_lshl_b32 s92, s92, 6")
    A(f"s_add_u32 s92, s92, {PROF + 4 * idx}")
    A("s_waitcnt lgkmcnt(0)")
    A(f"v_mov_b32 v{vt}, s90")
    A(f"v_mov_b32 v{vt+1}, 0")
    A("s_mov_b64 exec, 1")
    A(f"buffer_store_dword v{vt}, v{vt+1}, s[{sWS}:{sWS+3}], s92 offen")
    A("s_mov_b64 exec, -1")

def fstamp(A, idx, vt):
    if P["prof"] not in (3, 5): return
    A(f"s_mem{'real' if P['prof'] == 5 else ''}time s[{60+2*idx}:{61+2*idx}]")

def fstamp_collect(A, n, vt):
    if P["prof"] not in (3, 5): return
    A("s_waitcnt lgkmcnt(0)")
    for i in range(n):
        A(f"v_writelane_b32 v{vt}, s{60+2*i}, {i}")

def stamp_flush(A, vt=250, vtmp=251):
    if not P["prof"] or (P["prof"] == 4 and vt != 250): return
    A(f"s_lshl_b32 s90, s2, 2")
    A(f"s_add_u32 s90, s90, s{sW}")
    A(f"s_mul_i32 s90, s90, 80")
    A(f"s_add_u32 s90, s90, s{sS}")
    A(f"s_add_u32 s90, s90, 4")
    A(f"s_lshl_b32 s90, s90, 6")
    A(f"s_add_u32 s90, s90, {PROF}")
    A(f"v_lshlrev_b32 v{vtmp}, 2, v0")
    A(f"s_mov_b64 exec, 0xffff")
    A(f"buffer_store_dword v{vt}, v{vtmp}, s[{sWS}:{sWS+3}], s90 offen")
    A(f"s_mov_b64 exec, -1")

def gen_init(A):
    A.label("L_init")
    if P["cpf"]:
        A("s_getpc_b64 s[30:31]")
        A.label("L_pc")
        A(f"s_sub_u32 s{sT0}, s{sR}, 28")
        A(f"s_lshl_b32 s{sT0}, s{sT0}, 2")
        A(f"s_add_u32 s{sT0}, s{sT0}, s{sW}")
        A(f"s_mul_i32 s{sT0}, s{sT0}, 3072")
        A(f"v_lshlrev_b32 v1, 4, v0")
        A(f"v_add_u32 v1, s{sT0}, v1")
        A(f"v_min_u32 v1, L_code_end-L_pc-2048-16, v1")
        for i in range(3):
            A(f"global_load_dwordx4 v[20:23], v1, s[30:31] offset:{1024*i}")
    A("v_mov_b32 v4, -1\nv_mov_b32 v5, -1\nv_mov_b32 v6, -1\nv_mov_b32 v7, -1")
    A(f"s_load_dwordx2 s[{sRO}:{sRO+1}], s[0:1], 8")
    A(f"s_lshl_b32 s{sT0}, s{sW}, 6")
    A(f"v_add_u32 v9, s{sT0}, v0")
    A("v_lshlrev_b32 v1, 4, v9")
    A(f"s_sub_u32 s{sT0}, s2, 224")
    A(f"s_lshl_b32 s{sT0}, s{sT0}, 12")
    for base, size in ((QKVR, PXR + 8 * 49152 - QKVR), (PART, 4 * PART_SLOT)):
        A(f"s_add_u32 s{sT1}, s{sT0}, {base}")
        for i in range(size // 131072):
            A(f"buffer_store_dwordx4 v[4:7], v1, {WSR}, s{sT1} offen sc1")
            A(f"s_add_u32 s{sT1}, s{sT1}, 131072")
        assert size % 131072 == 0
    Lm, Lf, Ld = A.newlabel("im"), A.newlabel("if"), A.newlabel("id")
    A(f"s_cmp_eq_u32 s{sR}, 31")
    A(f"s_cbranch_scc1 {Lm}")
    A(f"s_cmp_eq_u32 s{sR}, 30")
    A(f"s_cbranch_scc1 {Lf}")
    A(f"s_mul_i32 s{sT1}, s{sG}, 40960")
    A(f"s_sub_u32 s{sT0}, s{sR}, 28")
    A(f"s_mul_i32 s{sT0}, s{sT0}, 15360")
    A(f"s_add_u32 s{sT1}, s{sT1}, s{sT0}")
    A(f"s_add_u32 s{sT1}, s{sT1}, 10240")
    for i in range(4):
        if i == 3:
            A("v_cmp_gt_u32 vcc, 192, v9")
            A(f"v_mov_b32 v2, {OOB}")
            A("s_nop 0")
            A("v_cndmask_b32 v1, v2, v1, vcc")
        A(f"buffer_store_dwordx4 v[4:7], v1, {WSR}, s{sT1} offen sc1")
        A(f"s_add_u32 s{sT1}, s{sT1}, 4096")
    A(f"s_branch {Ld}")
    A.label(Lf)
    A("v_mov_b32 v4, 0\nv_mov_b32 v5, 0\nv_mov_b32 v6, 0\nv_mov_b32 v7, 0")
    A("v_cmp_gt_u32 vcc, 96, v9")
    A(f"v_mov_b32 v2, {OOB}")
    A(f"s_mul_i32 s{sT1}, s{sG}, 1536")
    A("v_cndmask_b32 v1, v2, v1, vcc")
    A(f"s_add_u32 s{sT1}, s{sT1}, {FLAGS}")
    A(f"buffer_store_dwordx4 v[4:7], v1, {WSR}, s{sT1} offen sc1")
    A("v_lshlrev_b32 v1, 13, v9")
    A("v_cmp_gt_u32 vcc, 2, v9")
    A(f"s_lshl_b32 s{sT1}, s{sG}, 2")
    A(f"s_add_u32 s{sT1}, s{sT1}, {GHINT}")
    A("v_cndmask_b32 v1, v2, v1, vcc")
    A(f"buffer_store_dword v4, v1, {WSR}, s{sT1} offen sc1")
    A(f"s_branch {Ld}")
    A.label(Lm)
    A("s_waitcnt lgkmcnt(0)")
    srd(A, sRO, 10240)
    A(f"s_mul_i32 s{sT1}, s{sG}, 40960")
    for i in range(3):
        A(f"v_add_u32 v2, {256 * i}, v9")
        A("v_lshrrev_b32 v3, 6, v2")
        A("v_and_b32 v8, 7, v2")
        A("v_bfe_u32 v16, v2, 3, 1")
        A("v_bfe_u32 v10, v2, 4, 2")
        A("v_mul_u32_u24 v8, 1280, v8")
        A("v_lshl_add_u32 v8, v3, 7, v8")
        A("v_lshl_add_u32 v8, v10, 5, v8")
        A("v_lshl_add_u32 v8, v16, 2, v8")
        A("v_cmp_gt_u32 vcc, 640, v2")
        A(f"v_mov_b32 v11, {OOB}")
        A("v_lshlrev_b32 v2, 4, v2")
        A("v_cndmask_b32 v8, v11, v8, vcc")
        A("v_cndmask_b32 v2, v11, v2, vcc")
        for q in range(4):
            A(f"buffer_load_dword v{12+q}, v8, s[{sRO}:{sRO+3}], 0 offen offset:{8*q}")
        A("s_waitcnt vmcnt(0)")
        for q in range(4):
            A(f"v_min_u32 v{12+q}, -2, v{12+q}")
        A(f"buffer_store_dwordx4 v[12:15], v2, {WSR}, s{sT1} offen sc1")
        A("s_nop 1")
    A.label(Ld)
    A("s_waitcnt vmcnt(0) lgkmcnt(0)")
    A("s_barrier")
    Ln = A.newlabel("in")
    A(f"s_cmp_lg_u32 s{sW}, 0")
    A(f"s_cbranch_scc1 {Ln}")
    A("v_mov_b32 v2, 1")
    A(f"v_mov_b32 v3, {DBG_INIT}")
    A("s_mov_b64 exec, 1")
    A(f"buffer_atomic_add v2, v3, s[{sDBG}:{sDBG+3}], 0 offen")
    A("s_mov_b64 exec, -1")
    A.label(Ln)
    if P["wpf"]:
        NR = P["wpf"]
        A("s_load_dwordx4 s[32:35], s[0:1], 16")
        A("s_load_dwordx2 s[36:37], s[0:1], 32")
        A(f"s_sub_u32 s{sT0}, s{sR}, 28")
        A(f"s_lshl_b32 s{sT0}, s{sT0}, 2")
        A(f"s_add_u32 s{sT0}, s{sT0}, s{sW}")
        A(f"s_mul_i32 s{sT0}, s{sT0}, {8 * 12288}")
        A(f"s_mul_i32 s{sT1}, s{sG}, 1536")
        A(f"s_add_u32 s{sT0}, s{sT0}, s{sT1}")
        A(f"s_add_u32 s{sT0}, s{sT0}, {(640 - 128 * NR) * 12288}")
        A("v_lshrrev_b32 v1, 3, v0")
        A("v_mul_u32_u24 v1, 12288, v1")
        A("v_and_b32 v2, 7, v0")
        A("v_lshl_add_u32 v1, v2, 4, v1")
        A("s_waitcnt lgkmcnt(0)")
        for b in range(NR):
            for m in range(3):
                A(f"s_mov_b64 s[{sRO}:{sRO+1}], s[{32+2*m}:{33+2*m}]")
                srd(A, sRO, 640 * 12288)
                for c_ in range(12):
                    A(f"buffer_load_dwordx4 v[20:23], v1, s[{sRO}:{sRO+3}], s{sT0} offen offset:{128*c_}{' nt' if P['wpf_nt'] else ''}")
            A(f"s_add_u32 s{sT0}, s{sT0}, {128 * 12288}")
    A(f"s_cmp_lt_u32 s{sR}, 30")
    A("s_cbranch_scc1 L_xs")
    A("s_branch L_bg")

def gen_common_prologue(A):
    A("s_cmp_ge_u32 s2, 256")
    A("s_cbranch_scc1 L_end")
    A(f"s_load_dwordx2 s[{sWS}:{sWS+1}], s[0:1], 128")
    A(f"s_load_dwordx2 s[{sX}:{sX+1}], s[0:1], 0")
    A(f"s_load_dwordx2 s[{sDBG}:{sDBG+1}], s[0:1], 120")
    A("v_lshrrev_b32 v1, 6, v0")
    A(f"s_and_b32 s{sG}, s2, 7")
    A(f"v_readfirstlane_b32 s{sW}, v1")
    A("v_and_b32 v0, 63, v0")
    A(f"s_lshr_b32 s{sR}, s2, 3")
    A(f"s_getreg_b32 s{sXCC}, hwreg(HW_REG_XCC_ID)")
    A(f"s_mov_b32 s{sBUD}, 400000")
    A("s_waitcnt lgkmcnt(0)")
    srd(A, sWS, WS_SIZE)
    srd(A, sX, 2048 * 1280)
    srd(A, sDBG, 256)
    ostamp(A, 0, 0)
    L = A.newlabel("nocensus")
    A(f"s_cmp_lg_u32 s{sW}, 0")
    A(f"s_cbranch_scc1 {L}")
    A(f"s_mul_i32 s{sT0}, s{sXCC}, 6")
    A(f"s_lshl_b64 s[{sT2}:{sT3}], 1, s{sT0}")
    A(f"s_cmp_lt_u32 s{sXCC}, 8")
    A(f"s_cselect_b64 s[{sT2}:{sT3}], s[{sT2}:{sT3}], 0")
    A(f"s_add_u32 s{sT3}, s{sT3}, 0x1000000")
    A(f"v_mov_b32 v2, s{sT2}")
    A(f"v_mov_b32 v3, s{sT3}")
    A(f"s_lshl_b32 s{sT0}, s{sG}, 3")
    A(f"v_mov_b32 v4, s{sT0}")
    A("s_mov_b64 exec, 1")
    A(f"buffer_atomic_add_x2 v[2:3], v4, s[{sDBG}:{sDBG+3}], 0 offen offset:{DBG_CEN}")
    A("s_mov_b64 exec, -1")
    A.label(L)

def gen_locality(A, lab_local, lab_global, vt):
    L = A.newlabel("loc")
    A(f"v_lshlrev_b32 v{vt}, 2, v0")
    A(f"s_lshl_b32 s93, s{sG}, 1")
    A(f"s_add_u32 s93, s93, {DBG_CEN // 4}")
    A(f"s_add_u32 s94, s93, 1")
    A.label(L)
    A(f"buffer_load_dword v{vt+1}, v{vt}, s[{sDBG}:{sDBG+3}], 0 offen sc1")
    budget_check(A, 1)
    A("s_waitcnt vmcnt(0)")
    A(f"v_readlane_b32 s{sT0}, v{vt+1}, s93")
    A(f"v_readlane_b32 s{sT1}, v{vt+1}, s94")
    A(f"v_readlane_b32 s{sT3}, v{vt+1}, {DBG_INIT // 4}")
    A(f"s_lshr_b32 s{sT2}, s{sT1}, 24")
    A(f"s_min_u32 s{sT2}, s{sT2}, s{sT3}")
    A(f"s_cmp_lt_u32 s{sT2}, 32")
    A(f"s_cbranch_scc1 {L}")
    if lab_local is None: return
    if P["force_global"]:
        A(f"s_branch {lab_global}")
    A(f"s_and_b32 s{sT1}, s{sT1}, 0xffffff")
    A(f"s_mul_i32 s{sT2}, s{sXCC}, 6")
    A(f"s_lshl_b64 s[{sT2}:{sT3}], 32, s{sT2}")
    A(f"s_cmp_eq_u64 s[{sT0}:{sT1}], s[{sT2}:{sT3}]")
    A(f"s_cbranch_scc0 {lab_global}")
    A(f"s_cmp_lt_u32 s{sXCC}, 8")
    A(f"s_cbranch_scc0 {lab_global}")
    A(f"s_branch {lab_local}")


def gen_s1(A):
    sU, sHH, sTY, sKS = 30, 31, 32, 33
    sPartRd, sMem0, sMem1, sMem2, sQkv, sMemP, sQkvP = 34, 35, 36, 37, 38, 39, 40
    sXr, sXrEnd, sXrBase, sXflag, sXsrc, sLdsW = 41, 42, 43, 44, 45, 46
    sPartBase, sMemBase, sQkvBase, sXbuf, sH2 = 47, 48, 49, 50, 51
    vL16, vMemSt, vQkvSt, vIdx, vXg, vXrd, vXsum, vPois, vFlagO = 1, 2, 3, 4, 5, 6, 7, 8, 9
    vSel = 128
    vH = 132
    vHld, vHw, vHr, vMkO = 144, 145, 146, 147
    vH2 = 148
    vNearO = 160
    vXB3 = 164
    sPartP, vPois2, vPartSt = 52, 162, 161
    vMemPo, vQkvPo = 188, 189
    sMk, sMkW = 58, 59
    MEML = 81920
    vT = 10
    vM = 20
    vPt = 60
    vA = 76
    vMx = 84
    vXA = 88
    vXB = 104
    vXO = 120
    A.label("L_s1")
    A(f"s_lshl_b32 s{sU}, s{sR}, 2")
    A(f"s_add_u32 s{sU}, s{sU}, s{sW}")
    A(f"s_mul_i32 s{sHH}, s{sU}, 3641")
    A(f"s_lshr_b32 s{sHH}, s{sHH}, 16")
    A(f"s_mul_i32 s{sT0}, s{sHH}, 18")
    A(f"s_sub_u32 s{sT0}, s{sU}, s{sT0}")
    A(f"s_mul_i32 s{sTY}, s{sT0}, 43")
    A(f"s_lshr_b32 s{sTY}, s{sTY}, 8")
    A(f"s_mul_i32 s{sT1}, s{sTY}, 6")
    A(f"s_sub_u32 s{sKS}, s{sT0}, s{sT1}")
    A("s_load_dwordx4 s[52:55], s[0:1], 16")
    A("s_load_dwordx2 s[56:57], s[0:1], 32")
    A(f"v_lshlrev_b32 v{vL16}, 4, v0")
    A(f"s_and_b32 s{sT2}, s{sW}, 1")
    A(f"s_lshl_b32 s{sT3}, s{sT2}, 2")
    A(f"v_lshrrev_b32 v{vT}, 3, v0")
    A(f"v_and_b32 v{vT+1}, 2, v{vT}")
    A(f"v_or_b32 v{vT+1}, s{sT3}, v{vT+1}")
    A(f"v_xor_b32 v{vT+1}, v0, v{vT+1}")
    A(f"v_and_b32 v{vT+1}, 7, v{vT+1}")
    A(f"v_mul_u32_u24 v{vT}, 12288, v{vT}")
    A(f"v_lshl_add_u32 v{vT}, v{vT+1}, 4, v{vT}")
    A("s_waitcnt lgkmcnt(0)")
    A(f"s_cmp_eq_u32 s{sTY}, 1")
    A(f"s_cselect_b64 s[{sRO}:{sRO+1}], s[54:55], s[52:53]")
    A(f"s_cmp_eq_u32 s{sTY}, 2")
    A(f"s_cselect_b64 s[{sRO}:{sRO+1}], s[56:57], s[{sRO}:{sRO+1}]")
    srd(A, sRO, 640 * 12288)
    A(f"s_lshl_b32 s{sT0}, s{sG}, 2")
    A(f"s_add_u32 s{sT0}, s{sT0}, s{sHH}")
    A(f"s_mul_i32 s{sT0}, s{sT0}, 384")
    A(f"s_lshr_b32 s{sT1}, s{sKS}, 1")
    A(f"s_lshl_b32 s{sT1}, s{sT1}, 7")
    A(f"s_add_u32 s{sT0}, s{sT0}, s{sT1}")
    A(f"s_mul_i32 s{sT1}, s{sT2}, {8 * 12288}")
    A(f"s_add_u32 s{sT0}, s{sT0}, s{sT1}")
    A(f"s_lshr_b32 s{sLdsW}, s{sW}, 1")
    A(f"s_mul_i32 s{sLdsW}, s{sLdsW}, 40960")
    A(f"s_lshl_b32 s{sT1}, s{sT2}, 10")
    A(f"s_add_u32 m0, s{sLdsW}, s{sT1}")
    A("s_nop 0")
    for i in range(40):
        A(f"buffer_load_dwordx4 v{vT}, s[{sRO}:{sRO+3}], s{sT0} offen{' nt' if P['wnt'] else ''} lds")
        if i < 39:
            A(f"s_add_u32 m0, m0, {2048 + (40960 if i == 19 else 0)}")
            A(f"s_add_u32 s{sT0}, s{sT0}, {16 * 12288}")
    A(f"s_lshl_b32 s{sT0}, s{sU}, 10")
    A(f"s_add_u32 s{sT0}, s{sT0}, 8192")
    A(f"buffer_load_dwordx4 v[{vM}:{vM+3}], v{vL16}, s[{sX}:{sX+3}], s{sT0} offen")
    A(f"v_and_b32 v{vT+1}, 15, v0")
    A(f"v_lshrrev_b32 v{vT+2}, 4, v0")
    A(f"v_cmp_gt_u32 vcc, 8, v{vT+1}")
    A(f"v_mov_b32 v{vT+3}, 0xeeee")
    A(f"v_mov_b32 v{vT+4}, 0x4444")
    A(f"v_cndmask_b32 v{vIdx}, v{vT+3}, v{vT+4}, vcc")
    A(f"v_mov_b32 v{vPois}, -1")
    A(f"v_lshrrev_b32 v{vXg}, 2, v0")
    A(f"v_mul_u32_u24 v{vXg}, 1280, v{vXg}")
    A(f"v_sub_u32 v{vT+3}, 0, v{vT+2}")
    A(f"v_xor_b32 v{vT+3}, v0, v{vT+3}")
    A(f"v_and_b32 v{vT+3}, 3, v{vT+3}")
    A(f"v_lshl_add_u32 v{vXg}, v{vT+3}, 4, v{vXg}")
    A(f"v_lshrrev_b32 v{vT+3}, 2, v{vT+1}")
    A(f"v_sub_u32 v{vT+3}, 0, v{vT+3}")
    A(f"v_xor_b32 v{vT+3}, v{vT+2}, v{vT+3}")
    A(f"v_and_b32 v{vT+3}, 3, v{vT+3}")
    A(f"v_lshl_add_u32 v{vT+3}, v{vT+1}, 2, v{vT+3}")
    A(f"v_lshlrev_b32 v{vXrd}, 4, v{vT+3}")
    A(f"v_lshlrev_b32 v{vXsum}, 5, v{vT+3}")
    A(f"v_add_u32 v{vXsum}, 40960, v{vXsum}")
    A(f"v_lshrrev_b32 v{vT+3}, 2, v{vT+1}")
    A(f"v_and_b32 v{vT+4}, 1, v{vT+1}")
    A(f"v_lshlrev_b32 v{vT+4}, 4, v{vT+4}")
    A(f"v_mov_b32 v{vT+5}, 0x3f80")
    A(f"v_lshlrev_b32 v{vT+4}, v{vT+4}, v{vT+5}")
    for r in range(4):
        A(f"v_cmp_eq_u32 vcc, {r}, v{vT+3}")
        A("s_nop 1")
        A(f"v_cndmask_b32 v{vSel+r}, 0, v{vT+4}, vcc")
    A(f"s_lshl_b32 s{sT0}, s{sW}, 10")
    A(f"v_add_u32 v{vHld}, s{sT0}, v{vL16}")
    A(f"v_add_u32 v{vHw}, {MEML}, v{vHld}")
    A(f"v_add_u32 v{vHr}, {MEML}, v{vL16}")
    A(f"s_cmp_ge_u32 s{sU}, 40")
    A(f"s_cselect_b32 s{sT0}, 40, 0")
    A(f"s_sub_u32 s{sT0}, s{sU}, s{sT0}")
    A(f"s_lshr_b32 s{sPartBase}, s{sT0}, 2")
    A(f"s_lshl_b32 s{sPartBase}, s{sPartBase}, 14")
    A(f"s_and_b32 s{sT1}, s{sT0}, 3")
    A(f"s_lshl_b32 s{sT1}, s{sT1}, 11")
    A(f"s_add_u32 s{sPartBase}, s{sPartBase}, s{sT1}")
    A(f"s_add_u32 s{sPartBase}, s{sPartBase}, {PART}")
    A(f"v_and_b32 v{vT+3}, 7, v0")
    A(f"v_bfe_u32 v{vT+4}, v0, 4, 1")
    A(f"v_lshl_add_u32 v{vT+3}, v{vT+4}, 3, v{vT+3}")
    A(f"v_lshlrev_b32 v{vT+3}, 4, v{vT+3}")
    A(f"v_bfe_u32 v{vT+4}, v0, 3, 1")
    A(f"v_lshl_add_u32 v{vT+3}, v{vT+4}, 3, v{vT+3}")
    A(f"v_lshrrev_b32 v{vT+4}, 5, v0")
    A(f"v_lshl_add_u32 v{vT+3}, v{vT+4}, 2, v{vT+3}")
    A(f"s_lshl_b32 s{sT0}, s{sT0}, 8")
    A(f"s_cmp_ge_u32 s{sU}, 40")
    A(f"s_cselect_b32 s{sT0}, {OOB}, s{sT0}")
    A(f"v_add_u32 v{vMemSt}, s{sT0}, v{vT+3}")
    A(f"v_lshl_add_u32 v{vMemPo}, v0, 2, s{sT0}")
    A(f"v_and_b32 v{vT+3}, 31, v0")
    A(f"v_lshlrev_b32 v{vT+3}, 3, v{vT+3}")
    A(f"v_lshrrev_b32 v{vT+4}, 5, v0")
    A(f"v_lshl_add_u32 v{vT+3}, v{vT+4}, 13, v{vT+3}")
    A(f"s_lshl_b32 s{sT0}, s{sG}, 8")
    A(f"s_cmp_ge_u32 s{sU}, 40")
    A(f"s_cselect_b32 s{sT0}, {OOB}, s{sT0}")
    A(f"v_add_u32 v{vPartSt}, s{sT0}, v{vT+3}")
    A(f"v_mov_b32 v{vPois2}, -1")
    A(f"v_mov_b32 v{vPois2+1}, -1")
    A(f"v_bfe_u32 v{vT+3}, v0, 4, 1")
    A(f"v_lshrrev_b32 v{vT+4}, 5, v0")
    A(f"v_lshlrev_b32 v{vT+3}, 2, v{vT+3}")
    A(f"v_lshl_add_u32 v{vT+3}, v{vT+4}, 1, v{vT+3}")
    A(f"s_and_b32 s{sT0}, s{sKS}, 1")
    A(f"s_lshr_b32 s{sT1}, s{sKS}, 1")
    A(f"s_lshl_b32 s{sT1}, s{sT1}, 10")
    A(f"v_lshrrev_b32 v{vT+4}, 2, v{vT+1}")
    A(f"v_lshl_add_u32 v{vT+4}, v{vT+4}, 4, v{vT+3}")
    A(f"v_lshlrev_b32 v{vT+4}, 4, v{vT+4}")
    A(f"v_and_b32 v{vT+5}, 3, v{vT+1}")
    A(f"v_lshl_add_u32 v{vT+4}, v{vT+5}, 2, v{vT+4}")
    A(f"s_lshl_b32 s{sT2}, s{sT0}, 7")
    A(f"s_add_u32 s{sT2}, s{sT2}, s{sT1}")
    A(f"v_add_u32 v{vT+4}, s{sT2}, v{vT+4}")
    A(f"v_lshrrev_b32 v{vT+5}, 3, v{vT+1}")
    A(f"v_lshl_add_u32 v{vT+5}, v{vT+5}, 4, v{vT+3}")
    A(f"v_and_b32 v{vT+6}, 1, v{vT+1}")
    A(f"v_lshl_add_u32 v{vT+5}, v{vT+6}, 3, v{vT+5}")
    A(f"v_lshlrev_b32 v{vT+5}, 4, v{vT+5}")
    A(f"v_bfe_u32 v{vT+6}, v{vT+1}, 1, 2")
    A(f"v_lshl_add_u32 v{vT+5}, v{vT+6}, 2, v{vT+5}")
    A(f"s_lshl_b32 s{sT2}, s{sT0}, 9")
    A(f"s_add_u32 s{sT2}, s{sT2}, s{sT1}")
    A(f"v_add_u32 v{vT+5}, s{sT2}, v{vT+5}")
    A(f"v_lshl_add_u32 v{vT+6}, v0, 3, s{sT2}")
    A(f"v_and_b32 v{vT+7}, 15, v0")
    A(f"v_lshlrev_b32 v{vT+7}, 3, v{vT+7}")
    A(f"v_lshl_add_u32 v{vT+7}, v{vT+2}, 8, v{vT+7}")
    A(f"s_lshl_b32 s{sT2}, s{sT0}, 7")
    A(f"s_add_u32 s{sT2}, s{sT2}, s{sT1}")
    A(f"v_add_u32 v{vT+7}, s{sT2}, v{vT+7}")
    A(f"s_cmp_eq_u32 s{sTY}, 2")
    A(f"s_cselect_b64 vcc, -1, 0")
    A(f"v_cndmask_b32 v{vQkvSt}, v{vT+4}, v{vT+5}, vcc")
    A(f"v_cndmask_b32 v{vQkvPo}, v{vT+7}, v{vT+6}, vcc")
    A(f"v_cmp_eq_u32 vcc, 0, v0")
    A(f"v_mov_b32 v{vT+4}, {OOB}")
    A("s_nop 0")
    A(f"v_cndmask_b32 v{vFlagO}, v{vT+4}, v0, vcc")
    A(f"s_lshl_b32 s{sT0}, s{sG}, 2")
    A(f"s_add_u32 s{sT0}, s{sT0}, {DBG_NEAR}")
    A(f"v_mov_b32 v{vNearO}, s{sT0}")
    A(f"v_min_u32 v{vMkO}, {7 if P['gh'] else 9}, v0")
    A(f"v_lshlrev_b32 v{vMkO}, 2, v{vMkO}")
    A(f"s_lshl_b32 s{sMk}, s{sG}, 7")
    A(f"s_lshl_b32 s{sT0}, s{sR}, 2")
    A(f"s_add_u32 s{sMkW}, s{sMk}, s{sT0}")
    A(f"s_add_u32 s{sMkW}, s{sMkW}, {S1MARK}")
    A(f"s_cmp_eq_u32 s{sW}, 0")
    A(f"s_cselect_b32 s{sMkW}, s{sMkW}, {OOB}")
    A(f"s_add_u32 s{sMk}, s{sMk}, {S2MARK}")
    A(f"s_cmp_lt_u32 s{sW}, 2")
    A(f"s_mov_b32 s{sH2}, {OOB if P['h3oob'] else 0}")
    A(f"s_cselect_b32 s{sH2}, 8192, s{sH2}")
    A(f"s_mul_i32 s{sMemBase}, s{sG}, 40960")
    A(f"s_mul_i32 s{sT0}, s{sHH}, 3")
    A(f"s_add_u32 s{sT0}, s{sT0}, s{sTY}")
    A(f"s_mul_i32 s{sQkvBase}, s{sG}, 147456")
    A(f"s_mul_i32 s{sT1}, s{sT0}, 3072")
    A(f"s_add_u32 s{sQkvBase}, s{sQkvBase}, s{sT1}")
    A(f"s_add_u32 s{sQkvBase}, s{sQkvBase}, {QKVR}")
    A(f"s_mul_i32 s{sXrBase}, s{sG}, {XR_G}")
    A(f"s_lshl_b32 s{sT1}, s{sU}, 1")
    A(f"s_add_u32 s{sT1}, s{sT1}, s{sHH}")
    A(f"s_lshl_b32 s{sT1}, s{sT1}, 10")
    A(f"s_add_u32 s{sXrBase}, s{sXrBase}, s{sT1}")
    A(f"s_add_u32 s{sXrBase}, s{sXrBase}, {XR}")
    A(f"s_add_u32 s{sXrEnd}, s{sXrBase}, {XR_G}")
    A(f"s_mov_b32 s{sXr}, s{sXrBase}")
    A(f"s_lshl_b32 s{sXflag}, s{sG}, 9")
    A(f"s_lshl_b32 s{sT1}, s{sU}, 2")
    A(f"s_add_u32 s{sXflag}, s{sXflag}, s{sT1}")
    A(f"s_add_u32 s{sXflag}, s{sXflag}, {XFLAG}")
    A(f"v_bfe_u32 v{vT+3}, v0, 2, 2")
    A(f"v_lshl_add_u32 v{vT+4}, v{vT+2}, 3, v{vT+3}")
    A(f"v_lshlrev_b32 v{vT+4}, 7, v{vT+4}")
    A(f"v_and_b32 v{vT+5}, 1, v0")
    A(f"v_lshl_add_u32 v{vT+4}, v{vT+5}, 3, v{vT+4}")
    A(f"v_add_u32 v{vT+4}, s{sLdsW}, v{vT+4}")
    A(f"v_and_b32 v{vT+3}, 2, v{vT+3}")
    A(f"v_and_b32 v{vT+5}, 1, v{vT+2}")
    A(f"v_lshl_add_u32 v{vT+3}, v{vT+5}, 2, v{vT+3}")
    A(f"v_bfe_u32 v{vT+5}, v0, 1, 1")
    A(f"s_and_b32 s{sT0}, s{sW}, 1")
    A(f"s_lshl_b32 s{sT0}, s{sT0}, 2")
    A(f"v_or_b32 v{vT+5}, s{sT0}, v{vT+5}")
    A(f"v_xor_b32 v{vT+5}, v{vT+5}, v{vT+3}")
    A(f"v_xor_b32 v{vT+6}, 2, v{vT+5}")
    A(f"v_lshl_add_u32 v{vT+5}, v{vT+5}, 4, v{vT+4}")
    A(f"v_lshl_add_u32 v{vT+6}, v{vT+6}, 4, v{vT+4}")
    def trhalf(h):
        for kd in range(10 * h, 10 * h + 10):
            for t in range(2):
                for hf in range(2):
                    A(f"ds_read_b64_tr_b16 a[{80*t+4*kd+2*hf}:{80*t+4*kd+2*hf+1}], v{vT+5+t} offset:{(kd%10)*4096+hf*512}")
    A("s_waitcnt vmcnt(21)")
    A("s_barrier")
    trhalf(0)
    A(f"v_add_u32 v{vT+5}, 81920, v{vT+5}")
    A(f"v_add_u32 v{vT+6}, 81920, v{vT+6}")
    A("s_waitcnt lgkmcnt(0)")
    A("s_barrier")
    A(f"s_mul_i32 s{sXsrc}, s{sW}, 320")
    A(f"s_mul_i32 s{sLdsW}, s{sW}, 10240")
    A(f"s_mov_b32 s{sXbuf}, 0")
    def xdma():
        A(f"s_add_u32 m0, s{sLdsW}, s{sXbuf}")
        for i in range(5):
            for tt in range(2):
                A(f"s_add_u32 s{sT0}, s{sXsrc}, {tt * 20480 + i * 64}")
                A(f"buffer_load_dwordx4 v{vXg}, s[{sX}:{sX+3}], s{sT0} offen lds")
                if not (i == 4 and tt == 1):
                    A("s_add_u32 m0, m0, 1024")
        A(f"s_add_u32 s{sXsrc}, s{sXsrc}, 40960")
        A(f"s_sub_u32 s{sXbuf}, 40960, s{sXbuf}")
    xdma()
    A("s_waitcnt vmcnt(10)")
    A("s_barrier")
    trhalf(1)
    ostamp(A, 0, 1)
    A(f"s_mov_b32 s{sS}, -2")
    gen_locality(A, "L_s1_loc", "L_s1_glb", vT)

    for mode in ("loc", "glb"):
        sc = "" if mode == "loc" else " sc1"
        Lb, Ls3, Lh1, Lslow, Lcont, Lnox = [f"L_s1_{mode}_{x}" for x in ("bub", "s3", "h1", "slow", "cont", "nox")]
        def xrd(kd, tt):
            b = vXB3 + 8 * (kd % 3) + 4 * tt
            A(f"ds_read_b128 v[{b}:{b+3}], v{vXrd} offset:{(2*kd+tt)*1024}")
        def marks():
            A(f"s_add_u32 s{sT0}, s{sS}, 1")
            A(f"v_mov_b32 v{vT+2}, s{sT0}")
            A(f"v_add_u32 v{vT+3}, 2, v{vT+2}")
        def mark1():
            A(f"buffer_store_dword v{vT+2}, v{vFlagO}, {WSR}, s{sMkW} offen{sc}")
        Lpro = f"L_s1_{mode}_pro"
        align(A, P["al1"])
        A.label(f"L_s1_{mode}")
        A("s_waitcnt lgkmcnt(0)")
        A.label(Lpro)
        A("s_barrier")
        marks()
        xrd(0, 0); xrd(0, 1); xrd(1, 0); xrd(1, 1)
        A.label(Lb)
        if P["mk1"] == 0: mark1()
        stamp(A, 5)
        fstamp(A, 5, 250)
        def house():
            return [f"s_cmp_lt_i32 s{sS}, 1",
                f"s_cselect_b32 s{sMemP}, {OOB}, s{sMemP}",
                f"s_cselect_b32 s{sQkvP}, {OOB}, s{sQkvP}",
                f"s_cselect_b32 s{sPartP}, {OOB}, s{sPartP}",
                f"buffer_store_dword v{vPois}, v{vMemPo}, {WSR}, s{sMemP} offen{sc}",
                f"buffer_store_dwordx2 {v(vPois2,2)}, v{vQkvPo}, {WSR}, s{sQkvP} offen{sc}",
                f"buffer_store_dwordx2 {v(vPois2,2)}, v{vPartSt}, {WSR}, s{sPartP} offen sc1",
                f"buffer_load_dword v{vT+4}, v{vNearO}, s[{sDBG}:{sDBG+3}], 0 offen sc1",
                f"s_and_b32 s{sT1}, s{sS}, 3",
                f"s_mul_i32 s{sPartRd}, s{sT1}, {PART_SLOT}",
                f"s_add_u32 s{sPartRd}, s{sPartRd}, s{sPartBase}",
                f"s_mul_i32 s{sMemP}, s{sT1}, 10240",
                f"s_add_u32 s{sMemP}, s{sMemP}, s{sMemBase}",
                f"s_add_u32 s{sT1}, s{sS}, 3",
                f"s_and_b32 s{sT1}, s{sT1}, 3",
                f"s_mul_i32 s{sPartP}, s{sT1}, {PART_SLOT}",
                f"s_add_u32 s{sPartP}, s{sPartP}, s{sPartBase}",
                f"s_mul_i32 s{sQkvP}, s{sT1}, 36864",
                f"s_add_u32 s{sQkvP}, s{sQkvP}, s{sQkvBase}",
                f"s_add_u32 s{sT1}, s{sS}, 1",
                f"s_and_b32 s{sT1}, s{sT1}, 3",
                f"s_mul_i32 s{sMem0}, s{sT1}, 10240",
                f"s_add_u32 s{sMem0}, s{sMem0}, s{sMemBase}",
                f"s_add_u32 s{sMem1}, s{sMem0}, 4096",
                f"s_add_u32 s{sMem2}, s{sMem0}, s{sH2}",
                f"s_mul_i32 s{sQkv}, s{sT1}, 36864",
                f"s_add_u32 s{sQkv}, s{sQkv}, s{sQkvBase}"]
        Lxd = A.newlabel("xdone")
        A(f"s_cmp_ge_i32 s{sS}, {P['nseg'] - 2 if not P.get('x_nox') else 3}")
        A(f"s_cbranch_scc1 {Lnox}")
        fstamp(A, 6, 250)
        if P["prof"] in (3, 5): A("s_waitcnt lgkmcnt(0)")
        A(f"s_add_u32 m0, s{sLdsW}, s{sXbuf}")
        hk = house()
        for _ in range(4): A(hk.pop(0))
        A("s_waitcnt lgkmcnt(2)")
        early = P["dma_e"]
        dmak = list(range(early)) + list(range(P["dma0"], P["dma0"] + 10 - early))
        nd = 0
        for kd in range(20):
            cur = vXB3 + 8 * (kd % 3)
            n = 0
            for tt in range(2):
                for t in range(2):
                    acc = vXA + 4 * (2 * tt + t)
                    c = "0" if kd == 0 else v(acc, 4)
                    A(f"v_mfma_f32_16x16x32_bf16 {v(acc,4)}, {a(80*t+4*kd,4)}, {v(cur+4*tt,4)}, {c}" if not P.get("x_nomf") else "s_nop 1")
                    if n < 2 and kd < 18: xrd(kd + 2, n)
                    if kd in dmak:
                        if n == 0: A(f"s_add_u32 s{sT0}, s{sXsrc}, {(nd & 1) * 20480 + (nd >> 1) * 64}")
                        if n == 1 and hk: A(hk.pop(0))
                        if n == 2: A(f"buffer_load_dwordx4 v{vXg}, s[{sX}:{sX+3}], s{sT0} offen lds")
                        if n == 3: A("s_add_u32 m0, m0, 1024"); nd += 1
                    elif n < 3 and hk:
                        A(hk.pop(0))
                        if n == 2 and hk: A(hk.pop(0))
                    if n == 3 and kd < 19: A(f"s_waitcnt lgkmcnt({2 if kd < 18 else 0})")
                    n += 1
        assert nd == 10
        assert not hk
        fstamp(A, 7, 250)
        A(f"s_add_u32 s{sXsrc}, s{sXsrc}, 40960")
        A(f"s_sub_u32 s{sXbuf}, 40960, s{sXbuf}")
        A(f"v_sub_u32 v{vXrd}, v{vXsum}, v{vXrd}")
        A(f"s_mov_b32 s{sT0}, s{sXr}")
        A(f"s_add_u32 s{sXr}, s{sXr}, {XR_SLOT}")
        A(f"s_cmp_eq_u32 s{sXr}, s{sXrEnd}")
        A(f"s_cselect_b32 s{sXr}, s{sXrBase}, s{sXr}")
        for tt in range(2):
            for r in range(4):
                A(f"v_cvt_pk_bf16_f32 v{vXO+4*tt+r}, v{vXA+8*tt+r}, v{vXA+8*tt+4+r}")
            A(f"buffer_store_dwordx4 {v(vXO+4*tt,4)}, v{vL16}, {WSR}, s{sT0} offen offset:{1024*tt}{sc}")
        fstamp(A, 8, 250)
        fstamp(A, 9, 250)
        A(f"s_branch {Lxd}")
        A.label(Lnox)
        for x in house(): A(x)
        A.label(Lxd)
        stamp(A, 6)
        fstamp_collect(A, 11, 250)
        stamp_flush(A)
        A(f"s_add_u32 s{sS}, s{sS}, 1")
        if mode == "loc" and not P["gh"]: A(f"buffer_load_dword v{vT}, v{vMkO}, {WSR}, s{sMk} offen sc1")
        A("s_waitcnt vmcnt(0)")
        A(f"buffer_store_dword v{vT+3}, v{vFlagO}, {WSR}, s{sXflag} offen{sc}")
        if mode == "loc" and not P["gh"]: A(f"v_cmp_gt_u32 vcc, s{sS}, v{vT}")
        A(f"v_readfirstlane_b32 s{sT0}, v{vT+4}")
        A(f"s_cmp_eq_u32 s{sT0}, {2 if mode == 'loc' and P['near'] else 99}")
        A(f"s_cselect_b32 s{sT0}, 8192, 0")
        A(f"s_add_u32 s{sPartRd}, s{sPartRd}, s{sT0}")
        if P["gh"]: A(f"s_add_u32 s{sMk}, s{sT0}, {GHINT}")
        A(f"s_cmp_lt_i32 s{sS}, 0")
        A(f"s_cbranch_scc1 {Lpro}")
        A(f"s_cmp_eq_u32 s{sS}, {P['nseg']}")
        A("s_cbranch_scc1 L_s1_done")
        A(f"s_cmp_eq_u32 s{sS}, 0")
        A(f"s_cbranch_scc1 {Lh1}")
        if P.get("diag"):
            for st, ix in ((2, 2), (12, 3), (32, 4), (52, 5)):
                Ld = A.newlabel("dg")
                A(f"s_cmp_lg_u32 s{sS}, {st}")
                A(f"s_cbranch_scc1 {Ld}")
                A("s_mov_b64 s[84:85], vcc")
                dstamp(A, ix)
                A("s_mov_b64 vcc, s[84:85]")
                A.label(Ld)
        if mode != "loc": A("s_barrier")
        if mode == "loc":
            def miss(r):
                A(f"v_cmp_gt_u32 vcc, s{sS}, v{r}")
                if P["s3_miss"] == 0: return "s_cbranch_vccz"
                A(f"s_and_b32 s{sT0}, vcc_lo, 0x3ff")
                A(f"s_bcnt1_i32_b32 s{sT0}, s{sT0}")
                A(f"s_cmp_gt_u32 s{sT0}, {P['s3_miss']}")
                return "s_cbranch_scc0"
            Lg = A.newlabel("gate")
            if not P["gh"]: A(f"s_cbranch_vccz {Lg}")
            A(f"s_cmp_lg_u32 s{sW}, 0")
            A(f"s_cbranch_scc1 {Lg}")
            dense_poll(A, [vT + i for i in range(P["dp"])], lambda r: A(f"buffer_load_dword v{r}, v{vMkO}, {WSR}, s{sMk} offen sc1"), miss, 13)
            A.label(Lg)
            A("s_barrier")
        if P["s3_slp"] and mode == "loc": A(f"s_sleep {P['s3_slp']}")
        fstamp(A, 10, 250)
        def s3ld(b, so):
            for i in range(2):
                A(f"buffer_load_dwordx4 {v(b+4*i,4)}, v{vL16}, {WSR}, s{so} offen offset:{1024*i} sc1")
        def s3sum(b, later):
            A(f"s_waitcnt vmcnt({1+later})")
            A(f"v_mfma_f32_16x16x32_bf16 {v(vT,4)}, {v(vSel,4)}, {v(b,4)}, 0")
            A(f"s_waitcnt vmcnt({later})")
            A(f"v_mfma_f32_16x16x32_bf16 {v(vT,4)}, {v(vSel,4)}, {v(b+4,4)}, {v(vT,4)}")
            A.nop(8)
            A(f"v_cmp_u_f32 vcc, v{vT}, v{vT+1}")
            A(f"v_cvt_pk_bf16_f32 v{vT+4}, v{vT}, v{vT+1}")
        if P["s3_two"]:
            Lsec = A.newlabel("s3b")
            stamp(A, 0)
            fstamp(A, 0, 250)
            s3ld(vPt, sPartRd)
            A(f"s_xor_b32 s{sT1}, s{sPartRd}, 8192")
            A(f"s_sleep {P['s3_two']}")
            s3ld(vPt + 8, sT1)
            s3sum(vPt, 2)
            A(f"s_cbranch_vccz {Lcont}")
            s3sum(vPt + 8, 0)
            A(f"s_cbranch_vccz {Lcont}")
        A.label(Ls3)
        stamp(A, 0)
        fstamp(A, 0, 250)
        s3ld(vPt, sPartRd)
        s3sum(vPt, 0)
        A(f"s_cbranch_vccnz {Lslow}")
        A.label(Lcont)
        A(f"buffer_store_dword v{vT+4}, v{vMemSt}, {WSR}, s{sMem0} offen{sc}")
        stamp(A, 1)
        fstamp(A, 1, 250)
        if P.get("x_ack") == 2: A("s_waitcnt vmcnt(0)")
        if P.get("memdbg"):
            A(f"s_mul_i32 s{sT0}, s{sS}, 10240")
            A(f"s_add_u32 s{sT0}, s{sT0}, {MEMDBG}")
            A(f"buffer_store_dword v{vT+4}, v{vMemSt}, {WSR}, s{sT0} offen")
        def h1ld(b, own):
            for i in range(len(own)):
                A(f"buffer_load_dwordx4 {v(b+4*i,4)}, v{vHld}, {WSR}, s{(sMem0, sMem1, sMem2)[i]} offen sc1")
        def h1chk(b, own, later):
            n = len(own); regs = list(range(b, b + 4 * n)); first = True
            for i in range(n):
                A(f"s_waitcnt vmcnt({n - 1 - i + later})")
                A(f"ds_write_b128 v{vHw}, {v(b+4*i,4)} offset:{4096*i}")
                avail = lambda k: len(regs) >= k and regs[k - 1] < b + 4 * (i + 1)
                if first: A(f"v_max3_u32 v{vMx}, v{regs[0]}, v{regs[1]}, v{regs[2]}"); regs = regs[3:]; first = False
                while avail(2): A(f"v_max3_u32 v{vMx}, v{regs[0]}, v{regs[1]}, v{vMx}"); regs = regs[2:]
            A(f"v_max_u32 v{vMx}, v{regs[0]}, v{vMx}")
            A(f"v_cmp_eq_u32 vcc, -1, v{vMx}")
            A("s_waitcnt lgkmcnt(0)")
        def smf2(src, j):
            A(f"v_smfmac_f32_16x16x64_bf16 {v(vA,4)}, {v(src,4)}, {a(8*j,8)}, v{vIdx}")
            A(f"v_smfmac_f32_16x16x64_bf16 {v(vA+4,4)}, {v(src,4)}, {a(80+8*j,8)}, v{vIdx}")
        if P["h1_slp"]: A(f"s_sleep {P['h1_slp']}")
        A.label(Lh1)
        for w in range(3):
            A(f"s_cmp_eq_u32 s{sW}, {w}")
            A(f"s_cbranch_scc1 {Lh1}_{w}")
        for w in (3, 0, 1, 2):
            own = [j for j in (w, w + 4, w + 8) if j < 10]
            rest = [j for j in range(10) if j not in own]
            n = len(own)
            Lretry, Lhok, LhokB, Lrest = [f"L_s1_{mode}_{x}_{w}" for x in ("h1retry", "h1ok", "h1okB", "h1rest")]
            def gather(b):
                A("s_barrier")
                fstamp(A, 3, 250)
                if P["prof"] in (3, 5): A("s_waitcnt lgkmcnt(0)")
                for j in rest: A(f"ds_read_b128 {v(vM+4*j,4)}, v{vHr} offset:{1024*j}")
                for i, j in enumerate(own): smf2(b + 4 * i, j)
            A.label(f"{Lh1}_{w}")
            h1ld(vH, own)
            fstamp(A, 2, 250)
            for r in range(8):
                A(f"v_mov_b32 v{vA+r}, 0")
            A(f"s_sleep {P['h1_two']}")
            h1ld(vH2, own)
            h1chk(vH, own, n)
            A(f"s_cbranch_vccnz {Lretry}")
            A.label(Lhok)
            gather(vH)
            A.label(Lrest)
            for i, j in enumerate(rest):
                A(f"s_waitcnt lgkmcnt({len(rest) - 1 - i})")
                smf2(vM + 4 * j, j)
            xrd(0, 0); xrd(0, 1); xrd(1, 0); xrd(1, 1)
            marks()
            A(f"v_permlane32_swap_b32 v{vA}, v{vA+2}")
            A(f"v_permlane32_swap_b32 v{vA+1}, v{vA+3}")
            A(f"v_permlane32_swap_b32 v{vA+4}, v{vA+6}")
            A(f"v_permlane32_swap_b32 v{vA+5}, v{vA+7}")
            A(f"v_add_f32 v{vA}, v{vA}, v{vA+2}")
            A(f"v_add_f32 v{vA+4}, v{vA+4}, v{vA+6}")
            A(f"v_add_f32 v{vA+1}, v{vA+1}, v{vA+3}")
            A(f"v_add_f32 v{vA+5}, v{vA+5}, v{vA+7}")
            A(f"v_cvt_pk_bf16_f32 v{vT}, v{vA}, v{vA+4}")
            A(f"buffer_store_dword v{vT}, v{vQkvSt}, {WSR}, s{sQkv} offen{sc}")
            A(f"v_cvt_pk_bf16_f32 v{vT+1}, v{vA+1}, v{vA+5}")
            A(f"buffer_store_dword v{vT+1}, v{vQkvSt}, {WSR}, s{sQkv} offen offset:16{sc}")
            stamp(A, 4)
            fstamp(A, 4, 250)
            A(f"s_branch {Lb}")
            A.label(Lretry)
            stamp(A, 3)
            budget_check(A, 3)
            h1ld(vH, own)
            h1chk(vH2, own, n)
            A(f"s_cbranch_vccz {LhokB}")
            h1ld(vH2, own)
            h1chk(vH, own, n)
            A(f"s_cbranch_vccz {Lhok}")
            A(f"s_branch {Lretry}")
            A.label(LhokB)
            gather(vH2)
            A(f"s_branch {Lrest}")
        A.label(Lslow)
        A(f"v_max3_u32 v{vMx}, v{vPt}, v{vPt+1}, v{vPt+2}")
        for i in range(3, 7, 2):
            A(f"v_max3_u32 v{vMx}, v{vPt+i}, v{vPt+i+1}, v{vMx}")
        A(f"v_max_u32 v{vMx}, v{vPt+7}, v{vMx}")
        A(f"v_cmp_eq_u32 vcc, -1, v{vMx}")
        A(f"v_min_u32 v{vT+4}, -2, v{vT+4}")
        A(f"s_cbranch_vccz {Lcont}")
        budget_check(A, 2)
        A(f"s_branch {Ls3}")

    A.label("L_s1_done")
    dstamp(A, 6)
    A(f"s_cmp_lg_u32 s{sW}, 0")
    A("s_cbranch_scc1 L_end")
    A("s_cmp_ge_u32 s2, 80")
    A("s_cbranch_scc1 L_end")
    A(f"s_add_u32 s74, s2, {20 * (P['nseg'] - 4)}")
    A("s_mov_b32 s79, 0")
    A("s_mov_b32 s32, 0")
    A("s_branch L_mixent")

def gen_s2(A):
    sJ = 30
    sQkv, sQkvBase, sPartW, sPartP, sPartBase, sXk, sXv, sXrBase, sXrEnd = 31, 32, 33, 34, 35, 36, 37, 38, 39
    sPx, sPxBase, sXp, sXpF, sXfl, sMark, sMk1, sC, sNeed = 40, 41, 42, 43, 44, 45, 46, 47, 48
    sQkv1, sQkv2 = 49, 50
    sXk1, sXk2, sXv1, sXv2 = 51, 52, 53, 54
    sLo = 56
    sSt0, sSt1, sSt2, sSt3 = 58, 59, 88, 89
    vL16, vKmO, vIdx, vRedW, vRedR, vPartO, vL8, vFlagO, vXflO, vProbe, vRed2R = 1, 2, 3, 4, 5, 6, 7, 8, 9, 10, 11
    vPois = 12
    vT = 16
    vQ, vKM, vVM = 32, 44, 56
    vFl, vMx, vMark = 68, 69, 98
    vOne32, vOne16 = 70, 74
    vS, vSM, vW = 76, 92, 96
    vVA, vF, vDen, vPb = 100, 116, 132, 136
    vVOM2 = (142, 228)
    vRed2W, vXfv, vGhO = 99, 150, 151
    sGh = 55
    fin_parts = {}
    vVOX, vXA, vPX = 152, 184, 216
    aKX, aVX = 96, 144
    vXOUT = 24
    RED, RED2 = 98304, 106496
    c = (192 ** -0.5) * math.log2(math.e)
    A.label("L_s2")
    A(f"s_sub_u32 s{sJ}, s{sR}, 18")
    A(f"s_load_dwordx2 s[{sRO}:{sRO+1}], s[0:1], 40")
    A(f"v_lshlrev_b32 v{vL16}, 4, v0")
    A(f"v_lshrrev_b32 v{vT}, 3, v0")
    A(f"v_mul_u32_u24 v{vT}, 1280, v{vT}")
    A(f"v_and_b32 v{vT+1}, 7, v0")
    A(f"v_lshl_add_u32 v{vT}, v{vT+1}, 4, v{vT}")
    A(f"s_lshl_b32 s{sT0}, s{sG}, 2")
    A(f"s_add_u32 s{sT0}, s{sT0}, s{sW}")
    A(f"s_mul_i32 s{sT0}, s{sT0}, {192 * 1280}")
    A(f"s_lshl_b32 s{sT1}, s{sJ}, 7")
    A(f"s_add_u32 s{sT0}, s{sT0}, s{sT1}")
    A(f"s_mul_i32 s{sT2}, s{sW}, 24576")
    A(f"s_mov_b32 m0, s{sT2}")
    A("s_waitcnt lgkmcnt(0)")
    srd(A, sRO, 6144 * 1280)
    for _ in range(P["s2_dly"]): A("s_sleep 32")
    for i in range(24):
        A(f"buffer_load_dwordx4 v{vT}, s[{sRO}:{sRO+3}], s{sT0} offen{' nt' if P['wnt'] else ''} lds")
        if i < 23:
            A("s_add_u32 m0, m0, 1024")
            A(f"s_add_u32 s{sT0}, s{sT0}, {8 * 1280}")
    A(f"v_and_b32 v{vT+1}, 15, v0")
    A(f"v_lshrrev_b32 v{vT+2}, 4, v0")
    A(f"v_cmp_gt_u32 s[{sLo}:{sLo+1}], 8, v{vT+1}")
    A(f"v_mov_b32 v{vT+3}, 0xeeee")
    A(f"v_mov_b32 v{vT+4}, 0x4444")
    A(f"v_cndmask_b32 v{vIdx}, v{vT+3}, v{vT+4}, s[{sLo}:{sLo+1}]")
    for r in range(4): A(f"v_mov_b32 v{vPois+r}, -1")
    A(f"v_lshlrev_b32 v{vL8}, 3, v0")
    A(f"v_mov_b32 v{vT+3}, 0x3f803f80")
    for r in range(4): A(f"v_mov_b32 v{vOne32+r}, v{vT+3}")
    A(f"v_cmp_gt_u32 vcc, 32, v0")
    A("s_nop 1")
    for r in range(2): A(f"v_cndmask_b32 v{vOne16+r}, 0, v{vT+3}, vcc")
    A(f"s_lshl_b32 s{sT0}, s{sW}, 11")
    A(f"s_add_u32 s{sT0}, s{sT0}, {RED}")
    A(f"v_lshrrev_b32 v{vT+3}, 1, v0")
    A(f"v_and_b32 v{vT+3}, 8, v{vT+3}")
    A(f"v_xor_b32 v{vT+3}, v0, v{vT+3}")
    A(f"v_lshl_add_u32 v{vRedW}, v{vT+3}, 4, s{sT0}")
    A(f"v_and_b32 v{vT+3}, 15, v0")
    A(f"v_bfe_u32 v{vT+4}, v0, 3, 2")
    A(f"v_lshl_add_u32 v{vT+3}, v{vT+4}, 4, v{vT+3}")
    A(f"s_lshr_b32 s{sT1}, s{sW}, 1")
    A(f"s_lshl_b32 s{sT1}, s{sT1}, 3")
    A(f"v_xor_b32 v{vT+3}, s{sT1}, v{vT+3}")
    A(f"s_and_b32 s{sT0}, s{sW}, 1")
    A(f"s_lshl_b32 s{sT0}, s{sT0}, 10")
    A(f"s_add_u32 s{sT0}, s{sT0}, {RED}")
    A(f"v_lshl_add_u32 v{vRedR}, v{vT+3}, 4, s{sT0}")
    A(f"s_lshl_b32 s{sT0}, s{sW}, 11")
    A(f"s_add_u32 s{sT0}, s{sT0}, {RED2}")
    A(f"v_add_u32 v{vRed2R}, s{sT0}, v{vL16}")
    A(f"s_lshl_b32 s{sT0}, s{sW}, 13")
    A(f"s_add_u32 s{sT0}, s{sT0}, {RED2}")
    A(f"v_add_u32 v{vRed2W}, s{sT0}, v{vL16}")
    A(f"v_and_b32 v{vT+4}, 7, v0")
    A(f"v_bfe_u32 v{vT+5}, v0, 4, 1")
    A(f"v_lshl_add_u32 v{vT+4}, v{vT+5}, 3, v{vT+4}")
    A(f"v_lshlrev_b32 v{vT+4}, 4, v{vT+4}")
    A(f"v_and_b32 v{vT+5}, 8, v0")
    A(f"v_add_u32 v{vT+4}, v{vT+5}, v{vT+4}")
    A(f"v_lshrrev_b32 v{vT+5}, 5, v0")
    A(f"v_lshl_add_u32 v{vPartO}, v{vT+5}, 13, v{vT+4}")
    A(f"v_mov_b32 v{vT+3}, {OOB}")
    A(f"v_cmp_eq_u32 vcc, 0, v0")
    A("s_nop 1")
    A(f"v_cndmask_b32 v{vFlagO}, v{vT+3}, v0, vcc")
    A(f"v_min_u32 v{vXflO}, 11, v0")
    A(f"v_lshlrev_b32 v{vXflO}, 2, v{vXflO}")
    A(f"v_min_u32 v{vProbe}, 17, v0")
    A(f"v_lshlrev_b32 v{vProbe}, 2, v{vProbe}")
    A(f"s_mul_i32 s{sQkvBase}, s{sG}, 147456")
    A(f"s_mul_i32 s{sT0}, s{sW}, 9216")
    A(f"s_add_u32 s{sQkvBase}, s{sQkvBase}, s{sT0}")
    A(f"s_add_u32 s{sQkvBase}, s{sQkvBase}, {QKVR}")
    A(f"s_lshl_b32 s{sPartBase}, s{sJ}, 14")
    A(f"s_lshl_b32 s{sT0}, s{sW}, 11")
    A(f"s_add_u32 s{sPartBase}, s{sPartBase}, s{sT0}")
    A(f"s_lshl_b32 s{sT0}, s{sG}, 8")
    A(f"s_add_u32 s{sPartBase}, s{sPartBase}, s{sT0}")
    A(f"s_add_u32 s{sPartBase}, s{sPartBase}, {PART}")
    A(f"s_mul_i32 s{sXrBase}, s{sG}, {XR_G}")
    A(f"s_mul_i32 s{sT0}, s{sW}, {XR_HEAD}")
    A(f"s_add_u32 s{sXrBase}, s{sXrBase}, s{sT0}")
    A(f"s_add_u32 s{sXrBase}, s{sXrBase}, {0x5000000 if P.get('x_fixkv') else XR}")
    A(f"s_add_u32 s{sXrEnd}, s{sXrBase}, {XR_G}")
    A(f"s_mul_i32 s{sPxBase}, s{sG}, 49152")
    A(f"s_mul_i32 s{sT0}, s{sW}, 3072")
    A(f"s_add_u32 s{sPxBase}, s{sPxBase}, s{sT0}")
    A(f"s_add_u32 s{sPxBase}, s{sPxBase}, {PXR}")
    A(f"s_lshl_b32 s{sXp}, s{sJ}, 15")
    A(f"s_lshl_b32 s{sT0}, s{sG}, 12")
    A(f"s_add_u32 s{sXp}, s{sXp}, s{sT0}")
    A(f"s_lshl_b32 s{sT0}, s{sW}, 10")
    A(f"s_add_u32 s{sXp}, s{sXp}, s{sT0}")
    A(f"s_add_u32 s{sXp}, s{sXp}, {XPART}")
    A(f"s_lshl_b32 s{sXpF}, s{sJ}, 7")
    A(f"s_lshl_b32 s{sT0}, s{sG}, 4")
    A(f"s_add_u32 s{sXpF}, s{sXpF}, s{sT0}")
    A(f"s_lshl_b32 s{sT0}, s{sW}, 2")
    A(f"s_add_u32 s{sXpF}, s{sXpF}, s{sT0}")
    A(f"s_add_u32 s{sXpF}, s{sXpF}, {XPFLAG}")
    A(f"s_lshl_b32 s{sXfl}, s{sG}, 9")
    A(f"s_mul_i32 s{sT0}, s{sW}, 72")
    A(f"s_add_u32 s{sXfl}, s{sXfl}, s{sT0}")
    A(f"s_add_u32 s{sXfl}, s{sXfl}, {XFLAG + 24}")
    A(f"s_lshl_b32 s{sMk1}, s{sG}, 7")
    A(f"s_lshl_b32 s{sT0}, s{sJ}, 2")
    A(f"s_add_u32 s{sMark}, s{sMk1}, s{sT0}")
    A(f"s_add_u32 s{sMark}, s{sMark}, {S2MARK}")
    A(f"s_cmp_eq_u32 s{sW}, 0")
    A(f"s_cselect_b32 s{sMark}, s{sMark}, {OOB}")
    A(f"s_add_u32 s{sMk1}, s{sMk1}, {S1MARK}")
    A(f"s_lshl_b32 s{sGh}, s{sG}, 2")
    A(f"s_add_u32 s{sGh}, s{sGh}, {GHINT}")
    A(f"s_lshl_b32 s{sT0}, s{sJ}, 2")
    A(f"s_add_u32 s{sT0}, s{sT0}, s{sW}")
    A(f"s_cmp_eq_u32 s{sT0}, {4 * P['gh_j']}")
    A(f"s_cselect_b32 s{sGh}, s{sGh}, {OOB}")
    A(f"v_lshlrev_b32 v{vT+4}, 13, v0")
    A(f"v_cmp_gt_u32 vcc, 2, v0")
    A(f"v_mov_b32 v{vT+5}, {OOB}")
    A("s_nop 0")
    A(f"v_cndmask_b32 v{vGhO}, v{vT+5}, v{vT+4}, vcc")
    A(f"s_mov_b32 s{sC}, {f2u(c):#x}")
    A(f"v_bfe_u32 v{vT+3}, v0, 3, 1")
    A(f"v_bfe_u32 v{vT+4}, v0, 2, 1")
    A(f"v_lshl_add_u32 v{vT+3}, v{vT+4}, 4, v{vT+3}")
    A(f"v_lshl_add_u32 v{vT+3}, v{vT+2}, 2, v{vT+3}")
    A(f"v_lshlrev_b32 v{vT+3}, 7, v{vT+3}")
    A(f"v_and_b32 v{vT+4}, 3, v0")
    A(f"v_lshl_add_u32 v{vT+3}, v{vT+4}, 3, v{vT+3}")
    A(f"v_add_u32 v{vT+3}, s{sT2}, v{vT+3}")
    for ks in range(6):
        A(f"s_waitcnt vmcnt({24 - 4 * (ks + 1)})")
        for ct in range(4):
            for hf in range(2):
                A(f"ds_read_b64_tr_b16 a[{24*ct+4*ks+2*hf}:{24*ct+4*ks+2*hf+1}], v{vT+3} offset:{ks*4096+hf*256+ct*32}")
    A("s_waitcnt lgkmcnt(0)")
    ostamp(A, 0, 1)
    def xflag_wait(have_loaded):
        L, Lok = A.newlabel("xfl"), A.newlabel("xflok")
        if have_loaded:
            A(f"v_cmp_gt_u32 vcc, s{sNeed}, v{vFl}")
            A(f"s_cbranch_vccz {Lok}")
        A.label(L)
        A(f"buffer_load_dword v{vFl}, v{vXflO}, {WSR}, s{sXfl} offen sc1")
        budget_check(A, 4)
        A("s_waitcnt vmcnt(0)")
        A(f"v_cmp_gt_u32 vcc, s{sNeed}, v{vFl}")
        A(f"s_cbranch_vccnz {L}")
        A.label(Lok)
    def xload(dst, t, ks, so):
        off = ks * 2048 + t * 1024
        A(f"buffer_load_dwordx4 {a(dst + 4 * (6 * t + ks), 4)}, v{vL16}, {WSR}, s{so[off // 4096]} offen offset:{off % 4096} sc1")
    gen_locality(A, None, None, vT)
    if P["touch"]:
        A(f"s_lshl_b32 s{sT1}, s{sJ}, 2")
        A(f"s_add_u32 s{sT1}, s{sT1}, s{sW}")
        for base, per_g, n in ((XR, XR_G, 15),) * (P['touch'] == 2) + ((QKVR, 147456, 4), (PXR, 49152, 2), (MEMR, 40960, 1)):
            A(f"s_mul_i32 s{sT0}, s{sG}, {per_g}")
            A(f"s_mul_i32 s{sT2}, s{sT1}, {n * 1024}")
            A(f"s_min_u32 s{sT2}, s{sT2}, {per_g - n * 1024}")
            A(f"s_add_u32 s{sT0}, s{sT0}, s{sT2}")
            A(f"s_add_u32 s{sT0}, s{sT0}, {base}")
            for i in range(n):
                if i and i % 4 == 0: A(f"s_add_u32 s{sT0}, s{sT0}, 4096")
                A(f"buffer_load_dwordx4 {v(vQ,4)}, v{vL16}, {WSR}, s{sT0} offen offset:{1024*(i%4)} sc1")
    A(f"s_mov_b32 s{sNeed}, 1")
    xflag_wait(False)
    A(f"s_add_u32 s{sXv}, s{sXrBase}, 24576")
    A(f"s_add_u32 s{sXv1}, s{sXv}, 4096")
    A(f"s_add_u32 s{sXv2}, s{sXv}, 8192")
    for ks in range(6):
        for t in range(2): xload(aVX, t, ks, (sXv, sXv1, sXv2))
    A(f"s_mov_b32 s{sXk}, s{sXrBase}")
    A(f"s_mov_b32 s{sS}, -1")
    for r in (sSt1,): A(f"s_mov_b32 s{r}, {OOB}")
    A(f"v_mov_b32 v{vXfv}, 0")
    A("s_waitcnt vmcnt(0)")

    Lbub, Latt, Lretry, Lnost, Lnox = "L_s2_bub", "L_s2_att", "L_s2_retry", "L_s2_nost", "L_s2_nox"
    for par in range(2):
        voxc = vVOX + 16 * par
        voxn = vVOX + 16 * (1 - par)
        vomc, vomo = vVOM2[par], vVOM2[1 - par]
        vVOM = vomc
        sfx = f"_{par}"
        if par == 0:
            A(f"s_branch {Lbub}_1")
        align(A, P["al2"])
        A.label(f"L_s2_top{sfx}")
        def miss(r):
            A(f"v_cmp_ge_i32 vcc, s{sS}, v{r}")
            if P["h2_miss"] == 0: return "s_cbranch_vccz"
            A(f"s_and_b32 s{sT0}, vcc_lo, 0x3ffff")
            A(f"s_bcnt1_i32_b32 s{sT0}, s{sT0}")
            A(f"s_cmp_gt_u32 s{sT0}, {P['h2_miss']}")
            return "s_cbranch_scc0"
        Lg = A.newlabel("gate")
        A(f"s_cmp_lg_u32 s{sW}, 0")
        A(f"s_cbranch_scc1 {Lg}")
        dense_poll(A, [vT + i for i in range(P["dp"])], lambda r: A(f"buffer_load_dword v{r}, v{vProbe}, {WSR}, s{sMk1} offen sc1"), miss, 5)
        A.label(Lg)
        A("s_barrier")
        A.label(Latt + sfx)
        stamp(A, 0, 252)
        fstamp(A, 0, 252)
        fill = [f"v_mov_b32 v{vVA+r}, 0" for r in range(16)] + [f"s_add_u32 s{sT0}, s{sS}, 1", f"v_mov_b32 v{vMark}, s{sT0}",
                f"v_mov_b32 v{vMx}, 0", f"v_mov_b32 v{vW}, 0xff7fffff", f"v_mov_b32 v{vW+1}, 0xff7fffff"]
        lds_ = [f"buffer_load_dwordx4 {v(base+4*j,4)}, v{vL16}, {WSR}, s{so} offen offset:{1024*j} sc1"
                for base, so in ((vQ, sQkv), (vKM, sQkv1), (vVM, sQkv2)) for j in range(3)]
        NI = P.get("h2_first", 6)
        issued = 0
        for x in lds_[:NI]:
            A(x); issued += 1
            for _ in range(4):
                if fill: A(fill.pop(0))
        for x in fill: A(x)
        def more(n=1):
            nonlocal issued
            for _ in range(n):
                if issued < len(lds_):
                    A(lds_[issued]); issued += 1
        def need(i): A(f"s_waitcnt vmcnt({issued - 1 - i})")
        def vslot():
            nonlocal issued
            if len(vpos) < NVC and NVC > 3:
                e = vcrit[len(vpos)]
                xload(aVX, e[0], e[1], (sXv, sXv1, sXv2))
                vpos[e] = issued; issued += 1
            else: A("s_nop 0")
        NVC = P["nvc"]
        vall = [(t, ks) for ks in range(6) for t in range(2)]
        vcrit = vall[:NVC]
        vpos = {}
        xoq = [f"buffer_store_dwordx4 {v(vXOUT,4)}, v{vL16}, {WSR}, s{sSt1} offen sc1" if not P.get("x_noxout") else f"buffer_store_dword v{vXOUT}, v{vFlagO}, {WSR}, s{sMark} offen offset:64"]
        xo_after = [xoq.pop(0)] if P["xo_pos"] == 1 else []
        def vmore():
            nonlocal issued
            if xoq:
                A(xoq.pop(0)); issued += 1
            elif len(vpos) < NVC:
                e = vcrit[len(vpos)]
                xload(aVX, e[0], e[1], (sXv, sXv1, sXv2))
                vpos[e] = issued; issued += 1
        def chk(r0): return f"v_max3_u32 v{vMx}, v{r0}, v{r0+1}, v{vMx}"
        DPP = "row_ror:8 row_mask:0xf bank_mask:"
        for j in range(3):
            need(j)
            if j == 0: fstamp(A, 1, 252)
            k = 0
            for t in range(2):
                for pr in range(2):
                    acc = vS + 4 * (2 * t + pr)
                    cc = "0" if j == 0 else v(acc, 4)
                    A(f"v_mfma_f32_16x16x32_bf16 {v(acc,4)}, {a(aKX+4*(6*t+2*j+pr),4)}, {v(vQ+4*j,4)}, {cc}")
                    if k < 2: A(chk(vQ + 4 * j + 2 * k))
                    if k == 2: more()
                    k += 1
        more(99)
        smf = [f"v_smfmac_f32_16x16x64_bf16 {v(vVA+4*ct,4)}, {v(vVM+4*j,4)}, {a(24*ct+8*j,8)}, v{vIdx}" for j in range(3) for ct in range(4)]
        chks = [chk(vVM + 2 * i) for i in range(6)]
        vals = [vS + r for r in range(4)] + [vW, vW + 1]
        vm, vt2 = vT, vT + 1
        xa = [f"v_add_f32_dpp v{vS+r}, v{vS+4+r}, v{vS+r} {DPP}0xf" for r in range(4)] + [f"v_add_f32_dpp v{vS+r}, v{vS+8+r}, v{vS+12+r} {DPP}0xc" for r in range(4)]
        def smm(j):
            need(3 + j)
            A(f"v_mfma_f32_16x16x32_bf16 {v(vSM,4)}, {v(vKM+4*j,4)}, {v(vQ+4*j,4)}, {'0' if j == 0 else v(vSM,4)}")
            A(chk(vKM + 4 * j)); A(chk(vKM + 4 * j + 2))
        smm(0); smm(1)
        for x in xa[:4]: A(x)
        smm(2)
        fstamp(A, 2, 252)
        A(f"v_cmp_eq_u32 vcc, -1, v{vMx}")
        for x in xa[4:]: A(x)
        A(f"v_max3_f32 v{vm}, v{vals[0]}, v{vals[1]}, v{vals[2]}")
        A(f"v_permlane32_swap_b32 v{vSM}, v{vSM+1}")
        A(f"v_permlane32_swap_b32 v{vSM+2}, v{vSM+3}")
        need(6)
        fstamp(A, 3, 252)
        A(smf[0])
        A(f"v_add_f32_dpp v{vW}, v{vSM+1}, v{vSM} {DPP}0x3")
        A(f"v_add_f32_dpp v{vW+1}, v{vSM+3}, v{vSM+2} {DPP}0x3")
        A(smf[1])
        A(f"v_max3_f32 v{vm}, v{vals[3]}, v{vals[4]}, v{vm}")
        A(f"v_max_f32 v{vm}, v{vals[5]}, v{vm}")
        A(smf[2])
        A(f"s_cbranch_vccnz {Lretry}{sfx}")
        A(f"v_max_f32_dpp v{vm}, v{vm}, v{vm} {DPP}0xf")
        A(f"v_mov_b32 v{vt2}, v{vm}")
        hint = f"buffer_store_dword v{vMark}, v{vGhO}, {WSR}, s{sGh} offen sc1"
        A(smf[3])
        if P["gh"] == 1: A(hint); issued += 1
        else: vslot()
        A(f"v_permlane32_swap_b32 v{vm}, v{vt2}")
        A(f"v_max_f32 v{vm}, v{vm}, v{vt2}")
        A(f"v_mov_b32 v{vt2}, v{vm}")
        need(7)
        A(smf[4])
        A(f"v_permlane16_swap_b32 v{vm}, v{vt2}")
        A(f"v_max_f32 v{vm}, v{vm}, v{vt2}")
        A(smf[5])
        A(f"v_mul_f32 v{vm}, s{sC}, v{vm}")
        fm = [f"v_fma_f32 v{x}, v{x}, s{sC}, -v{vm}" for x in vals]
        ex = [f"v_exp_f32 v{x}, v{x}" for x in vals]
        A(fm[0])
        A(smf[6]); A(fm[1]); A(fm[2])
        A(smf[7]); A(fm[3]); need(8)
        if P["xo_pos"] == 2: vmore()
        if P["gh"] == 2: A(hint); issued += 1
        A(smf[8]); A(ex[0])
        A(smf[9]); A(ex[1])
        A(smf[10]); A(ex[2])
        A(smf[11]); A(ex[3])
        if P["gh"] == 3: A(hint); issued += 1
        A(f"v_cvt_pk_bf16_f32 v{vPb}, v{vals[0]}, v{vals[1]}")
        A(f"v_cvt_pk_bf16_f32 v{vPb+1}, v{vals[2]}, v{vals[3]}")
        A(fm[4])
        A(f"v_mov_b32_dpp v{vPb+2}, v{vPb} {DPP}0xf")
        A(f"v_mov_b32_dpp v{vPb+3}, v{vPb+1} {DPP}0xf")
        A(fm[5]); A(ex[4])
        def fin32(ct): A(f"v_mfma_f32_16x16x32_bf16 {v(vF+4*ct,4)}, {v(voxc+4*ct,4)}, {v(vPb,4)}, 0")
        def fin16(ct): A(f"v_mfma_f32_16x16x16_bf16 {v(vF+4*ct,4)}, {v(vVOM+2*ct,2)}, {v(vPb+4,2)}, {v(vF+4*ct,4)}")
        def cvom(ct):
            A(f"v_cvt_pk_bf16_f32 v{vVOM+2*ct}, v{vVA+4*ct}, v{vVA+4*ct+2}")
            A(f"v_cvt_pk_bf16_f32 v{vVOM+2*ct+1}, v{vVA+4*ct+1}, v{vVA+4*ct+3}")
        def slot():
            if xoq or len(vpos) < NVC: vmore()
            else: A("s_nop 0")
        fin32(0); A(ex[5])
        A(f"v_mfma_f32_16x16x32_bf16 {v(vDen,4)}, {v(vOne32,4)}, {v(vPb,4)}, 0")
        cvom(0)
        fin32(2)
        A(f"v_cvt_pk_bf16_f32 v{vPb+4}, v{vals[4]}, v{vals[5]}")
        A(f"v_mov_b32 v{vPb+5}, v{vPb+4}")
        fin32(1); cvom(2)
        fin32(3)
        A(f"v_permlane32_swap_b32 v{vPb+4}, v{vPb+5}")
        cvom(1)
        A(f"v_mfma_f32_16x16x16_bf16 {v(vDen,4)}, {v(vOne16,2)}, {v(vPb+4,2)}, {v(vDen,4)}")
        cvom(3)
        fin16(0); slot()
        fin16(2); slot(); slot()
        fin16(1)
        A(f"v_rcp_f32 v{vT+4}, v{vDen}")
        slot()
        fin16(3)
        fstamp(A, 4, 252)
        fstamp(A, 5, 252)
        A(f"v_mov_b32_dpp v{vT+4}, v{vT+4} {DPP}0xc")
        A(f"v_cmp_u_f32 vcc, v{vF}, v{vF}")
        Lvs, Lvb = A.newlabel("vslow"), A.newlabel("vback")
        for pc in range(2):
            for r in range(4):
                A(f"v_mul_f32 v{vF+4*pc+r}, v{vF+4*pc+r}, v{vT+4}")
            for r in range(4):
                A(f"v_mul_f32_dpp v{vF+4*pc+r}, v{vF+4*(pc+2)+r}, v{vT+4} row_ror:8 row_mask:0xf bank_mask:0xc")
            if pc == 0:
                A(f"s_cbranch_vccnz {Lvs}")
                A.label(Lvb)
            A(f"ds_write_b128 v{vRedW}, {v(vF+4*pc,4)} offset:{1024*pc}")
        xo_late = list(xoq)
        assert len(vpos) == NVC
        mark = f"buffer_store_dword v{vMark}, v{vFlagO}, {WSR}, s{sMark} offen"
        if P["mk_pos"] == 0: A(mark)
        fstamp(A, 6, 252)
        A("s_waitcnt lgkmcnt(0)")
        A("s_barrier")
        fstamp(A, 7, 252)
        if P["prof"] in (3, 5): A("s_waitcnt lgkmcnt(0)")
        for h in range(4):
            A(f"ds_read_b128 {v(vF+4*h,4)}, v{vRedR} offset:{2048*h}")
        if P["mk_pos"] == 1: A(mark)
        A("s_waitcnt lgkmcnt(2)")
        A(f"v_pk_add_f32 {v(vF,2)}, {v(vF,2)}, {v(vF+4,2)}")
        A(f"v_pk_add_f32 {v(vF+2,2)}, {v(vF+2,2)}, {v(vF+6,2)}")
        A("s_waitcnt lgkmcnt(0)")
        A(f"v_pk_add_f32 {v(vF+8,2)}, {v(vF+8,2)}, {v(vF+12,2)}")
        A(f"v_pk_add_f32 {v(vF+10,2)}, {v(vF+10,2)}, {v(vF+14,2)}")
        A(f"v_pk_add_f32 {v(vF,2)}, {v(vF,2)}, {v(vF+8,2)}")
        A(f"v_pk_add_f32 {v(vF+2,2)}, {v(vF+2,2)}, {v(vF+10,2)}")
        A(f"v_cvt_pk_bf16_f32 v{vF}, v{vF}, v{vF+1}")
        A(f"v_cvt_pk_bf16_f32 v{vF+1}, v{vF+2}, v{vF+3}")
        A(f"buffer_store_dwordx2 {v(vF,2)}, v{vPartO}, {WSR}, s{sPartW} offen sc1")
        if P["mk_pos"] == 2: A(mark)
        issued += 2
        for x in xo_after: A(x); issued += 1
        stamp(A, 1, 252)
        fstamp(A, 8, 252)
        A.label(Lbub + sfx)
        sal = [f"s_add_u32 s{sT2}, s{sXk}, 12288",
               f"s_add_u32 s{sXk1}, s{sXk}, {12288 + 4096}",
               f"s_add_u32 s{sXk2}, s{sXk}, {12288 + 8192}",
               f"s_add_u32 s{sXk}, s{sXk}, {XR_SLOT}",
               f"s_cmp_eq_u32 s{sXk}, s{sXrEnd}",
               f"s_cselect_b32 s{sXk}, s{sXrBase}, s{sXk}",
               f"s_and_b32 s{sT0}, s{sS}, 3",
               f"s_mul_i32 s{sPx}, s{sT0}, 12288",
               f"s_add_u32 s{sPx}, s{sPx}, s{sPxBase}",
               f"s_add_u32 s{sT0}, s{sS}, 1",
               f"s_and_b32 s{sT0}, s{sT0}, 3",
               f"s_mul_i32 s{sPartW}, s{sT0}, {PART_SLOT}",
               f"s_add_u32 s{sPartW}, s{sPartW}, s{sPartBase}",
               f"s_mul_i32 s{sQkv}, s{sT0}, 36864",
               f"s_add_u32 s{sQkv}, s{sQkv}, s{sQkvBase}",
               f"s_add_u32 s{sQkv1}, s{sQkv}, 3072",
               f"s_add_u32 s{sQkv2}, s{sQkv}, 6144",
               f"s_cmp_lt_i32 s{sS}, 1",
               f"s_cselect_b32 s{sSt1}, {OOB}, s{sXp}",
               f"s_cselect_b32 s{sT0}, 0, {XP_SEG if not P.get('x_ring') else 0}",
               f"s_add_u32 s{sXp}, s{sXp}, s{sT0}"]
        fstamp(A, 9, 252)
        def pxload():
            for i in range(3):
                A(f"buffer_load_dwordx4 {v(vPX+4*i,4)}, v{vL16}, {WSR}, s{sPx} offen offset:{1024*i} sc1")
        kq = [("k", t, ks) for ks in range(6) for t in range(2)]
        PP = P["ppos"]
        q = [("v",) + e for e in vall[NVC:]] + kq[:PP] + [("p", i) for i in range(3)] + kq[PP:]
        def nxt(n=1):
            nonlocal issued
            for _ in range(n):
                if not q: return
                e = q.pop(0)
                if e == ("p", 2): vpos["p"] = issued
                if e[0] == "v": vpos[e[1:]] = issued
                issued += 1
                if e[0] == "p":
                    A(f"buffer_load_dwordx4 {v(vPX+4*e[1],4)}, v{vL16}, {WSR}, s{sPx} offen offset:{1024*e[1]} sc1"); continue
                if P.get("x_nokv") and e[0] in "kv" : A(f"buffer_load_dword v{vT+7}, v{vFlagO}, {WSR}, 0 offen"); continue
                if P.get("x_noxout") and e[0] == "s" and e[1] in (1, 2): A(f"buffer_load_dword v{vT+7}, v{vFlagO}, {WSR}, 0 offen"); continue
                if e[0] == "k": xload(aKX, e[1], e[2], (sT2, sXk1, sXk2))
                elif e[0] == "v": xload(aVX, e[1], e[2], (sXv, sXv1, sXv2))
                elif e[1] == 0: A(f"buffer_store_dwordx2 {v(vPois,2)}, v{vPartO}, {WSR}, s{sSt0} offen sc1")
                elif e[1] == 1: A(f"buffer_store_dwordx4 {v(vXOUT,4)}, v{vL16}, {WSR}, s{sSt1} offen {XOF[P.get('x_fl', 0)]}")
                elif e[1] == 2: A(f"buffer_store_dwordx4 {v(vXOUT+4,4)}, v{vL16}, {WSR}, s{sSt2} offen {XOF[P.get('x_fl', 0)]}")
                else: A(f"buffer_store_dword v{vXfv}, v{vFlagO}, {WSR}, s{sSt3} offen sc1")
        xo = lambda i: (vS + 4 * i) if i < 4 else (vF + 4 * (i - 4))
        xr = lambda qt, h: vQ + 16 * qt + 4 * h
        def xrow_mfma(vox, vom):
            return ([f"v_mfma_f32_16x16x32_bf16 {v(xo(2*ct+qt),4)}, {v(vox+4*ct,4)}, {v(vPX+4*qt,4)}, 0" for ct in range(4) for qt in range(2)] +
                    [f"v_mfma_f32_16x16x16_bf16 {v(xo(2*ct+qt),4)}, {v(vom+2*ct,2)}, {v(vPX+8+2*qt,2)}, {v(xo(2*ct+qt),4)}" for ct in range(4) for qt in range(2)])
        xw = [f"ds_write_b128 v{vRed2W}, {v(xo(i),4)} offset:{1024*i}" for i in range(8)]
        xrd = [f"ds_read_b128 {v(xr(qt,h),4)}, v{vRed2R} offset:{8192*h+1024*qt}" for qt in range(2) for h in range(4)]
        def xadd(qt):
            b = xr(qt, 0)
            return ([f"v_add_f32 v{b+r}, v{b+r}, v{b+4+r}" for r in range(4)] + [f"v_add_f32 v{b+8+r}, v{b+8+r}, v{b+12+r}" for r in range(4)] +
                    [f"v_add_f32 v{b+r}, v{b+r}, v{b+8+r}" for r in range(4)] +
                    [f"v_cvt_pk_bf16_f32 v{vXOUT+2*qt+h}, v{b+2*h}, v{b+2*h+1}" for h in range(2)])
        mf = [(x, None) for x in xrow_mfma(voxn, vomo)]
        for ks in range(6):
            for t in range(2):
                for ct in range(4):
                    acc = vXA + 4 * (4 * t + ct)
                    cc = "0" if ks == 0 else v(acc, 4)
                    mf.append((f"v_mfma_f32_16x16x32_bf16 {v(acc,4)}, {a(aVX+4*(6*t+ks),4)}, {a(24*ct+4*ks,4)}, {cc}", (t, ks) if ct == 0 else None))
        ad = xadd(0) + xadd(1)
        sideq = [(17 + 2 * i, xw[i]) for i in range(8)] + [(34, "s_waitcnt lgkmcnt(0)"), (34, "s_barrier")]
        sideq += [(35, x) for x in xrd] + [(44, "s_waitcnt lgkmcnt(0)")] + [(44, x) for x in ad]
        for n, (x, vf) in enumerate(mf):
            A(x)
            room = 2
            nvf = mf[n + 1][1] if n + 1 < len(mf) else None
            if nvf in vpos: room -= 1
            if n % P["ldev"] == 0: nxt(); room -= 1
            while room and sideq and sideq[0][0] <= n:
                A(sideq.pop(0)[1]); room -= 1
            while room and sal:
                A(sal.pop(0)); room -= 1
            if nvf in vpos: need(vpos[nvf])
        for _, x in sideq: A(x)
        assert not sal
        fstamp(A, 10, 252)
        nxt(2)
        A(f"s_add_u32 s{sXv2}, s{sXk}, {24576 + 8192}")
        A(f"s_add_u32 s{sXv1}, s{sXk}, {24576 + 4096}")
        A(f"s_add_u32 s{sXv}, s{sXk}, 24576")
        A.nop(1)
        for ct in range(4):
            for t in range(2):
                for h in range(2):
                    src = vXA + 4 * (4 * t + ct) + 2 * h
                    A(f"v_cvt_pk_bf16_f32 v{voxn+4*ct+2*t+h}, v{src}, v{src+1}")
            nxt()
        nxt(99)
        stamp(A, 2, 252)
        fstamp(A, 11, 252)
        need(vpos["p"])
        A(f"s_cmp_lt_i32 s{sS}, 0")
        A(f"s_cbranch_scc1 {Lnox}{sfx}")
        Lpx, Lpxr = A.newlabel("px"), A.newlabel("pxr")
        A.label(Lpx)
        A(f"v_max3_u32 v{vMx}, v{vPX}, v{vPX+1}, v{vPX+2}")
        for i in range(3, 11, 2): A(f"v_max3_u32 v{vMx}, v{vPX+i}, v{vPX+i+1}, v{vMx}")
        A(f"v_max_u32 v{vMx}, v{vPX+11}, v{vMx}")
        A(f"v_cmp_eq_u32 vcc, -1, v{vMx}")
        A(f"s_cbranch_vccnz {Lpxr}")
        stamp(A, 3, 252)
        fstamp(A, 12, 252)
        fin_parts[par] = (xrow_mfma(voxc, vomc), xrow_mfma(voxn, vomo), xw, xrd, ad, smf, pxload, vomo)
        A.label(Lnox + sfx)
        stamp(A, 4, 252)
        if not P.get("x_split"): fstamp(A, 13, 252)
        fstamp_collect(A, 14, 252)
        stamp_flush(A, 252, 253)
        A(f"s_add_u32 s{sS}, s{sS}, 1")
        A(f"s_cmp_lg_u32 s{sS}, {P['nseg'] - 1}")
        A(f"s_cbranch_scc1 L_s2_top_{1-par}")
        A("s_branch L_s2_fin")
        A.label(Lvs)
        A(f"v_mov_b32 v{vMx}, 0")
        for x in chks: A(x)
        A(f"v_cmp_eq_u32 vcc, -1, v{vMx}")
        A(f"s_cbranch_vccz {Lvb}")
        A.label(Lretry + sfx)
        budget_check(A, 6)
        A(f"s_branch {Latt}{sfx}")
        A.label(Lpxr)
        budget_check(A, 7)
        pxload()
        A("s_waitcnt vmcnt(0)")
        A(f"s_branch {Lpx}")
    A.label("L_s2_fin")
    xmA, xmB, xw, xrd, ad, smf, pxload, vomL = fin_parts[(P["nseg"] - 2) & 1]
    def xout():
        A(f"buffer_store_dwordx4 {v(vXOUT,4)}, v{vL16}, {WSR}, s{sSt1} offen sc1")
        A(f"s_add_u32 s{sSt1}, s{sSt1}, {XP_SEG}")
    def flag(val):
        A(f"v_mov_b32 v{vXfv}, {val}")
        A(f"buffer_store_dword v{vXfv}, v{vFlagO}, {WSR}, s{sXpF} offen sc1")
    def xrows(xm):
        for x in xm: A(x)
        A("s_barrier")
        for x in xw: A(x)
        A("s_waitcnt lgkmcnt(0)")
        A("s_barrier")
        for x in xrd: A(x)
        A("s_waitcnt lgkmcnt(0)")
        for x in ad: A(x)
        xout()
    xout()
    flag(P["nseg"] - 3)
    xrows(xmA)
    A(f"s_and_b32 s{sT0}, s{sS}, 3")
    A(f"s_mul_i32 s{sPx}, s{sT0}, 12288")
    A(f"s_add_u32 s{sPx}, s{sPx}, s{sPxBase}")
    def spin(load, base, code):
        L = A.newlabel("sp")
        A.label(L)
        load()
        budget_check(A, code)
        A("s_waitcnt vmcnt(0)")
        A(f"v_max3_u32 v{vMx}, v{base}, v{base+1}, v{base+2}")
        for i in range(3, 11, 2): A(f"v_max3_u32 v{vMx}, v{base+i}, v{base+i+1}, v{vMx}")
        A(f"v_max_u32 v{vMx}, v{base+11}, v{vMx}")
        A(f"v_cmp_eq_u32 vcc, -1, v{vMx}")
        A(f"s_cbranch_vccnz {L}")
    def vmload():
        for j in range(3):
            A(f"buffer_load_dwordx4 {v(vVM+4*j,4)}, v{vL16}, {WSR}, s{sQkv2} offen offset:{1024*j} sc1")
    for r in range(16): A(f"v_mov_b32 v{vVA+r}, 0")
    spin(vmload, vVM, 6)
    flag(P["nseg"] - 1)
    for x in smf: A(x)
    A.nop(8)
    for ct in range(4):
        A(f"v_cvt_pk_bf16_f32 v{vomL+2*ct}, v{vVA+4*ct}, v{vVA+4*ct+2}")
        A(f"v_cvt_pk_bf16_f32 v{vomL+2*ct+1}, v{vVA+4*ct+1}, v{vVA+4*ct+3}")
    spin(pxload, vPX, 7)
    xrows(xmB)
    A("s_waitcnt vmcnt(0)")
    flag(P["nseg"])
    ostamp(A, 0, 2)
    A("s_branch L_end")

def gen_xs(A):
    sHH = 30
    sQkv, sQkvBase, sXq, sXrBase, sXrEnd, sPx, sPxP, sPxBase, sXfl, sC, sNeed = 31, 32, 33, 34, 35, 36, 37, 38, 39, 40, 41
    sXa = 42
    sMask = 48
    sPf, sMk1, sQT = 64, 65, 66
    vPf = 140
    vL16, vKmO, vL8, vXflO, vNeg, vProbe = 1, 2, 3, 4, 5, 6
    vPois = 8
    vT = 12
    vFl, vMx = 20, 21
    vQ, vKX, vKM = 24, 48, 96
    vS = 120
    vPb = 132
    c = (192 ** -0.5) * math.log2(math.e)
    A.label("L_xs")
    A("s_setprio 3")
    A(f"s_sub_u32 s{sHH}, s{sR}, 28")
    A(f"s_lshl_b32 s{sHH}, s{sHH}, 1")
    A(f"s_lshr_b32 s{sT0}, s{sW}, 1")
    A(f"s_add_u32 s{sHH}, s{sHH}, s{sT0}")
    A(f"s_and_b32 s{sQT}, s{sW}, 1")
    A(f"v_lshlrev_b32 v{vL16}, 4, v0")
    A(f"v_lshlrev_b32 v{vL8}, 3, v0")
    A(f"v_and_b32 v{vKmO}, 0x37, v0")
    A(f"v_lshlrev_b32 v{vKmO}, 4, v{vKmO}")
    A(f"v_min_u32 v{vXflO}, 11, v0")
    A(f"v_lshlrev_b32 v{vXflO}, 2, v{vXflO}")
    A(f"v_min_u32 v{vProbe}, 17, v0")
    A(f"v_lshlrev_b32 v{vProbe}, 2, v{vProbe}")
    A(f"s_lshl_b32 s{sMk1}, s{sG}, 7")
    A(f"s_add_u32 s{sMk1}, s{sMk1}, {S1MARK}")
    for r in range(4): A(f"v_mov_b32 v{vPois+r}, -1")
    A(f"v_mov_b32 v{vNeg}, {f2u(-1e9 * 192 ** 0.5):#x}")
    A(f"v_and_b32 v{vT}, 15, v0")
    A(f"s_lshl_b32 s{sT0}, s{sQT}, 4")
    A(f"v_add_u32 v{vT}, s{sT0}, v{vT}")
    A(f"v_lshrrev_b32 v{vT+1}, 4, v0")
    A(f"v_lshlrev_b32 v{vT+1}, 2, v{vT+1}")
    for t in range(2):
        for r in range(4):
            A(f"v_add_u32 v{vT+2}, {16*t+r}, v{vT+1}")
            A(f"v_cmp_le_u32 s[{sMask+2*(4*t+r)}:{sMask+2*(4*t+r)+1}], v{vT+2}, v{vT}")
    A(f"s_mul_i32 s{sQkvBase}, s{sG}, 147456")
    A(f"s_mul_i32 s{sT0}, s{sHH}, 9216")
    A(f"s_add_u32 s{sQkvBase}, s{sQkvBase}, s{sT0}")
    A(f"s_add_u32 s{sQkvBase}, s{sQkvBase}, {QKVR + 3072}")
    A(f"s_mul_i32 s{sXrBase}, s{sG}, {XR_G}")
    A(f"s_mul_i32 s{sT0}, s{sHH}, {XR_HEAD}")
    A(f"s_add_u32 s{sXrBase}, s{sXrBase}, s{sT0}")
    A(f"s_add_u32 s{sXrBase}, s{sXrBase}, {XR}")
    A(f"s_add_u32 s{sXrEnd}, s{sXrBase}, {XR_G}")
    A(f"s_mov_b32 s{sXq}, s{sXrBase}")
    A(f"s_mul_i32 s{sPxBase}, s{sG}, 49152")
    A(f"s_mul_i32 s{sT0}, s{sHH}, 3072")
    A(f"s_add_u32 s{sPxBase}, s{sPxBase}, s{sT0}")
    A(f"s_lshl_b32 s{sT0}, s{sQT}, 10")
    A(f"s_add_u32 s{sPxBase}, s{sPxBase}, s{sT0}")
    A(f"s_mul_i32 s{sT0}, s{sQT}, 1016")
    A(f"s_sub_u32 s{sT0}, 2048, s{sT0}")
    A(f"v_add_u32 v{vL8}, s{sT0}, v{vL16}")
    A(f"s_add_u32 s{sPxBase}, s{sPxBase}, {PXR}")
    A(f"s_lshl_b32 s{sXfl}, s{sG}, 9")
    A(f"s_mul_i32 s{sT0}, s{sHH}, 72")
    A(f"s_add_u32 s{sXfl}, s{sXfl}, s{sT0}")
    A(f"s_add_u32 s{sXfl}, s{sXfl}, {XFLAG}")
    A(f"s_mov_b32 s{sC}, {f2u(c):#x}")
    A(f"s_mov_b32 s{sS}, 0")
    A(f"s_lshl_b32 s{sPf}, s{sHH}, 1")
    A(f"s_add_u32 s{sPf}, s{sPf}, s{sQT}")
    A(f"s_lshl_b32 s{sPf}, s{sPf}, 3")
    A(f"s_add_u32 s{sPf}, s{sPf}, s{sG}")
    A(f"s_lshl_b32 s{sPf}, s{sPf}, 12")
    A(f"s_add_u32 s{sPf}, s{sPf}, 81920")
    for k in range(4):
        A(f"buffer_load_dwordx4 {v(vPf,4)}, v{vL16}, s[{sX}:{sX+3}], s{sPf} offen offset:{1024*k}")
    A(f"s_lshl_b32 s{sPf}, s{sHH}, 1")
    A(f"s_add_u32 s{sPf}, s{sPf}, s{sQT}")
    A(f"s_mul_i32 s{sPf}, s{sPf}, 5120")
    gen_locality(A, "L_xs_loc", "L_xs_glb", vT)
    for mode in ("loc", "glb"):
        sc = "" if mode == "loc" else " sc1"
        A.label(f"L_xs_{mode}")
        Lf, Lk = A.newlabel("xsf"), A.newlabel("xsk")
        fstamp(A, 5, 250)
        A(f"s_add_u32 s{sNeed}, s{sS}, 1")
        A.label(Lf)
        A(f"buffer_load_dword v{vFl}, v{vXflO}, {WSR}, s{sXfl} offen sc1")
        budget_check(A, 8)
        A("s_waitcnt vmcnt(0)")
        A(f"v_cmp_gt_u32 vcc, s{sNeed}, v{vFl}")
        A(f"s_cbranch_vccnz {Lf}")
        fstamp(A, 6, 250)
        A(f"s_lshl_b32 s{sT0}, s{sQT}, 10")
        A(f"s_add_u32 s{sXa}, s{sXq}, s{sT0}")
        A(f"s_add_u32 s{sXa+1}, s{sXa}, 4096")
        A(f"s_add_u32 s{sXa+2}, s{sXa}, 8192")
        A(f"s_add_u32 s{sXa+3}, s{sXq}, 12288")
        A(f"s_add_u32 s{sXa+4}, s{sXq}, {12288+4096}")
        A(f"s_add_u32 s{sXa+5}, s{sXq}, {12288+8192}")
        for ks in range(6):
            A(f"buffer_load_dwordx4 {v(vQ+4*ks,4)}, v{vL16}, {WSR}, s{sXa+ks//2} offen offset:{2048*(ks&1)} sc1")
            for t in range(2):
                A(f"buffer_load_dwordx4 {v(vKX+4*(6*t+ks),4)}, v{vL16}, {WSR}, s{sXa+3+ks//2} offen offset:{2048*(ks&1)+1024*t} sc1")
        A(f"s_add_u32 s{sXq}, s{sXq}, {XR_SLOT}")
        A(f"s_cmp_eq_u32 s{sXq}, s{sXrEnd}")
        A(f"s_cselect_b32 s{sXq}, s{sXrBase}, s{sXq}")
        A(f"s_and_b32 s{sT0}, s{sS}, 3")
        A(f"s_mul_i32 s{sQkv}, s{sT0}, 36864")
        A(f"s_add_u32 s{sQkv}, s{sQkv}, s{sQkvBase}")
        A(f"s_mul_i32 s{sPx}, s{sT0}, 12288")
        A(f"s_add_u32 s{sPx}, s{sPx}, s{sPxBase}")
        A(f"s_add_u32 s{sT0}, s{sS}, 2")
        A(f"s_and_b32 s{sT0}, s{sT0}, 3")
        A(f"s_mul_i32 s{sPxP}, s{sT0}, 12288")
        A(f"s_add_u32 s{sPxP}, s{sPxP}, s{sPxBase}")
        for ks in range(6):
            A(f"s_waitcnt vmcnt({15 - 3 * ks})")
            for t in range(2):
                cc = "0" if ks == 0 else v(vS + 4 * t, 4)
                A(f"v_mfma_f32_16x16x32_bf16 {v(vS+4*t,4)}, {v(vKX+4*(6*t+ks),4)}, {v(vQ+4*ks,4)}, {cc}")
        fstamp(A, 7, 250)
        A.label(Lk)
        A(f"buffer_load_dword v{vMx}, v{vProbe}, {WSR}, s{sMk1} offen sc1")
        budget_check(A, 9)
        A("s_waitcnt vmcnt(0)")
        A(f"v_cmp_ge_i32 vcc, s{sS}, v{vMx}")
        A(f"s_cbranch_vccnz {Lk}")
        for ks in range(6):
            A(f"buffer_load_dwordx4 {v(vKM+4*ks,4)}, v{vKmO}, {WSR}, s{sQkv} offen offset:{1024*(ks>>1)+128*(ks&1)} sc1")
        A("s_waitcnt vmcnt(0)")
        A(f"v_max3_u32 v{vMx}, v{vKM}, v{vKM+1}, v{vKM+2}")
        for i in range(3, 23, 2): A(f"v_max3_u32 v{vMx}, v{vKM+i}, v{vKM+i+1}, v{vMx}")
        A(f"v_max_u32 v{vMx}, v{vKM+23}, v{vMx}")
        A(f"v_cmp_eq_u32 vcc, -1, v{vMx}")
        A(f"s_cbranch_vccnz {Lk}")
        fstamp(A, 8, 250)
        for ks in range(6):
            cc = "0" if ks == 0 else v(vS + 8, 4)
            A(f"v_mfma_f32_16x16x32_bf16 {v(vS+8,4)}, {v(vKM+4*ks,4)}, {v(vQ+4*ks,4)}, {cc}")
        A(f"buffer_store_dwordx4 {v(vPois,4)}, v{vL16}, {WSR}, s{sPxP} offen{sc}")
        A(f"buffer_store_dwordx2 {v(vPois,2)}, v{vL8}, {WSR}, s{sPxP} offen{sc}")
        for i in range(8):
            A(f"v_cndmask_b32 v{vS+i}, v{vNeg}, v{vS+i}, s[{sMask+2*i}:{sMask+2*i+1}]")
        vm, vt2 = vT, vT + 1
        A(f"v_max3_f32 v{vm}, v{vS}, v{vS+1}, v{vS+2}")
        for i in range(3, 11, 2): A(f"v_max3_f32 v{vm}, v{vS+i}, v{vS+i+1}, v{vm}")
        A(f"v_max_f32 v{vm}, v{vS+11}, v{vm}")
        for sw in ("32", "16"):
            A(f"v_mov_b32 v{vt2}, v{vm}")
            A("s_nop 1")
            A(f"v_permlane{sw}_swap_b32 v{vm}, v{vt2}")
            A(f"v_max_f32 v{vm}, v{vm}, v{vt2}")
        A(f"v_mul_f32 v{vm}, s{sC}, v{vm}")
        for i in range(12): A(f"v_fma_f32 v{vS+i}, v{vS+i}, s{sC}, -v{vm}")
        for i in range(12): A(f"v_exp_f32 v{vS+i}, v{vS+i}")
        A(f"v_add_f32 v{vT+2}, v{vS+8}, v{vS+9}")
        A(f"v_add_f32 v{vT+3}, v{vS}, v{vS+1}")
        A(f"v_add_f32 v{vT+2}, v{vT+2}, v{vS+10}")
        A(f"v_add_f32 v{vT+2}, v{vT+2}, v{vS+11}")
        for i in range(2, 8): A(f"v_add_f32 v{vT+3}, v{vT+3}, v{vS+i}")
        A(f"v_fma_f32 v{vm}, v{vT+2}, 0.5, v{vT+3}")
        for sw in ("32", "16"):
            A(f"v_mov_b32 v{vt2}, v{vm}")
            A("s_nop 1")
            A(f"v_permlane{sw}_swap_b32 v{vm}, v{vt2}")
            A(f"v_add_f32 v{vm}, v{vm}, v{vt2}")
        A(f"v_rcp_f32 v{vm}, v{vm}")
        A("s_nop 0")
        for i in range(12): A(f"v_mul_f32 v{vS+i}, v{vS+i}, v{vm}")
        for i in range(4): A(f"v_cvt_pk_bf16_f32 v{vPb+i}, v{vS+2*i}, v{vS+2*i+1}")
        for i in range(2): A(f"v_cvt_pk_bf16_f32 v{vPb+4+i}, v{vS+8+i}, v{vS+10+i}")
        A(f"buffer_store_dwordx4 {v(vPb,4)}, v{vL16}, {WSR}, s{sPx} offen{sc}")
        A(f"buffer_store_dwordx2 {v(vPb+4,2)}, v{vL8}, {WSR}, s{sPx} offen{sc}")
        fstamp(A, 9, 250)
        if P["prof"] in (3, 5):
            A("s_waitcnt lgkmcnt(0)")
            for i in range(5, 10): A(f"v_writelane_b32 v250, s{60+2*i}, {i}")
            stamp_flush(A)
        if P["xpf"]:
            A(f"s_add_u32 s{sT0}, s{sS}, {P['xpf']}")
            A(f"s_mul_i32 s{sT0}, s{sT0}, 40960")
            A(f"s_add_u32 s{sT0}, s{sT0}, s{sPf}")
            for i in range(4):
                A(f"buffer_load_dwordx4 {v(vPf,4)}, v{vL16}, s[{sX}:{sX+3}], s{sT0} offen offset:{1024*i}")
            A(f"s_add_u32 s{sT0}, s{sT0}, 4096")
            A(f"buffer_load_dwordx4 {v(vPf,4)}, v{vL16}, s[{sX}:{sX+3}], s{sT0} offen")
        A(f"s_add_u32 s{sS}, s{sS}, 1")
        A(f"s_cmp_lg_u32 s{sS}, {P['nseg']}")
        A(f"s_cbranch_scc1 L_xs_{mode}")
        A("s_branch L_end")

def gen_main(A):
    A(".p2align 8")
    A(f".type {NAME},@function")
    A.label(NAME)
    gen_common_prologue(A)
    A(f"s_cmp_lt_u32 s{sR}, 18")
    A("s_cbranch_scc1 L_s1")
    A(f"s_cmp_lt_u32 s{sR}, 28")
    A("s_cbranch_scc1 L_s2")
    A("s_branch L_init")
    A.label("L_fail")
    A(f"v_mov_b32 v1, s{sT3}")
    A(f"s_lshl_b32 s{sT3}, s{sT3}, 2")
    A(f"s_add_u32 s{sT3}, s{sT3}, {DBG_FAIL}")
    A(f"v_mov_b32 v2, s{sT3}")
    A(f"v_mov_b32 v1, s{sS}")
    A(f"v_add_u32 v1, 1000, v1")
    A(f"buffer_store_dword v1, v2, s[{sDBG}:{sDBG+3}], 0 offen")
    A.label("L_end")
    A("s_endpgm")
    gen_init(A)
    gen_s1(A)
    gen_s2(A)
    gen_xs(A)
    try:
        import gen_bg
        gen_bg.gen_bg(A, sys.modules[__name__])
        A.label("L_code_end")
    except ImportError:
        A.label("L_bg")
        A("s_endpgm")

HEADER = open("gated_mix__memory_aug_recurrent_mem_tr__ssm_conv_h3__prompt.s.ref").read().split("; Override launch")[0]

def kd(name, vgpr, acc, sgpr=96):
    return f""".amdhsa_kernel {name}
  .amdhsa_next_free_vgpr {vgpr}
  .amdhsa_next_free_sgpr {sgpr}
  .amdhsa_accum_offset {acc}
  .amdhsa_group_segment_fixed_size 0
  .amdhsa_kernarg_size 136
  .amdhsa_user_sgpr_count 2
  .amdhsa_user_sgpr_kernarg_segment_ptr 1
  .amdhsa_system_sgpr_workgroup_id_x 1
  .amdhsa_float_denorm_mode_32 3
.end_amdhsa_kernel
"""

def generate(**kw):
    P.update(kw)
    A = Asm()
    A('.amdgcn_target "amdgcn-amd-amdhsa--gfx950"')
    A(".text")
    A(f".globl {NAME}")
    gen_main(A)
    probs = check_hazards(A.lines)
    txt = HEADER
    txt += "; @launch grid=(256,1,1) block=(256,1,1) lds=163840\n"
    txt += A.text()
    txt += '.section .rodata,"a"\n.p2align 6\n' + kd(NAME, 512, 256)
    return txt, probs

if __name__ == "__main__":
    kw = {}
    out = "gated_mix__memory_aug_recurrent_mem_tr__ssm_conv_h3__prompt.s"
    for arg in sys.argv[1:]:
        if "=" in arg:
            k, val = arg.split("="); kw[k] = int(val)
        else:
            out = arg
    txt, probs = generate(**kw)
    open(out, "w").write(txt)
    print("wrote", out, len(txt), "bytes;", len(probs), "hazards")
```

```python
import math
from asmlib import v, a, s

def gen_bg(A, G):
    P, WSR = G.P, G.WSR
    sG, sR, sW, sS, sX = G.sG, G.sR, G.sW, G.sS, G.sX
    sT0, sT1, sT2, sT3 = G.sT0, G.sT1, G.sT2, G.sT3
    OOB = G.OOB
    budget_check, srd, f2u = G.budget_check, G.srd, G.f2u
    sWV, sCU, sLds, sI, sCh, sMaskHi = 30, 31, 32, 33, 34, 35
    sK, sV, sF, sAux = 36, 40, 44, 48
    sPk, sPv, sPsk, sPf, sPd, sPg, sPo = 52, 54, 56, 58, 60, 62, 64
    sD = 66
    sU, sSeg, sJ, sB0, sB1, sUe = 74, 75, 76, 77, 78, 79
    XS = f"s[{sX}:{sX+3}]"
    vL16, vFlagO = 1, 2
    vT = 4
    UP, CP = 4608, 4160
    FOFF = UP
    YOFF = FOFF
    LDSW = FOFF + 8 * CP
    def lo(d, x): A(f"v_lshlrev_b32 v{d}, 16, v{x}")
    def hi(d, x): A(f"v_and_b32 v{d}, s{sMaskHi}, v{x}")

    A.label("L_bg")
    A(f"s_sub_u32 s{sT0}, s{sR}, 30")
    A(f"s_lshl_b32 s{sT0}, s{sT0}, 3")
    A(f"s_add_u32 s{sT0}, s{sT0}, s{sG}")
    A(f"s_lshl_b32 s{sT0}, s{sT0}, 2")
    A(f"s_add_u32 s{sWV}, s{sT0}, s{sW}")
    A(f"s_mul_i32 s{sLds}, s{sW}, {LDSW}")
    A(f"s_load_dwordx4 s[{sPk}:{sPk+3}], s[0:1], 64")
    A(f"s_load_dwordx4 s[{sPsk}:{sPsk+3}], s[0:1], 80")
    A(f"s_load_dwordx4 s[{sPd}:{sPd+3}], s[0:1], 96")
    A(f"s_load_dwordx2 s[{sPo}:{sPo+1}], s[0:1], 112")
    A(f"s_mov_b32 s{sMaskHi}, 0xffff0000")
    A(f"s_mov_b32 s{sS}, 0")
    A(f"v_lshlrev_b32 v{vL16}, 4, v0")
    A(f"v_cmp_eq_u32 vcc, 0, v0")
    A(f"v_mov_b32 v{vT}, {OOB}")
    A("s_nop 0")
    A(f"v_cndmask_b32 v{vFlagO}, v{vT}, v0, vcc")
    A("s_waitcnt lgkmcnt(0)")
    G.gen_locality(A, None, None, vT)
    Lw0 = A.newlabel("bgw")
    A(f"s_lshl_b32 s{sT0}, s{sG}, 9")
    A(f"s_add_u32 s{sT0}, s{sT0}, {G.XFLAG}")
    A(f"v_lshlrev_b32 v{vT+1}, 2, v0")
    A.label(Lw0)
    A("s_sleep 16")
    A(f"buffer_load_dword v{vT}, v{vT+1}, {WSR}, s{sT0} offen sc1")
    budget_check(A, 12)
    A("s_waitcnt vmcnt(0)")
    A(f"v_cmp_eq_u32 vcc, 0, v{vT}")
    A(f"s_cbranch_vccnz {Lw0}")
    Lt, Ltd = A.newlabel("touch"), A.newlabel("touched")
    A(f"s_cmp_eq_u32 s{sR}, 31")
    A(f"s_cbranch_scc1 {Lt}")
    if P["near"]:
        Lnm = A.newlabel("nomeas")
        A(f"s_cmp_lg_u32 s{sW}, 0")
        A(f"s_cbranch_scc1 {Lnm}")
        A(f"s_lshl_b32 s{sT0}, s{sG}, 10")
        A(f"s_add_u32 s{sT0}, s{sT0}, {G.NEARP}")
        A(f"v_mov_b32 v5, s{sT0}")
        A("s_mov_b32 s86, -1")
        A("s_mov_b32 s87, -1")
        for i in range(P.get('nmeas', 14)):
            A("s_memtime s[82:83]")
            A("s_waitcnt lgkmcnt(0)")
            A(f"s_mov_b32 s{sT1}, {(i & 1) * 8192 + (i >> 1) * 128}")
            A(f"buffer_load_dword v6, v5, {WSR}, s{sT1} offen sc1")
            A("s_waitcnt vmcnt(0)")
            A("s_memtime s[84:85]")
            A("s_waitcnt lgkmcnt(0)")
            A("s_sub_u32 s84, s84, s82")
            if i >= 2: A(f"s_min_u32 s{86 + (i & 1)}, s{86 + (i & 1)}, s84")
        A("s_cmp_lt_u32 s87, s86")
        A(f"s_cselect_b32 s{sT1}, 2, 1")
        A(f"v_mov_b32 v6, s{sT1}")
        A(f"s_lshl_b32 s{sT0}, s{sG}, 2")
        A(f"s_add_u32 s{sT0}, s{sT0}, {G.DBG_NEAR}")
        A(f"v_mov_b32 v5, s{sT0}")
        A(f"buffer_store_dword v6, v5, s[{G.sDBG}:{G.sDBG+3}], 0 offen sc1")
        A.label(Lnm)
        A("s_barrier")
    A(f"s_branch {Ltd}")
    A.label(Lt)
    if P["touch"] == 3:
        A(f"s_lshl_b32 s{sT0}, s{sW}, 10")
        A(f"s_mul_i32 s{sT1}, s{sG}, {G.XR_G}")
        A(f"s_add_u32 s{sT0}, s{sT0}, s{sT1}")
        A(f"s_add_u32 s{sT0}, s{sT0}, {G.XR + G.XR_SLOT}")
        A(f"s_mov_b32 s{sI}, {3 * G.XR_SLOT // 4096}")
        Ll = A.newlabel("tl")
        A.label(Ll)
        A(f"buffer_load_dwordx4 {v(vT+4,4)}, v{vL16}, {WSR}, s{sT0} offen sc1")
        A(f"s_add_u32 s{sT0}, s{sT0}, 4096")
        A(f"s_sub_u32 s{sI}, s{sI}, 1")
        A(f"s_cmp_lg_u32 s{sI}, 0")
        A(f"s_cbranch_scc1 {Ll}")
        A("s_waitcnt vmcnt(0)")
    A.label(Ltd)
    for dst, src, size in ((sK, sPk, 2048 * 1280), (sV, sPv, 2048 * 1280), (sAux, sPg, 1280)):
        A(f"s_mov_b64 s[{dst}:{dst+1}], s[{src}:{src+1}]")
        srd(A, dst, size)

    if P.get("nobg") == 1:
        A("s_endpgm")
    vGW, vXr, vAcc, vXo, vGo = 24, 64, 84, 85, 86
    A(f"v_and_b32 v{vT}, 15, v0")
    A(f"v_lshlrev_b32 v{vT}, 4, v{vT}")
    for i in range(5):
        A(f"buffer_load_dwordx4 {v(vXr+4*i,4)}, v{vT}, s[{sAux}:{sAux+3}], 0 offen offset:{256*i}")
    A(f"v_lshrrev_b32 v{vT+1}, 4, v0")
    A(f"v_mul_u32_u24 v{vXo}, 1280, v{vT+1}")
    A(f"v_add_u32 v{vXo}, v{vXo}, v{vT}")
    A(f"v_lshlrev_b32 v{vT+1}, 2, v{vT+1}")
    A(f"v_cmp_eq_u32 vcc, 0, v{vT}")
    A(f"v_mov_b32 v{vT+2}, {OOB}")
    A("s_nop 0")
    A(f"v_cndmask_b32 v{vGo}, v{vT+2}, v{vT+1}, vcc")
    A(f"s_mul_i32 s{sB0}, s{sWV}, 40960")
    A(f"s_lshl_b32 s{sB1}, s{sWV}, 7")
    A(f"s_add_u32 s{sB1}, s{sB1}, {G.GV}")
    A("s_waitcnt vmcnt(0)")
    for i in range(20):
        lo(vGW + 2 * i, vXr + i); hi(vGW + 2 * i + 1, vXr + i)
    A(f"s_mov_b32 s{sI}, 8")
    Lg = A.newlabel("gate")
    A.label(Lg)
    for i in range(5):
        A(f"buffer_load_dwordx4 {v(vXr+4*i,4)}, v{vXo}, {XS}, s{sB0} offen offset:{256*i}")
    A(f"v_mov_b32 v{vAcc}, 0")
    for i in range(20):
        if i % 4 == 0: A(f"s_waitcnt vmcnt({4 - i // 4})")
        lo(vT, vXr + i); hi(vT + 1, vXr + i)
        A(f"v_pk_mul_f32 {v(vT,2)}, {v(vT,2)}, {v(vGW+2*i,2)}")
        A(f"v_cvt_pk_bf16_f32 v{vT+2}, v{vT}, v{vT+1}")
        lo(vT, vT + 2); hi(vT + 1, vT + 2)
        A(f"v_add_f32 v{vAcc}, v{vAcc}, v{vT}")
        A(f"v_add_f32 v{vAcc}, v{vAcc}, v{vT+1}")
    for sh in (8, 4, 2, 1):
        A("s_nop 1")
        A(f"v_add_f32_dpp v{vAcc}, v{vAcc}, v{vAcc} row_ror:{sh} row_mask:0xf bank_mask:0xf")
    A(f"v_cvt_pk_bf16_f32 v{vAcc}, v{vAcc}, v{vAcc}")
    lo(vAcc, vAcc)
    A(f"v_mul_f32 v{vAcc}, {f2u(-math.log2(math.e)):#x}, v{vAcc}")
    A(f"v_exp_f32 v{vAcc}, v{vAcc}")
    A("s_nop 0")
    A(f"v_add_f32 v{vAcc}, 1.0, v{vAcc}")
    A(f"v_rcp_f32 v{vAcc}, v{vAcc}")
    A("s_nop 0")
    A(f"v_cvt_pk_bf16_f32 v{vAcc}, v{vAcc}, v{vAcc}")
    lo(vAcc, vAcc)
    A(f"buffer_store_dword v{vAcc}, v{vGo}, {WSR}, s{sB1} offen sc1")
    A(f"s_add_u32 s{sB0}, s{sB0}, 5120")
    A(f"s_add_u32 s{sB1}, s{sB1}, 16")
    A(f"s_sub_u32 s{sI}, s{sI}, 1")
    A(f"s_cmp_lg_u32 s{sI}, 0")
    A(f"s_cbranch_scc1 {Lg}")
    G.ostamp(A, 0, 1)
    def rnd(pair):
        A(f"v_cvt_pk_bf16_f32 v{vT+2}, v{pair}, v{pair+1}")
        lo(pair, vT + 2); hi(pair + 1, vT + 2)
    vL4, vSt, vLw, vLr = 20, 21, 22, 23
    vSK = 24
    vKH = 32
    vKR, vVR = 40, 76
    vKV = 108
    vO = 112
    vW = 144
    TP = 272
    A(f"v_lshlrev_b32 v{vL4}, 2, v0")
    A(f"v_lshrrev_b32 v{vSt}, 4, v0")
    A(f"v_lshlrev_b32 v{vSt}, 12, v{vSt}")
    A(f"v_and_b32 v{vT}, 15, v0")
    A(f"v_lshl_add_u32 v{vSt}, v{vT}, 4, v{vSt}")
    A(f"s_sub_u32 s{sT0}, 3, s{sW}")
    A(f"s_lshl_b32 s{sT0}, s{sT0}, 6")
    A(f"v_mul_u32_u24 v{vLw}, {2 * TP}, v0")
    A(f"v_add_u32 v{vLw}, s{sT0}, v{vLw}")
    A(f"v_lshrrev_b32 v{vLr}, 4, v0")
    A(f"v_mul_u32_u24 v{vLr}, {TP}, v{vLr}")
    A(f"v_lshl_add_u32 v{vLr}, v{vT}, 4, v{vLr}")
    A(f"s_mul_i32 s{sT0}, s{sW}, {32 * TP}")
    A(f"v_add_u32 v{vLr}, s{sT0}, v{vLr}")
    A(f"s_mov_b64 s[{sAux}:{sAux+1}], s[{sPsk}:{sPsk+1}]")
    srd(A, sAux, 5120)
    A(f"s_mul_i32 s{sB0}, s{sWV}, 40960")
    A(f"s_lshr_b32 s{sB1}, s{sWV}, 2")
    A(f"s_lshl_b32 s{sB1}, s{sB1}, 8")
    A(f"s_sub_u32 s{sB1}, {G.KVT + 1920 * 2}, s{sB1}")
    A(f"s_lshl_b32 s{sT0}, s{sW}, 17")
    A(f"s_add_u32 s{sB1}, s{sB1}, s{sT0}")
    A(f"s_mov_b32 s{sCh}, 0")
    A(f"s_sub_u32 s{sT0}, s{sB0}, {3 * 1280}")
    A(f"v_add_u32 v{vT+1}, s{sT0}, v{vL4}")
    def kload(i):
        if i < 3: A(f"buffer_load_dword v{vKR+i}, v{vT+1}, s[{sK}:{sK+3}], 0 offen offset:{1280*i}")
        else:
            A(f"s_add_u32 s{sT0}, s{sB0}, {1280 * (i - 3)}")
            A(f"buffer_load_dword v{vKR+i}, v{vL4}, s[{sK}:{sK+3}], s{sT0} offen")
            A(f"buffer_load_dword v{vVR+i-3}, v{vL4}, s[{sV}:{sV+3}], s{sT0} offen")
    A(f"s_mov_b32 s{sI}, 5")
    La = A.newlabel("kv")
    A.label(La)
    A(f"buffer_load_dwordx4 {v(vW,4)}, v{vL16}, s[{sAux}:{sAux+3}], s{sCh} offen")
    for i in range(19): kload(i)
    A("s_waitcnt vmcnt(32)")
    for c in range(2):
        for h in range(2):
            lo(vSK + 2 * (2 * h) + c, vW + 2 * c + h); hi(vSK + 2 * (2 * h + 1) + c, vW + 2 * c + h)
    for i in range(3):
        lo(vKH + 2 * (i + 1), vKR + i); hi(vKH + 2 * (i + 1) + 1, vKR + i)
    for i in range(32):
        if i < 16:
            kload(19 + i)
            A("s_waitcnt vmcnt(32)")
        else:
            A(f"s_waitcnt vmcnt({2 * (31 - i)})")
        kv = vKV + 2 * (i & 1)
        lo(vKH + 2 * (i & 3), vKR + 3 + i); hi(vKH + 2 * (i & 3) + 1, vKR + 3 + i)
        lo(kv, vVR + i); hi(kv + 1, vVR + i)
        acc, trm = vT + 4, vT + 6
        for m in (3, 2, 1, 0):
            d = acc if m == 3 else trm
            A(f"v_pk_mul_f32 {v(d,2)}, {v(vKH+2*((i-m)&3),2)}, {v(vSK+2*m,2)}")
            rnd(d)
            if m != 3:
                A(f"v_pk_add_f32 {v(acc,2)}, {v(acc,2)}, {v(trm,2)}")
                rnd(acc)
        A(f"v_pk_mul_f32 {v(kv,2)}, {v(acc,2)}, {v(kv,2)}")
        if i & 1:
            for c in range(2):
                A(f"v_cvt_pk_bf16_f32 v{vO+16*c+15-(i>>1)}, v{vKV+2+c}, v{vKV+c}")
    A("s_barrier")
    for c in range(2):
        for q in range(4):
            A(f"ds_write_b128 v{vLw}, {v(vO+16*c+4*q,4)} offset:{TP*c+16*q}")
    A("s_waitcnt lgkmcnt(0)")
    A("s_barrier")
    for m in range(8):
        A(f"ds_read_b128 {v(vO+4*m,4)}, v{vLr} offset:{4*TP*m}")
    for m in range(8):
        A(f"s_waitcnt lgkmcnt({7-m})")
        A(f"buffer_store_dwordx4 {v(vO+4*m,4)}, v{vSt}, {WSR}, s{sB1} offen sc1")
        A(f"s_add_u32 s{sB1}, s{sB1}, {16384 if m < 7 else 128 * 4096 - 7 * 16384}")
    A(f"s_add_u32 s{sB0}, s{sB0}, 256")
    A(f"v_add_u32 v{vT+1}, 256, v{vT+1}")
    A(f"s_add_u32 s{sCh}, s{sCh}, 1024")
    A(f"s_sub_u32 s{sI}, s{sI}, 1")
    A(f"s_cmp_lg_u32 s{sI}, 0")
    A(f"s_cbranch_scc1 {La}")
    A(f"s_lshl_b32 s{sT0}, s{sWV}, 2")
    A(f"s_add_u32 s{sT0}, s{sT0}, {G.GFLAG}")
    A(f"v_mov_b32 v{vT}, 1")
    A("s_waitcnt vmcnt(0)")
    A(f"buffer_store_dword v{vT}, v{vFlagO}, {WSR}, s{sT0} offen sc1")
    A("s_barrier")
    G.ostamp(A, 0, 5)
    vAo, vBo, vEo, vCo, vCw, vCo2, vYw, vYr = 20, 21, 22, 23, 24, 25, 26, 27
    vD, vAcc8, vBf = 28, 72, 120
    vE, vD1, vE1 = 144, 152, 160
    vUw, vDv, vFo, vU = 68, 69, 3, 104
    vFr = 120
    A(f"v_and_b32 v{vT}, 15, v0")
    A(f"v_lshrrev_b32 v{vT+1}, 4, v0")
    A(f"v_add_u32 v{vT+2}, 1, v{vT}")
    A(f"v_and_b32 v{vT+3}, 7, v{vT+2}")
    A(f"v_mul_u32_u24 v{vT+3}, {CP}, v{vT+3}")
    A(f"v_lshrrev_b32 v{vT+2}, 3, v{vT+2}")
    A(f"v_add_u32 v{vT+2}, v{vT+2}, v{vT+1}")
    A(f"v_lshl_add_u32 v{vAo}, v{vT+2}, 4, v{vT+3}")
    A(f"s_add_u32 s{sT0}, s{sLds}, {FOFF}")
    A(f"v_add_u32 v{vAo}, s{sT0}, v{vAo}")
    A(f"v_add_u32 v{vCw}, s{sT0}, v{vL16}")
    A(f"v_lshlrev_b32 v{vT+2}, 5, v{vT}")
    A(f"v_lshlrev_b32 v{vT+3}, 4, v{vT+1}")
    A(f"v_sub_u32 v{vBo}, v{vT+3}, v{vT+2}")
    A(f"v_add_u32 v{vBo}, {(2032 - 1792) * 2}, v{vBo}")
    A(f"v_add_u32 v{vBo}, s{sLds}, v{vBo}")
    A(f"v_lshlrev_b32 v{vT+3}, 3, v{vT+1}")
    A(f"v_add_u32 v{vT+3}, v{vT+3}, v{vT+2}")
    A(f"v_sub_u32 v{vEo}, {(2044 - 1792) * 2}, v{vT+3}")
    A(f"v_add_u32 v{vEo}, s{sLds}, v{vEo}")
    A(f"s_add_u32 s{sT0}, s{sLds}, {YOFF}")
    A(f"v_add_u32 v{vYw}, s{sT0}, v{vT+3}")
    A(f"v_add_u32 v{vYr}, s{sT0}, v{vL16}")
    A(f"v_subrev_u32 v{vCo}, 32, v{vL16}")
    A(f"v_subrev_u32 v{vCo2}, 16, v{vL16}")
    A(f"v_lshlrev_b32 v{vFo}, 2, v0")
    for r in range(4): A(f"v_mov_b32 v{vT+4+r}, 0")
    A(f"v_min_u32 v{vT+2}, 31, v0")
    A(f"v_lshlrev_b32 v{vT+2}, 4, v{vT+2}")
    A(f"v_add_u32 v{vT+2}, s{sLds}, v{vT+2}")
    A(f"ds_write_b128 v{vT+2}, {v(vT+4,4)} offset:4096")
    A(f"v_add_u32 v{vUw}, s{sLds}, v{vL16}")
    A(f"s_mov_b64 s[{sF}:{sF+1}], s[{sPf}:{sPf+1}]")
    srd(A, sF, 4096)
    A(f"s_lshl_b32 s{sT0}, s{sWV}, 12")
    A(f"s_add_u32 s{sF}, s{sF}, s{sT0}")
    A(f"s_addc_u32 s{sF+1}, s{sF+1}, 0")
    A(f"s_mov_b64 s[{sAux}:{sAux+1}], s[{sPd}:{sPd+1}]")
    srd(A, sAux, 1280)
    A(f"s_lshl_b32 s{sCU}, s{sWV}, 1")
    A(f"s_lshl_b32 s{sB0}, s{sWV}, 12")
    A(f"s_add_u32 s{sB1}, s{sB0}, {G.YT}")
    A(f"s_add_u32 s{sB0}, s{sB0}, {G.KVT}")
    A(f"s_mov_b32 s{sCh}, 0")
    def fetch():
        for m in range(5):
            for h in range(2):
                if m == 0: A(f"buffer_load_dwordx4 {v(vD+4*h,4)}, v{vCo if h == 0 else vCo2}, s[{sF}:{sF+3}], 0 offen")
                else: A(f"buffer_load_dwordx4 {v(vD+8*m+4*h,4)}, v{vL16}, s[{sF}:{sF+3}], 0 offen offset:{1024*m-32+16*h}")
        A(f"v_mov_b32 v{vT}, 0")
        A(f"buffer_load_ushort v{vT+12}, v{vT}, s[{sAux}:{sAux+3}], s{sCU} offen")
        A(f"s_add_u32 s{sCU}, s{sCU}, 128")
        for m in range(4):
            A(f"buffer_load_dwordx4 {v(vU+4*m,4)}, v{vL16}, {WSR}, s{sB0} offen offset:{1024*m} sc1")
        A(f"s_add_u32 s{sB0}, s{sB0}, {64 * 4096}")
        A(f"s_add_u32 s{sF}, s{sF}, {64 * 4096}")
        A(f"s_addc_u32 s{sF+1}, s{sF+1}, 0")
    Lw = A.newlabel("gw")
    A(f"s_mov_b32 s{sT0}, {G.GFLAG}")
    A.label(Lw)
    A("s_sleep 8")
    A(f"buffer_load_dword v{vT}, v{vFo}, {WSR}, s{sT0} offen sc1")
    budget_check(A, 10)
    A("s_waitcnt vmcnt(0)")
    A(f"v_cmp_ne_u32 vcc, 1, v{vT}")
    A(f"s_cbranch_vccnz {Lw}")
    fetch()
    Lc = A.newlabel("chan")
    A.label(Lc)
    A("s_waitcnt vmcnt(0)")
    lo(vDv, vT + 12)
    for m in range(4):
        A(f"ds_write_b128 v{vUw}, {v(vU+4*m,4)} offset:{1024*m}")
    for m in range(5):
        D = vD + 8 * m
        if m == 4:
            A("s_mov_b64 exec, 15")
        for k in range(7): A(f"v_alignbit_b32 v{vE+k}, v{D+k+1}, v{D+k}, 16")
        for k in range(6): A(f"v_mov_b32 v{vD1+k}, v{D+k+1}")
        for k in range(6): A(f"v_mov_b32 v{vE1+k}, v{vE+k+1}")
        src = [D, vE, vD1, vE1, D + 2, vE + 2, vD1 + 2, vE1 + 2]
        for sg in range(8):
            A(f"ds_write_b128 v{vCw}, {v(src[sg],4)} offset:{sg * CP + 1024 * m}")
    A("s_mov_b64 exec, -1")
    A("s_waitcnt lgkmcnt(0)")
    Lnf = A.newlabel("nofetch")
    A(f"s_cmp_eq_u32 s{sCh}, 9")
    A(f"s_cbranch_scc1 {Lnf}")
    fetch()
    A.label(Lnf)
    def rdset(r):
        b = vFr + 64 * (r & 1)
        L = []
        for k in range(8):
            L.append(f"ds_read_b128 {v(b+32+4*k,4)}, v{vBo} offset:{(7-k)*512 + 64*r}")
            L.append(f"ds_read_b128 {v(b+4*k,4)}, v{vAo} offset:{64*(r+8*k)}")
        return L
    for x in rdset(0)[:14]: A(x)
    A("s_waitcnt lgkmcnt(6)")
    for x in rdset(0)[14:]: A(x)
    for r in range(8):
        b = vFr + 64 * (r & 1)
        nx = rdset(r + 1) if r < 7 else []
        A("s_waitcnt lgkmcnt(0)")
        n = 0
        for k in range(8):
            for T in range(k, 8):
                cc = "0" if (r == 0 and k == 0) else v(vAcc8 + 4 * T, 4)
                A(f"v_mfma_f32_16x16x32_bf16 {v(vAcc8+4*T,4)}, {v(b+4*k,4)}, {v(b+32+4*(T-k),4)}, {cc}")
                if n % 2 == 0 and nx: A(nx.pop(0))
                n += 1
    for T in range(8):
        A(f"ds_read_b64 {v(vBf+2*T,2)}, v{vEo} offset:{(7-T)*512}")
    A("s_waitcnt lgkmcnt(0)")
    for T in range(8):
        acc = vAcc8 + 4 * T
        rnd(acc); rnd(acc + 2)
        hi(vT + 4, vBf + 2 * T + 1); lo(vT + 5, vBf + 2 * T + 1); hi(vT + 6, vBf + 2 * T); lo(vT + 7, vBf + 2 * T)
        for r in range(4): A(f"v_mul_f32 v{vT+4+r}, v{vDv}, v{vT+4+r}")
        rnd(vT + 4); rnd(vT + 6)
        A(f"v_pk_add_f32 {v(acc,2)}, {v(acc,2)}, {v(vT+4,2)}")
        A(f"v_pk_add_f32 {v(acc+2,2)}, {v(acc+2,2)}, {v(vT+6,2)}")
        A(f"v_cvt_pk_bf16_f32 v{vT+8}, v{acc}, v{acc+1}")
        A(f"v_cvt_pk_bf16_f32 v{vT+9}, v{acc+2}, v{acc+3}")
        A(f"ds_write_b64 v{vYw}, {v(vT+8,2)} offset:{T*512}")
    A("s_waitcnt lgkmcnt(0)")
    for m in range(4):
        A(f"ds_read_b128 {v(vBf+4*m,4)}, v{vYr} offset:{1024*m}")
    for m in range(4):
        A(f"s_waitcnt lgkmcnt({3-m})")
        A(f"buffer_store_dwordx4 {v(vBf+4*m,4)}, v{vL16}, {WSR}, s{sB1} offen offset:{1024*m} sc1")
    A(f"s_add_u32 s{sB1}, s{sB1}, {64 * 4096}")
    A(f"s_add_u32 s{sCh}, s{sCh}, 1")
    A(f"s_lshl_b32 s{sT0}, s{sWV}, 2")
    A(f"s_add_u32 s{sT0}, s{sT0}, {G.CVFLAG}")
    A(f"v_mov_b32 v{vT}, s{sCh}")
    A("s_waitcnt vmcnt(0)")
    A(f"buffer_store_dword v{vT}, v{vFlagO}, {WSR}, s{sT0} offen sc1")
    A(f"s_cmp_lg_u32 s{sCh}, 10")
    A(f"s_cbranch_scc1 {Lc}")
    G.ostamp(A, 0, 2)

    if P.get("nobg") == 2: A("s_endpgm")
    A(f"s_mov_b32 s{sU}, s{sWV}")
    A(f"s_mov_b32 s{sUe}, {20 * (P['nseg'] - 4)}")
    A.label("L_mixent")
    vYs, vXs, vTr, vDl, vGo2, vFl, vF32, vLin = 20, 21, 22, 23, 24, 25, 26, 27
    vPp, vAc, vY, vXv, vGt, vSel = 28, 92, 108, 116, 124, 128
    A(f"s_load_dwordx2 s[{sAux}:{sAux+1}], s[0:1], 112")
    A(f"s_mov_b32 s{sMaskHi}, 0xffff0000")
    A(f"v_lshlrev_b32 v{vL16}, 4, v0")
    A(f"v_lshlrev_b32 v{vFo}, 2, v0")
    A(f"v_mov_b32 v{vFlagO}, 0")
    A(f"v_lshrrev_b32 v{vT}, 2, v0")
    A(f"v_and_b32 v{vT+1}, 3, v0")
    A(f"v_lshlrev_b32 v{vT+2}, 12, v{vT}")
    A(f"v_lshl_add_u32 v{vYs}, v{vT+1}, 4, v{vT+2}")
    A(f"v_mul_u32_u24 v{vT+2}, 1280, v{vT}")
    A(f"v_lshl_add_u32 v{vXs}, v{vT+1}, 4, v{vT+2}")
    A(f"v_lshlrev_b32 v{vT}, 6, v{vT}")
    A(f"v_lshl_add_u32 v{vT}, v{vT+1}, 3, v{vT}")
    A(f"v_add_u32 v{vTr}, s{sLds}, v{vT}")
    A(f"v_and_b32 v{vT}, 15, v0")
    A(f"v_lshrrev_b32 v{vT+1}, 4, v0")
    A(f"v_lshlrev_b32 v{vGo2}, 2, v{vT}")
    A(f"v_lshlrev_b32 v{vT+2}, 6, v{vT}")
    A(f"v_lshl_add_u32 v{vT+2}, v{vT+1}, 3, v{vT+2}")
    A(f"s_add_u32 s{sT0}, s{sLds}, 2048")
    A(f"v_add_u32 v{vDl}, s{sT0}, v{vT+2}")
    A(f"v_add_u32 v{vLin}, s{sT0}, v{vL16}")
    A(f"v_and_b32 v{vF32}, 31, v0")
    A(f"v_lshlrev_b32 v{vF32}, 2, v{vF32}")
    A(f"v_and_b32 v{vT+2}, 1, v0")
    A(f"v_lshlrev_b32 v{vT+2}, 4, v{vT+2}")
    A(f"v_mov_b32 v{vT+3}, 0x3f80")
    A(f"v_lshlrev_b32 v{vT+2}, v{vT+2}, v{vT+3}")
    A(f"v_lshrrev_b32 v{vT+3}, 2, v{vT}")
    A(f"v_cmp_eq_u32 vcc, v{vT+3}, v{vT+1}")
    A(f"v_bfe_u32 v{vT+3}, v0, 1, 1")
    A("s_nop 0")
    A(f"v_cndmask_b32 v{vT+2}, 0, v{vT+2}, vcc")
    A(f"v_cmp_eq_u32 vcc, 0, v{vT+3}")
    for r in (2, 3, 4, 5): A(f"v_mov_b32 v{vSel+r}, 0")
    A(f"v_cndmask_b32 v{vSel}, 0, v{vT+2}, vcc")
    A(f"v_cndmask_b32 v{vSel+1}, v{vT+2}, 0, vcc")
    A(f"v_mov_b32 v{vSel+6}, v{vSel}")
    A(f"v_mov_b32 v{vSel+7}, v{vSel+1}")
    A("s_waitcnt lgkmcnt(0)")
    srd(A, sAux, 2048 * 1280)
    Lm = A.newlabel("mix")
    A.label(Lm)
    A(f"s_mul_i32 s{sSeg}, s{sU}, 3277")
    A(f"s_lshr_b32 s{sSeg}, s{sSeg}, 16")
    A(f"s_mul_i32 s{sT0}, s{sSeg}, 20")
    A(f"s_sub_u32 s{sJ}, s{sU}, s{sT0}")
    A(f"s_lshr_b32 s{sCh}, s{sJ}, 1")
    Lw = A.newlabel("mc")
    A(f"s_mov_b32 s{sT2}, {G.CVFLAG}")
    A.label(Lw)
    A(f"buffer_load_dword v{vT+2}, v{vFo}, {WSR}, s{sT2} offen sc1")
    budget_check(A, 10)
    A("s_waitcnt vmcnt(0)")
    A(f"v_cmp_ge_u32 vcc, s{sCh}, v{vT+2}")
    A(f"s_cbranch_vccnz {Lw}")
    A(f"s_lshl_b32 s{sT0}, s{sJ}, 17")
    A(f"s_lshl_b32 s{sT1}, s{sSeg}, 6")
    A(f"s_add_u32 s{sT0}, s{sT0}, s{sT1}")
    A(f"s_mov_b32 m0, s{sLds}")
    A(f"s_add_u32 s{sT0}, s{sT0}, {G.YT}")
    A(f"buffer_load_dwordx4 v{vYs}, {WSR}, s{sT0} offen sc1 lds")
    A("s_add_u32 m0, m0, 1024")
    A(f"s_add_u32 s{sT0}, s{sT0}, 65536")
    A(f"buffer_load_dwordx4 v{vYs}, {WSR}, s{sT0} offen sc1 lds")
    A("s_add_u32 m0, m0, 1024")
    A(f"s_mul_i32 s{sB1}, s{sSeg}, 40960")
    A(f"s_lshl_b32 s{sT1}, s{sJ}, 6")
    A(f"s_add_u32 s{sB1}, s{sB1}, s{sT1}")
    A(f"buffer_load_dwordx4 v{vXs}, {XS}, s{sB1} offen lds")
    A("s_add_u32 m0, m0, 1024")
    A(f"s_add_u32 s{sT1}, s{sB1}, 20480")
    A(f"buffer_load_dwordx4 v{vXs}, {XS}, s{sT1} offen lds")
    A(f"s_lshl_b32 s{sT2}, s{sSeg}, 7")
    A(f"s_add_u32 s{sT2}, s{sT2}, {G.GV}")
    A(f"buffer_load_dword v{vGt}, v{vGo2}, {WSR}, s{sT2} offen sc1")
    A(f"buffer_load_dword v{vGt+1}, v{vGo2}, {WSR}, s{sT2} offen offset:64 sc1")
    A(f"s_mul_i32 s{sB0}, s{sSeg}, {G.XP_SEG}")
    A(f"s_lshl_b32 s{sT0}, s{sCh}, 15")
    A(f"s_add_u32 s{sB0}, s{sB0}, s{sT0}")
    A(f"s_and_b32 s{sT0}, s{sJ}, 1")
    A(f"s_lshl_b32 s{sT0}, s{sT0}, 11")
    A(f"s_add_u32 s{sB0}, s{sB0}, s{sT0}")
    A(f"s_add_u32 s{sB0}, s{sB0}, {G.XPART}")
    A("s_waitcnt vmcnt(0)")
    for tt in range(2):
        for c in range(2):
            A(f"ds_read_b64_tr_b16 {v(vY+4*tt+2*c,2)}, v{vTr} offset:{1024*c+32*tt}")
            A(f"ds_read_b64 {v(vXv+4*tt+2*c,2)}, v{vDl} offset:{1024*tt+32*c}")
    for tt in range(2):
        A(f"v_sub_f32 v{vGt+2+tt}, 1.0, v{vGt+tt}")
    rnd(vGt + 2)
    A("s_waitcnt lgkmcnt(0)")
    for i in range(8):
        lo(vT + 4, vY + i); hi(vT + 5, vY + i); lo(vT + 6, vXv + i); hi(vT + 7, vXv + i)
        A(f"v_pk_mul_f32 {v(vT+4,2)}, {v(vT+4,2)}, {v(vT+6,2)}")
        rnd(vT + 4)
        A(f"v_mul_f32 v{vT+4}, v{vGt+2+i//4}, v{vT+4}")
        A(f"v_mul_f32 v{vT+5}, v{vGt+2+i//4}, v{vT+5}")
        A(f"v_cvt_pk_bf16_f32 v{vY+i}, v{vT+4}, v{vT+5}")
    A(f"s_lshl_b32 s{sT1}, s{sCh}, 7")
    A(f"s_add_u32 s{sT1}, s{sT1}, {G.XPFLAG}")
    A(f"s_lshl_b32 s{sT0}, s{sG}, 7")
    A(f"s_add_u32 s{sT0}, s{sT0}, {G.S1MARK + (1024 if P['mk2'] else 0)}")
    A(f"s_add_u32 s{sI}, s{sSeg}, 4")
    A(f"s_cmp_ge_u32 s{sSeg}, {P['nseg'] - 4}")
    A(f"s_cselect_b32 s{sT1}, s{sT1}, s{sT0}")
    A(f"s_cselect_b32 s{sI}, s{sSeg}, s{sI}")
    A(f"s_cselect_b32 s{sT0}, -1, 0")
    A(f"v_and_b32 v{vT+3}, s{sT0}, v{vF32}")
    Lw, Lgo, Lq, Lq2 = A.newlabel("mw"), A.newlabel("mgo"), A.newlabel("mq"), A.newlabel("mq2")
    A.label(Lw)
    A(f"buffer_load_dword v{vFl}, v{vT+3}, {WSR}, s{sT1} offen sc1")
    budget_check(A, 11)
    A("s_waitcnt vmcnt(0)")
    A(f"v_cmp_ge_i32 vcc, s{sI}, v{vFl}")
    A(f"s_cbranch_vccz {Lgo}")
    A(f"s_cmp_ge_u32 s{sSeg}, {P['nseg'] - 4}")
    A(f"s_cbranch_scc1 {Lw}")
    A(f"s_sleep {P.get('mix_sleep', 16)}")
    A(f"s_branch {Lw}")
    A.label(Lgo)
    A(f"s_cmp_ge_u32 s{sSeg}, {P['nseg'] - 4}")
    A(f"s_cbranch_scc1 {Lq2}")
    if P.get("mix_gate", 1):
        A(f"v_readfirstlane_b32 s{sT2}, v{vFl}")
        A(f"s_add_u32 s{sT0}, s{sSeg}, {P.get('mq_lag', 12)}")
        A(f"s_cmp_ge_u32 s{sT2}, s{sT0}")
        A(f"s_cbranch_scc1 {Lq2}")
        A.label(Lq)
        A(f"s_cmp_ge_u32 s{sT2}, {P['nseg'] - 1}")
        A(f"s_cbranch_scc1 {Lq2}")
        A(f"s_sleep {P.get('mq_sleep', 3)}")
        A(f"buffer_load_dword v{vT+2}, v{vFlagO}, {WSR}, s{sT1} offen sc1")
        budget_check(A, 15)
        A("s_waitcnt vmcnt(0)")
        A(f"v_readfirstlane_b32 s{sT0}, v{vT+2}")
        A(f"s_cmp_eq_u32 s{sT0}, s{sT2}")
        A(f"s_cbranch_scc1 {Lq}")
        if P.get("mq_dly"): A(f"s_sleep {P['mq_dly']}")
    A.label(Lq2)
    for g in range(8):
        if g: A(f"s_add_u32 s{sB0}, s{sB0}, 4096")
        for c in range(2):
            A(f"buffer_load_dwordx4 {v(vPp+8*g+4*c,4)}, v{vL16}, {WSR}, s{sB0} offen offset:{1024*c} sc1")
    for g in range(8):
        for c in range(2):
            A(f"s_waitcnt vmcnt({15 - 2 * g - c})")
            for tt in range(2):
                acc = vAc + 8 * tt + 4 * c
                A(f"v_mfma_f32_16x16x32_bf16 {v(acc,4)}, {v(vSel+4*tt,4)}, {v(vPp+8*g+4*c,4)}, {'0' if g == 0 else v(acc,4)}")
    A.nop(6)
    for tt in range(2):
        for c in range(2):
            for h in range(2):
                x = vAc + 8 * tt + 4 * c + 2 * h
                i = 4 * tt + 2 * c + h
                rnd(x)
                A(f"v_mul_f32 v{x}, v{vGt+tt}, v{x}")
                A(f"v_mul_f32 v{x+1}, v{vGt+tt}, v{x+1}")
                rnd(x)
                lo(vT + 4, vY + i); hi(vT + 5, vY + i)
                A(f"v_pk_add_f32 {v(x,2)}, {v(x,2)}, {v(vT+4,2)}")
                A(f"v_cvt_pk_bf16_f32 v{vXv+i}, v{x}, v{x+1}")
            A(f"ds_write_b64 v{vDl}, {v(vXv+4*tt+2*c,2)} offset:{1024*tt+32*c}")
    A("s_waitcnt lgkmcnt(0)")
    for m in range(2):
        A(f"ds_read_b128 {v(vY+4*m,4)}, v{vLin} offset:{1024*m}")
    A(f"s_add_u32 s{sT1}, s{sB1}, 20480")
    A("s_waitcnt lgkmcnt(1)")
    A(f"buffer_store_dwordx4 {v(vY,4)}, v{vXs}, s[{sAux}:{sAux+3}], s{sB1} offen")
    A("s_waitcnt lgkmcnt(0)")
    A(f"buffer_store_dwordx4 {v(vY+4,4)}, v{vXs}, s[{sAux}:{sAux+3}], s{sT1} offen")
    A(f"s_add_u32 s{sU}, s{sU}, 64")
    A(f"s_cmp_lt_u32 s{sU}, s{sUe}")
    A(f"s_cbranch_scc1 {Lm}")
    if P["prof"]: A("s_waitcnt vmcnt(0)")
    G.ostamp(A, 0, 3)
    A("s_endpgm")
```

```python
import sys, math, struct
from asmlib import Asm, v, a, s, check_hazards

NAME = "gated_mix__memory_aug_recurrent_mem_tr__ssm_conv_h3__prompt_kernel"

P = dict(
    s3_miss=0, s3_slp=3, h1_slp=3, dp=3, near=1, h2_mask=0x3ffff, s3_rot=40, xs_slp=0, mk2=0, gh=0, gh_j=0, h3oob=1, wpf=1, wpf_nt=0, al1=-1, al2=-1, s3_two=0, s2_late=1, xo_pos=0, ldev=3, xpf=5, touch=4, cpf=0, wnt=1, ppos=12, dma0=10, dma_e=0, mk1=0, nvc=4, mk_pos=1, h1_two=2,
    s3_sleep=16,
    h1_nop=50,
    h2_miss=15,
    h2_sleep=8,
    prof=0,
    nseg=64,
    force_global=0,
)

MEMR   = 0x0
QKVR   = 0x50000
PXR    = 0x170000
PART   = 0x200000
PART_SLOT = 163840
NEARP  = 0x2A0000
GHINT  = NEARP + 0x380
POISON_END = 0x2A4000
FLAGS  = 0x2B0000
XFLAG  = FLAGS
XPFLAG = FLAGS + 0x1000
CVFLAG = FLAGS + 0x2000
GFLAG  = FLAGS + 0x2200
S2MARK = FLAGS + 0x2400
S1MARK = FLAGS + 0x2800
FLAGS_END = FLAGS + 0x3000
XR     = 0x2C0000
XR_HEAD = 36864 + 1024
XR_SLOT = 4 * XR_HEAD
XR_G   = 4 * XR_SLOT
XPART  = 0x900000
XP_SEG = 327680
KVT    = 0x3200000
YT     = 0x3800000
GV     = 0x3500000
PROF   = 0x4000000
MEMDBG = 0x4800000
WS_SIZE = 0x10000000
OOB = 0x20000000
DBG_CEN, DBG_NEAR, DBG_FAIL, DBG_INIT = 64, 128, 160, 224

XOF = ["sc1", "", "sc1 nt", "sc0 sc1", "nt"]
def f2u(x): return struct.unpack("<I", struct.pack("<f", x))[0]

sWS, sX, sRO, sDBG = 4, 8, 12, 16
sG, sR, sW, sBUD, sS, sXCC = 20, 21, 22, 23, 24, 25
sT0, sT1, sT2, sT3 = 26, 27, 28, 29

WSR = f"s[{sWS}:{sWS+3}]"

def srd(A, base, size):
    A(f"s_and_b32 s{base+1}, s{base+1}, 0xffff")
    A(f"s_mov_b32 s{base+2}, {size}")
    A(f"s_mov_b32 s{base+3}, 0x20000")

def budget_check(A, code):
    A(f"s_sub_u32 s{sBUD}, s{sBUD}, 1")
    A(f"s_movk_i32 s{sT3}, {code}")
    A(f"s_cbranch_scc1 L_fail")

def dense_poll(A, regs, issue, missing, code):
    L, Lok = A.newlabel("dp"), A.newlabel("dpok")
    n = len(regs)
    for i, r in enumerate(regs):
        issue(r)
        if i < n - 1: A("s_sleep 1")
    A.label(L)
    for r in regs:
        A(f"s_waitcnt vmcnt({n-1})")
        A(f"{missing(r)} {Lok}")
        issue(r)
    budget_check(A, code)
    A(f"s_branch {L}")
    A.label(Lok)

def align(A, pad):
    if pad < 0: return
    A(".p2align 6")
    for _ in range(pad // 4): A("s_nop 0")

def stamp(A, idx, vt=250):
    if P["prof"] not in (1, 2) and not (P["prof"] == 4 and vt == 250 and idx == 6): return
    A(f"s_memrealtime s[90:91]")
    A(f"s_waitcnt lgkmcnt(0)")
    A(f"v_writelane_b32 v{vt}, s90, {idx}")
    if P["prof"] == 2:
        A(f"s_memtime s[90:91]")
        A(f"s_waitcnt lgkmcnt(0)")
        A(f"v_writelane_b32 v{vt}, s90, {idx+8}")

def dstamp(A, idx, inv=False, vt=254):
    if not P.get("diag"): return
    L = A.newlabel("ds")
    A(f"s_or_b32 s92, s2, s{sW}")
    A(f"s_cbranch_scc1 {L}")
    A("s_memrealtime s[90:91]")
    A("s_memtime s[86:87]")
    A("s_waitcnt lgkmcnt(0)")
    A(f"v_mov_b32 v{vt}, s90")
    A(f"v_mov_b32 v{vt+1}, s86")
    A(f"v_mov_b32 v{vt-1}, {8 * idx}")
    A("s_mov_b64 exec, 1")
    A(f"buffer_store_dwordx2 v[{vt}:{vt+1}], v{vt-1}, s[{sDBG}:{sDBG+3}], 0 offen")
    A("s_mov_b64 exec, -1")
    A.label(L)

def ostamp(A, row, idx, vt=254):
    if P.get("diag") and idx in (0, 1, 3): dstamp(A, {0: 0, 1: 1, 3: 7}[idx])
    if not P["prof"]: return
    A("s_memrealtime s[90:91]")
    A("s_lshl_b32 s92, s2, 2")
    A(f"s_add_u32 s92, s92, s{sW}")
    A("s_mul_i32 s92, s92, 80")
    A(f"s_add_u32 s92, s92, {row}")
    A("s_lshl_b32 s92, s92, 6")
    A(f"s_add_u32 s92, s92, {PROF + 4 * idx}")
    A("s_waitcnt lgkmcnt(0)")
    A(f"v_mov_b32 v{vt}, s90")
    A(f"v_mov_b32 v{vt+1}, 0")
    A("s_mov_b64 exec, 1")
    A(f"buffer_store_dword v{vt}, v{vt+1}, s[{sWS}:{sWS+3}], s92 offen")
    A("s_mov_b64 exec, -1")

def fstamp(A, idx, vt):
    if P["prof"] not in (3, 5): return
    A(f"s_mem{'real' if P['prof'] == 5 else ''}time s[{60+2*idx}:{61+2*idx}]")

def fstamp_collect(A, n, vt):
    if P["prof"] not in (3, 5): return
    A("s_waitcnt lgkmcnt(0)")
    for i in range(n):
        A(f"v_writelane_b32 v{vt}, s{60+2*i}, {i}")

def stamp_flush(A, vt=250, vtmp=251):
    if not P["prof"] or (P["prof"] == 4 and vt != 250): return
    A(f"s_lshl_b32 s90, s2, 2")
    A(f"s_add_u32 s90, s90, s{sW}")
    A(f"s_mul_i32 s90, s90, 80")
    A(f"s_add_u32 s90, s90, s{sS}")
    A(f"s_add_u32 s90, s90, 4")
    A(f"s_lshl_b32 s90, s90, 6")
    A(f"s_add_u32 s90, s90, {PROF}")
    A(f"v_lshlrev_b32 v{vtmp}, 2, v0")
    A(f"s_mov_b64 exec, 0xffff")
    A(f"buffer_store_dword v{vt}, v{vtmp}, s[{sWS}:{sWS+3}], s90 offen")
    A(f"s_mov_b64 exec, -1")

def gen_init(A):
    A.label("L_init")
    if P["cpf"]:
        A("s_getpc_b64 s[30:31]")
        A.label("L_pc")
        A(f"s_sub_u32 s{sT0}, s{sR}, 28")
        A(f"s_lshl_b32 s{sT0}, s{sT0}, 2")
        A(f"s_add_u32 s{sT0}, s{sT0}, s{sW}")
        A(f"s_mul_i32 s{sT0}, s{sT0}, 3072")
        A(f"v_lshlrev_b32 v1, 4, v0")
        A(f"v_add_u32 v1, s{sT0}, v1")
        A(f"v_min_u32 v1, L_code_end-L_pc-2048-16, v1")
        for i in range(3):
            A(f"global_load_dwordx4 v[20:23], v1, s[30:31] offset:{1024*i}")
    A("v_mov_b32 v4, -1\nv_mov_b32 v5, -1\nv_mov_b32 v6, -1\nv_mov_b32 v7, -1")
    A(f"s_load_dwordx2 s[{sRO}:{sRO+1}], s[0:1], 8")
    A(f"s_lshl_b32 s{sT0}, s{sW}, 6")
    A(f"v_add_u32 v9, s{sT0}, v0")
    A("v_lshlrev_b32 v1, 4, v9")
    A("s_waitcnt lgkmcnt(0)")
    srd(A, sRO, 10240)
    Lg0 = A.newlabel("ig")
    A(f"s_cmp_lg_u32 s{sR}, 31")
    A(f"s_cbranch_scc1 {Lg0}")
    for i in range(3):
        A(f"v_add_u32 v{36+i}, {256 * i}, v9")
        A(f"v_lshrrev_b32 v3, 6, v{36+i}")
        A(f"v_and_b32 v8, 7, v{36+i}")
        A(f"v_bfe_u32 v16, v{36+i}, 3, 1")
        A(f"v_bfe_u32 v10, v{36+i}, 4, 2")
        A("v_mul_u32_u24 v8, 1280, v8")
        A("v_lshl_add_u32 v8, v3, 7, v8")
        A("v_lshl_add_u32 v8, v10, 5, v8")
        A("v_lshl_add_u32 v8, v16, 2, v8")
        A(f"v_cmp_gt_u32 vcc, 640, v{36+i}")
        A(f"v_mov_b32 v11, {OOB}")
        A(f"v_lshlrev_b32 v{36+i}, 4, v{36+i}")
        A("v_cndmask_b32 v8, v11, v8, vcc")
        A(f"v_cndmask_b32 v{36+i}, v11, v{36+i}, vcc")
        for q in range(4):
            A(f"buffer_load_dword v{24+4*i+q}, v8, s[{sRO}:{sRO+3}], 0 offen offset:{8*q}")
    A(f"s_mul_i32 s{sT1}, s{sG}, 40960")
    A("s_waitcnt vmcnt(0)")
    for i in range(12):
        A(f"v_min_u32 v{24+i}, -2, v{24+i}")
    for i in range(3):
        A(f"buffer_store_dwordx4 v[{24+4*i}:{27+4*i}], v{36+i}, {WSR}, s{sT1} offen sc1")
    A.label(Lg0)
    A(f"s_sub_u32 s{sT0}, s2, 224")
    A(f"s_lshl_b32 s{sT0}, s{sT0}, 12")
    for base, size in ((QKVR, PXR + 8 * 49152 - QKVR), (PART, 4 * PART_SLOT)):
        A(f"s_add_u32 s{sT1}, s{sT0}, {base}")
        for i in range(size // 131072):
            A(f"buffer_store_dwordx4 v[4:7], v1, {WSR}, s{sT1} offen sc1")
            A(f"s_add_u32 s{sT1}, s{sT1}, 131072")
        assert size % 131072 == 0
    Lm, Lf, Ld = A.newlabel("im"), A.newlabel("if"), A.newlabel("id")
    A(f"s_cmp_eq_u32 s{sR}, 31")
    A(f"s_cbranch_scc1 {Ld}")
    A(f"s_cmp_eq_u32 s{sR}, 30")
    A(f"s_cbranch_scc1 {Lf}")
    A(f"s_mul_i32 s{sT1}, s{sG}, 40960")
    A(f"s_sub_u32 s{sT0}, s{sR}, 28")
    A(f"s_mul_i32 s{sT0}, s{sT0}, 15360")
    A(f"s_add_u32 s{sT1}, s{sT1}, s{sT0}")
    A(f"s_add_u32 s{sT1}, s{sT1}, 10240")
    for i in range(4):
        if i == 3:
            A("v_cmp_gt_u32 vcc, 192, v9")
            A(f"v_mov_b32 v2, {OOB}")
            A("s_nop 0")
            A("v_cndmask_b32 v1, v2, v1, vcc")
        A(f"buffer_store_dwordx4 v[4:7], v1, {WSR}, s{sT1} offen sc1")
        A(f"s_add_u32 s{sT1}, s{sT1}, 4096")
    A(f"s_branch {Ld}")
    A.label(Lf)
    A("v_mov_b32 v4, 0\nv_mov_b32 v5, 0\nv_mov_b32 v6, 0\nv_mov_b32 v7, 0")
    A("v_cmp_gt_u32 vcc, 96, v9")
    A(f"v_mov_b32 v2, {OOB}")
    A(f"s_mul_i32 s{sT1}, s{sG}, 1536")
    A("v_cndmask_b32 v1, v2, v1, vcc")
    A(f"s_add_u32 s{sT1}, s{sT1}, {FLAGS}")
    A(f"buffer_store_dwordx4 v[4:7], v1, {WSR}, s{sT1} offen sc1")
    A("v_lshlrev_b32 v1, 13, v9")
    A("v_cmp_gt_u32 vcc, 2, v9")
    A(f"s_lshl_b32 s{sT1}, s{sG}, 2")
    A(f"s_add_u32 s{sT1}, s{sT1}, {GHINT}")
    A("v_cndmask_b32 v1, v2, v1, vcc")
    A(f"buffer_store_dword v4, v1, {WSR}, s{sT1} offen sc1")
    A(f"s_branch {Ld}")
    A.label(Ld)
    A("s_waitcnt vmcnt(0) lgkmcnt(0)")
    A("s_barrier")
    Ln = A.newlabel("in")
    A(f"s_cmp_lg_u32 s{sW}, 0")
    A(f"s_cbranch_scc1 {Ln}")
    A("v_mov_b32 v2, 1")
    A(f"v_mov_b32 v3, {DBG_INIT}")
    A("s_mov_b64 exec, 1")
    A(f"buffer_atomic_add v2, v3, s[{sDBG}:{sDBG+3}], 0 offen")
    A("s_mov_b64 exec, -1")
    A.label(Ln)
    NT = 0
    if P["touch"] == 4:
        NT = XR_G // 16384
        A(f"s_sub_u32 s{sT0}, s{sR}, 28")
        A(f"s_lshl_b32 s{sT0}, s{sT0}, 2")
        A(f"s_add_u32 s{sT0}, s{sT0}, s{sW}")
        A(f"s_lshl_b32 s{sT0}, s{sT0}, 10")
        A(f"s_mul_i32 s{sT1}, s{sG}, {XR_G}")
        A(f"s_add_u32 s{sT0}, s{sT0}, s{sT1}")
        A(f"s_add_u32 s{sT0}, s{sT0}, {XR}")
        A("v_lshlrev_b32 v1, 4, v0")
        for i in range(NT):
            A(f"buffer_load_dwordx4 v[20:23], v1, {WSR}, s{sT0} offen sc1{' nt' if P.get('touch_nt') else ''}")
            A(f"s_add_u32 s{sT0}, s{sT0}, 16384")
    if P["wpf"]:
        NR = P["wpf"]
        A("s_load_dwordx4 s[32:35], s[0:1], 16")
        A("s_load_dwordx2 s[36:37], s[0:1], 32")
        A(f"s_sub_u32 s{sT0}, s{sR}, 28")
        A(f"s_lshl_b32 s{sT0}, s{sT0}, 2")
        A(f"s_add_u32 s{sT0}, s{sT0}, s{sW}")
        A(f"s_mul_i32 s{sT0}, s{sT0}, {8 * 12288}")
        A(f"s_mul_i32 s{sT1}, s{sG}, 1536")
        A(f"s_add_u32 s{sT0}, s{sT0}, s{sT1}")
        A(f"s_add_u32 s{sT0}, s{sT0}, {(640 - 128 * NR) * 12288}")
        A("v_lshrrev_b32 v1, 3, v0")
        A("v_mul_u32_u24 v1, 12288, v1")
        A("v_and_b32 v2, 7, v0")
        A("v_lshl_add_u32 v1, v2, 4, v1")
        A("s_waitcnt lgkmcnt(0)")
        for b in range(NR):
            for m in range(3):
                A(f"s_mov_b64 s[{sRO}:{sRO+1}], s[{32+2*m}:{33+2*m}]")
                srd(A, sRO, 640 * 12288)
                for c_ in range(12):
                    A(f"buffer_load_dwordx4 v[20:23], v1, s[{sRO}:{sRO+3}], s{sT0} offen offset:{128*c_}{' nt' if P['wpf_nt'] else ''}")
            A(f"s_add_u32 s{sT0}, s{sT0}, {128 * 12288}")
    A(f"s_cmp_lt_u32 s{sR}, 30")
    A("s_cbranch_scc1 L_xs")
    A("s_branch L_bg")

def gen_common_prologue(A):
    A("s_cmp_ge_u32 s2, 256")
    A("s_cbranch_scc1 L_end")
    A(f"s_load_dwordx2 s[{sWS}:{sWS+1}], s[0:1], 128")
    A(f"s_load_dwordx2 s[{sX}:{sX+1}], s[0:1], 0")
    A(f"s_load_dwordx2 s[{sDBG}:{sDBG+1}], s[0:1], 120")
    A("v_lshrrev_b32 v1, 6, v0")
    A(f"s_and_b32 s{sG}, s2, 7")
    A(f"v_readfirstlane_b32 s{sW}, v1")
    A("v_and_b32 v0, 63, v0")
    A(f"s_lshr_b32 s{sR}, s2, 3")
    if P.get("x_rx"): A(f"s_xor_b32 s{sR}, s{sR}, {P['x_rx']}")
    A(f"s_getreg_b32 s{sXCC}, hwreg(HW_REG_XCC_ID)")
    A(f"s_mov_b32 s{sBUD}, 400000")
    A("s_waitcnt lgkmcnt(0)")
    srd(A, sWS, WS_SIZE)
    srd(A, sX, 2048 * 1280)
    srd(A, sDBG, 256)
    ostamp(A, 0, 0)
    L = A.newlabel("nocensus")
    A(f"s_cmp_lg_u32 s{sW}, 0")
    A(f"s_cbranch_scc1 {L}")
    A(f"s_mul_i32 s{sT0}, s{sXCC}, 6")
    A(f"s_lshl_b64 s[{sT2}:{sT3}], 1, s{sT0}")
    A(f"s_cmp_lt_u32 s{sXCC}, 8")
    A(f"s_cselect_b64 s[{sT2}:{sT3}], s[{sT2}:{sT3}], 0")
    A(f"s_add_u32 s{sT3}, s{sT3}, 0x1000000")
    A(f"v_mov_b32 v2, s{sT2}")
    A(f"v_mov_b32 v3, s{sT3}")
    A(f"s_lshl_b32 s{sT0}, s{sG}, 3")
    A(f"v_mov_b32 v4, s{sT0}")
    A("s_mov_b64 exec, 1")
    A(f"buffer_atomic_add_x2 v[2:3], v4, s[{sDBG}:{sDBG+3}], 0 offen offset:{DBG_CEN}")
    A("s_mov_b64 exec, -1")
    A.label(L)

def gen_locality(A, lab_local, lab_global, vt):
    L = A.newlabel("loc")
    A(f"v_lshlrev_b32 v{vt}, 2, v0")
    A(f"s_lshl_b32 s93, s{sG}, 1")
    A(f"s_add_u32 s93, s93, {DBG_CEN // 4}")
    A(f"s_add_u32 s94, s93, 1")
    A.label(L)
    A(f"buffer_load_dword v{vt+1}, v{vt}, s[{sDBG}:{sDBG+3}], 0 offen sc1")
    budget_check(A, 1)
    A("s_waitcnt vmcnt(0)")
    A(f"v_readlane_b32 s{sT0}, v{vt+1}, s93")
    A(f"v_readlane_b32 s{sT1}, v{vt+1}, s94")
    A(f"v_readlane_b32 s{sT3}, v{vt+1}, {DBG_INIT // 4}")
    A(f"s_lshr_b32 s{sT2}, s{sT1}, 24")
    A(f"s_min_u32 s{sT2}, s{sT2}, s{sT3}")
    A(f"s_cmp_lt_u32 s{sT2}, 32")
    A(f"s_cbranch_scc1 {L}")
    if lab_local is None: return
    if P["force_global"]:
        A(f"s_branch {lab_global}")
    A(f"s_and_b32 s{sT1}, s{sT1}, 0xffffff")
    A(f"s_mul_i32 s{sT2}, s{sXCC}, 6")
    A(f"s_lshl_b64 s[{sT2}:{sT3}], 32, s{sT2}")
    A(f"s_cmp_eq_u64 s[{sT0}:{sT1}], s[{sT2}:{sT3}]")
    A(f"s_cbranch_scc0 {lab_global}")
    A(f"s_cmp_lt_u32 s{sXCC}, 8")
    A(f"s_cbranch_scc0 {lab_global}")
    A(f"s_branch {lab_local}")


def gen_s1(A):
    sU, sHH, sTY, sKS, sUP = 30, 31, 32, 33, 95
    sPartRd, sMem0, sMem1, sMem2, sQkv, sMemP, sQkvP = 34, 35, 36, 37, 38, 39, 40
    sXr, sXrEnd, sXrBase, sXflag, sXsrc, sLdsW = 41, 42, 43, 44, 45, 46
    sPartBase, sMemBase, sQkvBase, sXbuf, sH2 = 47, 48, 49, 50, 51
    vL16, vMemSt, vQkvSt, vIdx, vXg, vXrd, vXsum, vPois, vFlagO = 1, 2, 3, 4, 5, 6, 7, 8, 9
    vSel = 128
    vH = 132
    vHld, vHw, vHr, vMkO = 144, 145, 146, 147
    vH2 = 148
    vNearO = 160
    vXB3 = 164
    sPartP, vPois2, vPartSt = 52, 162, 161
    vMk2O = 190
    vMemPo, vQkvPo = 188, 189
    sMk, sMkW = 58, 59
    MEML = 81920
    vT = 10
    vM = 20
    vPt = 60
    vA = 76
    vMx = 84
    vXA = 88
    vXB = 104
    vXO = 120
    A.label("L_s1")
    A(f"s_lshl_b32 s{sU}, s{sR}, 2")
    A(f"s_add_u32 s{sU}, s{sU}, s{sW}")
    A(f"s_mul_i32 s{sTY}, s{sR}, 43")
    A(f"s_lshr_b32 s{sTY}, s{sTY}, 8")
    A(f"s_mul_i32 s{sT0}, s{sTY}, 24")
    A(f"s_sub_u32 s{sT0}, s{sU}, s{sT0}")
    A(f"s_mul_i32 s{sHH}, s{sT0}, 43")
    A(f"s_lshr_b32 s{sHH}, s{sHH}, 8")
    A(f"s_mul_i32 s{sT1}, s{sHH}, 6")
    A(f"s_sub_u32 s{sKS}, s{sT0}, s{sT1}")
    A(f"s_mul_i32 s{sUP}, s{sHH}, 3")
    A(f"s_add_u32 s{sUP}, s{sUP}, s{sTY}")
    A(f"s_mul_i32 s{sUP}, s{sUP}, 6")
    A(f"s_add_u32 s{sUP}, s{sUP}, s{sKS}")
    A("s_load_dwordx4 s[52:55], s[0:1], 16")
    A("s_load_dwordx2 s[56:57], s[0:1], 32")
    A(f"v_lshlrev_b32 v{vL16}, 4, v0")
    A(f"s_and_b32 s{sT2}, s{sW}, 1")
    A(f"s_lshl_b32 s{sT3}, s{sT2}, 2")
    A(f"v_lshrrev_b32 v{vT}, 3, v0")
    A(f"v_and_b32 v{vT+1}, 2, v{vT}")
    A(f"v_or_b32 v{vT+1}, s{sT3}, v{vT+1}")
    A(f"v_xor_b32 v{vT+1}, v0, v{vT+1}")
    A(f"v_and_b32 v{vT+1}, 7, v{vT+1}")
    A(f"v_mul_u32_u24 v{vT}, 12288, v{vT}")
    A(f"v_lshl_add_u32 v{vT}, v{vT+1}, 4, v{vT}")
    A("s_waitcnt lgkmcnt(0)")
    A(f"s_cmp_eq_u32 s{sTY}, 1")
    A(f"s_cselect_b64 s[{sRO}:{sRO+1}], s[54:55], s[52:53]")
    A(f"s_cmp_eq_u32 s{sTY}, 2")
    A(f"s_cselect_b64 s[{sRO}:{sRO+1}], s[56:57], s[{sRO}:{sRO+1}]")
    srd(A, sRO, 640 * 12288)
    A(f"s_lshl_b32 s{sT0}, s{sG}, 2")
    A(f"s_add_u32 s{sT0}, s{sT0}, s{sHH}")
    A(f"s_mul_i32 s{sT0}, s{sT0}, 384")
    A(f"s_lshr_b32 s{sT1}, s{sKS}, 1")
    A(f"s_lshl_b32 s{sT1}, s{sT1}, 7")
    A(f"s_add_u32 s{sT0}, s{sT0}, s{sT1}")
    A(f"s_mul_i32 s{sT1}, s{sT2}, {8 * 12288}")
    A(f"s_add_u32 s{sT0}, s{sT0}, s{sT1}")
    A(f"s_lshr_b32 s{sLdsW}, s{sW}, 1")
    A(f"s_mul_i32 s{sLdsW}, s{sLdsW}, 40960")
    A(f"s_lshl_b32 s{sT1}, s{sT2}, 10")
    A(f"s_add_u32 m0, s{sLdsW}, s{sT1}")
    A("s_nop 0")
    for i in range(40):
        A(f"buffer_load_dwordx4 v{vT}, s[{sRO}:{sRO+3}], s{sT0} offen{' nt' if P['wnt'] else ''} lds")
        if i < 39:
            A(f"s_add_u32 m0, m0, {2048 + (40960 if i == 19 else 0)}")
            A(f"s_add_u32 s{sT0}, s{sT0}, {16 * 12288}")
    A(f"s_lshl_b32 s{sT0}, s{sU}, 10")
    A(f"s_add_u32 s{sT0}, s{sT0}, 8192")
    A(f"buffer_load_dwordx4 v[{vM}:{vM+3}], v{vL16}, s[{sX}:{sX+3}], s{sT0} offen")
    A(f"v_and_b32 v{vT+1}, 15, v0")
    A(f"v_lshrrev_b32 v{vT+2}, 4, v0")
    A(f"v_cmp_gt_u32 vcc, 8, v{vT+1}")
    A(f"v_mov_b32 v{vT+3}, 0xeeee")
    A(f"v_mov_b32 v{vT+4}, 0x4444")
    A(f"v_cndmask_b32 v{vIdx}, v{vT+3}, v{vT+4}, vcc")
    A(f"v_mov_b32 v{vPois}, -1")
    A(f"v_lshrrev_b32 v{vXg}, 2, v0")
    A(f"v_mul_u32_u24 v{vXg}, 1280, v{vXg}")
    A(f"v_sub_u32 v{vT+3}, 0, v{vT+2}")
    A(f"v_xor_b32 v{vT+3}, v0, v{vT+3}")
    A(f"v_and_b32 v{vT+3}, 3, v{vT+3}")
    A(f"v_lshl_add_u32 v{vXg}, v{vT+3}, 4, v{vXg}")
    A(f"v_lshrrev_b32 v{vT+3}, 2, v{vT+1}")
    A(f"v_sub_u32 v{vT+3}, 0, v{vT+3}")
    A(f"v_xor_b32 v{vT+3}, v{vT+2}, v{vT+3}")
    A(f"v_and_b32 v{vT+3}, 3, v{vT+3}")
    A(f"v_lshl_add_u32 v{vT+3}, v{vT+1}, 2, v{vT+3}")
    A(f"v_lshlrev_b32 v{vXrd}, 4, v{vT+3}")
    A(f"v_lshlrev_b32 v{vXsum}, 5, v{vT+3}")
    A(f"v_add_u32 v{vXsum}, 40960, v{vXsum}")
    A(f"v_lshrrev_b32 v{vT+3}, 2, v{vT+1}")
    A(f"v_and_b32 v{vT+4}, 1, v{vT+1}")
    A(f"v_lshlrev_b32 v{vT+4}, 4, v{vT+4}")
    A(f"v_mov_b32 v{vT+5}, 0x3f80")
    A(f"v_lshlrev_b32 v{vT+4}, v{vT+4}, v{vT+5}")
    for r in range(4):
        A(f"v_cmp_eq_u32 vcc, {r}, v{vT+3}")
        A("s_nop 1")
        A(f"v_cndmask_b32 v{vSel+r}, 0, v{vT+4}, vcc")
    A(f"s_lshl_b32 s{sT0}, s{sW}, 10")
    A(f"v_add_u32 v{vHld}, s{sT0}, v{vL16}")
    A(f"v_add_u32 v{vHw}, {MEML}, v{vHld}")
    A(f"v_add_u32 v{vHr}, {MEML}, v{vL16}")
    if P["s3_rot"]:
        A(f"s_add_u32 s{sU}, s{sU}, {P['s3_rot']}")
        A(f"s_cmp_ge_u32 s{sU}, 72")
        A(f"s_cselect_b32 s{sT0}, 72, 0")
        A(f"s_sub_u32 s{sU}, s{sU}, s{sT0}")
    A(f"s_cmp_ge_u32 s{sU}, 40")
    A(f"s_cselect_b32 s{sT0}, 40, 0")
    A(f"s_sub_u32 s{sT0}, s{sU}, s{sT0}")
    A(f"s_lshr_b32 s{sPartBase}, s{sT0}, 2")
    A(f"s_lshl_b32 s{sPartBase}, s{sPartBase}, 14")
    A(f"s_and_b32 s{sT1}, s{sT0}, 3")
    A(f"s_lshl_b32 s{sT1}, s{sT1}, 11")
    A(f"s_add_u32 s{sPartBase}, s{sPartBase}, s{sT1}")
    A(f"s_add_u32 s{sPartBase}, s{sPartBase}, {PART}")
    A(f"v_and_b32 v{vT+3}, 7, v0")
    A(f"v_bfe_u32 v{vT+4}, v0, 4, 1")
    A(f"v_lshl_add_u32 v{vT+3}, v{vT+4}, 3, v{vT+3}")
    A(f"v_lshlrev_b32 v{vT+3}, 4, v{vT+3}")
    A(f"v_bfe_u32 v{vT+4}, v0, 3, 1")
    A(f"v_lshl_add_u32 v{vT+3}, v{vT+4}, 3, v{vT+3}")
    A(f"v_lshrrev_b32 v{vT+4}, 5, v0")
    A(f"v_lshl_add_u32 v{vT+3}, v{vT+4}, 2, v{vT+3}")
    A(f"s_lshl_b32 s{sT0}, s{sT0}, 8")
    A(f"s_cmp_ge_u32 s{sU}, 40")
    A(f"s_cselect_b32 s{sT0}, {OOB}, s{sT0}")
    A(f"v_add_u32 v{vMemSt}, s{sT0}, v{vT+3}")
    A(f"v_lshl_add_u32 v{vMemPo}, v0, 2, s{sT0}")
    A(f"v_and_b32 v{vT+3}, 31, v0")
    A(f"v_lshlrev_b32 v{vT+3}, 3, v{vT+3}")
    A(f"v_lshrrev_b32 v{vT+4}, 5, v0")
    A(f"v_lshl_add_u32 v{vT+3}, v{vT+4}, 13, v{vT+3}")
    A(f"s_lshl_b32 s{sT0}, s{sG}, 8")
    A(f"s_cmp_ge_u32 s{sU}, 40")
    A(f"s_cselect_b32 s{sT0}, {OOB}, s{sT0}")
    A(f"v_add_u32 v{vPartSt}, s{sT0}, v{vT+3}")
    A(f"v_mov_b32 v{vPois2}, -1")
    A(f"v_mov_b32 v{vPois2+1}, -1")
    A(f"v_bfe_u32 v{vT+3}, v0, 4, 1")
    A(f"v_lshrrev_b32 v{vT+4}, 5, v0")
    A(f"v_lshlrev_b32 v{vT+3}, 2, v{vT+3}")
    A(f"v_lshl_add_u32 v{vT+3}, v{vT+4}, 1, v{vT+3}")
    A(f"s_and_b32 s{sT0}, s{sKS}, 1")
    A(f"s_lshr_b32 s{sT1}, s{sKS}, 1")
    A(f"s_lshl_b32 s{sT1}, s{sT1}, 10")
    A(f"v_lshrrev_b32 v{vT+4}, 2, v{vT+1}")
    A(f"v_lshl_add_u32 v{vT+4}, v{vT+4}, 4, v{vT+3}")
    A(f"v_lshlrev_b32 v{vT+4}, 4, v{vT+4}")
    A(f"v_and_b32 v{vT+5}, 3, v{vT+1}")
    A(f"v_lshl_add_u32 v{vT+4}, v{vT+5}, 2, v{vT+4}")
    A(f"s_lshl_b32 s{sT2}, s{sT0}, 7")
    A(f"s_add_u32 s{sT2}, s{sT2}, s{sT1}")
    A(f"v_add_u32 v{vT+4}, s{sT2}, v{vT+4}")
    A(f"v_lshrrev_b32 v{vT+5}, 3, v{vT+1}")
    A(f"v_lshl_add_u32 v{vT+5}, v{vT+5}, 4, v{vT+3}")
    A(f"v_and_b32 v{vT+6}, 1, v{vT+1}")
    A(f"v_lshl_add_u32 v{vT+5}, v{vT+6}, 3, v{vT+5}")
    A(f"v_lshlrev_b32 v{vT+5}, 4, v{vT+5}")
    A(f"v_bfe_u32 v{vT+6}, v{vT+1}, 1, 2")
    A(f"v_lshl_add_u32 v{vT+5}, v{vT+6}, 2, v{vT+5}")
    A(f"s_lshl_b32 s{sT2}, s{sT0}, 9")
    A(f"s_add_u32 s{sT2}, s{sT2}, s{sT1}")
    A(f"v_add_u32 v{vT+5}, s{sT2}, v{vT+5}")
    A(f"v_lshl_add_u32 v{vT+6}, v0, 3, s{sT2}")
    A(f"v_and_b32 v{vT+7}, 15, v0")
    A(f"v_lshlrev_b32 v{vT+7}, 3, v{vT+7}")
    A(f"v_lshl_add_u32 v{vT+7}, v{vT+2}, 8, v{vT+7}")
    A(f"s_lshl_b32 s{sT2}, s{sT0}, 7")
    A(f"s_add_u32 s{sT2}, s{sT2}, s{sT1}")
    A(f"v_add_u32 v{vT+7}, s{sT2}, v{vT+7}")
    A(f"s_cmp_eq_u32 s{sTY}, 2")
    A(f"s_cselect_b64 vcc, -1, 0")
    A(f"v_cndmask_b32 v{vQkvSt}, v{vT+4}, v{vT+5}, vcc")
    A(f"v_cndmask_b32 v{vQkvPo}, v{vT+7}, v{vT+6}, vcc")
    A(f"v_cmp_eq_u32 vcc, 0, v0")
    A(f"v_mov_b32 v{vT+4}, {OOB}")
    A("s_nop 0")
    A(f"v_cndmask_b32 v{vFlagO}, v{vT+4}, v0, vcc")
    A(f"v_cmp_gt_u32 vcc, 2, v0")
    A(f"v_lshlrev_b32 v{vT+5}, 10, v0")
    A("s_nop 0")
    A(f"v_cndmask_b32 v{vMk2O}, v{vT+4}, v{vT+5}, vcc")
    A(f"s_lshl_b32 s{sT0}, s{sG}, 2")
    A(f"s_add_u32 s{sT0}, s{sT0}, {DBG_NEAR}")
    A(f"v_mov_b32 v{vNearO}, s{sT0}")
    A(f"v_min_u32 v{vMkO}, {7 if P['gh'] else 9}, v0")
    A(f"v_lshlrev_b32 v{vMkO}, 2, v{vMkO}")
    A(f"s_lshl_b32 s{sMk}, s{sG}, 7")
    A(f"s_lshl_b32 s{sT0}, s{sR}, 2")
    A(f"s_add_u32 s{sMkW}, s{sMk}, s{sT0}")
    A(f"s_add_u32 s{sMkW}, s{sMkW}, {S1MARK}")
    A(f"s_cmp_eq_u32 s{sW}, 0")
    A(f"s_cselect_b32 s{sMkW}, s{sMkW}, {OOB}")
    A(f"s_add_u32 s{sMk}, s{sMk}, {S2MARK}")
    A(f"s_cmp_lt_u32 s{sW}, 2")
    A(f"s_mov_b32 s{sH2}, {OOB if P['h3oob'] else 0}")
    A(f"s_cselect_b32 s{sH2}, 8192, s{sH2}")
    A(f"s_mul_i32 s{sMemBase}, s{sG}, 40960")
    A(f"s_mul_i32 s{sT0}, s{sHH}, 3")
    A(f"s_add_u32 s{sT0}, s{sT0}, s{sTY}")
    A(f"s_mul_i32 s{sQkvBase}, s{sG}, 147456")
    A(f"s_mul_i32 s{sT1}, s{sT0}, 3072")
    A(f"s_add_u32 s{sQkvBase}, s{sQkvBase}, s{sT1}")
    A(f"s_add_u32 s{sQkvBase}, s{sQkvBase}, {QKVR}")
    A(f"s_mul_i32 s{sXrBase}, s{sG}, {XR_G}")
    A(f"s_lshl_b32 s{sT1}, s{sUP}, 1")
    A(f"s_add_u32 s{sT1}, s{sT1}, s{sHH}")
    A(f"s_lshl_b32 s{sT1}, s{sT1}, 10")
    A(f"s_add_u32 s{sXrBase}, s{sXrBase}, s{sT1}")
    A(f"s_add_u32 s{sXrBase}, s{sXrBase}, {XR}")
    A(f"s_add_u32 s{sXrEnd}, s{sXrBase}, {XR_G}")
    A(f"s_mov_b32 s{sXr}, s{sXrBase}")
    A(f"s_lshl_b32 s{sXflag}, s{sG}, 9")
    A(f"s_lshl_b32 s{sT1}, s{sUP}, 2")
    A(f"s_add_u32 s{sXflag}, s{sXflag}, s{sT1}")
    A(f"s_add_u32 s{sXflag}, s{sXflag}, {XFLAG}")
    A(f"v_bfe_u32 v{vT+3}, v0, 2, 2")
    A(f"v_lshl_add_u32 v{vT+4}, v{vT+2}, 3, v{vT+3}")
    A(f"v_lshlrev_b32 v{vT+4}, 7, v{vT+4}")
    A(f"v_and_b32 v{vT+5}, 1, v0")
    A(f"v_lshl_add_u32 v{vT+4}, v{vT+5}, 3, v{vT+4}")
    A(f"v_add_u32 v{vT+4}, s{sLdsW}, v{vT+4}")
    A(f"v_and_b32 v{vT+3}, 2, v{vT+3}")
    A(f"v_and_b32 v{vT+5}, 1, v{vT+2}")
    A(f"v_lshl_add_u32 v{vT+3}, v{vT+5}, 2, v{vT+3}")
    A(f"v_bfe_u32 v{vT+5}, v0, 1, 1")
    A(f"s_and_b32 s{sT0}, s{sW}, 1")
    A(f"s_lshl_b32 s{sT0}, s{sT0}, 2")
    A(f"v_or_b32 v{vT+5}, s{sT0}, v{vT+5}")
    A(f"v_xor_b32 v{vT+5}, v{vT+5}, v{vT+3}")
    A(f"v_xor_b32 v{vT+6}, 2, v{vT+5}")
    A(f"v_lshl_add_u32 v{vT+5}, v{vT+5}, 4, v{vT+4}")
    A(f"v_lshl_add_u32 v{vT+6}, v{vT+6}, 4, v{vT+4}")
    def trhalf(h):
        for kd in range(10 * h, 10 * h + 10):
            for t in range(2):
                for hf in range(2):
                    A(f"ds_read_b64_tr_b16 a[{80*t+4*kd+2*hf}:{80*t+4*kd+2*hf+1}], v{vT+5+t} offset:{(kd%10)*4096+hf*512}")
    A("s_waitcnt vmcnt(21)")
    A("s_barrier")
    trhalf(0)
    A(f"v_add_u32 v{vT+5}, 81920, v{vT+5}")
    A(f"v_add_u32 v{vT+6}, 81920, v{vT+6}")
    A("s_waitcnt lgkmcnt(0)")
    A("s_barrier")
    A(f"s_mul_i32 s{sXsrc}, s{sW}, 320")
    A(f"s_mul_i32 s{sLdsW}, s{sW}, 10240")
    A(f"s_mov_b32 s{sXbuf}, 0")
    def xdma():
        A(f"s_add_u32 m0, s{sLdsW}, s{sXbuf}")
        for i in range(5):
            for tt in range(2):
                A(f"s_add_u32 s{sT0}, s{sXsrc}, {tt * 20480 + i * 64}")
                A(f"buffer_load_dwordx4 v{vXg}, s[{sX}:{sX+3}], s{sT0} offen lds")
                if not (i == 4 and tt == 1):
                    A("s_add_u32 m0, m0, 1024")
        A(f"s_add_u32 s{sXsrc}, s{sXsrc}, 40960")
        A(f"s_sub_u32 s{sXbuf}, 40960, s{sXbuf}")
    xdma()
    A("s_waitcnt vmcnt(10)")
    A("s_barrier")
    trhalf(1)
    ostamp(A, 0, 1)
    A(f"s_mov_b32 s{sS}, -2")
    gen_locality(A, "L_s1_loc", "L_s1_glb", vT)

    for mode in ("loc", "glb"):
        sc = "" if mode == "loc" else " sc1"
        Lb, Ls3, Lh1, Lslow, Lcont, Lnox = [f"L_s1_{mode}_{x}" for x in ("bub", "s3", "h1", "slow", "cont", "nox")]
        def xrd(kd, tt):
            b = vXB3 + 8 * (kd % 3) + 4 * tt
            A(f"ds_read_b128 v[{b}:{b+3}], v{vXrd} offset:{(2*kd+tt)*1024}")
        def marks():
            A(f"s_add_u32 s{sT0}, s{sS}, 1")
            A(f"v_mov_b32 v{vT+2}, s{sT0}")
            A(f"v_add_u32 v{vT+3}, 2, v{vT+2}")
        def mark1():
            A(f"buffer_store_dword v{vT+2}, v{vMk2O if P['mk2'] else vFlagO}, {WSR}, s{sMkW} offen{sc}")
        Lpro = f"L_s1_{mode}_pro"
        align(A, P["al1"])
        A.label(f"L_s1_{mode}")
        A("s_waitcnt lgkmcnt(0)")
        A.label(Lpro)
        A("s_barrier")
        marks()
        xrd(0, 0); xrd(0, 1); xrd(1, 0); xrd(1, 1)
        A.label(Lb)
        if P["mk1"] == 0: mark1()
        stamp(A, 5)
        fstamp(A, 5, 250)
        def house():
            return [f"s_cmp_lt_i32 s{sS}, 1",
                f"s_cselect_b32 s{sMemP}, {OOB}, s{sMemP}",
                f"s_cselect_b32 s{sQkvP}, {OOB}, s{sQkvP}",
                f"s_cselect_b32 s{sPartP}, {OOB}, s{sPartP}",
                f"buffer_store_dword v{vPois}, v{vMemPo}, {WSR}, s{sMemP} offen{sc}",
                f"buffer_store_dwordx2 {v(vPois2,2)}, v{vQkvPo}, {WSR}, s{sQkvP} offen{sc}",
                f"buffer_store_dwordx2 {v(vPois2,2)}, v{vPartSt}, {WSR}, s{sPartP} offen sc1",
                f"buffer_load_dword v{vT+4}, v{vNearO}, s[{sDBG}:{sDBG+3}], 0 offen sc1",
                f"s_and_b32 s{sT1}, s{sS}, 3",
                f"s_mul_i32 s{sPartRd}, s{sT1}, {PART_SLOT}",
                f"s_add_u32 s{sPartRd}, s{sPartRd}, s{sPartBase}",
                f"s_mul_i32 s{sMemP}, s{sT1}, 10240",
                f"s_add_u32 s{sMemP}, s{sMemP}, s{sMemBase}",
                f"s_add_u32 s{sT1}, s{sS}, 3",
                f"s_and_b32 s{sT1}, s{sT1}, 3",
                f"s_mul_i32 s{sPartP}, s{sT1}, {PART_SLOT}",
                f"s_add_u32 s{sPartP}, s{sPartP}, s{sPartBase}",
                f"s_mul_i32 s{sQkvP}, s{sT1}, 36864",
                f"s_add_u32 s{sQkvP}, s{sQkvP}, s{sQkvBase}",
                f"s_add_u32 s{sT1}, s{sS}, 1",
                f"s_and_b32 s{sT1}, s{sT1}, 3",
                f"s_mul_i32 s{sMem0}, s{sT1}, 10240",
                f"s_add_u32 s{sMem0}, s{sMem0}, s{sMemBase}",
                f"s_add_u32 s{sMem1}, s{sMem0}, 4096",
                f"s_add_u32 s{sMem2}, s{sMem0}, s{sH2}",
                f"s_mul_i32 s{sQkv}, s{sT1}, 36864",
                f"s_add_u32 s{sQkv}, s{sQkv}, s{sQkvBase}"]
        Lxd = A.newlabel("xdone")
        A(f"s_cmp_ge_i32 s{sS}, {P['nseg'] - 2 if not P.get('x_nox') else 3}")
        A(f"s_cbranch_scc1 {Lnox}")
        fstamp(A, 6, 250)
        if P["prof"] in (3, 5): A("s_waitcnt lgkmcnt(0)")
        A(f"s_add_u32 m0, s{sLdsW}, s{sXbuf}")
        hk = house()
        for _ in range(4): A(hk.pop(0))
        A("s_waitcnt lgkmcnt(2)")
        early = P["dma_e"]
        dmak = list(range(early)) + list(range(P["dma0"], P["dma0"] + 10 - early))
        nd = 0
        for kd in range(20):
            cur = vXB3 + 8 * (kd % 3)
            n = 0
            for tt in range(2):
                for t in range(2):
                    acc = vXA + 4 * (2 * tt + t)
                    c = "0" if kd == 0 else v(acc, 4)
                    A(f"v_mfma_f32_16x16x32_bf16 {v(acc,4)}, {a(80*t+4*kd,4)}, {v(cur+4*tt,4)}, {c}" if not P.get("x_nomf") else "s_nop 1")
                    if n < 2 and kd < 18: xrd(kd + 2, n)
                    if kd in dmak:
                        if n == 0: A(f"s_add_u32 s{sT0}, s{sXsrc}, {(nd & 1) * 20480 + (nd >> 1) * 64}")
                        if n == 1 and hk: A(hk.pop(0))
                        if n == 2: A(f"buffer_load_dwordx4 v{vXg}, s[{sX}:{sX+3}], s{sT0} offen lds")
                        if n == 3: A("s_add_u32 m0, m0, 1024"); nd += 1
                    elif n < 3 and hk:
                        A(hk.pop(0))
                        if n == 2 and hk: A(hk.pop(0))
                    if n == 3 and kd < 19: A(f"s_waitcnt lgkmcnt({2 if kd < 18 else 0})")
                    n += 1
        assert nd == 10
        assert not hk
        fstamp(A, 7, 250)
        A(f"s_add_u32 s{sXsrc}, s{sXsrc}, 40960")
        A(f"s_sub_u32 s{sXbuf}, 40960, s{sXbuf}")
        A(f"v_sub_u32 v{vXrd}, v{vXsum}, v{vXrd}")
        A(f"s_mov_b32 s{sT0}, s{sXr}")
        A(f"s_add_u32 s{sXr}, s{sXr}, {XR_SLOT}")
        A(f"s_cmp_eq_u32 s{sXr}, s{sXrEnd}")
        A(f"s_cselect_b32 s{sXr}, s{sXrBase}, s{sXr}")
        for tt in range(2):
            for r in range(4):
                A(f"v_cvt_pk_bf16_f32 v{vXO+4*tt+r}, v{vXA+8*tt+r}, v{vXA+8*tt+4+r}")
            A(f"buffer_store_dwordx4 {v(vXO+4*tt,4)}, v{vL16}, {WSR}, s{sT0} offen offset:{1024*tt}{sc}")
        fstamp(A, 8, 250)
        fstamp(A, 9, 250)
        A(f"s_branch {Lxd}")
        A.label(Lnox)
        for x in house(): A(x)
        A.label(Lxd)
        stamp(A, 6)
        fstamp_collect(A, 11, 250)
        stamp_flush(A)
        A(f"s_add_u32 s{sS}, s{sS}, 1")
        if mode == "loc" and not P["gh"]: A(f"buffer_load_dword v{vT}, v{vMkO}, {WSR}, s{sMk} offen sc1")
        A("s_waitcnt vmcnt(0)")
        A(f"buffer_store_dword v{vT+3}, v{vFlagO}, {WSR}, s{sXflag} offen{sc}")
        if mode == "loc" and not P["gh"]: A(f"v_cmp_gt_u32 vcc, s{sS}, v{vT}")
        A(f"v_readfirstlane_b32 s{sT0}, v{vT+4}")
        A(f"s_cmp_eq_u32 s{sT0}, {2 if mode == 'loc' and P['near'] else 99}")
        A(f"s_cselect_b32 s{sT0}, 8192, 0")
        A(f"s_add_u32 s{sPartRd}, s{sPartRd}, s{sT0}")
        if P["gh"]: A(f"s_add_u32 s{sMk}, s{sT0}, {GHINT}")
        A(f"s_cmp_lt_i32 s{sS}, 0")
        A(f"s_cbranch_scc1 {Lpro}")
        A(f"s_cmp_eq_u32 s{sS}, {P['nseg']}")
        A("s_cbranch_scc1 L_s1_done")
        A(f"s_cmp_eq_u32 s{sS}, 0")
        A(f"s_cbranch_scc1 {Lh1}")
        if P.get("diag"):
            for st, ix in ((2, 2), (12, 3), (32, 4), (52, 5)):
                Ld = A.newlabel("dg")
                A(f"s_cmp_lg_u32 s{sS}, {st}")
                A(f"s_cbranch_scc1 {Ld}")
                A("s_mov_b64 s[84:85], vcc")
                dstamp(A, ix)
                A("s_mov_b64 vcc, s[84:85]")
                A.label(Ld)
        if mode != "loc": A("s_barrier")
        if mode == "loc":
            def miss(r):
                A(f"v_cmp_gt_u32 vcc, s{sS}, v{r}")
                if P["s3_miss"] == 0: return "s_cbranch_vccz"
                A(f"s_and_b32 s{sT0}, vcc_lo, 0x3ff")
                A(f"s_bcnt1_i32_b32 s{sT0}, s{sT0}")
                A(f"s_cmp_gt_u32 s{sT0}, {P['s3_miss']}")
                return "s_cbranch_scc0"
            Lg = A.newlabel("gate")
            if not P["gh"]: A(f"s_cbranch_vccz {Lg}")
            A(f"s_cmp_lg_u32 s{sW}, 0")
            A(f"s_cbranch_scc1 {Lg}")
            dense_poll(A, [vT + i for i in range(P["dp"])], lambda r: A(f"buffer_load_dword v{r}, v{vMkO}, {WSR}, s{sMk} offen sc1"), miss, 13)
            A.label(Lg)
            A("s_barrier")
        if P["s3_slp"] and mode == "loc": A(f"s_sleep {P['s3_slp']}")
        fstamp(A, 10, 250)
        def s3ld(b, so):
            for i in range(2):
                A(f"buffer_load_dwordx4 {v(b+4*i,4)}, v{vL16}, {WSR}, s{so} offen offset:{1024*i} sc1")
        def s3sum(b, later):
            A(f"s_waitcnt vmcnt({1+later})")
            A(f"v_mfma_f32_16x16x32_bf16 {v(vT,4)}, {v(vSel,4)}, {v(b,4)}, 0")
            A(f"s_waitcnt vmcnt({later})")
            A(f"v_mfma_f32_16x16x32_bf16 {v(vT,4)}, {v(vSel,4)}, {v(b+4,4)}, {v(vT,4)}")
            A.nop(8)
            A(f"v_cmp_u_f32 vcc, v{vT}, v{vT+1}")
            A(f"v_cvt_pk_bf16_f32 v{vT+4}, v{vT}, v{vT+1}")
        if P["s3_two"]:
            Lsec = A.newlabel("s3b")
            stamp(A, 0)
            fstamp(A, 0, 250)
            s3ld(vPt, sPartRd)
            A(f"s_xor_b32 s{sT1}, s{sPartRd}, 8192")
            A(f"s_sleep {P['s3_two']}")
            s3ld(vPt + 8, sT1)
            s3sum(vPt, 2)
            A(f"s_cbranch_vccz {Lcont}")
            s3sum(vPt + 8, 0)
            A(f"s_cbranch_vccz {Lcont}")
        A.label(Ls3)
        stamp(A, 0)
        fstamp(A, 0, 250)
        s3ld(vPt, sPartRd)
        s3sum(vPt, 0)
        A(f"s_cbranch_vccnz {Lslow}")
        A.label(Lcont)
        A(f"buffer_store_dword v{vT+4}, v{vMemSt}, {WSR}, s{sMem0} offen{sc}")
        stamp(A, 1)
        fstamp(A, 1, 250)
        if P.get("x_ack") == 2: A("s_waitcnt vmcnt(0)")
        if P.get("memdbg"):
            A(f"s_mul_i32 s{sT0}, s{sS}, 10240")
            A(f"s_add_u32 s{sT0}, s{sT0}, {MEMDBG}")
            A(f"buffer_store_dword v{vT+4}, v{vMemSt}, {WSR}, s{sT0} offen")
        def h1ld(b, own):
            for i in range(len(own)):
                A(f"buffer_load_dwordx4 {v(b+4*i,4)}, v{vHld}, {WSR}, s{(sMem0, sMem1, sMem2)[i]} offen sc1")
        def h1chk(b, own, later):
            n = len(own); regs = list(range(b, b + 4 * n)); first = True
            for i in range(n):
                A(f"s_waitcnt vmcnt({n - 1 - i + later})")
                A(f"ds_write_b128 v{vHw}, {v(b+4*i,4)} offset:{4096*i}")
                avail = lambda k: len(regs) >= k and regs[k - 1] < b + 4 * (i + 1)
                if first: A(f"v_max3_u32 v{vMx}, v{regs[0]}, v{regs[1]}, v{regs[2]}"); regs = regs[3:]; first = False
                while avail(2): A(f"v_max3_u32 v{vMx}, v{regs[0]}, v{regs[1]}, v{vMx}"); regs = regs[2:]
            A(f"v_max_u32 v{vMx}, v{regs[0]}, v{vMx}")
            A(f"v_cmp_eq_u32 vcc, -1, v{vMx}")
            A("s_waitcnt lgkmcnt(0)")
        def smf2(src, j):
            A(f"v_smfmac_f32_16x16x64_bf16 {v(vA,4)}, {v(src,4)}, {a(8*j,8)}, v{vIdx}")
            A(f"v_smfmac_f32_16x16x64_bf16 {v(vA+4,4)}, {v(src,4)}, {a(80+8*j,8)}, v{vIdx}")
        if P["h1_slp"]: A(f"s_sleep {P['h1_slp']}")
        A.label(Lh1)
        for w in range(3):
            A(f"s_cmp_eq_u32 s{sW}, {w}")
            A(f"s_cbranch_scc1 {Lh1}_{w}")
        for w in (3, 0, 1, 2):
            own = [j for j in (w, w + 4, w + 8) if j < 10]
            rest = [j for j in range(10) if j not in own]
            n = len(own)
            Lretry, Lhok, LhokB, Lrest = [f"L_s1_{mode}_{x}_{w}" for x in ("h1retry", "h1ok", "h1okB", "h1rest")]
            def gather(b):
                A("s_barrier")
                fstamp(A, 3, 250)
                if P["prof"] in (3, 5): A("s_waitcnt lgkmcnt(0)")
                for j in rest: A(f"ds_read_b128 {v(vM+4*j,4)}, v{vHr} offset:{1024*j}")
                for i, j in enumerate(own): smf2(b + 4 * i, j)
            A.label(f"{Lh1}_{w}")
            h1ld(vH, own)
            fstamp(A, 2, 250)
            for r in range(8):
                A(f"v_mov_b32 v{vA+r}, 0")
            A(f"s_sleep {P['h1_two']}")
            h1ld(vH2, own)
            h1chk(vH, own, n)
            A(f"s_cbranch_vccnz {Lretry}")
            A.label(Lhok)
            gather(vH)
            A.label(Lrest)
            for i, j in enumerate(rest):
                A(f"s_waitcnt lgkmcnt({len(rest) - 1 - i})")
                smf2(vM + 4 * j, j)
            xrd(0, 0); xrd(0, 1); xrd(1, 0); xrd(1, 1)
            marks()
            A(f"v_permlane32_swap_b32 v{vA}, v{vA+2}")
            A(f"v_permlane32_swap_b32 v{vA+1}, v{vA+3}")
            A(f"v_permlane32_swap_b32 v{vA+4}, v{vA+6}")
            A(f"v_permlane32_swap_b32 v{vA+5}, v{vA+7}")
            A(f"v_add_f32 v{vA}, v{vA}, v{vA+2}")
            A(f"v_add_f32 v{vA+4}, v{vA+4}, v{vA+6}")
            A(f"v_add_f32 v{vA+1}, v{vA+1}, v{vA+3}")
            A(f"v_add_f32 v{vA+5}, v{vA+5}, v{vA+7}")
            A(f"v_cvt_pk_bf16_f32 v{vT}, v{vA}, v{vA+4}")
            A(f"buffer_store_dword v{vT}, v{vQkvSt}, {WSR}, s{sQkv} offen{sc}")
            A(f"v_cvt_pk_bf16_f32 v{vT+1}, v{vA+1}, v{vA+5}")
            A(f"buffer_store_dword v{vT+1}, v{vQkvSt}, {WSR}, s{sQkv} offen offset:16{sc}")
            stamp(A, 4)
            fstamp(A, 4, 250)
            A(f"s_branch {Lb}")
            A.label(Lretry)
            stamp(A, 3)
            budget_check(A, 3)
            h1ld(vH, own)
            h1chk(vH2, own, n)
            A(f"s_cbranch_vccz {LhokB}")
            h1ld(vH2, own)
            h1chk(vH, own, n)
            A(f"s_cbranch_vccz {Lhok}")
            A(f"s_branch {Lretry}")
            A.label(LhokB)
            gather(vH2)
            A(f"s_branch {Lrest}")
        A.label(Lslow)
        A(f"v_max3_u32 v{vMx}, v{vPt}, v{vPt+1}, v{vPt+2}")
        for i in range(3, 7, 2):
            A(f"v_max3_u32 v{vMx}, v{vPt+i}, v{vPt+i+1}, v{vMx}")
        A(f"v_max_u32 v{vMx}, v{vPt+7}, v{vMx}")
        A(f"v_cmp_eq_u32 vcc, -1, v{vMx}")
        A(f"v_min_u32 v{vT+4}, -2, v{vT+4}")
        A(f"s_cbranch_vccz {Lcont}")
        budget_check(A, 2)
        A(f"s_branch {Ls3}")

    A.label("L_s1_done")
    dstamp(A, 6)
    A(f"s_cmp_lg_u32 s{sW}, 0")
    A("s_cbranch_scc1 L_end")
    A("s_cmp_ge_u32 s2, 80")
    A("s_cbranch_scc1 L_end")
    A(f"s_add_u32 s74, s2, {20 * (P['nseg'] - 4)}")
    A("s_mov_b32 s79, 0")
    A("s_mov_b32 s32, 0")
    A("s_branch L_mixent")

def gen_s2(A):
    sJ = 30
    sQkv, sQkvBase, sPartW, sPartP, sPartBase, sXk, sXv, sXrBase, sXrEnd = 31, 32, 33, 34, 35, 36, 37, 38, 39
    sPx, sPxBase, sXp, sXpF, sXfl, sMark, sMk1, sC, sNeed = 40, 41, 42, 43, 44, 45, 46, 47, 48
    sQkv1, sQkv2 = 49, 50
    sXk1, sXk2, sXv1, sXv2 = 51, 52, 53, 54
    sLo = 56
    sSt0, sSt1, sSt2, sSt3 = 58, 59, 88, 89
    vL16, vKmO, vIdx, vRedW, vRedR, vPartO, vL8, vFlagO, vXflO, vProbe, vRed2R = 1, 2, 3, 4, 5, 6, 7, 8, 9, 10, 11
    vPois = 12
    vT = 16
    vQ, vKM, vVM = 32, 44, 56
    vFl, vMx, vMark = 68, 69, 98
    vOne32, vOne16 = 70, 74
    vS, vSM, vW = 76, 92, 96
    vVA, vF, vDen, vPb = 100, 116, 132, 136
    vVOM2 = (142, 228)
    vRed2W, vXfv, vGhO = 99, 150, 151
    sGh = 55
    fin_parts = {}
    vVOX, vXA, vPX = 152, 184, 216
    aKX, aVX = 96, 144
    vXOUT = 24
    RED, RED2 = 98304, 106496
    c = (192 ** -0.5) * math.log2(math.e)
    A.label("L_s2")
    A(f"s_sub_u32 s{sJ}, s{sR}, 18")
    A(f"s_load_dwordx2 s[{sRO}:{sRO+1}], s[0:1], 40")
    A(f"v_lshlrev_b32 v{vL16}, 4, v0")
    A(f"v_lshrrev_b32 v{vT}, 3, v0")
    A(f"v_mul_u32_u24 v{vT}, 1280, v{vT}")
    A(f"v_and_b32 v{vT+1}, 7, v0")
    A(f"v_lshl_add_u32 v{vT}, v{vT+1}, 4, v{vT}")
    A(f"s_lshl_b32 s{sT0}, s{sG}, 2")
    A(f"s_add_u32 s{sT0}, s{sT0}, s{sW}")
    A(f"s_mul_i32 s{sT0}, s{sT0}, {192 * 1280}")
    A(f"s_lshl_b32 s{sT1}, s{sJ}, 7")
    A(f"s_add_u32 s{sT0}, s{sT0}, s{sT1}")
    A(f"s_mul_i32 s{sT2}, s{sW}, 24576")
    A(f"s_mov_b32 m0, s{sT2}")
    A("s_waitcnt lgkmcnt(0)")
    srd(A, sRO, 6144 * 1280)
    if P["s2_late"]:
        A(f"s_mov_b32 s{sQkv}, s{sT0}")
        A(f"s_mov_b32 s{sQkv+1}, s{sT2}")
        gen_locality(A, None, None, vT + 8)
        A(f"s_mov_b32 s{sT0}, s{sQkv}")
        A(f"s_mov_b32 s{sT2}, s{sQkv+1}")
    for i in range(24):
        A(f"buffer_load_dwordx4 v{vT}, s[{sRO}:{sRO+3}], s{sT0} offen{' nt' if P['wnt'] else ''} lds")
        if i < 23:
            A("s_add_u32 m0, m0, 1024")
            A(f"s_add_u32 s{sT0}, s{sT0}, {8 * 1280}")
    A(f"v_and_b32 v{vT+1}, 15, v0")
    A(f"v_lshrrev_b32 v{vT+2}, 4, v0")
    A(f"v_cmp_gt_u32 s[{sLo}:{sLo+1}], 8, v{vT+1}")
    A(f"v_mov_b32 v{vT+3}, 0xeeee")
    A(f"v_mov_b32 v{vT+4}, 0x4444")
    A(f"v_cndmask_b32 v{vIdx}, v{vT+3}, v{vT+4}, s[{sLo}:{sLo+1}]")
    for r in range(4): A(f"v_mov_b32 v{vPois+r}, -1")
    A(f"v_lshlrev_b32 v{vL8}, 3, v0")
    A(f"v_mov_b32 v{vT+3}, 0x3f803f80")
    for r in range(4): A(f"v_mov_b32 v{vOne32+r}, v{vT+3}")
    A(f"v_cmp_gt_u32 vcc, 32, v0")
    A("s_nop 1")
    for r in range(2): A(f"v_cndmask_b32 v{vOne16+r}, 0, v{vT+3}, vcc")
    A(f"s_lshl_b32 s{sT0}, s{sW}, 11")
    A(f"s_add_u32 s{sT0}, s{sT0}, {RED}")
    A(f"v_lshrrev_b32 v{vT+3}, 1, v0")
    A(f"v_and_b32 v{vT+3}, 8, v{vT+3}")
    A(f"v_xor_b32 v{vT+3}, v0, v{vT+3}")
    A(f"v_lshl_add_u32 v{vRedW}, v{vT+3}, 4, s{sT0}")
    A(f"v_and_b32 v{vT+3}, 15, v0")
    A(f"v_bfe_u32 v{vT+4}, v0, 3, 2")
    A(f"v_lshl_add_u32 v{vT+3}, v{vT+4}, 4, v{vT+3}")
    A(f"s_lshr_b32 s{sT1}, s{sW}, 1")
    A(f"s_lshl_b32 s{sT1}, s{sT1}, 3")
    A(f"v_xor_b32 v{vT+3}, s{sT1}, v{vT+3}")
    A(f"s_and_b32 s{sT0}, s{sW}, 1")
    A(f"s_lshl_b32 s{sT0}, s{sT0}, 10")
    A(f"s_add_u32 s{sT0}, s{sT0}, {RED}")
    A(f"v_lshl_add_u32 v{vRedR}, v{vT+3}, 4, s{sT0}")
    A(f"s_lshl_b32 s{sT0}, s{sW}, 11")
    A(f"s_add_u32 s{sT0}, s{sT0}, {RED2}")
    A(f"v_add_u32 v{vRed2R}, s{sT0}, v{vL16}")
    A(f"s_lshl_b32 s{sT0}, s{sW}, 13")
    A(f"s_add_u32 s{sT0}, s{sT0}, {RED2}")
    A(f"v_add_u32 v{vRed2W}, s{sT0}, v{vL16}")
    A(f"v_and_b32 v{vT+4}, 7, v0")
    A(f"v_bfe_u32 v{vT+5}, v0, 4, 1")
    A(f"v_lshl_add_u32 v{vT+4}, v{vT+5}, 3, v{vT+4}")
    A(f"v_lshlrev_b32 v{vT+4}, 4, v{vT+4}")
    A(f"v_and_b32 v{vT+5}, 8, v0")
    A(f"v_add_u32 v{vT+4}, v{vT+5}, v{vT+4}")
    A(f"v_lshrrev_b32 v{vT+5}, 5, v0")
    A(f"v_lshl_add_u32 v{vPartO}, v{vT+5}, 13, v{vT+4}")
    A(f"v_mov_b32 v{vT+3}, {OOB}")
    A(f"v_cmp_eq_u32 vcc, 0, v0")
    A("s_nop 1")
    A(f"v_cndmask_b32 v{vFlagO}, v{vT+3}, v0, vcc")
    A(f"v_min_u32 v{vXflO}, 11, v0")
    A(f"v_lshlrev_b32 v{vXflO}, 2, v{vXflO}")
    A(f"v_min_u32 v{vProbe}, 17, v0")
    A(f"v_lshlrev_b32 v{vProbe}, 2, v{vProbe}")
    A(f"s_mul_i32 s{sQkvBase}, s{sG}, 147456")
    A(f"s_mul_i32 s{sT0}, s{sW}, 9216")
    A(f"s_add_u32 s{sQkvBase}, s{sQkvBase}, s{sT0}")
    A(f"s_add_u32 s{sQkvBase}, s{sQkvBase}, {QKVR}")
    A(f"s_lshl_b32 s{sPartBase}, s{sJ}, 14")
    A(f"s_lshl_b32 s{sT0}, s{sW}, 11")
    A(f"s_add_u32 s{sPartBase}, s{sPartBase}, s{sT0}")
    A(f"s_lshl_b32 s{sT0}, s{sG}, 8")
    A(f"s_add_u32 s{sPartBase}, s{sPartBase}, s{sT0}")
    A(f"s_add_u32 s{sPartBase}, s{sPartBase}, {PART}")
    A(f"s_mul_i32 s{sXrBase}, s{sG}, {XR_G}")
    A(f"s_mul_i32 s{sT0}, s{sW}, {XR_HEAD}")
    A(f"s_add_u32 s{sXrBase}, s{sXrBase}, s{sT0}")
    A(f"s_add_u32 s{sXrBase}, s{sXrBase}, {0x5000000 if P.get('x_fixkv') else XR}")
    A(f"s_add_u32 s{sXrEnd}, s{sXrBase}, {XR_G}")
    A(f"s_mul_i32 s{sPxBase}, s{sG}, 49152")
    A(f"s_mul_i32 s{sT0}, s{sW}, 3072")
    A(f"s_add_u32 s{sPxBase}, s{sPxBase}, s{sT0}")
    A(f"s_add_u32 s{sPxBase}, s{sPxBase}, {PXR}")
    A(f"s_lshl_b32 s{sXp}, s{sJ}, 15")
    A(f"s_lshl_b32 s{sT0}, s{sG}, 12")
    A(f"s_add_u32 s{sXp}, s{sXp}, s{sT0}")
    A(f"s_lshl_b32 s{sT0}, s{sW}, 10")
    A(f"s_add_u32 s{sXp}, s{sXp}, s{sT0}")
    A(f"s_add_u32 s{sXp}, s{sXp}, {XPART}")
    A(f"s_lshl_b32 s{sXpF}, s{sJ}, 7")
    A(f"s_lshl_b32 s{sT0}, s{sG}, 4")
    A(f"s_add_u32 s{sXpF}, s{sXpF}, s{sT0}")
    A(f"s_lshl_b32 s{sT0}, s{sW}, 2")
    A(f"s_add_u32 s{sXpF}, s{sXpF}, s{sT0}")
    A(f"s_add_u32 s{sXpF}, s{sXpF}, {XPFLAG}")
    A(f"s_lshl_b32 s{sXfl}, s{sG}, 9")
    A(f"s_mul_i32 s{sT0}, s{sW}, 72")
    A(f"s_add_u32 s{sXfl}, s{sXfl}, s{sT0}")
    A(f"s_add_u32 s{sXfl}, s{sXfl}, {XFLAG + 24}")
    A(f"s_lshl_b32 s{sMk1}, s{sG}, 7")
    A(f"s_lshl_b32 s{sT0}, s{sJ}, 2")
    A(f"s_add_u32 s{sMark}, s{sMk1}, s{sT0}")
    A(f"s_add_u32 s{sMark}, s{sMark}, {S2MARK}")
    A(f"s_cmp_eq_u32 s{sW}, 0")
    A(f"s_cselect_b32 s{sMark}, s{sMark}, {OOB}")
    A(f"s_add_u32 s{sMk1}, s{sMk1}, {S1MARK}")
    A(f"s_lshl_b32 s{sGh}, s{sG}, 2")
    A(f"s_add_u32 s{sGh}, s{sGh}, {GHINT}")
    A(f"s_lshl_b32 s{sT0}, s{sJ}, 2")
    A(f"s_add_u32 s{sT0}, s{sT0}, s{sW}")
    A(f"s_cmp_eq_u32 s{sT0}, {4 * P['gh_j']}")
    A(f"s_cselect_b32 s{sGh}, s{sGh}, {OOB}")
    A(f"v_lshlrev_b32 v{vT+4}, 13, v0")
    A(f"v_cmp_gt_u32 vcc, 2, v0")
    A(f"v_mov_b32 v{vT+5}, {OOB}")
    A("s_nop 0")
    A(f"v_cndmask_b32 v{vGhO}, v{vT+5}, v{vT+4}, vcc")
    A(f"s_mov_b32 s{sC}, {f2u(c):#x}")
    A(f"v_bfe_u32 v{vT+3}, v0, 3, 1")
    A(f"v_bfe_u32 v{vT+4}, v0, 2, 1")
    A(f"v_lshl_add_u32 v{vT+3}, v{vT+4}, 4, v{vT+3}")
    A(f"v_lshl_add_u32 v{vT+3}, v{vT+2}, 2, v{vT+3}")
    A(f"v_lshlrev_b32 v{vT+3}, 7, v{vT+3}")
    A(f"v_and_b32 v{vT+4}, 3, v0")
    A(f"v_lshl_add_u32 v{vT+3}, v{vT+4}, 3, v{vT+3}")
    A(f"v_add_u32 v{vT+3}, s{sT2}, v{vT+3}")
    for ks in range(6):
        A(f"s_waitcnt vmcnt({24 - 4 * (ks + 1)})")
        for ct in range(4):
            for hf in range(2):
                A(f"ds_read_b64_tr_b16 a[{24*ct+4*ks+2*hf}:{24*ct+4*ks+2*hf+1}], v{vT+3} offset:{ks*4096+hf*256+ct*32}")
    A("s_waitcnt lgkmcnt(0)")
    ostamp(A, 0, 1)
    def xflag_wait(have_loaded):
        L, Lok = A.newlabel("xfl"), A.newlabel("xflok")
        if have_loaded:
            A(f"v_cmp_gt_u32 vcc, s{sNeed}, v{vFl}")
            A(f"s_cbranch_vccz {Lok}")
        A.label(L)
        A(f"buffer_load_dword v{vFl}, v{vXflO}, {WSR}, s{sXfl} offen sc1")
        budget_check(A, 4)
        A("s_waitcnt vmcnt(0)")
        A(f"v_cmp_gt_u32 vcc, s{sNeed}, v{vFl}")
        A(f"s_cbranch_vccnz {L}")
        A.label(Lok)
    def xload(dst, t, ks, so):
        off = ks * 2048 + t * 1024
        A(f"buffer_load_dwordx4 {a(dst + 4 * (6 * t + ks), 4)}, v{vL16}, {WSR}, s{so[off // 4096]} offen offset:{off % 4096} sc1")
    if not P["s2_late"]: gen_locality(A, None, None, vT)
    if P["touch"]:
        A(f"s_lshl_b32 s{sT1}, s{sJ}, 2")
        A(f"s_add_u32 s{sT1}, s{sT1}, s{sW}")
        for base, per_g, n in ((XR, XR_G, 15),) * (P['touch'] == 2) + ((QKVR, 147456, 4), (PXR, 49152, 2), (MEMR, 40960, 1)):
            A(f"s_mul_i32 s{sT0}, s{sG}, {per_g}")
            A(f"s_mul_i32 s{sT2}, s{sT1}, {n * 1024}")
            A(f"s_min_u32 s{sT2}, s{sT2}, {per_g - n * 1024}")
            A(f"s_add_u32 s{sT0}, s{sT0}, s{sT2}")
            A(f"s_add_u32 s{sT0}, s{sT0}, {base}")
            for i in range(n):
                if i and i % 4 == 0: A(f"s_add_u32 s{sT0}, s{sT0}, 4096")
                A(f"buffer_load_dwordx4 {v(vQ,4)}, v{vL16}, {WSR}, s{sT0} offen offset:{1024*(i%4)} sc1")
    A(f"s_mov_b32 s{sNeed}, 1")
    xflag_wait(False)
    A(f"s_add_u32 s{sXv}, s{sXrBase}, 24576")
    A(f"s_add_u32 s{sXv1}, s{sXv}, 4096")
    A(f"s_add_u32 s{sXv2}, s{sXv}, 8192")
    for ks in range(6):
        for t in range(2): xload(aVX, t, ks, (sXv, sXv1, sXv2))
    A(f"s_mov_b32 s{sXk}, s{sXrBase}")
    A(f"s_mov_b32 s{sS}, -1")
    for r in (sSt1,): A(f"s_mov_b32 s{r}, {OOB}")
    A(f"v_mov_b32 v{vXfv}, 0")
    A("s_waitcnt vmcnt(0)")

    Lbub, Latt, Lretry, Lnost, Lnox = "L_s2_bub", "L_s2_att", "L_s2_retry", "L_s2_nost", "L_s2_nox"
    for par in range(2):
        voxc = vVOX + 16 * par
        voxn = vVOX + 16 * (1 - par)
        vomc, vomo = vVOM2[par], vVOM2[1 - par]
        vVOM = vomc
        sfx = f"_{par}"
        if par == 0:
            A(f"s_branch {Lbub}_1")
        align(A, P["al2"])
        A.label(f"L_s2_top{sfx}")
        def miss(r):
            A(f"v_cmp_ge_i32 vcc, s{sS}, v{r}")
            A(f"s_and_b32 s{sT0}, vcc_lo, {P['h2_mask']:#x}")
            A(f"s_bcnt1_i32_b32 s{sT0}, s{sT0}")
            A(f"s_cmp_gt_u32 s{sT0}, {P['h2_miss']}")
            return "s_cbranch_scc0"
        Lg = A.newlabel("gate")
        A(f"s_cmp_lg_u32 s{sW}, 0")
        A(f"s_cbranch_scc1 {Lg}")
        dense_poll(A, [vT + i for i in range(P["dp"])], lambda r: A(f"buffer_load_dword v{r}, v{vProbe}, {WSR}, s{sMk1} offen sc1"), miss, 5)
        A.label(Lg)
        A("s_barrier")
        A.label(Latt + sfx)
        stamp(A, 0, 252)
        fstamp(A, 0, 252)
        fill = [f"v_mov_b32 v{vVA+r}, 0" for r in range(16)] + [f"s_add_u32 s{sT0}, s{sS}, 1", f"v_mov_b32 v{vMark}, s{sT0}",
                f"v_mov_b32 v{vMx}, 0", f"v_mov_b32 v{vW}, 0xff7fffff", f"v_mov_b32 v{vW+1}, 0xff7fffff"]
        lds_ = [f"buffer_load_dwordx4 {v(base+4*j,4)}, v{vL16}, {WSR}, s{so} offen offset:{1024*j} sc1"
                for base, so in ((vQ, sQkv), (vKM, sQkv1), (vVM, sQkv2)) for j in range(3)]
        NI = P.get("h2_first", 6)
        issued = 0
        for x in lds_[:NI]:
            A(x); issued += 1
            for _ in range(4):
                if fill: A(fill.pop(0))
        for x in fill: A(x)
        def more(n=1):
            nonlocal issued
            for _ in range(n):
                if issued < len(lds_):
                    A(lds_[issued]); issued += 1
        def need(i): A(f"s_waitcnt vmcnt({issued - 1 - i})")
        def vslot():
            nonlocal issued
            if len(vpos) < NVC and NVC > 3:
                e = vcrit[len(vpos)]
                xload(aVX, e[0], e[1], (sXv, sXv1, sXv2))
                vpos[e] = issued; issued += 1
            else: A("s_nop 0")
        NVC = P["nvc"]
        vall = [(t, ks) for ks in range(6) for t in range(2)]
        vcrit = vall[:NVC]
        vpos = {}
        xoq = [f"buffer_store_dwordx4 {v(vXOUT,4)}, v{vL16}, {WSR}, s{sSt1} offen sc1" if not P.get("x_noxout") else f"buffer_store_dword v{vXOUT}, v{vFlagO}, {WSR}, s{sMark} offen offset:64"]
        xo_after = [xoq.pop(0)] if P["xo_pos"] == 1 else []
        def vmore():
            nonlocal issued
            if xoq:
                A(xoq.pop(0)); issued += 1
            elif len(vpos) < NVC:
                e = vcrit[len(vpos)]
                xload(aVX, e[0], e[1], (sXv, sXv1, sXv2))
                vpos[e] = issued; issued += 1
        def chk(r0): return f"v_max3_u32 v{vMx}, v{r0}, v{r0+1}, v{vMx}"
        DPP = "row_ror:8 row_mask:0xf bank_mask:"
        for j in range(3):
            need(j)
            if j == 0: fstamp(A, 1, 252)
            k = 0
            for t in range(2):
                for pr in range(2):
                    acc = vS + 4 * (2 * t + pr)
                    cc = "0" if j == 0 else v(acc, 4)
                    A(f"v_mfma_f32_16x16x32_bf16 {v(acc,4)}, {a(aKX+4*(6*t+2*j+pr),4)}, {v(vQ+4*j,4)}, {cc}")
                    if k < 2: A(chk(vQ + 4 * j + 2 * k))
                    if k == 2: more()
                    k += 1
        more(99)
        smf = [f"v_smfmac_f32_16x16x64_bf16 {v(vVA+4*ct,4)}, {v(vVM+4*j,4)}, {a(24*ct+8*j,8)}, v{vIdx}" for j in range(3) for ct in range(4)]
        chks = [chk(vVM + 2 * i) for i in range(6)]
        vals = [vS + r for r in range(4)] + [vW, vW + 1]
        vm, vt2 = vT, vT + 1
        xa = [f"v_add_f32_dpp v{vS+r}, v{vS+4+r}, v{vS+r} {DPP}0xf" for r in range(4)] + [f"v_add_f32_dpp v{vS+r}, v{vS+8+r}, v{vS+12+r} {DPP}0xc" for r in range(4)]
        def smm(j):
            need(3 + j)
            A(f"v_mfma_f32_16x16x32_bf16 {v(vSM,4)}, {v(vKM+4*j,4)}, {v(vQ+4*j,4)}, {'0' if j == 0 else v(vSM,4)}")
            A(chk(vKM + 4 * j)); A(chk(vKM + 4 * j + 2))
        smm(0); smm(1)
        for x in xa[:4]: A(x)
        smm(2)
        fstamp(A, 2, 252)
        A(f"v_cmp_eq_u32 vcc, -1, v{vMx}")
        for x in xa[4:]: A(x)
        A(f"v_max3_f32 v{vm}, v{vals[0]}, v{vals[1]}, v{vals[2]}")
        A(f"v_permlane32_swap_b32 v{vSM}, v{vSM+1}")
        A(f"v_permlane32_swap_b32 v{vSM+2}, v{vSM+3}")
        need(6)
        fstamp(A, 3, 252)
        A(smf[0])
        A(f"v_add_f32_dpp v{vW}, v{vSM+1}, v{vSM} {DPP}0x3")
        A(f"v_add_f32_dpp v{vW+1}, v{vSM+3}, v{vSM+2} {DPP}0x3")
        A(smf[1])
        A(f"v_max3_f32 v{vm}, v{vals[3]}, v{vals[4]}, v{vm}")
        A(f"v_max_f32 v{vm}, v{vals[5]}, v{vm}")
        A(smf[2])
        A(f"s_cbranch_vccnz {Lretry}{sfx}")
        A(f"v_max_f32_dpp v{vm}, v{vm}, v{vm} {DPP}0xf")
        A(f"v_mov_b32 v{vt2}, v{vm}")
        hint = f"buffer_store_dword v{vMark}, v{vGhO}, {WSR}, s{sGh} offen sc1"
        A(smf[3])
        if P["gh"] == 1: A(hint); issued += 1
        else: vslot()
        A(f"v_permlane32_swap_b32 v{vm}, v{vt2}")
        A(f"v_max_f32 v{vm}, v{vm}, v{vt2}")
        A(f"v_mov_b32 v{vt2}, v{vm}")
        need(7)
        A(smf[4])
        A(f"v_permlane16_swap_b32 v{vm}, v{vt2}")
        A(f"v_max_f32 v{vm}, v{vm}, v{vt2}")
        A(smf[5])
        A(f"v_mul_f32 v{vm}, s{sC}, v{vm}")
        fm = [f"v_fma_f32 v{x}, v{x}, s{sC}, -v{vm}" for x in vals]
        ex = [f"v_exp_f32 v{x}, v{x}" for x in vals]
        A(fm[0])
        A(smf[6]); A(fm[1]); A(fm[2])
        A(smf[7]); A(fm[3]); need(8)
        if P["xo_pos"] == 2: vmore()
        if P["gh"] == 2: A(hint); issued += 1
        A(smf[8]); A(ex[0])
        A(smf[9]); A(ex[1])
        A(smf[10]); A(ex[2])
        A(smf[11]); A(ex[3])
        if P["gh"] == 3: A(hint); issued += 1
        A(f"v_cvt_pk_bf16_f32 v{vPb}, v{vals[0]}, v{vals[1]}")
        A(f"v_cvt_pk_bf16_f32 v{vPb+1}, v{vals[2]}, v{vals[3]}")
        A(fm[4])
        A(f"v_mov_b32_dpp v{vPb+2}, v{vPb} {DPP}0xf")
        A(f"v_mov_b32_dpp v{vPb+3}, v{vPb+1} {DPP}0xf")
        A(fm[5]); A(ex[4])
        def fin32(ct): A(f"v_mfma_f32_16x16x32_bf16 {v(vF+4*ct,4)}, {v(voxc+4*ct,4)}, {v(vPb,4)}, 0")
        def fin16(ct): A(f"v_mfma_f32_16x16x16_bf16 {v(vF+4*ct,4)}, {v(vVOM+2*ct,2)}, {v(vPb+4,2)}, {v(vF+4*ct,4)}")
        def cvom(ct):
            A(f"v_cvt_pk_bf16_f32 v{vVOM+2*ct}, v{vVA+4*ct}, v{vVA+4*ct+2}")
            A(f"v_cvt_pk_bf16_f32 v{vVOM+2*ct+1}, v{vVA+4*ct+1}, v{vVA+4*ct+3}")
        def slot():
            if xoq or len(vpos) < NVC: vmore()
            else: A("s_nop 0")
        fin32(0); A(ex[5])
        A(f"v_mfma_f32_16x16x32_bf16 {v(vDen,4)}, {v(vOne32,4)}, {v(vPb,4)}, 0")
        cvom(0)
        fin32(2)
        A(f"v_cvt_pk_bf16_f32 v{vPb+4}, v{vals[4]}, v{vals[5]}")
        A(f"v_mov_b32 v{vPb+5}, v{vPb+4}")
        fin32(1); cvom(2)
        fin32(3)
        A(f"v_permlane32_swap_b32 v{vPb+4}, v{vPb+5}")
        cvom(1)
        A(f"v_mfma_f32_16x16x16_bf16 {v(vDen,4)}, {v(vOne16,2)}, {v(vPb+4,2)}, {v(vDen,4)}")
        cvom(3)
        fin16(0); slot()
        fin16(2); slot(); slot()
        fin16(1)
        A(f"v_rcp_f32 v{vT+4}, v{vDen}")
        slot()
        fin16(3)
        fstamp(A, 4, 252)
        fstamp(A, 5, 252)
        A(f"v_mov_b32_dpp v{vT+4}, v{vT+4} {DPP}0xc")
        A(f"v_cmp_u_f32 vcc, v{vF}, v{vF}")
        Lvs, Lvb = A.newlabel("vslow"), A.newlabel("vback")
        for pc in range(2):
            for r in range(4):
                A(f"v_mul_f32 v{vF+4*pc+r}, v{vF+4*pc+r}, v{vT+4}")
            for r in range(4):
                A(f"v_mul_f32_dpp v{vF+4*pc+r}, v{vF+4*(pc+2)+r}, v{vT+4} row_ror:8 row_mask:0xf bank_mask:0xc")
            if pc == 0:
                A(f"s_cbranch_vccnz {Lvs}")
                A.label(Lvb)
            A(f"ds_write_b128 v{vRedW}, {v(vF+4*pc,4)} offset:{1024*pc}")
        xo_late = list(xoq)
        assert len(vpos) == NVC
        mark = f"buffer_store_dword v{vMark}, v{vFlagO}, {WSR}, s{sMark} offen"
        if P["mk_pos"] == 0: A(mark)
        fstamp(A, 6, 252)
        A("s_waitcnt lgkmcnt(0)")
        A("s_barrier")
        fstamp(A, 7, 252)
        if P["prof"] in (3, 5): A("s_waitcnt lgkmcnt(0)")
        for h in range(4):
            A(f"ds_read_b128 {v(vF+4*h,4)}, v{vRedR} offset:{2048*h}")
        if P["mk_pos"] == 1: A(mark)
        A("s_waitcnt lgkmcnt(2)")
        A(f"v_pk_add_f32 {v(vF,2)}, {v(vF,2)}, {v(vF+4,2)}")
        A(f"v_pk_add_f32 {v(vF+2,2)}, {v(vF+2,2)}, {v(vF+6,2)}")
        A("s_waitcnt lgkmcnt(0)")
        A(f"v_pk_add_f32 {v(vF+8,2)}, {v(vF+8,2)}, {v(vF+12,2)}")
        A(f"v_pk_add_f32 {v(vF+10,2)}, {v(vF+10,2)}, {v(vF+14,2)}")
        A(f"v_pk_add_f32 {v(vF,2)}, {v(vF,2)}, {v(vF+8,2)}")
        A(f"v_pk_add_f32 {v(vF+2,2)}, {v(vF+2,2)}, {v(vF+10,2)}")
        A(f"v_cvt_pk_bf16_f32 v{vF}, v{vF}, v{vF+1}")
        A(f"v_cvt_pk_bf16_f32 v{vF+1}, v{vF+2}, v{vF+3}")
        A(f"buffer_store_dwordx2 {v(vF,2)}, v{vPartO}, {WSR}, s{sPartW} offen sc1")
        if P["mk_pos"] == 2: A(mark)
        issued += 2
        for x in xo_after: A(x); issued += 1
        stamp(A, 1, 252)
        fstamp(A, 8, 252)
        A.label(Lbub + sfx)
        sal = [f"s_add_u32 s{sT2}, s{sXk}, 12288",
               f"s_add_u32 s{sXk1}, s{sXk}, {12288 + 4096}",
               f"s_add_u32 s{sXk2}, s{sXk}, {12288 + 8192}",
               f"s_add_u32 s{sXk}, s{sXk}, {XR_SLOT}",
               f"s_cmp_eq_u32 s{sXk}, s{sXrEnd}",
               f"s_cselect_b32 s{sXk}, s{sXrBase}, s{sXk}",
               f"s_and_b32 s{sT0}, s{sS}, 3",
               f"s_mul_i32 s{sPx}, s{sT0}, 12288",
               f"s_add_u32 s{sPx}, s{sPx}, s{sPxBase}",
               f"s_add_u32 s{sT0}, s{sS}, 1",
               f"s_and_b32 s{sT0}, s{sT0}, 3",
               f"s_mul_i32 s{sPartW}, s{sT0}, {PART_SLOT}",
               f"s_add_u32 s{sPartW}, s{sPartW}, s{sPartBase}",
               f"s_mul_i32 s{sQkv}, s{sT0}, 36864",
               f"s_add_u32 s{sQkv}, s{sQkv}, s{sQkvBase}",
               f"s_add_u32 s{sQkv1}, s{sQkv}, 3072",
               f"s_add_u32 s{sQkv2}, s{sQkv}, 6144",
               f"s_cmp_lt_i32 s{sS}, 1",
               f"s_cselect_b32 s{sSt1}, {OOB}, s{sXp}",
               f"s_cselect_b32 s{sT0}, 0, {XP_SEG if not P.get('x_ring') else 0}",
               f"s_add_u32 s{sXp}, s{sXp}, s{sT0}"]
        fstamp(A, 9, 252)
        def pxload():
            for i in range(3):
                A(f"buffer_load_dwordx4 {v(vPX+4*i,4)}, v{vL16}, {WSR}, s{sPx} offen offset:{1024*i} sc1")
        kq = [("k", t, ks) for ks in range(6) for t in range(2)]
        PP = P["ppos"]
        q = [("v",) + e for e in vall[NVC:]] + kq[:PP] + [("p", i) for i in range(3)] + kq[PP:]
        def nxt(n=1):
            nonlocal issued
            for _ in range(n):
                if not q: return
                e = q.pop(0)
                if e == ("p", 2): vpos["p"] = issued
                if e[0] == "v": vpos[e[1:]] = issued
                issued += 1
                if e[0] == "p":
                    A(f"buffer_load_dwordx4 {v(vPX+4*e[1],4)}, v{vL16}, {WSR}, s{sPx} offen offset:{1024*e[1]} sc1"); continue
                if P.get("x_nokv") and e[0] in "kv" : A(f"buffer_load_dword v{vT+7}, v{vFlagO}, {WSR}, 0 offen"); continue
                if P.get("x_noxout") and e[0] == "s" and e[1] in (1, 2): A(f"buffer_load_dword v{vT+7}, v{vFlagO}, {WSR}, 0 offen"); continue
                if e[0] == "k": xload(aKX, e[1], e[2], (sT2, sXk1, sXk2))
                elif e[0] == "v": xload(aVX, e[1], e[2], (sXv, sXv1, sXv2))
                elif e[1] == 0: A(f"buffer_store_dwordx2 {v(vPois,2)}, v{vPartO}, {WSR}, s{sSt0} offen sc1")
                elif e[1] == 1: A(f"buffer_store_dwordx4 {v(vXOUT,4)}, v{vL16}, {WSR}, s{sSt1} offen {XOF[P.get('x_fl', 0)]}")
                elif e[1] == 2: A(f"buffer_store_dwordx4 {v(vXOUT+4,4)}, v{vL16}, {WSR}, s{sSt2} offen {XOF[P.get('x_fl', 0)]}")
                else: A(f"buffer_store_dword v{vXfv}, v{vFlagO}, {WSR}, s{sSt3} offen sc1")
        xo = lambda i: (vS + 4 * i) if i < 4 else (vF + 4 * (i - 4))
        xr = lambda qt, h: vQ + 16 * qt + 4 * h
        def xrow_mfma(vox, vom):
            return ([f"v_mfma_f32_16x16x32_bf16 {v(xo(2*ct+qt),4)}, {v(vox+4*ct,4)}, {v(vPX+4*qt,4)}, 0" for ct in range(4) for qt in range(2)] +
                    [f"v_mfma_f32_16x16x16_bf16 {v(xo(2*ct+qt),4)}, {v(vom+2*ct,2)}, {v(vPX+8+2*qt,2)}, {v(xo(2*ct+qt),4)}" for ct in range(4) for qt in range(2)])
        xw = [f"ds_write_b128 v{vRed2W}, {v(xo(i),4)} offset:{1024*i}" for i in range(8)]
        xrd = [f"ds_read_b128 {v(xr(qt,h),4)}, v{vRed2R} offset:{8192*h+1024*qt}" for qt in range(2) for h in range(4)]
        def xadd(qt):
            b = xr(qt, 0)
            return ([f"v_add_f32 v{b+r}, v{b+r}, v{b+4+r}" for r in range(4)] + [f"v_add_f32 v{b+8+r}, v{b+8+r}, v{b+12+r}" for r in range(4)] +
                    [f"v_add_f32 v{b+r}, v{b+r}, v{b+8+r}" for r in range(4)] +
                    [f"v_cvt_pk_bf16_f32 v{vXOUT+2*qt+h}, v{b+2*h}, v{b+2*h+1}" for h in range(2)])
        mf = [(x, None) for x in xrow_mfma(voxn, vomo)]
        for ks in range(6):
            for t in range(2):
                for ct in range(4):
                    acc = vXA + 4 * (4 * t + ct)
                    cc = "0" if ks == 0 else v(acc, 4)
                    mf.append((f"v_mfma_f32_16x16x32_bf16 {v(acc,4)}, {a(aVX+4*(6*t+ks),4)}, {a(24*ct+4*ks,4)}, {cc}", (t, ks) if ct == 0 else None))
        ad = xadd(0) + xadd(1)
        sideq = [(17 + 2 * i, xw[i]) for i in range(8)] + [(34, "s_waitcnt lgkmcnt(0)"), (34, "s_barrier")]
        sideq += [(35, x) for x in xrd] + [(44, "s_waitcnt lgkmcnt(0)")] + [(44, x) for x in ad]
        for n, (x, vf) in enumerate(mf):
            A(x)
            room = 2
            nvf = mf[n + 1][1] if n + 1 < len(mf) else None
            if nvf in vpos: room -= 1
            if n % P["ldev"] == 0: nxt(); room -= 1
            while room and sideq and sideq[0][0] <= n:
                A(sideq.pop(0)[1]); room -= 1
            while room and sal:
                A(sal.pop(0)); room -= 1
            if nvf in vpos: need(vpos[nvf])
        for _, x in sideq: A(x)
        assert not sal
        fstamp(A, 10, 252)
        nxt(2)
        A(f"s_add_u32 s{sXv2}, s{sXk}, {24576 + 8192}")
        A(f"s_add_u32 s{sXv1}, s{sXk}, {24576 + 4096}")
        A(f"s_add_u32 s{sXv}, s{sXk}, 24576")
        A.nop(1)
        for ct in range(4):
            for t in range(2):
                for h in range(2):
                    src = vXA + 4 * (4 * t + ct) + 2 * h
                    A(f"v_cvt_pk_bf16_f32 v{voxn+4*ct+2*t+h}, v{src}, v{src+1}")
            nxt()
        nxt(99)
        stamp(A, 2, 252)
        fstamp(A, 11, 252)
        need(vpos["p"])
        A(f"s_cmp_lt_i32 s{sS}, 0")
        A(f"s_cbranch_scc1 {Lnox}{sfx}")
        Lpx, Lpxr = A.newlabel("px"), A.newlabel("pxr")
        A.label(Lpx)
        A(f"v_max3_u32 v{vMx}, v{vPX}, v{vPX+1}, v{vPX+2}")
        for i in range(3, 11, 2): A(f"v_max3_u32 v{vMx}, v{vPX+i}, v{vPX+i+1}, v{vMx}")
        A(f"v_max_u32 v{vMx}, v{vPX+11}, v{vMx}")
        A(f"v_cmp_eq_u32 vcc, -1, v{vMx}")
        A(f"s_cbranch_vccnz {Lpxr}")
        stamp(A, 3, 252)
        fstamp(A, 12, 252)
        fin_parts[par] = (xrow_mfma(voxc, vomc), xrow_mfma(voxn, vomo), xw, xrd, ad, smf, pxload, vomo)
        A.label(Lnox + sfx)
        stamp(A, 4, 252)
        if not P.get("x_split"): fstamp(A, 13, 252)
        fstamp_collect(A, 14, 252)
        stamp_flush(A, 252, 253)
        A(f"s_add_u32 s{sS}, s{sS}, 1")
        A(f"s_cmp_lg_u32 s{sS}, {P['nseg'] - 1}")
        A(f"s_cbranch_scc1 L_s2_top_{1-par}")
        A("s_branch L_s2_fin")
        A.label(Lvs)
        A(f"v_mov_b32 v{vMx}, 0")
        for x in chks: A(x)
        A(f"v_cmp_eq_u32 vcc, -1, v{vMx}")
        A(f"s_cbranch_vccz {Lvb}")
        A.label(Lretry + sfx)
        budget_check(A, 6)
        A(f"s_branch {Latt}{sfx}")
        A.label(Lpxr)
        budget_check(A, 7)
        pxload()
        A("s_waitcnt vmcnt(0)")
        A(f"s_branch {Lpx}")
    A.label("L_s2_fin")
    xmA, xmB, xw, xrd, ad, smf, pxload, vomL = fin_parts[(P["nseg"] - 2) & 1]
    def xout():
        A(f"buffer_store_dwordx4 {v(vXOUT,4)}, v{vL16}, {WSR}, s{sSt1} offen sc1")
        A(f"s_add_u32 s{sSt1}, s{sSt1}, {XP_SEG}")
    def flag(val):
        A(f"v_mov_b32 v{vXfv}, {val}")
        A(f"buffer_store_dword v{vXfv}, v{vFlagO}, {WSR}, s{sXpF} offen sc1")
    def xrows(xm):
        for x in xm: A(x)
        A("s_barrier")
        for x in xw: A(x)
        A("s_waitcnt lgkmcnt(0)")
        A("s_barrier")
        for x in xrd: A(x)
        A("s_waitcnt lgkmcnt(0)")
        for x in ad: A(x)
        xout()
    xout()
    flag(P["nseg"] - 3)
    xrows(xmA)
    A(f"s_and_b32 s{sT0}, s{sS}, 3")
    A(f"s_mul_i32 s{sPx}, s{sT0}, 12288")
    A(f"s_add_u32 s{sPx}, s{sPx}, s{sPxBase}")
    def spin(load, base, code):
        L = A.newlabel("sp")
        A.label(L)
        load()
        budget_check(A, code)
        A("s_waitcnt vmcnt(0)")
        A(f"v_max3_u32 v{vMx}, v{base}, v{base+1}, v{base+2}")
        for i in range(3, 11, 2): A(f"v_max3_u32 v{vMx}, v{base+i}, v{base+i+1}, v{vMx}")
        A(f"v_max_u32 v{vMx}, v{base+11}, v{vMx}")
        A(f"v_cmp_eq_u32 vcc, -1, v{vMx}")
        A(f"s_cbranch_vccnz {L}")
    def vmload():
        for j in range(3):
            A(f"buffer_load_dwordx4 {v(vVM+4*j,4)}, v{vL16}, {WSR}, s{sQkv2} offen offset:{1024*j} sc1")
    for r in range(16): A(f"v_mov_b32 v{vVA+r}, 0")
    spin(vmload, vVM, 6)
    flag(P["nseg"] - 1)
    for x in smf: A(x)
    A.nop(8)
    for ct in range(4):
        A(f"v_cvt_pk_bf16_f32 v{vomL+2*ct}, v{vVA+4*ct}, v{vVA+4*ct+2}")
        A(f"v_cvt_pk_bf16_f32 v{vomL+2*ct+1}, v{vVA+4*ct+1}, v{vVA+4*ct+3}")
    spin(pxload, vPX, 7)
    xrows(xmB)
    A("s_waitcnt vmcnt(0)")
    flag(P["nseg"])
    ostamp(A, 0, 2)
    A("s_branch L_end")

def gen_xs(A):
    sHH = 30
    sQkv, sQkvBase, sXq, sXrBase, sXrEnd, sPx, sPxP, sPxBase, sXfl, sC, sNeed = 31, 32, 33, 34, 35, 36, 37, 38, 39, 40, 41
    sXa = 42
    sMask = 48
    sPf, sMk1, sQT = 64, 65, 66
    vPf = 140
    vL16, vKmO, vL8, vXflO, vNeg, vProbe = 1, 2, 3, 4, 5, 6
    vPois = 8
    vT = 12
    vFl, vMx = 20, 21
    vQ, vKX, vKM = 24, 48, 96
    vS = 120
    vPb = 132
    c = (192 ** -0.5) * math.log2(math.e)
    A.label("L_xs")
    A("s_setprio 3")
    A(f"s_sub_u32 s{sHH}, s{sR}, 28")
    A(f"s_lshl_b32 s{sHH}, s{sHH}, 1")
    A(f"s_lshr_b32 s{sT0}, s{sW}, 1")
    A(f"s_add_u32 s{sHH}, s{sHH}, s{sT0}")
    A(f"s_and_b32 s{sQT}, s{sW}, 1")
    A(f"v_lshlrev_b32 v{vL16}, 4, v0")
    A(f"v_lshlrev_b32 v{vL8}, 3, v0")
    A(f"v_and_b32 v{vKmO}, 0x37, v0")
    A(f"v_lshlrev_b32 v{vKmO}, 4, v{vKmO}")
    A(f"v_min_u32 v{vXflO}, 11, v0")
    A(f"v_lshlrev_b32 v{vXflO}, 2, v{vXflO}")
    A(f"v_min_u32 v{vProbe}, 17, v0")
    A(f"v_lshlrev_b32 v{vProbe}, 2, v{vProbe}")
    A(f"s_lshl_b32 s{sMk1}, s{sG}, 7")
    A(f"s_add_u32 s{sMk1}, s{sMk1}, {S1MARK}")
    for r in range(4): A(f"v_mov_b32 v{vPois+r}, -1")
    A(f"v_mov_b32 v{vNeg}, {f2u(-1e9 * 192 ** 0.5):#x}")
    A(f"v_and_b32 v{vT}, 15, v0")
    A(f"s_lshl_b32 s{sT0}, s{sQT}, 4")
    A(f"v_add_u32 v{vT}, s{sT0}, v{vT}")
    A(f"v_lshrrev_b32 v{vT+1}, 4, v0")
    A(f"v_lshlrev_b32 v{vT+1}, 2, v{vT+1}")
    for t in range(2):
        for r in range(4):
            A(f"v_add_u32 v{vT+2}, {16*t+r}, v{vT+1}")
            A(f"v_cmp_le_u32 s[{sMask+2*(4*t+r)}:{sMask+2*(4*t+r)+1}], v{vT+2}, v{vT}")
    A(f"s_mul_i32 s{sQkvBase}, s{sG}, 147456")
    A(f"s_mul_i32 s{sT0}, s{sHH}, 9216")
    A(f"s_add_u32 s{sQkvBase}, s{sQkvBase}, s{sT0}")
    A(f"s_add_u32 s{sQkvBase}, s{sQkvBase}, {QKVR + 3072}")
    A(f"s_mul_i32 s{sXrBase}, s{sG}, {XR_G}")
    A(f"s_mul_i32 s{sT0}, s{sHH}, {XR_HEAD}")
    A(f"s_add_u32 s{sXrBase}, s{sXrBase}, s{sT0}")
    A(f"s_add_u32 s{sXrBase}, s{sXrBase}, {XR}")
    A(f"s_add_u32 s{sXrEnd}, s{sXrBase}, {XR_G}")
    A(f"s_mov_b32 s{sXq}, s{sXrBase}")
    A(f"s_mul_i32 s{sPxBase}, s{sG}, 49152")
    A(f"s_mul_i32 s{sT0}, s{sHH}, 3072")
    A(f"s_add_u32 s{sPxBase}, s{sPxBase}, s{sT0}")
    A(f"s_lshl_b32 s{sT0}, s{sQT}, 10")
    A(f"s_add_u32 s{sPxBase}, s{sPxBase}, s{sT0}")
    A(f"s_mul_i32 s{sT0}, s{sQT}, 1016")
    A(f"s_sub_u32 s{sT0}, 2048, s{sT0}")
    A(f"v_add_u32 v{vL8}, s{sT0}, v{vL16}")
    A(f"s_add_u32 s{sPxBase}, s{sPxBase}, {PXR}")
    A(f"s_lshl_b32 s{sXfl}, s{sG}, 9")
    A(f"s_mul_i32 s{sT0}, s{sHH}, 72")
    A(f"s_add_u32 s{sXfl}, s{sXfl}, s{sT0}")
    A(f"s_add_u32 s{sXfl}, s{sXfl}, {XFLAG}")
    A(f"s_mov_b32 s{sC}, {f2u(c):#x}")
    A(f"s_mov_b32 s{sS}, 0")
    A(f"s_lshl_b32 s{sPf}, s{sHH}, 1")
    A(f"s_add_u32 s{sPf}, s{sPf}, s{sQT}")
    A(f"s_lshl_b32 s{sPf}, s{sPf}, 3")
    A(f"s_add_u32 s{sPf}, s{sPf}, s{sG}")
    A(f"s_lshl_b32 s{sPf}, s{sPf}, 12")
    A(f"s_add_u32 s{sPf}, s{sPf}, 81920")
    for k in range(4):
        A(f"buffer_load_dwordx4 {v(vPf,4)}, v{vL16}, s[{sX}:{sX+3}], s{sPf} offen offset:{1024*k}")
    A(f"s_lshl_b32 s{sPf}, s{sHH}, 1")
    A(f"s_add_u32 s{sPf}, s{sPf}, s{sQT}")
    A(f"s_mul_i32 s{sPf}, s{sPf}, 5120")
    gen_locality(A, "L_xs_loc", "L_xs_glb", vT)
    for mode in ("loc", "glb"):
        sc = "" if mode == "loc" else " sc1"
        A.label(f"L_xs_{mode}")
        Lf, Lk = A.newlabel("xsf"), A.newlabel("xsk")
        fstamp(A, 5, 250)
        A(f"s_add_u32 s{sNeed}, s{sS}, 1")
        A.label(Lf)
        A(f"buffer_load_dword v{vFl}, v{vXflO}, {WSR}, s{sXfl} offen sc1")
        budget_check(A, 8)
        A("s_waitcnt vmcnt(0)")
        A(f"v_cmp_gt_u32 vcc, s{sNeed}, v{vFl}")
        A(f"s_cbranch_vccnz {Lf}")
        fstamp(A, 6, 250)
        A(f"s_lshl_b32 s{sT0}, s{sQT}, 10")
        A(f"s_add_u32 s{sXa}, s{sXq}, s{sT0}")
        A(f"s_add_u32 s{sXa+1}, s{sXa}, 4096")
        A(f"s_add_u32 s{sXa+2}, s{sXa}, 8192")
        A(f"s_add_u32 s{sXa+3}, s{sXq}, 12288")
        A(f"s_add_u32 s{sXa+4}, s{sXq}, {12288+4096}")
        A(f"s_add_u32 s{sXa+5}, s{sXq}, {12288+8192}")
        for ks in range(6):
            A(f"buffer_load_dwordx4 {v(vQ+4*ks,4)}, v{vL16}, {WSR}, s{sXa+ks//2} offen offset:{2048*(ks&1)} sc1")
            for t in range(2):
                A(f"buffer_load_dwordx4 {v(vKX+4*(6*t+ks),4)}, v{vL16}, {WSR}, s{sXa+3+ks//2} offen offset:{2048*(ks&1)+1024*t} sc1")
        A(f"s_add_u32 s{sXq}, s{sXq}, {XR_SLOT}")
        A(f"s_cmp_eq_u32 s{sXq}, s{sXrEnd}")
        A(f"s_cselect_b32 s{sXq}, s{sXrBase}, s{sXq}")
        A(f"s_and_b32 s{sT0}, s{sS}, 3")
        A(f"s_mul_i32 s{sQkv}, s{sT0}, 36864")
        A(f"s_add_u32 s{sQkv}, s{sQkv}, s{sQkvBase}")
        A(f"s_mul_i32 s{sPx}, s{sT0}, 12288")
        A(f"s_add_u32 s{sPx}, s{sPx}, s{sPxBase}")
        A(f"s_add_u32 s{sT0}, s{sS}, 2")
        A(f"s_and_b32 s{sT0}, s{sT0}, 3")
        A(f"s_mul_i32 s{sPxP}, s{sT0}, 12288")
        A(f"s_add_u32 s{sPxP}, s{sPxP}, s{sPxBase}")
        for ks in range(6):
            A(f"s_waitcnt vmcnt({15 - 3 * ks})")
            for t in range(2):
                cc = "0" if ks == 0 else v(vS + 4 * t, 4)
                A(f"v_mfma_f32_16x16x32_bf16 {v(vS+4*t,4)}, {v(vKX+4*(6*t+ks),4)}, {v(vQ+4*ks,4)}, {cc}")
        fstamp(A, 7, 250)
        A.label(Lk)
        if P["xs_slp"]: A(f"s_sleep {P['xs_slp']}")
        A(f"buffer_load_dword v{vMx}, v{vProbe}, {WSR}, s{sMk1} offen{' offset:1024' if P['mk2'] else ''} sc1")
        budget_check(A, 9)
        A("s_waitcnt vmcnt(0)")
        A(f"v_cmp_ge_i32 vcc, s{sS}, v{vMx}")
        A(f"s_cbranch_vccnz {Lk}")
        for ks in range(6):
            A(f"buffer_load_dwordx4 {v(vKM+4*ks,4)}, v{vKmO}, {WSR}, s{sQkv} offen offset:{1024*(ks>>1)+128*(ks&1)} sc1")
        A("s_waitcnt vmcnt(0)")
        A(f"v_max3_u32 v{vMx}, v{vKM}, v{vKM+1}, v{vKM+2}")
        for i in range(3, 23, 2): A(f"v_max3_u32 v{vMx}, v{vKM+i}, v{vKM+i+1}, v{vMx}")
        A(f"v_max_u32 v{vMx}, v{vKM+23}, v{vMx}")
        A(f"v_cmp_eq_u32 vcc, -1, v{vMx}")
        A(f"s_cbranch_vccnz {Lk}")
        fstamp(A, 8, 250)
        for ks in range(6):
            cc = "0" if ks == 0 else v(vS + 8, 4)
            A(f"v_mfma_f32_16x16x32_bf16 {v(vS+8,4)}, {v(vKM+4*ks,4)}, {v(vQ+4*ks,4)}, {cc}")
        A(f"buffer_store_dwordx4 {v(vPois,4)}, v{vL16}, {WSR}, s{sPxP} offen{sc}")
        A(f"buffer_store_dwordx2 {v(vPois,2)}, v{vL8}, {WSR}, s{sPxP} offen{sc}")
        for i in range(8):
            A(f"v_cndmask_b32 v{vS+i}, v{vNeg}, v{vS+i}, s[{sMask+2*i}:{sMask+2*i+1}]")
        vm, vt2 = vT, vT + 1
        A(f"v_max3_f32 v{vm}, v{vS}, v{vS+1}, v{vS+2}")
        for i in range(3, 11, 2): A(f"v_max3_f32 v{vm}, v{vS+i}, v{vS+i+1}, v{vm}")
        A(f"v_max_f32 v{vm}, v{vS+11}, v{vm}")
        for sw in ("32", "16"):
            A(f"v_mov_b32 v{vt2}, v{vm}")
            A("s_nop 1")
            A(f"v_permlane{sw}_swap_b32 v{vm}, v{vt2}")
            A(f"v_max_f32 v{vm}, v{vm}, v{vt2}")
        A(f"v_mul_f32 v{vm}, s{sC}, v{vm}")
        for i in range(12): A(f"v_fma_f32 v{vS+i}, v{vS+i}, s{sC}, -v{vm}")
        for i in range(12): A(f"v_exp_f32 v{vS+i}, v{vS+i}")
        A(f"v_add_f32 v{vT+2}, v{vS+8}, v{vS+9}")
        A(f"v_add_f32 v{vT+3}, v{vS}, v{vS+1}")
        A(f"v_add_f32 v{vT+2}, v{vT+2}, v{vS+10}")
        A(f"v_add_f32 v{vT+2}, v{vT+2}, v{vS+11}")
        for i in range(2, 8): A(f"v_add_f32 v{vT+3}, v{vT+3}, v{vS+i}")
        A(f"v_fma_f32 v{vm}, v{vT+2}, 0.5, v{vT+3}")
        for sw in ("32", "16"):
            A(f"v_mov_b32 v{vt2}, v{vm}")
            A("s_nop 1")
            A(f"v_permlane{sw}_swap_b32 v{vm}, v{vt2}")
            A(f"v_add_f32 v{vm}, v{vm}, v{vt2}")
        A(f"v_rcp_f32 v{vm}, v{vm}")
        A("s_nop 0")
        for i in range(12): A(f"v_mul_f32 v{vS+i}, v{vS+i}, v{vm}")
        for i in range(4): A(f"v_cvt_pk_bf16_f32 v{vPb+i}, v{vS+2*i}, v{vS+2*i+1}")
        for i in range(2): A(f"v_cvt_pk_bf16_f32 v{vPb+4+i}, v{vS+8+i}, v{vS+10+i}")
        A(f"buffer_store_dwordx4 {v(vPb,4)}, v{vL16}, {WSR}, s{sPx} offen{sc}")
        A(f"buffer_store_dwordx2 {v(vPb+4,2)}, v{vL8}, {WSR}, s{sPx} offen{sc}")
        fstamp(A, 9, 250)
        if P["prof"] in (3, 5):
            A("s_waitcnt lgkmcnt(0)")
            for i in range(5, 10): A(f"v_writelane_b32 v250, s{60+2*i}, {i}")
            stamp_flush(A)
        if P["xpf"]:
            A(f"s_add_u32 s{sT0}, s{sS}, {P['xpf']}")
            A(f"s_mul_i32 s{sT0}, s{sT0}, 40960")
            A(f"s_add_u32 s{sT0}, s{sT0}, s{sPf}")
            for i in range(4):
                A(f"buffer_load_dwordx4 {v(vPf,4)}, v{vL16}, s[{sX}:{sX+3}], s{sT0} offen offset:{1024*i}")
            A(f"s_add_u32 s{sT0}, s{sT0}, 4096")
            A(f"buffer_load_dwordx4 {v(vPf,4)}, v{vL16}, s[{sX}:{sX+3}], s{sT0} offen")
        A(f"s_add_u32 s{sS}, s{sS}, 1")
        A(f"s_cmp_lg_u32 s{sS}, {P['nseg']}")
        A(f"s_cbranch_scc1 L_xs_{mode}")
        A("s_branch L_end")

def gen_main(A):
    A(".p2align 8")
    A(f".type {NAME},@function")
    A.label(NAME)
    gen_common_prologue(A)
    A(f"s_cmp_lt_u32 s{sR}, 18")
    A("s_cbranch_scc1 L_s1")
    A(f"s_cmp_lt_u32 s{sR}, 28")
    A("s_cbranch_scc1 L_s2")
    A("s_branch L_init")
    A.label("L_fail")
    A(f"v_mov_b32 v1, s{sT3}")
    A(f"s_lshl_b32 s{sT3}, s{sT3}, 2")
    A(f"s_add_u32 s{sT3}, s{sT3}, {DBG_FAIL}")
    A(f"v_mov_b32 v2, s{sT3}")
    A(f"v_mov_b32 v1, s{sS}")
    A(f"v_add_u32 v1, 1000, v1")
    A(f"buffer_store_dword v1, v2, s[{sDBG}:{sDBG+3}], 0 offen")
    A.label("L_end")
    A("s_endpgm")
    gen_init(A)
    gen_s1(A)
    gen_s2(A)
    gen_xs(A)
    try:
        import gen_bg
        gen_bg.gen_bg(A, sys.modules[__name__])
        A.label("L_code_end")
    except ImportError:
        A.label("L_bg")
        A("s_endpgm")

HEADER = open("gated_mix__memory_aug_recurrent_mem_tr__ssm_conv_h3__prompt.s.ref").read().split("; Override launch")[0]

def kd(name, vgpr, acc, sgpr=96):
    return f""".amdhsa_kernel {name}
  .amdhsa_next_free_vgpr {vgpr}
  .amdhsa_next_free_sgpr {sgpr}
  .amdhsa_accum_offset {acc}
  .amdhsa_group_segment_fixed_size 0
  .amdhsa_kernarg_size 136
  .amdhsa_user_sgpr_count 2
  .amdhsa_user_sgpr_kernarg_segment_ptr 1
  .amdhsa_system_sgpr_workgroup_id_x 1
  .amdhsa_float_denorm_mode_32 3
.end_amdhsa_kernel
"""

def generate(**kw):
    P.update(kw)
    A = Asm()
    A('.amdgcn_target "amdgcn-amd-amdhsa--gfx950"')
    A(".text")
    A(f".globl {NAME}")
    gen_main(A)
    probs = check_hazards(A.lines)
    txt = HEADER
    txt += "; @launch grid=(256,1,1) block=(256,1,1) lds=163840\n"
    txt += A.text()
    txt += '.section .rodata,"a"\n.p2align 6\n' + kd(NAME, 512, 256)
    return txt, probs

if __name__ == "__main__":
    kw = {}
    out = "gated_mix__memory_aug_recurrent_mem_tr__ssm_conv_h3__prompt.s"
    for arg in sys.argv[1:]:
        if "=" in arg:
            k, val = arg.split("="); kw[k] = int(val)
        else:
            out = arg
    txt, probs = generate(**kw)
    open(out, "w").write(txt)
    print("wrote", out, len(txt), "bytes;", len(probs), "hazards")
```

```python
import math
from asmlib import v, a, s

def gen_bg(A, G):
    P, WSR = G.P, G.WSR
    sG, sR, sW, sS, sX = G.sG, G.sR, G.sW, G.sS, G.sX
    sT0, sT1, sT2, sT3 = G.sT0, G.sT1, G.sT2, G.sT3
    OOB = G.OOB
    budget_check, srd, f2u = G.budget_check, G.srd, G.f2u
    sWV, sCU, sLds, sI, sCh, sMaskHi = 30, 31, 32, 33, 34, 35
    sK, sV, sF, sAux = 36, 40, 44, 48
    sPk, sPv, sPsk, sPf, sPd, sPg, sPo = 52, 54, 56, 58, 60, 62, 64
    sD = 66
    sU, sSeg, sJ, sB0, sB1, sUe = 74, 75, 76, 77, 78, 79
    XS = f"s[{sX}:{sX+3}]"
    vL16, vFlagO = 1, 2
    vT = 4
    UP, CP = 4608, 4160
    FOFF = UP
    YOFF = FOFF
    LDSW = FOFF + 8 * CP
    def lo(d, x): A(f"v_lshlrev_b32 v{d}, 16, v{x}")
    def hi(d, x): A(f"v_and_b32 v{d}, s{sMaskHi}, v{x}")

    A.label("L_bg")
    A(f"s_sub_u32 s{sT0}, s{sR}, 30")
    A(f"s_lshl_b32 s{sT0}, s{sT0}, 3")
    A(f"s_add_u32 s{sT0}, s{sT0}, s{sG}")
    A(f"s_lshl_b32 s{sT0}, s{sT0}, 2")
    A(f"s_add_u32 s{sWV}, s{sT0}, s{sW}")
    A(f"s_mul_i32 s{sLds}, s{sW}, {LDSW}")
    A(f"s_load_dwordx4 s[{sPk}:{sPk+3}], s[0:1], 64")
    A(f"s_load_dwordx4 s[{sPsk}:{sPsk+3}], s[0:1], 80")
    A(f"s_load_dwordx4 s[{sPd}:{sPd+3}], s[0:1], 96")
    A(f"s_load_dwordx2 s[{sPo}:{sPo+1}], s[0:1], 112")
    A(f"s_mov_b32 s{sMaskHi}, 0xffff0000")
    A(f"s_mov_b32 s{sS}, 0")
    A(f"v_lshlrev_b32 v{vL16}, 4, v0")
    A(f"v_cmp_eq_u32 vcc, 0, v0")
    A(f"v_mov_b32 v{vT}, {OOB}")
    A("s_nop 0")
    A(f"v_cndmask_b32 v{vFlagO}, v{vT}, v0, vcc")
    A("s_waitcnt lgkmcnt(0)")
    G.gen_locality(A, None, None, vT)
    Lw0 = A.newlabel("bgw")
    A(f"s_lshl_b32 s{sT0}, s{sG}, 9")
    A(f"s_add_u32 s{sT0}, s{sT0}, {G.XFLAG}")
    A(f"v_lshlrev_b32 v{vT+1}, 2, v0")
    A.label(Lw0)
    A("s_sleep 16")
    A(f"buffer_load_dword v{vT}, v{vT+1}, {WSR}, s{sT0} offen sc1")
    budget_check(A, 12)
    A("s_waitcnt vmcnt(0)")
    A(f"v_cmp_eq_u32 vcc, 0, v{vT}")
    A(f"s_cbranch_vccnz {Lw0}")
    Lt, Ltd = A.newlabel("touch"), A.newlabel("touched")
    A(f"s_cmp_eq_u32 s{sR}, 31")
    A(f"s_cbranch_scc1 {Lt}")
    if P["near"]:
        Lnm = A.newlabel("nomeas")
        A(f"s_cmp_lg_u32 s{sW}, 0")
        A(f"s_cbranch_scc1 {Lnm}")
        A(f"s_lshl_b32 s{sT0}, s{sG}, 10")
        A(f"s_add_u32 s{sT0}, s{sT0}, {G.NEARP}")
        A(f"v_mov_b32 v5, s{sT0}")
        A("s_mov_b32 s86, -1")
        A("s_mov_b32 s87, -1")
        for i in range(P.get('nmeas', 14)):
            A("s_memtime s[82:83]")
            A("s_waitcnt lgkmcnt(0)")
            A(f"s_mov_b32 s{sT1}, {(i & 1) * 8192 + (i >> 1) * 128}")
            A(f"buffer_load_dword v6, v5, {WSR}, s{sT1} offen sc1")
            A("s_waitcnt vmcnt(0)")
            A("s_memtime s[84:85]")
            A("s_waitcnt lgkmcnt(0)")
            A("s_sub_u32 s84, s84, s82")
            if i >= 2: A(f"s_min_u32 s{86 + (i & 1)}, s{86 + (i & 1)}, s84")
        A("s_cmp_lt_u32 s87, s86")
        A(f"s_cselect_b32 s{sT1}, 2, 1")
        A(f"v_mov_b32 v6, s{sT1}")
        A(f"s_lshl_b32 s{sT0}, s{sG}, 2")
        A(f"s_add_u32 s{sT0}, s{sT0}, {G.DBG_NEAR}")
        A(f"v_mov_b32 v5, s{sT0}")
        A(f"buffer_store_dword v6, v5, s[{G.sDBG}:{G.sDBG+3}], 0 offen sc1")
        A.label(Lnm)
        A("s_barrier")
    A(f"s_branch {Ltd}")
    A.label(Lt)
    if P["touch"] == 3:
        A(f"s_lshl_b32 s{sT0}, s{sW}, 10")
        A(f"s_mul_i32 s{sT1}, s{sG}, {G.XR_G}")
        A(f"s_add_u32 s{sT0}, s{sT0}, s{sT1}")
        A(f"s_add_u32 s{sT0}, s{sT0}, {G.XR + G.XR_SLOT}")
        A(f"s_mov_b32 s{sI}, {3 * G.XR_SLOT // 4096}")
        Ll = A.newlabel("tl")
        A.label(Ll)
        A(f"buffer_load_dwordx4 {v(vT+4,4)}, v{vL16}, {WSR}, s{sT0} offen sc1")
        A(f"s_add_u32 s{sT0}, s{sT0}, 4096")
        A(f"s_sub_u32 s{sI}, s{sI}, 1")
        A(f"s_cmp_lg_u32 s{sI}, 0")
        A(f"s_cbranch_scc1 {Ll}")
        A("s_waitcnt vmcnt(0)")
    A.label(Ltd)
    for dst, src, size in ((sK, sPk, 2048 * 1280), (sV, sPv, 2048 * 1280), (sAux, sPg, 1280)):
        A(f"s_mov_b64 s[{dst}:{dst+1}], s[{src}:{src+1}]")
        srd(A, dst, size)

    if P.get("nobg") == 1:
        A("s_endpgm")
    vGW, vXr, vAcc, vXo, vGo = 24, 64, 84, 85, 86
    A(f"v_and_b32 v{vT}, 15, v0")
    A(f"v_lshlrev_b32 v{vT}, 4, v{vT}")
    for i in range(5):
        A(f"buffer_load_dwordx4 {v(vXr+4*i,4)}, v{vT}, s[{sAux}:{sAux+3}], 0 offen offset:{256*i}")
    A(f"v_lshrrev_b32 v{vT+1}, 4, v0")
    A(f"v_mul_u32_u24 v{vXo}, 1280, v{vT+1}")
    A(f"v_add_u32 v{vXo}, v{vXo}, v{vT}")
    A(f"v_lshlrev_b32 v{vT+1}, 2, v{vT+1}")
    A(f"v_cmp_eq_u32 vcc, 0, v{vT}")
    A(f"v_mov_b32 v{vT+2}, {OOB}")
    A("s_nop 0")
    A(f"v_cndmask_b32 v{vGo}, v{vT+2}, v{vT+1}, vcc")
    A(f"s_mul_i32 s{sB0}, s{sWV}, 40960")
    A(f"s_lshl_b32 s{sB1}, s{sWV}, 7")
    A(f"s_add_u32 s{sB1}, s{sB1}, {G.GV}")
    A("s_waitcnt vmcnt(0)")
    for i in range(20):
        lo(vGW + 2 * i, vXr + i); hi(vGW + 2 * i + 1, vXr + i)
    A(f"s_mov_b32 s{sI}, 8")
    Lg = A.newlabel("gate")
    A.label(Lg)
    for i in range(5):
        A(f"buffer_load_dwordx4 {v(vXr+4*i,4)}, v{vXo}, {XS}, s{sB0} offen offset:{256*i}")
    A(f"v_mov_b32 v{vAcc}, 0")
    for i in range(20):
        if i % 4 == 0: A(f"s_waitcnt vmcnt({4 - i // 4})")
        lo(vT, vXr + i); hi(vT + 1, vXr + i)
        A(f"v_pk_mul_f32 {v(vT,2)}, {v(vT,2)}, {v(vGW+2*i,2)}")
        A(f"v_cvt_pk_bf16_f32 v{vT+2}, v{vT}, v{vT+1}")
        lo(vT, vT + 2); hi(vT + 1, vT + 2)
        A(f"v_add_f32 v{vAcc}, v{vAcc}, v{vT}")
        A(f"v_add_f32 v{vAcc}, v{vAcc}, v{vT+1}")
    for sh in (8, 4, 2, 1):
        A("s_nop 1")
        A(f"v_add_f32_dpp v{vAcc}, v{vAcc}, v{vAcc} row_ror:{sh} row_mask:0xf bank_mask:0xf")
    A(f"v_cvt_pk_bf16_f32 v{vAcc}, v{vAcc}, v{vAcc}")
    lo(vAcc, vAcc)
    A(f"v_mul_f32 v{vAcc}, {f2u(-math.log2(math.e)):#x}, v{vAcc}")
    A(f"v_exp_f32 v{vAcc}, v{vAcc}")
    A("s_nop 0")
    A(f"v_add_f32 v{vAcc}, 1.0, v{vAcc}")
    A(f"v_rcp_f32 v{vAcc}, v{vAcc}")
    A("s_nop 0")
    A(f"v_cvt_pk_bf16_f32 v{vAcc}, v{vAcc}, v{vAcc}")
    lo(vAcc, vAcc)
    A(f"buffer_store_dword v{vAcc}, v{vGo}, {WSR}, s{sB1} offen sc1")
    A(f"s_add_u32 s{sB0}, s{sB0}, 5120")
    A(f"s_add_u32 s{sB1}, s{sB1}, 16")
    A(f"s_sub_u32 s{sI}, s{sI}, 1")
    A(f"s_cmp_lg_u32 s{sI}, 0")
    A(f"s_cbranch_scc1 {Lg}")
    G.ostamp(A, 0, 1)
    def rnd(pair):
        A(f"v_cvt_pk_bf16_f32 v{vT+2}, v{pair}, v{pair+1}")
        lo(pair, vT + 2); hi(pair + 1, vT + 2)
    vL4, vSt, vLw, vLr = 20, 21, 22, 23
    vSK = 24
    vKH = 32
    vKR, vVR = 40, 76
    vKV = 108
    vO = 112
    vW = 144
    TP = 272
    A(f"v_lshlrev_b32 v{vL4}, 2, v0")
    A(f"v_lshrrev_b32 v{vSt}, 4, v0")
    A(f"v_lshlrev_b32 v{vSt}, 12, v{vSt}")
    A(f"v_and_b32 v{vT}, 15, v0")
    A(f"v_lshl_add_u32 v{vSt}, v{vT}, 4, v{vSt}")
    A(f"s_sub_u32 s{sT0}, 3, s{sW}")
    A(f"s_lshl_b32 s{sT0}, s{sT0}, 6")
    A(f"v_mul_u32_u24 v{vLw}, {2 * TP}, v0")
    A(f"v_add_u32 v{vLw}, s{sT0}, v{vLw}")
    A(f"v_lshrrev_b32 v{vLr}, 4, v0")
    A(f"v_mul_u32_u24 v{vLr}, {TP}, v{vLr}")
    A(f"v_lshl_add_u32 v{vLr}, v{vT}, 4, v{vLr}")
    A(f"s_mul_i32 s{sT0}, s{sW}, {32 * TP}")
    A(f"v_add_u32 v{vLr}, s{sT0}, v{vLr}")
    A(f"s_mov_b64 s[{sAux}:{sAux+1}], s[{sPsk}:{sPsk+1}]")
    srd(A, sAux, 5120)
    A(f"s_mul_i32 s{sB0}, s{sWV}, 40960")
    A(f"s_lshr_b32 s{sB1}, s{sWV}, 2")
    A(f"s_lshl_b32 s{sB1}, s{sB1}, 8")
    A(f"s_sub_u32 s{sB1}, {G.KVT + 1920 * 2}, s{sB1}")
    A(f"s_lshl_b32 s{sT0}, s{sW}, 17")
    A(f"s_add_u32 s{sB1}, s{sB1}, s{sT0}")
    A(f"s_mov_b32 s{sCh}, 0")
    A(f"s_sub_u32 s{sT0}, s{sB0}, {3 * 1280}")
    A(f"v_add_u32 v{vT+1}, s{sT0}, v{vL4}")
    def kload(i):
        if i < 3: A(f"buffer_load_dword v{vKR+i}, v{vT+1}, s[{sK}:{sK+3}], 0 offen offset:{1280*i}")
        else:
            A(f"s_add_u32 s{sT0}, s{sB0}, {1280 * (i - 3)}")
            A(f"buffer_load_dword v{vKR+i}, v{vL4}, s[{sK}:{sK+3}], s{sT0} offen")
            A(f"buffer_load_dword v{vVR+i-3}, v{vL4}, s[{sV}:{sV+3}], s{sT0} offen")
    A(f"s_mov_b32 s{sI}, 5")
    La = A.newlabel("kv")
    A.label(La)
    A(f"buffer_load_dwordx4 {v(vW,4)}, v{vL16}, s[{sAux}:{sAux+3}], s{sCh} offen")
    for i in range(19): kload(i)
    A("s_waitcnt vmcnt(32)")
    for c in range(2):
        for h in range(2):
            lo(vSK + 2 * (2 * h) + c, vW + 2 * c + h); hi(vSK + 2 * (2 * h + 1) + c, vW + 2 * c + h)
    for i in range(3):
        lo(vKH + 2 * (i + 1), vKR + i); hi(vKH + 2 * (i + 1) + 1, vKR + i)
    for i in range(32):
        if i < 16:
            kload(19 + i)
            A("s_waitcnt vmcnt(32)")
        else:
            A(f"s_waitcnt vmcnt({2 * (31 - i)})")
        kv = vKV + 2 * (i & 1)
        lo(vKH + 2 * (i & 3), vKR + 3 + i); hi(vKH + 2 * (i & 3) + 1, vKR + 3 + i)
        lo(kv, vVR + i); hi(kv + 1, vVR + i)
        acc, trm = vT + 4, vT + 6
        for m in (3, 2, 1, 0):
            d = acc if m == 3 else trm
            A(f"v_pk_mul_f32 {v(d,2)}, {v(vKH+2*((i-m)&3),2)}, {v(vSK+2*m,2)}")
            rnd(d)
            if m != 3:
                A(f"v_pk_add_f32 {v(acc,2)}, {v(acc,2)}, {v(trm,2)}")
                rnd(acc)
        A(f"v_pk_mul_f32 {v(kv,2)}, {v(acc,2)}, {v(kv,2)}")
        if i & 1:
            for c in range(2):
                A(f"v_cvt_pk_bf16_f32 v{vO+16*c+15-(i>>1)}, v{vKV+2+c}, v{vKV+c}")
    A("s_barrier")
    for c in range(2):
        for q in range(4):
            A(f"ds_write_b128 v{vLw}, {v(vO+16*c+4*q,4)} offset:{TP*c+16*q}")
    A("s_waitcnt lgkmcnt(0)")
    A("s_barrier")
    for m in range(8):
        A(f"ds_read_b128 {v(vO+4*m,4)}, v{vLr} offset:{4*TP*m}")
    for m in range(8):
        A(f"s_waitcnt lgkmcnt({7-m})")
        A(f"buffer_store_dwordx4 {v(vO+4*m,4)}, v{vSt}, {WSR}, s{sB1} offen sc1")
        A(f"s_add_u32 s{sB1}, s{sB1}, {16384 if m < 7 else 128 * 4096 - 7 * 16384}")
    A(f"s_add_u32 s{sB0}, s{sB0}, 256")
    A(f"v_add_u32 v{vT+1}, 256, v{vT+1}")
    A(f"s_add_u32 s{sCh}, s{sCh}, 1024")
    A(f"s_sub_u32 s{sI}, s{sI}, 1")
    A(f"s_cmp_lg_u32 s{sI}, 0")
    A(f"s_cbranch_scc1 {La}")
    A(f"s_lshl_b32 s{sT0}, s{sWV}, 2")
    A(f"s_add_u32 s{sT0}, s{sT0}, {G.GFLAG}")
    A(f"v_mov_b32 v{vT}, 1")
    A("s_waitcnt vmcnt(0)")
    A(f"buffer_store_dword v{vT}, v{vFlagO}, {WSR}, s{sT0} offen sc1")
    A("s_barrier")
    G.ostamp(A, 0, 5)
    vAo, vBo, vEo, vCo, vCw, vCo2, vYw, vYr = 20, 21, 22, 23, 24, 25, 26, 27
    vD, vAcc8, vBf = 28, 72, 120
    vE, vD1, vE1 = 144, 152, 160
    vUw, vDv, vFo, vU = 68, 69, 3, 104
    vFr = 120
    A(f"v_and_b32 v{vT}, 15, v0")
    A(f"v_lshrrev_b32 v{vT+1}, 4, v0")
    A(f"v_add_u32 v{vT+2}, 1, v{vT}")
    A(f"v_and_b32 v{vT+3}, 7, v{vT+2}")
    A(f"v_mul_u32_u24 v{vT+3}, {CP}, v{vT+3}")
    A(f"v_lshrrev_b32 v{vT+2}, 3, v{vT+2}")
    A(f"v_add_u32 v{vT+2}, v{vT+2}, v{vT+1}")
    A(f"v_lshl_add_u32 v{vAo}, v{vT+2}, 4, v{vT+3}")
    A(f"s_add_u32 s{sT0}, s{sLds}, {FOFF}")
    A(f"v_add_u32 v{vAo}, s{sT0}, v{vAo}")
    A(f"v_add_u32 v{vCw}, s{sT0}, v{vL16}")
    A(f"v_lshlrev_b32 v{vT+2}, 5, v{vT}")
    A(f"v_lshlrev_b32 v{vT+3}, 4, v{vT+1}")
    A(f"v_sub_u32 v{vBo}, v{vT+3}, v{vT+2}")
    A(f"v_add_u32 v{vBo}, {(2032 - 1792) * 2}, v{vBo}")
    A(f"v_add_u32 v{vBo}, s{sLds}, v{vBo}")
    A(f"v_lshlrev_b32 v{vT+3}, 3, v{vT+1}")
    A(f"v_add_u32 v{vT+3}, v{vT+3}, v{vT+2}")
    A(f"v_sub_u32 v{vEo}, {(2044 - 1792) * 2}, v{vT+3}")
    A(f"v_add_u32 v{vEo}, s{sLds}, v{vEo}")
    A(f"s_add_u32 s{sT0}, s{sLds}, {YOFF}")
    A(f"v_add_u32 v{vYw}, s{sT0}, v{vT+3}")
    A(f"v_add_u32 v{vYr}, s{sT0}, v{vL16}")
    A(f"v_subrev_u32 v{vCo}, 32, v{vL16}")
    A(f"v_subrev_u32 v{vCo2}, 16, v{vL16}")
    A(f"v_lshlrev_b32 v{vFo}, 2, v0")
    for r in range(4): A(f"v_mov_b32 v{vT+4+r}, 0")
    A(f"v_min_u32 v{vT+2}, 31, v0")
    A(f"v_lshlrev_b32 v{vT+2}, 4, v{vT+2}")
    A(f"v_add_u32 v{vT+2}, s{sLds}, v{vT+2}")
    A(f"ds_write_b128 v{vT+2}, {v(vT+4,4)} offset:4096")
    A(f"v_add_u32 v{vUw}, s{sLds}, v{vL16}")
    A(f"s_mov_b64 s[{sF}:{sF+1}], s[{sPf}:{sPf+1}]")
    srd(A, sF, 4096)
    A(f"s_lshl_b32 s{sT0}, s{sWV}, 12")
    A(f"s_add_u32 s{sF}, s{sF}, s{sT0}")
    A(f"s_addc_u32 s{sF+1}, s{sF+1}, 0")
    A(f"s_mov_b64 s[{sAux}:{sAux+1}], s[{sPd}:{sPd+1}]")
    srd(A, sAux, 1280)
    A(f"s_lshl_b32 s{sCU}, s{sWV}, 1")
    A(f"s_lshl_b32 s{sB0}, s{sWV}, 12")
    A(f"s_add_u32 s{sB1}, s{sB0}, {G.YT}")
    A(f"s_add_u32 s{sB0}, s{sB0}, {G.KVT}")
    A(f"s_mov_b32 s{sCh}, 0")
    def quiet(code):
        Lq, Lq2 = A.newlabel("q"), A.newlabel("q2")
        A(f"s_lshl_b32 s{sT1}, s{sG}, 7")
        A(f"s_add_u32 s{sT1}, s{sT1}, {G.S1MARK}")
        A(f"v_mov_b32 v{vT+1}, 0")
        A(f"buffer_load_dword v{vT}, v{vT+1}, {WSR}, s{sT1} offen sc1")
        A("s_waitcnt vmcnt(0)")
        A(f"v_readfirstlane_b32 s{sT2}, v{vT}")
        A.label(Lq)
        A(f"s_cmp_ge_i32 s{sT2}, {P['nseg'] - 1}")
        A(f"s_cbranch_scc1 {Lq2}")
        A("s_sleep 3")
        A(f"buffer_load_dword v{vT}, v{vT+1}, {WSR}, s{sT1} offen sc1")
        budget_check(A, code)
        A("s_waitcnt vmcnt(0)")
        A(f"v_readfirstlane_b32 s{sT0}, v{vT}")
        A(f"s_cmp_eq_u32 s{sT0}, s{sT2}")
        A(f"s_cbranch_scc1 {Lq}")
        A.label(Lq2)
    def fetch():
        for m in range(5):
            for h in range(2):
                if m == 0: A(f"buffer_load_dwordx4 {v(vD+4*h,4)}, v{vCo if h == 0 else vCo2}, s[{sF}:{sF+3}], 0 offen")
                else: A(f"buffer_load_dwordx4 {v(vD+8*m+4*h,4)}, v{vL16}, s[{sF}:{sF+3}], 0 offen offset:{1024*m-32+16*h}")
        A(f"v_mov_b32 v{vT}, 0")
        A(f"buffer_load_ushort v{vT+12}, v{vT}, s[{sAux}:{sAux+3}], s{sCU} offen")
        A(f"s_add_u32 s{sCU}, s{sCU}, 128")
        for m in range(4):
            A(f"buffer_load_dwordx4 {v(vU+4*m,4)}, v{vL16}, {WSR}, s{sB0} offen offset:{1024*m} sc1")
        A(f"s_add_u32 s{sB0}, s{sB0}, {64 * 4096}")
        A(f"s_add_u32 s{sF}, s{sF}, {64 * 4096}")
        A(f"s_addc_u32 s{sF+1}, s{sF+1}, 0")
    Lw = A.newlabel("gw")
    A(f"s_mov_b32 s{sT0}, {G.GFLAG}")
    A.label(Lw)
    A(f"s_sleep {P.get('gw_slp', 32)}")
    A(f"buffer_load_dword v{vT}, v{vFo}, {WSR}, s{sT0} offen sc1")
    budget_check(A, 10)
    A("s_waitcnt vmcnt(0)")
    A(f"v_cmp_ne_u32 vcc, 1, v{vT}")
    A(f"s_cbranch_vccnz {Lw}")
    if P.get("cq", 1): quiet(15)
    fetch()
    Lc = A.newlabel("chan")
    A.label(Lc)
    A("s_waitcnt vmcnt(0)")
    lo(vDv, vT + 12)
    for m in range(4):
        A(f"ds_write_b128 v{vUw}, {v(vU+4*m,4)} offset:{1024*m}")
    for m in range(5):
        D = vD + 8 * m
        if m == 4:
            A("s_mov_b64 exec, 15")
        for k in range(7): A(f"v_alignbit_b32 v{vE+k}, v{D+k+1}, v{D+k}, 16")
        for k in range(6): A(f"v_mov_b32 v{vD1+k}, v{D+k+1}")
        for k in range(6): A(f"v_mov_b32 v{vE1+k}, v{vE+k+1}")
        src = [D, vE, vD1, vE1, D + 2, vE + 2, vD1 + 2, vE1 + 2]
        for sg in range(8):
            A(f"ds_write_b128 v{vCw}, {v(src[sg],4)} offset:{sg * CP + 1024 * m}")
    A("s_mov_b64 exec, -1")
    A("s_waitcnt lgkmcnt(0)")
    Lnf = A.newlabel("nofetch")
    A(f"s_cmp_eq_u32 s{sCh}, 9")
    A(f"s_cbranch_scc1 {Lnf}")
    fetch()
    A.label(Lnf)
    def rdset(r):
        b = vFr + 64 * (r & 1)
        L = []
        for k in range(8):
            L.append(f"ds_read_b128 {v(b+32+4*k,4)}, v{vBo} offset:{(7-k)*512 + 64*r}")
            L.append(f"ds_read_b128 {v(b+4*k,4)}, v{vAo} offset:{64*(r+8*k)}")
        return L
    for x in rdset(0)[:14]: A(x)
    A("s_waitcnt lgkmcnt(6)")
    for x in rdset(0)[14:]: A(x)
    for r in range(8):
        b = vFr + 64 * (r & 1)
        nx = rdset(r + 1) if r < 7 else []
        A("s_waitcnt lgkmcnt(0)")
        n = 0
        for k in range(8):
            for T in range(k, 8):
                cc = "0" if (r == 0 and k == 0) else v(vAcc8 + 4 * T, 4)
                A(f"v_mfma_f32_16x16x32_bf16 {v(vAcc8+4*T,4)}, {v(b+4*k,4)}, {v(b+32+4*(T-k),4)}, {cc}")
                if n % 2 == 0 and nx: A(nx.pop(0))
                n += 1
    for T in range(8):
        A(f"ds_read_b64 {v(vBf+2*T,2)}, v{vEo} offset:{(7-T)*512}")
    A("s_waitcnt lgkmcnt(0)")
    for T in range(8):
        acc = vAcc8 + 4 * T
        rnd(acc); rnd(acc + 2)
        hi(vT + 4, vBf + 2 * T + 1); lo(vT + 5, vBf + 2 * T + 1); hi(vT + 6, vBf + 2 * T); lo(vT + 7, vBf + 2 * T)
        for r in range(4): A(f"v_mul_f32 v{vT+4+r}, v{vDv}, v{vT+4+r}")
        rnd(vT + 4); rnd(vT + 6)
        A(f"v_pk_add_f32 {v(acc,2)}, {v(acc,2)}, {v(vT+4,2)}")
        A(f"v_pk_add_f32 {v(acc+2,2)}, {v(acc+2,2)}, {v(vT+6,2)}")
        A(f"v_cvt_pk_bf16_f32 v{vT+8}, v{acc}, v{acc+1}")
        A(f"v_cvt_pk_bf16_f32 v{vT+9}, v{acc+2}, v{acc+3}")
        A(f"ds_write_b64 v{vYw}, {v(vT+8,2)} offset:{T*512}")
    A("s_waitcnt lgkmcnt(0)")
    for m in range(4):
        A(f"ds_read_b128 {v(vBf+4*m,4)}, v{vYr} offset:{1024*m}")
    for m in range(4):
        A(f"s_waitcnt lgkmcnt({3-m})")
        A(f"buffer_store_dwordx4 {v(vBf+4*m,4)}, v{vL16}, {WSR}, s{sB1} offen offset:{1024*m} sc1")
    A(f"s_add_u32 s{sB1}, s{sB1}, {64 * 4096}")
    A(f"s_add_u32 s{sCh}, s{sCh}, 1")
    A(f"s_lshl_b32 s{sT0}, s{sWV}, 2")
    A(f"s_add_u32 s{sT0}, s{sT0}, {G.CVFLAG}")
    A(f"v_mov_b32 v{vT}, s{sCh}")
    A("s_waitcnt vmcnt(0)")
    A(f"buffer_store_dword v{vT}, v{vFlagO}, {WSR}, s{sT0} offen sc1")
    A(f"s_cmp_lg_u32 s{sCh}, 10")
    A(f"s_cbranch_scc1 {Lc}")
    G.ostamp(A, 0, 2)

    if P.get("nobg") == 2: A("s_endpgm")
    A(f"s_mov_b32 s{sU}, s{sWV}")
    A(f"s_mov_b32 s{sUe}, {20 * (P['nseg'] - 4)}")
    A.label("L_mixent")
    vYs, vXs, vTr, vDl, vGo2, vFl, vF32, vLin = 20, 21, 22, 23, 24, 25, 26, 27
    vPp, vAc, vY, vXv, vGt, vSel = 28, 92, 108, 116, 124, 128
    A(f"s_load_dwordx2 s[{sAux}:{sAux+1}], s[0:1], 112")
    A(f"s_mov_b32 s{sMaskHi}, 0xffff0000")
    A(f"v_lshlrev_b32 v{vL16}, 4, v0")
    A(f"v_lshlrev_b32 v{vFo}, 2, v0")
    A(f"v_mov_b32 v{vFlagO}, 0")
    A(f"v_lshrrev_b32 v{vT}, 2, v0")
    A(f"v_and_b32 v{vT+1}, 3, v0")
    A(f"v_lshlrev_b32 v{vT+2}, 12, v{vT}")
    A(f"v_lshl_add_u32 v{vYs}, v{vT+1}, 4, v{vT+2}")
    A(f"v_mul_u32_u24 v{vT+2}, 1280, v{vT}")
    A(f"v_lshl_add_u32 v{vXs}, v{vT+1}, 4, v{vT+2}")
    A(f"v_lshlrev_b32 v{vT}, 6, v{vT}")
    A(f"v_lshl_add_u32 v{vT}, v{vT+1}, 3, v{vT}")
    A(f"v_add_u32 v{vTr}, s{sLds}, v{vT}")
    A(f"v_and_b32 v{vT}, 15, v0")
    A(f"v_lshrrev_b32 v{vT+1}, 4, v0")
    A(f"v_lshlrev_b32 v{vGo2}, 2, v{vT}")
    A(f"v_lshlrev_b32 v{vT+2}, 6, v{vT}")
    A(f"v_lshl_add_u32 v{vT+2}, v{vT+1}, 3, v{vT+2}")
    A(f"s_add_u32 s{sT0}, s{sLds}, 2048")
    A(f"v_add_u32 v{vDl}, s{sT0}, v{vT+2}")
    A(f"v_add_u32 v{vLin}, s{sT0}, v{vL16}")
    A(f"v_and_b32 v{vF32}, 31, v0")
    A(f"v_lshlrev_b32 v{vF32}, 2, v{vF32}")
    A(f"v_and_b32 v{vT+2}, 1, v0")
    A(f"v_lshlrev_b32 v{vT+2}, 4, v{vT+2}")
    A(f"v_mov_b32 v{vT+3}, 0x3f80")
    A(f"v_lshlrev_b32 v{vT+2}, v{vT+2}, v{vT+3}")
    A(f"v_lshrrev_b32 v{vT+3}, 2, v{vT}")
    A(f"v_cmp_eq_u32 vcc, v{vT+3}, v{vT+1}")
    A(f"v_bfe_u32 v{vT+3}, v0, 1, 1")
    A("s_nop 0")
    A(f"v_cndmask_b32 v{vT+2}, 0, v{vT+2}, vcc")
    A(f"v_cmp_eq_u32 vcc, 0, v{vT+3}")
    for r in (2, 3, 4, 5): A(f"v_mov_b32 v{vSel+r}, 0")
    A(f"v_cndmask_b32 v{vSel}, 0, v{vT+2}, vcc")
    A(f"v_cndmask_b32 v{vSel+1}, v{vT+2}, 0, vcc")
    A(f"v_mov_b32 v{vSel+6}, v{vSel}")
    A(f"v_mov_b32 v{vSel+7}, v{vSel+1}")
    A("s_waitcnt lgkmcnt(0)")
    srd(A, sAux, 2048 * 1280)
    Lm = A.newlabel("mix")
    A.label(Lm)
    A(f"s_mul_i32 s{sSeg}, s{sU}, 3277")
    A(f"s_lshr_b32 s{sSeg}, s{sSeg}, 16")
    A(f"s_mul_i32 s{sT0}, s{sSeg}, 20")
    A(f"s_sub_u32 s{sJ}, s{sU}, s{sT0}")
    A(f"s_lshr_b32 s{sCh}, s{sJ}, 1")
    Lw, Lwok = A.newlabel("mc"), A.newlabel("mcok")
    A(f"s_mov_b32 s{sT2}, {G.CVFLAG}")
    A.label(Lw)
    A(f"buffer_load_dword v{vT+2}, v{vFo}, {WSR}, s{sT2} offen sc1")
    budget_check(A, 10)
    A("s_waitcnt vmcnt(0)")
    A(f"v_cmp_ge_u32 vcc, s{sCh}, v{vT+2}")
    A(f"s_cbranch_vccz {Lwok}")
    A("s_sleep 32")
    A(f"s_branch {Lw}")
    A.label(Lwok)
    A(f"s_lshl_b32 s{sT0}, s{sJ}, 17")
    A(f"s_lshl_b32 s{sT1}, s{sSeg}, 6")
    A(f"s_add_u32 s{sT0}, s{sT0}, s{sT1}")
    A(f"s_mov_b32 m0, s{sLds}")
    A(f"s_add_u32 s{sT0}, s{sT0}, {G.YT}")
    A(f"buffer_load_dwordx4 v{vYs}, {WSR}, s{sT0} offen sc1 lds")
    A("s_add_u32 m0, m0, 1024")
    A(f"s_add_u32 s{sT0}, s{sT0}, 65536")
    A(f"buffer_load_dwordx4 v{vYs}, {WSR}, s{sT0} offen sc1 lds")
    A("s_add_u32 m0, m0, 1024")
    A(f"s_mul_i32 s{sB1}, s{sSeg}, 40960")
    A(f"s_lshl_b32 s{sT1}, s{sJ}, 6")
    A(f"s_add_u32 s{sB1}, s{sB1}, s{sT1}")
    A(f"buffer_load_dwordx4 v{vXs}, {XS}, s{sB1} offen lds")
    A("s_add_u32 m0, m0, 1024")
    A(f"s_add_u32 s{sT1}, s{sB1}, 20480")
    A(f"buffer_load_dwordx4 v{vXs}, {XS}, s{sT1} offen lds")
    A(f"s_lshl_b32 s{sT2}, s{sSeg}, 7")
    A(f"s_add_u32 s{sT2}, s{sT2}, {G.GV}")
    A(f"buffer_load_dword v{vGt}, v{vGo2}, {WSR}, s{sT2} offen sc1")
    A(f"buffer_load_dword v{vGt+1}, v{vGo2}, {WSR}, s{sT2} offen offset:64 sc1")
    A(f"s_mul_i32 s{sB0}, s{sSeg}, {G.XP_SEG}")
    A(f"s_lshl_b32 s{sT0}, s{sCh}, 15")
    A(f"s_add_u32 s{sB0}, s{sB0}, s{sT0}")
    A(f"s_and_b32 s{sT0}, s{sJ}, 1")
    A(f"s_lshl_b32 s{sT0}, s{sT0}, 11")
    A(f"s_add_u32 s{sB0}, s{sB0}, s{sT0}")
    A(f"s_add_u32 s{sB0}, s{sB0}, {G.XPART}")
    A("s_waitcnt vmcnt(0)")
    for tt in range(2):
        for c in range(2):
            A(f"ds_read_b64_tr_b16 {v(vY+4*tt+2*c,2)}, v{vTr} offset:{1024*c+32*tt}")
            A(f"ds_read_b64 {v(vXv+4*tt+2*c,2)}, v{vDl} offset:{1024*tt+32*c}")
    for tt in range(2):
        A(f"v_sub_f32 v{vGt+2+tt}, 1.0, v{vGt+tt}")
    rnd(vGt + 2)
    A("s_waitcnt lgkmcnt(0)")
    for i in range(8):
        lo(vT + 4, vY + i); hi(vT + 5, vY + i); lo(vT + 6, vXv + i); hi(vT + 7, vXv + i)
        A(f"v_pk_mul_f32 {v(vT+4,2)}, {v(vT+4,2)}, {v(vT+6,2)}")
        rnd(vT + 4)
        A(f"v_mul_f32 v{vT+4}, v{vGt+2+i//4}, v{vT+4}")
        A(f"v_mul_f32 v{vT+5}, v{vGt+2+i//4}, v{vT+5}")
        A(f"v_cvt_pk_bf16_f32 v{vY+i}, v{vT+4}, v{vT+5}")
    A(f"s_lshl_b32 s{sT1}, s{sCh}, 7")
    A(f"s_add_u32 s{sT1}, s{sT1}, {G.XPFLAG}")
    A(f"s_lshl_b32 s{sT0}, s{sG}, 7")
    A(f"s_add_u32 s{sT0}, s{sT0}, {G.S1MARK + (1024 if P['mk2'] else 0)}")
    A(f"s_add_u32 s{sI}, s{sSeg}, 4")
    A(f"s_cmp_ge_u32 s{sSeg}, {P['nseg'] - 4}")
    A(f"s_cselect_b32 s{sT1}, s{sT1}, s{sT0}")
    A(f"s_cselect_b32 s{sI}, s{sSeg}, s{sI}")
    A(f"s_cselect_b32 s{sT0}, -1, 0")
    A(f"v_and_b32 v{vT+3}, s{sT0}, v{vF32}")
    Lw, Lgo, Lq, Lq2 = A.newlabel("mw"), A.newlabel("mgo"), A.newlabel("mq"), A.newlabel("mq2")
    A.label(Lw)
    A(f"buffer_load_dword v{vFl}, v{vT+3}, {WSR}, s{sT1} offen sc1")
    budget_check(A, 11)
    A("s_waitcnt vmcnt(0)")
    A(f"v_cmp_ge_i32 vcc, s{sI}, v{vFl}")
    A(f"s_cbranch_vccz {Lgo}")
    A(f"s_cmp_ge_u32 s{sSeg}, {P['nseg'] - 4}")
    A(f"s_cbranch_scc1 {Lw}")
    A(f"s_sleep {P.get('mix_sleep', 16)}")
    A(f"s_branch {Lw}")
    A.label(Lgo)
    A(f"s_cmp_ge_u32 s{sSeg}, {P['nseg'] - 4}")
    A(f"s_cbranch_scc1 {Lq2}")
    if P.get("mix_gate", 1):
        A(f"v_readfirstlane_b32 s{sT2}, v{vFl}")
        A(f"s_add_u32 s{sT0}, s{sSeg}, {P.get('mq_lag', 12)}")
        A(f"s_cmp_ge_u32 s{sT2}, s{sT0}")
        A(f"s_cselect_b32 s{sT0}, s{sU}, 0")
        A(f"s_bitcmp1_b32 s{sT0}, 6" if P.get("mq_alt", 1) else f"s_cmp_lg_u32 s{sT0}, 0")
        A(f"s_cbranch_scc1 {Lq2}")
        A.label(Lq)
        A(f"s_cmp_ge_u32 s{sT2}, {P['nseg'] - 1}")
        A(f"s_cbranch_scc1 {Lq2}")
        A(f"s_sleep {P.get('mq_sleep', 3)}")
        A(f"buffer_load_dword v{vT+2}, v{vFlagO}, {WSR}, s{sT1} offen sc1")
        budget_check(A, 15)
        A("s_waitcnt vmcnt(0)")
        A(f"v_readfirstlane_b32 s{sT0}, v{vT+2}")
        A(f"s_cmp_eq_u32 s{sT0}, s{sT2}")
        A(f"s_cbranch_scc1 {Lq}")
        if P.get("mq_dly"): A(f"s_sleep {P['mq_dly']}")
    A.label(Lq2)
    for g in range(8):
        if g: A(f"s_add_u32 s{sB0}, s{sB0}, 4096")
        for c in range(2):
            A(f"buffer_load_dwordx4 {v(vPp+8*g+4*c,4)}, v{vL16}, {WSR}, s{sB0} offen offset:{1024*c} sc1")
    for g in range(8):
        for c in range(2):
            A(f"s_waitcnt vmcnt({15 - 2 * g - c})")
            for tt in range(2):
                acc = vAc + 8 * tt + 4 * c
                A(f"v_mfma_f32_16x16x32_bf16 {v(acc,4)}, {v(vSel+4*tt,4)}, {v(vPp+8*g+4*c,4)}, {'0' if g == 0 else v(acc,4)}")
    A.nop(6)
    for tt in range(2):
        for c in range(2):
            for h in range(2):
                x = vAc + 8 * tt + 4 * c + 2 * h
                i = 4 * tt + 2 * c + h
                rnd(x)
                A(f"v_mul_f32 v{x}, v{vGt+tt}, v{x}")
                A(f"v_mul_f32 v{x+1}, v{vGt+tt}, v{x+1}")
                rnd(x)
                lo(vT + 4, vY + i); hi(vT + 5, vY + i)
                A(f"v_pk_add_f32 {v(x,2)}, {v(x,2)}, {v(vT+4,2)}")
                A(f"v_cvt_pk_bf16_f32 v{vXv+i}, v{x}, v{x+1}")
            A(f"ds_write_b64 v{vDl}, {v(vXv+4*tt+2*c,2)} offset:{1024*tt+32*c}")
    A("s_waitcnt lgkmcnt(0)")
    for m in range(2):
        A(f"ds_read_b128 {v(vY+4*m,4)}, v{vLin} offset:{1024*m}")
    A(f"s_add_u32 s{sT1}, s{sB1}, 20480")
    A("s_waitcnt lgkmcnt(1)")
    A(f"buffer_store_dwordx4 {v(vY,4)}, v{vXs}, s[{sAux}:{sAux+3}], s{sB1} offen")
    A("s_waitcnt lgkmcnt(0)")
    A(f"buffer_store_dwordx4 {v(vY+4,4)}, v{vXs}, s[{sAux}:{sAux+3}], s{sT1} offen")
    A(f"s_add_u32 s{sU}, s{sU}, 64")
    A(f"s_cmp_lt_u32 s{sU}, s{sUe}")
    A(f"s_cbranch_scc1 {Lm}")
    if P["prof"]: A("s_waitcnt vmcnt(0)")
    G.ostamp(A, 0, 3)
    A("s_endpgm")
```

```python
import sys, math, struct
from asmlib import Asm, v, a, s, check_hazards

NAME = "gated_mix__memory_aug_recurrent_mem_tr__ssm_conv_h3__prompt_kernel"

P = dict(
    s3_miss=0, s3_slp=2, h1_slp=3, dp=3, near=1, nowatch=11, s3_map=0, h2_mask=0x3ffff, s3_rot=40, xs_slp=0, mk2=0, gh=0, gh_j=0, h3oob=1, wpf=0, wpf_nt=0, al1=-1, al2=-1, s3_two=0, s2_late=0, wrot=3, xo_pos=0, ldev=3, xpf=5, touch=3, cpf=0, wnt=1, ppos=12, dma0=10, dma_e=0, mk1=0, nvc=4, mk_pos=1, h1_two=2,
    s3_sleep=16,
    h1_nop=50,
    h2_miss=15,
    h2_sleep=8,
    prof=0,
    nseg=64,
    force_global=0,
)

MEMR   = 0x0
QKVR   = 0x50000
PXR    = 0x170000
PART   = 0x200000
PART_SLOT = 163840
NEARP  = 0x2A0000
GHINT  = NEARP + 0x380
POISON_END = 0x2A4000
FLAGS  = 0x2B0000
XFLAG  = FLAGS
XPFLAG = FLAGS + 0x1000
CVFLAG = FLAGS + 0x2000
GFLAG  = FLAGS + 0x2200
S2MARK = FLAGS + 0x2400
S1MARK = FLAGS + 0x2800
FLAGS_END = FLAGS + 0x3000
XR     = 0x2C0000
XR_HEAD = 36864 + 1024
XR_SLOT = 4 * XR_HEAD
XR_G   = 4 * XR_SLOT
XPART  = 0x900000
XP_SEG = 327680
KVT    = 0x3200000
YT     = 0x3800000
GV     = 0x3500000
PROF   = 0x4000000
MEMDBG = 0x4800000
WS_SIZE = 0x10000000
OOB = 0x20000000
DBG_CEN, DBG_NEAR, DBG_FAIL, DBG_INIT = 64, 128, 160, 224

XOF = ["sc1", "", "sc1 nt", "sc0 sc1", "nt"]
def f2u(x): return struct.unpack("<I", struct.pack("<f", x))[0]

sWS, sX, sRO, sDBG = 4, 8, 12, 16
sG, sR, sW, sBUD, sS, sXCC = 20, 21, 22, 23, 24, 25
sT0, sT1, sT2, sT3 = 26, 27, 28, 29

WSR = f"s[{sWS}:{sWS+3}]"

def srd(A, base, size):
    A(f"s_and_b32 s{base+1}, s{base+1}, 0xffff")
    A(f"s_mov_b32 s{base+2}, {size}")
    A(f"s_mov_b32 s{base+3}, 0x20000")

def budget_check(A, code):
    A(f"s_sub_u32 s{sBUD}, s{sBUD}, 1")
    A(f"s_movk_i32 s{sT3}, {code}")
    A(f"s_cbranch_scc1 L_fail")

def dense_poll(A, regs, issue, missing, code):
    L, Lok = A.newlabel("dp"), A.newlabel("dpok")
    n = len(regs)
    for i, r in enumerate(regs):
        issue(r)
        if i < n - 1: A("s_sleep 1")
    A.label(L)
    for r in regs:
        A(f"s_waitcnt vmcnt({n-1})")
        A(f"{missing(r)} {Lok}")
        issue(r)
    budget_check(A, code)
    A(f"s_branch {L}")
    A.label(Lok)

def align(A, pad):
    if pad < 0: return
    A(".p2align 6")
    for _ in range(pad // 4): A("s_nop 0")

def stamp(A, idx, vt=250):
    if P["prof"] not in (1, 2) and not (P["prof"] == 4 and vt == 250 and idx == 6): return
    A(f"s_memrealtime s[90:91]")
    A(f"s_waitcnt lgkmcnt(0)")
    A(f"v_writelane_b32 v{vt}, s90, {idx}")
    if P["prof"] == 2:
        A(f"s_memtime s[90:91]")
        A(f"s_waitcnt lgkmcnt(0)")
        A(f"v_writelane_b32 v{vt}, s90, {idx+8}")

def dstamp(A, idx, inv=False, vt=254):
    if not P.get("diag"): return
    L = A.newlabel("ds")
    A(f"s_or_b32 s92, s2, s{sW}")
    A(f"s_cbranch_scc1 {L}")
    A("s_memrealtime s[90:91]")
    A("s_memtime s[86:87]")
    A("s_waitcnt lgkmcnt(0)")
    A(f"v_mov_b32 v{vt}, s90")
    A(f"v_mov_b32 v{vt+1}, s86")
    A(f"v_mov_b32 v{vt-1}, {8 * idx}")
    A("s_mov_b64 exec, 1")
    A(f"buffer_store_dwordx2 v[{vt}:{vt+1}], v{vt-1}, s[{sDBG}:{sDBG+3}], 0 offen")
    A("s_mov_b64 exec, -1")
    A.label(L)

def ostamp(A, row, idx, vt=254):
    if P.get("diag") and idx in (0, 1, 3): dstamp(A, {0: 0, 1: 1, 3: 7}[idx])
    if not P["prof"]: return
    A("s_memrealtime s[90:91]")
    A("s_lshl_b32 s92, s2, 2")
    A(f"s_add_u32 s92, s92, s{sW}")
    A("s_mul_i32 s92, s92, 80")
    A(f"s_add_u32 s92, s92, {row}")
    A("s_lshl_b32 s92, s92, 6")
    A(f"s_add_u32 s92, s92, {PROF + 4 * idx}")
    A("s_waitcnt lgkmcnt(0)")
    A(f"v_mov_b32 v{vt}, s90")
    A(f"v_mov_b32 v{vt+1}, 0")
    A("s_mov_b64 exec, 1")
    A(f"buffer_store_dword v{vt}, v{vt+1}, s[{sWS}:{sWS+3}], s92 offen")
    A("s_mov_b64 exec, -1")

def fstamp(A, idx, vt):
    if P["prof"] not in (3, 5): return
    A(f"s_mem{'real' if P['prof'] == 5 else ''}time s[{60+2*idx}:{61+2*idx}]")

def fstamp_collect(A, n, vt):
    if P["prof"] not in (3, 5): return
    A("s_waitcnt lgkmcnt(0)")
    for i in range(n):
        A(f"v_writelane_b32 v{vt}, s{60+2*i}, {i}")

def stamp_flush(A, vt=250, vtmp=251):
    if not P["prof"] or (P["prof"] == 4 and vt != 250): return
    A(f"s_lshl_b32 s90, s2, 2")
    A(f"s_add_u32 s90, s90, s{sW}")
    A(f"s_mul_i32 s90, s90, 80")
    A(f"s_add_u32 s90, s90, s{sS}")
    A(f"s_add_u32 s90, s90, 4")
    A(f"s_lshl_b32 s90, s90, 6")
    A(f"s_add_u32 s90, s90, {PROF}")
    A(f"v_lshlrev_b32 v{vtmp}, 2, v0")
    A(f"s_mov_b64 exec, 0xffff")
    A(f"buffer_store_dword v{vt}, v{vtmp}, s[{sWS}:{sWS+3}], s90 offen")
    A(f"s_mov_b64 exec, -1")

def gen_init(A):
    A.label("L_init")
    if P["cpf"]:
        A("s_getpc_b64 s[30:31]")
        A.label("L_pc")
        A(f"s_sub_u32 s{sT0}, s{sR}, 28")
        A(f"s_lshl_b32 s{sT0}, s{sT0}, 2")
        A(f"s_add_u32 s{sT0}, s{sT0}, s{sW}")
        A(f"s_mul_i32 s{sT0}, s{sT0}, 3072")
        A(f"v_lshlrev_b32 v1, 4, v0")
        A(f"v_add_u32 v1, s{sT0}, v1")
        A(f"v_min_u32 v1, L_code_end-L_pc-2048-16, v1")
        for i in range(3):
            A(f"global_load_dwordx4 v[20:23], v1, s[30:31] offset:{1024*i}")
    A("v_mov_b32 v4, -1\nv_mov_b32 v5, -1\nv_mov_b32 v6, -1\nv_mov_b32 v7, -1")
    A(f"s_load_dwordx2 s[{sRO}:{sRO+1}], s[0:1], 8")
    A(f"s_lshl_b32 s{sT0}, s{sW}, 6")
    A(f"v_add_u32 v9, s{sT0}, v0")
    A("v_lshlrev_b32 v1, 4, v9")
    A("s_waitcnt lgkmcnt(0)")
    srd(A, sRO, 10240)
    Lg0 = A.newlabel("ig")
    A(f"s_cmp_lg_u32 s{sR}, 31")
    A(f"s_cbranch_scc1 {Lg0}")
    for i in range(3):
        A(f"v_add_u32 v{36+i}, {256 * i}, v9")
        A(f"v_lshrrev_b32 v3, 6, v{36+i}")
        A(f"v_and_b32 v8, 7, v{36+i}")
        A(f"v_bfe_u32 v16, v{36+i}, 3, 1")
        A(f"v_bfe_u32 v10, v{36+i}, 4, 2")
        A("v_mul_u32_u24 v8, 1280, v8")
        A("v_lshl_add_u32 v8, v3, 7, v8")
        A("v_lshl_add_u32 v8, v10, 5, v8")
        A("v_lshl_add_u32 v8, v16, 2, v8")
        A(f"v_cmp_gt_u32 vcc, 640, v{36+i}")
        A(f"v_mov_b32 v11, {OOB}")
        A(f"v_lshlrev_b32 v{36+i}, 4, v{36+i}")
        A("v_cndmask_b32 v8, v11, v8, vcc")
        A(f"v_cndmask_b32 v{36+i}, v11, v{36+i}, vcc")
        for q in range(4):
            A(f"buffer_load_dword v{24+4*i+q}, v8, s[{sRO}:{sRO+3}], 0 offen offset:{8*q}")
    A(f"s_mul_i32 s{sT1}, s{sG}, 40960")
    A("s_waitcnt vmcnt(0)")
    for i in range(12):
        A(f"v_min_u32 v{24+i}, -2, v{24+i}")
    for i in range(3):
        A(f"buffer_store_dwordx4 v[{24+4*i}:{27+4*i}], v{36+i}, {WSR}, s{sT1} offen sc1")
    A.label(Lg0)
    A(f"s_sub_u32 s{sT0}, s2, 224")
    A(f"s_lshl_b32 s{sT0}, s{sT0}, 12")
    for base, size in ((QKVR, PXR + 8 * 49152 - QKVR), (PART, 4 * PART_SLOT)):
        A(f"s_add_u32 s{sT1}, s{sT0}, {base}")
        for i in range(size // 131072):
            A(f"buffer_store_dwordx4 v[4:7], v1, {WSR}, s{sT1} offen sc1")
            A(f"s_add_u32 s{sT1}, s{sT1}, 131072")
        assert size % 131072 == 0
    Lm, Lf, Ld = A.newlabel("im"), A.newlabel("if"), A.newlabel("id")
    A(f"s_cmp_eq_u32 s{sR}, 31")
    A(f"s_cbranch_scc1 {Ld}")
    A(f"s_cmp_eq_u32 s{sR}, 30")
    A(f"s_cbranch_scc1 {Lf}")
    A(f"s_mul_i32 s{sT1}, s{sG}, 40960")
    A(f"s_sub_u32 s{sT0}, s{sR}, 28")
    A(f"s_mul_i32 s{sT0}, s{sT0}, 15360")
    A(f"s_add_u32 s{sT1}, s{sT1}, s{sT0}")
    A(f"s_add_u32 s{sT1}, s{sT1}, 10240")
    for i in range(4):
        if i == 3:
            A("v_cmp_gt_u32 vcc, 192, v9")
            A(f"v_mov_b32 v2, {OOB}")
            A("s_nop 0")
            A("v_cndmask_b32 v1, v2, v1, vcc")
        A(f"buffer_store_dwordx4 v[4:7], v1, {WSR}, s{sT1} offen sc1")
        A(f"s_add_u32 s{sT1}, s{sT1}, 4096")
    A(f"s_branch {Ld}")
    A.label(Lf)
    A("v_mov_b32 v4, 0\nv_mov_b32 v5, 0\nv_mov_b32 v6, 0\nv_mov_b32 v7, 0")
    A("v_cmp_gt_u32 vcc, 96, v9")
    A(f"v_mov_b32 v2, {OOB}")
    A(f"s_mul_i32 s{sT1}, s{sG}, 1536")
    A("v_cndmask_b32 v1, v2, v1, vcc")
    A(f"s_add_u32 s{sT1}, s{sT1}, {FLAGS}")
    A(f"buffer_store_dwordx4 v[4:7], v1, {WSR}, s{sT1} offen sc1")
    A("v_lshlrev_b32 v1, 13, v9")
    A("v_cmp_gt_u32 vcc, 2, v9")
    A(f"s_lshl_b32 s{sT1}, s{sG}, 2")
    A(f"s_add_u32 s{sT1}, s{sT1}, {GHINT}")
    A("v_cndmask_b32 v1, v2, v1, vcc")
    A(f"buffer_store_dword v4, v1, {WSR}, s{sT1} offen sc1")
    A(f"s_branch {Ld}")
    A.label(Ld)
    A("s_waitcnt vmcnt(0) lgkmcnt(0)")
    A("s_barrier")
    Ln = A.newlabel("in")
    A(f"s_cmp_lg_u32 s{sW}, 0")
    A(f"s_cbranch_scc1 {Ln}")
    A("v_mov_b32 v2, 1")
    A(f"v_mov_b32 v3, {DBG_INIT}")
    A("s_mov_b64 exec, 1")
    A(f"buffer_atomic_add v2, v3, s[{sDBG}:{sDBG+3}], 0 offen")
    A("s_mov_b64 exec, -1")
    A.label(Ln)
    NT = 0
    if P["touch"] == 4:
        NT = XR_G // 16384
        A(f"s_sub_u32 s{sT0}, s{sR}, 28")
        A(f"s_lshl_b32 s{sT0}, s{sT0}, 2")
        A(f"s_add_u32 s{sT0}, s{sT0}, s{sW}")
        A(f"s_lshl_b32 s{sT0}, s{sT0}, 10")
        A(f"s_mul_i32 s{sT1}, s{sG}, {XR_G}")
        A(f"s_add_u32 s{sT0}, s{sT0}, s{sT1}")
        A(f"s_add_u32 s{sT0}, s{sT0}, {XR}")
        A("v_lshlrev_b32 v1, 4, v0")
        for i in range(NT):
            A(f"buffer_load_dwordx4 v[20:23], v1, {WSR}, s{sT0} offen sc1{' nt' if P.get('touch_nt') else ''}")
            A(f"s_add_u32 s{sT0}, s{sT0}, 16384")
    if P["wpf"]:
        NR = P["wpf"]
        A("s_load_dwordx4 s[32:35], s[0:1], 16")
        A("s_load_dwordx2 s[36:37], s[0:1], 32")
        A(f"s_sub_u32 s{sT0}, s{sR}, 28")
        A(f"s_lshl_b32 s{sT0}, s{sT0}, 2")
        A(f"s_add_u32 s{sT0}, s{sT0}, s{sW}")
        A(f"s_mul_i32 s{sT0}, s{sT0}, {8 * 12288}")
        A(f"s_mul_i32 s{sT1}, s{sG}, 1536")
        A(f"s_add_u32 s{sT0}, s{sT0}, s{sT1}")
        A(f"s_add_u32 s{sT0}, s{sT0}, {(640 - 128 * NR) * 12288}")
        A("v_lshrrev_b32 v1, 3, v0")
        A("v_mul_u32_u24 v1, 12288, v1")
        A("v_and_b32 v2, 7, v0")
        A("v_lshl_add_u32 v1, v2, 4, v1")
        A("s_waitcnt lgkmcnt(0)")
        for b in range(NR):
            for m in range(3):
                A(f"s_mov_b64 s[{sRO}:{sRO+1}], s[{32+2*m}:{33+2*m}]")
                srd(A, sRO, 640 * 12288)
                for c_ in range(12):
                    A(f"buffer_load_dwordx4 v[20:23], v1, s[{sRO}:{sRO+3}], s{sT0} offen offset:{128*c_}{' nt' if P['wpf_nt'] else ''}")
            A(f"s_add_u32 s{sT0}, s{sT0}, {128 * 12288}")
    A(f"s_cmp_lt_u32 s{sR}, 30")
    A("s_cbranch_scc1 L_xs")
    A("s_branch L_bg")

def gen_common_prologue(A):
    A("s_cmp_ge_u32 s2, 256")
    A("s_cbranch_scc1 L_end")
    A(f"s_load_dwordx2 s[{sWS}:{sWS+1}], s[0:1], 128")
    A(f"s_load_dwordx2 s[{sX}:{sX+1}], s[0:1], 0")
    A(f"s_load_dwordx2 s[{sDBG}:{sDBG+1}], s[0:1], 120")
    A("v_lshrrev_b32 v1, 6, v0")
    A(f"s_and_b32 s{sG}, s2, 7")
    A(f"v_readfirstlane_b32 s{sW}, v1")
    A("v_and_b32 v0, 63, v0")
    A(f"s_lshr_b32 s{sR}, s2, 3")
    if P.get("x_rx"): A(f"s_xor_b32 s{sR}, s{sR}, {P['x_rx']}")
    A(f"s_getreg_b32 s{sXCC}, hwreg(HW_REG_XCC_ID)")
    A(f"s_mov_b32 s{sBUD}, 400000")
    A("s_waitcnt lgkmcnt(0)")
    srd(A, sWS, WS_SIZE)
    srd(A, sX, 2048 * 1280)
    srd(A, sDBG, 256)
    ostamp(A, 0, 0)
    L = A.newlabel("nocensus")
    A(f"s_cmp_lg_u32 s{sW}, 0")
    A(f"s_cbranch_scc1 {L}")
    A(f"s_mul_i32 s{sT0}, s{sXCC}, 6")
    A(f"s_lshl_b64 s[{sT2}:{sT3}], 1, s{sT0}")
    A(f"s_cmp_lt_u32 s{sXCC}, 8")
    A(f"s_cselect_b64 s[{sT2}:{sT3}], s[{sT2}:{sT3}], 0")
    A(f"s_add_u32 s{sT3}, s{sT3}, 0x1000000")
    A(f"v_mov_b32 v2, s{sT2}")
    A(f"v_mov_b32 v3, s{sT3}")
    A(f"s_lshl_b32 s{sT0}, s{sG}, 3")
    A(f"v_mov_b32 v4, s{sT0}")
    A("s_mov_b64 exec, 1")
    A(f"buffer_atomic_add_x2 v[2:3], v4, s[{sDBG}:{sDBG+3}], 0 offen offset:{DBG_CEN}")
    A("s_mov_b64 exec, -1")
    A.label(L)

def gen_locality(A, lab_local, lab_global, vt):
    L = A.newlabel("loc")
    A(f"v_lshlrev_b32 v{vt}, 2, v0")
    A(f"s_lshl_b32 s93, s{sG}, 1")
    A(f"s_add_u32 s93, s93, {DBG_CEN // 4}")
    A(f"s_add_u32 s94, s93, 1")
    A.label(L)
    A(f"buffer_load_dword v{vt+1}, v{vt}, s[{sDBG}:{sDBG+3}], 0 offen sc1")
    budget_check(A, 1)
    A("s_waitcnt vmcnt(0)")
    A(f"v_readlane_b32 s{sT0}, v{vt+1}, s93")
    A(f"v_readlane_b32 s{sT1}, v{vt+1}, s94")
    A(f"v_readlane_b32 s{sT3}, v{vt+1}, {DBG_INIT // 4}")
    A(f"s_lshr_b32 s{sT2}, s{sT1}, 24")
    A(f"s_min_u32 s{sT2}, s{sT2}, s{sT3}")
    A(f"s_cmp_lt_u32 s{sT2}, 32")
    A(f"s_cbranch_scc1 {L}")
    if lab_local is None: return
    if P["force_global"]:
        A(f"s_branch {lab_global}")
    A(f"s_and_b32 s{sT1}, s{sT1}, 0xffffff")
    A(f"s_mul_i32 s{sT2}, s{sXCC}, 6")
    A(f"s_lshl_b64 s[{sT2}:{sT3}], 32, s{sT2}")
    A(f"s_cmp_eq_u64 s[{sT0}:{sT1}], s[{sT2}:{sT3}]")
    A(f"s_cbranch_scc0 {lab_global}")
    A(f"s_cmp_lt_u32 s{sXCC}, 8")
    A(f"s_cbranch_scc0 {lab_global}")
    A(f"s_branch {lab_local}")


def gen_s1(A):
    sU, sHH, sTY, sKS, sUP = 30, 31, 32, 33, 95
    sPartRd, sMem0, sMem1, sMem2, sQkv, sMemP, sQkvP = 34, 35, 36, 37, 38, 39, 40
    sXr, sXrEnd, sXrBase, sXflag, sXsrc, sLdsW = 41, 42, 43, 44, 45, 46
    sPartBase, sMemBase, sQkvBase, sXbuf, sH2 = 47, 48, 49, 50, 51
    vL16, vMemSt, vQkvSt, vIdx, vXg, vXrd, vXsum, vPois, vFlagO = 1, 2, 3, 4, 5, 6, 7, 8, 9
    vSel = 128
    vH = 132
    vHld, vHw, vHr, vMkO = 144, 145, 146, 147
    vH2 = 148
    vNearO = 160
    vXB3 = 164
    sPartP, vPois2, vPartSt = 52, 162, 161
    vMk2O = 190
    vMemPo, vQkvPo = 188, 189
    sMk, sMkW = 58, 59
    MEML = 81920
    vT = 10
    vM = 20
    vPt = 60
    vA = 76
    vMx = 84
    vXA = 88
    vXB = 104
    vXO = 120
    A.label("L_s1")
    A(f"s_lshl_b32 s{sU}, s{sR}, 2")
    A(f"s_add_u32 s{sU}, s{sU}, s{sW}")
    A(f"s_mul_i32 s{sTY}, s{sR}, 43")
    A(f"s_lshr_b32 s{sTY}, s{sTY}, 8")
    A(f"s_mul_i32 s{sT0}, s{sTY}, 24")
    A(f"s_sub_u32 s{sT0}, s{sU}, s{sT0}")
    A(f"s_mul_i32 s{sHH}, s{sT0}, 43")
    A(f"s_lshr_b32 s{sHH}, s{sHH}, 8")
    A(f"s_mul_i32 s{sT1}, s{sHH}, 6")
    A(f"s_sub_u32 s{sKS}, s{sT0}, s{sT1}")
    A(f"s_mul_i32 s{sUP}, s{sHH}, 3")
    A(f"s_add_u32 s{sUP}, s{sUP}, s{sTY}")
    A(f"s_mul_i32 s{sUP}, s{sUP}, 6")
    A(f"s_add_u32 s{sUP}, s{sUP}, s{sKS}")
    A("s_load_dwordx4 s[52:55], s[0:1], 16")
    A("s_load_dwordx2 s[56:57], s[0:1], 32")
    A(f"v_lshlrev_b32 v{vL16}, 4, v0")
    A(f"s_and_b32 s{sT2}, s{sW}, 1")
    A(f"s_lshl_b32 s{sT3}, s{sT2}, 2")
    A(f"v_lshrrev_b32 v{vT}, 3, v0")
    A(f"v_and_b32 v{vT+1}, 2, v{vT}")
    A(f"v_or_b32 v{vT+1}, s{sT3}, v{vT+1}")
    A(f"v_xor_b32 v{vT+1}, v0, v{vT+1}")
    A(f"v_and_b32 v{vT+1}, 7, v{vT+1}")
    A(f"v_mul_u32_u24 v{vT}, 12288, v{vT}")
    A(f"v_lshl_add_u32 v{vT}, v{vT+1}, 4, v{vT}")
    A("s_waitcnt lgkmcnt(0)")
    A(f"s_cmp_eq_u32 s{sTY}, 1")
    A(f"s_cselect_b64 s[{sRO}:{sRO+1}], s[54:55], s[52:53]")
    A(f"s_cmp_eq_u32 s{sTY}, 2")
    A(f"s_cselect_b64 s[{sRO}:{sRO+1}], s[56:57], s[{sRO}:{sRO+1}]")
    srd(A, sRO, 640 * 12288)
    A(f"s_lshl_b32 s{sT0}, s{sG}, 2")
    A(f"s_add_u32 s{sT0}, s{sT0}, s{sHH}")
    A(f"s_mul_i32 s{sT0}, s{sT0}, 384")
    A(f"s_lshr_b32 s{sT1}, s{sKS}, 1")
    A(f"s_lshl_b32 s{sT1}, s{sT1}, 7")
    A(f"s_add_u32 s{sT0}, s{sT0}, s{sT1}")
    A(f"s_mul_i32 s{sT1}, s{sT2}, {8 * 12288}")
    A(f"s_add_u32 s{sT0}, s{sT0}, s{sT1}")
    A(f"s_lshr_b32 s{sLdsW}, s{sW}, 1")
    A(f"s_mul_i32 s{sLdsW}, s{sLdsW}, 40960")
    A(f"s_lshl_b32 s{sT1}, s{sT2}, 10")
    A(f"s_add_u32 s{sXr}, s{sLdsW}, s{sT1}")
    A(f"s_mul_i32 s{sT1}, s2, {P['wrot']}")
    A(f"s_mul_i32 s{sT2}, s{sT1}, 3277")
    A(f"s_lshr_b32 s{sT2}, s{sT2}, 16")
    A(f"s_mul_i32 s{sT2}, s{sT2}, 20")
    A(f"s_sub_u32 s{sT1}, s{sT1}, s{sT2}")
    for i in range(40):
        A(f"s_lshl_b32 s{sT2}, s{sT1}, 11")
        A(f"s_add_u32 m0, s{sXr}, s{sT2}")
        A(f"s_mul_i32 s{sT2}, s{sT1}, {16 * 12288}")
        A(f"s_add_u32 s{sT2}, s{sT2}, s{sT0}")
        A(f"buffer_load_dwordx4 v{vT}, s[{sRO}:{sRO+3}], s{sT2} offen{' nt' if P['wnt'] else ''} lds")
        A(f"s_add_u32 s{sT1}, s{sT1}, 1")
        A(f"s_cmp_eq_u32 s{sT1}, 20")
        A(f"s_cselect_b32 s{sT1}, 0, s{sT1}")
        if i == 19:
            A(f"s_add_u32 s{sXr}, s{sXr}, 81920")
            A(f"s_add_u32 s{sT0}, s{sT0}, {320 * 12288}")
    A(f"s_lshl_b32 s{sT0}, s{sU}, 10")
    A(f"s_add_u32 s{sT0}, s{sT0}, 8192")
    A(f"buffer_load_dwordx4 v[{vM}:{vM+3}], v{vL16}, s[{sX}:{sX+3}], s{sT0} offen")
    A(f"v_and_b32 v{vT+1}, 15, v0")
    A(f"v_lshrrev_b32 v{vT+2}, 4, v0")
    A(f"v_cmp_gt_u32 vcc, 8, v{vT+1}")
    A(f"v_mov_b32 v{vT+3}, 0xeeee")
    A(f"v_mov_b32 v{vT+4}, 0x4444")
    A(f"v_cndmask_b32 v{vIdx}, v{vT+3}, v{vT+4}, vcc")
    A(f"v_mov_b32 v{vPois}, -1")
    A(f"v_lshrrev_b32 v{vXg}, 2, v0")
    A(f"v_mul_u32_u24 v{vXg}, 1280, v{vXg}")
    A(f"v_sub_u32 v{vT+3}, 0, v{vT+2}")
    A(f"v_xor_b32 v{vT+3}, v0, v{vT+3}")
    A(f"v_and_b32 v{vT+3}, 3, v{vT+3}")
    A(f"v_lshl_add_u32 v{vXg}, v{vT+3}, 4, v{vXg}")
    A(f"v_lshrrev_b32 v{vT+3}, 2, v{vT+1}")
    A(f"v_sub_u32 v{vT+3}, 0, v{vT+3}")
    A(f"v_xor_b32 v{vT+3}, v{vT+2}, v{vT+3}")
    A(f"v_and_b32 v{vT+3}, 3, v{vT+3}")
    A(f"v_lshl_add_u32 v{vT+3}, v{vT+1}, 2, v{vT+3}")
    A(f"v_lshlrev_b32 v{vXrd}, 4, v{vT+3}")
    A(f"v_lshlrev_b32 v{vXsum}, 5, v{vT+3}")
    A(f"v_add_u32 v{vXsum}, 40960, v{vXsum}")
    A(f"v_bfe_u32 v{vT+3}, v0, 2, 1")
    A(f"v_bfe_u32 v{vT+4}, v0, 3, 1")
    A(f"v_lshl_add_u32 v{vT+3}, v{vT+3}, 1, v{vT+4}")
    A(f"v_and_b32 v{vT+4}, 1, v{vT+1}")
    A(f"v_lshlrev_b32 v{vT+4}, 4, v{vT+4}")
    A(f"v_mov_b32 v{vT+5}, 0x3f80")
    A(f"v_lshlrev_b32 v{vT+4}, v{vT+4}, v{vT+5}")
    for r in range(4):
        A(f"v_cmp_eq_u32 vcc, {r}, v{vT+3}")
        A("s_nop 1")
        A(f"v_cndmask_b32 v{vSel+r}, 0, v{vT+4}, vcc")
    A(f"s_lshl_b32 s{sT0}, s{sW}, 10")
    A(f"v_add_u32 v{vHld}, s{sT0}, v{vL16}")
    A(f"v_add_u32 v{vHw}, {MEML}, v{vHld}")
    A(f"v_add_u32 v{vHr}, {MEML}, v{vL16}")
    if P["s3_map"]:
        A(f"s_mul_i32 s{sU}, s{sW}, 18")
        A(f"s_sub_u32 s{sT0}, 17, s{sR}")
        A(f"s_add_u32 s{sU}, s{sU}, s{sT0}")
    elif P["s3_rot"]:
        A(f"s_add_u32 s{sU}, s{sU}, {P['s3_rot']}")
        A(f"s_cmp_ge_u32 s{sU}, 72")
        A(f"s_cselect_b32 s{sT0}, 72, 0")
        A(f"s_sub_u32 s{sU}, s{sU}, s{sT0}")
    A(f"s_cmp_ge_u32 s{sU}, 40")
    A(f"s_cselect_b32 s{sT0}, 40, 0")
    A(f"s_sub_u32 s{sT0}, s{sU}, s{sT0}")
    A(f"s_lshr_b32 s{sPartBase}, s{sT0}, 2")
    A(f"s_lshl_b32 s{sPartBase}, s{sPartBase}, 14")
    A(f"s_and_b32 s{sT1}, s{sT0}, 3")
    A(f"s_lshl_b32 s{sT1}, s{sT1}, 11")
    A(f"s_add_u32 s{sPartBase}, s{sPartBase}, s{sT1}")
    A(f"s_add_u32 s{sPartBase}, s{sPartBase}, {PART}")
    A(f"v_lshlrev_b32 v{vT+3}, 2, v0")
    A(f"s_lshl_b32 s{sT0}, s{sT0}, 8")
    A(f"s_cmp_ge_u32 s{sU}, 40")
    A(f"s_cselect_b32 s{sT0}, {OOB}, s{sT0}")
    A(f"v_add_u32 v{vMemSt}, s{sT0}, v{vT+3}")
    A(f"v_lshl_add_u32 v{vMemPo}, v0, 2, s{sT0}")
    A(f"v_and_b32 v{vT+3}, 31, v0")
    A(f"v_lshlrev_b32 v{vT+3}, 3, v{vT+3}")
    A(f"v_lshrrev_b32 v{vT+4}, 5, v0")
    A(f"v_lshl_add_u32 v{vT+3}, v{vT+4}, 13, v{vT+3}")
    A(f"s_lshl_b32 s{sT0}, s{sG}, 8")
    A(f"s_cmp_ge_u32 s{sU}, 40")
    A(f"s_cselect_b32 s{sT0}, {OOB}, s{sT0}")
    A(f"v_add_u32 v{vPartSt}, s{sT0}, v{vT+3}")
    A(f"v_mov_b32 v{vPois2}, -1")
    A(f"v_mov_b32 v{vPois2+1}, -1")
    A(f"v_bfe_u32 v{vT+3}, v0, 4, 1")
    A(f"v_lshrrev_b32 v{vT+4}, 5, v0")
    A(f"v_lshlrev_b32 v{vT+3}, 2, v{vT+3}")
    A(f"v_lshl_add_u32 v{vT+3}, v{vT+4}, 1, v{vT+3}")
    A(f"s_and_b32 s{sT0}, s{sKS}, 1")
    A(f"s_lshr_b32 s{sT1}, s{sKS}, 1")
    A(f"s_lshl_b32 s{sT1}, s{sT1}, 10")
    A(f"v_lshrrev_b32 v{vT+4}, 2, v{vT+1}")
    A(f"v_lshl_add_u32 v{vT+4}, v{vT+4}, 4, v{vT+3}")
    A(f"v_lshlrev_b32 v{vT+4}, 4, v{vT+4}")
    A(f"v_and_b32 v{vT+5}, 3, v{vT+1}")
    A(f"v_lshl_add_u32 v{vT+4}, v{vT+5}, 2, v{vT+4}")
    A(f"s_lshl_b32 s{sT2}, s{sT0}, 7")
    A(f"s_add_u32 s{sT2}, s{sT2}, s{sT1}")
    A(f"v_add_u32 v{vT+4}, s{sT2}, v{vT+4}")
    A(f"v_lshrrev_b32 v{vT+5}, 3, v{vT+1}")
    A(f"v_lshl_add_u32 v{vT+5}, v{vT+5}, 4, v{vT+3}")
    A(f"v_and_b32 v{vT+6}, 1, v{vT+1}")
    A(f"v_lshl_add_u32 v{vT+5}, v{vT+6}, 3, v{vT+5}")
    A(f"v_lshlrev_b32 v{vT+5}, 4, v{vT+5}")
    A(f"v_bfe_u32 v{vT+6}, v{vT+1}, 1, 2")
    A(f"v_lshl_add_u32 v{vT+5}, v{vT+6}, 2, v{vT+5}")
    A(f"s_lshl_b32 s{sT2}, s{sT0}, 9")
    A(f"s_add_u32 s{sT2}, s{sT2}, s{sT1}")
    A(f"v_add_u32 v{vT+5}, s{sT2}, v{vT+5}")
    A(f"v_lshl_add_u32 v{vT+6}, v0, 3, s{sT2}")
    A(f"v_and_b32 v{vT+7}, 15, v0")
    A(f"v_lshlrev_b32 v{vT+7}, 3, v{vT+7}")
    A(f"v_lshl_add_u32 v{vT+7}, v{vT+2}, 8, v{vT+7}")
    A(f"s_lshl_b32 s{sT2}, s{sT0}, 7")
    A(f"s_add_u32 s{sT2}, s{sT2}, s{sT1}")
    A(f"v_add_u32 v{vT+7}, s{sT2}, v{vT+7}")
    A(f"s_cmp_eq_u32 s{sTY}, 2")
    A(f"s_cselect_b64 vcc, -1, 0")
    A(f"v_cndmask_b32 v{vQkvSt}, v{vT+4}, v{vT+5}, vcc")
    A(f"v_cndmask_b32 v{vQkvPo}, v{vT+7}, v{vT+6}, vcc")
    A(f"v_cmp_eq_u32 vcc, 0, v0")
    A(f"v_mov_b32 v{vT+4}, {OOB}")
    A("s_nop 0")
    A(f"v_cndmask_b32 v{vFlagO}, v{vT+4}, v0, vcc")
    A(f"v_cmp_gt_u32 vcc, 2, v0")
    A(f"v_lshlrev_b32 v{vT+5}, 10, v0")
    A("s_nop 0")
    A(f"v_cndmask_b32 v{vMk2O}, v{vT+4}, v{vT+5}, vcc")
    A(f"s_lshl_b32 s{sT0}, s{sG}, 2")
    A(f"s_add_u32 s{sT0}, s{sT0}, {DBG_NEAR}")
    A(f"v_mov_b32 v{vNearO}, s{sT0}")
    A(f"v_min_u32 v{vMkO}, {7 if P['gh'] else 9}, v0")
    A(f"v_lshlrev_b32 v{vMkO}, 2, v{vMkO}")
    A(f"s_lshl_b32 s{sMk}, s{sG}, 7")
    A(f"s_lshl_b32 s{sT0}, s{sR}, 2")
    A(f"s_add_u32 s{sMkW}, s{sMk}, s{sT0}")
    A(f"s_add_u32 s{sMkW}, s{sMkW}, {S1MARK}")
    A(f"s_cmp_eq_u32 s{sW}, 0")
    A(f"s_cselect_b32 s{sMkW}, s{sMkW}, {OOB}")
    A(f"s_add_u32 s{sMk}, s{sMk}, {S2MARK}")
    A(f"s_cmp_lt_u32 s{sW}, 2")
    A(f"s_mov_b32 s{sH2}, {OOB if P['h3oob'] else 0}")
    A(f"s_cselect_b32 s{sH2}, 8192, s{sH2}")
    A(f"s_mul_i32 s{sMemBase}, s{sG}, 40960")
    A(f"s_mul_i32 s{sT0}, s{sHH}, 3")
    A(f"s_add_u32 s{sT0}, s{sT0}, s{sTY}")
    A(f"s_mul_i32 s{sQkvBase}, s{sG}, 147456")
    A(f"s_mul_i32 s{sT1}, s{sT0}, 3072")
    A(f"s_add_u32 s{sQkvBase}, s{sQkvBase}, s{sT1}")
    A(f"s_add_u32 s{sQkvBase}, s{sQkvBase}, {QKVR}")
    A(f"s_mul_i32 s{sXrBase}, s{sG}, {XR_G}")
    A(f"s_lshl_b32 s{sT1}, s{sUP}, 1")
    A(f"s_add_u32 s{sT1}, s{sT1}, s{sHH}")
    A(f"s_lshl_b32 s{sT1}, s{sT1}, 10")
    A(f"s_add_u32 s{sXrBase}, s{sXrBase}, s{sT1}")
    A(f"s_add_u32 s{sXrBase}, s{sXrBase}, {XR}")
    A(f"s_add_u32 s{sXrEnd}, s{sXrBase}, {XR_G}")
    A(f"s_mov_b32 s{sXr}, s{sXrBase}")
    A(f"s_lshl_b32 s{sXflag}, s{sG}, 9")
    A(f"s_lshl_b32 s{sT1}, s{sUP}, 2")
    A(f"s_add_u32 s{sXflag}, s{sXflag}, s{sT1}")
    A(f"s_add_u32 s{sXflag}, s{sXflag}, {XFLAG}")
    A(f"v_bfe_u32 v{vT+3}, v0, 2, 2")
    A(f"v_lshl_add_u32 v{vT+4}, v{vT+2}, 3, v{vT+3}")
    A(f"v_lshlrev_b32 v{vT+4}, 7, v{vT+4}")
    A(f"v_and_b32 v{vT+5}, 1, v0")
    A(f"v_lshl_add_u32 v{vT+4}, v{vT+5}, 3, v{vT+4}")
    A(f"v_add_u32 v{vT+4}, s{sLdsW}, v{vT+4}")
    A(f"v_and_b32 v{vT+3}, 2, v{vT+3}")
    A(f"v_and_b32 v{vT+5}, 1, v{vT+2}")
    A(f"v_lshl_add_u32 v{vT+3}, v{vT+5}, 2, v{vT+3}")
    A(f"v_bfe_u32 v{vT+5}, v0, 1, 1")
    A(f"s_and_b32 s{sT0}, s{sW}, 1")
    A(f"s_lshl_b32 s{sT0}, s{sT0}, 2")
    A(f"v_or_b32 v{vT+5}, s{sT0}, v{vT+5}")
    A(f"v_xor_b32 v{vT+5}, v{vT+5}, v{vT+3}")
    A(f"v_xor_b32 v{vT+6}, 2, v{vT+5}")
    A(f"v_lshl_add_u32 v{vT+5}, v{vT+5}, 4, v{vT+4}")
    A(f"v_lshl_add_u32 v{vT+6}, v{vT+6}, 4, v{vT+4}")
    def trhalf(h):
        for kd in range(10 * h, 10 * h + 10):
            for t in range(2):
                for hf in range(2):
                    A(f"ds_read_b64_tr_b16 a[{80*t+4*kd+2*hf}:{80*t+4*kd+2*hf+1}], v{vT+5+t} offset:{(kd%10)*4096+hf*512}")
    A("s_waitcnt vmcnt(21)")
    A("s_barrier")
    trhalf(0)
    A(f"v_add_u32 v{vT+5}, 81920, v{vT+5}")
    A(f"v_add_u32 v{vT+6}, 81920, v{vT+6}")
    A("s_waitcnt lgkmcnt(0)")
    A("s_barrier")
    A(f"s_mul_i32 s{sXsrc}, s{sW}, 320")
    A(f"s_mul_i32 s{sLdsW}, s{sW}, 10240")
    A(f"s_mov_b32 s{sXbuf}, 0")
    def xdma():
        A(f"s_add_u32 m0, s{sLdsW}, s{sXbuf}")
        for i in range(5):
            for tt in range(2):
                A(f"s_add_u32 s{sT0}, s{sXsrc}, {tt * 20480 + i * 64}")
                A(f"buffer_load_dwordx4 v{vXg}, s[{sX}:{sX+3}], s{sT0} offen lds")
                if not (i == 4 and tt == 1):
                    A("s_add_u32 m0, m0, 1024")
        A(f"s_add_u32 s{sXsrc}, s{sXsrc}, 40960")
        A(f"s_sub_u32 s{sXbuf}, 40960, s{sXbuf}")
    xdma()
    A("s_waitcnt vmcnt(10)")
    A("s_barrier")
    trhalf(1)
    ostamp(A, 0, 1)
    A(f"s_mov_b32 s{sS}, -2")
    gen_locality(A, "L_s1_loc", "L_s1_glb", vT)

    for mode in ("loc", "glb"):
        sc = "" if mode == "loc" else " sc1"
        Lb, Ls3, Lh1, Lslow, Lcont, Lnox = [f"L_s1_{mode}_{x}" for x in ("bub", "s3", "h1", "slow", "cont", "nox")]
        def xrd(kd, tt):
            b = vXB3 + 8 * (kd % 3) + 4 * tt
            A(f"ds_read_b128 v[{b}:{b+3}], v{vXrd} offset:{(2*kd+tt)*1024}")
        def marks():
            A(f"s_add_u32 s{sT0}, s{sS}, 1")
            A(f"v_mov_b32 v{vT+2}, s{sT0}")
            A(f"v_add_u32 v{vT+3}, 2, v{vT+2}")
        def mark1():
            A(f"buffer_store_dword v{vT+2}, v{vMk2O if P['mk2'] else vFlagO}, {WSR}, s{sMkW} offen{sc}")
        Lpro = f"L_s1_{mode}_pro"
        align(A, P["al1"])
        A.label(f"L_s1_{mode}")
        A("s_waitcnt lgkmcnt(0)")
        A.label(Lpro)
        A("s_barrier")
        marks()
        xrd(0, 0); xrd(0, 1); xrd(1, 0); xrd(1, 1)
        A.label(Lb)
        if P["mk1"] == 0: mark1()
        stamp(A, 5)
        fstamp(A, 5, 250)
        def house():
            return [f"s_cmp_lt_i32 s{sS}, 1",
                f"s_cselect_b32 s{sMemP}, {OOB}, s{sMemP}",
                f"s_cselect_b32 s{sQkvP}, {OOB}, s{sQkvP}",
                f"s_cselect_b32 s{sPartP}, {OOB}, s{sPartP}",
                f"buffer_store_dword v{vPois}, v{vMemPo}, {WSR}, s{sMemP} offen{sc}",
                f"buffer_store_dwordx2 {v(vPois2,2)}, v{vQkvPo}, {WSR}, s{sQkvP} offen{sc}",
                f"buffer_store_dwordx2 {v(vPois2,2)}, v{vPartSt}, {WSR}, s{sPartP} offen sc1",
                f"buffer_load_dword v{vT+4}, v{vNearO}, s[{sDBG}:{sDBG+3}], 0 offen sc1",
                f"s_and_b32 s{sT1}, s{sS}, 3",
                f"s_mul_i32 s{sPartRd}, s{sT1}, {PART_SLOT}",
                f"s_add_u32 s{sPartRd}, s{sPartRd}, s{sPartBase}",
                f"s_mul_i32 s{sMemP}, s{sT1}, 10240",
                f"s_add_u32 s{sMemP}, s{sMemP}, s{sMemBase}",
                f"s_add_u32 s{sT1}, s{sS}, 3",
                f"s_and_b32 s{sT1}, s{sT1}, 3",
                f"s_mul_i32 s{sPartP}, s{sT1}, {PART_SLOT}",
                f"s_add_u32 s{sPartP}, s{sPartP}, s{sPartBase}",
                f"s_mul_i32 s{sQkvP}, s{sT1}, 36864",
                f"s_add_u32 s{sQkvP}, s{sQkvP}, s{sQkvBase}",
                f"s_add_u32 s{sT1}, s{sS}, 1",
                f"s_and_b32 s{sT1}, s{sT1}, 3",
                f"s_mul_i32 s{sMem0}, s{sT1}, 10240",
                f"s_add_u32 s{sMem0}, s{sMem0}, s{sMemBase}",
                f"s_add_u32 s{sMem1}, s{sMem0}, 4096",
                f"s_add_u32 s{sMem2}, s{sMem0}, s{sH2}",
                f"s_mul_i32 s{sQkv}, s{sT1}, 36864",
                f"s_add_u32 s{sQkv}, s{sQkv}, s{sQkvBase}"]
        Lxd = A.newlabel("xdone")
        A(f"s_cmp_ge_i32 s{sS}, {P['nseg'] - 2 if not P.get('x_nox') else 3}")
        A(f"s_cbranch_scc1 {Lnox}")
        fstamp(A, 6, 250)
        if P["prof"] in (3, 5): A("s_waitcnt lgkmcnt(0)")
        A(f"s_add_u32 m0, s{sLdsW}, s{sXbuf}")
        hk = house()
        for _ in range(4): A(hk.pop(0))
        A("s_waitcnt lgkmcnt(2)")
        early = P["dma_e"]
        dmak = list(range(early)) + list(range(P["dma0"], P["dma0"] + 10 - early))
        nd = 0
        for kd in range(20):
            cur = vXB3 + 8 * (kd % 3)
            n = 0
            for tt in range(2):
                for t in range(2):
                    acc = vXA + 4 * (2 * tt + t)
                    c = "0" if kd == 0 else v(acc, 4)
                    A(f"v_mfma_f32_16x16x32_bf16 {v(acc,4)}, {a(80*t+4*kd,4)}, {v(cur+4*tt,4)}, {c}" if not P.get("x_nomf") else "s_nop 1")
                    if n < 2 and kd < 18: xrd(kd + 2, n)
                    if kd in dmak:
                        if n == 0: A(f"s_add_u32 s{sT0}, s{sXsrc}, {(nd & 1) * 20480 + (nd >> 1) * 64}")
                        if n == 1 and hk: A(hk.pop(0))
                        if n == 2: A(f"buffer_load_dwordx4 v{vXg}, s[{sX}:{sX+3}], s{sT0} offen lds")
                        if n == 3: A("s_add_u32 m0, m0, 1024"); nd += 1
                    elif n < 3 and hk:
                        A(hk.pop(0))
                        if n == 2 and hk: A(hk.pop(0))
                    if n == 3 and kd < 19: A(f"s_waitcnt lgkmcnt({2 if kd < 18 else 0})")
                    n += 1
        assert nd == 10
        assert not hk
        fstamp(A, 7, 250)
        A(f"s_add_u32 s{sXsrc}, s{sXsrc}, 40960")
        A(f"s_sub_u32 s{sXbuf}, 40960, s{sXbuf}")
        A(f"v_sub_u32 v{vXrd}, v{vXsum}, v{vXrd}")
        A(f"s_mov_b32 s{sT0}, s{sXr}")
        A(f"s_add_u32 s{sXr}, s{sXr}, {XR_SLOT}")
        A(f"s_cmp_eq_u32 s{sXr}, s{sXrEnd}")
        A(f"s_cselect_b32 s{sXr}, s{sXrBase}, s{sXr}")
        for tt in range(2):
            for r in range(4):
                A(f"v_cvt_pk_bf16_f32 v{vXO+4*tt+r}, v{vXA+8*tt+r}, v{vXA+8*tt+4+r}")
            A(f"buffer_store_dwordx4 {v(vXO+4*tt,4)}, v{vL16}, {WSR}, s{sT0} offen offset:{1024*tt}{sc}")
        fstamp(A, 8, 250)
        fstamp(A, 9, 250)
        A(f"s_branch {Lxd}")
        A.label(Lnox)
        for x in house(): A(x)
        A.label(Lxd)
        stamp(A, 6)
        fstamp_collect(A, 11, 250)
        stamp_flush(A)
        A(f"s_add_u32 s{sS}, s{sS}, 1")
        if mode == "loc" and not P["gh"]: A(f"buffer_load_dword v{vT}, v{vMkO}, {WSR}, s{sMk} offen sc1")
        A("s_waitcnt vmcnt(0)")
        A(f"buffer_store_dword v{vT+3}, v{vFlagO}, {WSR}, s{sXflag} offen{sc}")
        if mode == "loc" and not P["gh"]: A(f"v_cmp_gt_u32 vcc, s{sS}, v{vT}")
        A(f"v_readfirstlane_b32 s{sT0}, v{vT+4}")
        A(f"s_cmp_eq_u32 s{sT0}, {2 if mode == 'loc' and P['near'] else 99}")
        A(f"s_cselect_b32 s{sT0}, 8192, 0")
        A(f"s_add_u32 s{sPartRd}, s{sPartRd}, s{sT0}")
        if P["gh"]: A(f"s_add_u32 s{sMk}, s{sT0}, {GHINT}")
        A(f"s_cmp_lt_i32 s{sS}, 0")
        A(f"s_cbranch_scc1 {Lpro}")
        A(f"s_cmp_eq_u32 s{sS}, {P['nseg']}")
        A("s_cbranch_scc1 L_s1_done")
        A(f"s_cmp_eq_u32 s{sS}, 0")
        A(f"s_cbranch_scc1 {Lh1}")
        if P.get("diag"):
            for st, ix in ((2, 2), (12, 3), (32, 4), (52, 5)):
                Ld = A.newlabel("dg")
                A(f"s_cmp_lg_u32 s{sS}, {st}")
                A(f"s_cbranch_scc1 {Ld}")
                A("s_mov_b64 s[84:85], vcc")
                dstamp(A, ix)
                A("s_mov_b64 vcc, s[84:85]")
                A.label(Ld)
        if mode != "loc": A("s_barrier")
        if mode == "loc":
            def miss(r):
                A(f"v_cmp_gt_u32 vcc, s{sS}, v{r}")
                if P["s3_miss"] == 0: return "s_cbranch_vccz"
                A(f"s_and_b32 s{sT0}, vcc_lo, 0x3ff")
                A(f"s_bcnt1_i32_b32 s{sT0}, s{sT0}")
                A(f"s_cmp_gt_u32 s{sT0}, {P['s3_miss']}")
                return "s_cbranch_scc0"
            Lg = A.newlabel("gate")
            if not P["gh"]: A(f"s_cbranch_vccz {Lg}")
            A(f"s_cmp_lg_u32 s{sW}, 0")
            A(f"s_cbranch_scc1 {Lg}")
            dense_poll(A, [vT + i for i in range(P["dp"])], lambda r: A(f"buffer_load_dword v{r}, v{vMkO}, {WSR}, s{sMk} offen sc1"), miss, 13)
            A.label(Lg)
            A("s_barrier")
        if P["s3_slp"] and mode == "loc": A(f"s_sleep {P['s3_slp']}")
        fstamp(A, 10, 250)
        def s3ld(b, so):
            for i in range(2):
                A(f"buffer_load_dwordx4 {v(b+4*i,4)}, v{vL16}, {WSR}, s{so} offen offset:{1024*i} sc1")
        def s3sum(b, later):
            A(f"s_waitcnt vmcnt({1+later})")
            A(f"v_mfma_f32_16x16x32_bf16 {v(vT,4)}, {v(vSel,4)}, {v(b,4)}, 0")
            A(f"s_waitcnt vmcnt({later})")
            A(f"v_mfma_f32_16x16x32_bf16 {v(vT,4)}, {v(vSel,4)}, {v(b+4,4)}, {v(vT,4)}")
            A.nop(8)
            A(f"v_cmp_u_f32 vcc, v{vT}, v{vT+1}")
            A(f"v_cvt_pk_bf16_f32 v{vT+4}, v{vT}, v{vT+1}")
        if P["s3_two"]:
            Lsec = A.newlabel("s3b")
            stamp(A, 0)
            fstamp(A, 0, 250)
            s3ld(vPt, sPartRd)
            A(f"s_xor_b32 s{sT1}, s{sPartRd}, 8192")
            A(f"s_sleep {P['s3_two']}")
            s3ld(vPt + 8, sT1)
            s3sum(vPt, 2)
            A(f"s_cbranch_vccz {Lcont}")
            s3sum(vPt + 8, 0)
            A(f"s_cbranch_vccz {Lcont}")
        if P["nowatch"] and mode == "loc":
            Lw_ = A.newlabel("red")
            A(f"s_cmp_lt_u32 s{sU}, 40")
            A(f"s_cbranch_scc1 {Lw_}")
            A(f"s_sleep {P['nowatch']}")
            A(f"s_branch {Lh1}")
            A.label(Lw_)
        A.label(Ls3)
        stamp(A, 0)
        fstamp(A, 0, 250)
        s3ld(vPt, sPartRd)
        s3sum(vPt, 0)
        A(f"s_cbranch_vccnz {Lslow}")
        A.label(Lcont)
        A(f"buffer_store_dword v{vT+4}, v{vMemSt}, {WSR}, s{sMem0} offen{sc}")
        stamp(A, 1)
        fstamp(A, 1, 250)
        if P.get("x_ack") == 2: A("s_waitcnt vmcnt(0)")
        if P.get("memdbg"):
            A(f"s_mul_i32 s{sT0}, s{sS}, 10240")
            A(f"s_add_u32 s{sT0}, s{sT0}, {MEMDBG}")
            A(f"buffer_store_dword v{vT+4}, v{vMemSt}, {WSR}, s{sT0} offen")
        def h1ld(b, own):
            for i in range(len(own)):
                A(f"buffer_load_dwordx4 {v(b+4*i,4)}, v{vHld}, {WSR}, s{(sMem0, sMem1, sMem2)[i]} offen sc1")
        def h1chk(b, own, later):
            n = len(own); regs = list(range(b, b + 4 * n)); first = True
            for i in range(n):
                A(f"s_waitcnt vmcnt({n - 1 - i + later})")
                A(f"ds_write_b128 v{vHw}, {v(b+4*i,4)} offset:{4096*i}")
                avail = lambda k: len(regs) >= k and regs[k - 1] < b + 4 * (i + 1)
                if first: A(f"v_max3_u32 v{vMx}, v{regs[0]}, v{regs[1]}, v{regs[2]}"); regs = regs[3:]; first = False
                while avail(2): A(f"v_max3_u32 v{vMx}, v{regs[0]}, v{regs[1]}, v{vMx}"); regs = regs[2:]
            A(f"v_max_u32 v{vMx}, v{regs[0]}, v{vMx}")
            A(f"v_cmp_eq_u32 vcc, -1, v{vMx}")
            A("s_waitcnt lgkmcnt(0)")
        def smf2(src, j):
            A(f"v_smfmac_f32_16x16x64_bf16 {v(vA,4)}, {v(src,4)}, {a(8*j,8)}, v{vIdx}")
            A(f"v_smfmac_f32_16x16x64_bf16 {v(vA+4,4)}, {v(src,4)}, {a(80+8*j,8)}, v{vIdx}")
        if P["h1_slp"]: A(f"s_sleep {P['h1_slp']}")
        A.label(Lh1)
        for w in range(3):
            A(f"s_cmp_eq_u32 s{sW}, {w}")
            A(f"s_cbranch_scc1 {Lh1}_{w}")
        for w in (3, 0, 1, 2):
            own = [j for j in (w, w + 4, w + 8) if j < 10]
            rest = [j for j in range(10) if j not in own]
            n = len(own)
            Lretry, Lhok, LhokB, Lrest = [f"L_s1_{mode}_{x}_{w}" for x in ("h1retry", "h1ok", "h1okB", "h1rest")]
            def gather(b):
                A("s_barrier")
                fstamp(A, 3, 250)
                if P["prof"] in (3, 5): A("s_waitcnt lgkmcnt(0)")
                for j in rest: A(f"ds_read_b128 {v(vM+4*j,4)}, v{vHr} offset:{1024*j}")
                for i, j in enumerate(own): smf2(b + 4 * i, j)
            A.label(f"{Lh1}_{w}")
            h1ld(vH, own)
            fstamp(A, 2, 250)
            for r in range(8):
                A(f"v_mov_b32 v{vA+r}, 0")
            A(f"s_sleep {P['h1_two']}")
            h1ld(vH2, own)
            h1chk(vH, own, n)
            A(f"s_cbranch_vccnz {Lretry}")
            A.label(Lhok)
            gather(vH)
            A.label(Lrest)
            for i, j in enumerate(rest):
                A(f"s_waitcnt lgkmcnt({len(rest) - 1 - i})")
                smf2(vM + 4 * j, j)
            xrd(0, 0); xrd(0, 1); xrd(1, 0); xrd(1, 1)
            marks()
            A(f"v_permlane32_swap_b32 v{vA}, v{vA+2}")
            A(f"v_permlane32_swap_b32 v{vA+1}, v{vA+3}")
            A(f"v_permlane32_swap_b32 v{vA+4}, v{vA+6}")
            A(f"v_permlane32_swap_b32 v{vA+5}, v{vA+7}")
            A(f"v_add_f32 v{vA}, v{vA}, v{vA+2}")
            A(f"v_add_f32 v{vA+4}, v{vA+4}, v{vA+6}")
            A(f"v_add_f32 v{vA+1}, v{vA+1}, v{vA+3}")
            A(f"v_add_f32 v{vA+5}, v{vA+5}, v{vA+7}")
            A(f"v_cvt_pk_bf16_f32 v{vT}, v{vA}, v{vA+4}")
            A(f"buffer_store_dword v{vT}, v{vQkvSt}, {WSR}, s{sQkv} offen{sc}")
            A(f"v_cvt_pk_bf16_f32 v{vT+1}, v{vA+1}, v{vA+5}")
            A(f"buffer_store_dword v{vT+1}, v{vQkvSt}, {WSR}, s{sQkv} offen offset:16{sc}")
            stamp(A, 4)
            fstamp(A, 4, 250)
            A(f"s_branch {Lb}")
            A.label(Lretry)
            stamp(A, 3)
            budget_check(A, 3)
            h1ld(vH, own)
            h1chk(vH2, own, n)
            A(f"s_cbranch_vccz {LhokB}")
            h1ld(vH2, own)
            h1chk(vH, own, n)
            A(f"s_cbranch_vccz {Lhok}")
            A(f"s_branch {Lretry}")
            A.label(LhokB)
            gather(vH2)
            A(f"s_branch {Lrest}")
        A.label(Lslow)
        A(f"v_max3_u32 v{vMx}, v{vPt}, v{vPt+1}, v{vPt+2}")
        for i in range(3, 7, 2):
            A(f"v_max3_u32 v{vMx}, v{vPt+i}, v{vPt+i+1}, v{vMx}")
        A(f"v_max_u32 v{vMx}, v{vPt+7}, v{vMx}")
        A(f"v_cmp_eq_u32 vcc, -1, v{vMx}")
        A(f"v_min_u32 v{vT+4}, -2, v{vT+4}")
        A(f"s_cbranch_vccz {Lcont}")
        budget_check(A, 2)
        A(f"s_branch {Ls3}")

    A.label("L_s1_done")
    dstamp(A, 6)
    A(f"s_cmp_lg_u32 s{sW}, 0")
    A("s_cbranch_scc1 L_end")
    A("s_cmp_ge_u32 s2, 80")
    A("s_cbranch_scc1 L_end")
    A(f"s_add_u32 s74, s2, {20 * (P['nseg'] - 4)}")
    A("s_mov_b32 s79, 0")
    A("s_mov_b32 s32, 0")
    A("s_branch L_mixent")

def gen_s2(A):
    sJ = 30
    sQkv, sQkvBase, sPartW, sPartP, sPartBase, sXk, sXv, sXrBase, sXrEnd = 31, 32, 33, 34, 35, 36, 37, 38, 39
    sPx, sPxBase, sXp, sXpF, sXfl, sMark, sMk1, sC, sNeed = 40, 41, 42, 43, 44, 45, 46, 47, 48
    sQkv1, sQkv2 = 49, 50
    sXk1, sXk2, sXv1, sXv2 = 51, 52, 53, 54
    sLo = 56
    sSt0, sSt1, sSt2, sSt3 = 58, 59, 88, 89
    vL16, vKmO, vIdx, vRedW, vRedR, vPartO, vL8, vFlagO, vXflO, vProbe, vRed2R = 1, 2, 3, 4, 5, 6, 7, 8, 9, 10, 11
    vPois = 12
    vT = 16
    vQ, vKM, vVM = 32, 44, 56
    vFl, vMx, vMark = 68, 69, 98
    vOne32, vOne16 = 70, 74
    vS, vSM, vW = 76, 92, 96
    vVA, vF, vDen, vPb = 100, 116, 132, 136
    vVOM2 = (142, 228)
    vRed2W, vXfv, vGhO = 99, 150, 151
    sGh = 55
    fin_parts = {}
    vVOX, vXA, vPX = 152, 184, 216
    aKX, aVX = 96, 144
    vXOUT = 24
    RED, RED2 = 98304, 106496
    c = (192 ** -0.5) * math.log2(math.e)
    A.label("L_s2")
    A(f"s_sub_u32 s{sJ}, s{sR}, 18")
    A(f"s_load_dwordx2 s[{sRO}:{sRO+1}], s[0:1], 40")
    A(f"v_lshlrev_b32 v{vL16}, 4, v0")
    A(f"v_lshrrev_b32 v{vT}, 3, v0")
    A(f"v_mul_u32_u24 v{vT}, 1280, v{vT}")
    A(f"v_and_b32 v{vT+1}, 7, v0")
    A(f"v_lshl_add_u32 v{vT}, v{vT+1}, 4, v{vT}")
    A(f"s_lshl_b32 s{sT0}, s{sG}, 2")
    A(f"s_add_u32 s{sT0}, s{sT0}, s{sW}")
    A(f"s_mul_i32 s{sT0}, s{sT0}, {192 * 1280}")
    A(f"s_lshl_b32 s{sT1}, s{sJ}, 7")
    A(f"s_add_u32 s{sT0}, s{sT0}, s{sT1}")
    A(f"s_mul_i32 s{sT2}, s{sW}, 24576")
    A(f"s_mov_b32 m0, s{sT2}")
    A("s_waitcnt lgkmcnt(0)")
    srd(A, sRO, 6144 * 1280)
    if P["s2_late"]:
        A(f"s_mov_b32 s{sQkv}, s{sT0}")
        A(f"s_mov_b32 s{sQkv+1}, s{sT2}")
        gen_locality(A, None, None, vT + 8)
        A(f"s_mov_b32 s{sT0}, s{sQkv}")
        A(f"s_mov_b32 s{sT2}, s{sQkv+1}")
    for i in range(24):
        A(f"buffer_load_dwordx4 v{vT}, s[{sRO}:{sRO+3}], s{sT0} offen{' nt' if P['wnt'] else ''} lds")
        if i < 23:
            A("s_add_u32 m0, m0, 1024")
            A(f"s_add_u32 s{sT0}, s{sT0}, {8 * 1280}")
    A(f"v_and_b32 v{vT+1}, 15, v0")
    A(f"v_lshrrev_b32 v{vT+2}, 4, v0")
    A(f"v_cmp_gt_u32 s[{sLo}:{sLo+1}], 8, v{vT+1}")
    A(f"v_mov_b32 v{vT+3}, 0xeeee")
    A(f"v_mov_b32 v{vT+4}, 0x4444")
    A(f"v_cndmask_b32 v{vIdx}, v{vT+3}, v{vT+4}, s[{sLo}:{sLo+1}]")
    for r in range(4): A(f"v_mov_b32 v{vPois+r}, -1")
    A(f"v_lshlrev_b32 v{vL8}, 3, v0")
    A(f"v_mov_b32 v{vT+3}, 0x3f803f80")
    for r in range(4): A(f"v_mov_b32 v{vOne32+r}, v{vT+3}")
    A(f"v_cmp_gt_u32 vcc, 32, v0")
    A("s_nop 1")
    for r in range(2): A(f"v_cndmask_b32 v{vOne16+r}, 0, v{vT+3}, vcc")
    A(f"s_lshl_b32 s{sT0}, s{sW}, 11")
    A(f"s_add_u32 s{sT0}, s{sT0}, {RED}")
    A(f"v_lshrrev_b32 v{vT+3}, 1, v0")
    A(f"v_and_b32 v{vT+3}, 8, v{vT+3}")
    A(f"v_xor_b32 v{vT+3}, v0, v{vT+3}")
    A(f"v_lshl_add_u32 v{vRedW}, v{vT+3}, 4, s{sT0}")
    A(f"v_bfe_u32 v{vT+3}, v0, 3, 2")
    A(f"v_and_b32 v{vT+4}, 3, v0")
    A(f"v_lshl_add_u32 v{vT+3}, v{vT+4}, 2, v{vT+3}")
    A(f"v_bfe_u32 v{vT+4}, v0, 1, 2")
    A(f"v_lshl_add_u32 v{vT+3}, v{vT+4}, 4, v{vT+3}")
    A(f"s_lshr_b32 s{sT1}, s{sW}, 1")
    A(f"s_lshl_b32 s{sT1}, s{sT1}, 3")
    A(f"v_xor_b32 v{vT+3}, s{sT1}, v{vT+3}")
    A(f"s_and_b32 s{sT0}, s{sW}, 1")
    A(f"s_lshl_b32 s{sT0}, s{sT0}, 10")
    A(f"s_add_u32 s{sT0}, s{sT0}, {RED}")
    A(f"v_lshl_add_u32 v{vRedR}, v{vT+3}, 4, s{sT0}")
    A(f"s_lshl_b32 s{sT0}, s{sW}, 11")
    A(f"s_add_u32 s{sT0}, s{sT0}, {RED2}")
    A(f"v_add_u32 v{vRed2R}, s{sT0}, v{vL16}")
    A(f"s_lshl_b32 s{sT0}, s{sW}, 13")
    A(f"s_add_u32 s{sT0}, s{sT0}, {RED2}")
    A(f"v_add_u32 v{vRed2W}, s{sT0}, v{vL16}")
    A(f"v_and_b32 v{vT+4}, 31, v0")
    A(f"v_lshlrev_b32 v{vT+4}, 3, v{vT+4}")
    A(f"v_lshrrev_b32 v{vT+5}, 5, v0")
    A(f"v_lshl_add_u32 v{vPartO}, v{vT+5}, 13, v{vT+4}")
    A(f"v_mov_b32 v{vT+3}, {OOB}")
    A(f"v_cmp_eq_u32 vcc, 0, v0")
    A("s_nop 1")
    A(f"v_cndmask_b32 v{vFlagO}, v{vT+3}, v0, vcc")
    A(f"v_min_u32 v{vXflO}, 11, v0")
    A(f"v_lshlrev_b32 v{vXflO}, 2, v{vXflO}")
    A(f"v_min_u32 v{vProbe}, 17, v0")
    A(f"v_lshlrev_b32 v{vProbe}, 2, v{vProbe}")
    A(f"s_mul_i32 s{sQkvBase}, s{sG}, 147456")
    A(f"s_mul_i32 s{sT0}, s{sW}, 9216")
    A(f"s_add_u32 s{sQkvBase}, s{sQkvBase}, s{sT0}")
    A(f"s_add_u32 s{sQkvBase}, s{sQkvBase}, {QKVR}")
    A(f"s_lshl_b32 s{sPartBase}, s{sJ}, 14")
    A(f"s_lshl_b32 s{sT0}, s{sW}, 11")
    A(f"s_add_u32 s{sPartBase}, s{sPartBase}, s{sT0}")
    A(f"s_lshl_b32 s{sT0}, s{sG}, 8")
    A(f"s_add_u32 s{sPartBase}, s{sPartBase}, s{sT0}")
    A(f"s_add_u32 s{sPartBase}, s{sPartBase}, {PART}")
    A(f"s_mul_i32 s{sXrBase}, s{sG}, {XR_G}")
    A(f"s_mul_i32 s{sT0}, s{sW}, {XR_HEAD}")
    A(f"s_add_u32 s{sXrBase}, s{sXrBase}, s{sT0}")
    A(f"s_add_u32 s{sXrBase}, s{sXrBase}, {0x5000000 if P.get('x_fixkv') else XR}")
    A(f"s_add_u32 s{sXrEnd}, s{sXrBase}, {XR_G}")
    A(f"s_mul_i32 s{sPxBase}, s{sG}, 49152")
    A(f"s_mul_i32 s{sT0}, s{sW}, 3072")
    A(f"s_add_u32 s{sPxBase}, s{sPxBase}, s{sT0}")
    A(f"s_add_u32 s{sPxBase}, s{sPxBase}, {PXR}")
    A(f"s_lshl_b32 s{sXp}, s{sJ}, 15")
    A(f"s_lshl_b32 s{sT0}, s{sG}, 12")
    A(f"s_add_u32 s{sXp}, s{sXp}, s{sT0}")
    A(f"s_lshl_b32 s{sT0}, s{sW}, 10")
    A(f"s_add_u32 s{sXp}, s{sXp}, s{sT0}")
    A(f"s_add_u32 s{sXp}, s{sXp}, {XPART}")
    A(f"s_lshl_b32 s{sXpF}, s{sJ}, 7")
    A(f"s_lshl_b32 s{sT0}, s{sG}, 4")
    A(f"s_add_u32 s{sXpF}, s{sXpF}, s{sT0}")
    A(f"s_lshl_b32 s{sT0}, s{sW}, 2")
    A(f"s_add_u32 s{sXpF}, s{sXpF}, s{sT0}")
    A(f"s_add_u32 s{sXpF}, s{sXpF}, {XPFLAG}")
    A(f"s_lshl_b32 s{sXfl}, s{sG}, 9")
    A(f"s_mul_i32 s{sT0}, s{sW}, 72")
    A(f"s_add_u32 s{sXfl}, s{sXfl}, s{sT0}")
    A(f"s_add_u32 s{sXfl}, s{sXfl}, {XFLAG + 24}")
    A(f"s_lshl_b32 s{sMk1}, s{sG}, 7")
    A(f"s_lshl_b32 s{sT0}, s{sJ}, 2")
    A(f"s_add_u32 s{sMark}, s{sMk1}, s{sT0}")
    A(f"s_add_u32 s{sMark}, s{sMark}, {S2MARK}")
    A(f"s_cmp_eq_u32 s{sW}, 0")
    A(f"s_cselect_b32 s{sMark}, s{sMark}, {OOB}")
    A(f"s_add_u32 s{sMk1}, s{sMk1}, {S1MARK}")
    A(f"s_lshl_b32 s{sGh}, s{sG}, 2")
    A(f"s_add_u32 s{sGh}, s{sGh}, {GHINT}")
    A(f"s_lshl_b32 s{sT0}, s{sJ}, 2")
    A(f"s_add_u32 s{sT0}, s{sT0}, s{sW}")
    A(f"s_cmp_eq_u32 s{sT0}, {4 * P['gh_j']}")
    A(f"s_cselect_b32 s{sGh}, s{sGh}, {OOB}")
    A(f"v_lshlrev_b32 v{vT+4}, 13, v0")
    A(f"v_cmp_gt_u32 vcc, 2, v0")
    A(f"v_mov_b32 v{vT+5}, {OOB}")
    A("s_nop 0")
    A(f"v_cndmask_b32 v{vGhO}, v{vT+5}, v{vT+4}, vcc")
    A(f"s_mov_b32 s{sC}, {f2u(c):#x}")
    A(f"v_bfe_u32 v{vT+3}, v0, 3, 1")
    A(f"v_bfe_u32 v{vT+4}, v0, 2, 1")
    A(f"v_lshl_add_u32 v{vT+3}, v{vT+4}, 4, v{vT+3}")
    A(f"v_lshl_add_u32 v{vT+3}, v{vT+2}, 2, v{vT+3}")
    A(f"v_lshlrev_b32 v{vT+3}, 7, v{vT+3}")
    A(f"v_and_b32 v{vT+4}, 3, v0")
    A(f"v_lshl_add_u32 v{vT+3}, v{vT+4}, 3, v{vT+3}")
    A(f"v_add_u32 v{vT+3}, s{sT2}, v{vT+3}")
    for ks in range(6):
        A(f"s_waitcnt vmcnt({24 - 4 * (ks + 1)})")
        for ct in range(4):
            for hf in range(2):
                A(f"ds_read_b64_tr_b16 a[{24*ct+4*ks+2*hf}:{24*ct+4*ks+2*hf+1}], v{vT+3} offset:{ks*4096+hf*256+ct*32}")
    A("s_waitcnt lgkmcnt(0)")
    ostamp(A, 0, 1)
    def xflag_wait(have_loaded):
        L, Lok = A.newlabel("xfl"), A.newlabel("xflok")
        if have_loaded:
            A(f"v_cmp_gt_u32 vcc, s{sNeed}, v{vFl}")
            A(f"s_cbranch_vccz {Lok}")
        A.label(L)
        A(f"buffer_load_dword v{vFl}, v{vXflO}, {WSR}, s{sXfl} offen sc1")
        budget_check(A, 4)
        A("s_waitcnt vmcnt(0)")
        A(f"v_cmp_gt_u32 vcc, s{sNeed}, v{vFl}")
        A(f"s_cbranch_vccnz {L}")
        A.label(Lok)
    def xload(dst, t, ks, so):
        off = ks * 2048 + t * 1024
        A(f"buffer_load_dwordx4 {a(dst + 4 * (6 * t + ks), 4)}, v{vL16}, {WSR}, s{so[off // 4096]} offen offset:{off % 4096} sc1")
    if not P["s2_late"]: gen_locality(A, None, None, vT)
    if P["touch"]:
        A(f"s_lshl_b32 s{sT1}, s{sJ}, 2")
        A(f"s_add_u32 s{sT1}, s{sT1}, s{sW}")
        for base, per_g, n in ((XR, XR_G, 15),) * (P['touch'] == 2) + ((QKVR, 147456, 4), (PXR, 49152, 2), (MEMR, 40960, 1)):
            A(f"s_mul_i32 s{sT0}, s{sG}, {per_g}")
            A(f"s_mul_i32 s{sT2}, s{sT1}, {n * 1024}")
            A(f"s_min_u32 s{sT2}, s{sT2}, {per_g - n * 1024}")
            A(f"s_add_u32 s{sT0}, s{sT0}, s{sT2}")
            A(f"s_add_u32 s{sT0}, s{sT0}, {base}")
            for i in range(n):
                if i and i % 4 == 0: A(f"s_add_u32 s{sT0}, s{sT0}, 4096")
                A(f"buffer_load_dwordx4 {v(vQ,4)}, v{vL16}, {WSR}, s{sT0} offen offset:{1024*(i%4)} sc1")
    A(f"s_mov_b32 s{sNeed}, 1")
    xflag_wait(False)
    A(f"s_add_u32 s{sXv}, s{sXrBase}, 24576")
    A(f"s_add_u32 s{sXv1}, s{sXv}, 4096")
    A(f"s_add_u32 s{sXv2}, s{sXv}, 8192")
    for ks in range(6):
        for t in range(2): xload(aVX, t, ks, (sXv, sXv1, sXv2))
    A(f"s_mov_b32 s{sXk}, s{sXrBase}")
    A(f"s_mov_b32 s{sS}, -1")
    for r in (sSt1,): A(f"s_mov_b32 s{r}, {OOB}")
    A(f"v_mov_b32 v{vXfv}, 0")
    A("s_waitcnt vmcnt(0)")

    Lbub, Latt, Lretry, Lnost, Lnox = "L_s2_bub", "L_s2_att", "L_s2_retry", "L_s2_nost", "L_s2_nox"
    for par in range(2):
        voxc = vVOX + 16 * par
        voxn = vVOX + 16 * (1 - par)
        vomc, vomo = vVOM2[par], vVOM2[1 - par]
        vVOM = vomc
        sfx = f"_{par}"
        if par == 0:
            A(f"s_branch {Lbub}_1")
        align(A, P["al2"])
        A.label(f"L_s2_top{sfx}")
        def miss(r):
            A(f"v_cmp_ge_i32 vcc, s{sS}, v{r}")
            A(f"s_and_b32 s{sT0}, vcc_lo, {P['h2_mask']:#x}")
            A(f"s_bcnt1_i32_b32 s{sT0}, s{sT0}")
            A(f"s_cmp_gt_u32 s{sT0}, {P['h2_miss']}")
            return "s_cbranch_scc0"
        Lg = A.newlabel("gate")
        A(f"s_cmp_lg_u32 s{sW}, 0")
        A(f"s_cbranch_scc1 {Lg}")
        dense_poll(A, [vT + i for i in range(P["dp"])], lambda r: A(f"buffer_load_dword v{r}, v{vProbe}, {WSR}, s{sMk1} offen sc1"), miss, 5)
        A.label(Lg)
        A("s_barrier")
        A.label(Latt + sfx)
        stamp(A, 0, 252)
        fstamp(A, 0, 252)
        fill = [f"v_mov_b32 v{vVA+r}, 0" for r in range(16)] + [f"s_add_u32 s{sT0}, s{sS}, 1", f"v_mov_b32 v{vMark}, s{sT0}",
                f"v_mov_b32 v{vMx}, 0", f"v_mov_b32 v{vW}, 0xff7fffff", f"v_mov_b32 v{vW+1}, 0xff7fffff"]
        lds_ = [f"buffer_load_dwordx4 {v(base+4*j,4)}, v{vL16}, {WSR}, s{so} offen offset:{1024*j} sc1"
                for base, so in ((vQ, sQkv), (vKM, sQkv1), (vVM, sQkv2)) for j in range(3)]
        NI = P.get("h2_first", 6)
        issued = 0
        for x in lds_[:NI]:
            A(x); issued += 1
            for _ in range(4):
                if fill: A(fill.pop(0))
        for x in fill: A(x)
        def more(n=1):
            nonlocal issued
            for _ in range(n):
                if issued < len(lds_):
                    A(lds_[issued]); issued += 1
        def need(i): A(f"s_waitcnt vmcnt({issued - 1 - i})")
        def vslot():
            nonlocal issued
            if len(vpos) < NVC and NVC > 3:
                e = vcrit[len(vpos)]
                xload(aVX, e[0], e[1], (sXv, sXv1, sXv2))
                vpos[e] = issued; issued += 1
            else: A("s_nop 0")
        NVC = P["nvc"]
        vall = [(t, ks) for ks in range(6) for t in range(2)]
        vcrit = vall[:NVC]
        vpos = {}
        xoq = [f"buffer_store_dwordx4 {v(vXOUT,4)}, v{vL16}, {WSR}, s{sSt1} offen sc1" if not P.get("x_noxout") else f"buffer_store_dword v{vXOUT}, v{vFlagO}, {WSR}, s{sMark} offen offset:64"]
        xo_after = [xoq.pop(0)] if P["xo_pos"] == 1 else []
        def vmore():
            nonlocal issued
            if xoq:
                A(xoq.pop(0)); issued += 1
            elif len(vpos) < NVC:
                e = vcrit[len(vpos)]
                xload(aVX, e[0], e[1], (sXv, sXv1, sXv2))
                vpos[e] = issued; issued += 1
        def chk(r0): return f"v_max3_u32 v{vMx}, v{r0}, v{r0+1}, v{vMx}"
        DPP = "row_ror:8 row_mask:0xf bank_mask:"
        for j in range(3):
            need(j)
            if j == 0: fstamp(A, 1, 252)
            k = 0
            for t in range(2):
                for pr in range(2):
                    acc = vS + 4 * (2 * t + pr)
                    cc = "0" if j == 0 else v(acc, 4)
                    A(f"v_mfma_f32_16x16x32_bf16 {v(acc,4)}, {a(aKX+4*(6*t+2*j+pr),4)}, {v(vQ+4*j,4)}, {cc}")
                    if k < 2: A(chk(vQ + 4 * j + 2 * k))
                    if k == 2: more()
                    k += 1
        more(99)
        smf = [f"v_smfmac_f32_16x16x64_bf16 {v(vVA+4*ct,4)}, {v(vVM+4*j,4)}, {a(24*ct+8*j,8)}, v{vIdx}" for j in range(3) for ct in range(4)]
        chks = [chk(vVM + 2 * i) for i in range(6)]
        vals = [vS + r for r in range(4)] + [vW, vW + 1]
        vm, vt2 = vT, vT + 1
        xa = [f"v_add_f32_dpp v{vS+r}, v{vS+4+r}, v{vS+r} {DPP}0xf" for r in range(4)] + [f"v_add_f32_dpp v{vS+r}, v{vS+8+r}, v{vS+12+r} {DPP}0xc" for r in range(4)]
        def smm(j):
            need(3 + j)
            A(f"v_mfma_f32_16x16x32_bf16 {v(vSM,4)}, {v(vKM+4*j,4)}, {v(vQ+4*j,4)}, {'0' if j == 0 else v(vSM,4)}")
            A(chk(vKM + 4 * j)); A(chk(vKM + 4 * j + 2))
        smm(0); smm(1)
        for x in xa[:4]: A(x)
        smm(2)
        fstamp(A, 2, 252)
        A(f"v_cmp_eq_u32 vcc, -1, v{vMx}")
        for x in xa[4:]: A(x)
        A(f"v_max3_f32 v{vm}, v{vals[0]}, v{vals[1]}, v{vals[2]}")
        A(f"v_permlane32_swap_b32 v{vSM}, v{vSM+1}")
        A(f"v_permlane32_swap_b32 v{vSM+2}, v{vSM+3}")
        need(6)
        fstamp(A, 3, 252)
        A(smf[0])
        A(f"v_add_f32_dpp v{vW}, v{vSM+1}, v{vSM} {DPP}0x3")
        A(f"v_add_f32_dpp v{vW+1}, v{vSM+3}, v{vSM+2} {DPP}0x3")
        A(smf[1])
        A(f"v_max3_f32 v{vm}, v{vals[3]}, v{vals[4]}, v{vm}")
        A(f"v_max_f32 v{vm}, v{vals[5]}, v{vm}")
        A(smf[2])
        A(f"s_cbranch_vccnz {Lretry}{sfx}")
        A(f"v_max_f32_dpp v{vm}, v{vm}, v{vm} {DPP}0xf")
        A(f"v_mov_b32 v{vt2}, v{vm}")
        hint = f"buffer_store_dword v{vMark}, v{vGhO}, {WSR}, s{sGh} offen sc1"
        A(smf[3])
        if P["gh"] == 1: A(hint); issued += 1
        else: vslot()
        A(f"v_permlane32_swap_b32 v{vm}, v{vt2}")
        A(f"v_max_f32 v{vm}, v{vm}, v{vt2}")
        A(f"v_mov_b32 v{vt2}, v{vm}")
        need(7)
        A(smf[4])
        A(f"v_permlane16_swap_b32 v{vm}, v{vt2}")
        A(f"v_max_f32 v{vm}, v{vm}, v{vt2}")
        A(smf[5])
        A(f"v_mul_f32 v{vm}, s{sC}, v{vm}")
        fm = [f"v_fma_f32 v{x}, v{x}, s{sC}, -v{vm}" for x in vals]
        ex = [f"v_exp_f32 v{x}, v{x}" for x in vals]
        A(fm[0])
        A(smf[6]); A(fm[1]); A(fm[2])
        A(smf[7]); A(fm[3]); need(8)
        if P["xo_pos"] == 2: vmore()
        if P["gh"] == 2: A(hint); issued += 1
        A(smf[8]); A(ex[0])
        A(smf[9]); A(ex[1])
        A(smf[10]); A(ex[2])
        A(smf[11]); A(ex[3])
        if P["gh"] == 3: A(hint); issued += 1
        A(f"v_cvt_pk_bf16_f32 v{vPb}, v{vals[0]}, v{vals[1]}")
        A(f"v_cvt_pk_bf16_f32 v{vPb+1}, v{vals[2]}, v{vals[3]}")
        A(fm[4])
        A(f"v_mov_b32_dpp v{vPb+2}, v{vPb} {DPP}0xf")
        A(f"v_mov_b32_dpp v{vPb+3}, v{vPb+1} {DPP}0xf")
        A(fm[5]); A(ex[4])
        def fin32(ct): A(f"v_mfma_f32_16x16x32_bf16 {v(vF+4*ct,4)}, {v(voxc+4*ct,4)}, {v(vPb,4)}, 0")
        def fin16(ct): A(f"v_mfma_f32_16x16x16_bf16 {v(vF+4*ct,4)}, {v(vVOM+2*ct,2)}, {v(vPb+4,2)}, {v(vF+4*ct,4)}")
        def cvom(ct):
            A(f"v_cvt_pk_bf16_f32 v{vVOM+2*ct}, v{vVA+4*ct}, v{vVA+4*ct+2}")
            A(f"v_cvt_pk_bf16_f32 v{vVOM+2*ct+1}, v{vVA+4*ct+1}, v{vVA+4*ct+3}")
        def slot():
            if xoq or len(vpos) < NVC: vmore()
            else: A("s_nop 0")
        fin32(0); A(ex[5])
        A(f"v_mfma_f32_16x16x32_bf16 {v(vDen,4)}, {v(vOne32,4)}, {v(vPb,4)}, 0")
        cvom(0)
        fin32(2)
        A(f"v_cvt_pk_bf16_f32 v{vPb+4}, v{vals[4]}, v{vals[5]}")
        A(f"v_mov_b32 v{vPb+5}, v{vPb+4}")
        fin32(1); cvom(2)
        fin32(3)
        A(f"v_permlane32_swap_b32 v{vPb+4}, v{vPb+5}")
        cvom(1)
        A(f"v_mfma_f32_16x16x16_bf16 {v(vDen,4)}, {v(vOne16,2)}, {v(vPb+4,2)}, {v(vDen,4)}")
        cvom(3)
        fin16(0); slot()
        fin16(2); slot(); slot()
        fin16(1)
        A(f"v_rcp_f32 v{vT+4}, v{vDen}")
        slot()
        fin16(3)
        fstamp(A, 4, 252)
        fstamp(A, 5, 252)
        A(f"v_mov_b32_dpp v{vT+4}, v{vT+4} {DPP}0xc")
        A(f"v_cmp_u_f32 vcc, v{vF}, v{vF}")
        Lvs, Lvb = A.newlabel("vslow"), A.newlabel("vback")
        for pc in range(2):
            for r in range(4):
                A(f"v_mul_f32 v{vF+4*pc+r}, v{vF+4*pc+r}, v{vT+4}")
            for r in range(4):
                A(f"v_mul_f32_dpp v{vF+4*pc+r}, v{vF+4*(pc+2)+r}, v{vT+4} row_ror:8 row_mask:0xf bank_mask:0xc")
            if pc == 0:
                A(f"s_cbranch_vccnz {Lvs}")
                A.label(Lvb)
            A(f"ds_write_b128 v{vRedW}, {v(vF+4*pc,4)} offset:{1024*pc}")
        xo_late = list(xoq)
        assert len(vpos) == NVC
        mark = f"buffer_store_dword v{vMark}, v{vFlagO}, {WSR}, s{sMark} offen"
        if P["mk_pos"] == 0: A(mark)
        fstamp(A, 6, 252)
        A("s_waitcnt lgkmcnt(0)")
        A("s_barrier")
        fstamp(A, 7, 252)
        if P["prof"] in (3, 5): A("s_waitcnt lgkmcnt(0)")
        for h in range(4):
            A(f"ds_read_b128 {v(vF+4*h,4)}, v{vRedR} offset:{2048*h}")
        if P["mk_pos"] == 1: A(mark)
        A("s_waitcnt lgkmcnt(2)")
        A(f"v_pk_add_f32 {v(vF,2)}, {v(vF,2)}, {v(vF+4,2)}")
        A(f"v_pk_add_f32 {v(vF+2,2)}, {v(vF+2,2)}, {v(vF+6,2)}")
        A("s_waitcnt lgkmcnt(0)")
        A(f"v_pk_add_f32 {v(vF+8,2)}, {v(vF+8,2)}, {v(vF+12,2)}")
        A(f"v_pk_add_f32 {v(vF+10,2)}, {v(vF+10,2)}, {v(vF+14,2)}")
        A(f"v_pk_add_f32 {v(vF,2)}, {v(vF,2)}, {v(vF+8,2)}")
        A(f"v_pk_add_f32 {v(vF+2,2)}, {v(vF+2,2)}, {v(vF+10,2)}")
        A(f"v_cvt_pk_bf16_f32 v{vF}, v{vF}, v{vF+1}")
        A(f"v_cvt_pk_bf16_f32 v{vF+1}, v{vF+2}, v{vF+3}")
        A(f"buffer_store_dwordx2 {v(vF,2)}, v{vPartO}, {WSR}, s{sPartW} offen sc1")
        if P["mk_pos"] == 2: A(mark)
        issued += 2
        for x in xo_after: A(x); issued += 1
        stamp(A, 1, 252)
        fstamp(A, 8, 252)
        A.label(Lbub + sfx)
        sal = [f"s_add_u32 s{sT2}, s{sXk}, 12288",
               f"s_add_u32 s{sXk1}, s{sXk}, {12288 + 4096}",
               f"s_add_u32 s{sXk2}, s{sXk}, {12288 + 8192}",
               f"s_add_u32 s{sXk}, s{sXk}, {XR_SLOT}",
               f"s_cmp_eq_u32 s{sXk}, s{sXrEnd}",
               f"s_cselect_b32 s{sXk}, s{sXrBase}, s{sXk}",
               f"s_and_b32 s{sT0}, s{sS}, 3",
               f"s_mul_i32 s{sPx}, s{sT0}, 12288",
               f"s_add_u32 s{sPx}, s{sPx}, s{sPxBase}",
               f"s_add_u32 s{sT0}, s{sS}, 1",
               f"s_and_b32 s{sT0}, s{sT0}, 3",
               f"s_mul_i32 s{sPartW}, s{sT0}, {PART_SLOT}",
               f"s_add_u32 s{sPartW}, s{sPartW}, s{sPartBase}",
               f"s_mul_i32 s{sQkv}, s{sT0}, 36864",
               f"s_add_u32 s{sQkv}, s{sQkv}, s{sQkvBase}",
               f"s_add_u32 s{sQkv1}, s{sQkv}, 3072",
               f"s_add_u32 s{sQkv2}, s{sQkv}, 6144",
               f"s_cmp_lt_i32 s{sS}, 1",
               f"s_cselect_b32 s{sSt1}, {OOB}, s{sXp}",
               f"s_cselect_b32 s{sT0}, 0, {XP_SEG if not P.get('x_ring') else 0}",
               f"s_add_u32 s{sXp}, s{sXp}, s{sT0}"]
        fstamp(A, 9, 252)
        def pxload():
            for i in range(3):
                A(f"buffer_load_dwordx4 {v(vPX+4*i,4)}, v{vL16}, {WSR}, s{sPx} offen offset:{1024*i} sc1")
        kq = [("k", t, ks) for ks in range(6) for t in range(2)]
        PP = P["ppos"]
        q = [("v",) + e for e in vall[NVC:]] + kq[:PP] + [("p", i) for i in range(3)] + kq[PP:]
        def nxt(n=1):
            nonlocal issued
            for _ in range(n):
                if not q: return
                e = q.pop(0)
                if e == ("p", 2): vpos["p"] = issued
                if e[0] == "v": vpos[e[1:]] = issued
                issued += 1
                if e[0] == "p":
                    A(f"buffer_load_dwordx4 {v(vPX+4*e[1],4)}, v{vL16}, {WSR}, s{sPx} offen offset:{1024*e[1]} sc1"); continue
                if P.get("x_nokv") and e[0] in "kv" : A(f"buffer_load_dword v{vT+7}, v{vFlagO}, {WSR}, 0 offen"); continue
                if P.get("x_noxout") and e[0] == "s" and e[1] in (1, 2): A(f"buffer_load_dword v{vT+7}, v{vFlagO}, {WSR}, 0 offen"); continue
                if e[0] == "k": xload(aKX, e[1], e[2], (sT2, sXk1, sXk2))
                elif e[0] == "v": xload(aVX, e[1], e[2], (sXv, sXv1, sXv2))
                elif e[1] == 0: A(f"buffer_store_dwordx2 {v(vPois,2)}, v{vPartO}, {WSR}, s{sSt0} offen sc1")
                elif e[1] == 1: A(f"buffer_store_dwordx4 {v(vXOUT,4)}, v{vL16}, {WSR}, s{sSt1} offen {XOF[P.get('x_fl', 0)]}")
                elif e[1] == 2: A(f"buffer_store_dwordx4 {v(vXOUT+4,4)}, v{vL16}, {WSR}, s{sSt2} offen {XOF[P.get('x_fl', 0)]}")
                else: A(f"buffer_store_dword v{vXfv}, v{vFlagO}, {WSR}, s{sSt3} offen sc1")
        xo = lambda i: (vS + 4 * i) if i < 4 else (vF + 4 * (i - 4))
        xr = lambda qt, h: vQ + 16 * qt + 4 * h
        def xrow_mfma(vox, vom):
            return ([f"v_mfma_f32_16x16x32_bf16 {v(xo(2*ct+qt),4)}, {v(vox+4*ct,4)}, {v(vPX+4*qt,4)}, 0" for ct in range(4) for qt in range(2)] +
                    [f"v_mfma_f32_16x16x16_bf16 {v(xo(2*ct+qt),4)}, {v(vom+2*ct,2)}, {v(vPX+8+2*qt,2)}, {v(xo(2*ct+qt),4)}" for ct in range(4) for qt in range(2)])
        xw = [f"ds_write_b128 v{vRed2W}, {v(xo(i),4)} offset:{1024*i}" for i in range(8)]
        xrd = [f"ds_read_b128 {v(xr(qt,h),4)}, v{vRed2R} offset:{8192*h+1024*qt}" for qt in range(2) for h in range(4)]
        def xadd(qt):
            b = xr(qt, 0)
            return ([f"v_add_f32 v{b+r}, v{b+r}, v{b+4+r}" for r in range(4)] + [f"v_add_f32 v{b+8+r}, v{b+8+r}, v{b+12+r}" for r in range(4)] +
                    [f"v_add_f32 v{b+r}, v{b+r}, v{b+8+r}" for r in range(4)] +
                    [f"v_cvt_pk_bf16_f32 v{vXOUT+2*qt+h}, v{b+2*h}, v{b+2*h+1}" for h in range(2)])
        mf = [(x, None) for x in xrow_mfma(voxn, vomo)]
        for ks in range(6):
            for t in range(2):
                for ct in range(4):
                    acc = vXA + 4 * (4 * t + ct)
                    cc = "0" if ks == 0 else v(acc, 4)
                    mf.append((f"v_mfma_f32_16x16x32_bf16 {v(acc,4)}, {a(aVX+4*(6*t+ks),4)}, {a(24*ct+4*ks,4)}, {cc}", (t, ks) if ct == 0 else None))
        ad = xadd(0) + xadd(1)
        sideq = [(17 + 2 * i, xw[i]) for i in range(8)] + [(34, "s_waitcnt lgkmcnt(0)"), (34, "s_barrier")]
        sideq += [(35, x) for x in xrd] + [(44, "s_waitcnt lgkmcnt(0)")] + [(44, x) for x in ad]
        for n, (x, vf) in enumerate(mf):
            A(x)
            room = 2
            nvf = mf[n + 1][1] if n + 1 < len(mf) else None
            if nvf in vpos: room -= 1
            if n % P["ldev"] == 0: nxt(); room -= 1
            while room and sideq and sideq[0][0] <= n:
                A(sideq.pop(0)[1]); room -= 1
            while room and sal:
                A(sal.pop(0)); room -= 1
            if nvf in vpos: need(vpos[nvf])
        for _, x in sideq: A(x)
        assert not sal
        fstamp(A, 10, 252)
        nxt(2)
        A(f"s_add_u32 s{sXv2}, s{sXk}, {24576 + 8192}")
        A(f"s_add_u32 s{sXv1}, s{sXk}, {24576 + 4096}")
        A(f"s_add_u32 s{sXv}, s{sXk}, 24576")
        A.nop(1)
        for ct in range(4):
            for t in range(2):
                for h in range(2):
                    src = vXA + 4 * (4 * t + ct) + 2 * h
                    A(f"v_cvt_pk_bf16_f32 v{voxn+4*ct+2*t+h}, v{src}, v{src+1}")
            nxt()
        nxt(99)
        stamp(A, 2, 252)
        fstamp(A, 11, 252)
        need(vpos["p"])
        A(f"s_cmp_lt_i32 s{sS}, 0")
        A(f"s_cbranch_scc1 {Lnox}{sfx}")
        Lpx, Lpxr = A.newlabel("px"), A.newlabel("pxr")
        A.label(Lpx)
        A(f"v_max3_u32 v{vMx}, v{vPX}, v{vPX+1}, v{vPX+2}")
        for i in range(3, 11, 2): A(f"v_max3_u32 v{vMx}, v{vPX+i}, v{vPX+i+1}, v{vMx}")
        A(f"v_max_u32 v{vMx}, v{vPX+11}, v{vMx}")
        A(f"v_cmp_eq_u32 vcc, -1, v{vMx}")
        A(f"s_cbranch_vccnz {Lpxr}")
        stamp(A, 3, 252)
        fstamp(A, 12, 252)
        fin_parts[par] = (xrow_mfma(voxc, vomc), xrow_mfma(voxn, vomo), xw, xrd, ad, smf, pxload, vomo)
        A.label(Lnox + sfx)
        stamp(A, 4, 252)
        if not P.get("x_split"): fstamp(A, 13, 252)
        fstamp_collect(A, 14, 252)
        stamp_flush(A, 252, 253)
        A(f"s_add_u32 s{sS}, s{sS}, 1")
        A(f"s_cmp_lg_u32 s{sS}, {P['nseg'] - 1}")
        A(f"s_cbranch_scc1 L_s2_top_{1-par}")
        A("s_branch L_s2_fin")
        A.label(Lvs)
        A(f"v_mov_b32 v{vMx}, 0")
        for x in chks: A(x)
        A(f"v_cmp_eq_u32 vcc, -1, v{vMx}")
        A(f"s_cbranch_vccz {Lvb}")
        A.label(Lretry + sfx)
        budget_check(A, 6)
        A(f"s_branch {Latt}{sfx}")
        A.label(Lpxr)
        budget_check(A, 7)
        pxload()
        A("s_waitcnt vmcnt(0)")
        A(f"s_branch {Lpx}")
    A.label("L_s2_fin")
    xmA, xmB, xw, xrd, ad, smf, pxload, vomL = fin_parts[(P["nseg"] - 2) & 1]
    def xout():
        A(f"buffer_store_dwordx4 {v(vXOUT,4)}, v{vL16}, {WSR}, s{sSt1} offen sc1")
        A(f"s_add_u32 s{sSt1}, s{sSt1}, {XP_SEG}")
    def flag(val):
        A(f"v_mov_b32 v{vXfv}, {val}")
        A(f"buffer_store_dword v{vXfv}, v{vFlagO}, {WSR}, s{sXpF} offen sc1")
    def xrows(xm):
        for x in xm: A(x)
        A("s_barrier")
        for x in xw: A(x)
        A("s_waitcnt lgkmcnt(0)")
        A("s_barrier")
        for x in xrd: A(x)
        A("s_waitcnt lgkmcnt(0)")
        for x in ad: A(x)
        xout()
    xout()
    flag(P["nseg"] - 3)
    xrows(xmA)
    A(f"s_and_b32 s{sT0}, s{sS}, 3")
    A(f"s_mul_i32 s{sPx}, s{sT0}, 12288")
    A(f"s_add_u32 s{sPx}, s{sPx}, s{sPxBase}")
    def spin(load, base, code):
        L = A.newlabel("sp")
        A.label(L)
        load()
        budget_check(A, code)
        A("s_waitcnt vmcnt(0)")
        A(f"v_max3_u32 v{vMx}, v{base}, v{base+1}, v{base+2}")
        for i in range(3, 11, 2): A(f"v_max3_u32 v{vMx}, v{base+i}, v{base+i+1}, v{vMx}")
        A(f"v_max_u32 v{vMx}, v{base+11}, v{vMx}")
        A(f"v_cmp_eq_u32 vcc, -1, v{vMx}")
        A(f"s_cbranch_vccnz {L}")
    def vmload():
        for j in range(3):
            A(f"buffer_load_dwordx4 {v(vVM+4*j,4)}, v{vL16}, {WSR}, s{sQkv2} offen offset:{1024*j} sc1")
    for r in range(16): A(f"v_mov_b32 v{vVA+r}, 0")
    spin(vmload, vVM, 6)
    flag(P["nseg"] - 1)
    for x in smf: A(x)
    A.nop(8)
    for ct in range(4):
        A(f"v_cvt_pk_bf16_f32 v{vomL+2*ct}, v{vVA+4*ct}, v{vVA+4*ct+2}")
        A(f"v_cvt_pk_bf16_f32 v{vomL+2*ct+1}, v{vVA+4*ct+1}, v{vVA+4*ct+3}")
    spin(pxload, vPX, 7)
    xrows(xmB)
    A("s_waitcnt vmcnt(0)")
    flag(P["nseg"])
    ostamp(A, 0, 2)
    A("s_branch L_end")

def gen_xs(A):
    sHH = 30
    sQkv, sQkvBase, sXq, sXrBase, sXrEnd, sPx, sPxP, sPxBase, sXfl, sC, sNeed = 31, 32, 33, 34, 35, 36, 37, 38, 39, 40, 41
    sXa = 42
    sMask = 48
    sPf, sMk1, sQT = 64, 65, 66
    vPf = 140
    vL16, vKmO, vL8, vXflO, vNeg, vProbe = 1, 2, 3, 4, 5, 6
    vPois = 8
    vT = 12
    vFl, vMx = 20, 21
    vQ, vKX, vKM = 24, 48, 96
    vS = 120
    vPb = 132
    c = (192 ** -0.5) * math.log2(math.e)
    A.label("L_xs")
    A("s_setprio 3")
    A(f"s_sub_u32 s{sHH}, s{sR}, 28")
    A(f"s_lshl_b32 s{sHH}, s{sHH}, 1")
    A(f"s_lshr_b32 s{sT0}, s{sW}, 1")
    A(f"s_add_u32 s{sHH}, s{sHH}, s{sT0}")
    A(f"s_and_b32 s{sQT}, s{sW}, 1")
    A(f"v_lshlrev_b32 v{vL16}, 4, v0")
    A(f"v_lshlrev_b32 v{vL8}, 3, v0")
    A(f"v_and_b32 v{vKmO}, 0x37, v0")
    A(f"v_lshlrev_b32 v{vKmO}, 4, v{vKmO}")
    A(f"v_min_u32 v{vXflO}, 11, v0")
    A(f"v_lshlrev_b32 v{vXflO}, 2, v{vXflO}")
    A(f"v_min_u32 v{vProbe}, 17, v0")
    A(f"v_lshlrev_b32 v{vProbe}, 2, v{vProbe}")
    A(f"s_lshl_b32 s{sMk1}, s{sG}, 7")
    A(f"s_add_u32 s{sMk1}, s{sMk1}, {S1MARK}")
    for r in range(4): A(f"v_mov_b32 v{vPois+r}, -1")
    A(f"v_mov_b32 v{vNeg}, {f2u(-1e9 * 192 ** 0.5):#x}")
    A(f"v_and_b32 v{vT}, 15, v0")
    A(f"s_lshl_b32 s{sT0}, s{sQT}, 4")
    A(f"v_add_u32 v{vT}, s{sT0}, v{vT}")
    A(f"v_lshrrev_b32 v{vT+1}, 4, v0")
    A(f"v_lshlrev_b32 v{vT+1}, 2, v{vT+1}")
    for t in range(2):
        for r in range(4):
            A(f"v_add_u32 v{vT+2}, {16*t+r}, v{vT+1}")
            A(f"v_cmp_le_u32 s[{sMask+2*(4*t+r)}:{sMask+2*(4*t+r)+1}], v{vT+2}, v{vT}")
    A(f"s_mul_i32 s{sQkvBase}, s{sG}, 147456")
    A(f"s_mul_i32 s{sT0}, s{sHH}, 9216")
    A(f"s_add_u32 s{sQkvBase}, s{sQkvBase}, s{sT0}")
    A(f"s_add_u32 s{sQkvBase}, s{sQkvBase}, {QKVR + 3072}")
    A(f"s_mul_i32 s{sXrBase}, s{sG}, {XR_G}")
    A(f"s_mul_i32 s{sT0}, s{sHH}, {XR_HEAD}")
    A(f"s_add_u32 s{sXrBase}, s{sXrBase}, s{sT0}")
    A(f"s_add_u32 s{sXrBase}, s{sXrBase}, {XR}")
    A(f"s_add_u32 s{sXrEnd}, s{sXrBase}, {XR_G}")
    A(f"s_mov_b32 s{sXq}, s{sXrBase}")
    A(f"s_mul_i32 s{sPxBase}, s{sG}, 49152")
    A(f"s_mul_i32 s{sT0}, s{sHH}, 3072")
    A(f"s_add_u32 s{sPxBase}, s{sPxBase}, s{sT0}")
    A(f"s_lshl_b32 s{sT0}, s{sQT}, 10")
    A(f"s_add_u32 s{sPxBase}, s{sPxBase}, s{sT0}")
    A(f"s_mul_i32 s{sT0}, s{sQT}, 1016")
    A(f"s_sub_u32 s{sT0}, 2048, s{sT0}")
    A(f"v_add_u32 v{vL8}, s{sT0}, v{vL16}")
    A(f"s_add_u32 s{sPxBase}, s{sPxBase}, {PXR}")
    A(f"s_lshl_b32 s{sXfl}, s{sG}, 9")
    A(f"s_mul_i32 s{sT0}, s{sHH}, 72")
    A(f"s_add_u32 s{sXfl}, s{sXfl}, s{sT0}")
    A(f"s_add_u32 s{sXfl}, s{sXfl}, {XFLAG}")
    A(f"s_mov_b32 s{sC}, {f2u(c):#x}")
    A(f"s_mov_b32 s{sS}, 0")
    A(f"s_lshl_b32 s{sPf}, s{sHH}, 1")
    A(f"s_add_u32 s{sPf}, s{sPf}, s{sQT}")
    A(f"s_lshl_b32 s{sPf}, s{sPf}, 3")
    A(f"s_add_u32 s{sPf}, s{sPf}, s{sG}")
    A(f"s_lshl_b32 s{sPf}, s{sPf}, 12")
    A(f"s_add_u32 s{sPf}, s{sPf}, 81920")
    for k in range(4):
        A(f"buffer_load_dwordx4 {v(vPf,4)}, v{vL16}, s[{sX}:{sX+3}], s{sPf} offen offset:{1024*k}")
    A(f"s_lshl_b32 s{sPf}, s{sHH}, 1")
    A(f"s_add_u32 s{sPf}, s{sPf}, s{sQT}")
    A(f"s_mul_i32 s{sPf}, s{sPf}, 5120")
    gen_locality(A, "L_xs_loc", "L_xs_glb", vT)
    for mode in ("loc", "glb"):
        sc = "" if mode == "loc" else " sc1"
        A.label(f"L_xs_{mode}")
        Lf, Lk = A.newlabel("xsf"), A.newlabel("xsk")
        fstamp(A, 5, 250)
        A(f"s_add_u32 s{sNeed}, s{sS}, 1")
        A.label(Lf)
        A(f"buffer_load_dword v{vFl}, v{vXflO}, {WSR}, s{sXfl} offen sc1")
        budget_check(A, 8)
        A("s_waitcnt vmcnt(0)")
        A(f"v_cmp_gt_u32 vcc, s{sNeed}, v{vFl}")
        A(f"s_cbranch_vccnz {Lf}")
        fstamp(A, 6, 250)
        A(f"s_lshl_b32 s{sT0}, s{sQT}, 10")
        A(f"s_add_u32 s{sXa}, s{sXq}, s{sT0}")
        A(f"s_add_u32 s{sXa+1}, s{sXa}, 4096")
        A(f"s_add_u32 s{sXa+2}, s{sXa}, 8192")
        A(f"s_add_u32 s{sXa+3}, s{sXq}, 12288")
        A(f"s_add_u32 s{sXa+4}, s{sXq}, {12288+4096}")
        A(f"s_add_u32 s{sXa+5}, s{sXq}, {12288+8192}")
        for ks in range(6):
            A(f"buffer_load_dwordx4 {v(vQ+4*ks,4)}, v{vL16}, {WSR}, s{sXa+ks//2} offen offset:{2048*(ks&1)} sc1")
            for t in range(2):
                A(f"buffer_load_dwordx4 {v(vKX+4*(6*t+ks),4)}, v{vL16}, {WSR}, s{sXa+3+ks//2} offen offset:{2048*(ks&1)+1024*t} sc1")
        A(f"s_add_u32 s{sXq}, s{sXq}, {XR_SLOT}")
        A(f"s_cmp_eq_u32 s{sXq}, s{sXrEnd}")
        A(f"s_cselect_b32 s{sXq}, s{sXrBase}, s{sXq}")
        A(f"s_and_b32 s{sT0}, s{sS}, 3")
        A(f"s_mul_i32 s{sQkv}, s{sT0}, 36864")
        A(f"s_add_u32 s{sQkv}, s{sQkv}, s{sQkvBase}")
        A(f"s_mul_i32 s{sPx}, s{sT0}, 12288")
        A(f"s_add_u32 s{sPx}, s{sPx}, s{sPxBase}")
        A(f"s_add_u32 s{sT0}, s{sS}, 2")
        A(f"s_and_b32 s{sT0}, s{sT0}, 3")
        A(f"s_mul_i32 s{sPxP}, s{sT0}, 12288")
        A(f"s_add_u32 s{sPxP}, s{sPxP}, s{sPxBase}")
        for ks in range(6):
            A(f"s_waitcnt vmcnt({15 - 3 * ks})")
            for t in range(2):
                cc = "0" if ks == 0 else v(vS + 4 * t, 4)
                A(f"v_mfma_f32_16x16x32_bf16 {v(vS+4*t,4)}, {v(vKX+4*(6*t+ks),4)}, {v(vQ+4*ks,4)}, {cc}")
        fstamp(A, 7, 250)
        A.label(Lk)
        if P["xs_slp"]: A(f"s_sleep {P['xs_slp']}")
        A(f"buffer_load_dword v{vMx}, v{vProbe}, {WSR}, s{sMk1} offen{' offset:1024' if P['mk2'] else ''} sc1")
        budget_check(A, 9)
        A("s_waitcnt vmcnt(0)")
        A(f"v_cmp_ge_i32 vcc, s{sS}, v{vMx}")
        A(f"s_cbranch_vccnz {Lk}")
        for ks in range(6):
            A(f"buffer_load_dwordx4 {v(vKM+4*ks,4)}, v{vKmO}, {WSR}, s{sQkv} offen offset:{1024*(ks>>1)+128*(ks&1)} sc1")
        A("s_waitcnt vmcnt(0)")
        A(f"v_max3_u32 v{vMx}, v{vKM}, v{vKM+1}, v{vKM+2}")
        for i in range(3, 23, 2): A(f"v_max3_u32 v{vMx}, v{vKM+i}, v{vKM+i+1}, v{vMx}")
        A(f"v_max_u32 v{vMx}, v{vKM+23}, v{vMx}")
        A(f"v_cmp_eq_u32 vcc, -1, v{vMx}")
        A(f"s_cbranch_vccnz {Lk}")
        fstamp(A, 8, 250)
        for ks in range(6):
            cc = "0" if ks == 0 else v(vS + 8, 4)
            A(f"v_mfma_f32_16x16x32_bf16 {v(vS+8,4)}, {v(vKM+4*ks,4)}, {v(vQ+4*ks,4)}, {cc}")
        A(f"buffer_store_dwordx4 {v(vPois,4)}, v{vL16}, {WSR}, s{sPxP} offen{sc}")
        A(f"buffer_store_dwordx2 {v(vPois,2)}, v{vL8}, {WSR}, s{sPxP} offen{sc}")
        for i in range(8):
            A(f"v_cndmask_b32 v{vS+i}, v{vNeg}, v{vS+i}, s[{sMask+2*i}:{sMask+2*i+1}]")
        vm, vt2 = vT, vT + 1
        A(f"v_max3_f32 v{vm}, v{vS}, v{vS+1}, v{vS+2}")
        for i in range(3, 11, 2): A(f"v_max3_f32 v{vm}, v{vS+i}, v{vS+i+1}, v{vm}")
        A(f"v_max_f32 v{vm}, v{vS+11}, v{vm}")
        for sw in ("32", "16"):
            A(f"v_mov_b32 v{vt2}, v{vm}")
            A("s_nop 1")
            A(f"v_permlane{sw}_swap_b32 v{vm}, v{vt2}")
            A(f"v_max_f32 v{vm}, v{vm}, v{vt2}")
        A(f"v_mul_f32 v{vm}, s{sC}, v{vm}")
        for i in range(12): A(f"v_fma_f32 v{vS+i}, v{vS+i}, s{sC}, -v{vm}")
        for i in range(12): A(f"v_exp_f32 v{vS+i}, v{vS+i}")
        A(f"v_add_f32 v{vT+2}, v{vS+8}, v{vS+9}")
        A(f"v_add_f32 v{vT+3}, v{vS}, v{vS+1}")
        A(f"v_add_f32 v{vT+2}, v{vT+2}, v{vS+10}")
        A(f"v_add_f32 v{vT+2}, v{vT+2}, v{vS+11}")
        for i in range(2, 8): A(f"v_add_f32 v{vT+3}, v{vT+3}, v{vS+i}")
        A(f"v_fma_f32 v{vm}, v{vT+2}, 0.5, v{vT+3}")
        for sw in ("32", "16"):
            A(f"v_mov_b32 v{vt2}, v{vm}")
            A("s_nop 1")
            A(f"v_permlane{sw}_swap_b32 v{vm}, v{vt2}")
            A(f"v_add_f32 v{vm}, v{vm}, v{vt2}")
        A(f"v_rcp_f32 v{vm}, v{vm}")
        A("s_nop 0")
        for i in range(12): A(f"v_mul_f32 v{vS+i}, v{vS+i}, v{vm}")
        for i in range(4): A(f"v_cvt_pk_bf16_f32 v{vPb+i}, v{vS+2*i}, v{vS+2*i+1}")
        for i in range(2): A(f"v_cvt_pk_bf16_f32 v{vPb+4+i}, v{vS+8+i}, v{vS+10+i}")
        A(f"buffer_store_dwordx4 {v(vPb,4)}, v{vL16}, {WSR}, s{sPx} offen{sc}")
        A(f"buffer_store_dwordx2 {v(vPb+4,2)}, v{vL8}, {WSR}, s{sPx} offen{sc}")
        fstamp(A, 9, 250)
        if P["prof"] in (3, 5):
            A("s_waitcnt lgkmcnt(0)")
            for i in range(5, 10): A(f"v_writelane_b32 v250, s{60+2*i}, {i}")
            stamp_flush(A)
        if P["xpf"]:
            A(f"s_add_u32 s{sT0}, s{sS}, {P['xpf']}")
            A(f"s_mul_i32 s{sT0}, s{sT0}, 40960")
            A(f"s_add_u32 s{sT0}, s{sT0}, s{sPf}")
            for i in range(4):
                A(f"buffer_load_dwordx4 {v(vPf,4)}, v{vL16}, s[{sX}:{sX+3}], s{sT0} offen offset:{1024*i}")
            A(f"s_add_u32 s{sT0}, s{sT0}, 4096")
            A(f"buffer_load_dwordx4 {v(vPf,4)}, v{vL16}, s[{sX}:{sX+3}], s{sT0} offen")
        A(f"s_add_u32 s{sS}, s{sS}, 1")
        A(f"s_cmp_lg_u32 s{sS}, {P['nseg']}")
        A(f"s_cbranch_scc1 L_xs_{mode}")
        A("s_branch L_end")

def gen_main(A):
    A(".p2align 8")
    A(f".type {NAME},@function")
    A.label(NAME)
    gen_common_prologue(A)
    A(f"s_cmp_lt_u32 s{sR}, 18")
    A("s_cbranch_scc1 L_s1")
    A(f"s_cmp_lt_u32 s{sR}, 28")
    A("s_cbranch_scc1 L_s2")
    A("s_branch L_init")
    A.label("L_fail")
    A(f"v_mov_b32 v1, s{sT3}")
    A(f"s_lshl_b32 s{sT3}, s{sT3}, 2")
    A(f"s_add_u32 s{sT3}, s{sT3}, {DBG_FAIL}")
    A(f"v_mov_b32 v2, s{sT3}")
    A(f"v_mov_b32 v1, s{sS}")
    A(f"v_add_u32 v1, 1000, v1")
    A(f"buffer_store_dword v1, v2, s[{sDBG}:{sDBG+3}], 0 offen")
    A.label("L_end")
    A("s_endpgm")
    gen_init(A)
    gen_s1(A)
    gen_s2(A)
    gen_xs(A)
    try:
        import gen_bg
        gen_bg.gen_bg(A, sys.modules[__name__])
        A.label("L_code_end")
    except ImportError:
        A.label("L_bg")
        A("s_endpgm")

HEADER = open("gated_mix__memory_aug_recurrent_mem_tr__ssm_conv_h3__prompt.s.ref").read().split("; Override launch")[0]

def kd(name, vgpr, acc, sgpr=96):
    return f""".amdhsa_kernel {name}
  .amdhsa_next_free_vgpr {vgpr}
  .amdhsa_next_free_sgpr {sgpr}
  .amdhsa_accum_offset {acc}
  .amdhsa_group_segment_fixed_size 0
  .amdhsa_kernarg_size 136
  .amdhsa_user_sgpr_count 2
  .amdhsa_user_sgpr_kernarg_segment_ptr 1
  .amdhsa_system_sgpr_workgroup_id_x 1
  .amdhsa_float_denorm_mode_32 3
.end_amdhsa_kernel
"""

def generate(**kw):
    P.update(kw)
    A = Asm()
    A('.amdgcn_target "amdgcn-amd-amdhsa--gfx950"')
    A(".text")
    A(f".globl {NAME}")
    gen_main(A)
    probs = check_hazards(A.lines)
    txt = HEADER
    txt += "; @launch grid=(256,1,1) block=(256,1,1) lds=163840\n"
    txt += A.text()
    txt += '.section .rodata,"a"\n.p2align 6\n' + kd(NAME, 512, 256)
    return txt, probs

if __name__ == "__main__":
    kw = {}
    out = "gated_mix__memory_aug_recurrent_mem_tr__ssm_conv_h3__prompt.s"
    for arg in sys.argv[1:]:
        if "=" in arg:
            k, val = arg.split("="); kw[k] = int(val)
        else:
            out = arg
    txt, probs = generate(**kw)
    open(out, "w").write(txt)
    print("wrote", out, len(txt), "bytes;", len(probs), "hazards")
```

```python
import math
from asmlib import v, a, s

def gen_bg(A, G):
    P, WSR = G.P, G.WSR
    sG, sR, sW, sS, sX = G.sG, G.sR, G.sW, G.sS, G.sX
    sT0, sT1, sT2, sT3 = G.sT0, G.sT1, G.sT2, G.sT3
    OOB = G.OOB
    budget_check, srd, f2u = G.budget_check, G.srd, G.f2u
    sWV, sCU, sLds, sI, sCh, sMaskHi = 30, 31, 32, 33, 34, 35
    sK, sV, sF, sAux = 36, 40, 44, 48
    sPk, sPv, sPsk, sPf, sPd, sPg, sPo = 52, 54, 56, 58, 60, 62, 64
    sD = 66
    sU, sSeg, sJ, sB0, sB1, sUe = 74, 75, 76, 77, 78, 79
    XS = f"s[{sX}:{sX+3}]"
    vL16, vFlagO = 1, 2
    vT = 4
    UP, CP = 4608, 4160
    FOFF = UP
    YOFF = FOFF
    LDSW = FOFF + 8 * CP
    def lo(d, x): A(f"v_lshlrev_b32 v{d}, 16, v{x}")
    def hi(d, x): A(f"v_and_b32 v{d}, s{sMaskHi}, v{x}")

    A.label("L_bg")
    A(f"s_sub_u32 s{sT0}, s{sR}, 30")
    A(f"s_lshl_b32 s{sT0}, s{sT0}, 3")
    A(f"s_add_u32 s{sT0}, s{sT0}, s{sG}")
    A(f"s_lshl_b32 s{sT0}, s{sT0}, 2")
    A(f"s_add_u32 s{sWV}, s{sT0}, s{sW}")
    A(f"s_mul_i32 s{sLds}, s{sW}, {LDSW}")
    A(f"s_load_dwordx4 s[{sPk}:{sPk+3}], s[0:1], 64")
    A(f"s_load_dwordx4 s[{sPsk}:{sPsk+3}], s[0:1], 80")
    A(f"s_load_dwordx4 s[{sPd}:{sPd+3}], s[0:1], 96")
    A(f"s_load_dwordx2 s[{sPo}:{sPo+1}], s[0:1], 112")
    A(f"s_mov_b32 s{sMaskHi}, 0xffff0000")
    A(f"s_mov_b32 s{sS}, 0")
    A(f"v_lshlrev_b32 v{vL16}, 4, v0")
    A(f"v_cmp_eq_u32 vcc, 0, v0")
    A(f"v_mov_b32 v{vT}, {OOB}")
    A("s_nop 0")
    A(f"v_cndmask_b32 v{vFlagO}, v{vT}, v0, vcc")
    A("s_waitcnt lgkmcnt(0)")
    G.gen_locality(A, None, None, vT)
    Lw0 = A.newlabel("bgw")
    A(f"s_lshl_b32 s{sT0}, s{sG}, 9")
    A(f"s_add_u32 s{sT0}, s{sT0}, {G.XFLAG}")
    A(f"v_lshlrev_b32 v{vT+1}, 2, v0")
    A.label(Lw0)
    A("s_sleep 16")
    A(f"buffer_load_dword v{vT}, v{vT+1}, {WSR}, s{sT0} offen sc1")
    budget_check(A, 12)
    A("s_waitcnt vmcnt(0)")
    A(f"v_cmp_eq_u32 vcc, 0, v{vT}")
    A(f"s_cbranch_vccnz {Lw0}")
    Lt, Ltd = A.newlabel("touch"), A.newlabel("touched")
    A(f"s_cmp_eq_u32 s{sR}, 31")
    A(f"s_cbranch_scc1 {Lt}")
    if P["near"]:
        Lnm = A.newlabel("nomeas")
        A(f"s_cmp_lg_u32 s{sW}, 0")
        A(f"s_cbranch_scc1 {Lnm}")
        A(f"s_lshl_b32 s{sT0}, s{sG}, 10")
        A(f"s_add_u32 s{sT0}, s{sT0}, {G.NEARP}")
        A(f"v_mov_b32 v5, s{sT0}")
        A("s_mov_b32 s86, -1")
        A("s_mov_b32 s87, -1")
        for i in range(P.get('nmeas', 14)):
            A("s_memtime s[82:83]")
            A("s_waitcnt lgkmcnt(0)")
            A(f"s_mov_b32 s{sT1}, {(i & 1) * 8192 + (i >> 1) * 128}")
            A(f"buffer_load_dword v6, v5, {WSR}, s{sT1} offen sc1")
            A("s_waitcnt vmcnt(0)")
            A("s_memtime s[84:85]")
            A("s_waitcnt lgkmcnt(0)")
            A("s_sub_u32 s84, s84, s82")
            if i >= 2: A(f"s_min_u32 s{86 + (i & 1)}, s{86 + (i & 1)}, s84")
        A("s_cmp_lt_u32 s87, s86")
        A(f"s_cselect_b32 s{sT1}, 2, 1")
        A(f"v_mov_b32 v6, s{sT1}")
        A(f"s_lshl_b32 s{sT0}, s{sG}, 2")
        A(f"s_add_u32 s{sT0}, s{sT0}, {G.DBG_NEAR}")
        A(f"v_mov_b32 v5, s{sT0}")
        A(f"buffer_store_dword v6, v5, s[{G.sDBG}:{G.sDBG+3}], 0 offen sc1")
        A.label(Lnm)
        A("s_barrier")
    A(f"s_branch {Ltd}")
    A.label(Lt)
    if P["touch"] == 3:
        A(f"s_lshl_b32 s{sT0}, s{sW}, 10")
        A(f"s_mul_i32 s{sT1}, s{sG}, {G.XR_G}")
        A(f"s_add_u32 s{sT0}, s{sT0}, s{sT1}")
        A(f"s_add_u32 s{sT0}, s{sT0}, {G.XR + G.XR_SLOT}")
        A(f"s_mov_b32 s{sI}, {3 * G.XR_SLOT // 4096}")
        Ll = A.newlabel("tl")
        A.label(Ll)
        A(f"buffer_load_dwordx4 {v(vT+4,4)}, v{vL16}, {WSR}, s{sT0} offen sc1")
        A(f"s_add_u32 s{sT0}, s{sT0}, 4096")
        A(f"s_sub_u32 s{sI}, s{sI}, 1")
        A(f"s_cmp_lg_u32 s{sI}, 0")
        A(f"s_cbranch_scc1 {Ll}")
        A("s_waitcnt vmcnt(0)")
    A.label(Ltd)
    for dst, src, size in ((sK, sPk, 2048 * 1280), (sV, sPv, 2048 * 1280), (sAux, sPg, 1280)):
        A(f"s_mov_b64 s[{dst}:{dst+1}], s[{src}:{src+1}]")
        srd(A, dst, size)

    if P.get("nobg") == 1:
        A("s_endpgm")
    for _ in range(P.get("x_bgdly", 0)): A("s_sleep 127")
    vGW, vXr, vAcc, vXo, vGo = 24, 64, 84, 85, 86
    A(f"v_and_b32 v{vT}, 15, v0")
    A(f"v_lshlrev_b32 v{vT}, 4, v{vT}")
    for i in range(5):
        A(f"buffer_load_dwordx4 {v(vXr+4*i,4)}, v{vT}, s[{sAux}:{sAux+3}], 0 offen offset:{256*i}")
    A(f"v_lshrrev_b32 v{vT+1}, 4, v0")
    A(f"v_mul_u32_u24 v{vXo}, 1280, v{vT+1}")
    A(f"v_add_u32 v{vXo}, v{vXo}, v{vT}")
    A(f"v_lshlrev_b32 v{vT+1}, 2, v{vT+1}")
    A(f"v_cmp_eq_u32 vcc, 0, v{vT}")
    A(f"v_mov_b32 v{vT+2}, {OOB}")
    A("s_nop 0")
    A(f"v_cndmask_b32 v{vGo}, v{vT+2}, v{vT+1}, vcc")
    A(f"s_mul_i32 s{sB0}, s{sWV}, 40960")
    A(f"s_lshl_b32 s{sB1}, s{sWV}, 7")
    A(f"s_add_u32 s{sB1}, s{sB1}, {G.GV}")
    A("s_waitcnt vmcnt(0)")
    for i in range(20):
        lo(vGW + 2 * i, vXr + i); hi(vGW + 2 * i + 1, vXr + i)
    A(f"s_mov_b32 s{sI}, 8")
    Lg = A.newlabel("gate")
    A.label(Lg)
    for i in range(5):
        A(f"buffer_load_dwordx4 {v(vXr+4*i,4)}, v{vXo}, {XS}, s{sB0} offen offset:{256*i}")
    A(f"v_mov_b32 v{vAcc}, 0")
    for i in range(20):
        if i % 4 == 0: A(f"s_waitcnt vmcnt({4 - i // 4})")
        lo(vT, vXr + i); hi(vT + 1, vXr + i)
        A(f"v_pk_mul_f32 {v(vT,2)}, {v(vT,2)}, {v(vGW+2*i,2)}")
        A(f"v_cvt_pk_bf16_f32 v{vT+2}, v{vT}, v{vT+1}")
        lo(vT, vT + 2); hi(vT + 1, vT + 2)
        A(f"v_add_f32 v{vAcc}, v{vAcc}, v{vT}")
        A(f"v_add_f32 v{vAcc}, v{vAcc}, v{vT+1}")
    for sh in (8, 4, 2, 1):
        A("s_nop 1")
        A(f"v_add_f32_dpp v{vAcc}, v{vAcc}, v{vAcc} row_ror:{sh} row_mask:0xf bank_mask:0xf")
    A(f"v_cvt_pk_bf16_f32 v{vAcc}, v{vAcc}, v{vAcc}")
    lo(vAcc, vAcc)
    A(f"v_mul_f32 v{vAcc}, {f2u(-math.log2(math.e)):#x}, v{vAcc}")
    A(f"v_exp_f32 v{vAcc}, v{vAcc}")
    A("s_nop 0")
    A(f"v_add_f32 v{vAcc}, 1.0, v{vAcc}")
    A(f"v_rcp_f32 v{vAcc}, v{vAcc}")
    A("s_nop 0")
    A(f"v_cvt_pk_bf16_f32 v{vAcc}, v{vAcc}, v{vAcc}")
    lo(vAcc, vAcc)
    A(f"buffer_store_dword v{vAcc}, v{vGo}, {WSR}, s{sB1} offen sc1")
    A(f"s_add_u32 s{sB0}, s{sB0}, 5120")
    A(f"s_add_u32 s{sB1}, s{sB1}, 16")
    A(f"s_sub_u32 s{sI}, s{sI}, 1")
    A(f"s_cmp_lg_u32 s{sI}, 0")
    A(f"s_cbranch_scc1 {Lg}")
    G.ostamp(A, 0, 1)
    def rnd(pair):
        A(f"v_cvt_pk_bf16_f32 v{vT+2}, v{pair}, v{pair+1}")
        lo(pair, vT + 2); hi(pair + 1, vT + 2)
    vL4, vSt, vLw, vLr = 20, 21, 22, 23
    vSK = 24
    vKH = 32
    vKR, vVR = 40, 76
    vKV = 108
    vO = 112
    vW = 144
    TP = 272
    A(f"v_lshlrev_b32 v{vL4}, 2, v0")
    A(f"v_lshrrev_b32 v{vSt}, 4, v0")
    A(f"v_lshlrev_b32 v{vSt}, 12, v{vSt}")
    A(f"v_and_b32 v{vT}, 15, v0")
    A(f"v_lshl_add_u32 v{vSt}, v{vT}, 4, v{vSt}")
    A(f"s_sub_u32 s{sT0}, 3, s{sW}")
    A(f"s_lshl_b32 s{sT0}, s{sT0}, 6")
    A(f"v_mul_u32_u24 v{vLw}, {2 * TP}, v0")
    A(f"v_add_u32 v{vLw}, s{sT0}, v{vLw}")
    A(f"v_lshrrev_b32 v{vLr}, 4, v0")
    A(f"v_mul_u32_u24 v{vLr}, {TP}, v{vLr}")
    A(f"v_lshl_add_u32 v{vLr}, v{vT}, 4, v{vLr}")
    A(f"s_mul_i32 s{sT0}, s{sW}, {32 * TP}")
    A(f"v_add_u32 v{vLr}, s{sT0}, v{vLr}")
    A(f"s_mov_b64 s[{sAux}:{sAux+1}], s[{sPsk}:{sPsk+1}]")
    srd(A, sAux, 5120)
    A(f"s_mul_i32 s{sB0}, s{sWV}, 40960")
    A(f"s_lshr_b32 s{sB1}, s{sWV}, 2")
    A(f"s_lshl_b32 s{sB1}, s{sB1}, 8")
    A(f"s_sub_u32 s{sB1}, {G.KVT + 1920 * 2}, s{sB1}")
    A(f"s_lshl_b32 s{sT0}, s{sW}, 17")
    A(f"s_add_u32 s{sB1}, s{sB1}, s{sT0}")
    A(f"s_mov_b32 s{sCh}, 0")
    A(f"s_sub_u32 s{sT0}, s{sB0}, {3 * 1280}")
    A(f"v_add_u32 v{vT+1}, s{sT0}, v{vL4}")
    def kload(i):
        if i < 3: A(f"buffer_load_dword v{vKR+i}, v{vT+1}, s[{sK}:{sK+3}], 0 offen offset:{1280*i}")
        else:
            A(f"s_add_u32 s{sT0}, s{sB0}, {1280 * (i - 3)}")
            A(f"buffer_load_dword v{vKR+i}, v{vL4}, s[{sK}:{sK+3}], s{sT0} offen")
            A(f"buffer_load_dword v{vVR+i-3}, v{vL4}, s[{sV}:{sV+3}], s{sT0} offen")
    A(f"s_mov_b32 s{sI}, 5")
    La = A.newlabel("kv")
    A.label(La)
    A(f"buffer_load_dwordx4 {v(vW,4)}, v{vL16}, s[{sAux}:{sAux+3}], s{sCh} offen")
    for i in range(19): kload(i)
    A("s_waitcnt vmcnt(32)")
    for c in range(2):
        for h in range(2):
            lo(vSK + 2 * (2 * h) + c, vW + 2 * c + h); hi(vSK + 2 * (2 * h + 1) + c, vW + 2 * c + h)
    for i in range(3):
        lo(vKH + 2 * (i + 1), vKR + i); hi(vKH + 2 * (i + 1) + 1, vKR + i)
    for i in range(32):
        if i < 16:
            kload(19 + i)
            A("s_waitcnt vmcnt(32)")
        else:
            A(f"s_waitcnt vmcnt({2 * (31 - i)})")
        kv = vKV + 2 * (i & 1)
        lo(vKH + 2 * (i & 3), vKR + 3 + i); hi(vKH + 2 * (i & 3) + 1, vKR + 3 + i)
        lo(kv, vVR + i); hi(kv + 1, vVR + i)
        acc, trm = vT + 4, vT + 6
        for m in (3, 2, 1, 0):
            d = acc if m == 3 else trm
            A(f"v_pk_mul_f32 {v(d,2)}, {v(vKH+2*((i-m)&3),2)}, {v(vSK+2*m,2)}")
            rnd(d)
            if m != 3:
                A(f"v_pk_add_f32 {v(acc,2)}, {v(acc,2)}, {v(trm,2)}")
                rnd(acc)
        A(f"v_pk_mul_f32 {v(kv,2)}, {v(acc,2)}, {v(kv,2)}")
        if i & 1:
            for c in range(2):
                A(f"v_cvt_pk_bf16_f32 v{vO+16*c+15-(i>>1)}, v{vKV+2+c}, v{vKV+c}")
    A("s_barrier")
    for c in range(2):
        for q in range(4):
            A(f"ds_write_b128 v{vLw}, {v(vO+16*c+4*q,4)} offset:{TP*c+16*q}")
    A("s_waitcnt lgkmcnt(0)")
    A("s_barrier")
    for m in range(8):
        A(f"ds_read_b128 {v(vO+4*m,4)}, v{vLr} offset:{4*TP*m}")
    for m in range(8):
        A(f"s_waitcnt lgkmcnt({7-m})")
        A(f"buffer_store_dwordx4 {v(vO+4*m,4)}, v{vSt}, {WSR}, s{sB1} offen sc1")
        A(f"s_add_u32 s{sB1}, s{sB1}, {16384 if m < 7 else 128 * 4096 - 7 * 16384}")
    A(f"s_add_u32 s{sB0}, s{sB0}, 256")
    A(f"v_add_u32 v{vT+1}, 256, v{vT+1}")
    A(f"s_add_u32 s{sCh}, s{sCh}, 1024")
    A(f"s_sub_u32 s{sI}, s{sI}, 1")
    A(f"s_cmp_lg_u32 s{sI}, 0")
    A(f"s_cbranch_scc1 {La}")
    A(f"s_lshl_b32 s{sT0}, s{sWV}, 2")
    A(f"s_add_u32 s{sT0}, s{sT0}, {G.GFLAG}")
    A(f"v_mov_b32 v{vT}, 1")
    A("s_waitcnt vmcnt(0)")
    A(f"buffer_store_dword v{vT}, v{vFlagO}, {WSR}, s{sT0} offen sc1")
    A("s_barrier")
    G.ostamp(A, 0, 5)
    vAo, vBo, vEo, vCo, vCw, vCo2, vYw, vYr = 20, 21, 22, 23, 24, 25, 26, 27
    vD, vAcc8, vBf = 28, 72, 120
    vE, vD1, vE1 = 144, 152, 160
    vUw, vDv, vFo, vU = 68, 69, 3, 104
    vFr = 120
    A(f"v_and_b32 v{vT}, 15, v0")
    A(f"v_lshrrev_b32 v{vT+1}, 4, v0")
    A(f"v_add_u32 v{vT+2}, 1, v{vT}")
    A(f"v_and_b32 v{vT+3}, 7, v{vT+2}")
    A(f"v_mul_u32_u24 v{vT+3}, {CP}, v{vT+3}")
    A(f"v_lshrrev_b32 v{vT+2}, 3, v{vT+2}")
    A(f"v_add_u32 v{vT+2}, v{vT+2}, v{vT+1}")
    A(f"v_lshl_add_u32 v{vAo}, v{vT+2}, 4, v{vT+3}")
    A(f"s_add_u32 s{sT0}, s{sLds}, {FOFF}")
    A(f"v_add_u32 v{vAo}, s{sT0}, v{vAo}")
    A(f"v_add_u32 v{vCw}, s{sT0}, v{vL16}")
    A(f"v_lshlrev_b32 v{vT+2}, 5, v{vT}")
    A(f"v_lshlrev_b32 v{vT+3}, 4, v{vT+1}")
    A(f"v_sub_u32 v{vBo}, v{vT+3}, v{vT+2}")
    A(f"v_add_u32 v{vBo}, {(2032 - 1792) * 2}, v{vBo}")
    A(f"v_add_u32 v{vBo}, s{sLds}, v{vBo}")
    A(f"v_lshlrev_b32 v{vT+3}, 3, v{vT+1}")
    A(f"v_add_u32 v{vT+3}, v{vT+3}, v{vT+2}")
    A(f"v_sub_u32 v{vEo}, {(2044 - 1792) * 2}, v{vT+3}")
    A(f"v_add_u32 v{vEo}, s{sLds}, v{vEo}")
    A(f"s_add_u32 s{sT0}, s{sLds}, {YOFF}")
    A(f"v_add_u32 v{vYw}, s{sT0}, v{vT+3}")
    A(f"v_add_u32 v{vYr}, s{sT0}, v{vL16}")
    A(f"v_subrev_u32 v{vCo}, 32, v{vL16}")
    A(f"v_subrev_u32 v{vCo2}, 16, v{vL16}")
    A(f"v_lshlrev_b32 v{vFo}, 2, v0")
    for r in range(4): A(f"v_mov_b32 v{vT+4+r}, 0")
    A(f"v_min_u32 v{vT+2}, 31, v0")
    A(f"v_lshlrev_b32 v{vT+2}, 4, v{vT+2}")
    A(f"v_add_u32 v{vT+2}, s{sLds}, v{vT+2}")
    A(f"ds_write_b128 v{vT+2}, {v(vT+4,4)} offset:4096")
    A(f"v_add_u32 v{vUw}, s{sLds}, v{vL16}")
    A(f"s_mov_b64 s[{sF}:{sF+1}], s[{sPf}:{sPf+1}]")
    srd(A, sF, 4096)
    A(f"s_lshl_b32 s{sT0}, s{sWV}, 12")
    A(f"s_add_u32 s{sF}, s{sF}, s{sT0}")
    A(f"s_addc_u32 s{sF+1}, s{sF+1}, 0")
    A(f"s_mov_b64 s[{sAux}:{sAux+1}], s[{sPd}:{sPd+1}]")
    srd(A, sAux, 1280)
    A(f"s_lshl_b32 s{sCU}, s{sWV}, 1")
    A(f"s_lshl_b32 s{sB0}, s{sWV}, 12")
    A(f"s_add_u32 s{sB1}, s{sB0}, {G.YT}")
    A(f"s_add_u32 s{sB0}, s{sB0}, {G.KVT}")
    A(f"s_mov_b32 s{sCh}, 0")
    def quiet(code):
        Lq, Lq2 = A.newlabel("q"), A.newlabel("q2")
        A(f"s_lshl_b32 s{sT1}, s{sG}, 7")
        A(f"s_add_u32 s{sT1}, s{sT1}, {G.S1MARK}")
        A(f"v_mov_b32 v{vT+1}, 0")
        A(f"buffer_load_dword v{vT}, v{vT+1}, {WSR}, s{sT1} offen sc1")
        A("s_waitcnt vmcnt(0)")
        A(f"v_readfirstlane_b32 s{sT2}, v{vT}")
        A.label(Lq)
        A(f"s_cmp_ge_i32 s{sT2}, {P['nseg'] - 1}")
        A(f"s_cbranch_scc1 {Lq2}")
        A("s_sleep 3")
        A(f"buffer_load_dword v{vT}, v{vT+1}, {WSR}, s{sT1} offen sc1")
        budget_check(A, code)
        A("s_waitcnt vmcnt(0)")
        A(f"v_readfirstlane_b32 s{sT0}, v{vT}")
        A(f"s_cmp_eq_u32 s{sT0}, s{sT2}")
        A(f"s_cbranch_scc1 {Lq}")
        A.label(Lq2)
    def fetch():
        for m in range(5):
            for h in range(2):
                if m == 0: A(f"buffer_load_dwordx4 {v(vD+4*h,4)}, v{vCo if h == 0 else vCo2}, s[{sF}:{sF+3}], 0 offen")
                else: A(f"buffer_load_dwordx4 {v(vD+8*m+4*h,4)}, v{vL16}, s[{sF}:{sF+3}], 0 offen offset:{1024*m-32+16*h}")
        A(f"v_mov_b32 v{vT}, 0")
        A(f"buffer_load_ushort v{vT+12}, v{vT}, s[{sAux}:{sAux+3}], s{sCU} offen")
        A(f"s_add_u32 s{sCU}, s{sCU}, 128")
        for m in range(4):
            A(f"buffer_load_dwordx4 {v(vU+4*m,4)}, v{vL16}, {WSR}, s{sB0} offen offset:{1024*m} sc1")
        A(f"s_add_u32 s{sB0}, s{sB0}, {64 * 4096}")
        A(f"s_add_u32 s{sF}, s{sF}, {64 * 4096}")
        A(f"s_addc_u32 s{sF+1}, s{sF+1}, 0")
    Lw = A.newlabel("gw")
    A(f"s_mov_b32 s{sT0}, {G.GFLAG}")
    A.label(Lw)
    A(f"s_sleep {P.get('gw_slp', 32)}")
    A(f"buffer_load_dword v{vT}, v{vFo}, {WSR}, s{sT0} offen sc1")
    budget_check(A, 10)
    A("s_waitcnt vmcnt(0)")
    A(f"v_cmp_ne_u32 vcc, 1, v{vT}")
    A(f"s_cbranch_vccnz {Lw}")
    if P.get("cq", 1): quiet(15)
    fetch()
    Lc = A.newlabel("chan")
    A.label(Lc)
    A("s_waitcnt vmcnt(0)")
    lo(vDv, vT + 12)
    for m in range(4):
        A(f"ds_write_b128 v{vUw}, {v(vU+4*m,4)} offset:{1024*m}")
    for m in range(5):
        D = vD + 8 * m
        if m == 4:
            A("s_mov_b64 exec, 15")
        for k in range(7): A(f"v_alignbit_b32 v{vE+k}, v{D+k+1}, v{D+k}, 16")
        for k in range(6): A(f"v_mov_b32 v{vD1+k}, v{D+k+1}")
        for k in range(6): A(f"v_mov_b32 v{vE1+k}, v{vE+k+1}")
        src = [D, vE, vD1, vE1, D + 2, vE + 2, vD1 + 2, vE1 + 2]
        for sg in range(8):
            A(f"ds_write_b128 v{vCw}, {v(src[sg],4)} offset:{sg * CP + 1024 * m}")
    A("s_mov_b64 exec, -1")
    A("s_waitcnt lgkmcnt(0)")
    Lnf = A.newlabel("nofetch")
    A(f"s_cmp_eq_u32 s{sCh}, 9")
    A(f"s_cbranch_scc1 {Lnf}")
    fetch()
    A.label(Lnf)
    def rdset(r):
        b = vFr + 64 * (r & 1)
        L = []
        for k in range(8):
            L.append(f"ds_read_b128 {v(b+32+4*k,4)}, v{vBo} offset:{(7-k)*512 + 64*r}")
            L.append(f"ds_read_b128 {v(b+4*k,4)}, v{vAo} offset:{64*(r+8*k)}")
        return L
    for x in rdset(0)[:14]: A(x)
    A("s_waitcnt lgkmcnt(6)")
    for x in rdset(0)[14:]: A(x)
    for r in range(8):
        b = vFr + 64 * (r & 1)
        nx = rdset(r + 1) if r < 7 else []
        A("s_waitcnt lgkmcnt(0)")
        n = 0
        for k in range(8):
            for T in range(k, 8):
                cc = "0" if (r == 0 and k == 0) else v(vAcc8 + 4 * T, 4)
                A(f"v_mfma_f32_16x16x32_bf16 {v(vAcc8+4*T,4)}, {v(b+4*k,4)}, {v(b+32+4*(T-k),4)}, {cc}")
                if n % 2 == 0 and nx: A(nx.pop(0))
                n += 1
    for T in range(8):
        A(f"ds_read_b64 {v(vBf+2*T,2)}, v{vEo} offset:{(7-T)*512}")
    A("s_waitcnt lgkmcnt(0)")
    for T in range(8):
        acc = vAcc8 + 4 * T
        rnd(acc); rnd(acc + 2)
        hi(vT + 4, vBf + 2 * T + 1); lo(vT + 5, vBf + 2 * T + 1); hi(vT + 6, vBf + 2 * T); lo(vT + 7, vBf + 2 * T)
        for r in range(4): A(f"v_mul_f32 v{vT+4+r}, v{vDv}, v{vT+4+r}")
        rnd(vT + 4); rnd(vT + 6)
        A(f"v_pk_add_f32 {v(acc,2)}, {v(acc,2)}, {v(vT+4,2)}")
        A(f"v_pk_add_f32 {v(acc+2,2)}, {v(acc+2,2)}, {v(vT+6,2)}")
        A(f"v_cvt_pk_bf16_f32 v{vT+8}, v{acc}, v{acc+1}")
        A(f"v_cvt_pk_bf16_f32 v{vT+9}, v{acc+2}, v{acc+3}")
        A(f"ds_write_b64 v{vYw}, {v(vT+8,2)} offset:{T*512}")
    A("s_waitcnt lgkmcnt(0)")
    for m in range(4):
        A(f"ds_read_b128 {v(vBf+4*m,4)}, v{vYr} offset:{1024*m}")
    for m in range(4):
        A(f"s_waitcnt lgkmcnt({3-m})")
        A(f"buffer_store_dwordx4 {v(vBf+4*m,4)}, v{vL16}, {WSR}, s{sB1} offen offset:{1024*m} sc1")
    A(f"s_add_u32 s{sB1}, s{sB1}, {64 * 4096}")
    A(f"s_add_u32 s{sCh}, s{sCh}, 1")
    A(f"s_lshl_b32 s{sT0}, s{sWV}, 2")
    A(f"s_add_u32 s{sT0}, s{sT0}, {G.CVFLAG}")
    A(f"v_mov_b32 v{vT}, s{sCh}")
    A("s_waitcnt vmcnt(0)")
    A(f"buffer_store_dword v{vT}, v{vFlagO}, {WSR}, s{sT0} offen sc1")
    A(f"s_cmp_lg_u32 s{sCh}, 10")
    A(f"s_cbranch_scc1 {Lc}")
    G.ostamp(A, 0, 2)

    if P.get("nobg") == 2: A("s_endpgm")
    A(f"s_mov_b32 s{sU}, s{sWV}")
    A(f"s_mov_b32 s{sUe}, {20 * (P['nseg'] - 4)}")
    A.label("L_mixent")
    vYs, vXs, vTr, vDl, vGo2, vFl, vF32, vLin = 20, 21, 22, 23, 24, 25, 26, 27
    vPp, vAc, vY, vXv, vGt, vSel = 28, 92, 108, 116, 124, 128
    A(f"s_load_dwordx2 s[{sAux}:{sAux+1}], s[0:1], 112")
    A(f"s_mov_b32 s{sMaskHi}, 0xffff0000")
    A(f"v_lshlrev_b32 v{vL16}, 4, v0")
    A(f"v_lshlrev_b32 v{vFo}, 2, v0")
    A(f"v_mov_b32 v{vFlagO}, 0")
    A(f"v_lshrrev_b32 v{vT}, 2, v0")
    A(f"v_and_b32 v{vT+1}, 3, v0")
    A(f"v_lshlrev_b32 v{vT+2}, 12, v{vT}")
    A(f"v_lshl_add_u32 v{vYs}, v{vT+1}, 4, v{vT+2}")
    A(f"v_mul_u32_u24 v{vT+2}, 1280, v{vT}")
    A(f"v_lshl_add_u32 v{vXs}, v{vT+1}, 4, v{vT+2}")
    A(f"v_lshlrev_b32 v{vT}, 6, v{vT}")
    A(f"v_lshl_add_u32 v{vT}, v{vT+1}, 3, v{vT}")
    A(f"v_add_u32 v{vTr}, s{sLds}, v{vT}")
    A(f"v_and_b32 v{vT}, 15, v0")
    A(f"v_lshrrev_b32 v{vT+1}, 4, v0")
    A(f"v_lshlrev_b32 v{vGo2}, 2, v{vT}")
    A(f"v_lshlrev_b32 v{vT+2}, 6, v{vT}")
    A(f"v_lshl_add_u32 v{vT+2}, v{vT+1}, 3, v{vT+2}")
    A(f"s_add_u32 s{sT0}, s{sLds}, 2048")
    A(f"v_add_u32 v{vDl}, s{sT0}, v{vT+2}")
    A(f"v_add_u32 v{vLin}, s{sT0}, v{vL16}")
    A(f"v_and_b32 v{vF32}, 31, v0")
    A(f"v_lshlrev_b32 v{vF32}, 2, v{vF32}")
    A(f"v_and_b32 v{vT+2}, 1, v0")
    A(f"v_lshlrev_b32 v{vT+2}, 4, v{vT+2}")
    A(f"v_mov_b32 v{vT+3}, 0x3f80")
    A(f"v_lshlrev_b32 v{vT+2}, v{vT+2}, v{vT+3}")
    A(f"v_lshrrev_b32 v{vT+3}, 2, v{vT}")
    A(f"v_cmp_eq_u32 vcc, v{vT+3}, v{vT+1}")
    A(f"v_bfe_u32 v{vT+3}, v0, 1, 1")
    A("s_nop 0")
    A(f"v_cndmask_b32 v{vT+2}, 0, v{vT+2}, vcc")
    A(f"v_cmp_eq_u32 vcc, 0, v{vT+3}")
    for r in (2, 3, 4, 5): A(f"v_mov_b32 v{vSel+r}, 0")
    A(f"v_cndmask_b32 v{vSel}, 0, v{vT+2}, vcc")
    A(f"v_cndmask_b32 v{vSel+1}, v{vT+2}, 0, vcc")
    A(f"v_mov_b32 v{vSel+6}, v{vSel}")
    A(f"v_mov_b32 v{vSel+7}, v{vSel+1}")
    A("s_waitcnt lgkmcnt(0)")
    srd(A, sAux, 2048 * 1280)
    Lm = A.newlabel("mix")
    A.label(Lm)
    A(f"s_mul_i32 s{sSeg}, s{sU}, 3277")
    A(f"s_lshr_b32 s{sSeg}, s{sSeg}, 16")
    A(f"s_mul_i32 s{sT0}, s{sSeg}, 20")
    A(f"s_sub_u32 s{sJ}, s{sU}, s{sT0}")
    A(f"s_lshr_b32 s{sCh}, s{sJ}, 1")
    Lw, Lwok = A.newlabel("mc"), A.newlabel("mcok")
    A(f"s_mov_b32 s{sT2}, {G.CVFLAG}")
    A.label(Lw)
    A(f"buffer_load_dword v{vT+2}, v{vFo}, {WSR}, s{sT2} offen sc1")
    budget_check(A, 10)
    A("s_waitcnt vmcnt(0)")
    A(f"v_cmp_ge_u32 vcc, s{sCh}, v{vT+2}")
    A(f"s_cbranch_vccz {Lwok}")
    A("s_sleep 32")
    A(f"s_branch {Lw}")
    A.label(Lwok)
    A(f"s_lshl_b32 s{sT0}, s{sJ}, 17")
    A(f"s_lshl_b32 s{sT1}, s{sSeg}, 6")
    A(f"s_add_u32 s{sT0}, s{sT0}, s{sT1}")
    A(f"s_mov_b32 m0, s{sLds}")
    A(f"s_add_u32 s{sT0}, s{sT0}, {G.YT}")
    A(f"buffer_load_dwordx4 v{vYs}, {WSR}, s{sT0} offen sc1 lds")
    A("s_add_u32 m0, m0, 1024")
    A(f"s_add_u32 s{sT0}, s{sT0}, 65536")
    A(f"buffer_load_dwordx4 v{vYs}, {WSR}, s{sT0} offen sc1 lds")
    A("s_add_u32 m0, m0, 1024")
    A(f"s_mul_i32 s{sB1}, s{sSeg}, 40960")
    A(f"s_lshl_b32 s{sT1}, s{sJ}, 6")
    A(f"s_add_u32 s{sB1}, s{sB1}, s{sT1}")
    A(f"buffer_load_dwordx4 v{vXs}, {XS}, s{sB1} offen lds")
    A("s_add_u32 m0, m0, 1024")
    A(f"s_add_u32 s{sT1}, s{sB1}, 20480")
    A(f"buffer_load_dwordx4 v{vXs}, {XS}, s{sT1} offen lds")
    A(f"s_lshl_b32 s{sT2}, s{sSeg}, 7")
    A(f"s_add_u32 s{sT2}, s{sT2}, {G.GV}")
    A(f"buffer_load_dword v{vGt}, v{vGo2}, {WSR}, s{sT2} offen sc1")
    A(f"buffer_load_dword v{vGt+1}, v{vGo2}, {WSR}, s{sT2} offen offset:64 sc1")
    A(f"s_mul_i32 s{sB0}, s{sSeg}, {G.XP_SEG}")
    A(f"s_lshl_b32 s{sT0}, s{sCh}, 15")
    A(f"s_add_u32 s{sB0}, s{sB0}, s{sT0}")
    A(f"s_and_b32 s{sT0}, s{sJ}, 1")
    A(f"s_lshl_b32 s{sT0}, s{sT0}, 11")
    A(f"s_add_u32 s{sB0}, s{sB0}, s{sT0}")
    A(f"s_add_u32 s{sB0}, s{sB0}, {G.XPART}")
    A("s_waitcnt vmcnt(0)")
    for tt in range(2):
        for c in range(2):
            A(f"ds_read_b64_tr_b16 {v(vY+4*tt+2*c,2)}, v{vTr} offset:{1024*c+32*tt}")
            A(f"ds_read_b64 {v(vXv+4*tt+2*c,2)}, v{vDl} offset:{1024*tt+32*c}")
    for tt in range(2):
        A(f"v_sub_f32 v{vGt+2+tt}, 1.0, v{vGt+tt}")
    rnd(vGt + 2)
    A("s_waitcnt lgkmcnt(0)")
    for i in range(8):
        lo(vT + 4, vY + i); hi(vT + 5, vY + i); lo(vT + 6, vXv + i); hi(vT + 7, vXv + i)
        A(f"v_pk_mul_f32 {v(vT+4,2)}, {v(vT+4,2)}, {v(vT+6,2)}")
        rnd(vT + 4)
        A(f"v_mul_f32 v{vT+4}, v{vGt+2+i//4}, v{vT+4}")
        A(f"v_mul_f32 v{vT+5}, v{vGt+2+i//4}, v{vT+5}")
        A(f"v_cvt_pk_bf16_f32 v{vY+i}, v{vT+4}, v{vT+5}")
    A(f"s_lshl_b32 s{sT1}, s{sCh}, 7")
    A(f"s_add_u32 s{sT1}, s{sT1}, {G.XPFLAG}")
    A(f"s_lshl_b32 s{sT0}, s{sG}, 7")
    A(f"s_add_u32 s{sT0}, s{sT0}, {G.S1MARK + (1024 if P['mk2'] else 0)}")
    A(f"s_add_u32 s{sI}, s{sSeg}, 4")
    A(f"s_cmp_ge_u32 s{sSeg}, {P['nseg'] - 4}")
    A(f"s_cselect_b32 s{sT1}, s{sT1}, s{sT0}")
    A(f"s_cselect_b32 s{sI}, s{sSeg}, s{sI}")
    A(f"s_cselect_b32 s{sT0}, -1, 0")
    A(f"v_and_b32 v{vT+3}, s{sT0}, v{vF32}")
    Lw, Lgo, Lq, Lq2 = A.newlabel("mw"), A.newlabel("mgo"), A.newlabel("mq"), A.newlabel("mq2")
    A.label(Lw)
    A(f"buffer_load_dword v{vFl}, v{vT+3}, {WSR}, s{sT1} offen sc1")
    budget_check(A, 11)
    A("s_waitcnt vmcnt(0)")
    A(f"v_cmp_ge_i32 vcc, s{sI}, v{vFl}")
    A(f"s_cbranch_vccz {Lgo}")
    A(f"s_cmp_ge_u32 s{sSeg}, {P['nseg'] - 4}")
    A(f"s_cbranch_scc1 {Lw}")
    A(f"s_sleep {P.get('mix_sleep', 16)}")
    A(f"s_branch {Lw}")
    A.label(Lgo)
    A(f"s_cmp_ge_u32 s{sSeg}, {P['nseg'] - 4}")
    A(f"s_cbranch_scc1 {Lq2}")
    if P.get("mix_gate", 1):
        A(f"v_readfirstlane_b32 s{sT2}, v{vFl}")
        A(f"s_add_u32 s{sT0}, s{sSeg}, {P.get('mq_lag', 12)}")
        A(f"s_cmp_ge_u32 s{sT2}, s{sT0}")
        A(f"s_cselect_b32 s{sT0}, s{sU}, 0")
        A(f"s_bitcmp1_b32 s{sT0}, 6" if P.get("mq_alt", 1) else f"s_cmp_lg_u32 s{sT0}, 0")
        A(f"s_cbranch_scc1 {Lq2}")
        A.label(Lq)
        A(f"s_cmp_ge_u32 s{sT2}, {P['nseg'] - 1}")
        A(f"s_cbranch_scc1 {Lq2}")
        A(f"s_sleep {P.get('mq_sleep', 3)}")
        A(f"buffer_load_dword v{vT+2}, v{vFlagO}, {WSR}, s{sT1} offen sc1")
        budget_check(A, 15)
        A("s_waitcnt vmcnt(0)")
        A(f"v_readfirstlane_b32 s{sT0}, v{vT+2}")
        A(f"s_cmp_eq_u32 s{sT0}, s{sT2}")
        A(f"s_cbranch_scc1 {Lq}")
        if P.get("mq_dly"): A(f"s_sleep {P['mq_dly']}")
    A.label(Lq2)
    for g in range(8):
        if g: A(f"s_add_u32 s{sB0}, s{sB0}, 4096")
        for c in range(2):
            A(f"buffer_load_dwordx4 {v(vPp+8*g+4*c,4)}, v{vL16}, {WSR}, s{sB0} offen offset:{1024*c} sc1")
    for g in range(8):
        for c in range(2):
            A(f"s_waitcnt vmcnt({15 - 2 * g - c})")
            for tt in range(2):
                acc = vAc + 8 * tt + 4 * c
                A(f"v_mfma_f32_16x16x32_bf16 {v(acc,4)}, {v(vSel+4*tt,4)}, {v(vPp+8*g+4*c,4)}, {'0' if g == 0 else v(acc,4)}")
    A.nop(6)
    for tt in range(2):
        for c in range(2):
            for h in range(2):
                x = vAc + 8 * tt + 4 * c + 2 * h
                i = 4 * tt + 2 * c + h
                rnd(x)
                A(f"v_mul_f32 v{x}, v{vGt+tt}, v{x}")
                A(f"v_mul_f32 v{x+1}, v{vGt+tt}, v{x+1}")
                rnd(x)
                lo(vT + 4, vY + i); hi(vT + 5, vY + i)
                A(f"v_pk_add_f32 {v(x,2)}, {v(x,2)}, {v(vT+4,2)}")
                A(f"v_cvt_pk_bf16_f32 v{vXv+i}, v{x}, v{x+1}")
            A(f"ds_write_b64 v{vDl}, {v(vXv+4*tt+2*c,2)} offset:{1024*tt+32*c}")
    A("s_waitcnt lgkmcnt(0)")
    for m in range(2):
        A(f"ds_read_b128 {v(vY+4*m,4)}, v{vLin} offset:{1024*m}")
    A(f"s_add_u32 s{sT1}, s{sB1}, 20480")
    A("s_waitcnt lgkmcnt(1)")
    A(f"buffer_store_dwordx4 {v(vY,4)}, v{vXs}, s[{sAux}:{sAux+3}], s{sB1} offen")
    A("s_waitcnt lgkmcnt(0)")
    A(f"buffer_store_dwordx4 {v(vY+4,4)}, v{vXs}, s[{sAux}:{sAux+3}], s{sT1} offen")
    A(f"s_add_u32 s{sU}, s{sU}, 64")
    A(f"s_cmp_lt_u32 s{sU}, s{sUe}")
    A(f"s_cbranch_scc1 {Lm}")
    if P["prof"]: A("s_waitcnt vmcnt(0)")
    G.ostamp(A, 0, 3)
    A("s_endpgm")
```

```python
import sys, math, struct
from asmlib import Asm, v, a, s, check_hazards

NAME = "gated_mix__memory_aug_recurrent_mem_tr__ssm_conv_h3__prompt_kernel"

P = dict(
    s3_miss=0, s3_slp=1, h1_slp=3, dp=3, near=1, xch=1, qchk=1, nowatch=12, s3_map=0, h2_mask=0x3ffff, s3_rot=40, xs_slp=0, mk2=0, gh=0, gh_j=0, h3oob=1, wpf=0, wpf_nt=0, al1=-1, al2=-1, s3_two=0, s2_late=0, wrot=0, xo_pos=0, ldev=3, xpf=5, touch=3, cpf=0, wnt=1, ppos=12, dma0=12, dma_per=1, mk1=1, nvc=4, mk_pos=1, h1_two=3,
    s3_sleep=16,
    h1_nop=50,
    h2_miss=0,
    h2_sleep=8,
    prof=0,
    nseg=64,
    force_global=0,
)

MEMR   = 0x0
QKVR   = 0x50000
PXR    = 0x170000
PART   = 0x200000
PART_SLOT = 163840
NEARP  = 0x2A0000
GHINT  = NEARP + 0x380
POISON_END = 0x2A4000
FLAGS  = 0x2B0000
XFLAG  = FLAGS
XPFLAG = FLAGS + 0x1000
CVFLAG = FLAGS + 0x2000
GFLAG  = FLAGS + 0x2200
S2MARK = FLAGS + 0x2400
S1MARK = FLAGS + 0x2800
FLAGS_END = FLAGS + 0x3000
XR     = 0x2C0000
XR_HEAD = 36864 + 1024
XR_SLOT = 4 * XR_HEAD
XR_G   = 4 * XR_SLOT
XPART  = 0x900000
XP_SEG = 327680
KVT    = 0x3200000
YT     = 0x3800000
GV     = 0x3500000
PROF   = 0x4000000
MEMDBG = 0x4800000
WS_SIZE = 0x10000000
OOB = 0x20000000
DBG_CEN, DBG_NEAR, DBG_FAIL, DBG_INIT = 64, 128, 160, 224

XOF = ["sc1", "", "sc1 nt", "sc0 sc1", "nt"]
def f2u(x): return struct.unpack("<I", struct.pack("<f", x))[0]

sWS, sX, sRO, sDBG = 4, 8, 12, 16
sG, sR, sW, sBUD, sS, sXCC = 20, 21, 22, 23, 24, 25
sT0, sT1, sT2, sT3 = 26, 27, 28, 29

WSR = f"s[{sWS}:{sWS+3}]"

def srd(A, base, size):
    A(f"s_and_b32 s{base+1}, s{base+1}, 0xffff")
    A(f"s_mov_b32 s{base+2}, {size}")
    A(f"s_mov_b32 s{base+3}, 0x20000")

def budget_check(A, code):
    A(f"s_sub_u32 s{sBUD}, s{sBUD}, 1")
    A(f"s_movk_i32 s{sT3}, {code}")
    A(f"s_cbranch_scc1 L_fail")

def dense_poll(A, regs, issue, missing, code):
    L, Lok = A.newlabel("dp"), A.newlabel("dpok")
    n = len(regs)
    for i, r in enumerate(regs):
        issue(r)
        if i < n - 1: A("s_sleep 1")
    A.label(L)
    for r in regs:
        A(f"s_waitcnt vmcnt({n-1})")
        A(f"{missing(r)} {Lok}")
        issue(r)
    budget_check(A, code)
    A(f"s_branch {L}")
    A.label(Lok)

def align(A, pad):
    if pad < 0: return
    A(".p2align 6")
    for _ in range(pad // 4): A("s_nop 0")

def stamp(A, idx, vt=250):
    if P["prof"] not in (1, 2) and not (P["prof"] == 4 and vt == 250 and idx == 6): return
    A(f"s_memrealtime s[90:91]")
    A(f"s_waitcnt lgkmcnt(0)")
    A(f"v_writelane_b32 v{vt}, s90, {idx}")
    if P["prof"] == 2:
        A(f"s_memtime s[90:91]")
        A(f"s_waitcnt lgkmcnt(0)")
        A(f"v_writelane_b32 v{vt}, s90, {idx+8}")

def dstamp(A, idx, inv=False, vt=254):
    if not P.get("diag"): return
    L = A.newlabel("ds")
    A(f"s_or_b32 s92, s2, s{sW}")
    A(f"s_cbranch_scc1 {L}")
    A("s_memrealtime s[90:91]")
    A("s_memtime s[86:87]")
    A("s_waitcnt lgkmcnt(0)")
    A(f"v_mov_b32 v{vt}, s90")
    A(f"v_mov_b32 v{vt+1}, s86")
    A(f"v_mov_b32 v{vt-1}, {8 * idx}")
    A("s_mov_b64 exec, 1")
    A(f"buffer_store_dwordx2 v[{vt}:{vt+1}], v{vt-1}, s[{sDBG}:{sDBG+3}], 0 offen")
    A("s_mov_b64 exec, -1")
    A.label(L)

def ostamp(A, row, idx, vt=254):
    if P.get("diag") and idx in (0, 1): dstamp(A, idx)
    if P.get("diag") and idx in (2, 3):
        A("s_waitcnt vmcnt(0)")
        A("s_memrealtime s[90:91]")
        A("s_waitcnt lgkmcnt(0)")
        A(f"v_mov_b32 v{vt}, s90")
        A(f"v_mov_b32 v{vt+1}, {56 if idx == 3 else 60}")
        A("s_mov_b64 exec, 1")
        A(f"buffer_atomic_umax v{vt}, v{vt+1}, s[{sDBG}:{sDBG+3}], 0 offen")
        A("s_mov_b64 exec, -1")
    if not P["prof"]: return
    A("s_memrealtime s[90:91]")
    A("s_lshl_b32 s92, s2, 2")
    A(f"s_add_u32 s92, s92, s{sW}")
    A("s_mul_i32 s92, s92, 80")
    A(f"s_add_u32 s92, s92, {row}")
    A("s_lshl_b32 s92, s92, 6")
    A(f"s_add_u32 s92, s92, {PROF + 4 * idx}")
    A("s_waitcnt lgkmcnt(0)")
    A(f"v_mov_b32 v{vt}, s90")
    A(f"v_mov_b32 v{vt+1}, 0")
    A("s_mov_b64 exec, 1")
    A(f"buffer_store_dword v{vt}, v{vt+1}, s[{sWS}:{sWS+3}], s92 offen")
    A("s_mov_b64 exec, -1")

def fstamp(A, idx, vt):
    if P["prof"] not in (3, 5): return
    A(f"s_mem{'real' if P['prof'] == 5 else ''}time s[{60+2*idx}:{61+2*idx}]")

def fstamp_collect(A, n, vt):
    if P["prof"] not in (3, 5): return
    A("s_waitcnt lgkmcnt(0)")
    for i in range(n):
        A(f"v_writelane_b32 v{vt}, s{60+2*i}, {i}")

def stamp_flush(A, vt=250, vtmp=251):
    if not P["prof"] or (P["prof"] == 4 and vt != 250): return
    A(f"s_lshl_b32 s90, s2, 2")
    A(f"s_add_u32 s90, s90, s{sW}")
    A(f"s_mul_i32 s90, s90, 80")
    A(f"s_add_u32 s90, s90, s{sS}")
    A(f"s_add_u32 s90, s90, 4")
    A(f"s_lshl_b32 s90, s90, 6")
    A(f"s_add_u32 s90, s90, {PROF}")
    A(f"v_lshlrev_b32 v{vtmp}, 2, v0")
    A(f"s_mov_b64 exec, 0xffff")
    A(f"buffer_store_dword v{vt}, v{vtmp}, s[{sWS}:{sWS+3}], s90 offen")
    A(f"s_mov_b64 exec, -1")

def gen_init(A):
    A.label("L_init")
    if P["cpf"]:
        A("s_getpc_b64 s[30:31]")
        A.label("L_pc")
        A(f"s_sub_u32 s{sT0}, s{sR}, 28")
        A(f"s_lshl_b32 s{sT0}, s{sT0}, 2")
        A(f"s_add_u32 s{sT0}, s{sT0}, s{sW}")
        A(f"s_mul_i32 s{sT0}, s{sT0}, 3072")
        A(f"v_lshlrev_b32 v1, 4, v0")
        A(f"v_add_u32 v1, s{sT0}, v1")
        A(f"v_min_u32 v1, L_code_end-L_pc-2048-16, v1")
        for i in range(3):
            A(f"global_load_dwordx4 v[20:23], v1, s[30:31] offset:{1024*i}")
    A("v_mov_b32 v4, -1\nv_mov_b32 v5, -1\nv_mov_b32 v6, -1\nv_mov_b32 v7, -1")
    A(f"s_load_dwordx2 s[{sRO}:{sRO+1}], s[0:1], 8")
    A(f"s_lshl_b32 s{sT0}, s{sW}, 6")
    A(f"v_add_u32 v9, s{sT0}, v0")
    A("v_lshlrev_b32 v1, 4, v9")
    A("s_waitcnt lgkmcnt(0)")
    srd(A, sRO, 10240)
    Lg0 = A.newlabel("ig")
    A(f"s_cmp_lg_u32 s{sR}, 31")
    A(f"s_cbranch_scc1 {Lg0}")
    for i in range(3):
        A(f"v_add_u32 v{36+i}, {256 * i}, v9")
        A(f"v_lshrrev_b32 v3, 6, v{36+i}")
        A(f"v_and_b32 v8, 7, v{36+i}")
        A(f"v_bfe_u32 v16, v{36+i}, 3, 1")
        A(f"v_bfe_u32 v10, v{36+i}, 4, 2")
        A("v_mul_u32_u24 v8, 1280, v8")
        A("v_lshl_add_u32 v8, v3, 7, v8")
        A("v_lshl_add_u32 v8, v10, 5, v8")
        A("v_lshl_add_u32 v8, v16, 2, v8")
        A(f"v_cmp_gt_u32 vcc, 640, v{36+i}")
        A(f"v_mov_b32 v11, {OOB}")
        A(f"v_lshlrev_b32 v{36+i}, 4, v{36+i}")
        A("v_cndmask_b32 v8, v11, v8, vcc")
        A(f"v_cndmask_b32 v{36+i}, v11, v{36+i}, vcc")
        for q in range(4):
            A(f"buffer_load_dword v{24+4*i+q}, v8, s[{sRO}:{sRO+3}], 0 offen offset:{8*q}")
    A(f"s_mul_i32 s{sT1}, s{sG}, 40960")
    A("s_waitcnt vmcnt(0)")
    for i in range(12):
        A(f"v_min_u32 v{24+i}, -2, v{24+i}")
    for i in range(3):
        A(f"buffer_store_dwordx4 v[{24+4*i}:{27+4*i}], v{36+i}, {WSR}, s{sT1} offen sc1")
    A.label(Lg0)
    A(f"s_sub_u32 s{sT0}, s2, 224")
    A(f"s_lshl_b32 s{sT0}, s{sT0}, 12")
    for base, size in ((QKVR, PXR + 8 * 49152 - QKVR), (PART, 4 * PART_SLOT)):
        A(f"s_add_u32 s{sT1}, s{sT0}, {base}")
        for i in range(size // 131072):
            A(f"buffer_store_dwordx4 v[4:7], v1, {WSR}, s{sT1} offen sc1")
            A(f"s_add_u32 s{sT1}, s{sT1}, 131072")
        assert size % 131072 == 0
    Lm, Lf, Ld = A.newlabel("im"), A.newlabel("if"), A.newlabel("id")
    A(f"s_cmp_eq_u32 s{sR}, 31")
    A(f"s_cbranch_scc1 {Ld}")
    A(f"s_cmp_eq_u32 s{sR}, 30")
    A(f"s_cbranch_scc1 {Lf}")
    A(f"s_mul_i32 s{sT1}, s{sG}, 40960")
    A(f"s_sub_u32 s{sT0}, s{sR}, 28")
    A(f"s_mul_i32 s{sT0}, s{sT0}, 15360")
    A(f"s_add_u32 s{sT1}, s{sT1}, s{sT0}")
    A(f"s_add_u32 s{sT1}, s{sT1}, 10240")
    for i in range(4):
        if i == 3:
            A("v_cmp_gt_u32 vcc, 192, v9")
            A(f"v_mov_b32 v2, {OOB}")
            A("s_nop 0")
            A("v_cndmask_b32 v1, v2, v1, vcc")
        A(f"buffer_store_dwordx4 v[4:7], v1, {WSR}, s{sT1} offen sc1")
        A(f"s_add_u32 s{sT1}, s{sT1}, 4096")
    A(f"s_branch {Ld}")
    A.label(Lf)
    A("v_mov_b32 v4, 0\nv_mov_b32 v5, 0\nv_mov_b32 v6, 0\nv_mov_b32 v7, 0")
    A("v_cmp_gt_u32 vcc, 96, v9")
    A(f"v_mov_b32 v2, {OOB}")
    A(f"s_mul_i32 s{sT1}, s{sG}, 1536")
    A("v_cndmask_b32 v1, v2, v1, vcc")
    A(f"s_add_u32 s{sT1}, s{sT1}, {FLAGS}")
    A(f"buffer_store_dwordx4 v[4:7], v1, {WSR}, s{sT1} offen sc1")
    A("v_lshlrev_b32 v1, 13, v9")
    A("v_cmp_gt_u32 vcc, 2, v9")
    A(f"s_lshl_b32 s{sT1}, s{sG}, 2")
    A(f"s_add_u32 s{sT1}, s{sT1}, {GHINT}")
    A("v_cndmask_b32 v1, v2, v1, vcc")
    A(f"buffer_store_dword v4, v1, {WSR}, s{sT1} offen sc1")
    A(f"s_branch {Ld}")
    A.label(Ld)
    A("s_waitcnt vmcnt(0) lgkmcnt(0)")
    A("s_barrier")
    Ln = A.newlabel("in")
    A(f"s_cmp_lg_u32 s{sW}, 0")
    A(f"s_cbranch_scc1 {Ln}")
    A("v_mov_b32 v2, 1")
    A(f"v_mov_b32 v3, {DBG_INIT}")
    A("s_mov_b64 exec, 1")
    A(f"buffer_atomic_add v2, v3, s[{sDBG}:{sDBG+3}], 0 offen")
    A("s_mov_b64 exec, -1")
    A.label(Ln)
    NT = 0
    if P["touch"] == 4:
        NT = XR_G // 16384
        A(f"s_sub_u32 s{sT0}, s{sR}, 28")
        A(f"s_lshl_b32 s{sT0}, s{sT0}, 2")
        A(f"s_add_u32 s{sT0}, s{sT0}, s{sW}")
        A(f"s_lshl_b32 s{sT0}, s{sT0}, 10")
        A(f"s_mul_i32 s{sT1}, s{sG}, {XR_G}")
        A(f"s_add_u32 s{sT0}, s{sT0}, s{sT1}")
        A(f"s_add_u32 s{sT0}, s{sT0}, {XR}")
        A("v_lshlrev_b32 v1, 4, v0")
        for i in range(NT):
            A(f"buffer_load_dwordx4 v[20:23], v1, {WSR}, s{sT0} offen sc1{' nt' if P.get('touch_nt') else ''}")
            A(f"s_add_u32 s{sT0}, s{sT0}, 16384")
    if P["wpf"]:
        NR = P["wpf"]
        A("s_load_dwordx4 s[32:35], s[0:1], 16")
        A("s_load_dwordx2 s[36:37], s[0:1], 32")
        A(f"s_sub_u32 s{sT0}, s{sR}, 28")
        A(f"s_lshl_b32 s{sT0}, s{sT0}, 2")
        A(f"s_add_u32 s{sT0}, s{sT0}, s{sW}")
        A(f"s_mul_i32 s{sT0}, s{sT0}, {8 * 12288}")
        A(f"s_mul_i32 s{sT1}, s{sG}, 1536")
        A(f"s_add_u32 s{sT0}, s{sT0}, s{sT1}")
        A(f"s_add_u32 s{sT0}, s{sT0}, {(640 - 128 * NR) * 12288}")
        A("v_lshrrev_b32 v1, 3, v0")
        A("v_mul_u32_u24 v1, 12288, v1")
        A("v_and_b32 v2, 7, v0")
        A("v_lshl_add_u32 v1, v2, 4, v1")
        A("s_waitcnt lgkmcnt(0)")
        for b in range(NR):
            for m in range(3):
                A(f"s_mov_b64 s[{sRO}:{sRO+1}], s[{32+2*m}:{33+2*m}]")
                srd(A, sRO, 640 * 12288)
                for c_ in range(12):
                    A(f"buffer_load_dwordx4 v[20:23], v1, s[{sRO}:{sRO+3}], s{sT0} offen offset:{128*c_}{' nt' if P['wpf_nt'] else ''}")
            A(f"s_add_u32 s{sT0}, s{sT0}, {128 * 12288}")
    A(f"s_cmp_lt_u32 s{sR}, 30")
    A("s_cbranch_scc1 L_xs")
    A("s_branch L_bg")

def gen_common_prologue(A):
    A("s_cmp_ge_u32 s2, 256")
    A("s_cbranch_scc1 L_end")
    A(f"s_load_dwordx2 s[{sWS}:{sWS+1}], s[0:1], 128")
    A(f"s_load_dwordx2 s[{sX}:{sX+1}], s[0:1], 0")
    A(f"s_load_dwordx2 s[{sDBG}:{sDBG+1}], s[0:1], 120")
    A("v_lshrrev_b32 v1, 6, v0")
    A(f"s_and_b32 s{sG}, s2, 7")
    A(f"v_readfirstlane_b32 s{sW}, v1")
    A("v_and_b32 v0, 63, v0")
    A(f"s_lshr_b32 s{sR}, s2, 3")
    if P.get("x_rx"): A(f"s_xor_b32 s{sR}, s{sR}, {P['x_rx']}")
    A(f"s_getreg_b32 s{sXCC}, hwreg(HW_REG_XCC_ID)")
    A(f"s_mov_b32 s{sBUD}, 400000")
    A("s_waitcnt lgkmcnt(0)")
    srd(A, sWS, WS_SIZE)
    srd(A, sX, 2048 * 1280)
    srd(A, sDBG, 256)
    ostamp(A, 0, 0)
    if P.get("enc"):
        A("s_memrealtime s[80:81]")
        A("s_waitcnt lgkmcnt(0)")
    L = A.newlabel("nocensus")
    A(f"s_cmp_lg_u32 s{sW}, 0")
    A(f"s_cbranch_scc1 {L}")
    A(f"s_mul_i32 s{sT0}, s{sXCC}, 6")
    A(f"s_lshl_b64 s[{sT2}:{sT3}], 1, s{sT0}")
    A(f"s_cmp_lt_u32 s{sXCC}, 8")
    A(f"s_cselect_b64 s[{sT2}:{sT3}], s[{sT2}:{sT3}], 0")
    A(f"s_add_u32 s{sT3}, s{sT3}, 0x1000000")
    A(f"v_mov_b32 v2, s{sT2}")
    A(f"v_mov_b32 v3, s{sT3}")
    A(f"s_lshl_b32 s{sT0}, s{sG}, 3")
    A(f"v_mov_b32 v4, s{sT0}")
    A("s_mov_b64 exec, 1")
    A(f"buffer_atomic_add_x2 v[2:3], v4, s[{sDBG}:{sDBG+3}], 0 offen offset:{DBG_CEN}")
    A("s_mov_b64 exec, -1")
    A.label(L)

def gen_locality(A, lab_local, lab_global, vt):
    L = A.newlabel("loc")
    A(f"v_lshlrev_b32 v{vt}, 2, v0")
    A(f"s_lshl_b32 s93, s{sG}, 1")
    A(f"s_add_u32 s93, s93, {DBG_CEN // 4}")
    A(f"s_add_u32 s94, s93, 1")
    A.label(L)
    A(f"buffer_load_dword v{vt+1}, v{vt}, s[{sDBG}:{sDBG+3}], 0 offen sc1")
    budget_check(A, 1)
    A("s_waitcnt vmcnt(0)")
    A(f"v_readlane_b32 s{sT0}, v{vt+1}, s93")
    A(f"v_readlane_b32 s{sT1}, v{vt+1}, s94")
    A(f"v_readlane_b32 s{sT3}, v{vt+1}, {DBG_INIT // 4}")
    A(f"s_lshr_b32 s{sT2}, s{sT1}, 24")
    A(f"s_min_u32 s{sT2}, s{sT2}, s{sT3}")
    A(f"s_cmp_lt_u32 s{sT2}, 32")
    A(f"s_cbranch_scc1 {L}")
    if lab_local is None: return
    if P["force_global"]:
        A(f"s_branch {lab_global}")
    A(f"s_and_b32 s{sT1}, s{sT1}, 0xffffff")
    A(f"s_mul_i32 s{sT2}, s{sXCC}, 6")
    A(f"s_lshl_b64 s[{sT2}:{sT3}], 32, s{sT2}")
    A(f"s_cmp_eq_u64 s[{sT0}:{sT1}], s[{sT2}:{sT3}]")
    A(f"s_cbranch_scc0 {lab_global}")
    A(f"s_cmp_lt_u32 s{sXCC}, 8")
    A(f"s_cbranch_scc0 {lab_global}")
    A(f"s_branch {lab_local}")


def gen_s1(A):
    sU, sHH, sTY, sKS, sUP = 30, 31, 32, 33, 95
    sPartRd, sMem0, sMem1, sMem2, sQkv, sMemP, sQkvP = 34, 35, 36, 37, 38, 39, 40
    sXr, sXrEnd, sXrBase, sXflag, sXsrc, sLdsW = 41, 42, 43, 44, 45, 46
    sPartBase, sMemBase, sQkvBase, sXbuf, sH2 = 47, 48, 49, 50, 51
    vL16, vMemSt, vQkvSt, vIdx, vXg, vXrd, vXsum, vPois, vFlagO = 1, 2, 3, 4, 5, 6, 7, 8, 9
    vSel = 128
    vH = 132
    vHld, vHw, vHr, vMkO = 144, 145, 146, 147
    vH2 = 148
    vNearO = 160
    vXB3 = 164
    sPartP, vPois2, vPartSt = 52, 162, 161
    vMk2O, vQkvS2 = 190, 191
    vMemPo, vQkvPo = 188, 189
    sMk, sMkW = 58, 59
    MEML = 81920
    vT = 10
    vM = 20
    vPt = 60
    vA = 76
    vMx = 84
    vXA = 88
    vXB = 104
    vXO = 120
    A.label("L_s1")
    A(f"s_lshl_b32 s{sU}, s{sR}, 2")
    A(f"s_add_u32 s{sU}, s{sU}, s{sW}")
    A(f"s_mul_i32 s{sTY}, s{sR}, 43")
    A(f"s_lshr_b32 s{sTY}, s{sTY}, 8")
    A(f"s_mul_i32 s{sT0}, s{sTY}, 24")
    A(f"s_sub_u32 s{sT0}, s{sU}, s{sT0}")
    A(f"s_mul_i32 s{sHH}, s{sT0}, 43")
    A(f"s_lshr_b32 s{sHH}, s{sHH}, 8")
    A(f"s_mul_i32 s{sT1}, s{sHH}, 6")
    A(f"s_sub_u32 s{sKS}, s{sT0}, s{sT1}")
    A(f"s_mul_i32 s{sUP}, s{sHH}, 3")
    A(f"s_add_u32 s{sUP}, s{sUP}, s{sTY}")
    A(f"s_mul_i32 s{sUP}, s{sUP}, 6")
    A(f"s_add_u32 s{sUP}, s{sUP}, s{sKS}")
    A("s_load_dwordx4 s[52:55], s[0:1], 16")
    A("s_load_dwordx2 s[56:57], s[0:1], 32")
    A(f"v_lshlrev_b32 v{vL16}, 4, v0")
    A(f"s_and_b32 s{sT2}, s{sW}, 1")
    A(f"s_lshl_b32 s{sT3}, s{sT2}, 2")
    A(f"v_lshrrev_b32 v{vT}, 3, v0")
    A(f"v_and_b32 v{vT+1}, 2, v{vT}")
    A(f"v_or_b32 v{vT+1}, s{sT3}, v{vT+1}")
    A(f"v_xor_b32 v{vT+1}, v0, v{vT+1}")
    A(f"v_and_b32 v{vT+1}, 7, v{vT+1}")
    A(f"v_mul_u32_u24 v{vT}, 12288, v{vT}")
    A(f"v_lshl_add_u32 v{vT}, v{vT+1}, 4, v{vT}")
    A("s_waitcnt lgkmcnt(0)")
    A(f"s_cmp_eq_u32 s{sTY}, 1")
    A(f"s_cselect_b64 s[{sRO}:{sRO+1}], s[54:55], s[52:53]")
    A(f"s_cmp_eq_u32 s{sTY}, 2")
    A(f"s_cselect_b64 s[{sRO}:{sRO+1}], s[56:57], s[{sRO}:{sRO+1}]")
    srd(A, sRO, 640 * 12288)
    A(f"s_lshl_b32 s{sT0}, s{sG}, 2")
    A(f"s_add_u32 s{sT0}, s{sT0}, s{sHH}")
    A(f"s_mul_i32 s{sT0}, s{sT0}, 384")
    A(f"s_lshr_b32 s{sT1}, s{sKS}, 1")
    A(f"s_lshl_b32 s{sT1}, s{sT1}, 7")
    A(f"s_add_u32 s{sT0}, s{sT0}, s{sT1}")
    A(f"s_mul_i32 s{sT1}, s{sT2}, {8 * 12288}")
    A(f"s_add_u32 s{sT0}, s{sT0}, s{sT1}")
    A(f"s_lshr_b32 s{sLdsW}, s{sW}, 1")
    A(f"s_mul_i32 s{sLdsW}, s{sLdsW}, 40960")
    A(f"s_lshl_b32 s{sT1}, s{sT2}, 10")
    A(f"s_add_u32 s{sXr}, s{sLdsW}, s{sT1}")
    A(f"s_mul_i32 s{sT1}, s2, {P['wrot']}")
    A(f"s_mul_i32 s{sT2}, s{sT1}, 3277")
    A(f"s_lshr_b32 s{sT2}, s{sT2}, 16")
    A(f"s_mul_i32 s{sT2}, s{sT2}, 20")
    A(f"s_sub_u32 s{sT1}, s{sT1}, s{sT2}")
    for i in range(40):
        A(f"s_lshl_b32 s{sT2}, s{sT1}, 11")
        A(f"s_add_u32 m0, s{sXr}, s{sT2}")
        A(f"s_mul_i32 s{sT2}, s{sT1}, {16 * 12288}")
        A(f"s_add_u32 s{sT2}, s{sT2}, s{sT0}")
        A(f"buffer_load_dwordx4 v{vT}, s[{sRO}:{sRO+3}], s{sT2} offen{' nt' if P['wnt'] else ''} lds")
        A(f"s_add_u32 s{sT1}, s{sT1}, 1")
        A(f"s_cmp_eq_u32 s{sT1}, 20")
        A(f"s_cselect_b32 s{sT1}, 0, s{sT1}")
        if i == 19:
            A(f"s_add_u32 s{sXr}, s{sXr}, 81920")
            A(f"s_add_u32 s{sT0}, s{sT0}, {320 * 12288}")
    A(f"s_lshl_b32 s{sT0}, s{sU}, 10")
    A(f"s_add_u32 s{sT0}, s{sT0}, 8192")
    A(f"buffer_load_dwordx4 v[{vM}:{vM+3}], v{vL16}, s[{sX}:{sX+3}], s{sT0} offen")
    A(f"v_and_b32 v{vT+1}, 15, v0")
    A(f"v_lshrrev_b32 v{vT+2}, 4, v0")
    A(f"v_cmp_gt_u32 vcc, 8, v{vT+1}")
    A(f"v_mov_b32 v{vT+3}, 0xeeee")
    A(f"v_mov_b32 v{vT+4}, 0x4444")
    A(f"v_cndmask_b32 v{vIdx}, v{vT+3}, v{vT+4}, vcc")
    A(f"v_mov_b32 v{vPois}, -1")
    A(f"v_lshrrev_b32 v{vXg}, 2, v0")
    A(f"v_mul_u32_u24 v{vXg}, 1280, v{vXg}")
    A(f"v_sub_u32 v{vT+3}, 0, v{vT+2}")
    A(f"v_xor_b32 v{vT+3}, v0, v{vT+3}")
    A(f"v_and_b32 v{vT+3}, 3, v{vT+3}")
    A(f"v_lshl_add_u32 v{vXg}, v{vT+3}, 4, v{vXg}")
    A(f"v_lshrrev_b32 v{vT+3}, 2, v{vT+1}")
    A(f"v_sub_u32 v{vT+3}, 0, v{vT+3}")
    A(f"v_xor_b32 v{vT+3}, v{vT+2}, v{vT+3}")
    A(f"v_and_b32 v{vT+3}, 3, v{vT+3}")
    A(f"v_lshl_add_u32 v{vT+3}, v{vT+1}, 2, v{vT+3}")
    A(f"v_lshlrev_b32 v{vXrd}, 4, v{vT+3}")
    A(f"v_lshlrev_b32 v{vXsum}, 5, v{vT+3}")
    A(f"v_add_u32 v{vXsum}, 40960, v{vXsum}")
    A(f"v_bfe_u32 v{vT+3}, v0, 2, 1")
    A(f"v_bfe_u32 v{vT+4}, v0, 3, 1")
    A(f"v_lshl_add_u32 v{vT+3}, v{vT+3}, 1, v{vT+4}")
    A(f"v_and_b32 v{vT+4}, 1, v{vT+1}")
    A(f"v_lshlrev_b32 v{vT+4}, 4, v{vT+4}")
    A(f"v_mov_b32 v{vT+5}, 0x3f80")
    A(f"v_lshlrev_b32 v{vT+4}, v{vT+4}, v{vT+5}")
    for r in range(4):
        A(f"v_cmp_eq_u32 vcc, {r}, v{vT+3}")
        A("s_nop 1")
        A(f"v_cndmask_b32 v{vSel+r}, 0, v{vT+4}, vcc")
    A(f"s_lshl_b32 s{sT0}, s{sW}, 10")
    A(f"v_add_u32 v{vHld}, s{sT0}, v{vL16}")
    A(f"v_add_u32 v{vHw}, {MEML}, v{vHld}")
    A(f"v_add_u32 v{vHr}, {MEML}, v{vL16}")
    if P["s3_map"]:
        A(f"s_mul_i32 s{sU}, s{sW}, 18")
        A(f"s_sub_u32 s{sT0}, 17, s{sR}")
        A(f"s_add_u32 s{sU}, s{sU}, s{sT0}")
    elif P["s3_rot"]:
        A(f"s_add_u32 s{sU}, s{sU}, {P['s3_rot']}")
        A(f"s_cmp_ge_u32 s{sU}, 72")
        A(f"s_cselect_b32 s{sT0}, 72, 0")
        A(f"s_sub_u32 s{sU}, s{sU}, s{sT0}")
    A(f"s_cmp_ge_u32 s{sU}, 40")
    A(f"s_cselect_b32 s{sT0}, 40, 0")
    A(f"s_sub_u32 s{sT0}, s{sU}, s{sT0}")
    A(f"s_lshr_b32 s{sPartBase}, s{sT0}, 2")
    A(f"s_lshl_b32 s{sPartBase}, s{sPartBase}, 14")
    A(f"s_and_b32 s{sT1}, s{sT0}, 3")
    A(f"s_lshl_b32 s{sT1}, s{sT1}, 11")
    A(f"s_add_u32 s{sPartBase}, s{sPartBase}, s{sT1}")
    A(f"s_add_u32 s{sPartBase}, s{sPartBase}, {PART}")
    A(f"v_lshlrev_b32 v{vT+3}, 2, v0")
    A(f"s_lshl_b32 s{sT0}, s{sT0}, 8")
    A(f"s_cmp_ge_u32 s{sU}, 40")
    A(f"s_cselect_b32 s{sT0}, {OOB}, s{sT0}")
    A(f"v_add_u32 v{vMemSt}, s{sT0}, v{vT+3}")
    A(f"v_lshl_add_u32 v{vMemPo}, v0, 2, s{sT0}")
    A(f"v_and_b32 v{vT+3}, 31, v0")
    A(f"v_lshlrev_b32 v{vT+3}, 3, v{vT+3}")
    A(f"v_lshrrev_b32 v{vT+4}, 5, v0")
    A(f"v_lshl_add_u32 v{vT+3}, v{vT+4}, 13, v{vT+3}")
    A(f"s_lshl_b32 s{sT0}, s{sG}, 8")
    A(f"s_cmp_ge_u32 s{sU}, 40")
    A(f"s_cselect_b32 s{sT0}, {OOB}, s{sT0}")
    A(f"v_add_u32 v{vPartSt}, s{sT0}, v{vT+3}")
    A(f"v_mov_b32 v{vPois2}, -1")
    A(f"v_mov_b32 v{vPois2+1}, -1")
    A(f"v_bfe_u32 v{vT+3}, v0, 4, 1")
    A(f"v_lshrrev_b32 v{vT+4}, 5, v0")
    A(f"v_lshlrev_b32 v{vT+3}, 2, v{vT+3}")
    A(f"v_lshl_add_u32 v{vT+3}, v{vT+4}, 1, v{vT+3}")
    A(f"s_and_b32 s{sT0}, s{sKS}, 1")
    A(f"s_lshr_b32 s{sT1}, s{sKS}, 1")
    A(f"s_lshl_b32 s{sT1}, s{sT1}, 10")
    A(f"v_lshrrev_b32 v{vT+4}, 2, v{vT+1}")
    A(f"v_lshl_add_u32 v{vT+4}, v{vT+4}, 4, v{vT+3}")
    A(f"v_lshlrev_b32 v{vT+4}, 4, v{vT+4}")
    A(f"v_and_b32 v{vT+5}, 3, v{vT+1}")
    A(f"v_lshl_add_u32 v{vT+4}, v{vT+5}, 2, v{vT+4}")
    A(f"s_lshl_b32 s{sT2}, s{sT0}, 7")
    A(f"s_add_u32 s{sT2}, s{sT2}, s{sT1}")
    A(f"v_add_u32 v{vT+4}, s{sT2}, v{vT+4}")
    A(f"v_lshrrev_b32 v{vT+5}, 3, v{vT+1}")
    A(f"v_lshl_add_u32 v{vT+5}, v{vT+5}, 4, v{vT+3}")
    A(f"v_and_b32 v{vT+6}, 1, v{vT+1}")
    A(f"v_lshl_add_u32 v{vT+5}, v{vT+6}, 3, v{vT+5}")
    A(f"v_lshlrev_b32 v{vT+5}, 4, v{vT+5}")
    A(f"v_bfe_u32 v{vT+6}, v{vT+1}, 1, 2")
    A(f"v_lshl_add_u32 v{vT+5}, v{vT+6}, 2, v{vT+5}")
    A(f"s_lshl_b32 s{sT2}, s{sT0}, 9")
    A(f"s_add_u32 s{sT2}, s{sT2}, s{sT1}")
    A(f"v_add_u32 v{vT+5}, s{sT2}, v{vT+5}")
    A(f"v_lshl_add_u32 v{vT+6}, v0, 3, s{sT2}")
    A(f"v_and_b32 v{vT+7}, 15, v0")
    A(f"v_lshlrev_b32 v{vT+7}, 3, v{vT+7}")
    A(f"v_lshl_add_u32 v{vT+7}, v{vT+2}, 8, v{vT+7}")
    A(f"s_lshl_b32 s{sT2}, s{sT0}, 7")
    A(f"s_add_u32 s{sT2}, s{sT2}, s{sT1}")
    A(f"v_add_u32 v{vT+7}, s{sT2}, v{vT+7}")
    A(f"s_cmp_eq_u32 s{sTY}, 2")
    A(f"s_cselect_b64 vcc, -1, 0")
    A(f"v_cndmask_b32 v{vQkvSt}, v{vT+4}, v{vT+5}, vcc")
    A(f"v_cndmask_b32 v{vQkvPo}, v{vT+7}, v{vT+6}, vcc")
    if P["xch"]:
        A(f"s_cselect_b32 s{sT2}, 256, 0")
        A(f"s_sub_u32 s{sT2}, 512, s{sT2}")
        A(f"s_sub_u32 s{sT1}, s{sT2}, 16")
        A(f"v_bfe_u32 v{vT+4}, v0, 3, 1")
        A(f"v_mul_lo_u32 v{vT+4}, s{sT1}, v{vT+4}")
        A(f"v_sub_u32 v{vQkvSt}, v{vQkvSt}, v{vT+4}")
        A(f"v_add_u32 v{vQkvS2}, s{sT2}, v{vQkvSt}")
    A(f"v_cmp_eq_u32 vcc, 0, v0")
    A(f"v_mov_b32 v{vT+4}, {OOB}")
    A("s_nop 0")
    A(f"v_cndmask_b32 v{vFlagO}, v{vT+4}, v0, vcc")
    A(f"v_cmp_gt_u32 vcc, 2, v0")
    A(f"v_lshlrev_b32 v{vT+5}, 10, v0")
    A("s_nop 0")
    A(f"v_cndmask_b32 v{vMk2O}, v{vT+4}, v{vT+5}, vcc")
    A(f"s_lshl_b32 s{sT0}, s{sG}, 2")
    A(f"s_add_u32 s{sT0}, s{sT0}, {DBG_NEAR}")
    A(f"v_mov_b32 v{vNearO}, s{sT0}")
    A(f"v_min_u32 v{vMkO}, {7 if P['gh'] else 9}, v0")
    A(f"v_lshlrev_b32 v{vMkO}, 2, v{vMkO}")
    A(f"s_lshl_b32 s{sMk}, s{sG}, 7")
    A(f"s_lshl_b32 s{sT0}, s{sR}, 2")
    A(f"s_add_u32 s{sMkW}, s{sMk}, s{sT0}")
    A(f"s_add_u32 s{sMkW}, s{sMkW}, {S1MARK}")
    A(f"s_cmp_eq_u32 s{sW}, 0")
    A(f"s_cselect_b32 s{sMkW}, s{sMkW}, {OOB}")
    A(f"s_add_u32 s{sMk}, s{sMk}, {S2MARK}")
    A(f"s_cmp_lt_u32 s{sW}, 2")
    A(f"s_mov_b32 s{sH2}, {OOB if P['h3oob'] else 0}")
    A(f"s_cselect_b32 s{sH2}, 8192, s{sH2}")
    A(f"s_mul_i32 s{sMemBase}, s{sG}, 40960")
    A(f"s_mul_i32 s{sT0}, s{sHH}, 3")
    A(f"s_add_u32 s{sT0}, s{sT0}, s{sTY}")
    A(f"s_mul_i32 s{sQkvBase}, s{sG}, 147456")
    A(f"s_mul_i32 s{sT1}, s{sT0}, 3072")
    A(f"s_add_u32 s{sQkvBase}, s{sQkvBase}, s{sT1}")
    A(f"s_add_u32 s{sQkvBase}, s{sQkvBase}, {QKVR}")
    A(f"s_mul_i32 s{sXrBase}, s{sG}, {XR_G}")
    A(f"s_lshl_b32 s{sT1}, s{sUP}, 1")
    A(f"s_add_u32 s{sT1}, s{sT1}, s{sHH}")
    A(f"s_lshl_b32 s{sT1}, s{sT1}, 10")
    A(f"s_add_u32 s{sXrBase}, s{sXrBase}, s{sT1}")
    A(f"s_add_u32 s{sXrBase}, s{sXrBase}, {XR}")
    A(f"s_add_u32 s{sXrEnd}, s{sXrBase}, {XR_G}")
    A(f"s_mov_b32 s{sXr}, s{sXrBase}")
    A(f"s_lshl_b32 s{sXflag}, s{sG}, 9")
    A(f"s_lshl_b32 s{sT1}, s{sUP}, 2")
    A(f"s_add_u32 s{sXflag}, s{sXflag}, s{sT1}")
    A(f"s_add_u32 s{sXflag}, s{sXflag}, {XFLAG}")
    A(f"v_bfe_u32 v{vT+3}, v0, 2, 2")
    A(f"v_lshl_add_u32 v{vT+4}, v{vT+2}, 3, v{vT+3}")
    A(f"v_lshlrev_b32 v{vT+4}, 7, v{vT+4}")
    A(f"v_and_b32 v{vT+5}, 1, v0")
    A(f"v_lshl_add_u32 v{vT+4}, v{vT+5}, 3, v{vT+4}")
    A(f"v_add_u32 v{vT+4}, s{sLdsW}, v{vT+4}")
    A(f"v_and_b32 v{vT+3}, 2, v{vT+3}")
    A(f"v_and_b32 v{vT+5}, 1, v{vT+2}")
    A(f"v_lshl_add_u32 v{vT+3}, v{vT+5}, 2, v{vT+3}")
    A(f"v_bfe_u32 v{vT+5}, v0, 1, 1")
    A(f"s_and_b32 s{sT0}, s{sW}, 1")
    A(f"s_lshl_b32 s{sT0}, s{sT0}, 2")
    A(f"v_or_b32 v{vT+5}, s{sT0}, v{vT+5}")
    A(f"v_xor_b32 v{vT+5}, v{vT+5}, v{vT+3}")
    A(f"v_xor_b32 v{vT+6}, 2, v{vT+5}")
    A(f"v_lshl_add_u32 v{vT+5}, v{vT+5}, 4, v{vT+4}")
    A(f"v_lshl_add_u32 v{vT+6}, v{vT+6}, 4, v{vT+4}")
    def trhalf(h):
        for kd in range(10 * h, 10 * h + 10):
            for t in range(2):
                for hf in range(2):
                    A(f"ds_read_b64_tr_b16 a[{80*t+4*kd+2*hf}:{80*t+4*kd+2*hf+1}], v{vT+5+t} offset:{(kd%10)*4096+hf*512}")
    A("s_waitcnt vmcnt(21)")
    A("s_barrier")
    trhalf(0)
    A(f"v_add_u32 v{vT+5}, 81920, v{vT+5}")
    A(f"v_add_u32 v{vT+6}, 81920, v{vT+6}")
    A("s_waitcnt lgkmcnt(0)")
    A("s_barrier")
    A(f"s_mul_i32 s{sXsrc}, s{sW}, 320")
    A(f"s_mul_i32 s{sLdsW}, s{sW}, 10240")
    A(f"s_mov_b32 s{sXbuf}, 0")
    def xdma():
        A(f"s_add_u32 m0, s{sLdsW}, s{sXbuf}")
        for i in range(5):
            for tt in range(2):
                A(f"s_add_u32 s{sT0}, s{sXsrc}, {tt * 20480 + i * 64}")
                A(f"buffer_load_dwordx4 v{vXg}, s[{sX}:{sX+3}], s{sT0} offen lds")
                if not (i == 4 and tt == 1):
                    A("s_add_u32 m0, m0, 1024")
        A(f"s_add_u32 s{sXsrc}, s{sXsrc}, 40960")
        A(f"s_sub_u32 s{sXbuf}, 40960, s{sXbuf}")
    xdma()
    A("s_waitcnt vmcnt(10)")
    A("s_barrier")
    trhalf(1)
    ostamp(A, 0, 1)
    A(f"s_mov_b32 s{sS}, -2")
    gen_locality(A, "L_s1_loc", "L_s1_glb", vT)

    for mode in ("loc", "glb"):
        sc = "" if mode == "loc" else " sc1"
        Lb, Ls3, Lh1, Lslow, Lcont, Lnox = [f"L_s1_{mode}_{x}" for x in ("bub", "s3", "h1", "slow", "cont", "nox")]
        def xrd(kd, tt):
            b = vXB3 + 8 * (kd % 3) + 4 * tt
            A(f"ds_read_b128 v[{b}:{b+3}], v{vXrd} offset:{(2*kd+tt)*1024}")
        def marks():
            A(f"s_add_u32 s{sT0}, s{sS}, 1")
            A(f"v_mov_b32 v{vT+2}, s{sT0}")
            A(f"v_add_u32 v{vT+3}, 1, v{vT+2}")
        def mark1():
            A(f"buffer_store_dword v{vT+2}, v{vMk2O if P['mk2'] else vFlagO}, {WSR}, s{sMkW} offen{sc}")
        Lpro = f"L_s1_{mode}_pro"
        align(A, P["al1"])
        A.label(f"L_s1_{mode}")
        A("s_waitcnt lgkmcnt(0)")
        A.label(Lpro)
        A("s_barrier")
        marks()
        xrd(0, 0); xrd(0, 1); xrd(1, 0); xrd(1, 1)
        A.label(Lb)
        if P["mk1"] == 0: mark1()
        stamp(A, 5)
        fstamp(A, 5, 250)
        def house():
            return [f"s_cmp_lt_i32 s{sS}, 1",
                f"s_cselect_b32 s{sMemP}, {OOB}, s{sMemP}",
                f"s_cselect_b32 s{sQkvP}, {OOB}, s{sQkvP}",
                f"s_cselect_b32 s{sPartP}, {OOB}, s{sPartP}",
                f"buffer_store_dword v{vPois}, v{vMemPo}, {WSR}, s{sMemP} offen{sc}",
                f"buffer_store_dwordx2 {v(vPois2,2)}, v{vQkvPo}, {WSR}, s{sQkvP} offen{sc}",
                f"buffer_store_dwordx2 {v(vPois2,2)}, v{vPartSt}, {WSR}, s{sPartP} offen sc1",
                f"buffer_load_dword v{vT+4}, v{vNearO}, s[{sDBG}:{sDBG+3}], 0 offen sc1",
                f"buffer_store_dword v{vT+3}, v{vFlagO}, {WSR}, s{sXflag} offen{sc}",
                f"s_and_b32 s{sT1}, s{sS}, 3",
                f"s_mul_i32 s{sPartRd}, s{sT1}, {PART_SLOT}",
                f"s_add_u32 s{sPartRd}, s{sPartRd}, s{sPartBase}",
                f"s_mul_i32 s{sMemP}, s{sT1}, 10240",
                f"s_add_u32 s{sMemP}, s{sMemP}, s{sMemBase}",
                f"s_add_u32 s{sT1}, s{sS}, 3",
                f"s_and_b32 s{sT1}, s{sT1}, 3",
                f"s_mul_i32 s{sPartP}, s{sT1}, {PART_SLOT}",
                f"s_add_u32 s{sPartP}, s{sPartP}, s{sPartBase}",
                f"s_mul_i32 s{sQkvP}, s{sT1}, 36864",
                f"s_add_u32 s{sQkvP}, s{sQkvP}, s{sQkvBase}",
                f"s_add_u32 s{sT1}, s{sS}, 1",
                f"s_and_b32 s{sT1}, s{sT1}, 3",
                f"s_mul_i32 s{sMem0}, s{sT1}, 10240",
                f"s_add_u32 s{sMem0}, s{sMem0}, s{sMemBase}",
                f"s_add_u32 s{sMem1}, s{sMem0}, 4096",
                f"s_add_u32 s{sMem2}, s{sMem0}, s{sH2}",
                f"s_mul_i32 s{sQkv}, s{sT1}, 36864",
                f"s_add_u32 s{sQkv}, s{sQkv}, s{sQkvBase}"]
        Lxd = A.newlabel("xdone")
        A(f"s_cmp_ge_i32 s{sS}, {P['nseg'] - 2 if not P.get('x_nox') else 3}")
        A(f"s_cbranch_scc1 {Lnox}")
        fstamp(A, 6, 250)
        if P["prof"] in (3, 5): A("s_waitcnt lgkmcnt(0)")
        hk = house()
        for _ in range(4): A(hk.pop(0))
        hk += [f"s_add_u32 s{sT2}, s{sLdsW}, s{sXbuf}", f"s_add_u32 s{sT0}, s{sXsrc}, 20480"]
        A("s_waitcnt lgkmcnt(2)")
        D0, DP = P["dma0"], P["dma_per"]
        dq = []
        for i in range(10):
            tt, k5 = i // 5, i % 5
            dq.append((f"s_add_u32 m0, s{sT2}, {tt * 1024 + k5 * (2048 - 64)}",
                       f"buffer_load_dwordx4 v{vXg}, s[{sX}:{sX+3}], s{sXsrc if tt == 0 else sT0} offen offset:{64 * k5} lds"))
        for kd in range(20):
            cur = vXB3 + 8 * (kd % 3)
            n = 0
            for tt in range(2):
                for t in range(2):
                    acc = vXA + 4 * (2 * tt + t)
                    c = "0" if kd == 0 else v(acc, 4)
                    A(f"v_mfma_f32_16x16x32_bf16 {v(acc,4)}, {a(80*t+4*kd,4)}, {v(cur+4*tt,4)}, {c}")
                    if n < 2 and kd < 18: xrd(kd + 2, n)
                    if kd >= D0 and dq:
                        if n == 0: A(dq[0][0])
                        if n == 1: A(dq.pop(0)[1])
                        if DP == 2 and dq and n == 2: A(dq[0][0])
                        if DP == 2 and dq and n == 3: A(dq.pop(0)[1])
                    elif n < 3 and hk:
                        A(hk.pop(0))
                        if n == 2 and hk: A(hk.pop(0))
                    if n == 3 and kd < 19: A(f"s_waitcnt lgkmcnt({2 if kd < 18 else 0})")
                    n += 1
        late = dq
        assert not hk
        fstamp(A, 7, 250)
        for x in late: A(x[0]); A("s_nop 0"); A(x[1])
        A(f"s_add_u32 s{sXsrc}, s{sXsrc}, 40960")
        A(f"s_sub_u32 s{sXbuf}, 40960, s{sXbuf}")
        A(f"v_sub_u32 v{vXrd}, v{vXsum}, v{vXrd}")
        A(f"s_mov_b32 s{sT0}, s{sXr}")
        A(f"s_add_u32 s{sXr}, s{sXr}, {XR_SLOT}")
        A(f"s_cmp_eq_u32 s{sXr}, s{sXrEnd}")
        A(f"s_cselect_b32 s{sXr}, s{sXrBase}, s{sXr}")
        for tt in range(2):
            for r in range(4):
                A(f"v_cvt_pk_bf16_f32 v{vXO+4*tt+r}, v{vXA+8*tt+r}, v{vXA+8*tt+4+r}")
            A(f"buffer_store_dwordx4 {v(vXO+4*tt,4)}, v{vL16}, {WSR}, s{sT0} offen offset:{1024*tt}{sc}")
        fstamp(A, 8, 250)
        fstamp(A, 9, 250)
        A("s_waitcnt vmcnt(13)")
        A(f"s_branch {Lxd}")
        A.label(Lnox)
        for x in house(): A(x)
        A("s_waitcnt vmcnt(1)")
        A.label(Lxd)
        stamp(A, 6)
        fstamp_collect(A, 11, 250)
        stamp_flush(A)
        A(f"s_add_u32 s{sS}, s{sS}, 1")
        A(f"v_readfirstlane_b32 s{sT0}, v{vT+4}")
        A(f"s_cmp_eq_u32 s{sT0}, {2 if mode == 'loc' and P['near'] else 99}")
        A(f"s_cselect_b32 s{sT0}, 8192, 0")
        A(f"s_add_u32 s{sPartRd}, s{sPartRd}, s{sT0}")
        if P["gh"]: A(f"s_add_u32 s{sMk}, s{sT0}, {GHINT}")
        Lst = A.newlabel("steady")
        A(f"s_cmp_gt_i32 s{sS}, 0")
        A(f"s_cbranch_scc1 {Lst}")
        A(f"v_add_u32 v{vT+3}, 1, v{vT+3}")
        A("s_waitcnt vmcnt(0)")
        A(f"buffer_store_dword v{vT+3}, v{vFlagO}, {WSR}, s{sXflag} offen{sc}")
        A(f"s_cmp_lt_i32 s{sS}, 0")
        A(f"s_cbranch_scc1 {Lpro}")
        A(f"s_branch {Lh1}")
        A.label(Lst)
        A(f"s_cmp_eq_u32 s{sS}, {P['nseg']}")
        A("s_cbranch_scc1 L_s1_done")
        if P.get("enc"):
            for st, r in ((2, 82), (12, 84), (52, 86)):
                Ld = A.newlabel("en")
                A(f"s_cmp_lg_u32 s{sS}, {st}")
                A(f"s_cbranch_scc1 {Ld}")
                A(f"s_memrealtime s[{r}:{r+1}]")
                A(f"s_memtime s[90:91]")
                A("s_waitcnt lgkmcnt(0)")
                A(f"s_mov_b32 s{r+1}, s90")
                A.label(Ld)
        if P.get("diag"):
            for st, ix in ((2, 2), (12, 3), (32, 4), (52, 5)):
                Ld = A.newlabel("dg")
                A(f"s_cmp_lg_u32 s{sS}, {st}")
                A(f"s_cbranch_scc1 {Ld}")
                A("s_mov_b64 s[84:85], vcc")
                dstamp(A, ix)
                A("s_mov_b64 vcc, s[84:85]")
                A.label(Ld)
        if mode != "loc": A("s_barrier")
        if mode == "loc":
            def miss(r):
                A(f"v_cmp_gt_u32 vcc, s{sS}, v{r}")
                if P["s3_miss"] == 0: return "s_cbranch_vccz"
                A(f"s_and_b32 s{sT0}, vcc_lo, 0x3ff")
                A(f"s_bcnt1_i32_b32 s{sT0}, s{sT0}")
                A(f"s_cmp_gt_u32 s{sT0}, {P['s3_miss']}")
                return "s_cbranch_scc0"
            Lg = A.newlabel("gate")
            A(f"s_cmp_lg_u32 s{sW}, 0")
            A(f"s_cbranch_scc1 {Lg}")
            dense_poll(A, [vT + i for i in range(P["dp"])], lambda r: A(f"buffer_load_dword v{r}, v{vMkO}, {WSR}, s{sMk} offen sc1"), miss, 13)
            A.label(Lg)
            A("s_barrier")
        if P["s3_slp"] and mode == "loc": A(f"s_sleep {P['s3_slp']}")
        fstamp(A, 10, 250)
        def s3ld(b, so):
            for i in range(2):
                A(f"buffer_load_dwordx4 {v(b+4*i,4)}, v{vL16}, {WSR}, s{so} offen offset:{1024*i} sc1")
        def s3sum(b, later):
            A(f"s_waitcnt vmcnt({1+later})")
            A(f"v_mfma_f32_16x16x32_bf16 {v(vT,4)}, {v(vSel,4)}, {v(b,4)}, 0")
            A(f"s_waitcnt vmcnt({later})")
            A(f"v_mfma_f32_16x16x32_bf16 {v(vT,4)}, {v(vSel,4)}, {v(b+4,4)}, {v(vT,4)}")
            A.nop(8)
            A(f"v_cmp_u_f32 vcc, v{vT}, v{vT+1}")
            A(f"v_cvt_pk_bf16_f32 v{vT+4}, v{vT}, v{vT+1}")
        if P["s3_two"]:
            Lsec = A.newlabel("s3b")
            stamp(A, 0)
            fstamp(A, 0, 250)
            s3ld(vPt, sPartRd)
            A(f"s_xor_b32 s{sT1}, s{sPartRd}, 8192")
            A(f"s_sleep {P['s3_two']}")
            s3ld(vPt + 8, sT1)
            s3sum(vPt, 2)
            A(f"s_cbranch_vccz {Lcont}")
            s3sum(vPt + 8, 0)
            A(f"s_cbranch_vccz {Lcont}")
        if P["nowatch"] and mode == "loc":
            Lw_ = A.newlabel("red")
            A(f"s_cmp_lt_u32 s{sU}, 40")
            A(f"s_cbranch_scc1 {Lw_}")
            A(f"s_sleep {P['nowatch']}")
            A(f"s_branch {Lh1}")
            A.label(Lw_)
        A.label(Ls3)
        stamp(A, 0)
        fstamp(A, 0, 250)
        s3ld(vPt, sPartRd)
        s3sum(vPt, 0)
        A(f"s_cbranch_vccnz {Lslow}")
        A.label(Lcont)
        A(f"buffer_store_dword v{vT+4}, v{vMemSt}, {WSR}, s{sMem0} offen{sc}")
        stamp(A, 1)
        fstamp(A, 1, 250)
        if P.get("x_ack") == 2: A("s_waitcnt vmcnt(0)")
        if P.get("memdbg"):
            A(f"s_mul_i32 s{sT0}, s{sS}, 10240")
            A(f"s_add_u32 s{sT0}, s{sT0}, {MEMDBG}")
            A(f"buffer_store_dword v{vT+4}, v{vMemSt}, {WSR}, s{sT0} offen")
        def h1ld(b, own):
            for i in range(len(own)):
                A(f"buffer_load_dwordx4 {v(b+4*i,4)}, v{vHld}, {WSR}, s{(sMem0, sMem1, sMem2)[i]} offen sc1")
        def h1chk(b, own, later):
            n = len(own); regs = list(range(b, b + 4 * n)); first = True
            for i in range(n):
                A(f"s_waitcnt vmcnt({n - 1 - i + later})")
                A(f"ds_write_b128 v{vHw}, {v(b+4*i,4)} offset:{4096*i}")
                avail = lambda k: len(regs) >= k and regs[k - 1] < b + 4 * (i + 1)
                if first: A(f"v_max3_u32 v{vMx}, v{regs[0]}, v{regs[1]}, v{regs[2]}"); regs = regs[3:]; first = False
                while avail(2): A(f"v_max3_u32 v{vMx}, v{regs[0]}, v{regs[1]}, v{vMx}"); regs = regs[2:]
            A(f"v_max_u32 v{vMx}, v{regs[0]}, v{vMx}")
            A(f"v_cmp_eq_u32 vcc, -1, v{vMx}")
            A("s_waitcnt lgkmcnt(0)")
        def smf2(src, j):
            A(f"v_smfmac_f32_16x16x64_bf16 {v(vA,4)}, {v(src,4)}, {a(8*j,8)}, v{vIdx}")
            A(f"v_smfmac_f32_16x16x64_bf16 {v(vA+4,4)}, {v(src,4)}, {a(80+8*j,8)}, v{vIdx}")
        if P["h1_slp"]: A(f"s_sleep {P['h1_slp']}")
        A.label(Lh1)
        for w in range(3):
            A(f"s_cmp_eq_u32 s{sW}, {w}")
            A(f"s_cbranch_scc1 {Lh1}_{w}")
        for w in (3, 0, 1, 2):
            own = [j for j in (w, w + 4, w + 8) if j < 10]
            rest = [j for j in range(10) if j not in own]
            n = len(own)
            Lretry, Lhok, LhokB, Lrest = [f"L_s1_{mode}_{x}_{w}" for x in ("h1retry", "h1ok", "h1okB", "h1rest")]
            def gather(b):
                A("s_barrier")
                fstamp(A, 3, 250)
                if P["prof"] in (3, 5): A("s_waitcnt lgkmcnt(0)")
                for j in rest: A(f"ds_read_b128 {v(vM+4*j,4)}, v{vHr} offset:{1024*j}")
                for i, j in enumerate(own): smf2(b + 4 * i, j)
            A.label(f"{Lh1}_{w}")
            h1ld(vH, own)
            fstamp(A, 2, 250)
            for r in range(8):
                A(f"v_mov_b32 v{vA+r}, 0")
            A(f"s_sleep {P['h1_two']}")
            h1ld(vH2, own)
            h1chk(vH, own, n)
            A(f"s_cbranch_vccnz {Lretry}")
            A.label(Lhok)
            gather(vH)
            A.label(Lrest)
            M1 = P["mk1"]
            for i, j in enumerate(rest):
                A(f"s_waitcnt lgkmcnt({len(rest) - 1 - i})")
                smf2(vM + 4 * j, j)
                if M1 and i == 0: marks()
                if M1 >= 2 and w == 0 and i == len(rest) - M1: mark1()
            if M1 == 1 and w == 0: mark1()
            xrd(0, 0); xrd(0, 1); xrd(1, 0); xrd(1, 1)
            if M1: A.nop(2 if (M1 == 1 and w == 0) else 3)
            else: marks()
            A(f"v_permlane32_swap_b32 v{vA}, v{vA+2}")
            A(f"v_permlane32_swap_b32 v{vA+1}, v{vA+3}")
            A(f"v_permlane32_swap_b32 v{vA+4}, v{vA+6}")
            A(f"v_permlane32_swap_b32 v{vA+5}, v{vA+7}")
            A(f"v_add_f32 v{vA}, v{vA}, v{vA+2}")
            A(f"v_add_f32 v{vA+4}, v{vA+4}, v{vA+6}")
            A(f"v_add_f32 v{vA+1}, v{vA+1}, v{vA+3}")
            A(f"v_add_f32 v{vA+5}, v{vA+5}, v{vA+7}")
            if P["xch"]:
                A(f"v_cvt_pk_bf16_f32 v{vT}, v{vA}, v{vA+4}")
                A(f"v_cvt_pk_bf16_f32 v{vT+5}, v{vA+1}, v{vA+5}")
                A(f"v_cvt_pk_bf16_f32 v{vT+1}, v{vA+1}, v{vA+5}")
                A(f"v_mov_b32_dpp v{vT+1}, v{vT} row_ror:8 row_mask:0xf bank_mask:0x3")
                A(f"v_mov_b32_dpp v{vT}, v{vT+5} row_ror:8 row_mask:0xf bank_mask:0xc")
                A(f"buffer_store_dword v{vT+1}, v{vQkvS2}, {WSR}, s{sQkv} offen{sc}")
                A(f"buffer_store_dword v{vT}, v{vQkvSt}, {WSR}, s{sQkv} offen{sc}")
            else:
                A(f"v_cvt_pk_bf16_f32 v{vT}, v{vA}, v{vA+4}")
                A(f"buffer_store_dword v{vT}, v{vQkvSt}, {WSR}, s{sQkv} offen{sc}")
                A(f"v_cvt_pk_bf16_f32 v{vT+1}, v{vA+1}, v{vA+5}")
                A(f"buffer_store_dword v{vT+1}, v{vQkvSt}, {WSR}, s{sQkv} offen offset:16{sc}")
            stamp(A, 4)
            fstamp(A, 4, 250)
            A(f"s_branch {Lb}")
            A.label(Lretry)
            stamp(A, 3)
            budget_check(A, 3)
            h1ld(vH, own)
            h1chk(vH2, own, n)
            A(f"s_cbranch_vccz {LhokB}")
            h1ld(vH2, own)
            h1chk(vH, own, n)
            A(f"s_cbranch_vccz {Lhok}")
            A(f"s_branch {Lretry}")
            A.label(LhokB)
            gather(vH2)
            A(f"s_branch {Lrest}")
        A.label(Lslow)
        A(f"v_max3_u32 v{vMx}, v{vPt}, v{vPt+1}, v{vPt+2}")
        for i in range(3, 7, 2):
            A(f"v_max3_u32 v{vMx}, v{vPt+i}, v{vPt+i+1}, v{vMx}")
        A(f"v_max_u32 v{vMx}, v{vPt+7}, v{vMx}")
        A(f"v_cmp_eq_u32 vcc, -1, v{vMx}")
        A(f"v_min_u32 v{vT+4}, -2, v{vT+4}")
        A(f"s_cbranch_vccz {Lcont}")
        budget_check(A, 2)
        A(f"s_branch {Ls3}")

    A.label("L_s1_done")
    dstamp(A, 6)
    if P.get("enc"):
        Le, Ls = A.newlabel("enc"), A.newlabel("encs")
        A(f"s_or_b32 s92, s2, s{sW}")
        A(f"s_cbranch_scc1 {Le}")
        A("s_memrealtime s[88:89]")
        A("s_waitcnt lgkmcnt(0)")
        e = P["enc"]
        if e == 1: A("s_mov_b32 s92, 0")
        if e == 2: A("s_sub_u32 s92, s82, s80"); A("s_mul_i32 s92, s92, 4")
        if e == 3: A("s_sub_u32 s92, s86, s84")
        if e == 4: A("s_sub_u32 s92, s87, s85"); A("s_lshr_b32 s92, s92, 4")
        if e == 5: A("s_sub_u32 s92, s88, s80")
        A("s_add_u32 s92, s92, 25000")
        A("s_add_u32 s92, s92, s80")
        A.label(Ls)
        A("s_memrealtime s[88:89]")
        A("s_waitcnt lgkmcnt(0)")
        A("s_sub_u32 s88, s88, s92")
        A("s_cmp_lt_i32 s88, 0")
        A(f"s_cbranch_scc1 {Ls}")
        A.label(Le)
    A(f"s_cmp_lg_u32 s{sW}, 0")
    A("s_cbranch_scc1 L_end")
    A("s_cmp_ge_u32 s2, 80")
    A("s_cbranch_scc1 L_end")
    A(f"s_add_u32 s74, s2, {20 * (P['nseg'] - 4)}")
    A("s_mov_b32 s79, 0")
    A("s_mov_b32 s32, 0")
    A("s_branch L_mixent")

def gen_s2(A):
    sJ = 30
    sQkv, sQkvBase, sPartW, sPartP, sPartBase, sXk, sXv, sXrBase, sXrEnd = 31, 32, 33, 34, 35, 36, 37, 38, 39
    sPx, sPxBase, sXp, sXpF, sXfl, sMark, sMk1, sC, sNeed = 40, 41, 42, 43, 44, 45, 46, 47, 48
    sQkv1, sQkv2 = 49, 50
    sXk1, sXk2, sXv1, sXv2 = 51, 52, 53, 54
    sLo = 56
    sSt0, sSt1, sSt2, sSt3 = 58, 59, 88, 89
    vL16, vKmO, vIdx, vRedW, vRedR, vPartO, vL8, vFlagO, vXflO, vProbe, vRed2R = 1, 2, 3, 4, 5, 6, 7, 8, 9, 10, 11
    vPois = 12
    vT = 16
    vQ, vKM, vVM = 32, 44, 56
    vFl, vMx, vMark = 68, 69, 98
    vOne32, vOne16 = 70, 74
    vS, vSM, vW = 76, 92, 96
    vVA, vF, vDen, vPb = 100, 116, 132, 136
    vVOM2 = (142, 228)
    vRed2W, vXfv, vGhO = 99, 150, 151
    sGh = 55
    fin_parts = {}
    vVOX, vXA, vPX = 152, 184, 216
    aKX, aVX = 96, 144
    vXOUT = 24
    RED, RED2 = 98304, 106496
    c = (192 ** -0.5) * math.log2(math.e)
    A.label("L_s2")
    A(f"s_sub_u32 s{sJ}, s{sR}, 18")
    A(f"s_load_dwordx2 s[{sRO}:{sRO+1}], s[0:1], 40")
    A(f"v_lshlrev_b32 v{vL16}, 4, v0")
    A(f"v_lshrrev_b32 v{vT}, 3, v0")
    A(f"v_mul_u32_u24 v{vT}, 1280, v{vT}")
    A(f"v_and_b32 v{vT+1}, 7, v0")
    A(f"v_lshl_add_u32 v{vT}, v{vT+1}, 4, v{vT}")
    A(f"s_lshl_b32 s{sT0}, s{sG}, 2")
    A(f"s_add_u32 s{sT0}, s{sT0}, s{sW}")
    A(f"s_mul_i32 s{sT0}, s{sT0}, {192 * 1280}")
    A(f"s_lshl_b32 s{sT1}, s{sJ}, 7")
    A(f"s_add_u32 s{sT0}, s{sT0}, s{sT1}")
    A(f"s_mul_i32 s{sT2}, s{sW}, 24576")
    A(f"s_mov_b32 m0, s{sT2}")
    A("s_waitcnt lgkmcnt(0)")
    srd(A, sRO, 6144 * 1280)
    if P["s2_late"]:
        A(f"s_mov_b32 s{sQkv}, s{sT0}")
        A(f"s_mov_b32 s{sQkv+1}, s{sT2}")
        gen_locality(A, None, None, vT + 8)
        A(f"s_mov_b32 s{sT0}, s{sQkv}")
        A(f"s_mov_b32 s{sT2}, s{sQkv+1}")
    for i in range(24):
        A(f"buffer_load_dwordx4 v{vT}, s[{sRO}:{sRO+3}], s{sT0} offen{' nt' if P['wnt'] else ''} lds")
        if i < 23:
            A("s_add_u32 m0, m0, 1024")
            A(f"s_add_u32 s{sT0}, s{sT0}, {8 * 1280}")
    A(f"v_and_b32 v{vT+1}, 15, v0")
    A(f"v_lshrrev_b32 v{vT+2}, 4, v0")
    A(f"v_cmp_gt_u32 s[{sLo}:{sLo+1}], 8, v{vT+1}")
    A(f"v_mov_b32 v{vT+3}, 0xeeee")
    A(f"v_mov_b32 v{vT+4}, 0x4444")
    A(f"v_cndmask_b32 v{vIdx}, v{vT+3}, v{vT+4}, s[{sLo}:{sLo+1}]")
    for r in range(4): A(f"v_mov_b32 v{vPois+r}, -1")
    A(f"v_lshlrev_b32 v{vL8}, 3, v0")
    A(f"v_mov_b32 v{vT+3}, 0x3f803f80")
    for r in range(4): A(f"v_mov_b32 v{vOne32+r}, v{vT+3}")
    A(f"v_cmp_gt_u32 vcc, 32, v0")
    A("s_nop 1")
    for r in range(2): A(f"v_cndmask_b32 v{vOne16+r}, 0, v{vT+3}, vcc")
    A(f"s_lshl_b32 s{sT0}, s{sW}, 11")
    A(f"s_add_u32 s{sT0}, s{sT0}, {RED}")
    A(f"v_lshrrev_b32 v{vT+3}, 1, v0")
    A(f"v_and_b32 v{vT+3}, 8, v{vT+3}")
    A(f"v_xor_b32 v{vT+3}, v0, v{vT+3}")
    A(f"v_lshl_add_u32 v{vRedW}, v{vT+3}, 4, s{sT0}")
    A(f"v_bfe_u32 v{vT+3}, v0, 3, 2")
    A(f"v_and_b32 v{vT+4}, 3, v0")
    A(f"v_lshl_add_u32 v{vT+3}, v{vT+4}, 2, v{vT+3}")
    A(f"v_bfe_u32 v{vT+4}, v0, 1, 2")
    A(f"v_lshl_add_u32 v{vT+3}, v{vT+4}, 4, v{vT+3}")
    A(f"s_lshr_b32 s{sT1}, s{sW}, 1")
    A(f"s_lshl_b32 s{sT1}, s{sT1}, 3")
    A(f"v_xor_b32 v{vT+3}, s{sT1}, v{vT+3}")
    A(f"s_and_b32 s{sT0}, s{sW}, 1")
    A(f"s_lshl_b32 s{sT0}, s{sT0}, 10")
    A(f"s_add_u32 s{sT0}, s{sT0}, {RED}")
    A(f"v_lshl_add_u32 v{vRedR}, v{vT+3}, 4, s{sT0}")
    A(f"s_lshl_b32 s{sT0}, s{sW}, 11")
    A(f"s_add_u32 s{sT0}, s{sT0}, {RED2}")
    A(f"v_add_u32 v{vRed2R}, s{sT0}, v{vL16}")
    A(f"s_lshl_b32 s{sT0}, s{sW}, 13")
    A(f"s_add_u32 s{sT0}, s{sT0}, {RED2}")
    A(f"v_add_u32 v{vRed2W}, s{sT0}, v{vL16}")
    A(f"v_and_b32 v{vT+4}, 31, v0")
    A(f"v_lshlrev_b32 v{vT+4}, 3, v{vT+4}")
    A(f"v_lshrrev_b32 v{vT+5}, 5, v0")
    A(f"v_lshl_add_u32 v{vPartO}, v{vT+5}, 13, v{vT+4}")
    A(f"v_mov_b32 v{vT+3}, {OOB}")
    A(f"v_cmp_eq_u32 vcc, 0, v0")
    A("s_nop 1")
    A(f"v_cndmask_b32 v{vFlagO}, v{vT+3}, v0, vcc")
    A(f"v_min_u32 v{vXflO}, 11, v0")
    A(f"v_lshlrev_b32 v{vXflO}, 2, v{vXflO}")
    A(f"v_min_u32 v{vProbe}, 17, v0")
    A(f"v_lshlrev_b32 v{vProbe}, 2, v{vProbe}")
    A(f"s_mul_i32 s{sQkvBase}, s{sG}, 147456")
    A(f"s_mul_i32 s{sT0}, s{sW}, 9216")
    A(f"s_add_u32 s{sQkvBase}, s{sQkvBase}, s{sT0}")
    A(f"s_add_u32 s{sQkvBase}, s{sQkvBase}, {QKVR}")
    A(f"s_lshl_b32 s{sPartBase}, s{sJ}, 14")
    A(f"s_lshl_b32 s{sT0}, s{sW}, 11")
    A(f"s_add_u32 s{sPartBase}, s{sPartBase}, s{sT0}")
    A(f"s_lshl_b32 s{sT0}, s{sG}, 8")
    A(f"s_add_u32 s{sPartBase}, s{sPartBase}, s{sT0}")
    A(f"s_add_u32 s{sPartBase}, s{sPartBase}, {PART}")
    A(f"s_mul_i32 s{sXrBase}, s{sG}, {XR_G}")
    A(f"s_mul_i32 s{sT0}, s{sW}, {XR_HEAD}")
    A(f"s_add_u32 s{sXrBase}, s{sXrBase}, s{sT0}")
    A(f"s_add_u32 s{sXrBase}, s{sXrBase}, {0x5000000 if P.get('x_fixkv') else XR}")
    A(f"s_add_u32 s{sXrEnd}, s{sXrBase}, {XR_G}")
    A(f"s_mul_i32 s{sPxBase}, s{sG}, 49152")
    A(f"s_mul_i32 s{sT0}, s{sW}, 3072")
    A(f"s_add_u32 s{sPxBase}, s{sPxBase}, s{sT0}")
    A(f"s_add_u32 s{sPxBase}, s{sPxBase}, {PXR}")
    A(f"s_lshl_b32 s{sXp}, s{sJ}, 15")
    A(f"s_lshl_b32 s{sT0}, s{sG}, 12")
    A(f"s_add_u32 s{sXp}, s{sXp}, s{sT0}")
    A(f"s_lshl_b32 s{sT0}, s{sW}, 10")
    A(f"s_add_u32 s{sXp}, s{sXp}, s{sT0}")
    A(f"s_add_u32 s{sXp}, s{sXp}, {XPART}")
    A(f"s_lshl_b32 s{sXpF}, s{sJ}, 7")
    A(f"s_lshl_b32 s{sT0}, s{sG}, 4")
    A(f"s_add_u32 s{sXpF}, s{sXpF}, s{sT0}")
    A(f"s_lshl_b32 s{sT0}, s{sW}, 2")
    A(f"s_add_u32 s{sXpF}, s{sXpF}, s{sT0}")
    A(f"s_add_u32 s{sXpF}, s{sXpF}, {XPFLAG}")
    A(f"s_lshl_b32 s{sXfl}, s{sG}, 9")
    A(f"s_mul_i32 s{sT0}, s{sW}, 72")
    A(f"s_add_u32 s{sXfl}, s{sXfl}, s{sT0}")
    A(f"s_add_u32 s{sXfl}, s{sXfl}, {XFLAG + 24}")
    A(f"s_lshl_b32 s{sMk1}, s{sG}, 7")
    A(f"s_lshl_b32 s{sT0}, s{sJ}, 2")
    A(f"s_add_u32 s{sMark}, s{sMk1}, s{sT0}")
    A(f"s_add_u32 s{sMark}, s{sMark}, {S2MARK}")
    A(f"s_cmp_eq_u32 s{sW}, 0")
    A(f"s_cselect_b32 s{sMark}, s{sMark}, {OOB}")
    A(f"s_add_u32 s{sMk1}, s{sMk1}, {S1MARK}")
    A(f"s_lshl_b32 s{sGh}, s{sG}, 2")
    A(f"s_add_u32 s{sGh}, s{sGh}, {GHINT}")
    A(f"s_lshl_b32 s{sT0}, s{sJ}, 2")
    A(f"s_add_u32 s{sT0}, s{sT0}, s{sW}")
    A(f"s_cmp_eq_u32 s{sT0}, {4 * P['gh_j']}")
    A(f"s_cselect_b32 s{sGh}, s{sGh}, {OOB}")
    A(f"v_lshlrev_b32 v{vT+4}, 13, v0")
    A(f"v_cmp_gt_u32 vcc, 2, v0")
    A(f"v_mov_b32 v{vT+5}, {OOB}")
    A("s_nop 0")
    A(f"v_cndmask_b32 v{vGhO}, v{vT+5}, v{vT+4}, vcc")
    A(f"s_mov_b32 s{sC}, {f2u(c):#x}")
    A(f"v_bfe_u32 v{vT+3}, v0, 3, 1")
    A(f"v_bfe_u32 v{vT+4}, v0, 2, 1")
    A(f"v_lshl_add_u32 v{vT+3}, v{vT+4}, 4, v{vT+3}")
    A(f"v_lshl_add_u32 v{vT+3}, v{vT+2}, 2, v{vT+3}")
    A(f"v_lshlrev_b32 v{vT+3}, 7, v{vT+3}")
    A(f"v_and_b32 v{vT+4}, 3, v0")
    A(f"v_lshl_add_u32 v{vT+3}, v{vT+4}, 3, v{vT+3}")
    A(f"v_add_u32 v{vT+3}, s{sT2}, v{vT+3}")
    for ks in range(6):
        A(f"s_waitcnt vmcnt({24 - 4 * (ks + 1)})")
        for ct in range(4):
            for hf in range(2):
                A(f"ds_read_b64_tr_b16 a[{24*ct+4*ks+2*hf}:{24*ct+4*ks+2*hf+1}], v{vT+3} offset:{ks*4096+hf*256+ct*32}")
    A("s_waitcnt lgkmcnt(0)")
    ostamp(A, 0, 1)
    def xflag_wait(have_loaded):
        L, Lok = A.newlabel("xfl"), A.newlabel("xflok")
        if have_loaded:
            A(f"v_cmp_gt_u32 vcc, s{sNeed}, v{vFl}")
            A(f"s_cbranch_vccz {Lok}")
        A.label(L)
        A(f"buffer_load_dword v{vFl}, v{vXflO}, {WSR}, s{sXfl} offen sc1")
        budget_check(A, 4)
        A("s_waitcnt vmcnt(0)")
        A(f"v_cmp_gt_u32 vcc, s{sNeed}, v{vFl}")
        A(f"s_cbranch_vccnz {L}")
        A.label(Lok)
    def xload(dst, t, ks, so):
        off = ks * 2048 + t * 1024
        A(f"buffer_load_dwordx4 {a(dst + 4 * (6 * t + ks), 4)}, v{vL16}, {WSR}, s{so[off // 4096]} offen offset:{off % 4096} sc1")
    if not P["s2_late"]: gen_locality(A, None, None, vT)
    if P["touch"]:
        A(f"s_lshl_b32 s{sT1}, s{sJ}, 2")
        A(f"s_add_u32 s{sT1}, s{sT1}, s{sW}")
        for base, per_g, n in ((XR, XR_G, 15),) * (P['touch'] == 2) + ((QKVR, 147456, 4), (PXR, 49152, 2), (MEMR, 40960, 1)):
            A(f"s_mul_i32 s{sT0}, s{sG}, {per_g}")
            A(f"s_mul_i32 s{sT2}, s{sT1}, {n * 1024}")
            A(f"s_min_u32 s{sT2}, s{sT2}, {per_g - n * 1024}")
            A(f"s_add_u32 s{sT0}, s{sT0}, s{sT2}")
            A(f"s_add_u32 s{sT0}, s{sT0}, {base}")
            for i in range(n):
                if i and i % 4 == 0: A(f"s_add_u32 s{sT0}, s{sT0}, 4096")
                A(f"buffer_load_dwordx4 {v(vQ,4)}, v{vL16}, {WSR}, s{sT0} offen offset:{1024*(i%4)} sc1")
    A(f"s_mov_b32 s{sNeed}, 1")
    xflag_wait(False)
    A(f"s_add_u32 s{sXv}, s{sXrBase}, 24576")
    A(f"s_add_u32 s{sXv1}, s{sXv}, 4096")
    A(f"s_add_u32 s{sXv2}, s{sXv}, 8192")
    for ks in range(6):
        for t in range(2): xload(aVX, t, ks, (sXv, sXv1, sXv2))
    A(f"s_mov_b32 s{sXk}, s{sXrBase}")
    A(f"s_mov_b32 s{sS}, -1")
    for r in (sSt1,): A(f"s_mov_b32 s{r}, {OOB}")
    A(f"v_mov_b32 v{vXfv}, 0")
    A("s_waitcnt vmcnt(0)")

    Lbub, Latt, Lretry, Lnost, Lnox = "L_s2_bub", "L_s2_att", "L_s2_retry", "L_s2_nost", "L_s2_nox"
    for par in range(2):
        voxc = vVOX + 16 * par
        voxn = vVOX + 16 * (1 - par)
        vomc, vomo = vVOM2[par], vVOM2[1 - par]
        vVOM = vomc
        sfx = f"_{par}"
        if par == 0:
            A(f"s_branch {Lbub}_1")
        align(A, P["al2"])
        A.label(f"L_s2_top{sfx}")
        def miss(r):
            A(f"v_cmp_ge_i32 vcc, s{sS}, v{r}")
            if P["h2_miss"] == 0 and P["h2_mask"] == 0x3ffff: return "s_cbranch_vccz"
            if P["h2_miss"] == 17 and P["h2_mask"] == 0x3ffff:
                A("s_cmp_eq_u64 vcc, -1")
                return "s_cbranch_scc0"
            A(f"s_and_b32 s{sT0}, vcc_lo, {P['h2_mask']:#x}")
            A(f"s_bcnt1_i32_b32 s{sT0}, s{sT0}")
            A(f"s_cmp_gt_u32 s{sT0}, {P['h2_miss']}")
            return "s_cbranch_scc0"
        Lg = A.newlabel("gate")
        A(f"s_cmp_lg_u32 s{sW}, 0")
        A(f"s_cbranch_scc1 {Lg}")
        dense_poll(A, [vT + i for i in range(P["dp"])], lambda r: A(f"buffer_load_dword v{r}, v{vProbe}, {WSR}, s{sMk1} offen sc1"), miss, 5)
        A.label(Lg)
        A("s_barrier")
        A.label(Latt + sfx)
        stamp(A, 0, 252)
        fstamp(A, 0, 252)
        fill = [f"v_mov_b32 v{vVA+r}, 0" for r in range(16)] + [f"s_add_u32 s{sT0}, s{sS}, 1", f"v_mov_b32 v{vMark}, s{sT0}",
                f"v_mov_b32 v{vMx}, 0", f"v_mov_b32 v{vW}, 0xff7fffff", f"v_mov_b32 v{vW+1}, 0xff7fffff"]
        lds_ = [f"buffer_load_dwordx4 {v(base+4*j,4)}, v{vL16}, {WSR}, s{so} offen offset:{1024*j} sc1"
                for base, so in ((vQ, sQkv), (vKM, sQkv1), (vVM, sQkv2)) for j in range(3)]
        NI = P.get("h2_first", 6)
        issued = 0
        for x in lds_[:NI]:
            A(x); issued += 1
            for _ in range(4):
                if fill: A(fill.pop(0))
        for x in fill: A(x)
        def more(n=1):
            nonlocal issued
            for _ in range(n):
                if issued < len(lds_):
                    A(lds_[issued]); issued += 1
        def need(i): A(f"s_waitcnt vmcnt({issued - 1 - i})")
        def vslot():
            nonlocal issued
            if len(vpos) < NVC and NVC > 3:
                e = vcrit[len(vpos)]
                xload(aVX, e[0], e[1], (sXv, sXv1, sXv2))
                vpos[e] = issued; issued += 1
            else: A("s_nop 0")
        NVC = P["nvc"]
        vall = [(t, ks) for ks in range(6) for t in range(2)]
        vcrit = vall[:NVC]
        vpos = {}
        xoq = [f"buffer_store_dwordx4 {v(vXOUT,4)}, v{vL16}, {WSR}, s{sSt1} offen sc1" if not P.get("x_noxout") else f"buffer_store_dword v{vXOUT}, v{vFlagO}, {WSR}, s{sMark} offen offset:64"]
        xo_after = [xoq.pop(0)] if P["xo_pos"] == 1 else []
        def vmore():
            nonlocal issued
            if xoq:
                A(xoq.pop(0)); issued += 1
            elif len(vpos) < NVC:
                e = vcrit[len(vpos)]
                xload(aVX, e[0], e[1], (sXv, sXv1, sXv2))
                vpos[e] = issued; issued += 1
        def chk(r0): return f"v_max3_u32 v{vMx}, v{r0}, v{r0+1}, v{vMx}"
        DPP = "row_ror:8 row_mask:0xf bank_mask:"
        for j in range(3):
            need(j)
            if j == 0: fstamp(A, 1, 252)
            k = 0
            for t in range(2):
                for pr in range(2):
                    acc = vS + 4 * (2 * t + pr)
                    cc = "0" if j == 0 else v(acc, 4)
                    A(f"v_mfma_f32_16x16x32_bf16 {v(acc,4)}, {a(aKX+4*(6*t+2*j+pr),4)}, {v(vQ+4*j,4)}, {cc}")
                    if k < 2: A(chk(vQ + 4 * j + 2 * k))
                    if k == 2: more()
                    k += 1
        more(99)
        Lqr, Lqb = A.newlabel("qretry"), A.newlabel("qback")
        if P["qchk"]:
            A(f"v_cmp_eq_u32 vcc, -1, v{vMx}")
            need(3)
            A(f"s_cbranch_vccnz {Lqr}")
            A.label(Lqb)
        smf = [f"v_smfmac_f32_16x16x64_bf16 {v(vVA+4*ct,4)}, {v(vVM+4*j,4)}, {a(24*ct+8*j,8)}, v{vIdx}" for j in range(3) for ct in range(4)]
        chks = [chk(vVM + 2 * i) for i in range(6)]
        vals = [vS + r for r in range(4)] + [vW, vW + 1]
        vm, vt2 = vT, vT + 1
        xa = [f"v_add_f32_dpp v{vS+r}, v{vS+4+r}, v{vS+r} {DPP}0xf" for r in range(4)] + [f"v_add_f32_dpp v{vS+r}, v{vS+8+r}, v{vS+12+r} {DPP}0xc" for r in range(4)]
        def smm(j):
            need(3 + j)
            A(f"v_mfma_f32_16x16x32_bf16 {v(vSM,4)}, {v(vKM+4*j,4)}, {v(vQ+4*j,4)}, {'0' if j == 0 else v(vSM,4)}")
            A(chk(vKM + 4 * j)); A(chk(vKM + 4 * j + 2))
        smm(0); smm(1)
        for x in xa[:4]: A(x)
        smm(2)
        fstamp(A, 2, 252)
        A(f"v_cmp_eq_u32 vcc, -1, v{vMx}")
        for x in xa[4:]: A(x)
        A(f"v_max3_f32 v{vm}, v{vals[0]}, v{vals[1]}, v{vals[2]}")
        A(f"v_permlane32_swap_b32 v{vSM}, v{vSM+1}")
        A(f"v_permlane32_swap_b32 v{vSM+2}, v{vSM+3}")
        need(6)
        fstamp(A, 3, 252)
        A(smf[0])
        A(f"v_add_f32_dpp v{vW}, v{vSM+1}, v{vSM} {DPP}0x3")
        A(f"v_add_f32_dpp v{vW+1}, v{vSM+3}, v{vSM+2} {DPP}0x3")
        A(smf[1])
        A(f"v_max3_f32 v{vm}, v{vals[3]}, v{vals[4]}, v{vm}")
        A(f"v_max_f32 v{vm}, v{vals[5]}, v{vm}")
        A(smf[2])
        A(f"s_cbranch_vccnz {Lretry}{sfx}")
        A(f"v_max_f32_dpp v{vm}, v{vm}, v{vm} {DPP}0xf")
        A(f"v_mov_b32 v{vt2}, v{vm}")
        hint = f"buffer_store_dword v{vMark}, v{vGhO}, {WSR}, s{sGh} offen sc1"
        A(smf[3])
        if P["gh"] == 1: A(hint); issued += 1
        else: vslot()
        A(f"v_permlane32_swap_b32 v{vm}, v{vt2}")
        A(f"v_max_f32 v{vm}, v{vm}, v{vt2}")
        A(f"v_mov_b32 v{vt2}, v{vm}")
        need(7)
        A(smf[4])
        A(f"v_permlane16_swap_b32 v{vm}, v{vt2}")
        A(f"v_max_f32 v{vm}, v{vm}, v{vt2}")
        A(smf[5])
        A(f"v_mul_f32 v{vm}, s{sC}, v{vm}")
        fm = [f"v_fma_f32 v{x}, v{x}, s{sC}, -v{vm}" for x in vals]
        ex = [f"v_exp_f32 v{x}, v{x}" for x in vals]
        A(fm[0])
        A(smf[6]); A(fm[1]); A(fm[2])
        A(smf[7]); A(fm[3]); need(8)
        if P["xo_pos"] == 2: vmore()
        if P["gh"] == 2: A(hint); issued += 1
        A(smf[8]); A(ex[0])
        A(smf[9]); A(ex[1])
        A(smf[10]); A(ex[2])
        A(smf[11]); A(ex[3])
        if P["gh"] == 3: A(hint); issued += 1
        A(f"v_cvt_pk_bf16_f32 v{vPb}, v{vals[0]}, v{vals[1]}")
        A(f"v_cvt_pk_bf16_f32 v{vPb+1}, v{vals[2]}, v{vals[3]}")
        A(fm[4])
        A(f"v_mov_b32_dpp v{vPb+2}, v{vPb} {DPP}0xf")
        A(f"v_mov_b32_dpp v{vPb+3}, v{vPb+1} {DPP}0xf")
        A(fm[5]); A(ex[4])
        def fin32(ct): A(f"v_mfma_f32_16x16x32_bf16 {v(vF+4*ct,4)}, {v(voxc+4*ct,4)}, {v(vPb,4)}, 0")
        def fin16(ct): A(f"v_mfma_f32_16x16x16_bf16 {v(vF+4*ct,4)}, {v(vVOM+2*ct,2)}, {v(vPb+4,2)}, {v(vF+4*ct,4)}")
        def cvom(ct):
            A(f"v_cvt_pk_bf16_f32 v{vVOM+2*ct}, v{vVA+4*ct}, v{vVA+4*ct+2}")
            A(f"v_cvt_pk_bf16_f32 v{vVOM+2*ct+1}, v{vVA+4*ct+1}, v{vVA+4*ct+3}")
        def slot():
            if xoq or len(vpos) < NVC: vmore()
            else: A("s_nop 0")
        fin32(0); A(ex[5])
        if NVC > 4 and P["xo_pos"] == 0: vmore()
        A(f"v_mfma_f32_16x16x32_bf16 {v(vDen,4)}, {v(vOne32,4)}, {v(vPb,4)}, 0")
        cvom(0)
        fin32(2)
        A(f"v_cvt_pk_bf16_f32 v{vPb+4}, v{vals[4]}, v{vals[5]}")
        A(f"v_mov_b32 v{vPb+5}, v{vPb+4}")
        fin32(1); cvom(2)
        fin32(3)
        if NVC > 5: vmore()
        A(f"v_permlane32_swap_b32 v{vPb+4}, v{vPb+5}")
        cvom(1)
        A(f"v_mfma_f32_16x16x16_bf16 {v(vDen,4)}, {v(vOne16,2)}, {v(vPb+4,2)}, {v(vDen,4)}")
        cvom(3)
        fin16(0); slot()
        fin16(2); slot(); slot()
        fin16(1)
        A(f"v_rcp_f32 v{vT+4}, v{vDen}")
        slot()
        fin16(3)
        fstamp(A, 4, 252)
        fstamp(A, 5, 252)
        A(f"v_mov_b32_dpp v{vT+4}, v{vT+4} {DPP}0xc")
        A(f"v_cmp_u_f32 vcc, v{vF}, v{vF}")
        Lvs, Lvb = A.newlabel("vslow"), A.newlabel("vback")
        for pc in range(2):
            for r in range(4):
                A(f"v_mul_f32 v{vF+4*pc+r}, v{vF+4*pc+r}, v{vT+4}")
            for r in range(4):
                A(f"v_mul_f32_dpp v{vF+4*pc+r}, v{vF+4*(pc+2)+r}, v{vT+4} row_ror:8 row_mask:0xf bank_mask:0xc")
            if pc == 0:
                A(f"s_cbranch_vccnz {Lvs}")
                A.label(Lvb)
            A(f"ds_write_b128 v{vRedW}, {v(vF+4*pc,4)} offset:{1024*pc}")
        xo_late = list(xoq)
        assert len(vpos) == NVC
        mark = f"buffer_store_dword v{vMark}, v{vFlagO}, {WSR}, s{sMark} offen"
        if P["mk_pos"] == 0: A(mark)
        fstamp(A, 6, 252)
        A("s_waitcnt lgkmcnt(0)")
        A("s_barrier")
        fstamp(A, 7, 252)
        if P["prof"] in (3, 5): A("s_waitcnt lgkmcnt(0)")
        for h in range(4):
            A(f"ds_read_b128 {v(vF+4*h,4)}, v{vRedR} offset:{2048*h}")
        if P["mk_pos"] == 1: A(mark)
        A("s_waitcnt lgkmcnt(2)")
        A(f"v_pk_add_f32 {v(vF,2)}, {v(vF,2)}, {v(vF+4,2)}")
        A(f"v_pk_add_f32 {v(vF+2,2)}, {v(vF+2,2)}, {v(vF+6,2)}")
        A("s_waitcnt lgkmcnt(0)")
        A(f"v_pk_add_f32 {v(vF+8,2)}, {v(vF+8,2)}, {v(vF+12,2)}")
        A(f"v_pk_add_f32 {v(vF+10,2)}, {v(vF+10,2)}, {v(vF+14,2)}")
        A(f"v_pk_add_f32 {v(vF,2)}, {v(vF,2)}, {v(vF+8,2)}")
        A(f"v_pk_add_f32 {v(vF+2,2)}, {v(vF+2,2)}, {v(vF+10,2)}")
        A(f"v_cvt_pk_bf16_f32 v{vF}, v{vF}, v{vF+1}")
        A(f"v_cvt_pk_bf16_f32 v{vF+1}, v{vF+2}, v{vF+3}")
        A(f"buffer_store_dwordx2 {v(vF,2)}, v{vPartO}, {WSR}, s{sPartW} offen sc1")
        if P["mk_pos"] == 2: A(mark)
        issued += 2
        for x in xo_after: A(x); issued += 1
        stamp(A, 1, 252)
        fstamp(A, 8, 252)
        A.label(Lbub + sfx)
        sal = [f"s_add_u32 s{sT2}, s{sXk}, 12288",
               f"s_add_u32 s{sXk1}, s{sXk}, {12288 + 4096}",
               f"s_add_u32 s{sXk2}, s{sXk}, {12288 + 8192}",
               f"s_add_u32 s{sXk}, s{sXk}, {XR_SLOT}",
               f"s_cmp_eq_u32 s{sXk}, s{sXrEnd}",
               f"s_cselect_b32 s{sXk}, s{sXrBase}, s{sXk}",
               f"s_and_b32 s{sT0}, s{sS}, 3",
               f"s_mul_i32 s{sPx}, s{sT0}, 12288",
               f"s_add_u32 s{sPx}, s{sPx}, s{sPxBase}",
               f"s_add_u32 s{sT0}, s{sS}, 1",
               f"s_and_b32 s{sT0}, s{sT0}, 3",
               f"s_mul_i32 s{sPartW}, s{sT0}, {PART_SLOT}",
               f"s_add_u32 s{sPartW}, s{sPartW}, s{sPartBase}",
               f"s_mul_i32 s{sQkv}, s{sT0}, 36864",
               f"s_add_u32 s{sQkv}, s{sQkv}, s{sQkvBase}",
               f"s_add_u32 s{sQkv1}, s{sQkv}, 3072",
               f"s_add_u32 s{sQkv2}, s{sQkv}, 6144",
               f"s_cmp_lt_i32 s{sS}, 1",
               f"s_cselect_b32 s{sSt1}, {OOB}, s{sXp}",
               f"s_cselect_b32 s{sT0}, 0, {XP_SEG if not P.get('x_ring') else 0}",
               f"s_add_u32 s{sXp}, s{sXp}, s{sT0}"]
        fstamp(A, 9, 252)
        def pxload():
            for i in range(3):
                A(f"buffer_load_dwordx4 {v(vPX+4*i,4)}, v{vL16}, {WSR}, s{sPx} offen offset:{1024*i} sc1")
        kq = [("k", t, ks) for ks in range(6) for t in range(2)]
        PP = P["ppos"]
        q = [("v",) + e for e in vall[NVC:]] + kq[:PP] + [("p", i) for i in range(3)] + kq[PP:]
        def nxt(n=1):
            nonlocal issued
            for _ in range(n):
                if not q: return
                e = q.pop(0)
                if e == ("p", 2): vpos["p"] = issued
                if e[0] == "v": vpos[e[1:]] = issued
                issued += 1
                if e[0] == "p":
                    A(f"buffer_load_dwordx4 {v(vPX+4*e[1],4)}, v{vL16}, {WSR}, s{sPx} offen offset:{1024*e[1]} sc1"); continue
                if P.get("x_nokv") and e[0] in "kv" : A(f"buffer_load_dword v{vT+7}, v{vFlagO}, {WSR}, 0 offen"); continue
                if P.get("x_noxout") and e[0] == "s" and e[1] in (1, 2): A(f"buffer_load_dword v{vT+7}, v{vFlagO}, {WSR}, 0 offen"); continue
                if e[0] == "k": xload(aKX, e[1], e[2], (sT2, sXk1, sXk2))
                elif e[0] == "v": xload(aVX, e[1], e[2], (sXv, sXv1, sXv2))
                elif e[1] == 0: A(f"buffer_store_dwordx2 {v(vPois,2)}, v{vPartO}, {WSR}, s{sSt0} offen sc1")
                elif e[1] == 1: A(f"buffer_store_dwordx4 {v(vXOUT,4)}, v{vL16}, {WSR}, s{sSt1} offen {XOF[P.get('x_fl', 0)]}")
                elif e[1] == 2: A(f"buffer_store_dwordx4 {v(vXOUT+4,4)}, v{vL16}, {WSR}, s{sSt2} offen {XOF[P.get('x_fl', 0)]}")
                else: A(f"buffer_store_dword v{vXfv}, v{vFlagO}, {WSR}, s{sSt3} offen sc1")
        xo = lambda i: (vS + 4 * i) if i < 4 else (vF + 4 * (i - 4))
        xr = lambda qt, h: vQ + 16 * qt + 4 * h
        def xrow_mfma(vox, vom):
            return ([f"v_mfma_f32_16x16x32_bf16 {v(xo(2*ct+qt),4)}, {v(vox+4*ct,4)}, {v(vPX+4*qt,4)}, 0" for ct in range(4) for qt in range(2)] +
                    [f"v_mfma_f32_16x16x16_bf16 {v(xo(2*ct+qt),4)}, {v(vom+2*ct,2)}, {v(vPX+8+2*qt,2)}, {v(xo(2*ct+qt),4)}" for ct in range(4) for qt in range(2)])
        xw = [f"ds_write_b128 v{vRed2W}, {v(xo(i),4)} offset:{1024*i}" for i in range(8)]
        xrd = [f"ds_read_b128 {v(xr(qt,h),4)}, v{vRed2R} offset:{8192*h+1024*qt}" for qt in range(2) for h in range(4)]
        def xadd(qt):
            b = xr(qt, 0)
            return ([f"v_add_f32 v{b+r}, v{b+r}, v{b+4+r}" for r in range(4)] + [f"v_add_f32 v{b+8+r}, v{b+8+r}, v{b+12+r}" for r in range(4)] +
                    [f"v_add_f32 v{b+r}, v{b+r}, v{b+8+r}" for r in range(4)] +
                    [f"v_cvt_pk_bf16_f32 v{vXOUT+2*qt+h}, v{b+2*h}, v{b+2*h+1}" for h in range(2)])
        mf = [(x, None) for x in xrow_mfma(voxn, vomo)]
        for ks in range(6):
            for t in range(2):
                for ct in range(4):
                    acc = vXA + 4 * (4 * t + ct)
                    cc = "0" if ks == 0 else v(acc, 4)
                    mf.append((f"v_mfma_f32_16x16x32_bf16 {v(acc,4)}, {a(aVX+4*(6*t+ks),4)}, {a(24*ct+4*ks,4)}, {cc}", (t, ks) if ct == 0 else None))
        ad = xadd(0) + xadd(1)
        sideq = [(17 + 2 * i, xw[i]) for i in range(8)] + [(34, "s_waitcnt lgkmcnt(0)"), (34, "s_barrier")]
        sideq += [(35, x) for x in xrd] + [(44, "s_waitcnt lgkmcnt(0)")] + [(44, x) for x in ad]
        for n, (x, vf) in enumerate(mf):
            A(x)
            room = 2
            nvf = mf[n + 1][1] if n + 1 < len(mf) else None
            if nvf in vpos: room -= 1
            if n % P["ldev"] == 0: nxt(); room -= 1
            while room and sideq and sideq[0][0] <= n:
                A(sideq.pop(0)[1]); room -= 1
            while room and sal:
                A(sal.pop(0)); room -= 1
            if nvf in vpos: need(vpos[nvf])
        for _, x in sideq: A(x)
        assert not sal
        fstamp(A, 10, 252)
        nxt(2)
        A(f"s_add_u32 s{sXv2}, s{sXk}, {24576 + 8192}")
        A(f"s_add_u32 s{sXv1}, s{sXk}, {24576 + 4096}")
        A(f"s_add_u32 s{sXv}, s{sXk}, 24576")
        A.nop(1)
        for ct in range(4):
            for t in range(2):
                for h in range(2):
                    src = vXA + 4 * (4 * t + ct) + 2 * h
                    A(f"v_cvt_pk_bf16_f32 v{voxn+4*ct+2*t+h}, v{src}, v{src+1}")
            nxt()
        nxt(99)
        stamp(A, 2, 252)
        fstamp(A, 11, 252)
        need(vpos["p"])
        A(f"s_cmp_lt_i32 s{sS}, 0")
        A(f"s_cbranch_scc1 {Lnox}{sfx}")
        Lpx, Lpxr = A.newlabel("px"), A.newlabel("pxr")
        A.label(Lpx)
        A(f"v_max3_u32 v{vMx}, v{vPX}, v{vPX+1}, v{vPX+2}")
        for i in range(3, 11, 2): A(f"v_max3_u32 v{vMx}, v{vPX+i}, v{vPX+i+1}, v{vMx}")
        A(f"v_max_u32 v{vMx}, v{vPX+11}, v{vMx}")
        A(f"v_cmp_eq_u32 vcc, -1, v{vMx}")
        A(f"s_cbranch_vccnz {Lpxr}")
        stamp(A, 3, 252)
        fstamp(A, 12, 252)
        fin_parts[par] = (xrow_mfma(voxc, vomc), xrow_mfma(voxn, vomo), xw, xrd, ad, smf, pxload, vomo)
        A.label(Lnox + sfx)
        stamp(A, 4, 252)
        if not P.get("x_split"): fstamp(A, 13, 252)
        fstamp_collect(A, 14, 252)
        stamp_flush(A, 252, 253)
        A(f"s_add_u32 s{sS}, s{sS}, 1")
        A(f"s_cmp_lg_u32 s{sS}, {P['nseg'] - 1}")
        A(f"s_cbranch_scc1 L_s2_top_{1-par}")
        A("s_branch L_s2_fin")
        if P["qchk"]:
            A.label(Lqr)
            budget_check(A, 6)
            for x in lds_[:6]: A(x)
            A(f"v_mov_b32 v{vMx}, 0")
            for j in range(3):
                A(f"s_waitcnt vmcnt({5-j})")
                k = 0
                for t in range(2):
                    for pr in range(2):
                        acc = vS + 4 * (2 * t + pr)
                        cc = "0" if j == 0 else v(acc, 4)
                        A(f"v_mfma_f32_16x16x32_bf16 {v(acc,4)}, {a(aKX+4*(6*t+2*j+pr),4)}, {v(vQ+4*j,4)}, {cc}")
                        if k < 2: A(chk(vQ + 4 * j + 2 * k))
                        k += 1
            A(f"v_cmp_eq_u32 vcc, -1, v{vMx}")
            A("s_waitcnt vmcnt(0)")
            A(f"s_cbranch_vccnz {Lqr}")
            A(f"s_branch {Lqb}")
        A.label(Lvs)
        A(f"v_mov_b32 v{vMx}, 0")
        for x in chks: A(x)
        A(f"v_cmp_eq_u32 vcc, -1, v{vMx}")
        A(f"s_cbranch_vccz {Lvb}")
        A.label(Lretry + sfx)
        budget_check(A, 6)
        A(f"s_branch {Latt}{sfx}")
        A.label(Lpxr)
        budget_check(A, 7)
        pxload()
        A("s_waitcnt vmcnt(0)")
        A(f"s_branch {Lpx}")
    A.label("L_s2_fin")
    xmA, xmB, xw, xrd, ad, smf, pxload, vomL = fin_parts[(P["nseg"] - 2) & 1]
    def xout():
        A(f"buffer_store_dwordx4 {v(vXOUT,4)}, v{vL16}, {WSR}, s{sSt1} offen sc1")
        A(f"s_add_u32 s{sSt1}, s{sSt1}, {XP_SEG}")
    def flag(val):
        A(f"v_mov_b32 v{vXfv}, {val}")
        A(f"buffer_store_dword v{vXfv}, v{vFlagO}, {WSR}, s{sXpF} offen sc1")
    def xrows(xm):
        for x in xm: A(x)
        A("s_barrier")
        for x in xw: A(x)
        A("s_waitcnt lgkmcnt(0)")
        A("s_barrier")
        for x in xrd: A(x)
        A("s_waitcnt lgkmcnt(0)")
        for x in ad: A(x)
        xout()
    xout()
    flag(P["nseg"] - 3)
    xrows(xmA)
    A(f"s_and_b32 s{sT0}, s{sS}, 3")
    A(f"s_mul_i32 s{sPx}, s{sT0}, 12288")
    A(f"s_add_u32 s{sPx}, s{sPx}, s{sPxBase}")
    def spin(load, base, code):
        L = A.newlabel("sp")
        A.label(L)
        load()
        budget_check(A, code)
        A("s_waitcnt vmcnt(0)")
        A(f"v_max3_u32 v{vMx}, v{base}, v{base+1}, v{base+2}")
        for i in range(3, 11, 2): A(f"v_max3_u32 v{vMx}, v{base+i}, v{base+i+1}, v{vMx}")
        A(f"v_max_u32 v{vMx}, v{base+11}, v{vMx}")
        A(f"v_cmp_eq_u32 vcc, -1, v{vMx}")
        A(f"s_cbranch_vccnz {L}")
    def vmload():
        for j in range(3):
            A(f"buffer_load_dwordx4 {v(vVM+4*j,4)}, v{vL16}, {WSR}, s{sQkv2} offen offset:{1024*j} sc1")
    for r in range(16): A(f"v_mov_b32 v{vVA+r}, 0")
    spin(vmload, vVM, 6)
    flag(P["nseg"] - 1)
    for x in smf: A(x)
    A.nop(8)
    for ct in range(4):
        A(f"v_cvt_pk_bf16_f32 v{vomL+2*ct}, v{vVA+4*ct}, v{vVA+4*ct+2}")
        A(f"v_cvt_pk_bf16_f32 v{vomL+2*ct+1}, v{vVA+4*ct+1}, v{vVA+4*ct+3}")
    spin(pxload, vPX, 7)
    xrows(xmB)
    A("s_waitcnt vmcnt(0)")
    flag(P["nseg"])
    if not P.get("diag"): ostamp(A, 0, 2)
    A("s_branch L_end")

def gen_xs(A):
    sHH = 30
    sQkv, sQkvBase, sXq, sXrBase, sXrEnd, sPx, sPxP, sPxBase, sXfl, sC, sNeed = 31, 32, 33, 34, 35, 36, 37, 38, 39, 40, 41
    sXa = 42
    sMask = 48
    sPf, sMk1, sQT = 64, 65, 66
    vPf = 140
    vL16, vKmO, vL8, vXflO, vNeg, vProbe = 1, 2, 3, 4, 5, 6
    vPois = 8
    vT = 12
    vFl, vMx = 20, 21
    vQ, vKX, vKM = 24, 48, 96
    vS = 120
    vPb = 132
    c = (192 ** -0.5) * math.log2(math.e)
    A.label("L_xs")
    A("s_setprio 3")
    A(f"s_sub_u32 s{sHH}, s{sR}, 28")
    A(f"s_lshl_b32 s{sHH}, s{sHH}, 1")
    A(f"s_lshr_b32 s{sT0}, s{sW}, 1")
    A(f"s_add_u32 s{sHH}, s{sHH}, s{sT0}")
    A(f"s_and_b32 s{sQT}, s{sW}, 1")
    A(f"v_lshlrev_b32 v{vL16}, 4, v0")
    A(f"v_lshlrev_b32 v{vL8}, 3, v0")
    A(f"v_and_b32 v{vKmO}, 0x37, v0")
    A(f"v_lshlrev_b32 v{vKmO}, 4, v{vKmO}")
    A(f"v_min_u32 v{vXflO}, 11, v0")
    A(f"v_lshlrev_b32 v{vXflO}, 2, v{vXflO}")
    A(f"v_min_u32 v{vProbe}, 17, v0")
    A(f"v_lshlrev_b32 v{vProbe}, 2, v{vProbe}")
    A(f"s_lshl_b32 s{sMk1}, s{sG}, 7")
    A(f"s_add_u32 s{sMk1}, s{sMk1}, {S1MARK}")
    for r in range(4): A(f"v_mov_b32 v{vPois+r}, -1")
    A(f"v_mov_b32 v{vNeg}, {f2u(-1e9 * 192 ** 0.5):#x}")
    A(f"v_and_b32 v{vT}, 15, v0")
    A(f"s_lshl_b32 s{sT0}, s{sQT}, 4")
    A(f"v_add_u32 v{vT}, s{sT0}, v{vT}")
    A(f"v_lshrrev_b32 v{vT+1}, 4, v0")
    A(f"v_lshlrev_b32 v{vT+1}, 2, v{vT+1}")
    for t in range(2):
        for r in range(4):
            A(f"v_add_u32 v{vT+2}, {16*t+r}, v{vT+1}")
            A(f"v_cmp_le_u32 s[{sMask+2*(4*t+r)}:{sMask+2*(4*t+r)+1}], v{vT+2}, v{vT}")
    A(f"s_mul_i32 s{sQkvBase}, s{sG}, 147456")
    A(f"s_mul_i32 s{sT0}, s{sHH}, 9216")
    A(f"s_add_u32 s{sQkvBase}, s{sQkvBase}, s{sT0}")
    A(f"s_add_u32 s{sQkvBase}, s{sQkvBase}, {QKVR + 3072}")
    A(f"s_mul_i32 s{sXrBase}, s{sG}, {XR_G}")
    A(f"s_mul_i32 s{sT0}, s{sHH}, {XR_HEAD}")
    A(f"s_add_u32 s{sXrBase}, s{sXrBase}, s{sT0}")
    A(f"s_add_u32 s{sXrBase}, s{sXrBase}, {XR}")
    A(f"s_add_u32 s{sXrEnd}, s{sXrBase}, {XR_G}")
    A(f"s_mov_b32 s{sXq}, s{sXrBase}")
    A(f"s_mul_i32 s{sPxBase}, s{sG}, 49152")
    A(f"s_mul_i32 s{sT0}, s{sHH}, 3072")
    A(f"s_add_u32 s{sPxBase}, s{sPxBase}, s{sT0}")
    A(f"s_lshl_b32 s{sT0}, s{sQT}, 10")
    A(f"s_add_u32 s{sPxBase}, s{sPxBase}, s{sT0}")
    A(f"s_mul_i32 s{sT0}, s{sQT}, 1016")
    A(f"s_sub_u32 s{sT0}, 2048, s{sT0}")
    A(f"v_add_u32 v{vL8}, s{sT0}, v{vL16}")
    A(f"s_add_u32 s{sPxBase}, s{sPxBase}, {PXR}")
    A(f"s_lshl_b32 s{sXfl}, s{sG}, 9")
    A(f"s_mul_i32 s{sT0}, s{sHH}, 72")
    A(f"s_add_u32 s{sXfl}, s{sXfl}, s{sT0}")
    A(f"s_add_u32 s{sXfl}, s{sXfl}, {XFLAG}")
    A(f"s_mov_b32 s{sC}, {f2u(c):#x}")
    A(f"s_mov_b32 s{sS}, 0")
    A(f"s_lshl_b32 s{sPf}, s{sHH}, 1")
    A(f"s_add_u32 s{sPf}, s{sPf}, s{sQT}")
    A(f"s_lshl_b32 s{sPf}, s{sPf}, 3")
    A(f"s_add_u32 s{sPf}, s{sPf}, s{sG}")
    A(f"s_lshl_b32 s{sPf}, s{sPf}, 12")
    A(f"s_add_u32 s{sPf}, s{sPf}, 81920")
    for k in range(4):
        A(f"buffer_load_dwordx4 {v(vPf,4)}, v{vL16}, s[{sX}:{sX+3}], s{sPf} offen offset:{1024*k}")
    A(f"s_lshl_b32 s{sPf}, s{sHH}, 1")
    A(f"s_add_u32 s{sPf}, s{sPf}, s{sQT}")
    A(f"s_mul_i32 s{sPf}, s{sPf}, 5120")
    gen_locality(A, "L_xs_loc", "L_xs_glb", vT)
    for mode in ("loc", "glb"):
        sc = "" if mode == "loc" else " sc1"
        A.label(f"L_xs_{mode}")
        Lf, Lk = A.newlabel("xsf"), A.newlabel("xsk")
        fstamp(A, 5, 250)
        A(f"s_add_u32 s{sNeed}, s{sS}, 1")
        A.label(Lf)
        A(f"buffer_load_dword v{vFl}, v{vXflO}, {WSR}, s{sXfl} offen sc1")
        budget_check(A, 8)
        A("s_waitcnt vmcnt(0)")
        A(f"v_cmp_gt_u32 vcc, s{sNeed}, v{vFl}")
        A(f"s_cbranch_vccnz {Lf}")
        fstamp(A, 6, 250)
        A(f"s_lshl_b32 s{sT0}, s{sQT}, 10")
        A(f"s_add_u32 s{sXa}, s{sXq}, s{sT0}")
        A(f"s_add_u32 s{sXa+1}, s{sXa}, 4096")
        A(f"s_add_u32 s{sXa+2}, s{sXa}, 8192")
        A(f"s_add_u32 s{sXa+3}, s{sXq}, 12288")
        A(f"s_add_u32 s{sXa+4}, s{sXq}, {12288+4096}")
        A(f"s_add_u32 s{sXa+5}, s{sXq}, {12288+8192}")
        for ks in range(6):
            A(f"buffer_load_dwordx4 {v(vQ+4*ks,4)}, v{vL16}, {WSR}, s{sXa+ks//2} offen offset:{2048*(ks&1)} sc1")
            for t in range(2):
                A(f"buffer_load_dwordx4 {v(vKX+4*(6*t+ks),4)}, v{vL16}, {WSR}, s{sXa+3+ks//2} offen offset:{2048*(ks&1)+1024*t} sc1")
        A(f"s_add_u32 s{sXq}, s{sXq}, {XR_SLOT}")
        A(f"s_cmp_eq_u32 s{sXq}, s{sXrEnd}")
        A(f"s_cselect_b32 s{sXq}, s{sXrBase}, s{sXq}")
        A(f"s_and_b32 s{sT0}, s{sS}, 3")
        A(f"s_mul_i32 s{sQkv}, s{sT0}, 36864")
        A(f"s_add_u32 s{sQkv}, s{sQkv}, s{sQkvBase}")
        A(f"s_mul_i32 s{sPx}, s{sT0}, 12288")
        A(f"s_add_u32 s{sPx}, s{sPx}, s{sPxBase}")
        A(f"s_add_u32 s{sT0}, s{sS}, 2")
        A(f"s_and_b32 s{sT0}, s{sT0}, 3")
        A(f"s_mul_i32 s{sPxP}, s{sT0}, 12288")
        A(f"s_add_u32 s{sPxP}, s{sPxP}, s{sPxBase}")
        for ks in range(6):
            A(f"s_waitcnt vmcnt({15 - 3 * ks})")
            for t in range(2):
                cc = "0" if ks == 0 else v(vS + 4 * t, 4)
                A(f"v_mfma_f32_16x16x32_bf16 {v(vS+4*t,4)}, {v(vKX+4*(6*t+ks),4)}, {v(vQ+4*ks,4)}, {cc}")
        fstamp(A, 7, 250)
        A.label(Lk)
        if P["xs_slp"]: A(f"s_sleep {P['xs_slp']}")
        A(f"buffer_load_dword v{vMx}, v{vProbe}, {WSR}, s{sMk1} offen{' offset:1024' if P['mk2'] else ''} sc1")
        budget_check(A, 9)
        A("s_waitcnt vmcnt(0)")
        A(f"v_cmp_ge_i32 vcc, s{sS}, v{vMx}")
        A(f"s_cbranch_vccnz {Lk}")
        for ks in range(6):
            A(f"buffer_load_dwordx4 {v(vKM+4*ks,4)}, v{vKmO}, {WSR}, s{sQkv} offen offset:{1024*(ks>>1)+128*(ks&1)} sc1")
        A("s_waitcnt vmcnt(0)")
        A(f"v_max3_u32 v{vMx}, v{vKM}, v{vKM+1}, v{vKM+2}")
        for i in range(3, 23, 2): A(f"v_max3_u32 v{vMx}, v{vKM+i}, v{vKM+i+1}, v{vMx}")
        A(f"v_max_u32 v{vMx}, v{vKM+23}, v{vMx}")
        A(f"v_cmp_eq_u32 vcc, -1, v{vMx}")
        A(f"s_cbranch_vccnz {Lk}")
        fstamp(A, 8, 250)
        for ks in range(6):
            cc = "0" if ks == 0 else v(vS + 8, 4)
            A(f"v_mfma_f32_16x16x32_bf16 {v(vS+8,4)}, {v(vKM+4*ks,4)}, {v(vQ+4*ks,4)}, {cc}")
        A(f"buffer_store_dwordx4 {v(vPois,4)}, v{vL16}, {WSR}, s{sPxP} offen{sc}")
        A(f"buffer_store_dwordx2 {v(vPois,2)}, v{vL8}, {WSR}, s{sPxP} offen{sc}")
        for i in range(8):
            A(f"v_cndmask_b32 v{vS+i}, v{vNeg}, v{vS+i}, s[{sMask+2*i}:{sMask+2*i+1}]")
        vm, vt2 = vT, vT + 1
        A(f"v_max3_f32 v{vm}, v{vS}, v{vS+1}, v{vS+2}")
        for i in range(3, 11, 2): A(f"v_max3_f32 v{vm}, v{vS+i}, v{vS+i+1}, v{vm}")
        A(f"v_max_f32 v{vm}, v{vS+11}, v{vm}")
        for sw in ("32", "16"):
            A(f"v_mov_b32 v{vt2}, v{vm}")
            A("s_nop 1")
            A(f"v_permlane{sw}_swap_b32 v{vm}, v{vt2}")
            A(f"v_max_f32 v{vm}, v{vm}, v{vt2}")
        A(f"v_mul_f32 v{vm}, s{sC}, v{vm}")
        for i in range(12): A(f"v_fma_f32 v{vS+i}, v{vS+i}, s{sC}, -v{vm}")
        for i in range(12): A(f"v_exp_f32 v{vS+i}, v{vS+i}")
        A(f"v_add_f32 v{vT+2}, v{vS+8}, v{vS+9}")
        A(f"v_add_f32 v{vT+3}, v{vS}, v{vS+1}")
        A(f"v_add_f32 v{vT+2}, v{vT+2}, v{vS+10}")
        A(f"v_add_f32 v{vT+2}, v{vT+2}, v{vS+11}")
        for i in range(2, 8): A(f"v_add_f32 v{vT+3}, v{vT+3}, v{vS+i}")
        A(f"v_fma_f32 v{vm}, v{vT+2}, 0.5, v{vT+3}")
        for sw in ("32", "16"):
            A(f"v_mov_b32 v{vt2}, v{vm}")
            A("s_nop 1")
            A(f"v_permlane{sw}_swap_b32 v{vm}, v{vt2}")
            A(f"v_add_f32 v{vm}, v{vm}, v{vt2}")
        A(f"v_rcp_f32 v{vm}, v{vm}")
        A("s_nop 0")
        for i in range(12): A(f"v_mul_f32 v{vS+i}, v{vS+i}, v{vm}")
        for i in range(4): A(f"v_cvt_pk_bf16_f32 v{vPb+i}, v{vS+2*i}, v{vS+2*i+1}")
        for i in range(2): A(f"v_cvt_pk_bf16_f32 v{vPb+4+i}, v{vS+8+i}, v{vS+10+i}")
        A(f"buffer_store_dwordx4 {v(vPb,4)}, v{vL16}, {WSR}, s{sPx} offen{sc}")
        A(f"buffer_store_dwordx2 {v(vPb+4,2)}, v{vL8}, {WSR}, s{sPx} offen{sc}")
        fstamp(A, 9, 250)
        if P["prof"] in (3, 5):
            A("s_waitcnt lgkmcnt(0)")
            for i in range(5, 10): A(f"v_writelane_b32 v250, s{60+2*i}, {i}")
            stamp_flush(A)
        if P["xpf"]:
            A(f"s_add_u32 s{sT0}, s{sS}, {P['xpf']}")
            A(f"s_mul_i32 s{sT0}, s{sT0}, 40960")
            A(f"s_add_u32 s{sT0}, s{sT0}, s{sPf}")
            for i in range(4):
                A(f"buffer_load_dwordx4 {v(vPf,4)}, v{vL16}, s[{sX}:{sX+3}], s{sT0} offen offset:{1024*i}")
            A(f"s_add_u32 s{sT0}, s{sT0}, 4096")
            A(f"buffer_load_dwordx4 {v(vPf,4)}, v{vL16}, s[{sX}:{sX+3}], s{sT0} offen")
        A(f"s_add_u32 s{sS}, s{sS}, 1")
        A(f"s_cmp_lg_u32 s{sS}, {P['nseg']}")
        A(f"s_cbranch_scc1 L_xs_{mode}")
        A("s_branch L_end")

def gen_main(A):
    A(".p2align 8")
    A(f".type {NAME},@function")
    A.label(NAME)
    gen_common_prologue(A)
    A(f"s_cmp_lt_u32 s{sR}, 18")
    A("s_cbranch_scc1 L_s1")
    A(f"s_cmp_lt_u32 s{sR}, 28")
    A("s_cbranch_scc1 L_s2")
    A("s_branch L_init")
    A.label("L_fail")
    A(f"v_mov_b32 v1, s{sT3}")
    A(f"s_lshl_b32 s{sT3}, s{sT3}, 2")
    A(f"s_add_u32 s{sT3}, s{sT3}, {DBG_FAIL}")
    A(f"v_mov_b32 v2, s{sT3}")
    A(f"v_mov_b32 v1, s{sS}")
    A(f"v_add_u32 v1, 1000, v1")
    A(f"buffer_store_dword v1, v2, s[{sDBG}:{sDBG+3}], 0 offen")
    A.label("L_end")
    A("s_endpgm")
    gen_init(A)
    gen_s1(A)
    gen_s2(A)
    gen_xs(A)
    try:
        import gen_bg_v15 as gen_bg
        gen_bg.gen_bg(A, sys.modules[__name__])
        A.label("L_code_end")
    except ImportError:
        A.label("L_bg")
        A("s_endpgm")

HEADER = open("gated_mix__memory_aug_recurrent_mem_tr__ssm_conv_h3__prompt.s.ref").read().split("; Override launch")[0]

def kd(name, vgpr, acc, sgpr=96):
    return f""".amdhsa_kernel {name}
  .amdhsa_next_free_vgpr {vgpr}
  .amdhsa_next_free_sgpr {sgpr}
  .amdhsa_accum_offset {acc}
  .amdhsa_group_segment_fixed_size 0
  .amdhsa_kernarg_size 136
  .amdhsa_user_sgpr_count 2
  .amdhsa_user_sgpr_kernarg_segment_ptr 1
  .amdhsa_system_sgpr_workgroup_id_x 1
  .amdhsa_float_denorm_mode_32 3
.end_amdhsa_kernel
"""

def generate(**kw):
    P.update(kw)
    A = Asm()
    A('.amdgcn_target "amdgcn-amd-amdhsa--gfx950"')
    A(".text")
    A(f".globl {NAME}")
    gen_main(A)
    probs = check_hazards(A.lines)
    txt = HEADER
    txt += "; @launch grid=(256,1,1) block=(256,1,1) lds=163840\n"
    txt += A.text()
    txt += '.section .rodata,"a"\n.p2align 6\n' + kd(NAME, 512, 256)
    return txt, probs

if __name__ == "__main__":
    kw = {}
    out = "gated_mix__memory_aug_recurrent_mem_tr__ssm_conv_h3__prompt.s"
    for arg in sys.argv[1:]:
        if "=" in arg:
            k, val = arg.split("="); kw[k] = int(val)
        else:
            out = arg
    txt, probs = generate(**kw)
    open(out, "w").write(txt)
    print("wrote", out, len(txt), "bytes;", len(probs), "hazards")
```
